```python
import torch

def _softmax(x, axis=-1):
    return torch.softmax(x, dim=axis)
def _gelu(x):
    return torch.nn.functional.gelu(x, approximate="tanh")
def _silu(x):
    return torch.nn.functional.silu(x)
def _sigmoid(x):
    return torch.sigmoid(x)
def _layernorm(x, axis=-1, eps=1e-5):
    m = x.mean(dim=axis, keepdim=True)
    v = x.var(dim=axis, keepdim=True, unbiased=False)
    return (x - m) / torch.sqrt(v + eps)
def _scatter_add(tgt, idx, src, axis=0):
    return tgt.clone().index_add_(axis, idx, src)
def _segment_sum(src, seg, n):
    out = torch.zeros((n,) + src.shape[1:], dtype=src.dtype)
    return out.index_add_(0, seg, src)
def _pad(x, pw):
    flat = tuple(v for pair in reversed(pw) for v in pair)
    return torch.nn.functional.pad(x, flat)

kernel_name = 'parallel_sum__linear_kernel_hedgehog__moe_arch_mod__prompt'

def setup_inputs():

    _w = (lambda a: (lambda t: t.to(torch.bfloat16) if t.is_floating_point() else t)(torch.as_tensor(a)))
    def _A_setup():
        B, S, D, H = 1, 2048, 640, 32
        Dh = D // H
        return {
            "x": _w((lambda *s: torch.randn(*s, dtype=torch.bfloat16) * 0.05)(B, S, D)),
            "wqkv": _w((lambda *s: torch.randn(*s, dtype=torch.bfloat16) * 0.4)(D, 3 * D)),
            "w_phi": _w((lambda *s: torch.randn(*s, dtype=torch.bfloat16) * 0.4)(H, Dh, Dh) * (Dh ** -0.5)),
            "wo": _w((lambda *s: torch.randn(*s, dtype=torch.bfloat16) * 0.1)(D, D)),
        }
    _A_in = _A_setup()

    def _B_setup():
        B, S, D, F, C = 1, 2048, 640, 1728, 1
        return {
            "x": _w((lambda *s: torch.randn(*s, dtype=torch.bfloat16) * 0.05)(B, S, D)),
            "w_r": _w((lambda *s: torch.randn(*s, dtype=torch.bfloat16) * 0.05)(D)),
            "w_gate": _w((lambda *s: torch.randn(*s, dtype=torch.bfloat16) * 0.05)(D, F)),
            "w_up": _w((lambda *s: torch.randn(*s, dtype=torch.bfloat16) * 0.05)(D, F)),
            "w_down": _w((lambda *s: torch.randn(*s, dtype=torch.bfloat16) * 0.05)(F, D)),
        }
    _B_in = _B_setup()

    return {
        "A_x": _A_in["x"],
        "A_wqkv": _A_in["wqkv"],
        "A_w_phi": _A_in["w_phi"],
        "A_wo": _A_in["wo"],
        "B_x": _B_in["x"],
        "B_w_r": _B_in["w_r"],
        "B_w_gate": _B_in["w_gate"],
        "B_w_up": _B_in["w_up"],
        "B_w_down": _B_in["w_down"],
    }

def reference(A_x, A_wqkv, A_w_phi, A_wo, B_x, B_w_r, B_w_gate, B_w_up, B_w_down):
    def _A_ref(x, wqkv, w_phi, wo):
        B, S, D = x.shape
        H = 32; Dh = D // H
        qkv = (lambda x, *d: x.permute(*d))((x @ wqkv).reshape(B, S, 3, H, Dh), 2, 0, 3, 1, 4)
        q, k, v = qkv[0], qkv[1], qkv[2]
        pq = torch.einsum("bhsd,hdf->bhsf", q, w_phi)
        pk = torch.einsum("bhsd,hdf->bhsf", k, w_phi)
        phi_q = torch.concatenate([_softmax(pq, axis=-1), _softmax(-pq, axis=-1)], axis=-1)
        phi_k = torch.concatenate([_softmax(pk, axis=-1), _softmax(-pk, axis=-1)], axis=-1)
        kv = torch.einsum("bhsf,bhsd->bhfd", phi_k, v)
        z  = torch.einsum("bhsf->bhf", phi_k)
        num = torch.einsum("bhqf,bhfd->bhqd", phi_q, kv)
        den = torch.einsum("bhqf,bhf->bhq", phi_q, z)[..., None] + 1e-6
        o = num / den
        return (lambda x, *d: x.permute(*d))(o, 0, 2, 1, 3).reshape(B, S, D) @ wo

    def _B_ref(x, w_r, w_gate, w_up, w_down):
        B, S, D = x.shape
        C = 1
        r = x @ w_r
        idx = torch.argsort(-r, axis=-1)[:, :C]
        idx_e = (lambda x, n, axis: torch.repeat_interleave(x, n, dim=axis))(idx.reshape(B, C, 1), D, axis=2)
        x_sel = (lambda x, i, axis: torch.take_along_dim(x, i, dim=axis))(x, idx_e, axis=1)
        g = _silu(x_sel @ w_gate)
        u = x_sel @ w_up
        y = (g * u) @ w_down
        r_sel = _sigmoid((lambda x, i, axis: torch.take_along_dim(x, i, dim=axis))(r, idx, axis=1))
        y = y * r_sel.reshape(B, C, 1)
        b_off = (torch.arange(B) * S).reshape(B, 1)
        flat_idx = (idx + b_off).reshape(B * C)
        zero = (x * 0.0).reshape(B * S, D)
        upd = _scatter_add(zero, flat_idx, y.reshape(B * C, D), axis=0)
        return x + upd.reshape(B, S, D)

    x = A_x
    xn = _layernorm(x, axis=-1)
    return x + _A_ref(xn, A_wqkv, A_w_phi, A_wo) + _B_ref(xn, B_w_r, B_w_gate, B_w_up, B_w_down)
```

```python
class Asm:
    def __init__(self):
        self.lines = []
        self._uid = 0

    def __call__(self, text=""):
        for ln in text.split("\n"):
            self.lines.append(ln)

    def label(self, name):
        self.lines.append(f"{name}:")

    def uid(self, prefix="L"):
        self._uid += 1
        return f"{prefix}_{self._uid}"

    def text(self):
        return "\n".join(self.lines) + "\n"


def vr(base, n=1):
    return f"v{base}" if n == 1 else f"v[{base}:{base + n - 1}]"


def ar(base, n=1):
    return f"a{base}" if n == 1 else f"a[{base}:{base + n - 1}]"


def sr(base, n=1):
    return f"s{base}" if n == 1 else f"s[{base}:{base + n - 1}]"


def kernel_header(name):
    return (f".globl {name}\n.p2align 8\n.type {name},@function\n{name}:\n")


def kernel_desc(name, vgpr, sgpr=102, accum=None, wg_y=False):
    if accum is None:
        accum = min(256, (vgpr + 3) // 4 * 4)
    s = f""".amdhsa_kernel {name}
  .amdhsa_next_free_vgpr {vgpr}
  .amdhsa_next_free_sgpr {sgpr}
  .amdhsa_accum_offset {accum}
  .amdhsa_group_segment_fixed_size 0
  .amdhsa_kernarg_size 96
  .amdhsa_user_sgpr_count 2
  .amdhsa_user_sgpr_kernarg_segment_ptr 1
  .amdhsa_system_sgpr_workgroup_id_x 1
"""
    if wg_y:
        s += "  .amdhsa_system_sgpr_workgroup_id_y 1\n"
    s += "  .amdhsa_float_denorm_mode_32 3\n"
    s += ".end_amdhsa_kernel\n"
    return s
```

```python
from gen import *

S_RB64, S_CB, S_MU, S_RSEL, S_ROW0 = 20, 21, 22, 23, 12
S_QC = 13
L_G   = L_T
L_U   = L_T + 20480 + 128
L_WO  = 0
L_OST = 102400
L_YR  = L_OST + 4 * 5376
CNT_KV, CNT_O, CNT_M = 0, 16, 32
SPIN_LIMIT = 200000

class Full(Gen):
    def poll(self, name, srd_n, vaddr_setup, target, nl=1):
        g = self
        lab = f"L_poll_{name}"
        g(vaddr_setup)
        g(f"s_mov_b32 exec_lo, {(1 << nl) - 1}\ns_mov_b32 exec_hi, 0")
        g(f"""
        s_mov_b32 s74, 0
{lab}:
        buffer_load_dword v10, v9, {srd(srd_n)}, 0 offen sc1
        s_add_u32 s74, s74, 1
        s_cmp_gt_u32 s74, {SPIN_LIMIT}
        s_cbranch_scc1 {lab}_out
        s_waitcnt vmcnt(0)
        v_cmp_ne_u32 vcc, {target}, v10
        s_cbranch_vccnz {lab}
{lab}_out:
        s_waitcnt vmcnt(0)
        s_mov_b64 exec, -1
        """)

    def signal(self, name, cnt_sgpr_expr):
        g = self
        g(f"""
        s_waitcnt vmcnt(0)
        s_barrier
        s_cmp_lg_u32 s{S_WAVE}, 0
        s_cbranch_scc1 L_nosig_{name}
        """)
        g(cnt_sgpr_expr + " ; HZ_SKIP_BEGIN")
        g(f"""
        s_lshl_b32 s{S_T0}, s{S_T0}, 7
        v_mov_b32 v9, s{S_T0}
        v_mov_b32 v10, 1
        s_mov_b64 exec, 1
        buffer_atomic_add v10, v9, {srd(SRD_WS)}, 0 offen sc1
        s_mov_b64 exec, -1         ; HZ_SKIP_END
L_nosig_{name}:
        """)

    def publish_kv(self):
        g = self
        g(f"""
        s_cmp_lg_u32 s{S_HP}, 0
        s_cbranch_scc1 L_nostats
        s_lshl_b32 s{S_T0}, s{S_RB}, 7       ; HZ_SKIP_BEGIN
        s_lshl_b32 s{S_T1}, s{S_WAVE}, 5
        s_add_u32 s{S_T0}, s{S_T0}, s{S_T1}
        s_lshl_b32 s{S_T0}, s{S_T0}, 3
        s_add_u32 s{S_T0}, s{S_T0}, {WS_STATS}
        v_lshlrev_b32 v9, 3, v2
        v_mov_b32 v10, v91
        v_mov_b32 v11, v90
        s_mov_b32 exec_hi, 0
        buffer_store_dwordx2 v[10:11], v9, {srd(SRD_WS)}, s{S_T0} offen sc1
        s_mov_b64 exec, -1                   ; HZ_SKIP_END
L_nostats:
        """)
        self.poll("ready", SRD_DBG, "v_mov_b32 v9, 240", 1)
        self.signal("kv", f"s_add_u32 s{S_T0}, s{S_HP}, {CNT_KV}")
        self.stamp("kvsig")

    def moe_roles(self):
        g = self
        g(f"""
        s_mul_i32 s{S_MU}, s{S_XCD}, 14
        s_add_u32 s{S_MU}, s{S_MU}, s{S_SLOT}
        s_cmp_lt_u32 s{S_SLOT}, 14
        s_cselect_b32 s{S_MU}, s{S_MU}, 255
        s_lshr_b32 s{S_T0}, s{S_SLOT}, 3
        s_lshl_b32 s{S_T1}, s{S_XCD}, 2
        s_add_u32 s{S_RB64}, s{S_T0}, s{S_T1}
        s_and_b32 s{S_CB}, s{S_SLOT}, 7
        s_lshl_b32 s{S_ROW0}, s{S_RB64}, 6
        s_lshl_b32 s{S_T0}, s{S_WAVE}, 4
        s_add_u32 s{S_ROW0}, s{S_ROW0}, s{S_T0}
        """)

    WD = 160
    def moe_loads(self):
        g = self
        g(f"""
        s_cmp_ge_u32 s{S_MU}, 108
        s_cbranch_scc1 L_nomoeld
        v_lshrrev_b32 v9, 1, v1                ; HZ_SKIP_BEGIN
        v_mul_u32_u24 v9, 3456, v9
        v_and_b32 v10, 1, v1
        v_lshl_add_u32 v9, v10, 4, v9
        s_lshl_b32 s{S_T0}, s{S_MU}, 5
        s_mul_i32 s{S_T1}, s{S_WAVE}, {5*32*3456}
        s_add_u32 s{S_T0}, s{S_T0}, s{S_T1}
        s_mul_i32 s{S_T1}, s{S_WAVE}, 5120
        """)
        for j in range(5):
            g(f"""
            s_add_u32 m0, s{S_T1}, {L_G + j*1024}
            s_add_u32 s{S_T2}, s{S_T0}, {j*32*3456}
            buffer_load_dwordx4 v9, {srd(SRD_G)}, s{S_T2} offen lds
            s_add_u32 m0, s{S_T1}, {L_U + j*1024}
            s_nop 0
            buffer_load_dwordx4 v9, {srd(SRD_U)}, s{S_T2} offen lds
            """)
        g(f"""
        v_lshlrev_b32 v9, 3, v0
        s_mul_i32 s{S_T0}, s{S_MU}, {16*1280}
        v_cmp_gt_u32 vcc, 160, v0
        s_and_saveexec_b64 {s2(S_MA)}, vcc
        s_cbranch_execz L_nowd
        """)
        for u in range(16):
            mark = " ; HZ_SKIP_END" if u == 15 else ""
            g(f"buffer_load_dwordx2 {ac(self.WD+2*u,2)}, v9, {srd(SRD_D)}, s{S_T0} offen\ns_add_u32 s{S_T0}, s{S_T0}, 1280{mark}")
        g("L_nowd:\ns_mov_b64 exec, -1\nL_nomoeld:")

    def p2_reads(self, n):
        i, ks = divmod(n, 4); b = n % 3
        base = 128 + (i & 1)
        out = []
        for t in range(2):
            for rd in range(2):
                out.append(f"ds_read_b64_tr_b16 {v(92+12*b+4*t+2*rd,2)}, v{base} offset:{(16*ks+4*rd)*80 + 64*t}")
        for rd in range(2):
            out.append(f"ds_read_b64_tr_b16 {v(160+4*b+2*rd,2)}, v{130 + (i & 1)} offset:{(16*ks+4*rd)*80}")
        return out

    def p2_base(self, i):
        r = i & 1
        return [f"v_add_u32 v{128+r}, s{S_QC}, v132", f"v_add_u32 v{130+r}, s{S_QC}, v133",
                f"s_add_u32 s{S_QC}, s{S_QC}, 5120", f"s_cmp_eq_u32 s{S_QC}, 51200", f"s_cselect_b32 s{S_QC}, 0, s{S_QC}"]

    def pass2(self):
        g = self
        g(f"""
        v_bfe_u32 v9, v1, 2, 2
        v_lshl_add_u32 v9, v3, 3, v9
        v_mul_u32_u24 v9, 80, v9
        v_bfe_u32 v10, v1, 4, 1
        v_and_b32 v11, 3, v1
        v_lshl_add_u32 v10, v10, 2, v11
        v_lshl_add_u32 v9, v10, 3, v9
        v_add_u32 v132, {L_WQ}, v9
        s_lshl_b32 s{S_T0}, s{S_WAVE}, 6
        v_add_u32 v133, s{S_T0}, v132
        s_mul_i32 s{S_QC}, s{S_C0}, 5120
        """)
        for x in self.p2_base(0): g(x)
        for x in self.p2_reads(0): g(x)
        for x in self.p2_reads(1): g(x)
        for n in range(40):
            i, ks = divmod(n, 4); b = n % 3
            if ks == 1 and i < 9:
                for x in self.p2_base(i + 1): g(x)
            g("s_waitcnt lgkmcnt(0)" if n == 39 else "s_waitcnt lgkmcnt(6)")
            rd = self.p2_reads(n + 2) if n + 2 < 40 else []
            XP = ac(4*n, 4)
            WF = lambda t: 92 + 12*b + 4*t
            cin = lambda r, k: "0" if n == 0 else v(r, k)
            g(f"v_mfma_f32_32x32x16_bf16 v[16:31], {v(WF(0),4)}, {XP}, {cin(16,16)}")
            for x in rd[0:3]: g(x)
            g(f"v_mfma_f32_32x32x16_bf16 v[32:47], {v(WF(1),4)}, {XP}, {cin(32,16)}")
            for x in rd[3:6]: g(x)
            g(f"v_mfma_f32_4x4x4_16b_bf16 v[76:79], {v(160+4*b,2)}, v[84:85], {cin(76,4)}")
            g(f"v_mfma_f32_4x4x4_16b_bf16 v[80:83], {v(160+4*b+2,2)}, v[84:85], {cin(80,4)}")
        self.stamp("p2end")

    def q_epilogue(self):
        g = self
        self.stats_and_colsum(False)
        quads = [(16+4*j, 8*j) for j in range(4)] + [(32, 32)]
        self.normalise(quads, 512)
        PK = 244
        for i in range(10):
            g(f"v_cvt_pk_bf16_f32 v{PK+i}, v{16+2*i}, v{16+2*i+1}")
        self.featmap(PK, 220, 232)
        self.dump("phiq", list(range(220, 244)))
        self.stamp("qdone")

    def argmax(self):
        g = self
        self.poll("rmax", SRD_DBG, "v_lshlrev_b32 v9, 6, v1", 64, nl=4)
        g(f"""
        v_lshlrev_b32 v9, 5, v1
        v_add_u32 v9, {WS_RMAX}, v9
        buffer_load_dwordx4 v[160:163], v9, {srd(SRD_WS)}, 0 offen sc1
        buffer_load_dwordx4 v[164:167], v9, {srd(SRD_WS)}, 0 offen offset:16 sc1
        s_waitcnt vmcnt(0)
        v_cmp_gt_f32 vcc, v162, v160
        v_cndmask_b32 v160, v160, v162, vcc
        v_cndmask_b32 v161, v161, v163, vcc
        v_cmp_gt_f32 vcc, v164, v160
        v_cndmask_b32 v160, v160, v164, vcc
        v_cndmask_b32 v161, v161, v165, vcc
        v_cmp_gt_f32 vcc, v166, v160
        v_cndmask_b32 v160, v160, v166, vcc
        v_cndmask_b32 v161, v161, v167, vcc
        v_mov_b32 v162, v160
        """)
        for ctl in ("row_shr:1 row_mask:0xf bank_mask:0xf", "row_shr:2 row_mask:0xf bank_mask:0xf",
                    "row_shr:4 row_mask:0xf bank_mask:0xf", "row_shr:8 row_mask:0xf bank_mask:0xf",
                    "row_bcast:15 row_mask:0xa bank_mask:0xf", "row_bcast:31 row_mask:0xc bank_mask:0xf"):
            g(f"v_max_f32_dpp v162, v162, v162 {ctl}")
        g(f"""
        v_readlane_b32 s{S_RSEL}, v162, 63
        v_cmp_eq_f32 vcc, s{S_RSEL}, v160
        s_ff1_i32_b64 s{S_T0}, vcc
        s_max_i32 s{S_T0}, s{S_T0}, 0
        v_readlane_b32 s{S_IDX}, v161, s{S_T0}
        s_nop 0
        s_and_b32 s{S_IDX}, s{S_IDX}, 2047
        """)

    def moe(self):
        g = self
        WD = self.WD
        g(f"""
        s_cmp_ge_u32 s{S_MU}, 108
        s_cbranch_scc1 L_nomoe
        v_mul_u32_u24 v9, 20, v1              ; HZ_SKIP_BEGIN
        s_mul_i32 s{S_T0}, s{S_IDX}, 1280
        buffer_load_dwordx4 v[160:163], v9, {srd(SRD_X)}, s{S_T0} offen
        buffer_load_dword v164, v9, {srd(SRD_X)}, s{S_T0} offen offset:16
        v_mov_b32 v166, 0
        v_mov_b32 v167, 0
        s_waitcnt vmcnt(0)
        """)
        for d in range(5):
            g(f"v_dot2c_f32_bf16 v166, v{160+d}, v84\nv_dot2c_f32_bf16 v167, v{160+d}, v{160+d}")
        g("s_nop 2")
        for ctl in ("row_shr:1 row_mask:0xf bank_mask:0xf bound_ctrl:0", "row_shr:2 row_mask:0xf bank_mask:0xf bound_ctrl:0",
                    "row_shr:4 row_mask:0xf bank_mask:0xf bound_ctrl:0", "row_shr:8 row_mask:0xf bank_mask:0xf bound_ctrl:0",
                    "row_bcast:15 row_mask:0xa bank_mask:0xf", "row_bcast:31 row_mask:0xc bank_mask:0xf"):
            g(f"v_add_f32_dpp v166, v166, v166 {ctl}\nv_add_f32_dpp v167, v167, v167 {ctl}")
        g(f"""
        v_readlane_b32 s{S_T0}, v166, 63
        v_readlane_b32 s{S_T1}, v167, 63
        v_mov_b32 v168, 0x3acccccd
        v_mul_f32 v166, s{S_T0}, v168
        v_mul_f32 v167, s{S_T1}, v168
        v_fma_f32 v167, -v166, v166, v167
        v_max_f32 v167, 0, v167
        """)
        g.rnd_bf16(167, 167)
        g("v_add_f32 v167, 0x3727c5ac, v167")
        g.rnd_bf16(167, 167)
        g("v_sqrt_f32 v167, v167")
        g.rnd_bf16(167, 167)
        g.rnd_bf16(166, 166)
        g("v_rcp_f32 v167, v167")
        for d in range(5):
            g(f"""
            v_lshlrev_b32 v168, 16, v{160+d}
            v_and_b32 v169, 0xffff0000, v{160+d}
            v_sub_f32 v168, v168, v166
            v_sub_f32 v169, v169, v166
            v_cvt_pk_bf16_f32 v168, v168, v169
            v_lshlrev_b32 v169, 16, v168
            v_and_b32 v168, 0xffff0000, v168
            v_mul_f32 v169, v169, v167
            v_mul_f32 v168, v168, v167
            v_cvt_pk_bf16_f32 v{160+d}, v169, v168
            """)
        g(f"""
        s_mul_i32 s{S_T0}, s{S_WAVE}, 1280
        s_add_u32 s{S_T0}, s{S_T0}, {L_XS}
        v_mul_u32_u24 v9, 20, v1
        v_add_u32 v9, s{S_T0}, v9
        ds_write_b32 v9, v160
        ds_write_b32 v9, v161 offset:4
        ds_write_b32 v9, v162 offset:8
        ds_write_b32 v9, v163 offset:12
        ds_write_b32 v9, v164 offset:16
        v_bfe_u32 v9, v1, 2, 2
        v_lshl_add_u32 v9, v3, 3, v9
        s_mul_i32 s{S_T1}, s{S_WAVE}, 160
        v_add_u32 v9, s{S_T1}, v9
        v_lshlrev_b32 v9, 5, v9
        v_and_b32 v10, 3, v1
        v_lshl_add_u32 v9, v10, 3, v9
        v_bfe_u32 v10, v1, 4, 1
        v_mul_u32_u24 v10, {L_U - L_G}, v10
        v_add_u32 v9, v9, v10
        v_add_u32 v9, {L_G}, v9
        s_mul_i32 s{S_T1}, s{S_WAVE}, 320
        s_add_u32 s{S_T0}, s{S_T0}, s{S_T1}
        v_lshlrev_b32 v10, 4, v3
        v_add_u32 v10, s{S_T0}, v10
        s_waitcnt lgkmcnt(0)
        s_barrier
        """)
        for ks in range(10):
            A, B = 92 + 8*(ks & 1), 96 + 8*(ks & 1)
            g(f"""
            ds_read_b64_tr_b16 {v(A,2)}, v9 offset:{(16*ks)*32}
            ds_read_b64_tr_b16 {v(A+2,2)}, v9 offset:{(16*ks+4)*32}
            ds_read_b128 {v(B,4)}, v10 offset:{32*ks}
            s_waitcnt lgkmcnt(0)
            v_mfma_f32_32x32x16_bf16 v[16:31], {v(A,4)}, {v(B,4)}, {"0" if ks == 0 else "v[16:31]"}
            """)
        g(f"""
        s_lshl_b32 s{S_T0}, s{S_WAVE}, 7
        s_add_u32 s{S_T0}, s{S_T0}, {L_HP}
        v_lshlrev_b32 v9, 4, v3
        v_add_u32 v9, s{S_T0}, v9
        s_mov_b32 exec_lo, 1
        s_mov_b32 exec_hi, 1
        ds_write_b128 v9, v[16:19]
        ds_write_b128 v9, v[20:23] offset:32
        ds_write_b128 v9, v[24:27] offset:64
        ds_write_b128 v9, v[28:31] offset:96
        s_mov_b64 exec, -1
        s_waitcnt lgkmcnt(0)
        s_barrier
        v_and_b32 v9, 15, v1
        v_lshlrev_b32 v9, 2, v9
        v_add_u32 v9, {L_HP}, v9
        ds_read_b32 v160, v9
        ds_read_b32 v161, v9 offset:128
        ds_read_b32 v162, v9 offset:256
        ds_read_b32 v163, v9 offset:384
        ds_read_b32 v164, v9 offset:64
        ds_read_b32 v165, v9 offset:192
        ds_read_b32 v166, v9 offset:320
        ds_read_b32 v167, v9 offset:448
        s_waitcnt lgkmcnt(0)
        v_add_f32 v160, v160, v161
        v_add_f32 v162, v162, v163
        v_add_f32 v164, v164, v165
        v_add_f32 v166, v166, v167
        v_add_f32 v160, v160, v162
        v_add_f32 v164, v164, v166
        """)
        g.rnd_bf16(160, 160); g.rnd_bf16(164, 164)
        g(f"""
        v_mul_f32 v161, 0xbfb8aa3b, v160
        v_exp_f32 v161, v161
        v_add_f32 v161, 1.0, v161
        v_rcp_f32 v161, v161
        v_mul_f32 v160, v160, v161
        """)
        g.rnd_bf16(160, 160)
        g("v_mul_f32 v160, v160, v164")
        g.rnd_bf16(160, 160)
        for u in range(16): g(f"v_readlane_b32 s{84+u}, v160, {u}") if not self.stamps else None
        HS = 84
        if self.stamps:
            HS = None
        for i in range(4): g(f"v_mov_b32 v{16+i}, 0")
        for u in range(16):
            a_, b_ = WD + 2*u, WD + 2*u + 1
            if HS is None:
                g(f"v_readlane_b32 s{S_T1}, v160, {u}")
                hs = f"s{S_T1}"
            else:
                hs = f"s{HS+u}"
            g(f"""
            v_accvgpr_read_b32 v24, a{a_}
            v_accvgpr_read_b32 v25, a{b_}
            v_lshlrev_b32 v20, 16, v24
            v_and_b32 v21, 0xffff0000, v24
            v_lshlrev_b32 v22, 16, v25
            v_and_b32 v23, 0xffff0000, v25
            v_fmac_f32 v16, {hs}, v20
            v_fmac_f32 v17, {hs}, v21
            v_fmac_f32 v18, {hs}, v22
            v_fmac_f32 v19, {hs}, v23
            """)
        g(f"""
        s_mul_i32 s{S_T0}, s{S_MU}, 2560
        s_add_u32 s{S_T0}, s{S_T0}, {WS_Y}
        v_lshlrev_b32 v9, 4, v0
        v_cmp_gt_u32 vcc, 160, v0
        s_and_saveexec_b64 {s2(S_MA)}, vcc
        s_cbranch_execz L_noy
        buffer_store_dwordx4 v[16:19], v9, {srd(SRD_WS)}, s{S_T0} offen sc1
L_noy:
        s_mov_b64 exec, -1
        """)
        self.signal("moe", f"s_and_b32 s{S_T0}, s{S_MU}, 3\ns_add_u32 s{S_T0}, s{S_T0}, {CNT_M}")
        g("s_nop 0 ; HZ_SKIP_END\nL_nomoe:")
        self.stamp("moedone")

    def kv_reduce_and_o(self):
        g = self
        for k, (gi, out1, out2) in enumerate(((0, 128, 129), (256, 130, 131))):
            g(f"""
            v_add_u32 v9, {gi}, v0
            v_cmp_lt_u32 vcc, 209, v9
            v_cndmask_b32 v10, 0, 1, vcc
            v_mul_u32_u24 v11, 210, v10
            v_sub_u32 v9, v9, v11
            v_mul_u32_u24 v11, 3121, v9
            v_lshrrev_b32 v11, 16, v11
            v_mul_u32_u24 v12, 21, v11
            v_sub_u32 v12, v9, v12
            v_lshrrev_b32 v13, 1, v11
            v_and_b32 v14, 1, v11
            v_cmp_lt_u32 vcc, 7, v11
            v_subrev_u32 v15, 4, v11
            v_cndmask_b32 v13, v13, v15, vcc
            v_cndmask_b32 v14, v14, 0, vcc
            v_lshrrev_b32 v15, 1, v13
            v_and_b32 v13, 1, v13
            v_mul_u32_u24 v15, 1024, v15
            v_lshl_add_u32 v15, v13, 9, v15
            v_lshl_add_u32 v15, v14, 3, v15
            v_mul_u32_u24 v13, 3072, v10
            v_add_u32 v15, v15, v13
            v_add_u32 v15, {L_KVF}, v15
            v_lshlrev_b32 v13, 2, v10
            v_sub_u32 v13, v12, v13
            v_add_u32 v14, 20, v13
            v_cmp_gt_i32 vcc, 0, v13
            v_cndmask_b32 v13, v13, v14, vcc
            v_subrev_u32 v14, 16, v13
            v_lshrrev_b32 v16, 3, v13
            v_and_b32 v17, 7, v13
            v_lshrrev_b32 v18, 1, v14
            v_and_b32 v19, 1, v14
            v_add_u32 v19, 8, v19
            v_cmp_lt_u32 vcc, 15, v13
            v_cndmask_b32 v16, v16, v18, vcc
            v_cndmask_b32 v17, v17, v19, vcc
            v_lshrrev_b32 v18, 2, v17
            v_lshlrev_b32 v18, 3, v18
            v_lshl_add_u32 v18, v16, 2, v18
            v_and_b32 v17, 3, v17
            v_add_u32 v18, v18, v17
            v_cmp_eq_u32 vcc, 20, v12
            v_cndmask_b32 v19, v18, 22, vcc
            v_cndmask_b32 v18, v18, 18, vcc
            v_lshl_add_u32 v{out1}, v18, 4, v15
            v_lshl_add_u32 v{out2}, v19, 4, v15
            """)
        self.poll("kv", SRD_WS, f"s_add_u32 s{S_T0}, s{S_HP}, {CNT_KV}\ns_lshl_b32 s{S_T0}, s{S_T0}, 7\nv_mov_b32 v9, s{S_T0}", 16)
        self.stamp("kvseen")
        D1, D2 = 16, 92
        g(f"""
        s_mul_i32 s{S_T0}, s{S_HP}, {16*KVP_SZ}
        s_add_u32 s{S_T0}, s{S_T0}, {WS_KVP}
        v_lshlrev_b32 v9, 4, v0
        v_add_u32 v10, 4096, v9
        v_cmp_gt_u32 vcc, 164, v0
        s_mov_b64 {s2(S_MA)}, vcc
        s_mov_b32 s{S_T1}, s{S_T0}
        """)
        d2regs = list(range(92, 128, 4)) + list(range(132, 160, 4))
        assert len(d2regs) == 16
        for p in range(16):
            g(f"buffer_load_dwordx4 {v(D1+4*p,4)}, v9, {srd(SRD_WS)}, s{S_T1} offen sc1\ns_add_u32 s{S_T1}, s{S_T1}, {KVP_SZ}")
        g(f"s_mov_b64 exec, {s2(S_MA)}\ns_cbranch_execz L_nod2")
        for p in range(16):
            mark = " ; HZ_SKIP_BEGIN" if p == 0 else (" ; HZ_SKIP_END" if p == 15 else "")
            g(f"buffer_load_dwordx4 {v(d2regs[p],4)}, v10, {srd(SRD_WS)}, s{S_T0} offen sc1{mark}\ns_add_u32 s{S_T0}, s{S_T0}, {KVP_SZ}")
        g("L_nod2:\ns_mov_b64 exec, -1\ns_waitcnt vmcnt(0)")
        for regs in ([D1 + 4*p for p in range(16)], d2regs):
            st = 1
            while st < 16:
                for p in range(0, 16, 2*st):
                    a_, b_ = regs[p], regs[p+st]
                    g(f"v_pk_add_f32 {v(a_,2)}, {v(a_,2)}, {v(b_,2)}\nv_pk_add_f32 {v(a_+2,2)}, {v(a_+2,2)}, {v(b_+2,2)}")
                st *= 2
        g(f"""
        v_cvt_pk_bf16_f32 v16, v16, v17
        v_cvt_pk_bf16_f32 v17, v18, v19
        v_cvt_pk_bf16_f32 v92, v92, v93
        v_cvt_pk_bf16_f32 v93, v94, v95
        ds_write_b64 v128, v[16:17]
        ds_write_b64 v129, v[16:17]
        s_mov_b64 exec, {s2(S_MA)}
        ds_write_b64 v130, v[92:93]
        ds_write_b64 v131, v[92:93]
        s_mov_b64 exec, -1
        s_waitcnt lgkmcnt(0)
        s_barrier
        v_lshlrev_b32 v9, 4, v1
        v_add_u32 v9, {L_KVF}, v9
        """)
        for a in range(2):
            for t in range(3):
                g(f"ds_read_b128 {v(160+12*a+4*t,4)}, v9 offset:{a*3072 + t*1024}")
        self.dump("kvf", list(range(160, 184)))
        for a, (acc, H) in enumerate(((16, 220), (32, 232))):
            g(f"s_waitcnt lgkmcnt({3 - 3*a})")
            for t in range(3):
                g(f"v_mfma_f32_32x32x16_bf16 {v(acc,16)}, {v(160+12*a+4*t,4)}, {v(H+4*t,4)}, {'0' if t == 0 else v(acc,16)}")
        self.dump("num", list(range(16, 48)))
        g(f"""
        s_lshl_b32 s{S_T0}, s{S_RB}, 1
        s_lshr_b32 s{S_T1}, s{S_WAVE}, 1
        s_add_u32 s{S_T0}, s{S_T0}, s{S_T1}
        s_mul_i32 s{S_T0}, s{S_T0}, 81920
        s_and_b32 s{S_T1}, s{S_WAVE}, 1
        s_mul_i32 s{S_T1}, s{S_T1}, 40960
        s_add_u32 s{S_T0}, s{S_T0}, s{S_T1}
        s_lshr_b32 s{S_T1}, s{S_HP}, 2
        s_mul_i32 s{S_T1}, s{S_T1}, 5120
        s_add_u32 s{S_T0}, s{S_T0}, s{S_T1}
        s_and_b32 s{S_T1}, s{S_HP}, 3
        s_lshl_b32 s{S_T1}, s{S_T1}, 8
        s_add_u32 s{S_T0}, s{S_T0}, s{S_T1}
        s_add_u32 s{S_T0}, s{S_T0}, {WS_O}
        v_lshrrev_b32 v9, 4, v2
        v_mul_u32_u24 v9, 20480, v9
        v_and_b32 v10, 15, v2
        v_lshl_add_u32 v9, v10, 4, v9
        v_lshl_add_u32 v10, v3, 10, v9
        v_lshl_add_u32 v11, v3, 3, v9
        v_mov_b32 v12, 0x358637bd
        """)
        for a, (acc, P) in enumerate(((16, 160), (32, 166))):
            g(f"v_add_f32 v{acc+10}, v{acc+10}, v12\nv_rcp_f32 v{acc+10}, v{acc+10}")
        for a, (acc, P) in enumerate(((16, 160), (32, 166))):
            for i in range(5):
                g(f"v_pk_mul_f32 {v(acc+2*i,2)}, {v(acc+2*i,2)}, {v(acc+10,2)} op_sel_hi:[1,0]")
            for i in range(5):
                g(f"v_cvt_pk_bf16_f32 v{P+i}, v{acc+2*i}, v{acc+2*i+1}")
        self.dump("o", list(range(160, 165)) + list(range(166, 171)))
        g(f"""
        v_mov_b32 v172, v164
        v_mov_b32 v173, v170
        s_nop 1
        v_permlane32_swap_b32 v172, v173
        buffer_store_dwordx4 v[160:163], v10, {srd(SRD_WS)}, s{S_T0} offen sc1
        v_mov_b32 v174, v166
        v_mov_b32 v175, v167
        v_mov_b32 v176, v168
        v_mov_b32 v177, v169
        buffer_store_dwordx2 v[172:173], v11, {srd(SRD_WS)}, s{S_T0} offen offset:2048 sc1
        buffer_store_dwordx4 v[174:177], v10, {srd(SRD_WS)}, s{S_T0} offen offset:3072 sc1
        """)
        self.signal("o", f"s_add_u32 s{S_T0}, s{S_RB}, {CNT_O}")
        self.stamp("osig")

    def phase_c(self):
        g = self
        for n in range(5):
            g(f"""
            v_add_u32 v9, {64*n}, v1
            v_mul_u32_u24 v10, 6554, v9
            v_lshrrev_b32 v10, 16, v10
            v_mul_u32_u24 v11, 10, v10
            v_sub_u32 v11, v9, v11
            v_bfe_u32 v12, v10, 3, 1
            v_bfe_u32 v13, v10, 2, 1
            v_lshl_add_u32 v12, v12, 1, v13
            v_mul_u32_u24 v12, 40, v12
            v_lshrrev_b32 v13, 4, v10
            v_lshl_add_u32 v12, v13, 2, v12
            v_and_b32 v13, 3, v10
            v_add_u32 v12, v12, v13
            v_mul_u32_u24 v12, 1280, v12
            v_lshl_add_u32 v{128+n}, v11, 4, v12
            """)
        g(f"""
        s_mul_i32 s{S_T0}, s{S_WAVE}, {160*1280}
        s_mul_i32 s{S_T1}, s{S_CB}, 160
        s_add_u32 s{S_T0}, s{S_T0}, s{S_T1}
        s_mul_i32 s{S_T1}, s{S_WAVE}, {5*5120}
        """)
        for i5 in range(5):
            g(f"s_add_u32 s{S_T2}, s{S_T0}, {8*i5*1280}")
            for n in range(5):
                g(f"s_add_u32 m0, s{S_T1}, {L_WO + i5*5120 + n*1024}\ns_nop 0\nbuffer_load_dwordx4 v{128+n}, {srd(SRD_WO)}, s{S_T2} offen lds")
        XR, RS, ST = 200, 176, 212
        for n in range(3):
            g(f"""
            v_add_u32 v9, {64*n}, v1
            v_mul_u32_u24 v10, 6554, v9
            v_lshrrev_b32 v10, 16, v10
            v_mul_u32_u24 v11, 10, v10
            v_sub_u32 v11, v9, v11
            v_min_u32 v10, 15, v10
            v_mul_u32_u24 v12, 1280, v10
            v_lshl_add_u32 v{134+n}, v11, 4, v12
            v_mul_u32_u24 v12, 336, v10
            v_lshl_add_u32 v{137+n}, v11, 5, v12
            v_mov_b32 v{140+n}, v10
            v_lshlrev_b32 v{143+n}, 5, v11
            """)
        g(f"""
        s_mul_i32 s{S_T0}, s{S_ROW0}, 1280
        s_mul_i32 s{S_T1}, s{S_CB}, 160
        s_add_u32 s{S_T5}, s{S_T0}, s{S_T1}
        """)
        for n in range(3):
            g(f"buffer_load_dwordx4 {v(XR+4*n,4)}, v{134+n}, {srd(SRD_X)}, s{S_T5} offen")
        self.poll("o", SRD_WS, f"s_lshr_b32 s{S_T0}, s{S_RB64}, 1\ns_add_u32 s{S_T0}, s{S_T0}, {CNT_O}\ns_lshl_b32 s{S_T0}, s{S_T0}, 7\nv_mov_b32 v9, s{S_T0}", 16)
        g("s_barrier")
        self.stamp("oseen")
        g(f"""
        s_mul_i32 s{S_T0}, s{S_RB64}, 81920
        s_mul_i32 s{S_T1}, s{S_WAVE}, 20480
        s_add_u32 s{S_T0}, s{S_T0}, s{S_T1}
        s_add_u32 s{S_T0}, s{S_T0}, {WS_O}
        v_lshlrev_b32 v9, 4, v1
        """)
        OF = 92
        self.vm = []
        regs_o = list(range(92, 128, 4)) + list(range(146, 176, 4)) + [220, 224, 228, 232]
        regs_o = regs_o[:20]
        assert len(regs_o) == 20, len(regs_o)
        for ks in range(20):
            g(f"buffer_load_dwordx4 {v(regs_o[ks],4)}, v9, {srd(SRD_WS)}, s{S_T0} offen sc1\ns_add_u32 s{S_T0}, s{S_T0}, 1024")
            g.vmi(f"o{ks}")
        g(f"s_lshl_b32 s{S_T0}, s{S_ROW0}, 3\ns_add_u32 s{S_T0}, s{S_T0}, {WS_STATS}")
        for n in range(3):
            g(f"v_lshlrev_b32 v10, 3, v{140+n}\nbuffer_load_dwordx2 {v(ST+2*n,2)}, v10, {srd(SRD_WS)}, s{S_T0} offen sc1")
            g.vmi("st")
        g(f"""
        v_bfe_u32 v10, v1, 5, 1
        v_lshlrev_b32 v10, 3, v10
        v_bfe_u32 v11, v1, 4, 1
        v_lshl_add_u32 v10, v11, 2, v10
        v_bfe_u32 v11, v1, 2, 2
        v_add_u32 v10, v10, v11
        v_mul_u32_u24 v10, 160, v10
        v_and_b32 v11, 3, v1
        v_lshl_add_u32 v10, v11, 3, v10
        v_add_u32 v236, {L_WO}, v10
        v_add_u32 v237, {L_WO + 10*5120}, v10
        """)
        def wo_reads(ks):
            b = ks & 1
            base = 236 + ks // 10
            out = []
            for ct in range(5):
                for rd in range(2):
                    out.append(f"ds_read_b64_tr_b16 {v(40+20*b+4*ct+2*rd,2)}, v{base} offset:{(ks % 10)*5120 + rd*2560 + ct*32}")
            return out
        for x in wo_reads(0): g(x)
        for ks in range(20):
            b = ks & 1
            g("s_waitcnt lgkmcnt(0)")
            rd = wo_reads(ks + 1) if ks < 19 else []
            g.vmwait(f"o{ks}")
            for ct in range(5):
                cin = "0" if ks == 0 else v(16+4*ct, 4)
                g(f"v_mfma_f32_16x16x32_bf16 {v(16+4*ct,4)}, {v(40+20*b+4*ct,4)}, {v(regs_o[ks],4)}, {cin}")
                for x in rd[2*ct:2*ct+2]: g(x)
        self.stamp("cmfma")
        g.vmwait("st")
        for n in range(3):
            xr, rs, st = XR + 4*n, RS + 8*n, ST + 2*n
            g(f"v_rcp_f32 v{st+1}, v{st+1}")
            for d in range(4):
                g(f"""
                v_lshlrev_b32 v10, 16, v{xr+d}
                v_and_b32 v11, 0xffff0000, v{xr+d}
                v_sub_f32 v12, v10, v{st}
                v_sub_f32 v13, v11, v{st}
                v_cvt_pk_bf16_f32 v12, v12, v13
                v_lshlrev_b32 v13, 16, v12
                v_and_b32 v12, 0xffff0000, v12
                v_mul_f32 v13, v13, v{st+1}
                v_mul_f32 v12, v12, v{st+1}
                v_cvt_pk_bf16_f32 v12, v13, v12
                v_lshlrev_b32 v{rs+2*d}, 16, v12
                v_and_b32 v{rs+2*d+1}, 0xffff0000, v12
                """)
        g(f"""
        s_sub_u32 s{S_T4}, s{S_IDX}, s{S_ROW0}
        s_cmp_ge_u32 s{S_T4}, 16
        s_cbranch_scc1 L_norow
        s_nop 0                      ; HZ_SKIP_BEGIN
        """)
        self.poll("m", SRD_WS, f"v_lshlrev_b32 v9, 7, v1\nv_add_u32 v9, {CNT_M*128}, v9", 27, nl=4)
        g(f"""
        v_mul_u32_u24 v10, 3277, v1
        v_lshrrev_b32 v10, 16, v10
        v_mul_u32_u24 v11, 20, v10
        v_sub_u32 v11, v1, v11
        v_mul_u32_u24 v12, 2560, v10
        v_lshl_add_u32 v12, v11, 4, v12
        s_mul_i32 s{S_T0}, s{S_CB}, 320
        s_add_u32 s{S_T0}, s{S_T0}, {WS_Y}
        v_mov_b32 v40, 0
        v_mov_b32 v41, 0
        v_mov_b32 v42, 0
        v_mov_b32 v43, 0
        s_mov_b32 s{S_T1}, 0
        s_mov_b32 exec_hi, 0x0fffffff
L_ysum:
        buffer_load_dwordx4 v[44:47], v12, {srd(SRD_WS)}, s{S_T0} offen sc1
        s_add_u32 s{S_T0}, s{S_T0}, {3*2560}
        buffer_load_dwordx4 v[48:51], v12, {srd(SRD_WS)}, s{S_T0} offen sc1
        s_add_u32 s{S_T0}, s{S_T0}, {3*2560}
        buffer_load_dwordx4 v[52:55], v12, {srd(SRD_WS)}, s{S_T0} offen sc1
        s_add_u32 s{S_T0}, s{S_T0}, {3*2560}
        buffer_load_dwordx4 v[56:59], v12, {srd(SRD_WS)}, s{S_T0} offen sc1
        s_add_u32 s{S_T0}, s{S_T0}, {3*2560}
        s_add_u32 s{S_T1}, s{S_T1}, 1
        s_waitcnt vmcnt(0)
        v_pk_add_f32 v[44:45], v[44:45], v[48:49]
        v_pk_add_f32 v[46:47], v[46:47], v[50:51]
        v_pk_add_f32 v[52:53], v[52:53], v[56:57]
        v_pk_add_f32 v[54:55], v[54:55], v[58:59]
        v_pk_add_f32 v[40:41], v[40:41], v[44:45]
        v_pk_add_f32 v[42:43], v[42:43], v[46:47]
        v_pk_add_f32 v[40:41], v[40:41], v[52:53]
        v_pk_add_f32 v[42:43], v[42:43], v[54:55]
        s_cmp_lt_u32 s{S_T1}, 9
        s_cbranch_scc1 L_ysum
        v_mul_u32_u24 v12, 320, v10
        v_lshl_add_u32 v12, v11, 4, v12
        v_add_u32 v12, {L_YR}, v12
        ds_write_b128 v12, v[40:43]
        s_mov_b64 exec, -1
        v_mov_b32 v44, s{S_RSEL}
        """)
        g.rnd_bf16(44, 44)
        g(f"""
        v_mul_f32 v44, 0xbfb8aa3b, v44
        v_exp_f32 v44, v44
        v_add_f32 v44, 1.0, v44
        v_rcp_f32 v44, v44
        """)
        g.rnd_bf16(44, 44)
        g("s_waitcnt lgkmcnt(0)")
        for n in range(3):
            rs, xr = RS + 8*n, XR + 4*n
            g(f"v_add_u32 v12, {L_YR}, v{143+n}")
            for pg in range(3):
                g(f"ds_read_b128 {v(48+8*pg,4)}, v12 offset:{320*pg}\nds_read_b128 {v(52+8*pg,4)}, v12 offset:{320*pg+16}")
            g("s_waitcnt lgkmcnt(0)")
            g(f"v_cmp_eq_u32 vcc, s{S_T4}, v{140+n}")
            for e in range(8):
                g(f"v_add_f32 v{48+e}, v{48+e}, v{56+e}\nv_add_f32 v{48+e}, v{48+e}, v{64+e}")
                g.rnd_bf16(48+e, 48+e)
                g(f"v_mul_f32 v{48+e}, v{48+e}, v44")
                g.rnd_bf16(48+e, 48+e)
                g(f"v_add_f32 v{48+e}, v{48+e}, v{rs+e}")
                g.rnd_bf16(48+e, 48+e)
                g(f"v_cndmask_b32 v{rs+e}, v{rs+e}, v{48+e}, vcc")
        g("s_nop 0                      ; HZ_SKIP_END\nL_norow:")
        for n in range(3):
            rs, xr = RS + 8*n, XR + 4*n
            for d in range(4):
                g(f"""
                v_lshlrev_b32 v10, 16, v{xr+d}
                v_and_b32 v11, 0xffff0000, v{xr+d}
                v_add_f32 v{rs+2*d}, v{rs+2*d}, v10
                v_add_f32 v{rs+2*d+1}, v{rs+2*d+1}, v11
                """)
        g(f"""
        s_mul_i32 s{S_T0}, s{S_WAVE}, 5376
        s_add_u32 s{S_T0}, s{S_T0}, {L_OST}
        v_and_b32 v9, 15, v1
        v_mul_u32_u24 v9, 336, v9
        v_lshrrev_b32 v10, 4, v1
        v_lshl_add_u32 v9, v10, 4, v9
        v_add_u32 v9, s{S_T0}, v9
        """)
        for ct in range(5): g(f"ds_write_b128 v9, {v(16+4*ct,4)} offset:{64*ct}")
        g("s_waitcnt lgkmcnt(0)")
        for n in range(3):
            g(f"v_add_u32 v10, s{S_T0}, v{137+n}\nds_read_b128 {v(40+8*n,4)}, v10\nds_read_b128 {v(44+8*n,4)}, v10 offset:16")
        g("s_waitcnt lgkmcnt(0)")
        for n in range(3):
            rs = RS + 8*n
            for e in range(0, 8, 2):
                g(f"v_pk_add_f32 {v(40+8*n+e,2)}, {v(40+8*n+e,2)}, {v(rs+e,2)}")
            for e in range(4):
                g(f"v_cvt_pk_bf16_f32 v{64+4*n+e}, v{40+8*n+2*e}, v{40+8*n+2*e+1}")
            if n == 2: g("s_mov_b32 exec_hi, 0")
            g(f"buffer_store_dwordx4 {v(64+4*n,4)}, v{134+n}, {srd(SRD_OUT)}, s{S_T5} offen")
        g("s_mov_b64 exec, -1")
        self.stamp("end"); self.stamp("clk1", True)

    def rest(self):
        self.moe_roles()
        self.publish_kv()
        self.moe_loads()
        self.pass2()
        self.q_epilogue()
        self.argmax()
        self.moe()
        self.kv_reduce_and_o()
        self.phase_c()
```

```python
import re

TRANS = ("v_exp_f32", "v_log_f32", "v_rcp_f32", "v_rsq_f32", "v_sqrt_f32", "v_sin_f32", "v_cos_f32")

def regs_of(tok):
    tok = tok.strip()
    m = re.fullmatch(r"(-|abs\()?([vas])(\d+)\)?", tok)
    if m: return [(m.group(2), int(m.group(3)))]
    m = re.fullmatch(r"-?([vas])\[(\d+):(\d+)\]", tok)
    if m: return [(m.group(1), i) for i in range(int(m.group(2)), int(m.group(3)) + 1)]
    if tok == "vcc": return [("s", "vcc")]
    if tok == "exec": return [("s", "exec")]
    if tok == "m0": return [("s", "m0")]
    return []

def mfma_passes(mn):
    if "4x4x4" in mn: return 2
    if "16x16x" in mn: return 4
    if "32x32x" in mn: return 8
    raise ValueError(mn)

class I:
    def __init__(self, text):
        self.text = text
        t = text.split(";")[0].strip()
        self.is_label = t.endswith(":")
        self.empty = (t == "") or t.startswith(".")
        self.mn = ""
        self.w, self.r = set(), set()
        self.kind = None
        self.states = 1
        if self.is_label or self.empty:
            self.states = 0
            return
        parts = t.split(None, 1)
        mn = self.mn = parts[0]
        ops = []
        if len(parts) > 1:
            body = parts[1]
            body = re.split(r"\s+(?:op_sel|op_sel_hi|neg_lo|neg_hi|offset|offset0|offset1|offen|lds|sc0|sc1|nt|row_|quad_perm|bank_mask|bound_ctrl|dst_sel|src0_sel|src1_sel|dst_unused|off\b)", " " + body)[0]
            ops = [o.strip() for o in body.split(",") if o.strip()]
        self.ops = ops
        R = lambda o: set(regs_of(o))
        allr = lambda l: set().union(*[R(o) for o in l]) if l else set()
        if mn.startswith("v_mfma"):
            self.kind = "mfma"; self.passes = mfma_passes(mn)
            self.w = R(ops[0]); self.a = R(ops[1]); self.b = R(ops[2]); self.c = R(ops[3]); self.r = self.a | self.b | self.c
        elif mn.startswith("v_"):
            self.kind = "valu"
            self.trans = any(mn.startswith(x) for x in TRANS)
            self.dpp = "_dpp" in mn
            self.dot = mn.startswith("v_dot")
            if mn.startswith("v_permlane"):
                self.w = allr(ops[:2]); self.r = allr(ops[:2])
            elif mn.startswith("v_cmp"):
                self.w = R(ops[0]); self.r = allr(ops[1:])
            elif mn.startswith("v_add_co") or mn.startswith("v_addc_co") or mn.startswith("v_sub_co"):
                self.w = allr(ops[:2]); self.r = allr(ops[2:])
            else:
                self.w = R(ops[0]); self.r = allr(ops[1:])
                if mn.startswith(("v_fmac", "v_dot2c", "v_writelane")) or "_d16" in mn or self.dpp:
                    self.r |= self.w
                if mn.startswith("v_cndmask") and len(ops) == 3: self.r |= {("s", "vcc")}
        elif mn.startswith("ds_"):
            self.kind = "ds"
            if mn.startswith(("ds_read", "ds_bpermute", "ds_swizzle")):
                self.w = R(ops[0]); self.r = allr(ops[1:])
            else:
                self.r = allr(ops)
        elif mn.startswith(("buffer_", "global_")):
            self.kind = "vmem"
            self.lds = " lds" in (" " + t)
            if mn.startswith("buffer_load") and not self.lds:
                self.w = R(ops[0]); self.r = allr(ops[1:])
            elif mn.startswith("global_load"):
                self.w = R(ops[0]); self.r = allr(ops[1:])
            else:
                self.r = allr(ops)
                if self.lds: self.r |= {("s", "m0")}
            self.store_wide = mn.startswith("buffer_store_dwordx4") or mn.startswith("buffer_store_dwordx3") or mn.startswith("global_store_dwordx4")
            self.data = R(ops[0]) if "store" in mn else set()
        elif mn.startswith("s_"):
            self.kind = "salu"
            if mn == "s_nop":
                self.states = int(ops[0], 0) + 1
            elif mn.startswith(("s_cmp", "s_waitcnt", "s_barrier", "s_cbranch", "s_branch", "s_endpgm", "s_sleep", "s_setprio", "s_bitcmp")):
                self.r = allr(ops)
            else:
                self.w = R(ops[0]); self.r = allr(ops[1:])
                if "saveexec" in mn: self.w |= {("s", "exec")}
        else:
            raise ValueError("unknown instr: " + text)

def vg(s): return {x for x in s if x[0] in "va"}
def sg(s): return {x for x in s if x[0] == "s"}

def need(p, c):
    n = 0
    if p.kind == "valu":
        pw = vg(p.w); ps = sg(p.w)
        if c.kind == "mfma" and pw & c.r: n = max(n, 2)
        if c.kind == "valu":
            if c.dpp and pw & c.r: n = max(n, 2)
            if c.mn.startswith("v_permlane") and pw & c.r: n = max(n, 2)
            if c.mn.startswith(("v_readlane", "v_readfirstlane")) and pw & c.r: n = max(n, 1)
            if p.trans and not c.trans and pw & c.r: n = max(n, 1)
            if ps & c.r:
                n = max(n, 4 if c.mn.startswith(("v_readlane", "v_writelane")) else 2)
            if p.dot and pw & (c.r | c.w) and not (c.mn == p.mn): n = max(n, 3)
            if p.dot and c.mn == p.mn and len(c.ops) > 2 and pw & (regs_set(c.ops[1]) | regs_set(c.ops[2])): n = max(n, 3)
        if p.trans and c.kind in ("mfma", "ds", "vmem") and pw & c.r: n = max(n, 2 if c.kind == "mfma" else 1)
        if p.dot and c.kind in ("ds", "vmem", "mfma") and pw & c.r: n = max(n, 3)
        if c.kind == "vmem" and ps & c.r: n = max(n, 5)
        if ("s", "exec") in p.w and c.kind == "mfma": n = max(n, 4)
        if c.kind == "salu" and ps & c.r: n = max(n, 1)
    if p.kind == "mfma":
        big = {2: 5, 4: 8, 8: 12}[p.passes]
        if c.kind == "mfma":
            if p.w & (c.a | c.b): n = max(n, big)
            if p.w & c.c:
                if p.w == c.c and p.passes == c.passes: n = max(n, 2 if p.passes == 2 else 0)
                else: n = max(n, {2: 4, 4: 6, 8: 10}[p.passes])
            elif p.w & c.w: n = max(n, {2: 4, 4: 6, 8: 10}[p.passes])
        elif c.kind in ("valu", "ds", "vmem"):
            if p.w & (c.r | c.w): n = max(n, big)
            if c.kind == "valu" and p.c & c.w: n = max(n, {2: 1, 4: 3, 8: 7}[p.passes])
    if p.kind == "salu":
        if ("s", "m0") in p.w and c.kind == "vmem" and getattr(c, "lds", False): n = max(n, 1)
    if p.kind == "vmem" and getattr(p, "store_wide", False):
        if p.data & c.w: n = max(n, 2)
    return n

def regs_set(o): return set(regs_of(o))

def fix(lines, window=24):
    out = []
    skip = 0
    region = 0
    ninserted = 0
    for text in lines:
        if "HZ_SKIP_BEGIN" in text:
            region += 1; skip = region
        ins = I(text)
        if ins.kind is not None:
            req = 0
            dist_full = 0
            dist_min = 0
            seen = 0
            worst = 0
            for (p, sk) in reversed(out):
                if p.kind is None: continue
                n = need(p, ins)
                d = dist_min if True else dist_full
                if n > d: worst = max(worst, n - d)
                count_it = (not sk) or (sk == skip)
                if count_it: dist_min += p.states
                seen += 1
                if dist_min >= window or seen > 200: break
            if worst > 0:
                k = worst
                while k > 0:
                    m = min(k, 16)
                    nop = I(f"s_nop {m-1}")
                    out.append((nop, skip)); k -= m
                    ninserted += 1
        out.append((ins, skip))
        if "HZ_SKIP_END" in text: skip = 0
    return [i.text for (i, _) in out], ninserted
```

```python
import sys, re
from asmlib import Asm, kernel_header
import hazard

NAME = "parallel_sum__linear_kernel_hedgehog__moe_arch_mod__prompt_kernel"

WS_CNT   = 0
WS_KVP   = 0x10000
KVP_SZ   = 6784
WS_O     = 0x200000
WS_STATS = 0x500000
WS_RMAX  = 0x508000
WS_Y     = 0x510000
WS_DBG   = 0x800000
WS_TS    = 0x7f0000
WS_SIZE  = 268435456

SLOT     = 28672
L_WQ     = 0
L_T      = 57344
L_MISC   = 143360
L_WPHI   = L_MISC
L_CS     = L_WPHI + 4 * 1664
L_P0     = L_CS + 1024
L_KVF    = L_P0 + 64
L_XS     = L_KVF + 6144
L_HP     = L_XS + 5120
L_END    = L_HP + 640
LDS_SIZE = 163840
assert L_END <= LDS_SIZE, L_END

S_WAVE = 3
SRD_X, SRD_W, SRD_PHI, SRD_WO, SRD_WR, SRD_G, SRD_U, SRD_D, SRD_OUT, SRD_DBG, SRD_WS = range(4, 48, 4)
S_XCD, S_SLOT, S_RB, S_HP = 48, 49, 50, 51
S_XB, S_WB, S_LX, S_LW = 52, 53, 54, 55
S_WM = 56
S_T0, S_T1, S_T2, S_T3, S_T4, S_T5 = 62, 63, 64, 65, 66, 67
S_MA, S_MB = 68, 70
S_C0, S_CC, S_CX, S_CW = 76, 77, 78, 79
S_WQL, S_WQG, S_P0ROW, S_IDX = 80, 81, 82, 83
S_TS = 84

def srd(n): return f"s[{n}:{n+3}]"
def v(b, n=1): return f"v{b}" if n == 1 else f"v[{b}:{b+n-1}]"
def ac(b, n=1): return f"a{b}" if n == 1 else f"a[{b}:{b+n-1}]"
def s2(b): return f"s[{b}:{b+1}]"


class Gen:
    def __init__(self, stop=None, dumps=(), stamps=False, touch=True, exp=()):
        self.touch = touch
        self.exp = set(exp)
        self.a = Asm()
        self.vm = []
        self.stop = stop
        self.dumps = set(dumps)
        self.stamps = stamps
        self.nstamp = 0
        self.dump_off = 0
        self.dump_index = {}

    def __call__(self, t): self.a(t)

    def vmi(self, tag, n=1):
        self.vm += [tag] * n
    def capture(self, fn):
        old, self.a.lines = self.a.lines, []
        self.capturing = True
        fn()
        self.capturing = False
        out, self.a.lines = self.a.lines, old
        return [l.strip() for l in out if l.strip()]

    def atoms(self, lines):
        out, cur, hold = [], [], None
        for l in lines:
            cur.append(l)
            code = l.split(";")[0].strip()
            if hold is None:
                if re.match(r"s_(mov|brev|and_saveexec)\w* (exec|exec_lo|exec_hi)\b", code) or code.startswith("s_and_saveexec"):
                    if not code.endswith("exec, -1"): hold = "exec"
                elif code.startswith("s_cmp"): hold = "label"
            else:
                if hold == "exec" and code == "s_mov_b64 exec, -1": hold = None
                elif hold == "label" and (code.endswith(":") or code.startswith("s_cselect")): hold = None
            if hold is None and not l.endswith(";+"):
                out.append(cur); cur = []
        if cur: out.append(cur)
        return out

    def interleave(self, groups, filler):
        at = self.atoms(filler)
        total = sum(len(a) for a in at)
        done = 0
        for i, (lines, tag) in enumerate(groups):
            for x in lines: self(x)
            self.vmi(tag)
            target = total * (i + 1) // len(groups)
            while at and done < target:
                a = at.pop(0); done += len(a)
                for x in a: self.emit_resolved(x)
        for a in at:
            for x in a: self.emit_resolved(x)

    def emit_resolved(self, x):
        if x.startswith("@VMWAIT "): self.vmwait(x.split()[1])
        else: self(x)

    def vmwait(self, tag):
        if getattr(self, "capturing", False):
            self(f"@VMWAIT {tag}"); return
        last = max(i for i, t in enumerate(self.vm) if t == tag)
        n = len(self.vm) - 1 - last
        assert n <= 63, (tag, n)
        self(f"s_waitcnt vmcnt({n})")
    def vmwait_all(self):
        self("s_waitcnt vmcnt(0)")

    def stamp(self, name, clk=False):
        if not self.stamps: return
        if self.stamps is not True and name not in self.stamps: return
        i = self.nstamp; self.nstamp += 1
        assert i < 9, name
        if "cyc" in self.exp: clk = True
        self(f"{'s_memtime' if clk else 's_memrealtime'} {s2(S_TS + 2*i)} ; stamp {name}")
        self.stamp_names = getattr(self, "stamp_names", []) + [name]

    def dump(self, name, regs, tmp=250):
        if name not in self.dumps: return
        g = self
        n = len(regs)
        base = WS_DBG + self.dump_off
        self.dump_index[name] = (self.dump_off, n)
        self.dump_off += 256 * 4 * n * 256
        g("s_waitcnt vmcnt(0) lgkmcnt(0)\ns_nop 15\ns_nop 15")
        g(f"s_lshl_b32 s75, s2, 2\ns_add_u32 s75, s75, s{S_WAVE}\ns_mul_i32 s75, s75, {n*256}\ns_add_u32 s75, s75, {base}")
        g(f"v_lshlrev_b32 v{tmp}, 2, v1")
        for i, r in enumerate(regs):
            if isinstance(r, str) and r.startswith("a"):
                g(f"v_accvgpr_read_b32 v{tmp+1}, {r}\ns_nop 1")
                src = f"v{tmp+1}"
            else:
                src = f"v{r}"
            g(f"buffer_store_dword {src}, v{tmp}, {srd(SRD_WS)}, s75 offen")
            g(f"s_add_u32 s75, s75, 256")
            g("s_waitcnt vmcnt(0)")

    def rnd_bf16(self, dst, src):
        self(f"v_cvt_pk_bf16_f32 v{dst}, v{src}, v{src}\nv_lshlrev_b32 v{dst}, 16, v{dst}")

    def prologue(self):
        g = self
        ptrs = [(SRD_X, 0), (SRD_W, 8), (SRD_WR, 40), (SRD_PHI, 16), (SRD_WS, 88), (SRD_DBG, 80),
                (SRD_WO, 24), (SRD_G, 48), (SRD_U, 56), (SRD_D, 64), (SRD_OUT, 72)]
        sizes = {SRD_X: 2621440, SRD_W: 2457600, SRD_WR: 1280, SRD_PHI: 25600, SRD_WS: WS_SIZE, SRD_DBG: 256,
                 SRD_WO: 819200, SRD_G: 2211840, SRD_U: 2211840, SRD_D: 2211840, SRD_OUT: 2621440}
        self.sizes = sizes
        g("s_getpc_b64 s[72:73]")
        g("L_pc:")
        for r, off in ptrs[:4]:
            g(f"s_load_dwordx2 {s2(r)}, s[0:1], {off}")
        g(f"""
        s_cmp_ge_u32 s2, 256
        s_cbranch_scc1 L_exit
        v_and_b32 v1, 63, v0
        v_lshrrev_b32 v9, 6, v0
        s_lshr_b32 s{S_SLOT}, s2, 3
        v_readfirstlane_b32 s{S_WAVE}, v9
        s_and_b32 s{S_XCD}, s2, 7
        """)
        g(f"""
        s_lshl_b32 s{S_T0}, s{S_SLOT}, 2
        s_add_u32 s{S_T0}, s{S_T0}, s{S_WAVE}
        s_lshl_b32 s{S_T0}, s{S_T0}, 9
        v_lshl_add_u32 v11, v1, 7, s{S_T0}
        v_cmp_gt_u32 vcc, L_code_end - L_pc, v11
        v_cmp_gt_u32 {s2(S_MA)}, 4, v1
        s_and_b64 vcc, vcc, {s2(S_MA)}
        s_and_saveexec_b64 {s2(S_MA)}, vcc
        s_cbranch_execz L_nopf
        global_load_dword v159, v11, s[72:73]
L_nopf:
        s_mov_b64 exec, -1
        """)
        for r, off in ptrs[4:]:
            g(f"s_load_dwordx2 {s2(r)}, s[0:1], {off}")
        g(f"""
        s_and_b32 s{S_T0}, s{S_XCD}, 1
        s_lshl_b32 s{S_T0}, s{S_T0}, 3
        s_and_b32 s{S_T1}, s{S_SLOT}, 7
        s_add_u32 s{S_RB}, s{S_T0}, s{S_T1}
        s_lshr_b32 s{S_T0}, s{S_XCD}, 1
        s_lshl_b32 s{S_T0}, s{S_T0}, 2
        s_lshr_b32 s{S_T2}, s{S_SLOT}, 3
        s_add_u32 s{S_HP}, s{S_T0}, s{S_T2}
        s_lshl_b32 s{S_T2}, s{S_T2}, 1
        s_add_u32 s{S_T1}, s{S_T1}, s{S_T2}
        s_and_b32 s{S_T1}, s{S_T1}, 7
        s_mul_i32 s{S_T1}, s{S_T1}, 10
        s_lshr_b32 s{S_C0}, s{S_T1}, 3
        v_lshrrev_b32 v9, 3, v1
        v_mul_u32_u24 v9, 1280, v9
        v_and_b32 v11, 7, v1
        v_lshrrev_b32 v15, 4, v1
        v_xor_b32 v11, v11, v15
        v_lshl_add_u32 v4, v11, 4, v9
        v_xor_b32 v11, 4, v11
        v_lshl_add_u32 v5, v11, 4, v9
        v_add_u32 v5, {10240 - 1024}, v5
        v_add_u32 v157, {20480 - 2048}, v4
        v_add_u32 v158, {20480 - 2048}, v5
        s_lshl_b32 s{S_T0}, s{S_RB}, 7
        s_lshl_b32 s{S_T1}, s{S_WAVE}, 5
        s_add_u32 s{S_T1}, s{S_T1}, s{S_T0}
        s_mul_i32 s{S_XB}, s{S_T1}, 1280
        s_mul_i32 s{S_WB}, s{S_WAVE}, {16*3840}
        s_mul_i32 s{S_T1}, s{S_HP}, 80
        s_add_u32 s{S_WB}, s{S_WB}, s{S_T1}
        s_lshl_b32 s{S_LX}, s{S_WAVE}, 12
        s_mul_i32 s{S_LW}, s{S_WAVE}, 3072
        s_add_u32 s{S_LW}, s{S_LW}, 16384
        s_add_u32 s{S_CC}, s{S_XB}, 1280
        s_lshl_b32 s{S_CX}, s{S_C0}, 7
        s_add_u32 s{S_CX}, s{S_CX}, s{S_XB}
        s_mul_i32 s{S_CW}, s{S_C0}, {64*3840}
        s_add_u32 s{S_CW}, s{S_CW}, s{S_WB}
        """)
        for r in (SRD_X, SRD_W):
            g(f"s_mov_b32 s{r+2}, {sizes[r]}\ns_mov_b32 s{r+3}, 0x20000")
        for n in range(3):
            g(f"""
            v_add_u32 v9, {64*n}, v1
            v_mul_u32_u24 v11, 43691, v9
            v_lshrrev_b32 v11, 19, v11
            v_mul_u32_u24 v12, 12, v11
            v_sub_u32 v12, v9, v12
            v_cmp_gt_u32 {s2(S_WM+2*n)}, 10, v12
            v_cmp_gt_u32 vcc, 5, v12
            v_mul_u32_u24 v11, 3840, v11
            v_lshl_add_u32 v11, v12, 4, v11
            v_mov_b32 v13, 2480
            v_add_u32 v14, 1280, v11
            v_add_u32 v11, v13, v11
            v_cndmask_b32 v{6+n}, v11, v14, vcc
            """)
            if n: g(f"v_subrev_u32 v{6+n}, {1024*n}, v{6+n}")
        g("s_waitcnt lgkmcnt(0)")
        self.stamp("start"); self.stamp("clk0", True)
        for r in (SRD_WR, SRD_PHI):
            g(f"s_mov_b32 s{r+2}, {sizes[r]}\ns_mov_b32 s{r+3}, 0x20000")
        P = 160
        nt = " nt" if "nt" in self.exp else ""
        self.nt = nt
        g(f"""
        v_mul_u32_u24 v10, 20, v1
        s_lshl_b32 s{S_T0}, s{S_RB}, 7
        s_lshl_b32 s{S_T1}, s{S_HP}, 3
        s_add_u32 s{S_T0}, s{S_T0}, s{S_T1}
        s_lshl_b32 s{S_T1}, s{S_WAVE}, 1
        s_add_u32 s{S_P0ROW}, s{S_T0}, s{S_T1}
        s_mul_i32 s{S_T4}, s{S_P0ROW}, 1280
        buffer_load_dwordx4 {v(P,4)}, v10, {srd(SRD_X)}, s{S_T4} offen
        buffer_load_dword v{P+4}, v10, {srd(SRD_X)}, s{S_T4} offen offset:16
        buffer_load_dwordx4 {v(P+6,4)}, v10, {srd(SRD_X)}, s{S_T4} offen offset:1280
        buffer_load_dword v{P+10}, v10, {srd(SRD_X)}, s{S_T4} offen offset:1296
        buffer_load_dwordx4 {v(P+12,4)}, v10, {srd(SRD_WR)}, 0 offen
        buffer_load_dword v{P+16}, v10, {srd(SRD_WR)}, 0 offen offset:16
        v_lshlrev_b32 v11, 4, v1
        s_mul_i32 s{S_T0}, s{S_HP}, 1600
        s_mul_i32 s{S_T1}, s{S_WAVE}, 1664
        s_add_u32 m0, s{S_T1}, {L_WPHI}
        s_add_u32 s{S_T4}, s{S_T1}, {L_WPHI + 1024}
        buffer_load_dwordx4 v11, {srd(SRD_PHI)}, s{S_T0} offen lds
        s_mov_b32 m0, s{S_T4}
        s_mov_b32 exec_lo, -1
        s_mov_b32 exec_hi, 15
        s_add_u32 s{S_T0}, s{S_T0}, 1024
        buffer_load_dwordx4 v11, {srd(SRD_PHI)}, s{S_T0} offen lds
        s_mov_b64 exec, -1
        """)
        g.vmi("p0", 6); g.vmi("phi", 2)
        tagged = lambda i: [(x, f"c{i}") for x in self.p1_refill(i)]
        self.interleave(tagged(0), self.capture(self.setup1))
        self.interleave(tagged(1), self.capture(self.phase0))
        self.interleave(tagged(2), self.capture(self.phi_frags))
        self.stamp("filled")

    def setup1(self):
        g = self
        sizes = self.sizes
        for r in (SRD_WS, SRD_DBG):
            g(f"s_mov_b32 s{r+2}, {sizes[r]}\ns_mov_b32 s{r+3}, 0x20000")
        g(f"""
        s_lshl_b32 s{S_T0}, s{S_WAVE}, 8
        s_add_u32 s{S_T0}, s{S_T0}, s2
        s_cmp_lg_u32 s{S_T0}, 256
        s_cbranch_scc1 L_noinit
        v_lshlrev_b32 v11, 7, v1       ; HZ_SKIP_BEGIN
        v_mov_b32 v12, 0
        buffer_store_dword v12, v11, {srd(SRD_WS)}, 0 offen sc1   ; HZ_SKIP_END
L_noinit:
        """)
        for r in (SRD_WO, SRD_G, SRD_U, SRD_D, SRD_OUT):
            g(f"s_mov_b32 s{r+2}, {sizes[r]}\ns_mov_b32 s{r+3}, 0x20000")
        g(f"""
        v_and_b32 v2, 31, v1
        v_lshrrev_b32 v3, 5, v1
        v_mov_b32 v12, 0x3f80
        v_mov_b32 v13, 0
        v_mov_b32 v14, 0x3f80
        v_mov_b32 v15, 0
        v_lshrrev_b32 v9, 6, v0
        v_mul_u32_u24 v9, {SLOT}, v9
        v_mul_u32_u24 v11, 192, v1
        v_add_u32 v9, v9, v11
        ds_write_b128 v9, v[12:15] offset:{16384 + 160}
        v_add_u32 v11, {4*SLOT}, v11
        ds_write_b128 v11, v[12:15] offset:{16384 + 160}
        v_mov_b32 v16, 0
        v_mov_b32 v17, 0
        v_mov_b32 v18, 0
        v_mov_b32 v19, 0
        v_lshlrev_b32 v20, 4, v0
        v_add_u32 v20, {L_KVF}, v20
        ds_write_b128 v20, v[16:19]
        v_lshlrev_b32 v21, 3, v0
        v_add_u32 v21, {L_KVF + 4096}, v21
        ds_write_b64 v21, v[16:17]
        v_mov_b32 v84, 0x3f803f80
        v_mov_b32 v85, 0x3f803f80
        """)
        g(f"""
        v_lshrrev_b32 v9, 1, v2
        v_and_b32 v9, 7, v9
        v_xor_b32 v9, v9, v3
        v_lshlrev_b32 v9, 4, v9
        v_lshl_add_u32 v9, v2, 7, v9
        v_add_u32 v128, s{S_LX}, v9
        v_xor_b32 v129, 32, v128
        v_xor_b32 v130, 64, v128
        v_xor_b32 v131, 96, v128
        v_add_u32 v132, {3*SLOT}, v128
        v_add_u32 v133, {3*SLOT}, v129
        v_add_u32 v134, {3*SLOT}, v130
        v_add_u32 v135, {3*SLOT}, v131
        v_bfe_u32 v9, v1, 2, 2
        v_lshl_add_u32 v9, v3, 3, v9
        v_mul_u32_u24 v9, 192, v9
        v_bfe_u32 v11, v1, 4, 1
        v_and_b32 v12, 3, v1
        v_lshl_add_u32 v11, v11, 2, v12
        v_lshl_add_u32 v9, v11, 3, v9
        v_add_u32 v136, 16384, v9
        v_add_u32 v137, {16384 + 2*SLOT}, v9
        v_add_u32 v138, {16384 + 4*SLOT}, v9
        s_lshl_b32 s{S_T0}, s{S_WAVE}, 6
        v_add_u32 v72, s{S_T0}, v136
        v_add_u32 v73, s{S_T0}, v137
        v_add_u32 v74, s{S_T0}, v138
        """)

    def phase0(self):
        g = self
        P = 160
        self.stamp("pre_p0")
        g.vmwait("phi")
        self.stamp("p0data")
        X0, X1, W = P, P + 6, P + 12
        A = 180
        for i in range(7): g(f"v_mov_b32 v{A+i}, 0")
        for d in range(5):
            g(f"""
            v_dot2c_f32_bf16 v{A+0}, v{X0+d}, v84
            v_dot2c_f32_bf16 v{A+1}, v{X0+d}, v{X0+d}
            v_dot2c_f32_bf16 v{A+2}, v{X0+d}, v{W+d}
            v_dot2c_f32_bf16 v{A+3}, v{X1+d}, v84
            v_dot2c_f32_bf16 v{A+4}, v{X1+d}, v{X1+d}
            v_dot2c_f32_bf16 v{A+5}, v{X1+d}, v{W+d}
            v_dot2c_f32_bf16 v{A+6}, v{W+d}, v84
            """)
        g("s_nop 2")
        for ctl in ("row_shr:1 row_mask:0xf bank_mask:0xf bound_ctrl:0", "row_shr:2 row_mask:0xf bank_mask:0xf bound_ctrl:0",
                    "row_shr:4 row_mask:0xf bank_mask:0xf bound_ctrl:0", "row_shr:8 row_mask:0xf bank_mask:0xf bound_ctrl:0",
                    "row_bcast:15 row_mask:0xa bank_mask:0xf", "row_bcast:31 row_mask:0xc bank_mask:0xf"):
            for i in range(7):
                g(f"v_add_f32_dpp v{A+i}, v{A+i}, v{A+i} {ctl}")
        T = 190
        g(f"v_mov_b32 v{T+8}, 0x3acccccd")
        for r in range(2):
            sx, sq, sw = A + 3*r, A + 3*r + 1, A + 3*r + 2
            m, t1, t2 = T + 3*r, T + 3*r + 1, T + 3*r + 2
            g(f"""
            v_mul_f32 v{m}, v{sx}, v{T+8}
            v_mul_f32 v{t1}, v{sq}, v{T+8}
            v_fma_f32 v{t1}, -v{m}, v{m}, v{t1}
            v_max_f32 v{t1}, 0, v{t1}
            """)
            g.rnd_bf16(t1, t1)
            g(f"v_add_f32 v{t1}, 0x3727c5ac, v{t1}")
            g.rnd_bf16(t1, t1)
            g(f"v_sqrt_f32 v{t1}, v{t1}")
            g.rnd_bf16(t1, t1)
            g.rnd_bf16(m, m)
            g(f"""
            v_rcp_f32 v{t1}, v{t1}
            v_fma_f32 v{t2}, -v{m}, v{A+6}, v{sw}
            v_mul_f32 v{t2}, v{t2}, v{t1}
            """)
        g(f"""
        v_mov_b32 v{T+7}, s{S_P0ROW}
        v_add_u32 v{T+9}, 1, v{T+7}
        v_cmp_gt_f32 vcc, v{T+5}, v{T+2}
        v_cndmask_b32 v{T+6}, v{T+2}, v{T+5}, vcc
        v_cndmask_b32 v{T+7}, v{T+7}, v{T+9}, vcc
        s_lshl_b32 s{S_T0}, s{S_WAVE}, 3
        s_add_u32 s{S_T0}, s{S_T0}, {L_P0}
        v_mov_b32 v9, s{S_T0}
        s_mov_b32 exec_lo, 0
        s_brev_b32 exec_hi, 1
        ds_write_b64 v9, {v(T+6,2)}
        s_mov_b64 exec, -1
        """)

    def phi_frags(self):
        g = self
        g(f"""
        v_lshrrev_b32 v9, 3, v2
        v_and_b32 v11, 3, v2
        v_lshl_add_u32 v9, v9, 2, v11
        v_min_u32 v9, 9, v9
        v_bfe_u32 v11, v2, 2, 1
        v_mad_u32_u24 v9, v11, 10, v9
        v_lshlrev_b32 v9, 1, v9
        s_mul_i32 s{S_T0}, s{S_WAVE}, 1664
        s_add_u32 s{S_T0}, s{S_T0}, {L_WPHI}
        v_add_u32 v9, s{S_T0}, v9
        v_mul_u32_u24 v11, 160, v3
        v_add_u32 v11, v11, v9
        """)
        def rd(reg, base, ds):
            for i, d in enumerate(ds):
                g(f"ds_read_u16 v{T0 + i}, v{base} offset:{d}")
            g("s_waitcnt lgkmcnt(0)")
            for i in range(0, len(ds), 2):
                g(f"v_lshl_or_b32 v{reg + i//2}, v{T0+i+1}, 16, v{T0+i}")
        T0 = 200
        rd(140, 11, [40*i for i in range(4)] + [40*(8+i) for i in range(4)] + [40*(16+i) for i in range(4)])
        rd(146, 9, [800 + 40*i for i in range(4)])
        rd(148, 11, [800 + 40*(4+i) for i in range(4)] + [800 + 40*(12+i) for i in range(4)])
        g(f"""
        s_mov_b32 s{S_MA}, 0
        s_mov_b32 s{S_MA+1}, -1
        s_waitcnt lgkmcnt(0)
        v_cndmask_b32 v144, v144, 0, {s2(S_MA)}
        v_cndmask_b32 v145, v145, 0, {s2(S_MA)}
        v_cndmask_b32 v146, 0, v146, {s2(S_MA)}
        v_cndmask_b32 v147, 0, v147, {s2(S_MA)}
        """)

    def p1_reads(self, n):
        c, ks = divmod(n, 4); s = c % 5; b = n % 3
        base = 128 + ks if s < 3 else 132 + ks
        imm = s * SLOT if s < 3 else (s - 3) * SLOT
        out = [f"ds_read_b128 {ac(4*n,4)}, v{base} offset:{imm}"]
        wb = 136 + s // 2
        imm0 = (s % 2) * SLOT + 16 * ks * 192
        for t in range(3):
            for rd in range(2):
                out.append(f"ds_read_b64_tr_b16 {v(92 + 12*b + 4*t + 2*rd, 2)}, v{wb} offset:{imm0 + 4*rd*192 + 64*t}")
        for rd in range(2):
            out.append(f"ds_read_b64_tr_b16 {v(160 + 4*b + 2*rd, 2)}, v{72 + s // 2} offset:{imm0 + 4*rd*192}")
        return out

    def p1_refill(self, i):
        s = i % 5
        nt = self.nt
        grp = []
        grp.append([f"s_add_u32 m0, s{S_LX}, {s*SLOT}", "s_nop 0" if False else f"s_add_u32 s{S_T1}, s{S_LW}, {s*SLOT}",
                    f"buffer_load_dwordx4 v4, {srd(SRD_X)}, s{S_CX} offen{nt} lds"])
        grp.append([f"buffer_load_dwordx4 v5, {srd(SRD_X)}, s{S_CX} offen offset:1024{nt} lds"])
        grp.append([f"buffer_load_dwordx4 v157, {srd(SRD_X)}, s{S_CX} offen offset:2048{nt} lds"])
        grp.append([f"buffer_load_dwordx4 v158, {srd(SRD_X)}, s{S_CX} offen offset:3072{nt} lds",
                    f"s_add_u32 s{S_CX}, s{S_CX}, 128"])
        grp.append([f"s_mov_b32 m0, s{S_T1}", f"s_mov_b64 exec, {s2(S_WM)}",
                    f"buffer_load_dwordx4 v6, {srd(SRD_W)}, s{S_CW} offen{nt} lds", "s_mov_b64 exec, -1"])
        grp.append([f"s_mov_b64 exec, {s2(S_WM+2)}",
                    f"buffer_load_dwordx4 v7, {srd(SRD_W)}, s{S_CW} offen offset:1024{nt} lds", "s_mov_b64 exec, -1"])
        grp.append([f"s_mov_b64 exec, {s2(S_WM+4)}",
                    f"buffer_load_dwordx4 v8, {srd(SRD_W)}, s{S_CW} offen offset:2048{nt} lds", "s_mov_b64 exec, -1",
                    f"s_add_u32 s{S_CW}, s{S_CW}, {64*3840}", f"s_cmp_eq_u32 s{S_CX}, s{S_CC}",
                    f"s_cselect_b32 s{S_CX}, s{S_XB}, s{S_CX}", f"s_cselect_b32 s{S_CW}, s{S_WB}, s{S_CW}"])
        return grp

    def wq_groups(self):
        grp = []
        for m in range(13):
            q, pt = divmod(m, 5)
            gl = [f"s_add_u32 m0, s{S_WQL}, {m*1024}", f"s_add_u32 s{S_T2}, s{S_WQG}, {q*64*3840}"]
            if m == 12:
                gl += ["s_mov_b32 exec_hi, 0", f"buffer_load_dwordx4 v{152+pt}, {srd(SRD_W)}, s{S_T2} offen lds", "s_mov_b64 exec, -1"]
            else:
                gl += [f"buffer_load_dwordx4 v{152+pt}, {srd(SRD_W)}, s{S_T2} offen lds"]
            grp.append(gl)
        return grp

    def wq_setup(self):
        g = self
        for pt in range(5):
            g(f"""
            v_add_u32 v9, {64*pt}, v1
            v_mul_u32_u24 v11, 52429, v9
            v_lshrrev_b32 v11, 18, v11
            v_mul_u32_u24 v12, 5, v11
            v_sub_u32 v12, v9, v12
            v_mul_u32_u24 v11, 3840, v11
            v_lshl_add_u32 v{152+pt}, v12, 4, v11
            """)
        g(f"""
        s_mul_i32 s{S_WQL}, s{S_WAVE}, 12800
        s_add_u32 s{S_WQL}, s{S_WQL}, {L_WQ}
        s_mul_i32 s{S_WQG}, s{S_WAVE}, {160*3840}
        s_mul_i32 s{S_T0}, s{S_HP}, 80
        s_add_u32 s{S_WQG}, s{S_WQG}, s{S_T0}
        """)

    def pass1(self):
        g = self
        g.vmwait("c0")
        g("s_waitcnt lgkmcnt(0)\ns_barrier")
        self.stamp("c0")
        for x in self.p1_reads(0): g(x)
        g("s_waitcnt lgkmcnt(6)")
        for x in self.p1_reads(1): g(x)
        g(f"""
        s_cmp_lg_u32 s{S_WAVE}, 0
        s_cbranch_scc1 L_nopub
        v_mov_b32 v9, {L_P0}           ; HZ_SKIP_BEGIN
        ds_read_b128 v[172:175], v9
        ds_read_b128 v[176:179], v9 offset:16
        s_lshl_b32 s{S_T0}, s2, 3
        s_add_u32 s{S_T0}, s{S_T0}, {WS_RMAX}
        v_mov_b32 v11, s{S_T0}
        s_waitcnt lgkmcnt(0)
        v_cmp_gt_f32 vcc, v174, v172
        v_cndmask_b32 v172, v172, v174, vcc
        v_cndmask_b32 v173, v173, v175, vcc
        v_cmp_gt_f32 vcc, v176, v172
        v_cndmask_b32 v172, v172, v176, vcc
        v_cndmask_b32 v173, v173, v177, vcc
        v_cmp_gt_f32 vcc, v178, v172
        v_cndmask_b32 v172, v172, v178, vcc
        v_cndmask_b32 v173, v173, v179, vcc
        s_mov_b64 exec, 1
        buffer_store_dwordx2 v[172:173], v11, {srd(SRD_WS)}, 0 offen sc1
        s_mov_b64 exec, -1             ; HZ_SKIP_END
L_nopub:
        """)
        pend = []
        for n in range(40):
            c, ks = divmod(n, 4); b = n % 3
            if ks == 0:
                if c <= 6:
                    pend += self.p1_refill(c + 3); self.vmq = getattr(self, "vmq", []) + [f"c{c+3}"] * 7
            if ks == 2 and c < 9:
                g(f"s_waitcnt lgkmcnt(6)")
                g.vmwait(f"c{c+1}")
                g("s_barrier")
                self.stamp(f"B{c}")
                if c == 1:
                    g(f"""
                    s_cmp_lg_u32 s2, 0
                    s_cbranch_scc1 L_noready
                    s_cmp_lg_u32 s{S_WAVE}, 1
                    s_cbranch_scc1 L_noready
                    v_mov_b32 v11, 240             ; HZ_SKIP_BEGIN
                    v_mov_b32 v12, 1
                    s_mov_b64 exec, 1
                    buffer_store_dword v12, v11, {srd(SRD_DBG)}, 0 offen sc1
                    s_mov_b64 exec, -1             ; HZ_SKIP_END
L_noready:
                    """)
                if c == 2:
                    g(f"""
                    s_cmp_lg_u32 s{S_WAVE}, 0
                    s_cbranch_scc1 L_noatom
                    s_and_b32 s{S_T0}, s2, 3       ; HZ_SKIP_BEGIN
                    s_lshl_b32 s{S_T0}, s{S_T0}, 6
                    v_mov_b32 v11, s{S_T0}
                    v_mov_b32 v12, 1
                    s_mov_b64 exec, 1
                    buffer_atomic_add v12, v11, {srd(SRD_DBG)}, 0 offen sc1
                    s_mov_b64 exec, -1             ; HZ_SKIP_END
L_noatom:
                    """)
                if c == 7:
                    pend += self.wq_groups(); self.vmq += ["wq"] * 13
            elif n == 39: g("s_waitcnt lgkmcnt(0)")
            else: g("s_waitcnt lgkmcnt(6)")
            rd = self.p1_reads(n + 2) if n + 2 < 40 else []
            if "nords" in self.exp: rd = []
            XP = ac(4*n, 4)
            WF = lambda t: 92 + 12*b + 4*t
            first = (n == 0)
            def dma():
                if pend:
                    grp = pend.pop(0); tag = self.vmq.pop(0)
                    if "nodma" not in self.exp:
                        for x in grp: g(x)
                    g.vmi(tag)
            cin = lambda r, k: "0" if first else v(r, k)
            g(f"v_mfma_f32_32x32x16_bf16 v[16:31], {v(WF(0),4)}, {XP}, {cin(16,16)}")
            for x in rd[0:3]: g(x)
            dma()
            g(f"v_mfma_f32_32x32x16_bf16 v[32:47], {v(WF(1),4)}, {XP}, {cin(32,16)}")
            for x in rd[3:6]: g(x)
            g(f"v_mfma_f32_32x32x16_bf16 v[48:63], {v(WF(2),4)}, {XP}, {cin(48,16)}")
            for x in rd[6:9]: g(x)
            dma()
            if "nosq" not in self.exp:
                g(f"v_mfma_f32_4x4x4_16b_bf16 v[64:67], {ac(4*n,2)}, {ac(4*n,2)}, {cin(64,4)}")
                g(f"v_mfma_f32_4x4x4_16b_bf16 v[68:71], {ac(4*n+2,2)}, {ac(4*n+2,2)}, {cin(68,4)}")
            if "nocs" not in self.exp:
                g(f"v_mfma_f32_4x4x4_16b_bf16 v[76:79], {v(160+4*b,2)}, v[84:85], {cin(76,4)}")
                g(f"v_mfma_f32_4x4x4_16b_bf16 v[80:83], {v(160+4*b+2,2)}, v[84:85], {cin(80,4)}")
            if n >= 32: dma()
            if n == 5: self.wq_setup()
        while pend:
            grp = pend.pop(0); tag = self.vmq.pop(0)
            for x in grp: g(x)
            g.vmi(tag)
        self.stamp("p1end")

    def phi_frags_deferred(self):
        pass

    def stats_and_colsum(self, first):
        g = self
        csoff = 0 if first else 128 * 4
        for i in range(4): g(f"v_add_f32 v{76+i}, v{76+i}, v{80+i}")
        for i in range(4): g(f"v_mov_b32 v{80+i}, v{76+i}")
        for i in range(4): g(f"v_permlane32_swap_b32 v{76+i}, v{80+i}")
        for i in range(4): g(f"v_add_f32 v{76+i}, v{76+i}, v{80+i}")
        g(f"""
        s_lshl_b32 s{S_T0}, s{S_WAVE}, 7
        s_add_u32 s{S_T0}, s{S_T0}, {L_CS + csoff}
        v_lshl_add_u32 v9, v1, 2, s{S_T0}
        s_mov_b32 exec_lo, 0x11111111
        s_mov_b32 exec_hi, 0
        ds_write_b128 v9, v[76:79]
        s_mov_b64 exec, -1
        """)
        if first:
            for i in range(4): g(f"v_add_f32 v{64+i}, v{64+i}, v{68+i}")
            for i in range(1, 4):
                m = 0x11111111 << i
                g(f"s_mov_b32 s{S_MB}, {hex(m)}\ns_mov_b32 s{S_MB+1}, {hex(m)}\nv_cndmask_b32 v64, v64, v{64+i}, {s2(S_MB)}")
            g(f"""
            v_mov_b32 v65, v64
            v_mov_b32 v90, 0x3acccccd
            s_nop 0
            v_permlane32_swap_b32 v64, v65
            v_add_f32 v64, v64, v65
            v_mul_f32 v66, v56, v90
            v_mul_f32 v64, v64, v90
            v_fma_f32 v64, -v66, v66, v64
            v_max_f32 v64, 0, v64
            """)
            g.rnd_bf16(64, 64)
            g("v_add_f32 v64, 0x3727c5ac, v64")
            g.rnd_bf16(64, 64)
            g("v_sqrt_f32 v64, v64")
            g.rnd_bf16(90, 64)
            g.rnd_bf16(91, 66)
            g("v_rcp_f32 v88, v90\nv_sub_f32 v86, 0, v91")
        g("s_waitcnt lgkmcnt(0)\ns_barrier")
        self.stamp("csbar" if first else "csbar2")

    def normalise(self, quads, csoff):
        g = self
        g(f"v_lshlrev_b32 v9, 4, v3\nv_add_u32 v9, {L_CS + csoff}, v9")
        for i, (r, col) in enumerate(quads):
            g(f"ds_read_b128 {v(160+4*i,4)}, v9 offset:{col*4}")
        for i, (r, col) in enumerate(quads):
            g(f"s_waitcnt lgkmcnt({len(quads)-1-i})")
            for hh in range(2):
                g(f"v_pk_fma_f32 {v(r+2*hh,2)}, {v(160+4*i+2*hh,2)}, v[86:87], {v(r+2*hh,2)} op_sel_hi:[1,0,1]")
            for hh in range(2):
                g(f"v_pk_mul_f32 {v(r+2*hh,2)}, {v(r+2*hh,2)}, v[88:89] op_sel_hi:[1,0]")

    def featmap(self, PK, H0, H1):
        g = self
        P = (92, 108)
        g(f"v_mfma_f32_32x32x16_bf16 v[92:107], v[140:143], {v(PK,4)}, 0")
        g(f"v_mfma_f32_32x32x16_bf16 v[108:123], v[146:149], {v(PK+4,4)}, 0")
        g(f"v_mfma_f32_32x32x8_bf16 v[92:107], v[144:145], {v(PK+4,2)}, v[92:107]")
        g(f"v_mfma_f32_32x32x8_bf16 v[108:123], v[150:151], {v(PK+8,2)}, v[108:123]")
        L = 0x3fb8aa3b
        g(f"v_mov_b32 v124, {hex(L)}\nv_mov_b32 v126, {hex(L | 0x80000000)}")
        for H in (H0, H1): g(f"v_mov_b32 v{H+10}, 0\nv_mov_b32 v{H+11}, 0")
        E = (160, 180)
        MX = (200, 204)
        for a in range(2):
            p, mx = P[a], MX[a]
            g(f"""
            v_max3_f32 v{mx}, v{p}, v{p+1}, v{p+2}
            v_min3_f32 v{mx+1}, v{p}, v{p+1}, v{p+2}
            v_max3_f32 v{mx}, v{mx}, v{p+3}, v{p+4}
            v_min3_f32 v{mx+1}, v{mx+1}, v{p+3}, v{p+4}
            v_max3_f32 v{mx}, v{mx}, v{p+5}, v{p+6}
            v_min3_f32 v{mx+1}, v{mx+1}, v{p+5}, v{p+6}
            v_max3_f32 v{mx}, v{mx}, v{p+7}, v{p+8}
            v_min3_f32 v{mx+1}, v{mx+1}, v{p+7}, v{p+8}
            v_max_f32 v{mx}, v{mx}, v{p+9}
            v_min_f32 v{mx+1}, v{mx+1}, v{p+9}
            v_sub_f32 v{mx+1}, 0, v{mx+1}
            """)
        for a in range(2): g(f"v_permlane32_swap_b32 v{MX[a]}, v{MX[a]+1}")
        for a in range(2): g(f"v_max_f32 v{MX[a]}, v{MX[a]}, v{MX[a]+1}")
        for a in range(2): g(f"v_mov_b32 v{MX[a]+1}, v{MX[a]}")
        for a in range(2): g(f"v_permlane32_swap_b32 v{MX[a]}, v{MX[a]+1}")
        for a in range(2):
            mx = MX[a]
            g(f"v_mul_f32 v{mx+2}, v{mx+1}, v126\nv_mul_f32 v{mx}, v{mx}, v126")
        for a in range(2):
            p, mx, e = P[a], MX[a], E[a]
            for i in range(5):
                g(f"v_pk_fma_f32 {v(e+2*i,2)}, {v(p+2*i,2)}, v[124:125], {v(mx,2)} op_sel_hi:[1,0,0]")
                g(f"v_pk_fma_f32 {v(e+10+2*i,2)}, {v(p+2*i,2)}, v[126:127], {v(mx+2,2)} op_sel_hi:[1,0,0]")
        for a in range(2):
            for i in range(20): g(f"v_exp_f32 v{E[a]+i}, v{E[a]+i}")
        SM = (208, 214)
        for a in range(2):
            e, sm = E[a], SM[a]
            g(f"v_pk_add_f32 {v(sm,2)}, {v(e,2)}, {v(e+2,2)}\nv_pk_add_f32 {v(sm+2,2)}, {v(e+10,2)}, {v(e+12,2)}")
        for i in range(2, 5):
            for a in range(2):
                e, sm = E[a], SM[a]
                g(f"v_pk_add_f32 {v(sm,2)}, {v(sm,2)}, {v(e+2*i,2)}\nv_pk_add_f32 {v(sm+2,2)}, {v(sm+2,2)}, {v(e+10+2*i,2)}")
        for a in range(2):
            sm = SM[a]
            g(f"v_add_f32 v{sm}, v{sm}, v{sm+1}\nv_add_f32 v{sm+1}, v{sm+2}, v{sm+3}")
        for a in range(2): g(f"v_permlane32_swap_b32 v{SM[a]}, v{SM[a]+1}")
        for a in range(2): g(f"v_add_f32 v{SM[a]}, v{SM[a]}, v{SM[a]+1}")
        for a in range(2): g(f"v_mov_b32 v{SM[a]+2}, v{SM[a]}")
        for a in range(2): g(f"v_permlane32_swap_b32 v{SM[a]}, v{SM[a]+2}")
        for a in range(2): g(f"v_rcp_f32 v{SM[a]}, v{SM[a]}\nv_rcp_f32 v{SM[a]+2}, v{SM[a]+2}")
        for a, H in ((0, H0), (1, H1)):
            e, sm = E[a], SM[a]
            for i in range(5):
                g(f"v_pk_mul_f32 {v(e+2*i,2)}, {v(e+2*i,2)}, {v(sm,2)} op_sel_hi:[1,0]")
                g(f"v_pk_mul_f32 {v(e+10+2*i,2)}, {v(e+10+2*i,2)}, {v(sm+2,2)} op_sel_hi:[1,0]")
            for i in range(10):
                g(f"v_cvt_pk_bf16_f32 v{H+i}, v{e+2*i}, v{e+2*i+1}")

    def k_epilogue(self):
        g = self
        self.stats_and_colsum(True)
        quads = [(16+4*j, 8*j) for j in range(4)] + [(32+4*j, 32+8*j) for j in range(4)] + [(48+4*j, 64+8*j) for j in range(2)]
        self.normalise(quads, 0)
        self.dump("kv_norm", list(range(16, 64)) + [86, 88, 90, 91])
        PK, PV = 200, 210
        g(f"""
        s_lshl_b32 s{S_T0}, s{S_WAVE}, 5
        v_add_u32 v9, s{S_T0}, v2
        v_mul_u32_u24 v9, 336, v9
        v_add_u32 v9, {L_T}, v9
        v_lshl_add_u32 v11, v3, 3, v9
        v_mad_u32_u24 v12, v3, 24, v9
        v_lshl_add_u32 v13, v3, 4, v9
        v_mov_b32 v14, 0x3f80
        v_mov_b32 v15, 0
        ds_write_b64 v12, v[14:15] offset:{34*8}
        """)
        src = [36, 40, 44, 48, 52]
        for i, r in enumerate(src):
            g(f"v_cvt_pk_bf16_f32 v{PV+2*i}, v{r}, v{r+1}\nv_cvt_pk_bf16_f32 v{PV+2*i+1}, v{r+2}, v{r+3}")
            g(f"ds_write_b64 v11, {v(PV+2*i,2)} offset:{192 + 16*i}")
        PK = 244
        for i in range(10):
            r = 16 + 2*i
            g(f"v_cvt_pk_bf16_f32 v{PK+i}, v{r}, v{r+1}")
        self.stamp("prefm")
        self.featmap(PK, 220, 232)
        self.stamp("postfm")
        self.dump("phik", list(range(220, 244)))
        for a, H in ((0, 220), (1, 232)):
            for st in range(3):
                g(f"ds_write_b128 v13, {v(H+4*st,4)} offset:{a*96 + st*32}")
        g("s_waitcnt lgkmcnt(0)\ns_barrier")
        self.stamp("Tbar")
        g(f"""
        s_lshr_b32 s{S_T0}, s{S_WAVE}, 1
        s_and_b32 s{S_T1}, s{S_WAVE}, 1
        v_bfe_u32 v9, v1, 2, 2
        v_lshl_add_u32 v9, v3, 3, v9
        v_mul_u32_u24 v9, 336, v9
        v_add_u32 v9, {L_T}, v9
        v_bfe_u32 v11, v1, 4, 1
        v_and_b32 v12, 3, v1
        v_lshl_add_u32 v11, v11, 2, v12
        s_mul_i32 s{S_T2}, s{S_T0}, 12
        s_lshl_b32 s{S_T3}, s{S_T1}, 3
        s_add_u32 s{S_T2}, s{S_T2}, s{S_T3}
        v_add_u32 v12, s{S_T2}, v11
        v_lshl_add_u32 v160, v12, 3, v9
        s_mul_i32 s{S_T2}, s{S_T0}, 5
        s_add_u32 s{S_T2}, s{S_T2}, 24
        v_add_u32 v12, s{S_T2}, v11
        s_mul_i32 s{S_T3}, s{S_T0}, -3
        s_add_i32 s{S_T3}, s{S_T3}, 37
        v_mov_b32 v13, s{S_T3}
        v_cmp_eq_u32 vcc, 5, v11
        v_cndmask_b32 v12, v12, v13, vcc
        s_add_i32 s{S_T3}, s{S_T3}, -13
        v_add_u32 v13, s{S_T3}, v11
        v_cmp_lt_u32 vcc, 5, v11
        v_cndmask_b32 v12, v12, v13, vcc
        v_lshl_add_u32 v161, v12, 3, v9
        """)
        A0, B0 = 164, 196
        for ks in range(8):
            for rd in range(2):
                g(f"ds_read_b64_tr_b16 {v(A0+4*ks+2*rd,2)}, v160 offset:{(16*ks+4*rd)*336}")
                g(f"ds_read_b64_tr_b16 {v(B0+4*ks+2*rd,2)}, v161 offset:{(16*ks+4*rd)*336}")
            if ks >= 2:
                k = ks - 2
                g("s_waitcnt lgkmcnt(8)")
                cin = "0" if k == 0 else "v[92:107]"
                g(f"v_mfma_f32_32x32x16_bf16 v[92:107], {v(A0+4*k,4)}, {v(B0+4*k,4)}, {cin}")
        g("s_waitcnt lgkmcnt(4)")
        g(f"v_mfma_f32_32x32x16_bf16 v[92:107], {v(A0+24,4)}, {v(B0+24,4)}, v[92:107]")
        g("s_waitcnt lgkmcnt(0)")
        g(f"v_mfma_f32_32x32x16_bf16 v[92:107], {v(A0+28,4)}, {v(B0+28,4)}, v[92:107]")
        g(f"""
        s_lshl_b32 s{S_T2}, s{S_HP}, 4
        s_add_u32 s{S_T2}, s{S_T2}, s{S_RB}
        s_mul_i32 s{S_T2}, s{S_T2}, {KVP_SZ}
        s_add_u32 s{S_T2}, s{S_T2}, {WS_KVP}
        s_mul_i32 s{S_T3}, s{S_T0}, 3360
        s_add_u32 s{S_T2}, s{S_T2}, s{S_T3}
        v_mul_u32_u24 v9, 336, v3
        v_lshl_add_u32 v9, v2, 4, v9
        v_cmp_gt_u32 vcc, 21, v2
        s_mov_b64 {s2(S_MA)}, vcc
        s_cmp_lg_u32 s{S_T1}, 0
        s_cbranch_scc1 L_kvft1
        s_mov_b64 exec, {s2(S_MA)}     ; HZ_SKIP_BEGIN
        buffer_store_dwordx4 v[92:95], v9, {srd(SRD_WS)}, s{S_T2} offen sc1
        buffer_store_dwordx4 v[96:99], v9, {srd(SRD_WS)}, s{S_T2} offen offset:672 sc1
        buffer_store_dwordx4 v[100:103], v9, {srd(SRD_WS)}, s{S_T2} offen offset:1344 sc1
        buffer_store_dwordx4 v[104:107], v9, {srd(SRD_WS)}, s{S_T2} offen offset:2016 sc1
        s_branch L_kvdone              ; HZ_SKIP_END
L_kvft1:
        s_and_b32 s{S_MA}, s{S_MA}, 0x1fffff      ; HZ_SKIP_BEGIN
        s_mov_b32 s{S_MA+1}, 0
        s_mov_b64 exec, {s2(S_MA)}
        buffer_store_dwordx4 v[92:95], v9, {srd(SRD_WS)}, s{S_T2} offen offset:2688 sc1
        buffer_store_dwordx4 v[96:99], v9, {srd(SRD_WS)}, s{S_T2} offen offset:3024 sc1   ; HZ_SKIP_END
L_kvdone:
        s_mov_b64 exec, -1
        """)
        self.stamp("kvstore"); self.stamp("clk1", True)

    def finish(self):
        g = self
        if self.stamps:
            g("s_waitcnt lgkmcnt(0)")
            g(f"""
            s_cmp_lg_u32 s{S_WAVE}, 0
            s_cbranch_scc1 L_nots
            s_mul_i32 s{S_T0}, s2, 64
            s_add_u32 s{S_T0}, s{S_T0}, {WS_TS}
            s_mov_b64 exec, 1
            v_mov_b32 v9, 0
            """)
            for i in range(self.nstamp):
                g(f"v_mov_b32 v11, s{S_TS+2*i}\nbuffer_store_dword v11, v9, {srd(SRD_WS)}, s{S_T0} offen offset:{4*i}")
            g("L_nots:")
        g("L_exit:\ns_endpgm\nL_code_end:")

    def build(self):
        g = self
        self.prologue()
        self.dump("phifrag", list(range(140, 152)))
        self.pass1()
        self.dump("acc1", list(range(16, 84)))
        if self.stop != "pass1":
            self.k_epilogue()
        if self.stop not in ("pass1", "kv"):
            self.rest()
        self.finish()

    def text(self):
        body, nins = hazard.fix([l.strip() for l in self.a.lines])
        hdr = open("parallel_sum__linear_kernel_hedgehog__moe_arch_mod__prompt.s.ref").read().split("\n")
        top = [l for l in hdr if l.startswith(";") and "@launch" not in l and "Override" not in l and "grid=ceil" not in l]
        out = "\n".join(top) + "\n"
        out += f"; @launch grid=(256,1,1) block=(256,1,1) lds={LDS_SIZE}\n"
        out += '.amdgcn_target "amdgcn-amd-amdhsa--gfx950"\n.text\n' + kernel_header(NAME)
        out += "\n".join("    " + l if not l.endswith(":") else l for l in body if l) + "\n"
        out += f""".section .rodata,"a"
.p2align 6
.amdhsa_kernel {NAME}
  .amdhsa_next_free_vgpr 512
  .amdhsa_next_free_sgpr 102
  .amdhsa_accum_offset 256
  .amdhsa_group_segment_fixed_size 0
  .amdhsa_kernarg_size 96
  .amdhsa_user_sgpr_count 2
  .amdhsa_user_sgpr_kernarg_segment_ptr 1
  .amdhsa_system_sgpr_workgroup_id_x 1
  .amdhsa_float_denorm_mode_32 3
.end_amdhsa_kernel
"""
        return out, nins


if __name__ == "__main__":
    import argparse, json
    import gen_rest
    ap = argparse.ArgumentParser()
    ap.add_argument("-o", default="k.s")
    ap.add_argument("--stop", default=None)
    ap.add_argument("--dump", default="")
    ap.add_argument("--stamps", default="")
    ap.add_argument("--notouch", action="store_true")
    ap.add_argument("--exp", default="")
    args = ap.parse_args()
    G = gen_rest.Full(stop=args.stop, dumps=[d for d in args.dump.split(",") if d], stamps=set(args.stamps.split(",")) if args.stamps else False, touch=not args.notouch, exp=[e for e in args.exp.split(",") if e])
    G.build()
    t, nins = G.text()
    open(args.o, "w").write(t)
    json.dump({"dumps": G.dump_index, "stamps": getattr(G, "stamp_names", [])}, open(args.o + ".json", "w"))
    print("wrote", args.o, "lines", t.count("\n"), "nops inserted", nins)
```

```python
from gen import *

S_RB64, S_CB, S_MU, S_RSEL, S_ROW0 = 20, 21, 22, 23, 12
S_QC = 13
L_G   = L_T
L_U   = L_T + 20480 + 128
L_WO  = 0
L_OST = 102400
L_YR  = L_OST + 4 * 5376
CNT_KV, CNT_O, CNT_M = 0, 16, 32
SPIN_LIMIT = 200000

class Full(Gen):
    def poll(self, name, srd_n, vaddr_setup, target, nl=1):
        g = self
        lab = f"L_poll_{name}"
        g(vaddr_setup)
        g(f"s_mov_b32 exec_lo, {(1 << nl) - 1}\ns_mov_b32 exec_hi, 0")
        g(f"""
        s_mov_b32 s74, 0
{lab}:
        buffer_load_dword v10, v9, {srd(srd_n)}, 0 offen sc1
        s_add_u32 s74, s74, 1
        s_cmp_gt_u32 s74, {SPIN_LIMIT}
        s_cbranch_scc1 {lab}_out
        s_waitcnt vmcnt(0)
        v_cmp_ne_u32 vcc, {target}, v10
        s_cbranch_vccnz {lab}
{lab}_out:
        s_waitcnt vmcnt(0)
        s_mov_b64 exec, -1
        """)

    def signal(self, name, cnt_sgpr_expr):
        g = self
        g(f"""
        s_waitcnt vmcnt(0)
        s_barrier
        s_cmp_lg_u32 s{S_WAVE}, 0
        s_cbranch_scc1 L_nosig_{name}
        """)
        g(cnt_sgpr_expr + " ; HZ_SKIP_BEGIN")
        g(f"""
        s_lshl_b32 s{S_T0}, s{S_T0}, 7
        v_mov_b32 v9, s{S_T0}
        v_mov_b32 v10, 1
        s_mov_b64 exec, 1
        buffer_atomic_add v10, v9, {srd(SRD_WS)}, 0 offen sc1
        s_mov_b64 exec, -1         ; HZ_SKIP_END
L_nosig_{name}:
        """)

    def publish_kv(self):
        g = self
        g(f"""
        s_cmp_lg_u32 s{S_HP}, 0
        s_cbranch_scc1 L_nostats
        s_lshl_b32 s{S_T0}, s{S_RB}, 7       ; HZ_SKIP_BEGIN
        s_lshl_b32 s{S_T1}, s{S_WAVE}, 5
        s_add_u32 s{S_T0}, s{S_T0}, s{S_T1}
        s_lshl_b32 s{S_T0}, s{S_T0}, 3
        s_add_u32 s{S_T0}, s{S_T0}, {WS_STATS}
        v_lshlrev_b32 v9, 3, v2
        v_mov_b32 v10, v91
        v_mov_b32 v11, v90
        s_mov_b32 exec_hi, 0
        buffer_store_dwordx2 v[10:11], v9, {srd(SRD_WS)}, s{S_T0} offen sc1
        s_mov_b64 exec, -1                   ; HZ_SKIP_END
L_nostats:
        """)
        self.poll("ready", SRD_DBG, "v_mov_b32 v9, 240", 1)
        self.signal("kv", f"s_add_u32 s{S_T0}, s{S_HP}, {CNT_KV}")
        self.stamp("kvsig")

    def moe_roles(self):
        g = self
        g(f"""
        s_mul_i32 s{S_MU}, s{S_XCD}, 14
        s_add_u32 s{S_MU}, s{S_MU}, s{S_SLOT}
        s_cmp_lt_u32 s{S_SLOT}, 14
        s_cselect_b32 s{S_MU}, s{S_MU}, 255
        s_lshr_b32 s{S_T0}, s{S_SLOT}, 3
        s_lshl_b32 s{S_T1}, s{S_XCD}, 2
        s_add_u32 s{S_RB64}, s{S_T0}, s{S_T1}
        s_and_b32 s{S_CB}, s{S_SLOT}, 7
        s_lshl_b32 s{S_ROW0}, s{S_RB64}, 6
        s_lshl_b32 s{S_T0}, s{S_WAVE}, 4
        s_add_u32 s{S_ROW0}, s{S_ROW0}, s{S_T0}
        """)

    WD = 160
    def moe_loads(self):
        g = self
        g(f"""
        s_cmp_ge_u32 s{S_MU}, 108
        s_cbranch_scc1 L_nomoeld
        v_lshrrev_b32 v9, 1, v1                ; HZ_SKIP_BEGIN
        v_mul_u32_u24 v9, 3456, v9
        v_and_b32 v10, 1, v1
        v_lshl_add_u32 v9, v10, 4, v9
        s_lshl_b32 s{S_T0}, s{S_MU}, 5
        s_mul_i32 s{S_T1}, s{S_WAVE}, {5*32*3456}
        s_add_u32 s{S_T0}, s{S_T0}, s{S_T1}
        s_mul_i32 s{S_T1}, s{S_WAVE}, 5120
        """)
        for j in range(5):
            g(f"""
            s_add_u32 m0, s{S_T1}, {L_G + j*1024}
            s_add_u32 s{S_T2}, s{S_T0}, {j*32*3456}
            buffer_load_dwordx4 v9, {srd(SRD_G)}, s{S_T2} offen lds
            s_add_u32 m0, s{S_T1}, {L_U + j*1024}
            s_nop 0
            buffer_load_dwordx4 v9, {srd(SRD_U)}, s{S_T2} offen lds
            """)
        g(f"""
        v_lshlrev_b32 v9, 3, v0
        s_mul_i32 s{S_T0}, s{S_MU}, {16*1280}
        v_cmp_gt_u32 vcc, 160, v0
        s_and_saveexec_b64 {s2(S_MA)}, vcc
        s_cbranch_execz L_nowd
        """)
        for u in range(16):
            mark = " ; HZ_SKIP_END" if u == 15 else ""
            g(f"buffer_load_dwordx2 {ac(self.WD+2*u,2)}, v9, {srd(SRD_D)}, s{S_T0} offen\ns_add_u32 s{S_T0}, s{S_T0}, 1280{mark}")
        g("L_nowd:\ns_mov_b64 exec, -1\nL_nomoeld:")

    def p2_reads(self, n):
        i, ks = divmod(n, 4); b = n % 3
        base = 128 + (i & 1)
        out = []
        for t in range(2):
            for rd in range(2):
                out.append(f"ds_read_b64_tr_b16 {v(92+12*b+4*t+2*rd,2)}, v{base} offset:{(16*ks+4*rd)*80 + 64*t}")
        for rd in range(2):
            out.append(f"ds_read_b64_tr_b16 {v(160+4*b+2*rd,2)}, v{130 + (i & 1)} offset:{(16*ks+4*rd)*80}")
        return out

    def p2_base(self, i):
        r = i & 1
        return [f"v_add_u32 v{128+r}, s{S_QC}, v132", f"v_add_u32 v{130+r}, s{S_QC}, v133",
                f"s_add_u32 s{S_QC}, s{S_QC}, 5120", f"s_cmp_eq_u32 s{S_QC}, 51200", f"s_cselect_b32 s{S_QC}, 0, s{S_QC}"]

    def pass2(self):
        g = self
        g(f"""
        v_bfe_u32 v9, v1, 2, 2
        v_lshl_add_u32 v9, v3, 3, v9
        v_mul_u32_u24 v9, 80, v9
        v_bfe_u32 v10, v1, 4, 1
        v_and_b32 v11, 3, v1
        v_lshl_add_u32 v10, v10, 2, v11
        v_lshl_add_u32 v9, v10, 3, v9
        v_add_u32 v132, {L_WQ}, v9
        s_lshl_b32 s{S_T0}, s{S_WAVE}, 6
        v_add_u32 v133, s{S_T0}, v132
        s_mul_i32 s{S_QC}, s{S_C0}, 5120
        """)
        for x in self.p2_base(0): g(x)
        for x in self.p2_reads(0): g(x)
        for x in self.p2_reads(1): g(x)
        for n in range(40):
            i, ks = divmod(n, 4); b = n % 3
            if ks == 1 and i < 9:
                for x in self.p2_base(i + 1): g(x)
            g("s_waitcnt lgkmcnt(0)" if n == 39 else "s_waitcnt lgkmcnt(6)")
            rd = self.p2_reads(n + 2) if n + 2 < 40 else []
            XP = ac(4*n, 4)
            WF = lambda t: 92 + 12*b + 4*t
            cin = lambda r, k: "0" if n == 0 else v(r, k)
            g(f"v_mfma_f32_32x32x16_bf16 v[16:31], {v(WF(0),4)}, {XP}, {cin(16,16)}")
            for x in rd[0:3]: g(x)
            g(f"v_mfma_f32_32x32x16_bf16 v[32:47], {v(WF(1),4)}, {XP}, {cin(32,16)}")
            for x in rd[3:6]: g(x)
            g(f"v_mfma_f32_4x4x4_16b_bf16 v[76:79], {v(160+4*b,2)}, v[84:85], {cin(76,4)}")
            g(f"v_mfma_f32_4x4x4_16b_bf16 v[80:83], {v(160+4*b+2,2)}, v[84:85], {cin(80,4)}")
        self.stamp("p2end")

    def q_epilogue(self):
        g = self
        self.stats_and_colsum(False)
        quads = [(16+4*j, 8*j) for j in range(4)] + [(32, 32)]
        self.normalise(quads, 512)
        PK = 244
        for i in range(10):
            g(f"v_cvt_pk_bf16_f32 v{PK+i}, v{16+2*i}, v{16+2*i+1}")
        self.featmap(PK, 220, 232)
        self.dump("phiq", list(range(220, 244)))
        self.stamp("qdone")

    def argmax(self):
        g = self
        self.poll("rmax", SRD_DBG, "v_lshlrev_b32 v9, 6, v1", 64, nl=4)
        g(f"""
        v_lshlrev_b32 v9, 5, v1
        v_add_u32 v9, {WS_RMAX}, v9
        buffer_load_dwordx4 v[160:163], v9, {srd(SRD_WS)}, 0 offen sc1
        buffer_load_dwordx4 v[164:167], v9, {srd(SRD_WS)}, 0 offen offset:16 sc1
        s_waitcnt vmcnt(0)
        v_cmp_gt_f32 vcc, v162, v160
        v_cndmask_b32 v160, v160, v162, vcc
        v_cndmask_b32 v161, v161, v163, vcc
        v_cmp_gt_f32 vcc, v164, v160
        v_cndmask_b32 v160, v160, v164, vcc
        v_cndmask_b32 v161, v161, v165, vcc
        v_cmp_gt_f32 vcc, v166, v160
        v_cndmask_b32 v160, v160, v166, vcc
        v_cndmask_b32 v161, v161, v167, vcc
        v_mov_b32 v162, v160
        """)
        for ctl in ("row_shr:1 row_mask:0xf bank_mask:0xf", "row_shr:2 row_mask:0xf bank_mask:0xf",
                    "row_shr:4 row_mask:0xf bank_mask:0xf", "row_shr:8 row_mask:0xf bank_mask:0xf",
                    "row_bcast:15 row_mask:0xa bank_mask:0xf", "row_bcast:31 row_mask:0xc bank_mask:0xf"):
            g(f"v_max_f32_dpp v162, v162, v162 {ctl}")
        g(f"""
        v_readlane_b32 s{S_RSEL}, v162, 63
        v_cmp_eq_f32 vcc, s{S_RSEL}, v160
        s_ff1_i32_b64 s{S_T0}, vcc
        s_max_i32 s{S_T0}, s{S_T0}, 0
        v_readlane_b32 s{S_IDX}, v161, s{S_T0}
        s_nop 0
        s_and_b32 s{S_IDX}, s{S_IDX}, 2047
        """)

    def moe(self):
        g = self
        WD = self.WD
        g(f"""
        s_cmp_ge_u32 s{S_MU}, 108
        s_cbranch_scc1 L_nomoe
        v_mul_u32_u24 v9, 20, v1              ; HZ_SKIP_BEGIN
        s_mul_i32 s{S_T0}, s{S_IDX}, 1280
        buffer_load_dwordx4 v[160:163], v9, {srd(SRD_X)}, s{S_T0} offen
        buffer_load_dword v164, v9, {srd(SRD_X)}, s{S_T0} offen offset:16
        v_mov_b32 v166, 0
        v_mov_b32 v167, 0
        s_waitcnt vmcnt(0)
        """)
        for d in range(5):
            g(f"v_dot2c_f32_bf16 v166, v{160+d}, v84\nv_dot2c_f32_bf16 v167, v{160+d}, v{160+d}")
        g("s_nop 2")
        for ctl in ("row_shr:1 row_mask:0xf bank_mask:0xf bound_ctrl:0", "row_shr:2 row_mask:0xf bank_mask:0xf bound_ctrl:0",
                    "row_shr:4 row_mask:0xf bank_mask:0xf bound_ctrl:0", "row_shr:8 row_mask:0xf bank_mask:0xf bound_ctrl:0",
                    "row_bcast:15 row_mask:0xa bank_mask:0xf", "row_bcast:31 row_mask:0xc bank_mask:0xf"):
            g(f"v_add_f32_dpp v166, v166, v166 {ctl}\nv_add_f32_dpp v167, v167, v167 {ctl}")
        g(f"""
        v_readlane_b32 s{S_T0}, v166, 63
        v_readlane_b32 s{S_T1}, v167, 63
        v_mov_b32 v168, 0x3acccccd
        v_mul_f32 v166, s{S_T0}, v168
        v_mul_f32 v167, s{S_T1}, v168
        v_fma_f32 v167, -v166, v166, v167
        v_max_f32 v167, 0, v167
        """)
        g.rnd_bf16(167, 167)
        g("v_add_f32 v167, 0x3727c5ac, v167")
        g.rnd_bf16(167, 167)
        g("v_sqrt_f32 v167, v167")
        g.rnd_bf16(167, 167)
        g.rnd_bf16(166, 166)
        g("v_rcp_f32 v167, v167")
        for d in range(5):
            g(f"""
            v_lshlrev_b32 v168, 16, v{160+d}
            v_and_b32 v169, 0xffff0000, v{160+d}
            v_sub_f32 v168, v168, v166
            v_sub_f32 v169, v169, v166
            v_cvt_pk_bf16_f32 v168, v168, v169
            v_lshlrev_b32 v169, 16, v168
            v_and_b32 v168, 0xffff0000, v168
            v_mul_f32 v169, v169, v167
            v_mul_f32 v168, v168, v167
            v_cvt_pk_bf16_f32 v{160+d}, v169, v168
            """)
        g(f"""
        s_mul_i32 s{S_T0}, s{S_WAVE}, 1280
        s_add_u32 s{S_T0}, s{S_T0}, {L_XS}
        v_mul_u32_u24 v9, 20, v1
        v_add_u32 v9, s{S_T0}, v9
        ds_write_b32 v9, v160
        ds_write_b32 v9, v161 offset:4
        ds_write_b32 v9, v162 offset:8
        ds_write_b32 v9, v163 offset:12
        ds_write_b32 v9, v164 offset:16
        v_bfe_u32 v9, v1, 2, 2
        v_lshl_add_u32 v9, v3, 3, v9
        s_mul_i32 s{S_T1}, s{S_WAVE}, 160
        v_add_u32 v9, s{S_T1}, v9
        v_lshlrev_b32 v9, 5, v9
        v_and_b32 v10, 3, v1
        v_lshl_add_u32 v9, v10, 3, v9
        v_bfe_u32 v10, v1, 4, 1
        v_mul_u32_u24 v10, {L_U - L_G}, v10
        v_add_u32 v9, v9, v10
        v_add_u32 v9, {L_G}, v9
        s_mul_i32 s{S_T1}, s{S_WAVE}, 320
        s_add_u32 s{S_T0}, s{S_T0}, s{S_T1}
        v_lshlrev_b32 v10, 4, v3
        v_add_u32 v10, s{S_T0}, v10
        s_waitcnt lgkmcnt(0)
        s_barrier
        """)
        for ks in range(10):
            A, B = 92 + 8*(ks & 1), 96 + 8*(ks & 1)
            g(f"""
            ds_read_b64_tr_b16 {v(A,2)}, v9 offset:{(16*ks)*32}
            ds_read_b64_tr_b16 {v(A+2,2)}, v9 offset:{(16*ks+4)*32}
            ds_read_b128 {v(B,4)}, v10 offset:{32*ks}
            s_waitcnt lgkmcnt(0)
            v_mfma_f32_32x32x16_bf16 v[16:31], {v(A,4)}, {v(B,4)}, {"0" if ks == 0 else "v[16:31]"}
            """)
        g(f"""
        s_lshl_b32 s{S_T0}, s{S_WAVE}, 7
        s_add_u32 s{S_T0}, s{S_T0}, {L_HP}
        v_lshlrev_b32 v9, 4, v3
        v_add_u32 v9, s{S_T0}, v9
        s_mov_b32 exec_lo, 1
        s_mov_b32 exec_hi, 1
        ds_write_b128 v9, v[16:19]
        ds_write_b128 v9, v[20:23] offset:32
        ds_write_b128 v9, v[24:27] offset:64
        ds_write_b128 v9, v[28:31] offset:96
        s_mov_b64 exec, -1
        s_waitcnt lgkmcnt(0)
        s_barrier
        v_and_b32 v9, 15, v1
        v_lshlrev_b32 v9, 2, v9
        v_add_u32 v9, {L_HP}, v9
        ds_read_b32 v160, v9
        ds_read_b32 v161, v9 offset:128
        ds_read_b32 v162, v9 offset:256
        ds_read_b32 v163, v9 offset:384
        ds_read_b32 v164, v9 offset:64
        ds_read_b32 v165, v9 offset:192
        ds_read_b32 v166, v9 offset:320
        ds_read_b32 v167, v9 offset:448
        s_waitcnt lgkmcnt(0)
        v_add_f32 v160, v160, v161
        v_add_f32 v162, v162, v163
        v_add_f32 v164, v164, v165
        v_add_f32 v166, v166, v167
        v_add_f32 v160, v160, v162
        v_add_f32 v164, v164, v166
        """)
        g.rnd_bf16(160, 160); g.rnd_bf16(164, 164)
        g(f"""
        v_mul_f32 v161, 0xbfb8aa3b, v160
        v_exp_f32 v161, v161
        v_add_f32 v161, 1.0, v161
        v_rcp_f32 v161, v161
        v_mul_f32 v160, v160, v161
        """)
        g.rnd_bf16(160, 160)
        g("v_mul_f32 v160, v160, v164")
        g.rnd_bf16(160, 160)
        for u in range(16): g(f"v_readlane_b32 s{84+u}, v160, {u}") if not self.stamps else None
        HS = 84
        if self.stamps:
            HS = None
        for i in range(4): g(f"v_mov_b32 v{16+i}, 0")
        for u in range(16):
            a_, b_ = WD + 2*u, WD + 2*u + 1
            if HS is None:
                g(f"v_readlane_b32 s{S_T1}, v160, {u}")
                hs = f"s{S_T1}"
            else:
                hs = f"s{HS+u}"
            g(f"""
            v_accvgpr_read_b32 v24, a{a_}
            v_accvgpr_read_b32 v25, a{b_}
            v_lshlrev_b32 v20, 16, v24
            v_and_b32 v21, 0xffff0000, v24
            v_lshlrev_b32 v22, 16, v25
            v_and_b32 v23, 0xffff0000, v25
            v_fmac_f32 v16, {hs}, v20
            v_fmac_f32 v17, {hs}, v21
            v_fmac_f32 v18, {hs}, v22
            v_fmac_f32 v19, {hs}, v23
            """)
        g(f"""
        s_mul_i32 s{S_T0}, s{S_MU}, 2560
        s_add_u32 s{S_T0}, s{S_T0}, {WS_Y}
        v_lshlrev_b32 v9, 4, v0
        v_cmp_gt_u32 vcc, 160, v0
        s_and_saveexec_b64 {s2(S_MA)}, vcc
        s_cbranch_execz L_noy
        buffer_store_dwordx4 v[16:19], v9, {srd(SRD_WS)}, s{S_T0} offen sc1
L_noy:
        s_mov_b64 exec, -1
        """)
        self.signal("moe", f"s_and_b32 s{S_T0}, s{S_MU}, 3\ns_add_u32 s{S_T0}, s{S_T0}, {CNT_M}")
        g("s_nop 0 ; HZ_SKIP_END\nL_nomoe:")
        self.stamp("moedone")

    def kv_reduce_and_o(self):
        g = self
        for k, (gi, out1, out2) in enumerate(((0, 128, 129), (256, 130, 131))):
            g(f"""
            v_add_u32 v9, {gi}, v0
            v_cmp_lt_u32 vcc, 209, v9
            v_cndmask_b32 v10, 0, 1, vcc
            v_mul_u32_u24 v11, 210, v10
            v_sub_u32 v9, v9, v11
            v_mul_u32_u24 v11, 3121, v9
            v_lshrrev_b32 v11, 16, v11
            v_mul_u32_u24 v12, 21, v11
            v_sub_u32 v12, v9, v12
            v_lshrrev_b32 v13, 1, v11
            v_and_b32 v14, 1, v11
            v_cmp_lt_u32 vcc, 7, v11
            v_subrev_u32 v15, 4, v11
            v_cndmask_b32 v13, v13, v15, vcc
            v_cndmask_b32 v14, v14, 0, vcc
            v_lshrrev_b32 v15, 1, v13
            v_and_b32 v13, 1, v13
            v_mul_u32_u24 v15, 1024, v15
            v_lshl_add_u32 v15, v13, 9, v15
            v_lshl_add_u32 v15, v14, 3, v15
            v_mul_u32_u24 v13, 3072, v10
            v_add_u32 v15, v15, v13
            v_add_u32 v15, {L_KVF}, v15
            v_lshlrev_b32 v13, 2, v10
            v_sub_u32 v13, v12, v13
            v_add_u32 v14, 20, v13
            v_cmp_gt_i32 vcc, 0, v13
            v_cndmask_b32 v13, v13, v14, vcc
            v_subrev_u32 v14, 16, v13
            v_lshrrev_b32 v16, 3, v13
            v_and_b32 v17, 7, v13
            v_lshrrev_b32 v18, 1, v14
            v_and_b32 v19, 1, v14
            v_add_u32 v19, 8, v19
            v_cmp_lt_u32 vcc, 15, v13
            v_cndmask_b32 v16, v16, v18, vcc
            v_cndmask_b32 v17, v17, v19, vcc
            v_lshrrev_b32 v18, 2, v17
            v_lshlrev_b32 v18, 3, v18
            v_lshl_add_u32 v18, v16, 2, v18
            v_and_b32 v17, 3, v17
            v_add_u32 v18, v18, v17
            v_cmp_eq_u32 vcc, 20, v12
            v_cndmask_b32 v19, v18, 22, vcc
            v_cndmask_b32 v18, v18, 18, vcc
            v_lshl_add_u32 v{out1}, v18, 4, v15
            v_lshl_add_u32 v{out2}, v19, 4, v15
            """)
        self.poll("kv", SRD_WS, f"s_add_u32 s{S_T0}, s{S_HP}, {CNT_KV}\ns_lshl_b32 s{S_T0}, s{S_T0}, 7\nv_mov_b32 v9, s{S_T0}", 16)
        self.stamp("kvseen")
        D1, D2 = 16, 92
        g(f"""
        s_mul_i32 s{S_T0}, s{S_HP}, {16*KVP_SZ}
        s_add_u32 s{S_T0}, s{S_T0}, {WS_KVP}
        v_lshlrev_b32 v9, 4, v0
        v_add_u32 v10, 4096, v9
        v_cmp_gt_u32 vcc, 164, v0
        s_mov_b64 {s2(S_MA)}, vcc
        s_mov_b32 s{S_T1}, s{S_T0}
        """)
        d2regs = list(range(92, 128, 4)) + list(range(132, 160, 4))
        assert len(d2regs) == 16
        for p in range(16):
            g(f"buffer_load_dwordx4 {v(D1+4*p,4)}, v9, {srd(SRD_WS)}, s{S_T1} offen sc1\ns_add_u32 s{S_T1}, s{S_T1}, {KVP_SZ}")
        g(f"s_mov_b64 exec, {s2(S_MA)}\ns_cbranch_execz L_nod2")
        for p in range(16):
            mark = " ; HZ_SKIP_BEGIN" if p == 0 else (" ; HZ_SKIP_END" if p == 15 else "")
            g(f"buffer_load_dwordx4 {v(d2regs[p],4)}, v10, {srd(SRD_WS)}, s{S_T0} offen sc1{mark}\ns_add_u32 s{S_T0}, s{S_T0}, {KVP_SZ}")
        g("L_nod2:\ns_mov_b64 exec, -1\ns_waitcnt vmcnt(0)")
        for regs in ([D1 + 4*p for p in range(16)], d2regs):
            st = 1
            while st < 16:
                for p in range(0, 16, 2*st):
                    a_, b_ = regs[p], regs[p+st]
                    g(f"v_pk_add_f32 {v(a_,2)}, {v(a_,2)}, {v(b_,2)}\nv_pk_add_f32 {v(a_+2,2)}, {v(a_+2,2)}, {v(b_+2,2)}")
                st *= 2
        g(f"""
        v_cvt_pk_bf16_f32 v16, v16, v17
        v_cvt_pk_bf16_f32 v17, v18, v19
        v_cvt_pk_bf16_f32 v92, v92, v93
        v_cvt_pk_bf16_f32 v93, v94, v95
        ds_write_b64 v128, v[16:17]
        ds_write_b64 v129, v[16:17]
        s_mov_b64 exec, {s2(S_MA)}
        ds_write_b64 v130, v[92:93]
        ds_write_b64 v131, v[92:93]
        s_mov_b64 exec, -1
        s_waitcnt lgkmcnt(0)
        s_barrier
        v_lshlrev_b32 v9, 4, v1
        v_add_u32 v9, {L_KVF}, v9
        """)
        for a in range(2):
            for t in range(3):
                g(f"ds_read_b128 {v(160+12*a+4*t,4)}, v9 offset:{a*3072 + t*1024}")
        self.dump("kvf", list(range(160, 184)))
        for a, (acc, H) in enumerate(((16, 220), (32, 232))):
            g(f"s_waitcnt lgkmcnt({3 - 3*a})")
            for t in range(3):
                g(f"v_mfma_f32_32x32x16_bf16 {v(acc,16)}, {v(160+12*a+4*t,4)}, {v(H+4*t,4)}, {'0' if t == 0 else v(acc,16)}")
        self.dump("num", list(range(16, 48)))
        g(f"""
        s_lshl_b32 s{S_T0}, s{S_RB}, 1
        s_lshr_b32 s{S_T1}, s{S_WAVE}, 1
        s_add_u32 s{S_T0}, s{S_T0}, s{S_T1}
        s_mul_i32 s{S_T0}, s{S_T0}, 81920
        s_and_b32 s{S_T1}, s{S_WAVE}, 1
        s_mul_i32 s{S_T1}, s{S_T1}, 40960
        s_add_u32 s{S_T0}, s{S_T0}, s{S_T1}
        s_lshr_b32 s{S_T1}, s{S_HP}, 2
        s_mul_i32 s{S_T1}, s{S_T1}, 5120
        s_add_u32 s{S_T0}, s{S_T0}, s{S_T1}
        s_and_b32 s{S_T1}, s{S_HP}, 3
        s_lshl_b32 s{S_T1}, s{S_T1}, 8
        s_add_u32 s{S_T0}, s{S_T0}, s{S_T1}
        s_add_u32 s{S_T0}, s{S_T0}, {WS_O}
        v_lshrrev_b32 v9, 4, v2
        v_mul_u32_u24 v9, 20480, v9
        v_and_b32 v10, 15, v2
        v_lshl_add_u32 v9, v10, 4, v9
        v_lshl_add_u32 v10, v3, 10, v9
        v_lshl_add_u32 v11, v3, 3, v9
        v_mov_b32 v12, 0x358637bd
        """)
        for a, (acc, P) in enumerate(((16, 160), (32, 166))):
            g(f"v_add_f32 v{acc+10}, v{acc+10}, v12\nv_rcp_f32 v{acc+10}, v{acc+10}")
        for a, (acc, P) in enumerate(((16, 160), (32, 166))):
            for i in range(5):
                g(f"v_pk_mul_f32 {v(acc+2*i,2)}, {v(acc+2*i,2)}, {v(acc+10,2)} op_sel_hi:[1,0]")
            for i in range(5):
                g(f"v_cvt_pk_bf16_f32 v{P+i}, v{acc+2*i}, v{acc+2*i+1}")
        self.dump("o", list(range(160, 165)) + list(range(166, 171)))
        g(f"""
        v_mov_b32 v172, v164
        v_mov_b32 v173, v170
        s_nop 1
        v_permlane32_swap_b32 v172, v173
        buffer_store_dwordx4 v[160:163], v10, {srd(SRD_WS)}, s{S_T0} offen sc1
        v_mov_b32 v174, v166
        v_mov_b32 v175, v167
        v_mov_b32 v176, v168
        v_mov_b32 v177, v169
        buffer_store_dwordx2 v[172:173], v11, {srd(SRD_WS)}, s{S_T0} offen offset:2048 sc1
        buffer_store_dwordx4 v[174:177], v10, {srd(SRD_WS)}, s{S_T0} offen offset:3072 sc1
        """)
        self.signal("o", f"s_add_u32 s{S_T0}, s{S_RB}, {CNT_O}")
        self.stamp("osig")

    def phase_c(self):
        g = self
        for n in range(5):
            g(f"""
            v_add_u32 v9, {64*n}, v1
            v_mul_u32_u24 v10, 6554, v9
            v_lshrrev_b32 v10, 16, v10
            v_mul_u32_u24 v11, 10, v10
            v_sub_u32 v11, v9, v11
            v_bfe_u32 v12, v10, 3, 1
            v_bfe_u32 v13, v10, 2, 1
            v_lshl_add_u32 v12, v12, 1, v13
            v_mul_u32_u24 v12, 40, v12
            v_lshrrev_b32 v13, 4, v10
            v_lshl_add_u32 v12, v13, 2, v12
            v_and_b32 v13, 3, v10
            v_add_u32 v12, v12, v13
            v_mul_u32_u24 v12, 1280, v12
            v_lshl_add_u32 v{128+n}, v11, 4, v12
            """)
        g(f"""
        s_mul_i32 s{S_T0}, s{S_WAVE}, {160*1280}
        s_mul_i32 s{S_T1}, s{S_CB}, 160
        s_add_u32 s{S_T0}, s{S_T0}, s{S_T1}
        s_mul_i32 s{S_T1}, s{S_WAVE}, {5*5120}
        """)
        for i5 in range(5):
            g(f"s_add_u32 s{S_T2}, s{S_T0}, {8*i5*1280}")
            for n in range(5):
                g(f"s_add_u32 m0, s{S_T1}, {L_WO + i5*5120 + n*1024}\ns_nop 0\nbuffer_load_dwordx4 v{128+n}, {srd(SRD_WO)}, s{S_T2} offen lds")
        XR, RS, ST = 200, 176, 212
        for n in range(3):
            g(f"""
            v_add_u32 v9, {64*n}, v1
            v_mul_u32_u24 v10, 6554, v9
            v_lshrrev_b32 v10, 16, v10
            v_mul_u32_u24 v11, 10, v10
            v_sub_u32 v11, v9, v11
            v_min_u32 v10, 15, v10
            v_mul_u32_u24 v12, 1280, v10
            v_lshl_add_u32 v{134+n}, v11, 4, v12
            v_mul_u32_u24 v12, 336, v10
            v_lshl_add_u32 v{137+n}, v11, 5, v12
            v_mov_b32 v{140+n}, v10
            v_lshlrev_b32 v{143+n}, 5, v11
            """)
        g(f"""
        s_mul_i32 s{S_T0}, s{S_ROW0}, 1280
        s_mul_i32 s{S_T1}, s{S_CB}, 160
        s_add_u32 s{S_T5}, s{S_T0}, s{S_T1}
        """)
        for n in range(3):
            g(f"buffer_load_dwordx4 {v(XR+4*n,4)}, v{134+n}, {srd(SRD_X)}, s{S_T5} offen")
        self.poll("o", SRD_WS, f"s_lshr_b32 s{S_T0}, s{S_RB64}, 1\ns_add_u32 s{S_T0}, s{S_T0}, {CNT_O}\ns_lshl_b32 s{S_T0}, s{S_T0}, 7\nv_mov_b32 v9, s{S_T0}", 16)
        g("s_barrier")
        self.stamp("oseen")
        g(f"""
        s_mul_i32 s{S_T0}, s{S_RB64}, 81920
        s_mul_i32 s{S_T1}, s{S_WAVE}, 20480
        s_add_u32 s{S_T0}, s{S_T0}, s{S_T1}
        s_add_u32 s{S_T0}, s{S_T0}, {WS_O}
        v_lshlrev_b32 v9, 4, v1
        """)
        OF = 92
        self.vm = []
        regs_o = list(range(92, 128, 4)) + list(range(146, 176, 4)) + [220, 224, 228, 232]
        regs_o = regs_o[:20]
        assert len(regs_o) == 20, len(regs_o)
        for ks in range(20):
            g(f"buffer_load_dwordx4 {v(regs_o[ks],4)}, v9, {srd(SRD_WS)}, s{S_T0} offen sc1\ns_add_u32 s{S_T0}, s{S_T0}, 1024")
            g.vmi(f"o{ks}")
        g(f"s_lshl_b32 s{S_T0}, s{S_ROW0}, 3\ns_add_u32 s{S_T0}, s{S_T0}, {WS_STATS}")
        for n in range(3):
            g(f"v_lshlrev_b32 v10, 3, v{140+n}\nbuffer_load_dwordx2 {v(ST+2*n,2)}, v10, {srd(SRD_WS)}, s{S_T0} offen sc1")
            g.vmi("st")
        g(f"""
        v_bfe_u32 v10, v1, 5, 1
        v_lshlrev_b32 v10, 3, v10
        v_bfe_u32 v11, v1, 4, 1
        v_lshl_add_u32 v10, v11, 2, v10
        v_bfe_u32 v11, v1, 2, 2
        v_add_u32 v10, v10, v11
        v_mul_u32_u24 v10, 160, v10
        v_and_b32 v11, 3, v1
        v_lshl_add_u32 v10, v11, 3, v10
        v_add_u32 v236, {L_WO}, v10
        v_add_u32 v237, {L_WO + 10*5120}, v10
        """)
        def wo_reads(ks):
            b = ks & 1
            base = 236 + ks // 10
            out = []
            for ct in range(5):
                for rd in range(2):
                    out.append(f"ds_read_b64_tr_b16 {v(40+20*b+4*ct+2*rd,2)}, v{base} offset:{(ks % 10)*5120 + rd*2560 + ct*32}")
            return out
        for x in wo_reads(0): g(x)
        for ks in range(20):
            b = ks & 1
            g("s_waitcnt lgkmcnt(0)")
            rd = wo_reads(ks + 1) if ks < 19 else []
            g.vmwait(f"o{ks}")
            for ct in range(5):
                cin = "0" if ks == 0 else v(16+4*ct, 4)
                g(f"v_mfma_f32_16x16x32_bf16 {v(16+4*ct,4)}, {v(40+20*b+4*ct,4)}, {v(regs_o[ks],4)}, {cin}")
                for x in rd[2*ct:2*ct+2]: g(x)
        self.stamp("cmfma")
        g.vmwait("st")
        for n in range(3):
            xr, rs, st = XR + 4*n, RS + 8*n, ST + 2*n
            g(f"v_rcp_f32 v{st+1}, v{st+1}")
            for d in range(4):
                g(f"""
                v_lshlrev_b32 v10, 16, v{xr+d}
                v_and_b32 v11, 0xffff0000, v{xr+d}
                v_sub_f32 v12, v10, v{st}
                v_sub_f32 v13, v11, v{st}
                v_cvt_pk_bf16_f32 v12, v12, v13
                v_lshlrev_b32 v13, 16, v12
                v_and_b32 v12, 0xffff0000, v12
                v_mul_f32 v13, v13, v{st+1}
                v_mul_f32 v12, v12, v{st+1}
                v_cvt_pk_bf16_f32 v12, v13, v12
                v_lshlrev_b32 v{rs+2*d}, 16, v12
                v_and_b32 v{rs+2*d+1}, 0xffff0000, v12
                """)
        g(f"""
        s_sub_u32 s{S_T4}, s{S_IDX}, s{S_ROW0}
        s_cmp_ge_u32 s{S_T4}, 16
        s_cbranch_scc1 L_norow
        s_nop 0                      ; HZ_SKIP_BEGIN
        """)
        self.poll("m", SRD_WS, f"v_lshlrev_b32 v9, 7, v1\nv_add_u32 v9, {CNT_M*128}, v9", 27, nl=4)
        g(f"""
        v_mul_u32_u24 v10, 3277, v1
        v_lshrrev_b32 v10, 16, v10
        v_mul_u32_u24 v11, 20, v10
        v_sub_u32 v11, v1, v11
        v_mul_u32_u24 v12, 2560, v10
        v_lshl_add_u32 v12, v11, 4, v12
        s_mul_i32 s{S_T0}, s{S_CB}, 320
        s_add_u32 s{S_T0}, s{S_T0}, {WS_Y}
        v_mov_b32 v40, 0
        v_mov_b32 v41, 0
        v_mov_b32 v42, 0
        v_mov_b32 v43, 0
        s_mov_b32 s{S_T1}, 0
        s_mov_b32 exec_hi, 0x0fffffff
L_ysum:
        buffer_load_dwordx4 v[44:47], v12, {srd(SRD_WS)}, s{S_T0} offen sc1
        s_add_u32 s{S_T0}, s{S_T0}, {3*2560}
        buffer_load_dwordx4 v[48:51], v12, {srd(SRD_WS)}, s{S_T0} offen sc1
        s_add_u32 s{S_T0}, s{S_T0}, {3*2560}
        buffer_load_dwordx4 v[52:55], v12, {srd(SRD_WS)}, s{S_T0} offen sc1
        s_add_u32 s{S_T0}, s{S_T0}, {3*2560}
        buffer_load_dwordx4 v[56:59], v12, {srd(SRD_WS)}, s{S_T0} offen sc1
        s_add_u32 s{S_T0}, s{S_T0}, {3*2560}
        s_add_u32 s{S_T1}, s{S_T1}, 1
        s_waitcnt vmcnt(0)
        v_pk_add_f32 v[44:45], v[44:45], v[48:49]
        v_pk_add_f32 v[46:47], v[46:47], v[50:51]
        v_pk_add_f32 v[52:53], v[52:53], v[56:57]
        v_pk_add_f32 v[54:55], v[54:55], v[58:59]
        v_pk_add_f32 v[40:41], v[40:41], v[44:45]
        v_pk_add_f32 v[42:43], v[42:43], v[46:47]
        v_pk_add_f32 v[40:41], v[40:41], v[52:53]
        v_pk_add_f32 v[42:43], v[42:43], v[54:55]
        s_cmp_lt_u32 s{S_T1}, 9
        s_cbranch_scc1 L_ysum
        v_mul_u32_u24 v12, 320, v10
        v_lshl_add_u32 v12, v11, 4, v12
        v_add_u32 v12, {L_YR}, v12
        ds_write_b128 v12, v[40:43]
        s_mov_b64 exec, -1
        v_mov_b32 v44, s{S_RSEL}
        """)
        g.rnd_bf16(44, 44)
        g(f"""
        v_mul_f32 v44, 0xbfb8aa3b, v44
        v_exp_f32 v44, v44
        v_add_f32 v44, 1.0, v44
        v_rcp_f32 v44, v44
        """)
        g.rnd_bf16(44, 44)
        g("s_waitcnt lgkmcnt(0)")
        for n in range(3):
            rs, xr = RS + 8*n, XR + 4*n
            g(f"v_add_u32 v12, {L_YR}, v{143+n}")
            for pg in range(3):
                g(f"ds_read_b128 {v(48+8*pg,4)}, v12 offset:{320*pg}\nds_read_b128 {v(52+8*pg,4)}, v12 offset:{320*pg+16}")
            g("s_waitcnt lgkmcnt(0)")
            g(f"v_cmp_eq_u32 vcc, s{S_T4}, v{140+n}")
            for e in range(8):
                g(f"v_add_f32 v{48+e}, v{48+e}, v{56+e}\nv_add_f32 v{48+e}, v{48+e}, v{64+e}")
                g.rnd_bf16(48+e, 48+e)
                g(f"v_mul_f32 v{48+e}, v{48+e}, v44")
                g.rnd_bf16(48+e, 48+e)
                g(f"v_add_f32 v{48+e}, v{48+e}, v{rs+e}")
                g.rnd_bf16(48+e, 48+e)
                g(f"v_cndmask_b32 v{rs+e}, v{rs+e}, v{48+e}, vcc")
        g("s_nop 0                      ; HZ_SKIP_END\nL_norow:")
        for n in range(3):
            rs, xr = RS + 8*n, XR + 4*n
            for d in range(4):
                g(f"""
                v_lshlrev_b32 v10, 16, v{xr+d}
                v_and_b32 v11, 0xffff0000, v{xr+d}
                v_add_f32 v{rs+2*d}, v{rs+2*d}, v10
                v_add_f32 v{rs+2*d+1}, v{rs+2*d+1}, v11
                """)
        g(f"""
        s_mul_i32 s{S_T0}, s{S_WAVE}, 5376
        s_add_u32 s{S_T0}, s{S_T0}, {L_OST}
        v_and_b32 v9, 15, v1
        v_mul_u32_u24 v9, 336, v9
        v_lshrrev_b32 v10, 4, v1
        v_lshl_add_u32 v9, v10, 4, v9
        v_add_u32 v9, s{S_T0}, v9
        """)
        for ct in range(5): g(f"ds_write_b128 v9, {v(16+4*ct,4)} offset:{64*ct}")
        g("s_waitcnt lgkmcnt(0)")
        for n in range(3):
            g(f"v_add_u32 v10, s{S_T0}, v{137+n}\nds_read_b128 {v(40+8*n,4)}, v10\nds_read_b128 {v(44+8*n,4)}, v10 offset:16")
        g("s_waitcnt lgkmcnt(0)")
        for n in range(3):
            rs = RS + 8*n
            for e in range(0, 8, 2):
                g(f"v_pk_add_f32 {v(40+8*n+e,2)}, {v(40+8*n+e,2)}, {v(rs+e,2)}")
            for e in range(4):
                g(f"v_cvt_pk_bf16_f32 v{64+4*n+e}, v{40+8*n+2*e}, v{40+8*n+2*e+1}")
            if n == 2: g("s_mov_b32 exec_hi, 0")
            g(f"buffer_store_dwordx4 {v(64+4*n,4)}, v{134+n}, {srd(SRD_OUT)}, s{S_T5} offen")
        g("s_mov_b64 exec, -1")
        self.stamp("end"); self.stamp("clk1", True)

    def rest(self):
        self.moe_roles()
        self.publish_kv()
        self.dbg_span(4, False)
        self.moe_loads()
        self.pass2()
        self.q_epilogue()
        self.argmax()
        self.moe()
        self.dbg_span(5, False)
        self.kv_reduce_and_o()
        self.dbg_span(6, False)
        self.phase_c()
```

```python
import sys, re
from asmlib import Asm, kernel_header
import hazard

NAME = "parallel_sum__linear_kernel_hedgehog__moe_arch_mod__prompt_kernel"

WS_CNT   = 0
WS_KVP   = 0x10000
KVP_SZ   = 6784
WS_O     = 0x200000
WS_STATS = 0x500000
WS_RMAX  = 0x508000
WS_Y     = 0x510000
WS_DBG   = 0x800000
WS_TS    = 0x7f0000
WS_SIZE  = 268435456

SLOT     = 28672
L_WQ     = 0
L_T      = 57344
L_MISC   = 143360
L_WPHI   = L_MISC
L_CS     = L_WPHI + 4 * 1664
L_P0     = L_CS + 1024
L_KVF    = L_P0 + 64
L_XS     = L_KVF + 6144
L_HP     = L_XS + 5120
L_END    = L_HP + 640
LDS_SIZE = 163840
assert L_END <= LDS_SIZE, L_END

S_WAVE = 3
SRD_X, SRD_W, SRD_PHI, SRD_WO, SRD_WR, SRD_G, SRD_U, SRD_D, SRD_OUT, SRD_DBG, SRD_WS = range(4, 48, 4)
S_XCD, S_SLOT, S_RB, S_HP = 48, 49, 50, 51
S_XB, S_WB, S_LX, S_LW = 52, 53, 54, 55
S_WM = 56
S_T0, S_T1, S_T2, S_T3, S_T4, S_T5 = 62, 63, 64, 65, 66, 67
S_MA, S_MB = 68, 70
S_C0, S_CC, S_CX, S_CW = 76, 77, 78, 79
S_WQL, S_WQG, S_P0ROW, S_IDX = 80, 81, 82, 83
S_TS = 84

def srd(n): return f"s[{n}:{n+3}]"
def v(b, n=1): return f"v{b}" if n == 1 else f"v[{b}:{b+n-1}]"
def ac(b, n=1): return f"a{b}" if n == 1 else f"a[{b}:{b+n-1}]"
def s2(b): return f"s[{b}:{b+1}]"


class Gen:
    def __init__(self, stop=None, dumps=(), stamps=False, touch=True, exp=()):
        self.touch = touch
        self.exp = set(exp)
        self.a = Asm()
        self.vm = []
        self.stop = stop
        self.dumps = set(dumps)
        self.stamps = stamps
        self.nstamp = 0
        self.dump_off = 0
        self.dump_index = {}

    def __call__(self, t): self.a(t)

    def vmi(self, tag, n=1):
        self.vm += [tag] * n
    def capture(self, fn):
        old, self.a.lines = self.a.lines, []
        self.capturing = True
        fn()
        self.capturing = False
        out, self.a.lines = self.a.lines, old
        return [l.strip() for l in out if l.strip()]

    def atoms(self, lines):
        out, cur, hold = [], [], None
        for l in lines:
            cur.append(l)
            code = l.split(";")[0].strip()
            if hold is None:
                if re.match(r"s_(mov|brev|and_saveexec)\w* (exec|exec_lo|exec_hi)\b", code) or code.startswith("s_and_saveexec"):
                    if not code.endswith("exec, -1"): hold = "exec"
                elif code.startswith("s_cmp"): hold = "label"
            else:
                if hold == "exec" and code == "s_mov_b64 exec, -1": hold = None
                elif hold == "label" and (code.endswith(":") or code.startswith("s_cselect")): hold = None
            if hold is None and not l.endswith(";+"):
                out.append(cur); cur = []
        if cur: out.append(cur)
        return out

    def interleave(self, groups, filler):
        at = self.atoms(filler)
        total = sum(len(a) for a in at)
        done = 0
        for i, (lines, tag) in enumerate(groups):
            for x in lines: self(x)
            self.vmi(tag)
            target = total * (i + 1) // len(groups)
            while at and done < target:
                a = at.pop(0); done += len(a)
                for x in a: self.emit_resolved(x)
        for a in at:
            for x in a: self.emit_resolved(x)

    def emit_resolved(self, x):
        if x.startswith("@VMWAIT "): self.vmwait(x.split()[1])
        else: self(x)

    def vmwait(self, tag):
        if getattr(self, "capturing", False):
            self(f"@VMWAIT {tag}"); return
        last = max(i for i, t in enumerate(self.vm) if t == tag)
        n = len(self.vm) - 1 - last
        assert n <= 63, (tag, n)
        self(f"s_waitcnt vmcnt({n})")
    def vmwait_all(self):
        self("s_waitcnt vmcnt(0)")

    def stamp(self, name, clk=False):
        if not self.stamps: return
        if self.stamps is not True and name not in self.stamps: return
        i = self.nstamp; self.nstamp += 1
        assert i < 9, name
        if "cyc" in self.exp: clk = True
        self(f"{'s_memtime' if clk else 's_memrealtime'} {s2(S_TS + 2*i)} ; stamp {name}")
        self.stamp_names = getattr(self, "stamp_names", []) + [name]

    def dump(self, name, regs, tmp=250):
        if name not in self.dumps: return
        g = self
        n = len(regs)
        base = WS_DBG + self.dump_off
        self.dump_index[name] = (self.dump_off, n)
        self.dump_off += 256 * 4 * n * 256
        g("s_waitcnt vmcnt(0) lgkmcnt(0)\ns_nop 15\ns_nop 15")
        g(f"s_lshl_b32 s75, s2, 2\ns_add_u32 s75, s75, s{S_WAVE}\ns_mul_i32 s75, s75, {n*256}\ns_add_u32 s75, s75, {base}")
        g(f"v_lshlrev_b32 v{tmp}, 2, v1")
        for i, r in enumerate(regs):
            if isinstance(r, str) and r.startswith("a"):
                g(f"v_accvgpr_read_b32 v{tmp+1}, {r}\ns_nop 1")
                src = f"v{tmp+1}"
            else:
                src = f"v{r}"
            g(f"buffer_store_dword {src}, v{tmp}, {srd(SRD_WS)}, s75 offen")
            g(f"s_add_u32 s75, s75, 256")
            g("s_waitcnt vmcnt(0)")

    def rnd_bf16(self, dst, src):
        self(f"v_cvt_pk_bf16_f32 v{dst}, v{src}, v{src}\nv_lshlrev_b32 v{dst}, 16, v{dst}")

    def prologue(self):
        g = self
        ptrs = [(SRD_X, 0), (SRD_W, 8), (SRD_WR, 40), (SRD_PHI, 16), (SRD_WS, 88), (SRD_DBG, 80),
                (SRD_WO, 24), (SRD_G, 48), (SRD_U, 56), (SRD_D, 64), (SRD_OUT, 72)]
        sizes = {SRD_X: 2621440, SRD_W: 2457600, SRD_WR: 1280, SRD_PHI: 25600, SRD_WS: WS_SIZE, SRD_DBG: 256,
                 SRD_WO: 819200, SRD_G: 2211840, SRD_U: 2211840, SRD_D: 2211840, SRD_OUT: 2621440}
        self.sizes = sizes
        if "span" in self.exp: g("s_memrealtime s[98:99]")
        g("s_getpc_b64 s[72:73]")
        g("L_pc:")
        for r, off in ptrs[:4]:
            g(f"s_load_dwordx2 {s2(r)}, s[0:1], {off}")
        g(f"""
        s_cmp_ge_u32 s2, 256
        s_cbranch_scc1 L_exit
        v_and_b32 v1, 63, v0
        v_lshrrev_b32 v9, 6, v0
        s_lshr_b32 s{S_SLOT}, s2, 3
        v_readfirstlane_b32 s{S_WAVE}, v9
        s_and_b32 s{S_XCD}, s2, 7
        """)
        g(f"""
        s_lshl_b32 s{S_T0}, s{S_SLOT}, 2
        s_add_u32 s{S_T0}, s{S_T0}, s{S_WAVE}
        s_lshl_b32 s{S_T0}, s{S_T0}, 9
        v_lshl_add_u32 v11, v1, 7, s{S_T0}
        v_cmp_gt_u32 vcc, L_code_end - L_pc, v11
        v_cmp_gt_u32 {s2(S_MA)}, 4, v1
        s_and_b64 vcc, vcc, {s2(S_MA)}
        s_and_saveexec_b64 {s2(S_MA)}, vcc
        s_cbranch_execz L_nopf
        global_load_dword v159, v11, s[72:73]
L_nopf:
        s_mov_b64 exec, -1
        """)
        for r, off in ptrs[4:]:
            g(f"s_load_dwordx2 {s2(r)}, s[0:1], {off}")
        g(f"""
        s_and_b32 s{S_T0}, s{S_XCD}, 1
        s_lshl_b32 s{S_T0}, s{S_T0}, 3
        s_and_b32 s{S_T1}, s{S_SLOT}, 7
        s_add_u32 s{S_RB}, s{S_T0}, s{S_T1}
        s_lshr_b32 s{S_T0}, s{S_XCD}, 1
        s_lshl_b32 s{S_T0}, s{S_T0}, 2
        s_lshr_b32 s{S_T2}, s{S_SLOT}, 3
        s_add_u32 s{S_HP}, s{S_T0}, s{S_T2}
        s_lshl_b32 s{S_T2}, s{S_T2}, 1
        s_add_u32 s{S_T1}, s{S_T1}, s{S_T2}
        s_and_b32 s{S_T1}, s{S_T1}, 7
        s_mul_i32 s{S_T1}, s{S_T1}, 10
        s_lshr_b32 s{S_C0}, s{S_T1}, 3
        v_lshrrev_b32 v9, 3, v1
        v_mul_u32_u24 v9, 1280, v9
        v_and_b32 v11, 7, v1
        v_lshrrev_b32 v15, 4, v1
        v_xor_b32 v11, v11, v15
        v_lshl_add_u32 v4, v11, 4, v9
        v_xor_b32 v11, 4, v11
        v_lshl_add_u32 v5, v11, 4, v9
        v_add_u32 v5, {10240 - 1024}, v5
        v_add_u32 v157, {20480 - 2048}, v4
        v_add_u32 v158, {20480 - 2048}, v5
        s_lshl_b32 s{S_T0}, s{S_RB}, 7
        s_lshl_b32 s{S_T1}, s{S_WAVE}, 5
        s_add_u32 s{S_T1}, s{S_T1}, s{S_T0}
        s_mul_i32 s{S_XB}, s{S_T1}, 1280
        s_mul_i32 s{S_WB}, s{S_WAVE}, {16*3840}
        s_mul_i32 s{S_T1}, s{S_HP}, 80
        s_add_u32 s{S_WB}, s{S_WB}, s{S_T1}
        s_lshl_b32 s{S_LX}, s{S_WAVE}, 12
        s_mul_i32 s{S_LW}, s{S_WAVE}, 3072
        s_add_u32 s{S_LW}, s{S_LW}, 16384
        s_add_u32 s{S_CC}, s{S_XB}, 1280
        s_lshl_b32 s{S_CX}, s{S_C0}, 7
        s_add_u32 s{S_CX}, s{S_CX}, s{S_XB}
        s_mul_i32 s{S_CW}, s{S_C0}, {64*3840}
        s_add_u32 s{S_CW}, s{S_CW}, s{S_WB}
        """)
        for r in (SRD_X, SRD_W):
            g(f"s_mov_b32 s{r+2}, {sizes[r]}\ns_mov_b32 s{r+3}, 0x20000")
        for n in range(3):
            g(f"""
            v_add_u32 v9, {64*n}, v1
            v_mul_u32_u24 v11, 43691, v9
            v_lshrrev_b32 v11, 19, v11
            v_mul_u32_u24 v12, 12, v11
            v_sub_u32 v12, v9, v12
            v_cmp_gt_u32 {s2(S_WM+2*n)}, 10, v12
            v_cmp_gt_u32 vcc, 5, v12
            v_mul_u32_u24 v11, 3840, v11
            v_lshl_add_u32 v11, v12, 4, v11
            v_mov_b32 v13, 2480
            v_add_u32 v14, 1280, v11
            v_add_u32 v11, v13, v11
            v_cndmask_b32 v{6+n}, v11, v14, vcc
            """)
            if n: g(f"v_subrev_u32 v{6+n}, {1024*n}, v{6+n}")
        g("s_waitcnt lgkmcnt(0)")
        self.stamp("start"); self.stamp("clk0", True)
        for r in (SRD_WR, SRD_PHI):
            g(f"s_mov_b32 s{r+2}, {sizes[r]}\ns_mov_b32 s{r+3}, 0x20000")
        P = 160
        nt = " nt" if "nt" in self.exp else ""
        self.nt = nt
        g(f"""
        v_mul_u32_u24 v10, 20, v1
        s_lshl_b32 s{S_T0}, s{S_RB}, 7
        s_lshl_b32 s{S_T1}, s{S_HP}, 3
        s_add_u32 s{S_T0}, s{S_T0}, s{S_T1}
        s_lshl_b32 s{S_T1}, s{S_WAVE}, 1
        s_add_u32 s{S_P0ROW}, s{S_T0}, s{S_T1}
        s_mul_i32 s{S_T4}, s{S_P0ROW}, 1280
        buffer_load_dwordx4 {v(P,4)}, v10, {srd(SRD_X)}, s{S_T4} offen
        buffer_load_dword v{P+4}, v10, {srd(SRD_X)}, s{S_T4} offen offset:16
        buffer_load_dwordx4 {v(P+6,4)}, v10, {srd(SRD_X)}, s{S_T4} offen offset:1280
        buffer_load_dword v{P+10}, v10, {srd(SRD_X)}, s{S_T4} offen offset:1296
        buffer_load_dwordx4 {v(P+12,4)}, v10, {srd(SRD_WR)}, 0 offen
        buffer_load_dword v{P+16}, v10, {srd(SRD_WR)}, 0 offen offset:16
        v_lshlrev_b32 v11, 4, v1
        s_mul_i32 s{S_T0}, s{S_HP}, 1600
        s_mul_i32 s{S_T1}, s{S_WAVE}, 1664
        s_add_u32 m0, s{S_T1}, {L_WPHI}
        s_add_u32 s{S_T4}, s{S_T1}, {L_WPHI + 1024}
        buffer_load_dwordx4 v11, {srd(SRD_PHI)}, s{S_T0} offen lds
        s_mov_b32 m0, s{S_T4}
        s_mov_b32 exec_lo, -1
        s_mov_b32 exec_hi, 15
        s_add_u32 s{S_T0}, s{S_T0}, 1024
        buffer_load_dwordx4 v11, {srd(SRD_PHI)}, s{S_T0} offen lds
        s_mov_b64 exec, -1
        """)
        g.vmi("p0", 6); g.vmi("phi", 2)
        tagged = lambda i: [(x, f"c{i}") for x in self.p1_refill(i)]
        self.interleave(tagged(0), self.capture(self.setup1))
        self.interleave(tagged(1), self.capture(self.phase0))
        self.interleave(tagged(2), self.capture(self.phi_frags))
        self.stamp("filled")

    def setup1(self):
        g = self
        sizes = self.sizes
        for r in (SRD_WS, SRD_DBG):
            g(f"s_mov_b32 s{r+2}, {sizes[r]}\ns_mov_b32 s{r+3}, 0x20000")
        g(f"""
        s_lshl_b32 s{S_T0}, s{S_WAVE}, 8
        s_add_u32 s{S_T0}, s{S_T0}, s2
        s_cmp_lg_u32 s{S_T0}, 256
        s_cbranch_scc1 L_noinit
        v_lshlrev_b32 v11, 7, v1       ; HZ_SKIP_BEGIN
        v_mov_b32 v12, 0
        buffer_store_dword v12, v11, {srd(SRD_WS)}, 0 offen sc1   ; HZ_SKIP_END
L_noinit:
        """)
        for r in (SRD_WO, SRD_G, SRD_U, SRD_D, SRD_OUT):
            g(f"s_mov_b32 s{r+2}, {sizes[r]}\ns_mov_b32 s{r+3}, 0x20000")
        g(f"""
        v_and_b32 v2, 31, v1
        v_lshrrev_b32 v3, 5, v1
        v_mov_b32 v12, 0x3f80
        v_mov_b32 v13, 0
        v_mov_b32 v14, 0x3f80
        v_mov_b32 v15, 0
        v_lshrrev_b32 v9, 6, v0
        v_mul_u32_u24 v9, {SLOT}, v9
        v_mul_u32_u24 v11, 192, v1
        v_add_u32 v9, v9, v11
        ds_write_b128 v9, v[12:15] offset:{16384 + 160}
        v_add_u32 v11, {4*SLOT}, v11
        ds_write_b128 v11, v[12:15] offset:{16384 + 160}
        v_mov_b32 v16, 0
        v_mov_b32 v17, 0
        v_mov_b32 v18, 0
        v_mov_b32 v19, 0
        v_lshlrev_b32 v20, 4, v0
        v_add_u32 v20, {L_KVF}, v20
        ds_write_b128 v20, v[16:19]
        v_lshlrev_b32 v21, 3, v0
        v_add_u32 v21, {L_KVF + 4096}, v21
        ds_write_b64 v21, v[16:17]
        v_mov_b32 v84, 0x3f803f80
        v_mov_b32 v85, 0x3f803f80
        """)
        g(f"""
        v_lshrrev_b32 v9, 1, v2
        v_and_b32 v9, 7, v9
        v_xor_b32 v9, v9, v3
        v_lshlrev_b32 v9, 4, v9
        v_lshl_add_u32 v9, v2, 7, v9
        v_add_u32 v128, s{S_LX}, v9
        v_xor_b32 v129, 32, v128
        v_xor_b32 v130, 64, v128
        v_xor_b32 v131, 96, v128
        v_add_u32 v132, {3*SLOT}, v128
        v_add_u32 v133, {3*SLOT}, v129
        v_add_u32 v134, {3*SLOT}, v130
        v_add_u32 v135, {3*SLOT}, v131
        v_bfe_u32 v9, v1, 2, 2
        v_lshl_add_u32 v9, v3, 3, v9
        v_mul_u32_u24 v9, 192, v9
        v_bfe_u32 v11, v1, 4, 1
        v_and_b32 v12, 3, v1
        v_lshl_add_u32 v11, v11, 2, v12
        v_lshl_add_u32 v9, v11, 3, v9
        v_add_u32 v136, 16384, v9
        v_add_u32 v137, {16384 + 2*SLOT}, v9
        v_add_u32 v138, {16384 + 4*SLOT}, v9
        s_lshl_b32 s{S_T0}, s{S_WAVE}, 6
        v_add_u32 v72, s{S_T0}, v136
        v_add_u32 v73, s{S_T0}, v137
        v_add_u32 v74, s{S_T0}, v138
        """)

    def phase0(self):
        g = self
        P = 160
        self.stamp("pre_p0")
        g.vmwait("phi")
        self.stamp("p0data")
        X0, X1, W = P, P + 6, P + 12
        A = 180
        for i in range(7): g(f"v_mov_b32 v{A+i}, 0")
        for d in range(5):
            g(f"""
            v_dot2c_f32_bf16 v{A+0}, v{X0+d}, v84
            v_dot2c_f32_bf16 v{A+1}, v{X0+d}, v{X0+d}
            v_dot2c_f32_bf16 v{A+2}, v{X0+d}, v{W+d}
            v_dot2c_f32_bf16 v{A+3}, v{X1+d}, v84
            v_dot2c_f32_bf16 v{A+4}, v{X1+d}, v{X1+d}
            v_dot2c_f32_bf16 v{A+5}, v{X1+d}, v{W+d}
            v_dot2c_f32_bf16 v{A+6}, v{W+d}, v84
            """)
        g("s_nop 2")
        for ctl in ("row_shr:1 row_mask:0xf bank_mask:0xf bound_ctrl:0", "row_shr:2 row_mask:0xf bank_mask:0xf bound_ctrl:0",
                    "row_shr:4 row_mask:0xf bank_mask:0xf bound_ctrl:0", "row_shr:8 row_mask:0xf bank_mask:0xf bound_ctrl:0",
                    "row_bcast:15 row_mask:0xa bank_mask:0xf", "row_bcast:31 row_mask:0xc bank_mask:0xf"):
            for i in range(7):
                g(f"v_add_f32_dpp v{A+i}, v{A+i}, v{A+i} {ctl}")
        T = 190
        g(f"v_mov_b32 v{T+8}, 0x3acccccd")
        for r in range(2):
            sx, sq, sw = A + 3*r, A + 3*r + 1, A + 3*r + 2
            m, t1, t2 = T + 3*r, T + 3*r + 1, T + 3*r + 2
            g(f"""
            v_mul_f32 v{m}, v{sx}, v{T+8}
            v_mul_f32 v{t1}, v{sq}, v{T+8}
            v_fma_f32 v{t1}, -v{m}, v{m}, v{t1}
            v_max_f32 v{t1}, 0, v{t1}
            """)
            g.rnd_bf16(t1, t1)
            g(f"v_add_f32 v{t1}, 0x3727c5ac, v{t1}")
            g.rnd_bf16(t1, t1)
            g(f"v_sqrt_f32 v{t1}, v{t1}")
            g.rnd_bf16(t1, t1)
            g.rnd_bf16(m, m)
            g(f"""
            v_rcp_f32 v{t1}, v{t1}
            v_fma_f32 v{t2}, -v{m}, v{A+6}, v{sw}
            v_mul_f32 v{t2}, v{t2}, v{t1}
            """)
        g(f"""
        v_mov_b32 v{T+7}, s{S_P0ROW}
        v_add_u32 v{T+9}, 1, v{T+7}
        v_cmp_gt_f32 vcc, v{T+5}, v{T+2}
        v_cndmask_b32 v{T+6}, v{T+2}, v{T+5}, vcc
        v_cndmask_b32 v{T+7}, v{T+7}, v{T+9}, vcc
        s_lshl_b32 s{S_T0}, s{S_WAVE}, 3
        s_add_u32 s{S_T0}, s{S_T0}, {L_P0}
        v_mov_b32 v9, s{S_T0}
        s_mov_b32 exec_lo, 0
        s_brev_b32 exec_hi, 1
        ds_write_b64 v9, {v(T+6,2)}
        s_mov_b64 exec, -1
        """)

    def phi_frags(self):
        g = self
        g(f"""
        v_lshrrev_b32 v9, 3, v2
        v_and_b32 v11, 3, v2
        v_lshl_add_u32 v9, v9, 2, v11
        v_min_u32 v9, 9, v9
        v_bfe_u32 v11, v2, 2, 1
        v_mad_u32_u24 v9, v11, 10, v9
        v_lshlrev_b32 v9, 1, v9
        s_mul_i32 s{S_T0}, s{S_WAVE}, 1664
        s_add_u32 s{S_T0}, s{S_T0}, {L_WPHI}
        v_add_u32 v9, s{S_T0}, v9
        v_mul_u32_u24 v11, 160, v3
        v_add_u32 v11, v11, v9
        """)
        def rd(reg, base, ds):
            for i, d in enumerate(ds):
                g(f"ds_read_u16 v{T0 + i}, v{base} offset:{d}")
            g("s_waitcnt lgkmcnt(0)")
            for i in range(0, len(ds), 2):
                g(f"v_lshl_or_b32 v{reg + i//2}, v{T0+i+1}, 16, v{T0+i}")
        T0 = 200
        rd(140, 11, [40*i for i in range(4)] + [40*(8+i) for i in range(4)] + [40*(16+i) for i in range(4)])
        rd(146, 9, [800 + 40*i for i in range(4)])
        rd(148, 11, [800 + 40*(4+i) for i in range(4)] + [800 + 40*(12+i) for i in range(4)])
        g(f"""
        s_mov_b32 s{S_MA}, 0
        s_mov_b32 s{S_MA+1}, -1
        s_waitcnt lgkmcnt(0)
        v_cndmask_b32 v144, v144, 0, {s2(S_MA)}
        v_cndmask_b32 v145, v145, 0, {s2(S_MA)}
        v_cndmask_b32 v146, 0, v146, {s2(S_MA)}
        v_cndmask_b32 v147, 0, v147, {s2(S_MA)}
        """)

    def p1_reads(self, n):
        c, ks = divmod(n, 4); s = c % 5; b = n % 3
        base = 128 + ks if s < 3 else 132 + ks
        imm = s * SLOT if s < 3 else (s - 3) * SLOT
        out = [f"ds_read_b128 {ac(4*n,4)}, v{base} offset:{imm}"]
        wb = 136 + s // 2
        imm0 = (s % 2) * SLOT + 16 * ks * 192
        for t in range(3):
            for rd in range(2):
                out.append(f"ds_read_b64_tr_b16 {v(92 + 12*b + 4*t + 2*rd, 2)}, v{wb} offset:{imm0 + 4*rd*192 + 64*t}")
        for rd in range(2):
            out.append(f"ds_read_b64_tr_b16 {v(160 + 4*b + 2*rd, 2)}, v{72 + s // 2} offset:{imm0 + 4*rd*192}")
        return out

    def p1_refill(self, i):
        s = i % 5
        nt = self.nt
        grp = []
        grp.append([f"s_add_u32 m0, s{S_LX}, {s*SLOT}", "s_nop 0" if False else f"s_add_u32 s{S_T1}, s{S_LW}, {s*SLOT}",
                    f"buffer_load_dwordx4 v4, {srd(SRD_X)}, s{S_CX} offen{nt} lds"])
        grp.append([f"buffer_load_dwordx4 v5, {srd(SRD_X)}, s{S_CX} offen offset:1024{nt} lds"])
        grp.append([f"buffer_load_dwordx4 v157, {srd(SRD_X)}, s{S_CX} offen offset:2048{nt} lds"])
        grp.append([f"buffer_load_dwordx4 v158, {srd(SRD_X)}, s{S_CX} offen offset:3072{nt} lds",
                    f"s_add_u32 s{S_CX}, s{S_CX}, 128"])
        grp.append([f"s_mov_b32 m0, s{S_T1}", f"s_mov_b64 exec, {s2(S_WM)}",
                    f"buffer_load_dwordx4 v6, {srd(SRD_W)}, s{S_CW} offen{nt} lds", "s_mov_b64 exec, -1"])
        grp.append([f"s_mov_b64 exec, {s2(S_WM+2)}",
                    f"buffer_load_dwordx4 v7, {srd(SRD_W)}, s{S_CW} offen offset:1024{nt} lds", "s_mov_b64 exec, -1"])
        grp.append([f"s_mov_b64 exec, {s2(S_WM+4)}",
                    f"buffer_load_dwordx4 v8, {srd(SRD_W)}, s{S_CW} offen offset:2048{nt} lds", "s_mov_b64 exec, -1",
                    f"s_add_u32 s{S_CW}, s{S_CW}, {64*3840}", f"s_cmp_eq_u32 s{S_CX}, s{S_CC}",
                    f"s_cselect_b32 s{S_CX}, s{S_XB}, s{S_CX}", f"s_cselect_b32 s{S_CW}, s{S_WB}, s{S_CW}"])
        return grp

    def wq_groups(self):
        grp = []
        for m in range(13):
            q, pt = divmod(m, 5)
            gl = [f"s_add_u32 m0, s{S_WQL}, {m*1024}", f"s_add_u32 s{S_T2}, s{S_WQG}, {q*64*3840}"]
            if m == 12:
                gl += ["s_mov_b32 exec_hi, 0", f"buffer_load_dwordx4 v{152+pt}, {srd(SRD_W)}, s{S_T2} offen lds", "s_mov_b64 exec, -1"]
            else:
                gl += [f"buffer_load_dwordx4 v{152+pt}, {srd(SRD_W)}, s{S_T2} offen lds"]
            grp.append(gl)
        return grp

    def wq_setup(self):
        g = self
        for pt in range(5):
            g(f"""
            v_add_u32 v9, {64*pt}, v1
            v_mul_u32_u24 v11, 52429, v9
            v_lshrrev_b32 v11, 18, v11
            v_mul_u32_u24 v12, 5, v11
            v_sub_u32 v12, v9, v12
            v_mul_u32_u24 v11, 3840, v11
            v_lshl_add_u32 v{152+pt}, v12, 4, v11
            """)
        g(f"""
        s_mul_i32 s{S_WQL}, s{S_WAVE}, 12800
        s_add_u32 s{S_WQL}, s{S_WQL}, {L_WQ}
        s_mul_i32 s{S_WQG}, s{S_WAVE}, {160*3840}
        s_mul_i32 s{S_T0}, s{S_HP}, 80
        s_add_u32 s{S_WQG}, s{S_WQG}, s{S_T0}
        """)

    def pass1(self):
        g = self
        self.dbg_span(2, True); self.dbg_span(7, False)
        g.vmwait("c0")
        g("s_waitcnt lgkmcnt(0)\ns_barrier")
        self.stamp("c0")
        for x in self.p1_reads(0): g(x)
        g("s_waitcnt lgkmcnt(6)")
        for x in self.p1_reads(1): g(x)
        g(f"""
        s_cmp_lg_u32 s{S_WAVE}, 0
        s_cbranch_scc1 L_nopub
        v_mov_b32 v9, {L_P0}           ; HZ_SKIP_BEGIN
        ds_read_b128 v[172:175], v9
        ds_read_b128 v[176:179], v9 offset:16
        s_lshl_b32 s{S_T0}, s2, 3
        s_add_u32 s{S_T0}, s{S_T0}, {WS_RMAX}
        v_mov_b32 v11, s{S_T0}
        s_waitcnt lgkmcnt(0)
        v_cmp_gt_f32 vcc, v174, v172
        v_cndmask_b32 v172, v172, v174, vcc
        v_cndmask_b32 v173, v173, v175, vcc
        v_cmp_gt_f32 vcc, v176, v172
        v_cndmask_b32 v172, v172, v176, vcc
        v_cndmask_b32 v173, v173, v177, vcc
        v_cmp_gt_f32 vcc, v178, v172
        v_cndmask_b32 v172, v172, v178, vcc
        v_cndmask_b32 v173, v173, v179, vcc
        s_mov_b64 exec, 1
        buffer_store_dwordx2 v[172:173], v11, {srd(SRD_WS)}, 0 offen sc1
        s_mov_b64 exec, -1             ; HZ_SKIP_END
L_nopub:
        """)
        pend = []
        for n in range(40):
            c, ks = divmod(n, 4); b = n % 3
            if ks == 0:
                if c <= 6:
                    pend += self.p1_refill(c + 3); self.vmq = getattr(self, "vmq", []) + [f"c{c+3}"] * 7
            if ks == 2 and c < 9:
                g(f"s_waitcnt lgkmcnt(6)")
                g.vmwait(f"c{c+1}")
                g("s_barrier")
                self.stamp(f"B{c}")
                if c == 1:
                    g(f"""
                    s_cmp_lg_u32 s2, 0
                    s_cbranch_scc1 L_noready
                    s_cmp_lg_u32 s{S_WAVE}, 1
                    s_cbranch_scc1 L_noready
                    v_mov_b32 v11, 240             ; HZ_SKIP_BEGIN
                    v_mov_b32 v12, 1
                    s_mov_b64 exec, 1
                    buffer_store_dword v12, v11, {srd(SRD_DBG)}, 0 offen sc1
                    s_mov_b64 exec, -1             ; HZ_SKIP_END
L_noready:
                    """)
                if c == 2:
                    g(f"""
                    s_cmp_lg_u32 s{S_WAVE}, 0
                    s_cbranch_scc1 L_noatom
                    s_and_b32 s{S_T0}, s2, 3       ; HZ_SKIP_BEGIN
                    s_lshl_b32 s{S_T0}, s{S_T0}, 6
                    v_mov_b32 v11, s{S_T0}
                    v_mov_b32 v12, 1
                    s_mov_b64 exec, 1
                    buffer_atomic_add v12, v11, {srd(SRD_DBG)}, 0 offen sc1
                    s_mov_b64 exec, -1             ; HZ_SKIP_END
L_noatom:
                    """)
                if c == 7:
                    pend += self.wq_groups(); self.vmq += ["wq"] * 13
            elif n == 39: g("s_waitcnt lgkmcnt(0)")
            else: g("s_waitcnt lgkmcnt(6)")
            rd = self.p1_reads(n + 2) if n + 2 < 40 else []
            if "nords" in self.exp: rd = []
            XP = ac(4*n, 4)
            WF = lambda t: 92 + 12*b + 4*t
            first = (n == 0)
            def dma():
                if pend:
                    grp = pend.pop(0); tag = self.vmq.pop(0)
                    if "nodma" not in self.exp:
                        for x in grp: g(x)
                    g.vmi(tag)
            cin = lambda r, k: "0" if first else v(r, k)
            g(f"v_mfma_f32_32x32x16_bf16 v[16:31], {v(WF(0),4)}, {XP}, {cin(16,16)}")
            for x in rd[0:3]: g(x)
            dma()
            g(f"v_mfma_f32_32x32x16_bf16 v[32:47], {v(WF(1),4)}, {XP}, {cin(32,16)}")
            for x in rd[3:6]: g(x)
            g(f"v_mfma_f32_32x32x16_bf16 v[48:63], {v(WF(2),4)}, {XP}, {cin(48,16)}")
            for x in rd[6:9]: g(x)
            dma()
            if "nosq" not in self.exp:
                g(f"v_mfma_f32_4x4x4_16b_bf16 v[64:67], {ac(4*n,2)}, {ac(4*n,2)}, {cin(64,4)}")
                g(f"v_mfma_f32_4x4x4_16b_bf16 v[68:71], {ac(4*n+2,2)}, {ac(4*n+2,2)}, {cin(68,4)}")
            if "nocs" not in self.exp:
                g(f"v_mfma_f32_4x4x4_16b_bf16 v[76:79], {v(160+4*b,2)}, v[84:85], {cin(76,4)}")
                g(f"v_mfma_f32_4x4x4_16b_bf16 v[80:83], {v(160+4*b+2,2)}, v[84:85], {cin(80,4)}")
            if n >= 32: dma()
            if n == 5: self.wq_setup()
        while pend:
            grp = pend.pop(0); tag = self.vmq.pop(0)
            for x in grp: g(x)
            g.vmi(tag)
        self.stamp("p1end")

    def phi_frags_deferred(self):
        pass

    def stats_and_colsum(self, first):
        g = self
        csoff = 0 if first else 128 * 4
        for i in range(4): g(f"v_add_f32 v{76+i}, v{76+i}, v{80+i}")
        for i in range(4): g(f"v_mov_b32 v{80+i}, v{76+i}")
        for i in range(4): g(f"v_permlane32_swap_b32 v{76+i}, v{80+i}")
        for i in range(4): g(f"v_add_f32 v{76+i}, v{76+i}, v{80+i}")
        g(f"""
        s_lshl_b32 s{S_T0}, s{S_WAVE}, 7
        s_add_u32 s{S_T0}, s{S_T0}, {L_CS + csoff}
        v_lshl_add_u32 v9, v1, 2, s{S_T0}
        s_mov_b32 exec_lo, 0x11111111
        s_mov_b32 exec_hi, 0
        ds_write_b128 v9, v[76:79]
        s_mov_b64 exec, -1
        """)
        if first:
            for i in range(4): g(f"v_add_f32 v{64+i}, v{64+i}, v{68+i}")
            for i in range(1, 4):
                m = 0x11111111 << i
                g(f"s_mov_b32 s{S_MB}, {hex(m)}\ns_mov_b32 s{S_MB+1}, {hex(m)}\nv_cndmask_b32 v64, v64, v{64+i}, {s2(S_MB)}")
            g(f"""
            v_mov_b32 v65, v64
            v_mov_b32 v90, 0x3acccccd
            s_nop 0
            v_permlane32_swap_b32 v64, v65
            v_add_f32 v64, v64, v65
            v_mul_f32 v66, v56, v90
            v_mul_f32 v64, v64, v90
            v_fma_f32 v64, -v66, v66, v64
            v_max_f32 v64, 0, v64
            """)
            g.rnd_bf16(64, 64)
            g("v_add_f32 v64, 0x3727c5ac, v64")
            g.rnd_bf16(64, 64)
            g("v_sqrt_f32 v64, v64")
            g.rnd_bf16(90, 64)
            g.rnd_bf16(91, 66)
            g("v_rcp_f32 v88, v90\nv_sub_f32 v86, 0, v91")
        g("s_waitcnt lgkmcnt(0)\ns_barrier")
        self.stamp("csbar" if first else "csbar2")

    def normalise(self, quads, csoff):
        g = self
        g(f"v_lshlrev_b32 v9, 4, v3\nv_add_u32 v9, {L_CS + csoff}, v9")
        for i, (r, col) in enumerate(quads):
            g(f"ds_read_b128 {v(160+4*i,4)}, v9 offset:{col*4}")
        for i, (r, col) in enumerate(quads):
            g(f"s_waitcnt lgkmcnt({len(quads)-1-i})")
            for hh in range(2):
                g(f"v_pk_fma_f32 {v(r+2*hh,2)}, {v(160+4*i+2*hh,2)}, v[86:87], {v(r+2*hh,2)} op_sel_hi:[1,0,1]")
            for hh in range(2):
                g(f"v_pk_mul_f32 {v(r+2*hh,2)}, {v(r+2*hh,2)}, v[88:89] op_sel_hi:[1,0]")

    def featmap(self, PK, H0, H1):
        g = self
        P = (92, 108)
        g(f"v_mfma_f32_32x32x16_bf16 v[92:107], v[140:143], {v(PK,4)}, 0")
        g(f"v_mfma_f32_32x32x16_bf16 v[108:123], v[146:149], {v(PK+4,4)}, 0")
        g(f"v_mfma_f32_32x32x8_bf16 v[92:107], v[144:145], {v(PK+4,2)}, v[92:107]")
        g(f"v_mfma_f32_32x32x8_bf16 v[108:123], v[150:151], {v(PK+8,2)}, v[108:123]")
        L = 0x3fb8aa3b
        g(f"v_mov_b32 v124, {hex(L)}\nv_mov_b32 v126, {hex(L | 0x80000000)}")
        for H in (H0, H1): g(f"v_mov_b32 v{H+10}, 0\nv_mov_b32 v{H+11}, 0")
        E = (160, 180)
        MX = (200, 204)
        for a in range(2):
            p, mx = P[a], MX[a]
            g(f"""
            v_max3_f32 v{mx}, v{p}, v{p+1}, v{p+2}
            v_min3_f32 v{mx+1}, v{p}, v{p+1}, v{p+2}
            v_max3_f32 v{mx}, v{mx}, v{p+3}, v{p+4}
            v_min3_f32 v{mx+1}, v{mx+1}, v{p+3}, v{p+4}
            v_max3_f32 v{mx}, v{mx}, v{p+5}, v{p+6}
            v_min3_f32 v{mx+1}, v{mx+1}, v{p+5}, v{p+6}
            v_max3_f32 v{mx}, v{mx}, v{p+7}, v{p+8}
            v_min3_f32 v{mx+1}, v{mx+1}, v{p+7}, v{p+8}
            v_max_f32 v{mx}, v{mx}, v{p+9}
            v_min_f32 v{mx+1}, v{mx+1}, v{p+9}
            v_sub_f32 v{mx+1}, 0, v{mx+1}
            """)
        for a in range(2): g(f"v_permlane32_swap_b32 v{MX[a]}, v{MX[a]+1}")
        for a in range(2): g(f"v_max_f32 v{MX[a]}, v{MX[a]}, v{MX[a]+1}")
        for a in range(2): g(f"v_mov_b32 v{MX[a]+1}, v{MX[a]}")
        for a in range(2): g(f"v_permlane32_swap_b32 v{MX[a]}, v{MX[a]+1}")
        for a in range(2):
            mx = MX[a]
            g(f"v_mul_f32 v{mx+2}, v{mx+1}, v126\nv_mul_f32 v{mx}, v{mx}, v126")
        for a in range(2):
            p, mx, e = P[a], MX[a], E[a]
            for i in range(5):
                g(f"v_pk_fma_f32 {v(e+2*i,2)}, {v(p+2*i,2)}, v[124:125], {v(mx,2)} op_sel_hi:[1,0,0]")
                g(f"v_pk_fma_f32 {v(e+10+2*i,2)}, {v(p+2*i,2)}, v[126:127], {v(mx+2,2)} op_sel_hi:[1,0,0]")
        for a in range(2):
            for i in range(20): g(f"v_exp_f32 v{E[a]+i}, v{E[a]+i}")
        SM = (208, 214)
        for a in range(2):
            e, sm = E[a], SM[a]
            g(f"v_pk_add_f32 {v(sm,2)}, {v(e,2)}, {v(e+2,2)}\nv_pk_add_f32 {v(sm+2,2)}, {v(e+10,2)}, {v(e+12,2)}")
        for i in range(2, 5):
            for a in range(2):
                e, sm = E[a], SM[a]
                g(f"v_pk_add_f32 {v(sm,2)}, {v(sm,2)}, {v(e+2*i,2)}\nv_pk_add_f32 {v(sm+2,2)}, {v(sm+2,2)}, {v(e+10+2*i,2)}")
        for a in range(2):
            sm = SM[a]
            g(f"v_add_f32 v{sm}, v{sm}, v{sm+1}\nv_add_f32 v{sm+1}, v{sm+2}, v{sm+3}")
        for a in range(2): g(f"v_permlane32_swap_b32 v{SM[a]}, v{SM[a]+1}")
        for a in range(2): g(f"v_add_f32 v{SM[a]}, v{SM[a]}, v{SM[a]+1}")
        for a in range(2): g(f"v_mov_b32 v{SM[a]+2}, v{SM[a]}")
        for a in range(2): g(f"v_permlane32_swap_b32 v{SM[a]}, v{SM[a]+2}")
        for a in range(2): g(f"v_rcp_f32 v{SM[a]}, v{SM[a]}\nv_rcp_f32 v{SM[a]+2}, v{SM[a]+2}")
        for a, H in ((0, H0), (1, H1)):
            e, sm = E[a], SM[a]
            for i in range(5):
                g(f"v_pk_mul_f32 {v(e+2*i,2)}, {v(e+2*i,2)}, {v(sm,2)} op_sel_hi:[1,0]")
                g(f"v_pk_mul_f32 {v(e+10+2*i,2)}, {v(e+10+2*i,2)}, {v(sm+2,2)} op_sel_hi:[1,0]")
            for i in range(10):
                g(f"v_cvt_pk_bf16_f32 v{H+i}, v{e+2*i}, v{e+2*i+1}")

    def k_epilogue(self):
        g = self
        self.stats_and_colsum(True)
        quads = [(16+4*j, 8*j) for j in range(4)] + [(32+4*j, 32+8*j) for j in range(4)] + [(48+4*j, 64+8*j) for j in range(2)]
        self.normalise(quads, 0)
        self.dump("kv_norm", list(range(16, 64)) + [86, 88, 90, 91])
        PK, PV = 200, 210
        g(f"""
        s_lshl_b32 s{S_T0}, s{S_WAVE}, 5
        v_add_u32 v9, s{S_T0}, v2
        v_mul_u32_u24 v9, 336, v9
        v_add_u32 v9, {L_T}, v9
        v_lshl_add_u32 v11, v3, 3, v9
        v_mad_u32_u24 v12, v3, 24, v9
        v_lshl_add_u32 v13, v3, 4, v9
        v_mov_b32 v14, 0x3f80
        v_mov_b32 v15, 0
        ds_write_b64 v12, v[14:15] offset:{34*8}
        """)
        src = [36, 40, 44, 48, 52]
        for i, r in enumerate(src):
            g(f"v_cvt_pk_bf16_f32 v{PV+2*i}, v{r}, v{r+1}\nv_cvt_pk_bf16_f32 v{PV+2*i+1}, v{r+2}, v{r+3}")
            g(f"ds_write_b64 v11, {v(PV+2*i,2)} offset:{192 + 16*i}")
        PK = 244
        for i in range(10):
            r = 16 + 2*i
            g(f"v_cvt_pk_bf16_f32 v{PK+i}, v{r}, v{r+1}")
        self.stamp("prefm")
        self.featmap(PK, 220, 232)
        self.stamp("postfm")
        self.dump("phik", list(range(220, 244)))
        for a, H in ((0, 220), (1, 232)):
            for st in range(3):
                g(f"ds_write_b128 v13, {v(H+4*st,4)} offset:{a*96 + st*32}")
        g("s_waitcnt lgkmcnt(0)\ns_barrier")
        self.stamp("Tbar")
        g(f"""
        s_lshr_b32 s{S_T0}, s{S_WAVE}, 1
        s_and_b32 s{S_T1}, s{S_WAVE}, 1
        v_bfe_u32 v9, v1, 2, 2
        v_lshl_add_u32 v9, v3, 3, v9
        v_mul_u32_u24 v9, 336, v9
        v_add_u32 v9, {L_T}, v9
        v_bfe_u32 v11, v1, 4, 1
        v_and_b32 v12, 3, v1
        v_lshl_add_u32 v11, v11, 2, v12
        s_mul_i32 s{S_T2}, s{S_T0}, 12
        s_lshl_b32 s{S_T3}, s{S_T1}, 3
        s_add_u32 s{S_T2}, s{S_T2}, s{S_T3}
        v_add_u32 v12, s{S_T2}, v11
        v_lshl_add_u32 v160, v12, 3, v9
        s_mul_i32 s{S_T2}, s{S_T0}, 5
        s_add_u32 s{S_T2}, s{S_T2}, 24
        v_add_u32 v12, s{S_T2}, v11
        s_mul_i32 s{S_T3}, s{S_T0}, -3
        s_add_i32 s{S_T3}, s{S_T3}, 37
        v_mov_b32 v13, s{S_T3}
        v_cmp_eq_u32 vcc, 5, v11
        v_cndmask_b32 v12, v12, v13, vcc
        s_add_i32 s{S_T3}, s{S_T3}, -13
        v_add_u32 v13, s{S_T3}, v11
        v_cmp_lt_u32 vcc, 5, v11
        v_cndmask_b32 v12, v12, v13, vcc
        v_lshl_add_u32 v161, v12, 3, v9
        """)
        A0, B0 = 164, 196
        for ks in range(8):
            for rd in range(2):
                g(f"ds_read_b64_tr_b16 {v(A0+4*ks+2*rd,2)}, v160 offset:{(16*ks+4*rd)*336}")
                g(f"ds_read_b64_tr_b16 {v(B0+4*ks+2*rd,2)}, v161 offset:{(16*ks+4*rd)*336}")
            if ks >= 2:
                k = ks - 2
                g("s_waitcnt lgkmcnt(8)")
                cin = "0" if k == 0 else "v[92:107]"
                g(f"v_mfma_f32_32x32x16_bf16 v[92:107], {v(A0+4*k,4)}, {v(B0+4*k,4)}, {cin}")
        g("s_waitcnt lgkmcnt(4)")
        g(f"v_mfma_f32_32x32x16_bf16 v[92:107], {v(A0+24,4)}, {v(B0+24,4)}, v[92:107]")
        g("s_waitcnt lgkmcnt(0)")
        g(f"v_mfma_f32_32x32x16_bf16 v[92:107], {v(A0+28,4)}, {v(B0+28,4)}, v[92:107]")
        g(f"""
        s_lshl_b32 s{S_T2}, s{S_HP}, 4
        s_add_u32 s{S_T2}, s{S_T2}, s{S_RB}
        s_mul_i32 s{S_T2}, s{S_T2}, {KVP_SZ}
        s_add_u32 s{S_T2}, s{S_T2}, {WS_KVP}
        s_mul_i32 s{S_T3}, s{S_T0}, 3360
        s_add_u32 s{S_T2}, s{S_T2}, s{S_T3}
        v_mul_u32_u24 v9, 336, v3
        v_lshl_add_u32 v9, v2, 4, v9
        v_cmp_gt_u32 vcc, 21, v2
        s_mov_b64 {s2(S_MA)}, vcc
        s_cmp_lg_u32 s{S_T1}, 0
        s_cbranch_scc1 L_kvft1
        s_mov_b64 exec, {s2(S_MA)}     ; HZ_SKIP_BEGIN
        buffer_store_dwordx4 v[92:95], v9, {srd(SRD_WS)}, s{S_T2} offen sc1
        buffer_store_dwordx4 v[96:99], v9, {srd(SRD_WS)}, s{S_T2} offen offset:672 sc1
        buffer_store_dwordx4 v[100:103], v9, {srd(SRD_WS)}, s{S_T2} offen offset:1344 sc1
        buffer_store_dwordx4 v[104:107], v9, {srd(SRD_WS)}, s{S_T2} offen offset:2016 sc1
        s_branch L_kvdone              ; HZ_SKIP_END
L_kvft1:
        s_and_b32 s{S_MA}, s{S_MA}, 0x1fffff      ; HZ_SKIP_BEGIN
        s_mov_b32 s{S_MA+1}, 0
        s_mov_b64 exec, {s2(S_MA)}
        buffer_store_dwordx4 v[92:95], v9, {srd(SRD_WS)}, s{S_T2} offen offset:2688 sc1
        buffer_store_dwordx4 v[96:99], v9, {srd(SRD_WS)}, s{S_T2} offen offset:3024 sc1   ; HZ_SKIP_END
L_kvdone:
        s_mov_b64 exec, -1
        """)
        self.stamp("kvstore"); self.stamp("clk1", True)

    def dbg_span(self, word, invert):
        if "span" not in self.exp: return
        g = self
        lab = f"L_span{word}"
        g(f"""
        s_and_b32 s74, s2, 15
        s_cmp_lg_u32 s74, 0
        s_cbranch_scc1 {lab}
        s_cmp_lg_u32 s{S_WAVE}, 0
        s_cbranch_scc1 {lab}
        s_memrealtime s[74:75]
        s_waitcnt lgkmcnt(0)
        {"s_not_b32 s74, s98" if invert else "s_nop 0"}
        v_mov_b32 v9, {word*4}
        v_mov_b32 v10, s74
        s_mov_b64 exec, 1
        buffer_atomic_umax v10, v9, {srd(SRD_DBG)}, 0 offen sc1
        s_mov_b64 exec, -1
{lab}:
        """)

    def finish(self):
        g = self
        self.dbg_span(3, False)
        if self.stamps:
            g("s_waitcnt lgkmcnt(0)")
            g(f"""
            s_cmp_lg_u32 s{S_WAVE}, 0
            s_cbranch_scc1 L_nots
            s_mul_i32 s{S_T0}, s2, 64
            s_add_u32 s{S_T0}, s{S_T0}, {WS_TS}
            s_mov_b64 exec, 1
            v_mov_b32 v9, 0
            """)
            for i in range(self.nstamp):
                g(f"v_mov_b32 v11, s{S_TS+2*i}\nbuffer_store_dword v11, v9, {srd(SRD_WS)}, s{S_T0} offen offset:{4*i}")
            g("L_nots:")
        g("L_exit:\ns_endpgm\nL_code_end:")

    def build(self):
        g = self
        self.prologue()
        self.dump("phifrag", list(range(140, 152)))
        self.pass1()
        self.dump("acc1", list(range(16, 84)))
        if self.stop != "pass1":
            self.k_epilogue()
        if self.stop not in ("pass1", "kv"):
            self.rest()
        self.finish()

    def text(self):
        body, nins = hazard.fix([l.strip() for l in self.a.lines])
        hdr = open("parallel_sum__linear_kernel_hedgehog__moe_arch_mod__prompt.s.ref").read().split("\n")
        top = [l for l in hdr if l.startswith(";") and "@launch" not in l and "Override" not in l and "grid=ceil" not in l]
        out = "\n".join(top) + "\n"
        out += f"; @launch grid=(256,1,1) block=(256,1,1) lds={LDS_SIZE}\n"
        out += '.amdgcn_target "amdgcn-amd-amdhsa--gfx950"\n.text\n' + kernel_header(NAME)
        out += "\n".join("    " + l if not l.endswith(":") else l for l in body if l) + "\n"
        out += f""".section .rodata,"a"
.p2align 6
.amdhsa_kernel {NAME}
  .amdhsa_next_free_vgpr 512
  .amdhsa_next_free_sgpr 102
  .amdhsa_accum_offset 256
  .amdhsa_group_segment_fixed_size 0
  .amdhsa_kernarg_size 96
  .amdhsa_user_sgpr_count 2
  .amdhsa_user_sgpr_kernarg_segment_ptr 1
  .amdhsa_system_sgpr_workgroup_id_x 1
  .amdhsa_float_denorm_mode_32 3
.end_amdhsa_kernel
"""
        return out, nins


if __name__ == "__main__":
    import argparse, json
    import gen_rest
    ap = argparse.ArgumentParser()
    ap.add_argument("-o", default="k.s")
    ap.add_argument("--stop", default=None)
    ap.add_argument("--dump", default="")
    ap.add_argument("--stamps", default="")
    ap.add_argument("--notouch", action="store_true")
    ap.add_argument("--exp", default="")
    args = ap.parse_args()
    G = gen_rest.Full(stop=args.stop, dumps=[d for d in args.dump.split(",") if d], stamps=set(args.stamps.split(",")) if args.stamps else False, touch=not args.notouch, exp=[e for e in args.exp.split(",") if e])
    G.build()
    t, nins = G.text()
    open(args.o, "w").write(t)
    json.dump({"dumps": G.dump_index, "stamps": getattr(G, "stamp_names", [])}, open(args.o + ".json", "w"))
    print("wrote", args.o, "lines", t.count("\n"), "nops inserted", nins)
```

```python
from gen import *

S_RB64, S_CB, S_MU, S_RSEL, S_ROW0 = 20, 21, 22, 23, 12
S_QC = 13
S_WOG, S_WOL = 14, 15
CNT_KV, CNT_O, CNT_M = 0, 16, 32
SPIN_LIMIT = 200000

class Full(Gen):
    def poll(self, name, srd_n, vaddr_setup, target, nl=1):
        g = self
        lab = f"L_poll_{name}"
        g(vaddr_setup)
        g(f"s_mov_b32 exec_lo, {(1 << nl) - 1}\ns_mov_b32 exec_hi, 0")
        g(f"""
        s_mov_b32 s74, 0
{lab}:
        buffer_load_dword v10, v9, {srd(srd_n)}, 0 offen sc1
        s_add_u32 s74, s74, 1
        s_cmp_gt_u32 s74, {SPIN_LIMIT}
        s_cbranch_scc1 {lab}_out
        s_waitcnt vmcnt(0)
        v_cmp_ne_u32 vcc, {target}, v10
        s_cbranch_vccnz {lab}
{lab}_out:
        s_waitcnt vmcnt(0)
        s_mov_b64 exec, -1
        """)

    def signal(self, name, cnt_sgpr_expr, drain=True):
        g = self
        if drain: g("s_waitcnt vmcnt(0)")
        g(f"""
        s_barrier
        s_cmp_lg_u32 s{S_WAVE}, 0
        s_cbranch_scc1 L_nosig_{name}
        """)
        g(cnt_sgpr_expr + " ; HZ_SKIP_BEGIN")
        g(f"""
        s_lshl_b32 s{S_T0}, s{S_T0}, 7
        v_mov_b32 v9, s{S_T0}
        v_mov_b32 v10, 1
        s_mov_b64 exec, 1
        buffer_atomic_add v10, v9, {srd(SRD_WS)}, 0 offen sc1
        s_mov_b64 exec, -1         ; HZ_SKIP_END
L_nosig_{name}:
        """)

    def publish_kv(self):
        g = self
        g(f"""
        s_cmp_lg_u32 s{S_HP}, 0
        s_cbranch_scc1 L_nostats
        s_lshl_b32 s{S_T0}, s{S_RB}, 7       ; HZ_SKIP_BEGIN
        s_lshl_b32 s{S_T1}, s{S_WAVE}, 5
        s_add_u32 s{S_T0}, s{S_T0}, s{S_T1}
        s_lshl_b32 s{S_T0}, s{S_T0}, 3
        s_add_u32 s{S_T0}, s{S_T0}, {WS_STATS}
        v_lshlrev_b32 v9, 3, v2
        v_mov_b32 v10, v91
        v_mov_b32 v11, v90
        s_mov_b32 exec_hi, 0
        buffer_store_dwordx2 v[10:11], v9, {srd(SRD_WS)}, s{S_T0} offen sc1
        s_mov_b64 exec, -1                   ; HZ_SKIP_END
L_nostats:
        """)
        g(f"""
        s_cmp_lg_u32 s{S_WAVE}, 3
        s_cbranch_scc1 L_notouch
        v_mul_u32_u24 v9, 6554, v1                 ; HZ_SKIP_BEGIN
        v_lshrrev_b32 v9, 16, v9
        v_mul_u32_u24 v10, 10, v9
        v_sub_u32 v10, v1, v10
        v_mul_u32_u24 v11, 1280, v9
        v_lshl_add_u32 v11, v10, 7, v11
        s_mul_i32 s{S_T0}, s{S_SLOT}, {20*1280}
        s_mov_b32 exec_hi, 0x0fffffff
        buffer_load_dword v159, v11, {srd(SRD_WO)}, s{S_T0} offen
        s_add_u32 s{S_T0}, s{S_T0}, {6*1280}
        buffer_load_dword v159, v11, {srd(SRD_WO)}, s{S_T0} offen
        s_add_u32 s{S_T0}, s{S_T0}, {6*1280}
        buffer_load_dword v159, v11, {srd(SRD_WO)}, s{S_T0} offen
        s_add_u32 s{S_T0}, s{S_T0}, {6*1280}
        s_mov_b32 exec_lo, 0xfffff
        s_mov_b32 exec_hi, 0
        buffer_load_dword v159, v11, {srd(SRD_WO)}, s{S_T0} offen
        s_mov_b64 exec, -1
        s_mul_i32 s{S_T0}, s{S_XCD}, {224*1280}
        s_mul_i32 s{S_T1}, s{S_SLOT}, {7*1280}
        s_add_u32 s{S_T0}, s{S_T0}, s{S_T1}
        s_mov_b32 exec_hi, 0x0fffffff
        buffer_load_dword v159, v11, {srd(SRD_D)}, s{S_T0} offen
        s_add_u32 s{S_T0}, s{S_T0}, {6*1280}
        s_mov_b32 exec_lo, 0x3ff
        s_mov_b32 exec_hi, 0
        buffer_load_dword v159, v11, {srd(SRD_D)}, s{S_T0} offen
        s_mov_b64 exec, -1
        v_mul_u32_u24 v9, 13108, v1
        v_lshrrev_b32 v9, 16, v9
        v_mul_u32_u24 v10, 5, v9
        v_sub_u32 v10, v1, v10
        v_mul_u32_u24 v11, 3456, v9
        v_lshl_add_u32 v11, v10, 7, v11
        s_mul_i32 s{S_T0}, s{S_XCD}, 448
        s_and_b32 s{S_T0}, s{S_T0}, 0xffffff80
        s_mul_i32 s{S_T1}, s{S_SLOT}, {20*3456}
        s_add_u32 s{S_T0}, s{S_T0}, s{S_T1}
        s_add_u32 s{S_T1}, s{S_T0}, {12*3456}
        s_mov_b32 exec_hi, 0x0fffffff
        buffer_load_dword v159, v11, {srd(SRD_G)}, s{S_T0} offen
        buffer_load_dword v159, v11, {srd(SRD_U)}, s{S_T0} offen
        s_mov_b32 exec_lo, -1
        s_mov_b32 exec_hi, 0xff
        buffer_load_dword v159, v11, {srd(SRD_G)}, s{S_T1} offen
        buffer_load_dword v159, v11, {srd(SRD_U)}, s{S_T1} offen
        s_mov_b64 exec, -1
        s_waitcnt vmcnt(10)
        s_branch L_drained                         ; HZ_SKIP_END
L_notouch:
        s_waitcnt vmcnt(0)
L_drained:
        """)
        g(f"""
        v_readfirstlane_b32 s{S_T0}, v75
        s_cmp_eq_u32 s{S_T0}, 1
        s_cbranch_scc1 L_isready
        """)
        self.poll("ready", SRD_DBG, "v_mov_b32 v9, 240 ; HZ_SKIP_BEGIN", 1)
        g("s_nop 0 ; HZ_SKIP_END\nL_isready:")
        self.signal("kv", f"s_add_u32 s{S_T0}, s{S_HP}, {CNT_KV}", drain=False)
        self.stamp("kvsig")

    def moe_roles(self):
        g = self
        g(f"""
        s_lshr_b32 s{S_T0}, s{S_XCD}, 1
        s_lshr_b32 s{S_T1}, s{S_SLOT}, 3
        s_add_u32 s{S_T0}, s{S_T0}, s{S_T1}
        s_lshr_b32 s{S_T1}, s{S_SLOT}, 4
        s_lshl_b32 s{S_T1}, s{S_T1}, 3
        s_and_b32 s{S_T2}, s{S_SLOT}, 7
        s_add_u32 s{S_T1}, s{S_T1}, s{S_T2}
        s_mul_i32 s{S_MU}, s{S_XCD}, 14
        s_add_u32 s{S_MU}, s{S_MU}, s{S_T1}
        s_cmp_lt_u32 s{S_T1}, 14
        s_cselect_b32 s{S_MU}, s{S_MU}, 255
        s_bitcmp1_b32 s{S_T0}, 0
        s_cselect_b32 s{S_MU}, 255, s{S_MU}
        s_lshr_b32 s{S_T0}, s{S_SLOT}, 3
        s_lshl_b32 s{S_T1}, s{S_XCD}, 2
        s_add_u32 s{S_RB64}, s{S_T0}, s{S_T1}
        s_and_b32 s{S_CB}, s{S_SLOT}, 7
        s_lshl_b32 s{S_ROW0}, s{S_RB64}, 6
        s_lshl_b32 s{S_T0}, s{S_WAVE}, 4
        s_add_u32 s{S_ROW0}, s{S_ROW0}, s{S_T0}
        """)

    WD = 160
    def moe_load_block(self, k):
        g = self
        lab = f"L_nomoeld{k}"
        g(f"s_cmp_ge_u32 s{S_MU}, 108\ns_cbranch_scc1 {lab}")
        if k == 0:
            g(f"""
            v_lshrrev_b32 v134, 1, v1                ; HZ_SKIP_BEGIN
            v_mul_u32_u24 v134, 3456, v134
            v_and_b32 v10, 1, v1
            v_lshl_add_u32 v134, v10, 4, v134
            v_lshlrev_b32 v135, 3, v0
            """)
        else:
            g("s_nop 0 ; HZ_SKIP_BEGIN")
        g(f"""
        s_lshl_b32 s{S_T0}, s{S_MU}, 5
        s_mul_i32 s{S_T1}, s{S_WAVE}, {5*32*3456}
        s_add_u32 s{S_T0}, s{S_T0}, s{S_T1}
        s_add_u32 s{S_T2}, s{S_T0}, {k*32*3456}
        s_mul_i32 s{S_T1}, s{S_WAVE}, 5120
        s_add_u32 m0, s{S_T1}, {L_G + k*1024}
        s_mul_i32 s{S_T0}, s{S_MU}, {16*1280}
        buffer_load_dwordx4 v134, {srd(SRD_G)}, s{S_T2} offen lds
        s_add_u32 m0, s{S_T1}, {L_U + k*1024}
        v_cmp_gt_u32 vcc, 160, v0
        buffer_load_dwordx4 v134, {srd(SRD_U)}, s{S_T2} offen lds
        s_and_saveexec_b64 {s2(S_MA)}, vcc
        s_cbranch_execz {lab}_x
        """)
        us = list(range(16))[[0, 3, 6, 9, 12][k]:[3, 6, 9, 12, 16][k]]
        for u in us:
            g(f"s_add_u32 s{S_T1}, s{S_T0}, {u*1280}\nbuffer_load_dwordx2 {ac(self.WD+2*u,2)}, v135, {srd(SRD_D)}, s{S_T1} offen")
        g(f"{lab}_x:\ns_mov_b64 exec, -1 ; HZ_SKIP_END\n{lab}:")

    def p2_reads(self, n):
        i, ks = divmod(n, 4); b = n % 3
        base = 128 + (i & 1)
        out = []
        for t in range(2):
            for rd in range(2):
                out.append(f"ds_read_b64_tr_b16 {v(92+12*b+4*t+2*rd,2)}, v{base} offset:{(16*ks+4*rd)*80 + 64*t}")
        for rd in range(2):
            out.append(f"ds_read_b64_tr_b16 {v(160+4*b+2*rd,2)}, v{130 + (i & 1)} offset:{(16*ks+4*rd)*80}")
        return out

    def p2_base(self, i):
        r = i & 1
        return [f"v_add_u32 v{128+r}, s{S_QC}, v132", f"v_add_u32 v{130+r}, s{S_QC}, v133",
                f"s_add_u32 s{S_QC}, s{S_QC}, 5120", f"s_cmp_eq_u32 s{S_QC}, 51200", f"s_cselect_b32 s{S_QC}, 0, s{S_QC}"]

    def pass2(self):
        g = self
        g(f"""
        v_bfe_u32 v9, v1, 2, 2
        v_lshl_add_u32 v9, v3, 3, v9
        v_mul_u32_u24 v9, 80, v9
        v_bfe_u32 v10, v1, 4, 1
        v_and_b32 v11, 3, v1
        v_lshl_add_u32 v10, v10, 2, v11
        v_lshl_add_u32 v9, v10, 3, v9
        v_add_u32 v132, {L_WQ}, v9
        s_lshl_b32 s{S_T0}, s{S_WAVE}, 6
        v_add_u32 v133, s{S_T0}, v132
        s_mul_i32 s{S_QC}, s{S_C0}, 5120
        """)
        for x in self.p2_base(0): g(x)
        for x in self.p2_reads(0): g(x)
        for x in self.p2_reads(1): g(x)
        for n in range(40):
            i, ks = divmod(n, 4); b = n % 3
            if ks == 1 and i < 9:
                for x in self.p2_base(i + 1): g(x)
            g("s_waitcnt lgkmcnt(0)" if n == 39 else "s_waitcnt lgkmcnt(6)")
            rd = self.p2_reads(n + 2) if n + 2 < 40 else []
            XP = ac(4*n, 4)
            WF = lambda t: 92 + 12*b + 4*t
            cin = lambda r, k: "0" if n == 0 else v(r, k)
            g(f"v_mfma_f32_32x32x16_bf16 v[16:31], {v(WF(0),4)}, {XP}, {cin(16,16)}")
            for x in rd[0:3]: g(x)
            g(f"v_mfma_f32_32x32x16_bf16 v[32:47], {v(WF(1),4)}, {XP}, {cin(32,16)}")
            for x in rd[3:6]: g(x)
            g(f"v_mfma_f32_4x4x4_16b_bf16 v[76:79], {v(160+4*b,2)}, v[84:85], {cin(76,4)}")
            g(f"v_mfma_f32_4x4x4_16b_bf16 v[80:83], {v(160+4*b+2,2)}, v[84:85], {cin(80,4)}")
            if n in (14, 19, 24, 29, 34): self.moe_load_block((n - 14) // 5)
        self.stamp("p2end")

    def q_epilogue(self):
        g = self
        self.stats_and_colsum(False)
        quads = [(16+4*j, 8*j) for j in range(4)] + [(32, 32)]
        g(f"v_lshlrev_b32 v9, 4, v3\nv_add_u32 v9, {L_CS + 512}, v9")
        self.norm_reads(quads, 512, 160)
        self.norm_apply(quads, 160, 0)
        PK = 244
        for i in range(10):
            g(f"v_cvt_pk_bf16_f32 v{PK+i}, v{16+2*i}, v{16+2*i+1}")
        self.featmap_mfma(PK)
        for i in range(4): g(f"v_accvgpr_read_b32 v{56+i}, a{196+i}")
        self.softmax(220, 232)
        self.dump("phiq", list(range(220, 244)))
        self.stamp("qdone")

    def kv_loads(self):
        g = self
        g(f"""
        v_lshlrev_b32 v11, 6, v1
        s_mov_b32 exec_lo, 15
        s_mov_b32 exec_hi, 0
        buffer_load_dword v12, v11, {srd(SRD_DBG)}, 0 offen sc1
        s_mov_b64 exec, -1
        """)
        self.poll("kv", SRD_WS, f"s_add_u32 s{S_T0}, s{S_HP}, {CNT_KV}\ns_lshl_b32 s{S_T0}, s{S_T0}, 7\nv_mov_b32 v9, s{S_T0}", 16)
        self.stamp("kvseen")
        g(f"""
        s_mov_b32 exec_lo, 15
        s_mov_b32 exec_hi, 0
        v_cmp_ne_u32 vcc, 64, v12
        s_mov_b64 exec, -1
        s_cbranch_vccz L_rmaxok
        """)
        self.poll("rmax", SRD_DBG, "v_lshlrev_b32 v9, 6, v1 ; HZ_SKIP_BEGIN", 64, nl=4)
        g(f"""
        s_nop 0 ; HZ_SKIP_END
L_rmaxok:
        v_lshlrev_b32 v9, 5, v1
        v_add_u32 v9, {WS_RMAX}, v9
        buffer_load_dwordx4 v[48:51], v9, {srd(SRD_WS)}, 0 offen sc1
        buffer_load_dwordx4 v[52:55], v9, {srd(SRD_WS)}, 0 offen offset:16 sc1
        s_mul_i32 s{S_T0}, s{S_HP}, {16*KVP_SZ}
        s_add_u32 s{S_T0}, s{S_T0}, {WS_KVP}
        v_lshlrev_b32 v9, 4, v0
        v_add_u32 v10, 4096, v9
        v_cmp_gt_u32 vcc, 164, v0
        s_mov_b64 {s2(S_MB)}, vcc
        s_mov_b32 s{S_T1}, s{S_T0}
        """)
        for p in range(16):
            g(f"buffer_load_dwordx4 {ac(4*p,4)}, v9, {srd(SRD_WS)}, s{S_T1} offen sc1\ns_add_u32 s{S_T1}, s{S_T1}, {KVP_SZ}")
        g(f"s_mov_b64 exec, {s2(S_MB)}\ns_cbranch_execz L_nod2")
        for p in range(16):
            mark = " ; HZ_SKIP_BEGIN" if p == 0 else (" ; HZ_SKIP_END" if p == 15 else "")
            g(f"buffer_load_dwordx4 {ac(64+4*p,4)}, v10, {srd(SRD_WS)}, s{S_T0} offen sc1{mark}\ns_add_u32 s{S_T0}, s{S_T0}, {KVP_SZ}")
        g("L_nod2:\ns_mov_b64 exec, -1")

    def argmax(self):
        g = self
        g(f"""
        v_cmp_gt_f32 vcc, v50, v48
        v_cndmask_b32 v48, v48, v50, vcc
        v_cndmask_b32 v49, v49, v51, vcc
        v_cmp_gt_f32 vcc, v52, v48
        v_cndmask_b32 v48, v48, v52, vcc
        v_cndmask_b32 v49, v49, v53, vcc
        v_cmp_gt_f32 vcc, v54, v48
        v_cndmask_b32 v48, v48, v54, vcc
        v_cndmask_b32 v49, v49, v55, vcc
        v_mov_b32 v50, v48
        """)
        for ctl in ("row_shr:1 row_mask:0xf bank_mask:0xf", "row_shr:2 row_mask:0xf bank_mask:0xf",
                    "row_shr:4 row_mask:0xf bank_mask:0xf", "row_shr:8 row_mask:0xf bank_mask:0xf",
                    "row_bcast:15 row_mask:0xa bank_mask:0xf", "row_bcast:31 row_mask:0xc bank_mask:0xf"):
            g(f"v_max_f32_dpp v50, v50, v50 {ctl}")
        g(f"""
        v_readlane_b32 s{S_RSEL}, v50, 63
        v_cmp_eq_f32 vcc, s{S_RSEL}, v48
        s_ff1_i32_b64 s{S_T0}, vcc
        s_max_i32 s{S_T0}, s{S_T0}, 0
        v_readlane_b32 s{S_IDX}, v49, s{S_T0}
        s_nop 0
        s_and_b32 s{S_IDX}, s{S_IDX}, 2047
        """)

    def moe(self):
        g = self
        WD = self.WD
        g(f"""
        v_mov_b32 v166, 0
        v_mov_b32 v167, 0
        """)
        g.vmwait("xrow")
        for d in range(5):
            g(f"v_dot2c_f32_bf16 v166, v{160+d}, v84\nv_dot2c_f32_bf16 v167, v{160+d}, v{160+d}")
        g("s_nop 2")
        for ctl in ("row_shr:1 row_mask:0xf bank_mask:0xf bound_ctrl:0", "row_shr:2 row_mask:0xf bank_mask:0xf bound_ctrl:0",
                    "row_shr:4 row_mask:0xf bank_mask:0xf bound_ctrl:0", "row_shr:8 row_mask:0xf bank_mask:0xf bound_ctrl:0",
                    "row_bcast:15 row_mask:0xa bank_mask:0xf", "row_bcast:31 row_mask:0xc bank_mask:0xf"):
            g(f"v_add_f32_dpp v166, v166, v166 {ctl}\nv_add_f32_dpp v167, v167, v167 {ctl}")
        g(f"""
        v_readlane_b32 s{S_T0}, v166, 63
        v_readlane_b32 s{S_T1}, v167, 63
        v_mov_b32 v168, 0x3acccccd
        v_mul_f32 v166, s{S_T0}, v168
        v_mul_f32 v167, s{S_T1}, v168
        v_fma_f32 v167, -v166, v166, v167
        v_max_f32 v167, 0, v167
        """)
        g.rnd_bf16(167, 167)
        g("v_add_f32 v167, 0x3727c5ac, v167")
        g.rnd_bf16(167, 167)
        g("v_sqrt_f32 v167, v167")
        g.rnd_bf16(167, 167)
        g.rnd_bf16(166, 166)
        g("v_rcp_f32 v167, v167")
        for d in range(5):
            g(f"""
            v_lshlrev_b32 v168, 16, v{160+d}
            v_and_b32 v169, 0xffff0000, v{160+d}
            v_sub_f32 v168, v168, v166
            v_sub_f32 v169, v169, v166
            v_cvt_pk_bf16_f32 v168, v168, v169
            v_lshlrev_b32 v169, 16, v168
            v_and_b32 v168, 0xffff0000, v168
            v_mul_f32 v169, v169, v167
            v_mul_f32 v168, v168, v167
            v_cvt_pk_bf16_f32 v{160+d}, v169, v168
            """)
        g(f"""
        s_mul_i32 s{S_T0}, s{S_WAVE}, 1280
        s_add_u32 s{S_T0}, s{S_T0}, {L_XS}
        v_mul_u32_u24 v9, 20, v1
        v_add_u32 v9, s{S_T0}, v9
        ds_write_b32 v9, v160
        ds_write_b32 v9, v161 offset:4
        ds_write_b32 v9, v162 offset:8
        ds_write_b32 v9, v163 offset:12
        ds_write_b32 v9, v164 offset:16
        v_bfe_u32 v9, v1, 2, 2
        v_lshl_add_u32 v9, v3, 3, v9
        s_mul_i32 s{S_T1}, s{S_WAVE}, 160
        v_add_u32 v9, s{S_T1}, v9
        v_lshlrev_b32 v9, 5, v9
        v_and_b32 v10, 3, v1
        v_lshl_add_u32 v9, v10, 3, v9
        v_bfe_u32 v10, v1, 4, 1
        v_mul_u32_u24 v10, {L_U - L_G}, v10
        v_add_u32 v9, v9, v10
        v_add_u32 v9, {L_G}, v9
        s_mul_i32 s{S_T1}, s{S_WAVE}, 320
        s_add_u32 s{S_T0}, s{S_T0}, s{S_T1}
        v_lshlrev_b32 v10, 4, v3
        v_add_u32 v10, s{S_T0}, v10
        s_waitcnt lgkmcnt(0)
        s_barrier
        """)
        for ks in range(10):
            A, B = 92 + 8*(ks & 1), 96 + 8*(ks & 1)
            g(f"""
            ds_read_b64_tr_b16 {v(A,2)}, v9 offset:{(16*ks)*32}
            ds_read_b64_tr_b16 {v(A+2,2)}, v9 offset:{(16*ks+4)*32}
            ds_read_b128 {v(B,4)}, v10 offset:{32*ks}
            s_waitcnt lgkmcnt(0)
            v_mfma_f32_32x32x16_bf16 v[16:31], {v(A,4)}, {v(B,4)}, {"0" if ks == 0 else "v[16:31]"}
            """)
        g(f"""
        s_lshl_b32 s{S_T0}, s{S_WAVE}, 7
        s_add_u32 s{S_T0}, s{S_T0}, {L_HP}
        v_lshlrev_b32 v9, 4, v3
        v_add_u32 v9, s{S_T0}, v9
        s_mov_b32 exec_lo, 1
        s_mov_b32 exec_hi, 1
        ds_write_b128 v9, v[16:19]
        ds_write_b128 v9, v[20:23] offset:32
        ds_write_b128 v9, v[24:27] offset:64
        ds_write_b128 v9, v[28:31] offset:96
        s_mov_b64 exec, -1
        s_waitcnt lgkmcnt(0)
        s_barrier
        v_and_b32 v9, 15, v1
        v_lshlrev_b32 v9, 2, v9
        v_add_u32 v9, {L_HP}, v9
        ds_read_b32 v160, v9
        ds_read_b32 v161, v9 offset:128
        ds_read_b32 v162, v9 offset:256
        ds_read_b32 v163, v9 offset:384
        ds_read_b32 v164, v9 offset:64
        ds_read_b32 v165, v9 offset:192
        ds_read_b32 v166, v9 offset:320
        ds_read_b32 v167, v9 offset:448
        s_waitcnt lgkmcnt(0)
        v_add_f32 v160, v160, v161
        v_add_f32 v162, v162, v163
        v_add_f32 v164, v164, v165
        v_add_f32 v166, v166, v167
        v_add_f32 v160, v160, v162
        v_add_f32 v164, v164, v166
        """)
        g.rnd_bf16(160, 160); g.rnd_bf16(164, 164)
        g(f"""
        v_mul_f32 v161, 0xbfb8aa3b, v160
        v_exp_f32 v161, v161
        v_add_f32 v161, 1.0, v161
        v_rcp_f32 v161, v161
        v_mul_f32 v160, v160, v161
        """)
        g.rnd_bf16(160, 160)
        g("v_mul_f32 v160, v160, v164")
        g.rnd_bf16(160, 160)
        for u in range(16): g(f"v_readlane_b32 s{84+u}, v160, {u}") if not self.stamps else None
        HS = 84
        if self.stamps:
            HS = None
        for i in range(4): g(f"v_mov_b32 v{16+i}, 0")
        for u in range(16):
            a_, b_ = WD + 2*u, WD + 2*u + 1
            if HS is None:
                g(f"v_readlane_b32 s{S_T1}, v160, {u}")
                hs = f"s{S_T1}"
            else:
                hs = f"s{HS+u}"
            g(f"""
            v_accvgpr_read_b32 v24, a{a_}
            v_accvgpr_read_b32 v25, a{b_}
            v_lshlrev_b32 v20, 16, v24
            v_and_b32 v21, 0xffff0000, v24
            v_lshlrev_b32 v22, 16, v25
            v_and_b32 v23, 0xffff0000, v25
            v_fmac_f32 v16, {hs}, v20
            v_fmac_f32 v17, {hs}, v21
            v_fmac_f32 v18, {hs}, v22
            v_fmac_f32 v19, {hs}, v23
            """)


    def kv_addresses(self):
        g = self
        for k, (gi, out1, out2) in enumerate(((0, 196, 197), (256, 198, 199))):
            g(f"""
            v_add_u32 v9, {gi}, v0
            v_cmp_lt_u32 vcc, 209, v9
            v_cndmask_b32 v10, 0, 1, vcc
            v_mul_u32_u24 v11, 210, v10
            v_sub_u32 v9, v9, v11
            v_mul_u32_u24 v11, 3121, v9
            v_lshrrev_b32 v11, 16, v11
            v_mul_u32_u24 v12, 21, v11
            v_sub_u32 v12, v9, v12
            v_lshrrev_b32 v13, 1, v11
            v_and_b32 v14, 1, v11
            v_cmp_lt_u32 vcc, 7, v11
            v_subrev_u32 v15, 4, v11
            v_cndmask_b32 v13, v13, v15, vcc
            v_cndmask_b32 v14, v14, 0, vcc
            v_lshrrev_b32 v15, 1, v13
            v_and_b32 v13, 1, v13
            v_mul_u32_u24 v15, 1024, v15
            v_lshl_add_u32 v15, v13, 9, v15
            v_lshl_add_u32 v15, v14, 3, v15
            v_mul_u32_u24 v13, 3072, v10
            v_add_u32 v15, v15, v13
            v_add_u32 v15, {L_KVF}, v15
            v_lshlrev_b32 v13, 2, v10
            v_sub_u32 v13, v12, v13
            v_add_u32 v14, 20, v13
            v_cmp_gt_i32 vcc, 0, v13
            v_cndmask_b32 v13, v13, v14, vcc
            v_subrev_u32 v14, 16, v13
            v_lshrrev_b32 v60, 3, v13
            v_and_b32 v61, 7, v13
            v_lshrrev_b32 v62, 1, v14
            v_and_b32 v63, 1, v14
            v_add_u32 v63, 8, v63
            v_cmp_lt_u32 vcc, 15, v13
            v_cndmask_b32 v60, v60, v62, vcc
            v_cndmask_b32 v61, v61, v63, vcc
            v_lshrrev_b32 v62, 2, v61
            v_lshlrev_b32 v62, 3, v62
            v_lshl_add_u32 v62, v60, 2, v62
            v_and_b32 v61, 3, v61
            v_add_u32 v62, v62, v61
            v_cmp_eq_u32 vcc, 20, v12
            v_cndmask_b32 v63, v62, 22, vcc
            v_cndmask_b32 v62, v62, 18, vcc
            v_lshl_add_u32 v62, v62, 4, v15
            v_lshl_add_u32 v63, v63, 4, v15
            v_accvgpr_write_b32 a{out1}, v62
            v_accvgpr_write_b32 a{out2}, v63
            """)

    def kv_reduce_and_o(self):
        g = self
        g("s_waitcnt vmcnt(0)")
        self.stamp("kvdata")
        for base, acc in ((0, 16), (64, 92)):
            for e in range(4): g(f"v_accvgpr_read_b32 v{acc+e}, a{base+e}")
            for p in range(1, 16):
                t = acc + 4 + 4 * (p & 1)
                for e in range(4): g(f"v_accvgpr_read_b32 v{t+e}, a{base+4*p+e}")
                g(f"v_pk_add_f32 {v(acc,2)}, {v(acc,2)}, {v(t,2)}\nv_pk_add_f32 {v(acc+2,2)}, {v(acc+2,2)}, {v(t+2,2)}")
        g(f"""
        v_cvt_pk_bf16_f32 v16, v16, v17
        v_cvt_pk_bf16_f32 v17, v18, v19
        v_cvt_pk_bf16_f32 v92, v92, v93
        v_cvt_pk_bf16_f32 v93, v94, v95
        ds_write_b64 v56, v[16:17]
        ds_write_b64 v57, v[16:17]
        s_mov_b64 exec, {s2(S_MB)}
        ds_write_b64 v58, v[92:93]
        ds_write_b64 v59, v[92:93]
        s_mov_b64 exec, -1
        s_waitcnt lgkmcnt(0)
        s_barrier
        v_lshlrev_b32 v9, 4, v1
        v_add_u32 v9, {L_KVF}, v9
        """)
        for a in range(2):
            for t in range(3):
                g(f"ds_read_b128 {v(160+12*a+4*t,4)}, v9 offset:{a*3072 + t*1024}")
        self.dump("kvf", list(range(160, 184)))
        for a, (acc, H) in enumerate(((16, 220), (32, 232))):
            g(f"s_waitcnt lgkmcnt({3 - 3*a})")
            for t in range(3):
                g(f"v_mfma_f32_32x32x16_bf16 {v(acc,16)}, {v(160+12*a+4*t,4)}, {v(H+4*t,4)}, {'0' if t == 0 else v(acc,16)}")
        self.dump("num", list(range(16, 48)))
        g(f"""
        s_lshl_b32 s{S_T0}, s{S_RB}, 1
        s_lshr_b32 s{S_T1}, s{S_WAVE}, 1
        s_add_u32 s{S_T0}, s{S_T0}, s{S_T1}
        s_mul_i32 s{S_T0}, s{S_T0}, 81920
        s_and_b32 s{S_T1}, s{S_WAVE}, 1
        s_mul_i32 s{S_T1}, s{S_T1}, 40960
        s_add_u32 s{S_T0}, s{S_T0}, s{S_T1}
        s_lshr_b32 s{S_T1}, s{S_HP}, 2
        s_mul_i32 s{S_T1}, s{S_T1}, 5120
        s_add_u32 s{S_T0}, s{S_T0}, s{S_T1}
        s_and_b32 s{S_T1}, s{S_HP}, 3
        s_lshl_b32 s{S_T1}, s{S_T1}, 8
        s_add_u32 s{S_T0}, s{S_T0}, s{S_T1}
        s_add_u32 s{S_T0}, s{S_T0}, {WS_O}
        v_lshrrev_b32 v9, 4, v2
        v_mul_u32_u24 v9, 20480, v9
        v_and_b32 v10, 15, v2
        v_lshl_add_u32 v9, v10, 4, v9
        v_lshl_add_u32 v10, v3, 10, v9
        v_lshl_add_u32 v11, v3, 3, v9
        v_mov_b32 v12, 0x358637bd
        """)
        for a, (acc, P) in enumerate(((16, 160), (32, 166))):
            g(f"v_add_f32 v{acc+10}, v{acc+10}, v12\nv_rcp_f32 v{acc+10}, v{acc+10}")
        for a, (acc, P) in enumerate(((16, 160), (32, 166))):
            for i in range(5):
                g(f"v_pk_mul_f32 {v(acc+2*i,2)}, {v(acc+2*i,2)}, {v(acc+10,2)} op_sel_hi:[1,0]")
            for i in range(5):
                g(f"v_cvt_pk_bf16_f32 v{P+i}, v{acc+2*i}, v{acc+2*i+1}")
        self.dump("o", list(range(160, 165)) + list(range(166, 171)))
        g(f"""
        v_mov_b32 v172, v164
        v_mov_b32 v173, v170
        s_nop 1
        v_permlane32_swap_b32 v172, v173
        buffer_store_dwordx4 v[160:163], v10, {srd(SRD_WS)}, s{S_T0} offen sc1
        v_mov_b32 v174, v166
        v_mov_b32 v175, v167
        v_mov_b32 v176, v168
        v_mov_b32 v177, v169
        buffer_store_dwordx2 v[172:173], v11, {srd(SRD_WS)}, s{S_T0} offen offset:2048 sc1
        buffer_store_dwordx4 v[174:177], v10, {srd(SRD_WS)}, s{S_T0} offen offset:3072 sc1
        """)
        self.signal("o", f"s_add_u32 s{S_T0}, s{S_RB}, {CNT_O}")
        self.stamp("osig")

    XR, RS, ST = 200, 176, 212
    def wo_groups(self):
        grp = []
        for i5 in range(5):
            for n in range(5):
                gl = []
                if n == 0: gl.append(f"s_add_u32 s{S_T3}, s{S_WOG}, {8*i5*1280}")
                gl += [f"s_add_u32 m0, s{S_WOL}, {L_WO + i5*5120 + n*1024}", "s_nop 0" if n else f"s_nop 0",
                       f"buffer_load_dwordx4 v{128+n}, {srd(SRD_WO)}, s{S_T3} offen lds"]
                grp.append(gl)
        return grp

    def c_addresses(self):
        g = self
        for n in range(5):
            g(f"""
            v_add_u32 v9, {64*n}, v1
            v_mul_u32_u24 v10, 6554, v9
            v_lshrrev_b32 v10, 16, v10
            v_mul_u32_u24 v11, 10, v10
            v_sub_u32 v11, v9, v11
            v_bfe_u32 v12, v10, 3, 1
            v_bfe_u32 v13, v10, 2, 1
            v_lshl_add_u32 v12, v12, 1, v13
            v_mul_u32_u24 v12, 40, v12
            v_lshrrev_b32 v13, 4, v10
            v_lshl_add_u32 v12, v13, 2, v12
            v_and_b32 v13, 3, v10
            v_add_u32 v12, v12, v13
            v_mul_u32_u24 v12, 1280, v12
            v_lshl_add_u32 v12, v11, 4, v12
            v_accvgpr_write_b32 a{200+n}, v12
            """)
            if n < 3:
                g(f"""
                v_min_u32 v10, 15, v10
                v_mul_u32_u24 v12, 1280, v10
                v_lshl_add_u32 v12, v11, 4, v12
                v_accvgpr_write_b32 a{205+n}, v12
                v_mul_u32_u24 v12, 336, v10
                v_lshl_add_u32 v12, v11, 5, v12
                v_accvgpr_write_b32 a{208+n}, v12
                v_accvgpr_write_b32 a{211+n}, v10
                v_lshlrev_b32 v12, 5, v11
                v_accvgpr_write_b32 a{214+n}, v12
                """)

    def residual(self):
        g = self
        XR, RS, ST = self.XR, self.RS, self.ST
        for n in range(3):
            xr, rs, st = XR + 4*n, RS + 8*n, ST + 2*n
            g(f"v_rcp_f32 v{st+1}, v{st+1}")
            for d in range(4):
                g(f"""
                v_lshlrev_b32 v10, 16, v{xr+d}
                v_and_b32 v11, 0xffff0000, v{xr+d}
                v_sub_f32 v12, v10, v{st}
                v_sub_f32 v13, v11, v{st}
                v_cvt_pk_bf16_f32 v12, v12, v13
                v_lshlrev_b32 v13, 16, v12
                v_and_b32 v12, 0xffff0000, v12
                v_mul_f32 v13, v13, v{st+1}
                v_mul_f32 v12, v12, v{st+1}
                v_cvt_pk_bf16_f32 v12, v13, v12
                v_lshlrev_b32 v13, 16, v12
                v_and_b32 v12, 0xffff0000, v12
                v_add_f32 v{rs+2*d}, v13, v10
                v_add_f32 v{rs+2*d+1}, v12, v11
                """)

    def phase_c(self):
        g = self
        XR, RS, ST = self.XR, self.RS, self.ST
        self.argmax()
        for n in range(5): g(f"v_accvgpr_read_b32 v{128+n}, a{200+n}")
        for n in range(3):
            g(f"v_accvgpr_read_b32 v{134+n}, a{205+n}\nv_accvgpr_read_b32 v{137+n}, a{208+n}\nv_accvgpr_read_b32 v{140+n}, a{211+n}\nv_accvgpr_read_b32 v{143+n}, a{214+n}")
        g(f"""
        s_mul_i32 s{S_WOG}, s{S_WAVE}, {160*1280}
        s_mul_i32 s{S_T1}, s{S_CB}, 160
        s_add_u32 s{S_WOG}, s{S_WOG}, s{S_T1}
        s_mul_i32 s{S_WOL}, s{S_WAVE}, {5*5120}
        s_mul_i32 s{S_T0}, s{S_ROW0}, 1280
        s_add_u32 s{S_T5}, s{S_T0}, s{S_T1}
        """)
        self.vm = []
        g(f"""
        v_mul_u32_u24 v9, 20, v1
        s_mul_i32 s{S_T0}, s{S_IDX}, 1280
        buffer_load_dwordx4 v[160:163], v9, {srd(SRD_X)}, s{S_T0} offen
        buffer_load_dword v164, v9, {srd(SRD_X)}, s{S_T0} offen offset:16
        """)
        g.vmi("xrow", 2)
        for n in range(3):
            g(f"buffer_load_dwordx4 {v(XR+4*n,4)}, v{134+n}, {srd(SRD_X)}, s{S_T5} offen")
        g.vmi("xres", 3)
        vm0 = list(self.vm)
        g(f"s_cmp_ge_u32 s{S_MU}, 108\ns_cbranch_scc1 L_plainwo")
        g("s_nop 0 ; HZ_SKIP_BEGIN")
        self.interleave([(x, "wo") for x in self.wo_groups()], self.capture(self.moe))
        g(f"""
        s_mul_i32 s{S_T0}, s{S_MU}, 2560
        s_add_u32 s{S_T0}, s{S_T0}, {WS_Y}
        v_lshlrev_b32 v9, 4, v0
        v_cmp_gt_u32 vcc, 160, v0
        s_and_saveexec_b64 {s2(S_MA)}, vcc
        s_cbranch_execz L_noy
        buffer_store_dwordx4 v[16:19], v9, {srd(SRD_WS)}, s{S_T0} offen sc1
L_noy:
        s_mov_b64 exec, -1
        """)
        self.signal("moe", f"s_and_b32 s{S_T0}, s{S_MU}, 3\ns_add_u32 s{S_T0}, s{S_T0}, {CNT_M}")
        g("s_branch L_wodone ; HZ_SKIP_END\nL_plainwo:")
        g("s_nop 0 ; HZ_SKIP_BEGIN")
        for grp in self.wo_groups():
            for x in grp: g(x)
        g("s_nop 0 ; HZ_SKIP_END\nL_wodone:")
        self.stamp("moedone")
        self.poll("st", SRD_WS, f"v_mov_b32 v9, {CNT_KV * 128}", 16)
        g(f"s_lshl_b32 s{S_T0}, s{S_ROW0}, 3\ns_add_u32 s{S_T0}, s{S_T0}, {WS_STATS}")
        for n in range(3):
            g(f"v_lshlrev_b32 v10, 3, v{140+n}\nbuffer_load_dwordx2 {v(ST+2*n,2)}, v10, {srd(SRD_WS)}, s{S_T0} offen sc1")
        g("s_barrier")
        g(f"""
        v_bfe_u32 v10, v1, 5, 1
        v_lshlrev_b32 v10, 3, v10
        v_bfe_u32 v11, v1, 4, 1
        v_lshl_add_u32 v10, v11, 2, v10
        v_bfe_u32 v11, v1, 2, 2
        v_add_u32 v10, v10, v11
        v_mul_u32_u24 v10, 160, v10
        v_and_b32 v11, 3, v1
        v_lshl_add_u32 v10, v11, 3, v10
        v_add_u32 v236, {L_WO}, v10
        v_add_u32 v237, {L_WO + 10*5120}, v10
        """)
        NA = 12
        def wo_reads(ks):
            base = 236 + ks // 10
            out = []
            for ct in range(5):
                for rd in range(2):
                    dst = ac(20*ks + 4*ct + 2*rd, 2) if ks < NA else v(40 + 20*(ks & 1) + 4*ct + 2*rd, 2)
                    out.append(f"ds_read_b64_tr_b16 {dst}, v{base} offset:{(ks % 10)*5120 + rd*2560 + ct*32}")
            return out
        for ks in range(NA + 2):
            for x in wo_reads(ks): g(x)
            g("s_waitcnt lgkmcnt(5)")
        g("s_waitcnt vmcnt(0)")
        self.residual()
        self.stamp("resid")
        self.poll("o", SRD_WS, f"s_lshr_b32 s{S_T0}, s{S_RB64}, 1\ns_add_u32 s{S_T0}, s{S_T0}, {CNT_O}\ns_lshl_b32 s{S_T0}, s{S_T0}, 7\nv_mov_b32 v9, s{S_T0}", 16)
        self.stamp("oseen")
        g(f"""
        s_mul_i32 s{S_T0}, s{S_RB64}, 81920
        s_mul_i32 s{S_T1}, s{S_WAVE}, 20480
        s_add_u32 s{S_T0}, s{S_T0}, s{S_T1}
        s_add_u32 s{S_T0}, s{S_T0}, {WS_O}
        v_lshlrev_b32 v9, 4, v1
        """)
        self.vm = []
        regs_o = list(range(92, 128, 4)) + list(range(146, 174, 4)) + [220, 224, 228, 232]
        assert len(regs_o) == 20, len(regs_o)
        for ks in range(20):
            g(f"buffer_load_dwordx4 {v(regs_o[ks],4)}, v9, {srd(SRD_WS)}, s{S_T0} offen sc1\ns_add_u32 s{S_T0}, s{S_T0}, 1024")
            g.vmi(f"o{ks}")
        g("s_waitcnt lgkmcnt(0)")
        for ks in range(20):
            if ks >= NA: g("s_waitcnt lgkmcnt(10)" if ks < 19 else "s_waitcnt lgkmcnt(0)")
            g.vmwait(f"o{ks}")
            rd = wo_reads(ks + 2) if NA <= ks < 18 else []
            for ct in range(5):
                cin = "0" if ks == 0 else v(16+4*ct, 4)
                A = ac(20*ks + 4*ct, 4) if ks < NA else v(40 + 20*(ks & 1) + 4*ct, 4)
                g(f"v_mfma_f32_16x16x32_bf16 {v(16+4*ct,4)}, {A}, {v(regs_o[ks],4)}, {cin}")
            if rd: g("s_waitcnt lgkmcnt(5)")
            for x in rd: g(x)
        self.stamp("cmfma")
        g(f"""
        s_sub_u32 s{S_T4}, s{S_IDX}, s{S_ROW0}
        s_cmp_ge_u32 s{S_T4}, 16
        s_cbranch_scc1 L_norow
        s_nop 0                      ; HZ_SKIP_BEGIN
        """)
        self.poll("m", SRD_WS, f"v_lshlrev_b32 v9, 7, v1\nv_add_u32 v9, {CNT_M*128}, v9", 27, nl=4)
        g(f"""
        v_mul_u32_u24 v10, 3277, v1
        v_lshrrev_b32 v10, 16, v10
        v_mul_u32_u24 v11, 20, v10
        v_sub_u32 v11, v1, v11
        v_mul_u32_u24 v12, 2560, v10
        v_lshl_add_u32 v12, v11, 4, v12
        s_mul_i32 s{S_T0}, s{S_CB}, 320
        s_add_u32 s{S_T0}, s{S_T0}, {WS_Y}
        v_mov_b32 v40, 0
        v_mov_b32 v41, 0
        v_mov_b32 v42, 0
        v_mov_b32 v43, 0
        s_mov_b32 exec_hi, 0x0fffffff
        """)
        yregs = list(range(44, 80, 4)) + list(range(92, 128, 4))
        for half in range(2):
            for j in range(18):
                g(f"buffer_load_dwordx4 {v(yregs[j],4)}, v12, {srd(SRD_WS)}, s{S_T0} offen sc1\ns_add_u32 s{S_T0}, s{S_T0}, {3*2560}")
            g("s_waitcnt vmcnt(0)")
            for j in range(18):
                g(f"v_pk_add_f32 v[40:41], v[40:41], {v(yregs[j],2)}\nv_pk_add_f32 v[42:43], v[42:43], {v(yregs[j]+2,2)}")
        g(f"""
        v_mul_u32_u24 v12, 320, v10
        v_lshl_add_u32 v12, v11, 4, v12
        v_add_u32 v12, {L_YR}, v12
        ds_write_b128 v12, v[40:43]
        s_mov_b64 exec, -1
        v_mov_b32 v44, s{S_RSEL}
        """)
        g.rnd_bf16(44, 44)
        g(f"""
        v_mul_f32 v44, 0xbfb8aa3b, v44
        v_exp_f32 v44, v44
        v_add_f32 v44, 1.0, v44
        v_rcp_f32 v44, v44
        """)
        g.rnd_bf16(44, 44)
        g("s_waitcnt lgkmcnt(0)")
        for n in range(3):
            rs, xr = RS + 8*n, XR + 4*n
            g(f"v_add_u32 v12, {L_YR}, v{143+n}")
            for pg in range(3):
                g(f"ds_read_b128 {v(48+8*pg,4)}, v12 offset:{320*pg}\nds_read_b128 {v(52+8*pg,4)}, v12 offset:{320*pg+16}")
            g("s_waitcnt lgkmcnt(0)")
            g(f"v_cmp_eq_u32 vcc, s{S_T4}, v{140+n}")
            for e in range(8):
                unp = f"v_lshlrev_b32 v45, 16, v{xr + e//2}" if e % 2 == 0 else f"v_and_b32 v45, 0xffff0000, v{xr + e//2}"
                g(f"v_add_f32 v{48+e}, v{48+e}, v{56+e}\nv_add_f32 v{48+e}, v{48+e}, v{64+e}")
                g.rnd_bf16(48+e, 48+e)
                g(f"v_mul_f32 v{48+e}, v{48+e}, v44")
                g.rnd_bf16(48+e, 48+e)
                g(f"{unp}\nv_sub_f32 v46, v{rs+e}, v45\nv_add_f32 v{48+e}, v{48+e}, v46")
                g.rnd_bf16(48+e, 48+e)
                g(f"v_add_f32 v{48+e}, v{48+e}, v45\nv_cndmask_b32 v{rs+e}, v{rs+e}, v{48+e}, vcc")
        g("s_nop 0                      ; HZ_SKIP_END\nL_norow:")
        g(f"""
        s_mul_i32 s{S_T0}, s{S_WAVE}, 5376
        s_add_u32 s{S_T0}, s{S_T0}, {L_OST}
        v_and_b32 v9, 15, v1
        v_mul_u32_u24 v9, 336, v9
        v_lshrrev_b32 v10, 4, v1
        v_lshl_add_u32 v9, v10, 4, v9
        v_add_u32 v9, s{S_T0}, v9
        """)
        for ct in range(5): g(f"ds_write_b128 v9, {v(16+4*ct,4)} offset:{64*ct}")
        for n in range(3): g(f"v_add_u32 v{10+n}, s{S_T0}, v{137+n}")
        g("s_waitcnt lgkmcnt(0)")
        for n in range(3):
            g(f"ds_read_b128 {v(40+8*n,4)}, v{10+n}\nds_read_b128 {v(44+8*n,4)}, v{10+n} offset:16")
        for n in range(3):
            rs = RS + 8*n
            g(f"s_waitcnt lgkmcnt({4 - 2*n})")
            for e in range(0, 8, 2):
                g(f"v_pk_add_f32 {v(40+8*n+e,2)}, {v(40+8*n+e,2)}, {v(rs+e,2)}")
            for e in range(4):
                g(f"v_cvt_pk_bf16_f32 v{64+4*n+e}, v{40+8*n+2*e}, v{40+8*n+2*e+1}")
            if n == 2: g("s_mov_b32 exec_hi, 0")
            g(f"buffer_store_dwordx4 {v(64+4*n,4)}, v{134+n}, {srd(SRD_OUT)}, s{S_T5} offen")
        g("s_mov_b64 exec, -1")
        self.stamp("end"); self.stamp("clk1", True)

    def rest(self):
        self.moe_roles()
        self.publish_kv()
        self.dbg_span(4, False)
        self.pass2()
        self.kv_loads()
        self.q_epilogue()
        self.dbg_span(5, False)
        self.kv_reduce_and_o()
        self.dbg_span(6, False)
        self.phase_c()
```

```python
import sys, re
from asmlib import Asm, kernel_header
import hazard

NAME = "parallel_sum__linear_kernel_hedgehog__moe_arch_mod__prompt_kernel"

WS_CNT   = 0
WS_KVP   = 0x10000
KVP_SZ   = 6784
WS_O     = 0x200000
WS_STATS = 0x500000
WS_RMAX  = 0x508000
WS_Y     = 0x510000
WS_DBG   = 0x800000
WS_TS    = 0x7f0000
WS_SIZE  = 268435456

SLOT     = 28672
L_WQ     = 0
L_T      = 57344
L_WO     = 0
L_G      = 102400
L_U      = L_G + 20480 + 128
L_OST    = L_G
L_YR     = L_OST + 4 * 5376
L_MISC   = L_U + 20480
L_WPHI   = L_MISC
L_CS     = L_WPHI + 4 * 1664
L_P0     = L_CS + 1024
L_KVF    = L_P0 + 64
L_XS     = L_KVF + 6144
L_HP     = L_XS + 5120
L_END    = L_HP + 640
LDS_SIZE = 163840
assert L_END <= LDS_SIZE, L_END
assert 5 * SLOT <= L_MISC

S_WAVE = 3
SRD_X, SRD_W, SRD_PHI, SRD_WO, SRD_WR, SRD_G, SRD_U, SRD_D, SRD_OUT, SRD_DBG, SRD_WS = range(4, 48, 4)
S_XCD, S_SLOT, S_RB, S_HP = 48, 49, 50, 51
S_XB, S_WB, S_LX, S_LW = 52, 53, 54, 55
S_WM = 56
S_T0, S_T1, S_T2, S_T3, S_T4, S_T5 = 62, 63, 64, 65, 66, 67
S_MA, S_MB = 68, 70
S_C0, S_CC, S_CX, S_CW = 76, 77, 78, 79
S_WQL, S_WQG, S_P0ROW, S_IDX = 80, 81, 82, 83
S_KVS = 75
S_TS = 84

def srd(n): return f"s[{n}:{n+3}]"
def v(b, n=1): return f"v{b}" if n == 1 else f"v[{b}:{b+n-1}]"
def ac(b, n=1): return f"a{b}" if n == 1 else f"a[{b}:{b+n-1}]"
def s2(b): return f"s[{b}:{b+1}]"


class Gen:
    def __init__(self, stop=None, dumps=(), stamps=False, touch=True, exp=()):
        self.touch = touch
        self.dist = 2 if "d2" in exp else 3
        self.exp = set(exp)
        self.a = Asm()
        self.vm = []
        self.stop = stop
        self.dumps = set(dumps)
        self.stamps = stamps
        self.nstamp = 0
        self.dump_off = 0
        self.dump_index = {}

    def __call__(self, t): self.a(t)

    def vmi(self, tag, n=1):
        self.vm += [tag] * n
    def capture(self, fn):
        old, self.a.lines = self.a.lines, []
        self.capturing = True
        fn()
        self.capturing = False
        out, self.a.lines = self.a.lines, old
        return [l.strip() for l in out if l.strip()]

    def atoms(self, lines):
        out, cur, hold = [], [], None
        for l in lines:
            cur.append(l)
            code = l.split(";")[0].strip()
            if hold is None:
                if re.match(r"s_(mov|brev|and_saveexec)\w* (exec|exec_lo|exec_hi)\b", code) or code.startswith("s_and_saveexec"):
                    if not code.endswith("exec, -1"): hold = "exec"
                elif code.startswith("s_cmp"): hold = "label"
            else:
                if hold == "exec" and code == "s_mov_b64 exec, -1": hold = None
                elif hold == "label" and (code.endswith(":") or code.startswith("s_cselect")): hold = None
            if hold is None and not l.endswith(";+"):
                out.append(cur); cur = []
        if cur: out.append(cur)
        return out

    def interleave(self, groups, filler):
        at = self.atoms(filler)
        total = sum(len(a) for a in at)
        done = 0
        for i, (lines, tag) in enumerate(groups):
            for x in lines: self(x)
            self.vmi(tag)
            target = total * (i + 1) // len(groups)
            while at and done < target:
                a = at.pop(0); done += len(a)
                for x in a: self.emit_resolved(x)
        for a in at:
            for x in a: self.emit_resolved(x)

    def emit_resolved(self, x):
        if x.startswith("@VMWAIT "): self.vmwait(x.split()[1])
        else: self(x)

    def vmwait(self, tag):
        if getattr(self, "capturing", False):
            self(f"@VMWAIT {tag}"); return
        last = max(i for i, t in enumerate(self.vm) if t == tag)
        n = len(self.vm) - 1 - last
        assert n <= 63, (tag, n)
        self(f"s_waitcnt vmcnt({n})")
    def vmwait_all(self):
        self("s_waitcnt vmcnt(0)")

    def stamp(self, name, clk=False):
        if not self.stamps: return
        if self.stamps is not True and name not in self.stamps: return
        i = self.nstamp; self.nstamp += 1
        assert i < 9, name
        if "cyc" in self.exp: clk = True
        self(f"{'s_memtime' if clk else 's_memrealtime'} {s2(S_TS + 2*i)} ; stamp {name}")
        self.stamp_names = getattr(self, "stamp_names", []) + [name]

    def dump(self, name, regs, tmp=250):
        if name not in self.dumps: return
        g = self
        n = len(regs)
        base = WS_DBG + self.dump_off
        self.dump_index[name] = (self.dump_off, n)
        self.dump_off += 256 * 4 * n * 256
        g("s_waitcnt vmcnt(0) lgkmcnt(0)\ns_nop 15\ns_nop 15")
        g(f"s_lshl_b32 s74, s2, 2\ns_add_u32 s74, s74, s{S_WAVE}\ns_mul_i32 s74, s74, {n*256}\ns_add_u32 s74, s74, {base}")
        g(f"v_lshlrev_b32 v{tmp}, 2, v1")
        for i, r in enumerate(regs):
            if isinstance(r, str) and r.startswith("a"):
                g(f"v_accvgpr_read_b32 v{tmp+1}, {r}\ns_nop 1")
                src = f"v{tmp+1}"
            else:
                src = f"v{r}"
            g(f"buffer_store_dword {src}, v{tmp}, {srd(SRD_WS)}, s74 offen")
            g(f"s_add_u32 s74, s74, 256")
            g("s_waitcnt vmcnt(0)")

    def rnd_bf16(self, dst, src):
        self(f"v_cvt_pk_bf16_f32 v{dst}, v{src}, v{src}\nv_lshlrev_b32 v{dst}, 16, v{dst}")

    def prologue(self):
        g = self
        ptrs = [(SRD_X, 0), (SRD_W, 8), (SRD_WR, 40), (SRD_PHI, 16), (SRD_WS, 88), (SRD_DBG, 80),
                (SRD_WO, 24), (SRD_G, 48), (SRD_U, 56), (SRD_D, 64), (SRD_OUT, 72)]
        sizes = {SRD_X: 2621440, SRD_W: 2457600, SRD_WR: 1280, SRD_PHI: 25600, SRD_WS: WS_SIZE, SRD_DBG: 256,
                 SRD_WO: 819200, SRD_G: 2211840, SRD_U: 2211840, SRD_D: 2211840, SRD_OUT: 2621440}
        self.sizes = sizes
        if "span" in self.exp: g("s_memrealtime s[98:99]")
        g("s_getpc_b64 s[72:73]")
        g("L_pc:")
        for r, off in ptrs[:4]:
            g(f"s_load_dwordx2 {s2(r)}, s[0:1], {off}")
        g(f"""
        s_cmp_ge_u32 s2, 256
        s_cbranch_scc1 L_exit
        v_and_b32 v1, 63, v0
        v_lshrrev_b32 v9, 6, v0
        s_lshr_b32 s{S_SLOT}, s2, 3
        v_readfirstlane_b32 s{S_WAVE}, v9
        s_and_b32 s{S_XCD}, s2, 7
        """)
        g(f"""
        s_lshl_b32 s{S_T0}, s{S_SLOT}, 2
        s_add_u32 s{S_T0}, s{S_T0}, s{S_WAVE}
        s_lshl_b32 s{S_T0}, s{S_T0}, 9
        v_lshl_add_u32 v11, v1, 7, s{S_T0}
        v_cmp_gt_u32 vcc, L_code_end - L_pc, v11
        v_cmp_gt_u32 {s2(S_MA)}, 4, v1
        s_and_b64 vcc, vcc, {s2(S_MA)}
        s_and_saveexec_b64 {s2(S_MA)}, vcc
        s_cbranch_execz L_nopf
        global_load_dword v159, v11, s[72:73]
L_nopf:
        s_mov_b64 exec, -1
        """)
        for r, off in ptrs[4:]:
            g(f"s_load_dwordx2 {s2(r)}, s[0:1], {off}")
        g(f"""
        s_and_b32 s{S_T0}, s{S_XCD}, 1
        s_lshl_b32 s{S_T0}, s{S_T0}, 3
        s_and_b32 s{S_T1}, s{S_SLOT}, 7
        s_add_u32 s{S_RB}, s{S_T0}, s{S_T1}
        s_lshr_b32 s{S_T0}, s{S_XCD}, 1
        s_lshl_b32 s{S_T0}, s{S_T0}, 2
        s_lshr_b32 s{S_T2}, s{S_SLOT}, 3
        s_add_u32 s{S_HP}, s{S_T0}, s{S_T2}
        s_lshl_b32 s{S_T2}, s{S_T2}, 1
        s_add_u32 s{S_T1}, s{S_T1}, s{S_T2}
        s_and_b32 s{S_T1}, s{S_T1}, 7
        s_mul_i32 s{S_T1}, s{S_T1}, 10
        s_lshr_b32 s{S_C0}, s{S_T1}, 3
        v_lshrrev_b32 v9, 3, v1
        v_mul_u32_u24 v9, 1280, v9
        v_and_b32 v11, 7, v1
        v_lshrrev_b32 v15, 4, v1
        v_xor_b32 v11, v11, v15
        v_lshl_add_u32 v4, v11, 4, v9
        v_xor_b32 v11, 4, v11
        v_lshl_add_u32 v5, v11, 4, v9
        v_add_u32 v5, {10240 - 1024}, v5
        v_add_u32 v157, {20480 - 2048}, v4
        v_add_u32 v158, {20480 - 2048}, v5
        s_lshl_b32 s{S_T0}, s{S_RB}, 7
        s_lshl_b32 s{S_T1}, s{S_WAVE}, 5
        s_add_u32 s{S_T1}, s{S_T1}, s{S_T0}
        s_mul_i32 s{S_XB}, s{S_T1}, 1280
        s_mul_i32 s{S_WB}, s{S_WAVE}, {16*3840}
        s_mul_i32 s{S_T1}, s{S_HP}, 80
        s_add_u32 s{S_WB}, s{S_WB}, s{S_T1}
        s_lshl_b32 s{S_LX}, s{S_WAVE}, 12
        s_mul_i32 s{S_LW}, s{S_WAVE}, 3072
        s_add_u32 s{S_LW}, s{S_LW}, 16384
        s_add_u32 s{S_CC}, s{S_XB}, 1280
        s_lshl_b32 s{S_CX}, s{S_C0}, 7
        s_add_u32 s{S_CX}, s{S_CX}, s{S_XB}
        s_mul_i32 s{S_CW}, s{S_C0}, {64*3840}
        s_add_u32 s{S_CW}, s{S_CW}, s{S_WB}
        """)
        for r in (SRD_X, SRD_W):
            g(f"s_mov_b32 s{r+2}, {sizes[r]}\ns_mov_b32 s{r+3}, 0x20000")
        for n in range(3):
            g(f"""
            v_add_u32 v9, {64*n}, v1
            v_mul_u32_u24 v11, 43691, v9
            v_lshrrev_b32 v11, 19, v11
            v_mul_u32_u24 v12, 12, v11
            v_sub_u32 v12, v9, v12
            v_cmp_gt_u32 {s2(S_WM+2*n)}, 10, v12
            v_cmp_gt_u32 vcc, 5, v12
            v_mul_u32_u24 v11, 3840, v11
            v_lshl_add_u32 v11, v12, 4, v11
            v_mov_b32 v13, 2480
            v_add_u32 v14, 1280, v11
            v_add_u32 v11, v13, v11
            v_cndmask_b32 v{6+n}, v11, v14, vcc
            """)
            if n: g(f"v_subrev_u32 v{6+n}, {1024*n}, v{6+n}")
        g("s_waitcnt lgkmcnt(0)")
        self.stamp("start"); self.stamp("clk0", True)
        for r in (SRD_WR, SRD_PHI):
            g(f"s_mov_b32 s{r+2}, {sizes[r]}\ns_mov_b32 s{r+3}, 0x20000")
        P = 160
        nt = " nt" if "nt" in self.exp else ""
        self.nt = nt
        g(f"""
        v_mul_u32_u24 v10, 20, v1
        s_lshl_b32 s{S_T0}, s{S_RB}, 7
        s_lshl_b32 s{S_T1}, s{S_HP}, 3
        s_add_u32 s{S_T0}, s{S_T0}, s{S_T1}
        s_lshl_b32 s{S_T1}, s{S_WAVE}, 1
        s_add_u32 s{S_P0ROW}, s{S_T0}, s{S_T1}
        s_mul_i32 s{S_T4}, s{S_P0ROW}, 1280
        buffer_load_dwordx4 {v(P,4)}, v10, {srd(SRD_X)}, s{S_T4} offen
        buffer_load_dword v{P+4}, v10, {srd(SRD_X)}, s{S_T4} offen offset:16
        buffer_load_dwordx4 {v(P+6,4)}, v10, {srd(SRD_X)}, s{S_T4} offen offset:1280
        buffer_load_dword v{P+10}, v10, {srd(SRD_X)}, s{S_T4} offen offset:1296
        buffer_load_dwordx4 {v(P+12,4)}, v10, {srd(SRD_WR)}, 0 offen
        buffer_load_dword v{P+16}, v10, {srd(SRD_WR)}, 0 offen offset:16
        v_lshlrev_b32 v11, 4, v1
        s_mul_i32 s{S_T0}, s{S_HP}, 1600
        s_mul_i32 s{S_T1}, s{S_WAVE}, 1664
        s_add_u32 m0, s{S_T1}, {L_WPHI}
        s_add_u32 s{S_T4}, s{S_T1}, {L_WPHI + 1024}
        buffer_load_dwordx4 v11, {srd(SRD_PHI)}, s{S_T0} offen lds
        s_mov_b32 m0, s{S_T4}
        s_mov_b32 exec_lo, -1
        s_mov_b32 exec_hi, 15
        s_add_u32 s{S_T0}, s{S_T0}, 1024
        buffer_load_dwordx4 v11, {srd(SRD_PHI)}, s{S_T0} offen lds
        s_mov_b64 exec, -1
        """)
        g.vmi("p0", 6); g.vmi("phi", 2)
        tagged = lambda i: [(x, f"c{i}") for x in self.p1_refill(i)]
        self.interleave(tagged(0), self.capture(self.setup1) + self.capture(self.setup2))
        if self.dist == 3:
            self.interleave(tagged(1), self.capture(self.phase0))
            self.interleave(tagged(2), self.capture(self.phi_frags))
        else:
            self.interleave(tagged(1), self.capture(self.phase0) + self.capture(self.phi_frags))
        self.stamp("filled")

    def setup1(self):
        g = self
        sizes = self.sizes
        for r in (SRD_WS, SRD_DBG):
            g(f"s_mov_b32 s{r+2}, {sizes[r]}\ns_mov_b32 s{r+3}, 0x20000")
        g(f"""
        s_lshl_b32 s{S_T0}, s{S_WAVE}, 8
        s_add_u32 s{S_T0}, s{S_T0}, s2
        s_cmp_lg_u32 s{S_T0}, 256
        s_cbranch_scc1 L_noinit
        v_lshlrev_b32 v11, 7, v1       ; HZ_SKIP_BEGIN
        v_mov_b32 v12, 0
        buffer_store_dword v12, v11, {srd(SRD_WS)}, 0 offen sc1   ; HZ_SKIP_END
L_noinit:
        """)
        for r in (SRD_WO, SRD_G, SRD_U, SRD_D, SRD_OUT):
            g(f"s_mov_b32 s{r+2}, {sizes[r]}\ns_mov_b32 s{r+3}, 0x20000")
        g(f"""
        v_and_b32 v2, 31, v1
        v_lshrrev_b32 v3, 5, v1
        v_mov_b32 v12, 0x3f80
        v_mov_b32 v13, 0
        v_mov_b32 v14, 0x3f80
        v_mov_b32 v15, 0
        v_lshrrev_b32 v9, 6, v0
        v_mul_u32_u24 v9, {SLOT}, v9
        v_mul_u32_u24 v11, 192, v1
        v_add_u32 v9, v9, v11
        ds_write_b128 v9, v[12:15] offset:{16384 + 160}
        v_add_u32 v11, {4*SLOT}, v11
        ds_write_b128 v11, v[12:15] offset:{16384 + 160}
        v_mov_b32 v16, 0
        v_mov_b32 v17, 0
        v_mov_b32 v18, 0
        v_mov_b32 v19, 0
        v_lshlrev_b32 v20, 4, v0
        v_add_u32 v20, {L_KVF}, v20
        ds_write_b128 v20, v[16:19]
        v_lshlrev_b32 v21, 3, v0
        v_add_u32 v21, {L_KVF + 4096}, v21
        ds_write_b64 v21, v[16:17]
        v_mov_b32 v84, 0x3f803f80
        v_mov_b32 v85, 0x3f803f80
        """)
        g(f"""
        v_lshrrev_b32 v9, 1, v2
        v_and_b32 v9, 7, v9
        v_xor_b32 v9, v9, v3
        v_lshlrev_b32 v9, 4, v9
        v_lshl_add_u32 v9, v2, 7, v9
        v_add_u32 v128, s{S_LX}, v9
        v_xor_b32 v129, 32, v128
        v_xor_b32 v130, 64, v128
        v_xor_b32 v131, 96, v128
        v_add_u32 v132, {3*SLOT}, v128
        v_add_u32 v133, {3*SLOT}, v129
        v_add_u32 v134, {3*SLOT}, v130
        v_add_u32 v135, {3*SLOT}, v131
        v_bfe_u32 v9, v1, 2, 2
        v_lshl_add_u32 v9, v3, 3, v9
        v_mul_u32_u24 v9, 192, v9
        v_bfe_u32 v11, v1, 4, 1
        v_and_b32 v12, 3, v1
        v_lshl_add_u32 v11, v11, 2, v12
        v_lshl_add_u32 v9, v11, 3, v9
        v_add_u32 v136, 16384, v9
        v_add_u32 v137, {16384 + 2*SLOT}, v9
        v_add_u32 v138, {16384 + 4*SLOT}, v9
        s_lshl_b32 s{S_T0}, s{S_WAVE}, 6
        v_add_u32 v72, s{S_T0}, v136
        v_add_u32 v73, s{S_T0}, v137
        v_add_u32 v74, s{S_T0}, v138
        """)

    def setup2(self):
        g = self
        self.kv_addresses()
        self.c_addresses()
        self.wq_setup()
        g(f"""
        s_lshl_b32 s{S_T0}, s{S_WAVE}, 5
        v_add_u32 v9, s{S_T0}, v2
        v_mul_u32_u24 v9, 336, v9
        v_add_u32 v9, {L_T}, v9
        v_lshl_add_u32 v9, v3, 3, v9
        v_accvgpr_write_b32 a192, v9
        s_lshr_b32 s{S_T0}, s{S_WAVE}, 1
        s_and_b32 s{S_T4}, s{S_WAVE}, 1
        v_bfe_u32 v9, v1, 2, 2
        v_lshl_add_u32 v9, v3, 3, v9
        v_mul_u32_u24 v9, 336, v9
        v_add_u32 v9, {L_T}, v9
        v_bfe_u32 v11, v1, 4, 1
        v_and_b32 v12, 3, v1
        v_lshl_add_u32 v11, v11, 2, v12
        s_mul_i32 s{S_T2}, s{S_T0}, 12
        s_lshl_b32 s{S_T3}, s{S_T4}, 3
        s_add_u32 s{S_T2}, s{S_T2}, s{S_T3}
        v_add_u32 v12, s{S_T2}, v11
        v_lshl_add_u32 v13, v12, 3, v9
        v_accvgpr_write_b32 a193, v13
        s_mul_i32 s{S_T2}, s{S_T0}, 5
        s_add_u32 s{S_T2}, s{S_T2}, 24
        v_add_u32 v12, s{S_T2}, v11
        s_mul_i32 s{S_T3}, s{S_T0}, -3
        s_add_i32 s{S_T3}, s{S_T3}, 37
        v_mov_b32 v13, s{S_T3}
        v_cmp_eq_u32 vcc, 5, v11
        v_cndmask_b32 v12, v12, v13, vcc
        s_add_i32 s{S_T3}, s{S_T3}, -13
        v_add_u32 v13, s{S_T3}, v11
        v_cmp_lt_u32 vcc, 5, v11
        v_cndmask_b32 v12, v12, v13, vcc
        v_lshl_add_u32 v13, v12, 3, v9
        v_accvgpr_write_b32 a194, v13
        v_mul_u32_u24 v9, 336, v3
        v_lshl_add_u32 v9, v2, 4, v9
        v_accvgpr_write_b32 a195, v9
        s_lshl_b32 s{S_T2}, s{S_HP}, 4
        s_add_u32 s{S_T2}, s{S_T2}, s{S_RB}
        s_mul_i32 s{S_T2}, s{S_T2}, {KVP_SZ}
        s_add_u32 s{S_T2}, s{S_T2}, {WS_KVP}
        s_mul_i32 s{S_T3}, s{S_T0}, 3360
        s_add_u32 s{S_KVS}, s{S_T2}, s{S_T3}
        """)

    def phase0(self):
        g = self
        P = 160
        self.stamp("pre_p0")
        g.vmwait("phi")
        self.stamp("p0data")
        X0, X1, W = P, P + 6, P + 12
        A = 180
        for i in range(7): g(f"v_mov_b32 v{A+i}, 0")
        for d in range(5):
            g(f"""
            v_dot2c_f32_bf16 v{A+0}, v{X0+d}, v84
            v_dot2c_f32_bf16 v{A+1}, v{X0+d}, v{X0+d}
            v_dot2c_f32_bf16 v{A+2}, v{X0+d}, v{W+d}
            v_dot2c_f32_bf16 v{A+3}, v{X1+d}, v84
            v_dot2c_f32_bf16 v{A+4}, v{X1+d}, v{X1+d}
            v_dot2c_f32_bf16 v{A+5}, v{X1+d}, v{W+d}
            v_dot2c_f32_bf16 v{A+6}, v{W+d}, v84
            """)
        g("s_nop 2")
        for ctl in ("row_shr:1 row_mask:0xf bank_mask:0xf bound_ctrl:0", "row_shr:2 row_mask:0xf bank_mask:0xf bound_ctrl:0",
                    "row_shr:4 row_mask:0xf bank_mask:0xf bound_ctrl:0", "row_shr:8 row_mask:0xf bank_mask:0xf bound_ctrl:0",
                    "row_bcast:15 row_mask:0xa bank_mask:0xf", "row_bcast:31 row_mask:0xc bank_mask:0xf"):
            for i in range(7):
                g(f"v_add_f32_dpp v{A+i}, v{A+i}, v{A+i} {ctl}")
        T = 190
        g(f"v_mov_b32 v{T+8}, 0x3acccccd")
        for r in range(2):
            sx, sq, sw = A + 3*r, A + 3*r + 1, A + 3*r + 2
            m, t1, t2 = T + 3*r, T + 3*r + 1, T + 3*r + 2
            g(f"""
            v_mul_f32 v{m}, v{sx}, v{T+8}
            v_mul_f32 v{t1}, v{sq}, v{T+8}
            v_fma_f32 v{t1}, -v{m}, v{m}, v{t1}
            v_max_f32 v{t1}, 0, v{t1}
            """)
            g.rnd_bf16(t1, t1)
            g(f"v_add_f32 v{t1}, 0x3727c5ac, v{t1}")
            g.rnd_bf16(t1, t1)
            g(f"v_sqrt_f32 v{t1}, v{t1}")
            g.rnd_bf16(t1, t1)
            g.rnd_bf16(m, m)
            g(f"""
            v_rcp_f32 v{t1}, v{t1}
            v_fma_f32 v{t2}, -v{m}, v{A+6}, v{sw}
            v_mul_f32 v{t2}, v{t2}, v{t1}
            """)
        g(f"""
        v_mov_b32 v{T+7}, s{S_P0ROW}
        v_add_u32 v{T+9}, 1, v{T+7}
        v_cmp_gt_f32 vcc, v{T+5}, v{T+2}
        v_cndmask_b32 v{T+6}, v{T+2}, v{T+5}, vcc
        v_cndmask_b32 v{T+7}, v{T+7}, v{T+9}, vcc
        s_lshl_b32 s{S_T0}, s{S_WAVE}, 3
        s_add_u32 s{S_T0}, s{S_T0}, {L_P0}
        v_mov_b32 v9, s{S_T0}
        s_mov_b32 exec_lo, 0
        s_brev_b32 exec_hi, 1
        ds_write_b64 v9, {v(T+6,2)}
        s_mov_b64 exec, -1
        """)

    def phi_frags(self):
        g = self
        g(f"""
        v_lshrrev_b32 v9, 3, v2
        v_and_b32 v11, 3, v2
        v_lshl_add_u32 v9, v9, 2, v11
        v_min_u32 v9, 9, v9
        v_bfe_u32 v11, v2, 2, 1
        v_mad_u32_u24 v9, v11, 10, v9
        v_lshlrev_b32 v9, 1, v9
        s_mul_i32 s{S_T0}, s{S_WAVE}, 1664
        s_add_u32 s{S_T0}, s{S_T0}, {L_WPHI}
        v_add_u32 v9, s{S_T0}, v9
        v_mul_u32_u24 v11, 160, v3
        v_add_u32 v11, v11, v9
        """)
        def rd(reg, base, ds):
            for i, d in enumerate(ds):
                g(f"ds_read_u16 v{T0 + i}, v{base} offset:{d}")
            g("s_waitcnt lgkmcnt(0)")
            for i in range(0, len(ds), 2):
                g(f"v_lshl_or_b32 v{reg + i//2}, v{T0+i+1}, 16, v{T0+i}")
        T0 = 200
        rd(140, 11, [40*i for i in range(4)] + [40*(8+i) for i in range(4)] + [40*(16+i) for i in range(4)])
        rd(146, 9, [800 + 40*i for i in range(4)])
        rd(148, 11, [800 + 40*(4+i) for i in range(4)] + [800 + 40*(12+i) for i in range(4)])
        g(f"""
        s_mov_b32 s{S_MA}, 0
        s_mov_b32 s{S_MA+1}, -1
        s_waitcnt lgkmcnt(0)
        v_cndmask_b32 v144, v144, 0, {s2(S_MA)}
        v_cndmask_b32 v145, v145, 0, {s2(S_MA)}
        v_cndmask_b32 v146, 0, v146, {s2(S_MA)}
        v_cndmask_b32 v147, 0, v147, {s2(S_MA)}
        """)

    def p1_reads(self, n):
        c, ks = divmod(n, 4); s = c % 5; b = n % 3
        base = 128 + ks if s < 3 else 132 + ks
        imm = s * SLOT if s < 3 else (s - 3) * SLOT
        out = [f"ds_read_b128 {ac(4*n,4)}, v{base} offset:{imm}"]
        wb = 136 + s // 2
        imm0 = (s % 2) * SLOT + 16 * ks * 192
        for t in range(3):
            for rd in range(2):
                out.append(f"ds_read_b64_tr_b16 {v(92 + 12*b + 4*t + 2*rd, 2)}, v{wb} offset:{imm0 + 4*rd*192 + 64*t}")
        for rd in range(2):
            out.append(f"ds_read_b64_tr_b16 {v(160 + 4*b + 2*rd, 2)}, v{72 + s // 2} offset:{imm0 + 4*rd*192}")
        return out

    def p1_refill(self, i):
        s = i % 5
        nt = self.nt
        grp = []
        grp.append([f"s_add_u32 m0, s{S_LX}, {s*SLOT}", "s_nop 0" if False else f"s_add_u32 s{S_T1}, s{S_LW}, {s*SLOT}",
                    f"buffer_load_dwordx4 v4, {srd(SRD_X)}, s{S_CX} offen{nt} lds"])
        grp.append([f"buffer_load_dwordx4 v5, {srd(SRD_X)}, s{S_CX} offen offset:1024{nt} lds"])
        grp.append([f"buffer_load_dwordx4 v157, {srd(SRD_X)}, s{S_CX} offen offset:2048{nt} lds"])
        grp.append([f"buffer_load_dwordx4 v158, {srd(SRD_X)}, s{S_CX} offen offset:3072{nt} lds",
                    f"s_add_u32 s{S_CX}, s{S_CX}, 128"])
        grp.append([f"s_mov_b32 m0, s{S_T1}", f"s_mov_b64 exec, {s2(S_WM)}",
                    f"buffer_load_dwordx4 v6, {srd(SRD_W)}, s{S_CW} offen{nt} lds", "s_mov_b64 exec, -1"])
        grp.append([f"s_mov_b64 exec, {s2(S_WM+2)}",
                    f"buffer_load_dwordx4 v7, {srd(SRD_W)}, s{S_CW} offen offset:1024{nt} lds", "s_mov_b64 exec, -1"])
        grp.append([f"s_mov_b64 exec, {s2(S_WM+4)}",
                    f"buffer_load_dwordx4 v8, {srd(SRD_W)}, s{S_CW} offen offset:2048{nt} lds", "s_mov_b64 exec, -1",
                    f"s_add_u32 s{S_CW}, s{S_CW}, {64*3840}", f"s_cmp_eq_u32 s{S_CX}, s{S_CC}",
                    f"s_cselect_b32 s{S_CX}, s{S_XB}, s{S_CX}", f"s_cselect_b32 s{S_CW}, s{S_WB}, s{S_CW}"])
        return grp

    def wq_groups(self):
        grp = []
        for m in range(13):
            q, pt = divmod(m, 5)
            gl = [f"s_add_u32 m0, s{S_WQL}, {m*1024}", f"s_add_u32 s{S_T2}, s{S_WQG}, {q*64*3840}"]
            if m == 12:
                gl += ["s_mov_b32 exec_hi, 0", f"buffer_load_dwordx4 v{152+pt}, {srd(SRD_W)}, s{S_T2} offen lds", "s_mov_b64 exec, -1"]
            else:
                gl += [f"buffer_load_dwordx4 v{152+pt}, {srd(SRD_W)}, s{S_T2} offen lds"]
            grp.append(gl)
        return grp

    def wq_setup(self):
        g = self
        for pt in range(5):
            g(f"""
            v_add_u32 v9, {64*pt}, v1
            v_mul_u32_u24 v11, 52429, v9
            v_lshrrev_b32 v11, 18, v11
            v_mul_u32_u24 v12, 5, v11
            v_sub_u32 v12, v9, v12
            v_mul_u32_u24 v11, 3840, v11
            v_lshl_add_u32 v{152+pt}, v12, 4, v11
            """)
        g(f"""
        s_mul_i32 s{S_WQL}, s{S_WAVE}, 12800
        s_add_u32 s{S_WQL}, s{S_WQL}, {L_WQ}
        s_mul_i32 s{S_WQG}, s{S_WAVE}, {160*3840}
        s_mul_i32 s{S_T0}, s{S_HP}, 80
        s_add_u32 s{S_WQG}, s{S_WQG}, s{S_T0}
        """)

    def pass1(self):
        g = self
        self.dbg_span(2, True); self.dbg_span(7, False)
        g.vmwait("c0")
        g("s_waitcnt lgkmcnt(0)\ns_barrier")
        self.stamp("c0")
        for x in self.p1_reads(0): g(x)
        g("s_waitcnt lgkmcnt(6)")
        for x in self.p1_reads(1): g(x)
        g(f"""
        s_cmp_lg_u32 s{S_WAVE}, 0
        s_cbranch_scc1 L_nopub
        v_mov_b32 v9, {L_P0}           ; HZ_SKIP_BEGIN
        ds_read_b128 v[172:175], v9
        ds_read_b128 v[176:179], v9 offset:16
        s_lshl_b32 s{S_T0}, s2, 3
        s_add_u32 s{S_T0}, s{S_T0}, {WS_RMAX}
        v_mov_b32 v11, s{S_T0}
        s_waitcnt lgkmcnt(0)
        v_cmp_gt_f32 vcc, v174, v172
        v_cndmask_b32 v172, v172, v174, vcc
        v_cndmask_b32 v173, v173, v175, vcc
        v_cmp_gt_f32 vcc, v176, v172
        v_cndmask_b32 v172, v172, v176, vcc
        v_cndmask_b32 v173, v173, v177, vcc
        v_cmp_gt_f32 vcc, v178, v172
        v_cndmask_b32 v172, v172, v178, vcc
        v_cndmask_b32 v173, v173, v179, vcc
        s_mov_b64 exec, 1
        buffer_store_dwordx2 v[172:173], v11, {srd(SRD_WS)}, 0 offen sc1
        s_mov_b64 exec, -1             ; HZ_SKIP_END
L_nopub:
        """)
        pend = []
        for n in range(40):
            c, ks = divmod(n, 4); b = n % 3
            if ks == 0:
                if c + self.dist <= 9:
                    pend += self.p1_refill(c + self.dist); self.vmq = getattr(self, "vmq", []) + [f"c{c+self.dist}"] * 7
                if c == 3:
                    pend.append(self.touch_wq()); self.vmq.append(None)
                if c == 6:
                    pend.append([f"v_mov_b32 v75, 240", f"buffer_load_dword v75, v75, {srd(SRD_DBG)}, 0 offen sc1"]); self.vmq.append("rdy")
            if ks == 2 and c < 9:
                g(f"s_waitcnt lgkmcnt(6)")
                g.vmwait(f"c{c+1}")
                g("s_barrier")
                self.stamp(f"B{c}")
                if c == 0:
                    g(f"""
                    s_cmp_lg_u32 s2, 0
                    s_cbranch_scc1 L_noready
                    s_cmp_lg_u32 s{S_WAVE}, 1
                    s_cbranch_scc1 L_noready
                    v_mov_b32 v11, 240             ; HZ_SKIP_BEGIN
                    v_mov_b32 v12, 1
                    s_mov_b64 exec, 1
                    buffer_store_dword v12, v11, {srd(SRD_DBG)}, 0 offen sc1
                    s_mov_b64 exec, -1             ; HZ_SKIP_END
L_noready:
                    """)
                if c == self.dist - 1:
                    g(f"""
                    s_cmp_lg_u32 s{S_WAVE}, 0
                    s_cbranch_scc1 L_noatom
                    s_and_b32 s{S_T0}, s2, 3       ; HZ_SKIP_BEGIN
                    s_lshl_b32 s{S_T0}, s{S_T0}, 6
                    v_mov_b32 v11, s{S_T0}
                    v_mov_b32 v12, 1
                    s_mov_b64 exec, 1
                    buffer_atomic_add v12, v11, {srd(SRD_DBG)}, 0 offen sc1
                    s_mov_b64 exec, -1             ; HZ_SKIP_END
L_noatom:
                    """)
            elif n == 39: g("s_waitcnt lgkmcnt(0)")
            else: g("s_waitcnt lgkmcnt(6)")
            rd = self.p1_reads(n + 2) if n + 2 < 40 else []
            if "nords" in self.exp: rd = []
            XP = ac(4*n, 4)
            WF = lambda t: 92 + 12*b + 4*t
            first = (n == 0)
            def dma():
                if pend:
                    grp = pend.pop(0); tag = self.vmq.pop(0)
                    if "nodma" not in self.exp:
                        for x in grp: g(x)
                    if tag: g.vmi(tag)
            cin = lambda r, k: "0" if first else v(r, k)
            g(f"v_mfma_f32_32x32x16_bf16 v[16:31], {v(WF(0),4)}, {XP}, {cin(16,16)}")
            for x in rd[0:3]: g(x)
            dma()
            g(f"v_mfma_f32_32x32x16_bf16 v[32:47], {v(WF(1),4)}, {XP}, {cin(32,16)}")
            for x in rd[3:6]: g(x)
            g(f"v_mfma_f32_32x32x16_bf16 v[48:63], {v(WF(2),4)}, {XP}, {cin(48,16)}")
            for x in rd[6:9]: g(x)
            dma()
            if "nosq" not in self.exp:
                g(f"v_mfma_f32_4x4x4_16b_bf16 v[64:67], {ac(4*n,2)}, {ac(4*n,2)}, {cin(64,4)}")
                g(f"v_mfma_f32_4x4x4_16b_bf16 v[68:71], {ac(4*n+2,2)}, {ac(4*n+2,2)}, {cin(68,4)}")
            if "nocs" not in self.exp:
                g(f"v_mfma_f32_4x4x4_16b_bf16 v[76:79], {v(160+4*b,2)}, v[84:85], {cin(76,4)}")
                g(f"v_mfma_f32_4x4x4_16b_bf16 v[80:83], {v(160+4*b+2,2)}, v[84:85], {cin(80,4)}")
            if c == 3 or c == 6: dma()
        while pend:
            grp = pend.pop(0); tag = self.vmq.pop(0)
            for x in grp: g(x)
            if tag: g.vmi(tag)
        self.stamp("p1end")

    def touch_wq(self):
        return [f"s_cmp_lg_u32 s{S_WAVE}, 2", "s_cbranch_scc1 L_notq",
                "v_mul_u32_u24 v9, 21846, v1 ; HZ_SKIP_BEGIN", "v_lshrrev_b32 v9, 16, v9", "v_mul_u32_u24 v10, 3, v9", "v_sub_u32 v10, v1, v10",
                f"s_mul_i32 s{S_T0}, s{S_SLOT}, 20", f"v_add_u32 v9, s{S_T0}, v9", "v_mul_u32_u24 v9, 3840, v9", "v_lshl_add_u32 v9, v10, 7, v9",
                f"s_lshr_b32 s{S_T0}, s{S_XCD}, 1", f"s_mul_i32 s{S_T0}, s{S_T0}, 320", f"s_and_b32 s{S_T0}, s{S_T0}, 0xffffff80",
                "s_mov_b32 exec_hi, 0x0fffffff", f"buffer_load_dword v159, v9, {srd(SRD_W)}, s{S_T0} offen", "s_mov_b64 exec, -1 ; HZ_SKIP_END",
                "L_notq:"]

    def stats_and_colsum(self, first):
        g = self
        csoff = 0 if first else 128 * 4
        for i in range(4): g(f"v_add_f32 v{76+i}, v{76+i}, v{80+i}")
        for i in range(4): g(f"v_mov_b32 v{80+i}, v{76+i}")
        for i in range(4): g(f"v_permlane32_swap_b32 v{76+i}, v{80+i}")
        for i in range(4): g(f"v_add_f32 v{76+i}, v{76+i}, v{80+i}")
        g(f"""
        s_lshl_b32 s{S_T0}, s{S_WAVE}, 7
        s_add_u32 s{S_T0}, s{S_T0}, {L_CS + csoff}
        v_lshl_add_u32 v9, v1, 2, s{S_T0}
        s_mov_b32 exec_lo, 0x11111111
        s_mov_b32 exec_hi, 0
        ds_write_b128 v9, v[76:79]
        s_mov_b64 exec, -1
        """)
        if first:
            for i in range(4): g(f"v_add_f32 v{64+i}, v{64+i}, v{68+i}")
            for i in range(1, 4):
                m = 0x11111111 << i
                g(f"s_mov_b32 s{S_MB}, {hex(m)}\ns_mov_b32 s{S_MB+1}, {hex(m)}\nv_cndmask_b32 v64, v64, v{64+i}, {s2(S_MB)}")
            g(f"""
            v_mov_b32 v65, v64
            v_mov_b32 v90, 0x3acccccd
            s_nop 0
            v_permlane32_swap_b32 v64, v65
            v_add_f32 v64, v64, v65
            v_mul_f32 v66, v56, v90
            v_mul_f32 v64, v64, v90
            v_fma_f32 v64, -v66, v66, v64
            v_max_f32 v64, 0, v64
            """)
            g.rnd_bf16(64, 64)
            g("v_add_f32 v64, 0x3727c5ac, v64")
            g.rnd_bf16(64, 64)
            g("v_sqrt_f32 v64, v64")
            g.rnd_bf16(90, 64)
            g.rnd_bf16(91, 66)
            g("v_rcp_f32 v88, v90\nv_sub_f32 v86, 0, v91")
        g("s_waitcnt lgkmcnt(0)\ns_barrier")
        self.stamp("csbar" if first else "csbar2")

    def normalise(self, quads, csoff):
        g = self
        g(f"v_lshlrev_b32 v9, 4, v3\nv_add_u32 v9, {L_CS + csoff}, v9")
        for i, (r, col) in enumerate(quads):
            g(f"ds_read_b128 {v(160+4*i,4)}, v9 offset:{col*4}")
        for i, (r, col) in enumerate(quads):
            g(f"s_waitcnt lgkmcnt({len(quads)-1-i})")
            for hh in range(2):
                g(f"v_pk_fma_f32 {v(r+2*hh,2)}, {v(160+4*i+2*hh,2)}, v[86:87], {v(r+2*hh,2)} op_sel_hi:[1,0,1]")
            for hh in range(2):
                g(f"v_pk_mul_f32 {v(r+2*hh,2)}, {v(r+2*hh,2)}, v[88:89] op_sel_hi:[1,0]")

    def softmax(self, H0, H1):
        g = self
        P = (92, 108)
        L = 0x3fb8aa3b
        g(f"v_mov_b32 v124, {hex(L)}\nv_mov_b32 v126, {hex(L | 0x80000000)}")
        for H in (H0, H1): g(f"v_mov_b32 v{H+10}, 0\nv_mov_b32 v{H+11}, 0")
        E = (160, 180)
        MX = (200, 204)
        for a in range(2):
            p, mx = P[a], MX[a]
            g(f"""
            v_max3_f32 v{mx}, v{p}, v{p+1}, v{p+2}
            v_min3_f32 v{mx+1}, v{p}, v{p+1}, v{p+2}
            v_max3_f32 v{mx}, v{mx}, v{p+3}, v{p+4}
            v_min3_f32 v{mx+1}, v{mx+1}, v{p+3}, v{p+4}
            v_max3_f32 v{mx}, v{mx}, v{p+5}, v{p+6}
            v_min3_f32 v{mx+1}, v{mx+1}, v{p+5}, v{p+6}
            v_max3_f32 v{mx}, v{mx}, v{p+7}, v{p+8}
            v_min3_f32 v{mx+1}, v{mx+1}, v{p+7}, v{p+8}
            v_max_f32 v{mx}, v{mx}, v{p+9}
            v_min_f32 v{mx+1}, v{mx+1}, v{p+9}
            v_sub_f32 v{mx+1}, 0, v{mx+1}
            """)
        for a in range(2): g(f"v_permlane32_swap_b32 v{MX[a]}, v{MX[a]+1}")
        for a in range(2): g(f"v_max_f32 v{MX[a]}, v{MX[a]}, v{MX[a]+1}")
        for a in range(2): g(f"v_mov_b32 v{MX[a]+1}, v{MX[a]}")
        for a in range(2): g(f"v_permlane32_swap_b32 v{MX[a]}, v{MX[a]+1}")
        for a in range(2):
            mx = MX[a]
            g(f"v_mul_f32 v{mx+2}, v{mx+1}, v126\nv_mul_f32 v{mx}, v{mx}, v126")
        for a in range(2):
            p, mx, e = P[a], MX[a], E[a]
            for i in range(5):
                g(f"v_pk_fma_f32 {v(e+2*i,2)}, {v(p+2*i,2)}, v[124:125], {v(mx,2)} op_sel_hi:[1,0,0]")
                g(f"v_pk_fma_f32 {v(e+10+2*i,2)}, {v(p+2*i,2)}, v[126:127], {v(mx+2,2)} op_sel_hi:[1,0,0]")
        for a in range(2):
            for i in range(20): g(f"v_exp_f32 v{E[a]+i}, v{E[a]+i}")
        SM = (208, 214)
        for a in range(2):
            e, sm = E[a], SM[a]
            g(f"v_pk_add_f32 {v(sm,2)}, {v(e,2)}, {v(e+2,2)}\nv_pk_add_f32 {v(sm+2,2)}, {v(e+10,2)}, {v(e+12,2)}")
        for i in range(2, 5):
            for a in range(2):
                e, sm = E[a], SM[a]
                g(f"v_pk_add_f32 {v(sm,2)}, {v(sm,2)}, {v(e+2*i,2)}\nv_pk_add_f32 {v(sm+2,2)}, {v(sm+2,2)}, {v(e+10+2*i,2)}")
        for a in range(2):
            sm = SM[a]
            g(f"v_add_f32 v{sm}, v{sm}, v{sm+1}\nv_add_f32 v{sm+1}, v{sm+2}, v{sm+3}")
        for a in range(2): g(f"v_permlane32_swap_b32 v{SM[a]}, v{SM[a]+1}")
        for a in range(2): g(f"v_add_f32 v{SM[a]}, v{SM[a]}, v{SM[a]+1}")
        for a in range(2): g(f"v_mov_b32 v{SM[a]+2}, v{SM[a]}")
        for a in range(2): g(f"v_permlane32_swap_b32 v{SM[a]}, v{SM[a]+2}")
        for a in range(2): g(f"v_rcp_f32 v{SM[a]}, v{SM[a]}\nv_rcp_f32 v{SM[a]+2}, v{SM[a]+2}")
        for a, H in ((0, H0), (1, H1)):
            e, sm = E[a], SM[a]
            for i in range(5):
                g(f"v_pk_mul_f32 {v(e+2*i,2)}, {v(e+2*i,2)}, {v(sm,2)} op_sel_hi:[1,0]")
                g(f"v_pk_mul_f32 {v(e+10+2*i,2)}, {v(e+10+2*i,2)}, {v(sm+2,2)} op_sel_hi:[1,0]")
            for i in range(10):
                g(f"v_cvt_pk_bf16_f32 v{H+i}, v{e+2*i}, v{e+2*i+1}")

    def norm_reads(self, quads, csoff, r0):
        g = self
        for i, (r, col) in enumerate(quads):
            g(f"ds_read_b128 {v(r0+4*i,4)}, v9 offset:{col*4}")

    def norm_apply(self, quads, r0, after):
        g = self
        for i, (r, col) in enumerate(quads):
            g(f"s_waitcnt lgkmcnt({len(quads)-1-i+after})")
            for hh in range(2):
                g(f"v_pk_fma_f32 {v(r+2*hh,2)}, {v(r0+4*i+2*hh,2)}, v[86:87], {v(r+2*hh,2)} op_sel_hi:[1,0,1]")
            for hh in range(2):
                g(f"v_pk_mul_f32 {v(r+2*hh,2)}, {v(r+2*hh,2)}, v[88:89] op_sel_hi:[1,0]")

    def featmap_mfma(self, PK):
        g = self
        g(f"v_mfma_f32_32x32x16_bf16 v[92:107], v[140:143], {v(PK,4)}, 0")
        g(f"v_mfma_f32_32x32x16_bf16 v[108:123], v[146:149], {v(PK+4,4)}, 0")
        g(f"v_mfma_f32_32x32x8_bf16 v[92:107], v[144:145], {v(PK+4,2)}, v[92:107]")
        g(f"v_mfma_f32_32x32x8_bf16 v[108:123], v[150:151], {v(PK+8,2)}, v[108:123]")

    def k_epilogue(self):
        g = self
        self.stats_and_colsum(True)
        PK, PV = 244, 210
        kq = [(16+4*j, 8*j) for j in range(4)] + [(32, 32)]
        vq = [(36, 40), (40, 48), (44, 56), (48, 64), (52, 72)]
        def part1():
            g(f"v_lshlrev_b32 v9, 4, v3\nv_add_u32 v9, {L_CS}, v9")
            self.norm_reads(kq, 0, 160); self.norm_reads(vq, 0, 180)
            self.norm_apply(kq, 160, 5)
            for i in range(10): g(f"v_cvt_pk_bf16_f32 v{PK+i}, v{16+2*i}, v{16+2*i+1}")
            self.featmap_mfma(PK)
            self.norm_apply(vq, 180, 0)
            self.dump("kv_norm", list(range(16, 64)) + [86, 88, 90, 91])
            g(f"""
            v_accvgpr_read_b32 v11, a192
            v_mov_b32 v14, 0x3f80
            v_mov_b32 v15, 0
            v_lshl_add_u32 v12, v3, 4, v11
            v_lshl_add_u32 v13, v3, 3, v11
            ds_write_b64 v12, v[14:15] offset:{34*8}
            """)
            for i, (r, col) in enumerate(vq):
                g(f"v_cvt_pk_bf16_f32 v{PV+2*i}, v{r}, v{r+1}\nv_cvt_pk_bf16_f32 v{PV+2*i+1}, v{r+2}, v{r+3}")
                g(f"ds_write_b64 v11, {v(PV+2*i,2)} offset:{192 + 16*i}")
            self.stamp("prefm")
            self.softmax(220, 232)
            self.stamp("postfm")
        self.interleave([(x, "wq") for x in self.wq_groups()], self.capture(part1))
        self.dump("phik", list(range(220, 244)))
        for a, H in ((0, 220), (1, 232)):
            for st in range(3):
                g(f"ds_write_b128 v13, {v(H+4*st,4)} offset:{a*96 + st*32}")
        g("v_accvgpr_read_b32 v160, a193\nv_accvgpr_read_b32 v161, a194\nv_accvgpr_read_b32 v9, a195")
        g(f"v_cmp_gt_u32 vcc, 21, v2\ns_and_b32 s{S_T1}, s{S_WAVE}, 1\ns_mov_b64 {s2(S_MA)}, vcc")
        g("s_waitcnt lgkmcnt(0)\ns_barrier")
        self.stamp("Tbar")
        A0, B0 = 164, 196
        for ks in range(8):
            for rd in range(2):
                g(f"ds_read_b64_tr_b16 {v(A0+4*ks+2*rd,2)}, v160 offset:{(16*ks+4*rd)*336}")
                g(f"ds_read_b64_tr_b16 {v(B0+4*ks+2*rd,2)}, v161 offset:{(16*ks+4*rd)*336}")
            if ks >= 2:
                k = ks - 2
                g("s_waitcnt lgkmcnt(8)")
                cin = "0" if k == 0 else "v[92:107]"
                g(f"v_mfma_f32_32x32x16_bf16 v[92:107], {v(A0+4*k,4)}, {v(B0+4*k,4)}, {cin}")
        g("s_waitcnt lgkmcnt(4)")
        g(f"v_mfma_f32_32x32x16_bf16 v[92:107], {v(A0+24,4)}, {v(B0+24,4)}, v[92:107]")
        g("s_waitcnt lgkmcnt(0)")
        g(f"v_mfma_f32_32x32x16_bf16 v[92:107], {v(A0+28,4)}, {v(B0+28,4)}, v[92:107]")
        g(f"""
        s_cmp_lg_u32 s{S_T1}, 0
        s_cbranch_scc1 L_kvft1
        s_mov_b64 exec, {s2(S_MA)}     ; HZ_SKIP_BEGIN
        buffer_store_dwordx4 v[92:95], v9, {srd(SRD_WS)}, s{S_KVS} offen sc1
        buffer_store_dwordx4 v[96:99], v9, {srd(SRD_WS)}, s{S_KVS} offen offset:672 sc1
        buffer_store_dwordx4 v[100:103], v9, {srd(SRD_WS)}, s{S_KVS} offen offset:1344 sc1
        buffer_store_dwordx4 v[104:107], v9, {srd(SRD_WS)}, s{S_KVS} offen offset:2016 sc1
        s_branch L_kvdone              ; HZ_SKIP_END
L_kvft1:
        s_and_b32 s{S_MA}, s{S_MA}, 0x1fffff      ; HZ_SKIP_BEGIN
        s_mov_b32 s{S_MA+1}, 0
        s_mov_b64 exec, {s2(S_MA)}
        buffer_store_dwordx4 v[92:95], v9, {srd(SRD_WS)}, s{S_KVS} offen offset:2688 sc1
        buffer_store_dwordx4 v[96:99], v9, {srd(SRD_WS)}, s{S_KVS} offen offset:3024 sc1   ; HZ_SKIP_END
L_kvdone:
        s_mov_b64 exec, -1
        """)
        self.stamp("kvstore")

    def dbg_span(self, word, invert):
        if "span" not in self.exp: return
        g = self
        lab = f"L_span{word}"
        g(f"""
        s_and_b32 s74, s2, 15
        s_cmp_lg_u32 s74, 0
        s_cbranch_scc1 {lab}
        s_cmp_lg_u32 s{S_WAVE}, 0
        s_cbranch_scc1 {lab}
        s_memrealtime s[74:75]
        s_waitcnt lgkmcnt(0)
        {"s_not_b32 s74, s98" if invert else "s_nop 0"}
        v_mov_b32 v9, {word*4}
        v_mov_b32 v10, s74
        s_mov_b64 exec, 1
        buffer_atomic_umax v10, v9, {srd(SRD_DBG)}, 0 offen sc1
        s_mov_b64 exec, -1
{lab}:
        """)

    def finish(self):
        g = self
        self.dbg_span(3, False)
        if self.stamps:
            g("s_waitcnt lgkmcnt(0)")
            g(f"""
            s_cmp_lg_u32 s{S_WAVE}, 0
            s_cbranch_scc1 L_nots
            s_mul_i32 s{S_T0}, s2, 64
            s_add_u32 s{S_T0}, s{S_T0}, {WS_TS}
            s_mov_b64 exec, 1
            v_mov_b32 v9, 0
            """)
            for i in range(self.nstamp):
                g(f"v_mov_b32 v11, s{S_TS+2*i}\nbuffer_store_dword v11, v9, {srd(SRD_WS)}, s{S_T0} offen offset:{4*i}")
            g("L_nots:")
        g("L_exit:\ns_endpgm\nL_code_end:")

    def build(self):
        g = self
        self.prologue()
        self.dump("phifrag", list(range(140, 152)))
        self.pass1()
        self.dump("acc1", list(range(16, 84)))
        if self.stop != "pass1":
            self.k_epilogue()
        if self.stop not in ("pass1", "kv"):
            self.rest()
        self.finish()

    def text(self):
        body, nins = hazard.fix([l.strip() for l in self.a.lines])
        hdr = open("parallel_sum__linear_kernel_hedgehog__moe_arch_mod__prompt.s.ref").read().split("\n")
        top = [l for l in hdr if l.startswith(";") and "@launch" not in l and "Override" not in l and "grid=ceil" not in l]
        out = "\n".join(top) + "\n"
        out += f"; @launch grid=(256,1,1) block=(256,1,1) lds={LDS_SIZE}\n"
        out += '.amdgcn_target "amdgcn-amd-amdhsa--gfx950"\n.text\n' + kernel_header(NAME)
        out += "\n".join("    " + l if not l.endswith(":") else l for l in body if l) + "\n"
        out += f""".section .rodata,"a"
.p2align 6
.amdhsa_kernel {NAME}
  .amdhsa_next_free_vgpr 512
  .amdhsa_next_free_sgpr 102
  .amdhsa_accum_offset 256
  .amdhsa_group_segment_fixed_size 0
  .amdhsa_kernarg_size 96
  .amdhsa_user_sgpr_count 2
  .amdhsa_user_sgpr_kernarg_segment_ptr 1
  .amdhsa_system_sgpr_workgroup_id_x 1
  .amdhsa_float_denorm_mode_32 3
.end_amdhsa_kernel
"""
        return out, nins


if __name__ == "__main__":
    import argparse, json
    import gen_rest
    ap = argparse.ArgumentParser()
    ap.add_argument("-o", default="k.s")
    ap.add_argument("--stop", default=None)
    ap.add_argument("--dump", default="")
    ap.add_argument("--stamps", default="")
    ap.add_argument("--notouch", action="store_true")
    ap.add_argument("--exp", default="")
    args = ap.parse_args()
    G = gen_rest.Full(stop=args.stop, dumps=[d for d in args.dump.split(",") if d], stamps=set(args.stamps.split(",")) if args.stamps else False, touch=not args.notouch, exp=[e for e in args.exp.split(",") if e])
    G.build()
    t, nins = G.text()
    open(args.o, "w").write(t)
    json.dump({"dumps": G.dump_index, "stamps": getattr(G, "stamp_names", [])}, open(args.o + ".json", "w"))
    print("wrote", args.o, "lines", t.count("\n"), "nops inserted", nins)
```

```python
from gen import *

S_RB64, S_CB, S_MU, S_RSEL, S_ROW0 = 20, 21, 22, 23, 12
S_QC = 13
S_WOG, S_WOL = 14, 15
S_WOS = 76
S_XO = 85
S_KVE, S_KVB = 79, 75
S_KVA, S_OS = 78, 84
CNT_KV, CNT_O, CNT_M = 0, 16, 32
SPIN_LIMIT = 200000

class Full(Gen):
    def poll(self, name, srd_n, vaddr_setup, target, nl=1):
        g = self
        lab = f"L_poll_{name}"
        g(vaddr_setup)
        g(f"s_mov_b32 exec_lo, {(1 << nl) - 1}\ns_mov_b32 exec_hi, 0")
        g(f"""
        s_mov_b32 s74, 0
{lab}:
        buffer_load_dword v10, v9, {srd(srd_n)}, 0 offen sc1
        s_add_u32 s74, s74, 1
        s_cmp_gt_u32 s74, {SPIN_LIMIT}
        s_cbranch_scc1 {lab}_out
        s_waitcnt vmcnt(0)
        v_cmp_ne_u32 vcc, {target}, v10
        s_cbranch_vccnz {lab}
{lab}_out:
        s_waitcnt vmcnt(0)
        s_mov_b64 exec, -1
        """)

    def poll_issue(self, srd_n, vaddr_setup, nl=1):
        g = self
        g(vaddr_setup)
        g(f"s_mov_b32 exec_lo, {(1 << nl) - 1}\ns_mov_b32 exec_hi, 0\nbuffer_load_dword v239, v238, {srd(srd_n)}, 0 offen sc1\ns_mov_b64 exec, -1")

    def poll_finish(self, name, srd_n, target, nl=1):
        g = self
        lab = f"L_poll_{name}"
        g(f"""
        s_mov_b32 exec_lo, {(1 << nl) - 1}
        s_mov_b32 exec_hi, 0
        s_mov_b32 s74, 0
        s_waitcnt vmcnt(0)
        v_cmp_ne_u32 vcc, {target}, v239
        s_cbranch_vccz {lab}_out
{lab}:
        buffer_load_dword v239, v238, {srd(srd_n)}, 0 offen sc1
        s_add_u32 s74, s74, 1
        s_cmp_gt_u32 s74, {SPIN_LIMIT}
        s_cbranch_scc1 {lab}_out
        s_waitcnt vmcnt(0)
        v_cmp_ne_u32 vcc, {target}, v239
        s_cbranch_vccnz {lab}
{lab}_out:
        s_waitcnt vmcnt(0)
        s_mov_b64 exec, -1
        """)

    def signal(self, name, cnt_sgpr_expr, drain=True):
        g = self
        if drain: g("s_waitcnt vmcnt(0)")
        g(f"""
        s_barrier
        s_cmp_lg_u32 s{S_WAVE}, 0
        s_cbranch_scc1 L_nosig_{name}
        """)
        g(cnt_sgpr_expr + " ; HZ_SKIP_BEGIN")
        g(f"""
        s_lshl_b32 s{S_T0}, s{S_T0}, 7
        v_mov_b32 v9, s{S_T0}
        v_mov_b32 v10, 1
        s_mov_b64 exec, 1
        buffer_atomic_add v10, v9, {srd(SRD_WS)}, 0 offen sc1
        s_mov_b64 exec, -1         ; HZ_SKIP_END
L_nosig_{name}:
        """)

    def publish_kv(self):
        g = self
        g(f"""
        s_cmp_lg_u32 s{S_HP}, 0
        s_cbranch_scc1 L_nostats
        s_lshl_b32 s{S_T0}, s{S_RB}, 7       ; HZ_SKIP_BEGIN
        s_lshl_b32 s{S_T1}, s{S_WAVE}, 5
        s_add_u32 s{S_T0}, s{S_T0}, s{S_T1}
        s_lshl_b32 s{S_T0}, s{S_T0}, 3
        s_add_u32 s{S_T0}, s{S_T0}, {WS_STATS}
        v_lshlrev_b32 v9, 3, v2
        v_mov_b32 v10, v91
        v_mov_b32 v11, v90
        s_mov_b32 exec_hi, 0
        buffer_store_dwordx2 v[10:11], v9, {srd(SRD_WS)}, s{S_T0} offen sc1
        s_mov_b64 exec, -1                   ; HZ_SKIP_END
L_nostats:
        """)
        g(f"""
        v_mul_u32_u24 v9, 6554, v1
        v_lshrrev_b32 v9, 16, v9
        v_mul_u32_u24 v10, 10, v9
        v_sub_u32 v10, v1, v10
        v_mul_u32_u24 v11, 1280, v9
        v_lshl_add_u32 v11, v10, 7, v11
        s_lshl_b32 s{S_T0}, s{S_SLOT}, 2
        s_add_u32 s{S_T0}, s{S_T0}, s{S_WAVE}
        s_mul_i32 s{S_T0}, s{S_T0}, {5*1280}
        s_mov_b32 exec_hi, 0x3ffff
        buffer_load_dword v159, v11, {srd(SRD_WO)}, s{S_T0} offen
        s_mov_b64 exec, -1
        s_waitcnt vmcnt(1)
        """)
        g(f"""
        v_readfirstlane_b32 s{S_T0}, v75
        s_cmp_eq_u32 s{S_T0}, 1
        s_cbranch_scc1 L_isready
        """)
        self.poll("ready", SRD_DBG, "v_mov_b32 v9, 240 ; HZ_SKIP_BEGIN", 1)
        g("s_nop 0 ; HZ_SKIP_END\nL_isready:")
        self.signal("kv", f"s_add_u32 s{S_T0}, s{S_HP}, {CNT_KV}", drain=False)
        self.stamp("kvsig")


    def moe_roles(self):
        g = self
        g(f"""
        s_lshr_b32 s{S_T0}, s{S_XCD}, 1
        s_lshr_b32 s{S_T1}, s{S_SLOT}, 3
        s_add_u32 s{S_T0}, s{S_T0}, s{S_T1}
        s_lshr_b32 s{S_T1}, s{S_SLOT}, 4
        s_lshl_b32 s{S_T1}, s{S_T1}, 3
        s_and_b32 s{S_T2}, s{S_SLOT}, 7
        s_add_u32 s{S_T1}, s{S_T1}, s{S_T2}
        s_mul_i32 s{S_MU}, s{S_XCD}, 14
        s_add_u32 s{S_MU}, s{S_MU}, s{S_T1}
        s_cmp_lt_u32 s{S_T1}, 14
        s_cselect_b32 s{S_MU}, s{S_MU}, 255
        s_bitcmp1_b32 s{S_T0}, 0
        s_cselect_b32 s{S_MU}, 255, s{S_MU}
        s_lshr_b32 s{S_T0}, s{S_SLOT}, 3
        s_lshl_b32 s{S_T1}, s{S_XCD}, 2
        s_add_u32 s{S_RB64}, s{S_T0}, s{S_T1}
        s_and_b32 s{S_CB}, s{S_SLOT}, 7
        s_lshl_b32 s{S_ROW0}, s{S_RB64}, 6
        s_lshl_b32 s{S_T0}, s{S_WAVE}, 4
        s_add_u32 s{S_ROW0}, s{S_ROW0}, s{S_T0}
        s_mul_i32 s{S_T1}, s{S_CB}, 160
        s_mov_b32 s{S_WOG}, s{S_T1}
        s_mul_i32 s{S_T0}, s{S_ROW0}, 1280
        s_add_u32 s{S_XO}, s{S_T0}, s{S_T1}
        s_lshl_b32 s{S_T0}, s{S_RB}, 1
        s_lshr_b32 s{S_T1}, s{S_WAVE}, 1
        s_add_u32 s{S_T0}, s{S_T0}, s{S_T1}
        s_mul_i32 s{S_T0}, s{S_T0}, 81920
        s_and_b32 s{S_T1}, s{S_WAVE}, 1
        s_mul_i32 s{S_T1}, s{S_T1}, 40960
        s_add_u32 s{S_T0}, s{S_T0}, s{S_T1}
        s_lshr_b32 s{S_T1}, s{S_HP}, 2
        s_mul_i32 s{S_T1}, s{S_T1}, 5120
        s_add_u32 s{S_T0}, s{S_T0}, s{S_T1}
        s_and_b32 s{S_T1}, s{S_HP}, 3
        s_lshl_b32 s{S_T1}, s{S_T1}, 8
        s_add_u32 s{S_T0}, s{S_T0}, s{S_T1}
        s_add_u32 s{S_OS}, s{S_T0}, {WS_O}
        """)

    WD = 160
    def moe_load_block(self, k):
        g = self
        lab = f"L_nomoeld{k}"
        g(f"s_cmp_ge_u32 s{S_MU}, 108\ns_cbranch_scc1 {lab}")
        if k == 0:
            g(f"""
            v_lshrrev_b32 v134, 1, v1                ; HZ_SKIP_BEGIN
            v_mul_u32_u24 v134, 3456, v134
            v_and_b32 v10, 1, v1
            v_lshl_add_u32 v134, v10, 4, v134
            v_lshlrev_b32 v135, 3, v0
            """)
        else:
            g("s_nop 0 ; HZ_SKIP_BEGIN")
        g(f"""
        s_and_b32 s{S_T0}, s{S_MU}, 3
        s_add_u32 s{S_T0}, s{S_T0}, {k}
        s_cmp_ge_u32 s{S_T0}, 5
        s_cselect_b32 s{S_T1}, 5, 0
        s_sub_u32 s{S_T3}, s{S_T0}, s{S_T1}
        s_mul_i32 s{S_T1}, s{S_WAVE}, 5
        s_add_u32 s{S_T3}, s{S_T3}, s{S_T1}
        s_mul_i32 s{S_T2}, s{S_T3}, {32*3456}
        s_lshl_b32 s{S_T0}, s{S_MU}, 5
        s_add_u32 s{S_T2}, s{S_T2}, s{S_T0}
        s_lshl_b32 s{S_T1}, s{S_T3}, 10
        s_add_u32 m0, s{S_T1}, {L_G}
        s_mul_i32 s{S_T0}, s{S_MU}, {16*1280}
        buffer_load_dwordx4 v134, {srd(SRD_G)}, s{S_T2} offen lds
        s_add_u32 m0, s{S_T1}, {L_U}
        v_cmp_gt_u32 vcc, 160, v0
        buffer_load_dwordx4 v134, {srd(SRD_U)}, s{S_T2} offen lds
        s_and_saveexec_b64 {s2(S_MA)}, vcc
        s_cbranch_execz {lab}_x
        """)
        us = list(range(16))[[0, 3, 6, 9, 12][k]:[3, 6, 9, 12, 16][k]]
        for u in us:
            g(f"s_add_u32 s{S_T1}, s{S_T0}, {u*1280}\nbuffer_load_dwordx2 {ac(self.WD+2*u,2)}, v135, {srd(SRD_D)}, s{S_T1} offen")
        g(f"{lab}_x:\ns_mov_b64 exec, -1 ; HZ_SKIP_END\n{lab}:")

    def p2_reads(self, n):
        i, ks = divmod(n, 4); b = n % 3
        base = 128 + (i & 1)
        out = []
        for t in range(2):
            for rd in range(2):
                out.append(f"ds_read_b64_tr_b16 {v(92+12*b+4*t+2*rd,2)}, v{base} offset:{(16*ks+rd)*80 + 64*t}")
        for rd in range(2):
            out.append(f"ds_read_b64_tr_b16 {v(160+4*b+2*rd,2)}, v{130 + (i & 1)} offset:{(16*ks+rd)*80}")
        return out

    def p2_base(self, i):
        r = i & 1
        return [f"v_add_u32 v{128+r}, s{S_QC}, v132", f"v_add_u32 v{130+r}, s{S_QC}, v133",
                f"s_add_u32 s{S_QC}, s{S_QC}, 5120", f"s_cmp_eq_u32 s{S_QC}, 51200", f"s_cselect_b32 s{S_QC}, 0, s{S_QC}"]

    def pass2(self):
        g = self
        g(f"""
        v_bfe_u32 v9, v1, 2, 2
        v_lshlrev_b32 v9, 1, v9
        v_add_u32 v9, v9, v3
        v_lshlrev_b32 v9, 1, v9
        v_mul_u32_u24 v9, 80, v9
        v_bfe_u32 v10, v1, 4, 1
        v_and_b32 v11, 3, v1
        v_lshl_add_u32 v10, v10, 2, v11
        v_lshl_add_u32 v9, v10, 3, v9
        v_add_u32 v132, {L_WQ}, v9
        s_lshl_b32 s{S_T0}, s{S_WAVE}, 6
        v_add_u32 v133, s{S_T0}, v132
        s_mul_i32 s{S_QC}, s{S_C0}, 5120
        """)
        for n in range(5): g(f"v_accvgpr_read_b32 v{152+n}, a{200+n}")
        self.wog = self.wo_groups()
        early = self.wog[:10]
        for x in self.p2_base(0): g(x)
        for x in self.p2_reads(0): g(x)
        for x in self.p2_reads(1): g(x)
        for n in range(40):
            i, ks = divmod(n, 4); b = n % 3
            if ks == 1 and i < 9:
                for x in self.p2_base(i + 1): g(x)
            g("s_waitcnt lgkmcnt(0)" if n == 39 else "s_waitcnt lgkmcnt(6)")
            rd = self.p2_reads(n + 2) if n + 2 < 40 else []
            XP = ac(4*n, 4)
            WF = lambda t: 92 + 12*b + 4*t
            cin = lambda r, k: "0" if n == 0 else v(r, k)
            g(f"v_mfma_f32_32x32x16_bf16 v[16:31], {v(WF(0),4)}, {XP}, {cin(16,16)}")
            for x in rd[0:3]: g(x)
            g(f"v_mfma_f32_32x32x16_bf16 v[32:47], {v(WF(1),4)}, {XP}, {cin(32,16)}")
            for x in rd[3:6]: g(x)
            g(f"v_mfma_f32_4x4x4_16b_bf16 v[76:79], {v(160+4*b,2)}, v[84:85], {cin(76,4)}")
            g(f"v_mfma_f32_4x4x4_16b_bf16 v[80:83], {v(160+4*b+2,2)}, v[84:85], {cin(80,4)}")
            if n in (3, 11, 19, 27, 35): self.moe_load_block((n - 3) // 8)
            if n >= 18 and n % 2 == 0 and early:
                for x in early.pop(0): g(x)
            if n in (9, 19, 29): self.stamp(f"p2_{n}")
        while early:
            for x in early.pop(0): g(x)
        self.stamp("p2end")

    def q_epilogue(self):
        g = self
        self.smtag = "q"
        self.stats_and_colsum(False)
        quads = [(16+4*j, 8*j) for j in range(4)] + [(32, 32)]
        g(f"v_lshlrev_b32 v9, 4, v3\nv_add_u32 v9, {L_CS + 512}, v9")
        self.norm_reads(quads, 512, 160)
        self.norm_apply(quads, 160, 0)
        PK = 244
        for i in range(10):
            g(f"v_cvt_pk_bf16_f32 v{PK+i}, v{16+2*i}, v{16+2*i+1}")
        self.stamp("q_cvt")
        self.featmap_mfma(PK)
        for i in range(4): g(f"v_accvgpr_read_b32 v{56+i}, a{196+i}")
        self.softmax(220, 232)
        self.dump("phiq", list(range(220, 244)))
        self.stamp("qdone")

    def kv_wait(self):
        g = self
        g(f"""
        s_add_u32 s{S_T0}, s{S_HP}, {CNT_KV}
        s_lshl_b32 s{S_T0}, s{S_T0}, 7
        v_mov_b32 v9, s{S_T0}
        v_cmp_eq_u32 vcc, 1, v1
        v_cndmask_b32 v9, v9, {CNT_KV * 128}, vcc
        v_lshlrev_b32 v11, 6, v1
        s_mov_b32 exec_lo, 15
        s_mov_b32 exec_hi, 0
        buffer_load_dword v12, v11, {srd(SRD_DBG)}, 0 offen sc1
        s_mov_b64 exec, -1
        """)
        self.poll("kv", SRD_WS, "s_nop 0", 16, nl=2)
        self.stamp("kvseen")
        g(f"""
        s_mov_b32 exec_lo, 15
        s_mov_b32 exec_hi, 0
        v_cmp_ne_u32 vcc, 64, v12
        s_mov_b64 exec, -1
        s_cbranch_vccz L_rmaxok
        """)
        self.poll("rmax", SRD_DBG, "v_lshlrev_b32 v9, 6, v1 ; HZ_SKIP_BEGIN", 64, nl=4)
        g(f"""
        s_nop 0 ; HZ_SKIP_END
L_rmaxok:
        s_mul_i32 s{S_KVA}, s{S_HP}, {16*KVP_SZ}
        s_add_u32 s{S_KVA}, s{S_KVA}, {WS_KVP}
        s_add_u32 s{S_KVE}, s{S_KVA}, {16*KVP_SZ}
        s_mov_b32 s{S_KVB}, s{S_KVA}
        s_and_b32 s{S_T0}, s{S_SLOT}, 7
        s_mul_i32 s{S_T0}, s{S_T0}, {2*KVP_SZ}
        s_add_u32 s{S_KVA}, s{S_KVA}, s{S_T0}
        v_lshlrev_b32 v64, 4, v0
        s_mul_i32 s{S_T0}, s{S_WAVE}, {41*16}
        s_add_u32 s{S_T0}, s{S_T0}, 4096
        v_lshl_add_u32 v65, v1, 4, s{S_T0}
        s_mov_b32 s{S_MB}, -1
        s_mov_b32 s{S_MB+1}, 0x1ff
        v_lshlrev_b32 v66, 5, v1
        v_add_u32 v66, {WS_RMAX}, v66
        """)

    def kv_load_groups(self):
        grp = []
        for p in range(16):
            grp.append([f"buffer_load_dwordx4 {ac(4*p,4)}, v64, {srd(SRD_WS)}, s{S_KVA} offen sc1", f"s_mov_b64 exec, {s2(S_MB)}",
                        ])
            grp[-1] = [f"buffer_load_dwordx4 {ac(4*p,4)}, v64, {srd(SRD_WS)}, s{S_KVA} offen sc1"]
            grp.append([f"s_mov_b64 exec, {s2(S_MB)}", f"buffer_load_dwordx4 {ac(64+4*p,4)}, v65, {srd(SRD_WS)}, s{S_KVA} offen sc1",
                        "s_mov_b64 exec, -1", f"s_add_u32 s{S_KVA}, s{S_KVA}, {KVP_SZ}",
                        f"s_cmp_eq_u32 s{S_KVA}, s{S_KVE}", f"s_cselect_b32 s{S_KVA}, s{S_KVB}, s{S_KVA}"])
        grp.append([f"buffer_load_dwordx4 v[48:51], v66, {srd(SRD_WS)}, 0 offen sc1"])
        grp.append([f"buffer_load_dwordx4 v[52:55], v66, {srd(SRD_WS)}, 0 offen offset:16 sc1"])
        return grp

    def argmax(self):
        g = self
        g(f"""
        v_cmp_gt_f32 vcc, v50, v48
        v_cndmask_b32 v48, v48, v50, vcc
        v_cndmask_b32 v49, v49, v51, vcc
        v_cmp_gt_f32 vcc, v52, v48
        v_cndmask_b32 v48, v48, v52, vcc
        v_cndmask_b32 v49, v49, v53, vcc
        v_cmp_gt_f32 vcc, v54, v48
        v_cndmask_b32 v48, v48, v54, vcc
        v_cndmask_b32 v49, v49, v55, vcc
        v_mov_b32 v50, v48
        """)
        for ctl in ("row_shr:1 row_mask:0xf bank_mask:0xf", "row_shr:2 row_mask:0xf bank_mask:0xf",
                    "row_shr:4 row_mask:0xf bank_mask:0xf", "row_shr:8 row_mask:0xf bank_mask:0xf",
                    "row_bcast:15 row_mask:0xa bank_mask:0xf", "row_bcast:31 row_mask:0xc bank_mask:0xf"):
            g(f"v_max_f32_dpp v50, v50, v50 {ctl}")
        g(f"""
        v_readlane_b32 s{S_RSEL}, v50, 63
        v_cmp_eq_f32 vcc, s{S_RSEL}, v48
        s_ff1_i32_b64 s{S_T0}, vcc
        s_max_i32 s{S_T0}, s{S_T0}, 0
        v_readlane_b32 s{S_IDX}, v49, s{S_T0}
        s_nop 0
        s_and_b32 s{S_IDX}, s{S_IDX}, 2047
        """)

    def moe(self):
        g = self
        WD = self.WD
        g("v_rcp_f32 v67, v67")
        for d in range(5):
            g(f"""
            v_lshlrev_b32 v168, 16, v{60+d}
            v_and_b32 v169, 0xffff0000, v{60+d}
            v_sub_f32 v168, v168, v66
            v_sub_f32 v169, v169, v66
            v_cvt_pk_bf16_f32 v168, v168, v169
            v_lshlrev_b32 v169, 16, v168
            v_and_b32 v168, 0xffff0000, v168
            v_mul_f32 v169, v169, v67
            v_mul_f32 v168, v168, v67
            v_cvt_pk_bf16_f32 v{60+d}, v169, v168
            """)
        g(f"""
        s_mul_i32 s{S_T0}, s{S_WAVE}, 1280
        s_add_u32 s{S_T0}, s{S_T0}, {L_XS}
        v_mul_u32_u24 v9, 20, v1
        v_add_u32 v9, s{S_T0}, v9
        ds_write_b32 v9, v60
        ds_write_b32 v9, v61 offset:4
        ds_write_b32 v9, v62 offset:8
        ds_write_b32 v9, v63 offset:12
        ds_write_b32 v9, v64 offset:16
        v_bfe_u32 v9, v1, 2, 2
        v_lshl_add_u32 v9, v3, 3, v9
        s_mul_i32 s{S_T1}, s{S_WAVE}, 160
        v_add_u32 v9, s{S_T1}, v9
        v_lshlrev_b32 v9, 5, v9
        v_and_b32 v10, 3, v1
        v_lshl_add_u32 v9, v10, 3, v9
        v_bfe_u32 v10, v1, 4, 1
        v_mul_u32_u24 v10, {L_U - L_G}, v10
        v_add_u32 v9, v9, v10
        v_add_u32 v9, {L_G}, v9
        s_mul_i32 s{S_T1}, s{S_WAVE}, 320
        s_add_u32 s{S_T0}, s{S_T0}, s{S_T1}
        v_lshlrev_b32 v10, 4, v3
        v_add_u32 v10, s{S_T0}, v10
        s_waitcnt lgkmcnt(0)
        """)
        def rd(ks):
            A = 32 + 8*ks
            g(f"""
            ds_read_b64_tr_b16 {v(A,2)}, v9 offset:{(16*ks)*32}
            ds_read_b64_tr_b16 {v(A+2,2)}, v9 offset:{(16*ks+4)*32}
            ds_read_b128 {v(A+4,4)}, v10 offset:{32*ks}
            """)
        for ks in range(4): rd(ks)
        for ks in range(10):
            if ks + 4 < 10:
                g("s_waitcnt lgkmcnt(9)"); rd(ks + 4) if False else None
                g(f"v_mfma_f32_32x32x16_bf16 v[16:31], {v(32+8*ks,4)}, {v(36+8*ks,4)}, {'0' if ks == 0 else 'v[16:31]'}")
                rd(ks + 4)
            else:
                g(f"s_waitcnt lgkmcnt({3*(9-ks)})")
                g(f"v_mfma_f32_32x32x16_bf16 v[16:31], {v(32+8*ks,4)}, {v(36+8*ks,4)}, v[16:31]")
        g(f"""
        s_lshl_b32 s{S_T0}, s{S_WAVE}, 7
        s_add_u32 s{S_T0}, s{S_T0}, {L_HP}
        v_lshlrev_b32 v9, 4, v3
        v_add_u32 v9, s{S_T0}, v9
        s_mov_b32 exec_lo, 1
        s_mov_b32 exec_hi, 1
        ds_write_b128 v9, v[16:19]
        ds_write_b128 v9, v[20:23] offset:32
        ds_write_b128 v9, v[24:27] offset:64
        ds_write_b128 v9, v[28:31] offset:96
        s_mov_b64 exec, -1
        s_waitcnt lgkmcnt(0)
        s_barrier
        v_and_b32 v9, 15, v1
        v_lshlrev_b32 v9, 2, v9
        v_add_u32 v9, {L_HP}, v9
        ds_read_b32 v160, v9
        ds_read_b32 v161, v9 offset:128
        ds_read_b32 v162, v9 offset:256
        ds_read_b32 v163, v9 offset:384
        ds_read_b32 v164, v9 offset:64
        ds_read_b32 v165, v9 offset:192
        ds_read_b32 v166, v9 offset:320
        ds_read_b32 v167, v9 offset:448
        s_waitcnt lgkmcnt(0)
        v_add_f32 v160, v160, v161
        v_add_f32 v162, v162, v163
        v_add_f32 v164, v164, v165
        v_add_f32 v166, v166, v167
        v_add_f32 v160, v160, v162
        v_add_f32 v164, v164, v166
        """)
        g.rnd_bf16(160, 160); g.rnd_bf16(164, 164)
        g(f"""
        v_mul_f32 v161, 0xbfb8aa3b, v160
        v_exp_f32 v161, v161
        v_add_f32 v161, 1.0, v161
        v_rcp_f32 v161, v161
        v_mul_f32 v160, v160, v161
        """)
        g.rnd_bf16(160, 160)
        g("v_mul_f32 v160, v160, v164")
        g.rnd_bf16(160, 160)
        g("""
        v_mov_b32 v161, v160
        s_nop 1
        v_mov_b32_dpp v161, v160 row_shl:1 row_mask:0xf bank_mask:0xf
        s_nop 1
        v_cvt_pk_bf16_f32 v160, v160, v161
        """)
        for i in range(4): g(f"v_mov_b32 v{16+i}, 0")
        g("s_mov_b32 s74, 0x05040100\nv_mov_b32 v26, s74\ns_mov_b32 s74, 0x07060302\nv_mov_b32 v27, s74")
        for p in range(8):
            a0, a1 = WD + 4*p, WD + 4*p + 2
            g(f"""
            v_readlane_b32 s74, v160, {2*p}
            v_accvgpr_read_b32 v20, a{a0}
            v_accvgpr_read_b32 v21, a{a0+1}
            v_accvgpr_read_b32 v22, a{a1}
            v_accvgpr_read_b32 v23, a{a1+1}
            v_perm_b32 v24, v22, v20, v26
            v_perm_b32 v25, v22, v20, v27
            v_perm_b32 v28, v23, v21, v26
            v_perm_b32 v29, v23, v21, v27
            v_dot2c_f32_bf16 v16, s74, v24
            v_dot2c_f32_bf16 v17, s74, v25
            v_dot2c_f32_bf16 v18, s74, v28
            v_dot2c_f32_bf16 v19, s74, v29
            """)
        g("s_nop 2")

    def kv_addresses(self):
        g = self
        for k, (gi, out1, out2) in enumerate(((0, 196, 197), (256, 198, 199))):
            if k == 0: g("v_mov_b32 v9, v0")
            else: g(f"s_mul_i32 s{S_T0}, s{S_WAVE}, 41\ns_add_u32 s{S_T0}, s{S_T0}, 256\nv_add_u32 v9, s{S_T0}, v1")
            g(f"""
            v_cmp_lt_u32 vcc, 209, v9
            v_cndmask_b32 v10, 0, 1, vcc
            v_mul_u32_u24 v11, 210, v10
            v_sub_u32 v9, v9, v11
            v_mul_u32_u24 v11, 3121, v9
            v_lshrrev_b32 v11, 16, v11
            v_mul_u32_u24 v12, 21, v11
            v_sub_u32 v12, v9, v12
            v_lshrrev_b32 v13, 1, v11
            v_and_b32 v14, 1, v11
            v_cmp_lt_u32 vcc, 7, v11
            v_subrev_u32 v15, 4, v11
            v_cndmask_b32 v13, v13, v15, vcc
            v_cndmask_b32 v14, v14, 0, vcc
            v_lshrrev_b32 v15, 1, v13
            v_and_b32 v13, 1, v13
            v_mul_u32_u24 v15, 1024, v15
            v_lshl_add_u32 v15, v13, 9, v15
            v_lshl_add_u32 v15, v14, 3, v15
            v_mul_u32_u24 v13, 3072, v10
            v_add_u32 v15, v15, v13
            v_add_u32 v15, {L_KVF}, v15
            v_lshlrev_b32 v13, 2, v10
            v_sub_u32 v13, v12, v13
            v_add_u32 v14, 20, v13
            v_cmp_gt_i32 vcc, 0, v13
            v_cndmask_b32 v13, v13, v14, vcc
            v_subrev_u32 v14, 16, v13
            v_lshrrev_b32 v60, 3, v13
            v_and_b32 v61, 7, v13
            v_lshrrev_b32 v62, 1, v14
            v_and_b32 v63, 1, v14
            v_add_u32 v63, 8, v63
            v_cmp_lt_u32 vcc, 15, v13
            v_cndmask_b32 v60, v60, v62, vcc
            v_cndmask_b32 v61, v61, v63, vcc
            v_lshrrev_b32 v62, 2, v61
            v_lshlrev_b32 v62, 3, v62
            v_lshl_add_u32 v62, v60, 2, v62
            v_and_b32 v61, 3, v61
            v_add_u32 v62, v62, v61
            v_cmp_eq_u32 vcc, 20, v12
            v_cndmask_b32 v63, v62, 22, vcc
            v_cndmask_b32 v62, v62, 18, vcc
            v_lshl_add_u32 v62, v62, 4, v15
            v_lshl_add_u32 v63, v63, 4, v15
            v_accvgpr_write_b32 a{out1}, v62
            v_accvgpr_write_b32 a{out2}, v63
            """)

    def kv_reduce_and_o(self):
        g = self
        for n in range(3):
            g(f"v_accvgpr_read_b32 v{134+n}, a{205+n}\nv_accvgpr_read_b32 v{137+n}, a{208+n}\nv_accvgpr_read_b32 v{140+n}, a{211+n}\nv_accvgpr_read_b32 v{143+n}, a{214+n}")
        g(f"s_lshl_b32 s{S_T0}, s{S_ROW0}, 3\ns_add_u32 s{S_T0}, s{S_T0}, {WS_STATS}")
        g("s_waitcnt vmcnt(0)")
        self.stamp("kvdata")
        g(f"s_cmp_ge_u32 s{S_MU}, 108\ns_cbranch_scc1 L_noxrow\ns_nop 0 ; HZ_SKIP_BEGIN")
        self.argmax()
        g(f"""
        v_mul_u32_u24 v9, 20, v1
        s_mul_i32 s{S_T1}, s{S_IDX}, 1280
        buffer_load_dwordx4 v[60:63], v9, {srd(SRD_X)}, s{S_T1} offen
        buffer_load_dword v64, v9, {srd(SRD_X)}, s{S_T1} offen offset:16
        s_lshl_b32 s{S_T1}, s{S_IDX}, 3
        s_add_u32 s{S_T1}, s{S_T1}, {WS_STATS}
        v_mov_b32 v9, 0
        buffer_load_dwordx2 v[66:67], v9, {srd(SRD_WS)}, s{S_T1} offen sc1   ; HZ_SKIP_END
L_noxrow:
        """)
        XR, ST = self.XR, self.ST
        g(f"s_lshl_b32 s{S_T0}, s{S_ROW0}, 3\ns_add_u32 s{S_T0}, s{S_T0}, {WS_STATS}")
        for n in range(3):
            g(f"buffer_load_dwordx4 {v(XR+4*n,4)}, v{134+n}, {srd(SRD_X)}, s{S_XO} offen")
            g(f"v_lshlrev_b32 v10, 3, v{140+n}\nbuffer_load_dwordx2 {v(ST+2*n,2)}, v10, {srd(SRD_WS)}, s{S_T0} offen sc1")
        def reduce():
            for base, acc in ((0, 16), (64, 92)):
                for e in range(4): g(f"v_accvgpr_read_b32 v{acc+e}, a{base+e}")
                for p in range(1, 16):
                    t = acc + 4 + 4 * (p & 1)
                    for e in range(4): g(f"v_accvgpr_read_b32 v{t+e}, a{base+4*p+e}")
                    g(f"v_pk_add_f32 {v(acc,2)}, {v(acc,2)}, {v(t,2)}\nv_pk_add_f32 {v(acc+2,2)}, {v(acc+2,2)}, {v(t+2,2)}")
        reduce()
        self.stamp("r_sum")
        g(f"""
        v_cvt_pk_bf16_f32 v16, v16, v17
        v_cvt_pk_bf16_f32 v17, v18, v19
        v_cvt_pk_bf16_f32 v92, v92, v93
        v_cvt_pk_bf16_f32 v93, v94, v95
        ds_write_b64 v56, v[16:17]
        ds_write_b64 v57, v[16:17]
        s_mov_b64 exec, {s2(S_MB)}
        ds_write_b64 v58, v[92:93]
        ds_write_b64 v59, v[92:93]
        s_mov_b64 exec, -1
        s_waitcnt lgkmcnt(0)
        s_barrier
        v_lshlrev_b32 v9, 4, v1
        v_add_u32 v9, {L_KVF}, v9
        """)
        self.stamp("r_bar")
        for a in range(2):
            for t in range(3):
                g(f"ds_read_b128 {v(160+12*a+4*t,4)}, v9 offset:{a*3072 + t*1024}")
        self.dump("kvf", list(range(160, 184)))
        for a, (acc, H) in enumerate(((16, 220), (32, 232))):
            g(f"s_waitcnt lgkmcnt({3 - 3*a})")
            for t in range(3):
                g(f"v_mfma_f32_32x32x16_bf16 {v(acc,16)}, {v(160+12*a+4*t,4)}, {v(H+4*t,4)}, {'0' if t == 0 else v(acc,16)}")
        self.dump("num", list(range(16, 48)))
        g("v_accvgpr_read_b32 v10, a217\nv_accvgpr_read_b32 v11, a218\nv_mov_b32 v12, 0x358637bd")
        for a, (acc, P) in enumerate(((16, 160), (32, 166))):
            g(f"v_add_f32 v{acc+10}, v{acc+10}, v12\nv_rcp_f32 v{acc+10}, v{acc+10}")
        for a, (acc, P) in enumerate(((16, 160), (32, 166))):
            for i in range(5):
                g(f"v_pk_mul_f32 {v(acc+2*i,2)}, {v(acc+2*i,2)}, {v(acc+10,2)} op_sel_hi:[1,0]")
            for i in range(5):
                g(f"v_cvt_pk_bf16_f32 v{P+i}, v{acc+2*i}, v{acc+2*i+1}")
        self.dump("o", list(range(160, 165)) + list(range(166, 171)))
        g(f"""
        v_mov_b32 v172, v164
        v_mov_b32 v173, v170
        s_nop 1
        v_permlane32_swap_b32 v172, v173
        buffer_store_dwordx4 v[160:163], v10, {srd(SRD_WS)}, s{S_OS} offen sc1
        v_mov_b32 v174, v166
        v_mov_b32 v175, v167
        v_mov_b32 v176, v168
        v_mov_b32 v177, v169
        buffer_store_dwordx2 v[172:173], v11, {srd(SRD_WS)}, s{S_OS} offen offset:2048 sc1
        buffer_store_dwordx4 v[174:177], v10, {srd(SRD_WS)}, s{S_OS} offen offset:3072 sc1
        """)
        self.stamp("o_store")
        for grp in self.wog[10:18]:
            for x in grp: g(x)
        self.stamp("o_wo8")
        g("s_waitcnt vmcnt(8)")
        self.stamp("o_drain")
        self.signal("o", f"s_add_u32 s{S_T0}, s{S_RB}, {CNT_O}", drain=False)
        self.stamp("osig")

    XR, RS, ST = 200, 176, 212
    NA = 8
    def wo_groups(self):
        grp = []
        for j in (3, 4, 0, 1, 2):
            for n in range(5):
                gl = []
                if n == 0:
                    gl += [f"s_add_u32 s{S_T3}, s{S_WAVE}, {4*j}", f"s_mul_i32 s{S_WOL}, s{S_T3}, 5120",
                           f"s_mul_i32 s{S_T4}, s{S_T3}, 13108", f"s_lshr_b32 s{S_T4}, s{S_T4}, 16",
                           f"s_mul_i32 s{S_T4}, s{S_T4}, {120*1280}", f"s_mul_i32 s{S_T3}, s{S_T3}, {8*1280}",
                           f"s_add_u32 s{S_T3}, s{S_T3}, s{S_T4}", f"s_add_u32 s{S_WOS}, s{S_T3}, s{S_WOG}"]
                gl += [f"s_add_u32 m0, s{S_WOL}, {L_WO + n*1024}", "s_nop 0",
                       f"buffer_load_dwordx4 v{152+n}, {srd(SRD_WO)}, s{S_WOS} offen lds"]
                grp.append(gl)
        return grp

    def c_addresses(self):
        g = self
        for n in range(5):
            g(f"""
            v_add_u32 v9, {64*n}, v1
            v_mul_u32_u24 v10, 6554, v9
            v_lshrrev_b32 v10, 16, v10
            v_mul_u32_u24 v11, 10, v10
            v_sub_u32 v11, v9, v11
            v_bfe_u32 v12, v10, 3, 1
            v_bfe_u32 v13, v10, 2, 1
            v_lshl_add_u32 v12, v12, 1, v13
            v_mul_u32_u24 v12, 40, v12
            v_lshrrev_b32 v13, 4, v10
            v_lshl_add_u32 v12, v13, 2, v12
            v_and_b32 v13, 3, v10
            v_add_u32 v12, v12, v13
            v_mul_u32_u24 v12, 1280, v12
            v_lshl_add_u32 v12, v11, 4, v12
            v_accvgpr_write_b32 a{200+n}, v12
            """)
            if n < 3:
                g(f"""
                v_min_u32 v10, 15, v10
                v_mul_u32_u24 v12, 1280, v10
                v_lshl_add_u32 v12, v11, 4, v12
                v_accvgpr_write_b32 a{205+n}, v12
                v_mul_u32_u24 v12, 336, v10
                v_lshl_add_u32 v12, v11, 5, v12
                v_accvgpr_write_b32 a{208+n}, v12
                v_accvgpr_write_b32 a{211+n}, v10
                v_lshlrev_b32 v12, 5, v11
                v_accvgpr_write_b32 a{214+n}, v12
                """)

    def o_addresses(self):
        g = self
        g("""
        v_lshrrev_b32 v9, 4, v2
        v_mul_u32_u24 v9, 20480, v9
        v_and_b32 v10, 15, v2
        v_lshl_add_u32 v9, v10, 4, v9
        v_lshl_add_u32 v10, v3, 10, v9
        v_lshl_add_u32 v11, v3, 3, v9
        v_accvgpr_write_b32 a217, v10
        v_accvgpr_write_b32 a218, v11
        """)

    def residual(self):
        g = self
        XR, RS, ST = self.XR, self.RS, self.ST
        for n in range(3):
            xr, rs, st = XR + 4*n, RS + 8*n, ST + 2*n
            g(f"v_rcp_f32 v{st+1}, v{st+1}")
            for d in range(4):
                g(f"""
                v_lshlrev_b32 v10, 16, v{xr+d}
                v_and_b32 v11, 0xffff0000, v{xr+d}
                v_sub_f32 v12, v10, v{st}
                v_sub_f32 v13, v11, v{st}
                v_cvt_pk_bf16_f32 v12, v12, v13
                v_lshlrev_b32 v13, 16, v12
                v_and_b32 v12, 0xffff0000, v12
                v_mul_f32 v13, v13, v{st+1}
                v_mul_f32 v12, v12, v{st+1}
                v_cvt_pk_bf16_f32 v12, v13, v12
                v_lshlrev_b32 v13, 16, v12
                v_and_b32 v12, 0xffff0000, v12
                v_add_f32 v{rs+2*d}, v13, v10
                v_add_f32 v{rs+2*d+1}, v12, v11
                """)

    def phase_c(self):
        g = self
        XR, RS, ST = self.XR, self.RS, self.ST
        self.stamp("argmax")
        rest = self.wog[18:]
        g(f"s_cmp_ge_u32 s{S_MU}, 108\ns_cbranch_scc1 L_plainwo")
        g("s_nop 0 ; HZ_SKIP_BEGIN")
        self.interleave([(x, "wo") for x in rest], self.capture(self.residual) + self.capture(self.moe))
        g(f"""
        s_waitcnt vmcnt(0)
        s_mul_i32 s{S_T0}, s{S_MU}, 2560
        s_add_u32 s{S_T0}, s{S_T0}, {WS_Y}
        v_lshlrev_b32 v9, 4, v0
        v_cmp_gt_u32 vcc, 160, v0
        s_and_saveexec_b64 {s2(S_MA)}, vcc
        s_cbranch_execz L_noy
        buffer_store_dwordx4 v[16:19], v9, {srd(SRD_WS)}, s{S_T0} offen sc1
L_noy:
        s_mov_b64 exec, -1
        """)
        g("s_barrier")
        g("s_branch L_wodone ; HZ_SKIP_END\nL_plainwo:")
        g("s_nop 0 ; HZ_SKIP_BEGIN")
        self.argmax()
        self.interleave([(x, "wo") for x in rest], self.capture(self.residual))
        g("s_waitcnt vmcnt(0)\ns_barrier")
        g("s_nop 0 ; HZ_SKIP_END\nL_wodone:")
        self.stamp("moedone")
        g(f"""
        v_bfe_u32 v10, v1, 5, 1
        v_lshlrev_b32 v10, 3, v10
        v_bfe_u32 v11, v1, 4, 1
        v_lshl_add_u32 v10, v11, 2, v10
        v_bfe_u32 v11, v1, 2, 2
        v_add_u32 v10, v10, v11
        v_mul_u32_u24 v10, 160, v10
        v_and_b32 v11, 3, v1
        v_lshl_add_u32 v10, v11, 3, v10
        v_add_u32 v236, {L_WO}, v10
        v_add_u32 v237, {L_WO + 10*5120}, v10
        """)
        NA = self.NA
        def wo_reads(ks):
            base = 236 + ks // 10
            out = []
            for ct in range(5):
                for rd in range(2):
                    dst = ac(20*ks + 4*ct + 2*rd, 2) if ks < NA else v(40 + 20*(ks % 3) + 4*ct + 2*rd, 2)
                    out.append(f"ds_read_b64_tr_b16 {dst}, v{base} offset:{(ks % 10)*5120 + rd*2560 + ct*32}")
            return out
        self.poll_issue(SRD_WS, f"s_lshr_b32 s{S_T0}, s{S_RB64}, 1\ns_add_u32 s{S_T0}, s{S_T0}, {CNT_O}\ns_lshl_b32 s{S_T0}, s{S_T0}, 7\nv_mov_b32 v238, s{S_T0}")
        for ks in range(NA + 2):
            for x in wo_reads(ks): g(x)
            if ks < NA + 1: g("s_waitcnt lgkmcnt(5)")
        self.poll_finish("o", SRD_WS, 16)
        g(f"s_cmp_ge_u32 s{S_MU}, 108\ns_cbranch_scc1 L_nomoesig")
        g("s_nop 0 ; HZ_SKIP_BEGIN")
        self.signal("moe", f"s_and_b32 s{S_T0}, s{S_MU}, 3\ns_add_u32 s{S_T0}, s{S_T0}, {CNT_M}", drain=False)
        g("s_nop 0 ; HZ_SKIP_END\nL_nomoesig:")
        self.stamp("oseen"); self.dbg_span(8, False)
        g(f"""
        s_mul_i32 s{S_T0}, s{S_RB64}, 81920
        s_mul_i32 s{S_T1}, s{S_WAVE}, 20480
        s_add_u32 s{S_T0}, s{S_T0}, s{S_T1}
        s_add_u32 s{S_T0}, s{S_T0}, {WS_O}
        v_lshlrev_b32 v9, 4, v1
        """)
        self.vm = []
        regs_o = list(range(100, 128, 4)) + list(range(146, 174, 4)) + [220, 224, 228, 232, 240, 244]
        assert len(regs_o) == 20, len(regs_o)
        def oload(ks):
            g(f"buffer_load_dwordx4 {v(regs_o[ks],4)}, v9, {srd(SRD_WS)}, s{S_T0} offen sc1\ns_add_u32 s{S_T0}, s{S_T0}, 1024")
            g.vmi(f"o{ks}")
        AHEAD = 10
        for ks in range(AHEAD): oload(ks)
        self.stamp("c_issued")
        for ks in range(20):
            if ks == 0: g("s_waitcnt lgkmcnt(0)")
            elif ks >= NA: g("s_waitcnt lgkmcnt(5)" if ks < 18 else ("s_waitcnt lgkmcnt(10)" if ks < 19 else "s_waitcnt lgkmcnt(0)"))
            g.vmwait(f"o{ks}")
            if ks in (0, 5, 10, 15): self.stamp(f"c_o{ks}")
            rd = wo_reads(ks + 2) if NA <= ks < 18 else []
            for ct in range(5):
                cin = "0" if ks == 0 else v(16+4*ct, 4)
                A = ac(20*ks + 4*ct, 4) if ks < NA else v(40 + 20*(ks % 3) + 4*ct, 4)
                g(f"v_mfma_f32_16x16x32_bf16 {v(16+4*ct,4)}, {A}, {v(regs_o[ks],4)}, {cin}")
                for x in rd[2*ct:2*ct+2]: g(x)
            if ks + AHEAD < 20: oload(ks + AHEAD)
        self.stamp("cmfma")
        g(f"""
        s_sub_u32 s{S_T4}, s{S_IDX}, s{S_ROW0}
        s_cmp_ge_u32 s{S_T4}, 16
        s_cbranch_scc1 L_norow
        s_nop 0                      ; HZ_SKIP_BEGIN
        """)
        self.poll("m", SRD_WS, f"v_lshlrev_b32 v9, 7, v1\nv_add_u32 v9, {CNT_M*128}, v9", 27, nl=4)
        g(f"""
        v_mul_u32_u24 v10, 3277, v1
        v_lshrrev_b32 v10, 16, v10
        v_mul_u32_u24 v11, 20, v10
        v_sub_u32 v11, v1, v11
        v_mul_u32_u24 v12, 2560, v10
        v_lshl_add_u32 v12, v11, 4, v12
        s_mul_i32 s{S_T0}, s{S_CB}, 320
        s_add_u32 s{S_T0}, s{S_T0}, {WS_Y}
        v_mov_b32 v40, 0
        v_mov_b32 v41, 0
        v_mov_b32 v42, 0
        v_mov_b32 v43, 0
        s_mov_b32 exec_hi, 0x0fffffff
        """)
        yregs = list(range(44, 80, 4)) + list(range(92, 128, 4))
        for half in range(2):
            for j in range(18):
                g(f"buffer_load_dwordx4 {v(yregs[j],4)}, v12, {srd(SRD_WS)}, s{S_T0} offen sc1\ns_add_u32 s{S_T0}, s{S_T0}, {3*2560}")
            g("s_waitcnt vmcnt(0)")
            for j in range(18):
                g(f"v_pk_add_f32 v[40:41], v[40:41], {v(yregs[j],2)}\nv_pk_add_f32 v[42:43], v[42:43], {v(yregs[j]+2,2)}")
        g(f"""
        v_mul_u32_u24 v12, 320, v10
        v_lshl_add_u32 v12, v11, 4, v12
        v_add_u32 v12, {L_YR}, v12
        ds_write_b128 v12, v[40:43]
        s_mov_b64 exec, -1
        v_mov_b32 v44, s{S_RSEL}
        """)
        g.rnd_bf16(44, 44)
        g(f"""
        v_mul_f32 v44, 0xbfb8aa3b, v44
        v_exp_f32 v44, v44
        v_add_f32 v44, 1.0, v44
        v_rcp_f32 v44, v44
        """)
        g.rnd_bf16(44, 44)
        g("s_waitcnt lgkmcnt(0)")
        for n in range(3):
            rs, xr = RS + 8*n, XR + 4*n
            g(f"v_add_u32 v12, {L_YR}, v{143+n}")
            for pg in range(3):
                g(f"ds_read_b128 {v(48+8*pg,4)}, v12 offset:{320*pg}\nds_read_b128 {v(52+8*pg,4)}, v12 offset:{320*pg+16}")
            g("s_waitcnt lgkmcnt(0)")
            g(f"v_cmp_eq_u32 vcc, s{S_T4}, v{140+n}")
            for e in range(8):
                unp = f"v_lshlrev_b32 v45, 16, v{xr + e//2}" if e % 2 == 0 else f"v_and_b32 v45, 0xffff0000, v{xr + e//2}"
                g(f"v_add_f32 v{48+e}, v{48+e}, v{56+e}\nv_add_f32 v{48+e}, v{48+e}, v{64+e}")
                g.rnd_bf16(48+e, 48+e)
                g(f"v_mul_f32 v{48+e}, v{48+e}, v44")
                g.rnd_bf16(48+e, 48+e)
                g(f"{unp}\nv_sub_f32 v46, v{rs+e}, v45\nv_add_f32 v{48+e}, v{48+e}, v46")
                g.rnd_bf16(48+e, 48+e)
                g(f"v_add_f32 v{48+e}, v{48+e}, v45\nv_cndmask_b32 v{rs+e}, v{rs+e}, v{48+e}, vcc")
        g("s_nop 0                      ; HZ_SKIP_END\nL_norow:")
        g(f"""
        s_mul_i32 s{S_T0}, s{S_WAVE}, 5376
        s_add_u32 s{S_T0}, s{S_T0}, {L_OST}
        v_and_b32 v9, 15, v1
        v_mul_u32_u24 v9, 336, v9
        v_lshrrev_b32 v10, 4, v1
        v_lshl_add_u32 v9, v10, 4, v9
        v_add_u32 v9, s{S_T0}, v9
        """)
        for ct in range(5): g(f"ds_write_b128 v9, {v(16+4*ct,4)} offset:{64*ct}")
        for n in range(3): g(f"v_add_u32 v{10+n}, s{S_T0}, v{137+n}")
        g("s_waitcnt lgkmcnt(0)")
        for n in range(3):
            g(f"ds_read_b128 {v(40+8*n,4)}, v{10+n}\nds_read_b128 {v(44+8*n,4)}, v{10+n} offset:16")
        for n in range(3):
            rs = RS + 8*n
            g(f"s_waitcnt lgkmcnt({4 - 2*n})")
            for e in range(0, 8, 2):
                g(f"v_pk_add_f32 {v(40+8*n+e,2)}, {v(40+8*n+e,2)}, {v(rs+e,2)}")
            for e in range(4):
                g(f"v_cvt_pk_bf16_f32 v{64+4*n+e}, v{40+8*n+2*e}, v{40+8*n+2*e+1}")
            if n == 2: g("s_mov_b32 exec_hi, 0")
            g(f"buffer_store_dwordx4 {v(64+4*n,4)}, v{134+n}, {srd(SRD_OUT)}, s{S_XO} offen")
        g("s_mov_b64 exec, -1")
        self.stamp("end"); self.stamp("clk1", True)

    def rest(self):
        self.publish_kv()
        self.dbg_span(4, False)
        self.pass2()
        self.kv_wait()
        self.dbg_span(9, False)
        self.interleave([(x, "kvp") for x in self.kv_load_groups()], self.capture(self.q_epilogue))
        self.dbg_span(5, False)
        self.kv_reduce_and_o()
        self.dbg_span(6, False)
        self.phase_c()
```

```python
import sys, re
from asmlib import Asm, kernel_header
import hazard

NAME = "parallel_sum__linear_kernel_hedgehog__moe_arch_mod__prompt_kernel"

WS_CNT   = 0
WS_KVP   = 0x10000
KVP_SZ   = 6784
WS_O     = 0x200000
WS_STATS = 0x500000
WS_RMAX  = 0x508000
WS_Y     = 0x510000
WS_DBG   = 0x800000
WS_TS    = 0x700000
WS_SIZE  = 268435456

SLOT     = 28672
L_WQ     = 0
L_T      = 57344
L_WO     = 0
L_G      = 102400
L_U      = L_G + 20480 + 128
L_OST    = L_G
L_YR     = L_OST + 4 * 5376
L_MISC   = L_U + 20480
L_WPHI   = L_MISC
L_CS     = L_WPHI + 4 * 1664
L_P0     = L_CS + 1024
L_KVF    = L_P0 + 64
L_XS     = L_KVF + 6144
L_HP     = L_XS + 5120
L_END    = L_HP + 640
LDS_SIZE = 163840
assert L_END <= LDS_SIZE, L_END
assert 5 * SLOT <= L_MISC

S_WAVE = 3
SRD_X, SRD_W, SRD_PHI, SRD_WO, SRD_WR, SRD_G, SRD_U, SRD_D, SRD_OUT, SRD_DBG, SRD_WS = range(4, 48, 4)
S_XCD, S_SLOT, S_RB, S_HP = 48, 49, 50, 51
S_XB, S_WB, S_LX, S_LW = 52, 53, 54, 55
S_WM = 56
S_T0, S_T1, S_T2, S_T3, S_T4, S_T5 = 62, 63, 64, 65, 66, 67
S_MA, S_MB = 68, 70
S_C0, S_CC, S_CX, S_CW = 76, 77, 78, 79
S_WQL, S_WQG, S_P0ROW, S_IDX = 80, 81, 82, 83
S_KVS = 75
S_TS = 86

def srd(n): return f"s[{n}:{n+3}]"
def v(b, n=1): return f"v{b}" if n == 1 else f"v[{b}:{b+n-1}]"
def ac(b, n=1): return f"a{b}" if n == 1 else f"a[{b}:{b+n-1}]"
def s2(b): return f"s[{b}:{b+1}]"


class Gen:
    def __init__(self, stop=None, dumps=(), stamps=False, touch=True, exp=()):
        self.touch = touch
        self.dist = 2 if "d2" in exp else 3
        self.exp = set(exp)
        self.a = Asm()
        self.vm = []
        self.stop = stop
        self.dumps = set(dumps)
        self.stamps = stamps
        self.nstamp = 0
        self.pending = []
        self.dump_off = 0
        self.dump_index = {}

    def __call__(self, t):
        self.a(t)
        if self.stamps and self.pending and not getattr(self, "capturing", False) and not self.in_skip(t):
            last = t.strip().split("\n")[-1].strip()
            if last.startswith("s_waitcnt") and "lgkmcnt(0)" in last: self.flush_stamps()

    def in_skip(self, t):
        for l in t.split("\n"):
            if "HZ_SKIP_BEGIN" in l: self.skipdepth = 1
            if "HZ_SKIP_END" in l: self.skipdepth = 0
        return getattr(self, "skipdepth", 0) > 0

    def vmi(self, tag, n=1):
        self.vm += [tag] * n
    def capture(self, fn):
        old, self.a.lines = self.a.lines, []
        self.capturing = True
        fn()
        self.capturing = False
        out, self.a.lines = self.a.lines, old
        return [l.strip() for l in out if l.strip()]

    def atoms(self, lines):
        out, cur, hold = [], [], None
        for l in lines:
            cur.append(l)
            code = l.split(";")[0].strip()
            if hold is None:
                if re.match(r"s_(mov|brev|and_saveexec)\w* (exec|exec_lo|exec_hi)\b", code) or code.startswith("s_and_saveexec"):
                    if not code.endswith("exec, -1"): hold = "exec"
                elif code.startswith("s_cmp"): hold = "label"
            else:
                if hold == "exec" and code == "s_mov_b64 exec, -1": hold = None
                elif hold == "label" and (code.endswith(":") or code.startswith("s_cselect")): hold = None
            if hold is None and not l.endswith(";+"):
                out.append(cur); cur = []
        if cur: out.append(cur)
        return out

    def interleave(self, groups, filler):
        at = self.atoms(filler)
        total = sum(len(a) for a in at)
        done = 0
        for i, (lines, tag) in enumerate(groups):
            for x in lines: self(x)
            self.vmi(tag)
            target = total * (i + 1) // len(groups)
            while at and done < target:
                a = at.pop(0); done += len(a)
                for x in a: self.emit_resolved(x)
        for a in at:
            for x in a: self.emit_resolved(x)

    def emit_resolved(self, x):
        if x.startswith("@VMWAIT "): self.vmwait(x.split()[1])
        elif x.startswith("@STAMP "): self.stamp(x.split()[1])
        else: self(x)

    def vmwait(self, tag):
        if getattr(self, "capturing", False):
            self(f"@VMWAIT {tag}"); return
        last = max(i for i, t in enumerate(self.vm) if t == tag)
        n = len(self.vm) - 1 - last
        assert n <= 63, (tag, n)
        self(f"s_waitcnt vmcnt({n})")
    def vmwait_all(self):
        self("s_waitcnt vmcnt(0)")

    def stamp(self, name, clk=False):
        if not self.stamps: return
        if "all" not in self.stamps and name not in self.stamps: return
        if getattr(self, "capturing", False):
            self(f"@STAMP {name}"); return
        if "cyc" in self.exp: clk = True
        self.stamp_names = getattr(self, "stamp_names", [])
        if name in self.stamp_names: return
        used = {i for i, _ in self.pending}
        free = [i for i in range(8) if i not in used]
        if not free:
            Asm.__call__(self.a, "s_waitcnt lgkmcnt(0)"); self.flush_stamps()
            free = list(range(8))
        i = free[0]
        lane = len(self.stamp_names); assert lane < 63, name
        self.stamp_names.append(name)
        self.pending.append((i, lane))
        Asm.__call__(self.a, f"{'s_memtime' if clk else 's_memrealtime'} {s2(S_TS + 2*i)} ; stamp {name}")

    def flush_stamps(self):
        for i, lane in self.pending:
            Asm.__call__(self.a, f"v_writelane_b32 v255, s{S_TS + 2*i}, {lane}")
        self.pending = []

    def dump(self, name, regs, tmp=250):
        if name not in self.dumps: return
        g = self
        n = len(regs)
        base = WS_DBG + self.dump_off
        self.dump_index[name] = (self.dump_off, n)
        self.dump_off += 256 * 4 * n * 256
        g("s_waitcnt vmcnt(0) lgkmcnt(0)\ns_nop 15\ns_nop 15")
        g(f"s_lshl_b32 s74, s2, 2\ns_add_u32 s74, s74, s{S_WAVE}\ns_mul_i32 s74, s74, {n*256}\ns_add_u32 s74, s74, {base}")
        g(f"v_lshlrev_b32 v{tmp}, 2, v1")
        for i, r in enumerate(regs):
            if isinstance(r, str) and r.startswith("a"):
                g(f"v_accvgpr_read_b32 v{tmp+1}, {r}\ns_nop 1")
                src = f"v{tmp+1}"
            else:
                src = f"v{r}"
            g(f"buffer_store_dword {src}, v{tmp}, {srd(SRD_WS)}, s74 offen")
            g(f"s_add_u32 s74, s74, 256")
            g("s_waitcnt vmcnt(0)")

    def rnd_bf16(self, dst, src):
        self(f"v_cvt_pk_bf16_f32 v{dst}, v{src}, v{src}\nv_lshlrev_b32 v{dst}, 16, v{dst}")

    def prologue(self):
        g = self
        ptrs = [(SRD_X, 0), (SRD_W, 8), (SRD_WR, 40), (SRD_PHI, 16), (SRD_WS, 88), (SRD_DBG, 80),
                (SRD_WO, 24), (SRD_G, 48), (SRD_U, 56), (SRD_D, 64), (SRD_OUT, 72)]
        sizes = {SRD_X: 2621440, SRD_W: 2457600, SRD_WR: 1280, SRD_PHI: 25600, SRD_WS: WS_SIZE, SRD_DBG: 256,
                 SRD_WO: 819200, SRD_G: 2211840, SRD_U: 2211840, SRD_D: 2211840, SRD_OUT: 2621440}
        self.sizes = sizes
        if "span" in self.exp: g("s_memrealtime s[98:99]")
        g("s_getpc_b64 s[72:73]")
        g("L_pc:")
        for r, off in ptrs[:4]:
            g(f"s_load_dwordx2 {s2(r)}, s[0:1], {off}")
        g(f"""
        s_cmp_ge_u32 s2, 256
        s_cbranch_scc1 L_exit
        v_and_b32 v1, 63, v0
        v_lshrrev_b32 v9, 6, v0
        s_lshr_b32 s{S_SLOT}, s2, 3
        v_readfirstlane_b32 s{S_WAVE}, v9
        s_and_b32 s{S_XCD}, s2, 7
        """)
        g(f"""
        s_lshl_b32 s{S_T0}, s{S_SLOT}, 2
        s_add_u32 s{S_T0}, s{S_T0}, s{S_WAVE}
        s_lshl_b32 s{S_T0}, s{S_T0}, 9
        v_lshl_add_u32 v11, v1, 7, s{S_T0}
        v_cmp_gt_u32 vcc, L_code_end - L_pc, v11
        v_cmp_gt_u32 {s2(S_MA)}, 4, v1
        s_and_b64 vcc, vcc, {s2(S_MA)}
        s_and_saveexec_b64 {s2(S_MA)}, vcc
        s_cbranch_execz L_nopf
        global_load_dword v159, v11, s[72:73]       ; HZ_SKIP_BEGIN HZ_SKIP_END
L_nopf:
        s_mov_b64 exec, -1
        """)
        for r, off in ptrs[4:]:
            g(f"s_load_dwordx2 {s2(r)}, s[0:1], {off}")
        g(f"""
        s_and_b32 s{S_T0}, s{S_XCD}, 1
        s_lshl_b32 s{S_T0}, s{S_T0}, 3
        s_and_b32 s{S_T1}, s{S_SLOT}, 7
        s_add_u32 s{S_RB}, s{S_T0}, s{S_T1}
        s_lshr_b32 s{S_T0}, s{S_XCD}, 1
        s_lshl_b32 s{S_T0}, s{S_T0}, 2
        s_lshr_b32 s{S_T2}, s{S_SLOT}, 3
        s_add_u32 s{S_HP}, s{S_T0}, s{S_T2}
        s_lshl_b32 s{S_T2}, s{S_T2}, 1
        s_add_u32 s{S_T1}, s{S_T1}, s{S_T2}
        s_and_b32 s{S_T1}, s{S_T1}, 7
        s_mul_i32 s{S_T1}, s{S_T1}, 10
        s_lshr_b32 s{S_C0}, s{S_T1}, 3
        v_lshrrev_b32 v9, 3, v1
        v_mul_u32_u24 v9, 1280, v9
        v_and_b32 v11, 7, v1
        v_lshrrev_b32 v15, 4, v1
        v_xor_b32 v11, v11, v15
        v_lshl_add_u32 v4, v11, 4, v9
        v_xor_b32 v11, 4, v11
        v_lshl_add_u32 v5, v11, 4, v9
        v_add_u32 v5, {10240 - 1024}, v5
        v_add_u32 v157, {20480 - 2048}, v4
        v_add_u32 v158, {20480 - 2048}, v5
        s_lshl_b32 s{S_T0}, s{S_RB}, 7
        s_lshl_b32 s{S_T1}, s{S_WAVE}, 5
        s_add_u32 s{S_T1}, s{S_T1}, s{S_T0}
        s_mul_i32 s{S_XB}, s{S_T1}, 1280
        s_mul_i32 s{S_WB}, s{S_WAVE}, {16*3840}
        s_mul_i32 s{S_T1}, s{S_HP}, 80
        s_add_u32 s{S_WB}, s{S_WB}, s{S_T1}
        s_lshl_b32 s{S_LX}, s{S_WAVE}, 12
        s_mul_i32 s{S_LW}, s{S_WAVE}, 3072
        s_add_u32 s{S_LW}, s{S_LW}, 16384
        s_add_u32 s{S_CC}, s{S_XB}, 1280
        s_lshl_b32 s{S_CX}, s{S_C0}, 7
        s_add_u32 s{S_CX}, s{S_CX}, s{S_XB}
        s_mul_i32 s{S_CW}, s{S_C0}, {64*3840}
        s_add_u32 s{S_CW}, s{S_CW}, s{S_WB}
        """)
        for r in (SRD_X, SRD_W):
            g(f"s_mov_b32 s{r+2}, {sizes[r]}\ns_mov_b32 s{r+3}, 0x20000")
        for n in range(3):
            g(f"""
            v_add_u32 v9, {64*n}, v1
            v_mul_u32_u24 v11, 43691, v9
            v_lshrrev_b32 v11, 19, v11
            v_mul_u32_u24 v12, 12, v11
            v_sub_u32 v12, v9, v12
            v_cmp_gt_u32 {s2(S_WM+2*n)}, 10, v12
            v_cmp_gt_u32 vcc, 5, v12
            v_mul_u32_u24 v11, 3840, v11
            v_lshl_add_u32 v11, v12, 4, v11
            v_mov_b32 v13, 2480
            v_add_u32 v14, 1280, v11
            v_add_u32 v11, v13, v11
            v_cndmask_b32 v{6+n}, v11, v14, vcc
            """)
            if n: g(f"v_subrev_u32 v{6+n}, {1024*n}, v{6+n}")
        g("s_waitcnt lgkmcnt(0)")
        self.stamp("start"); self.stamp("clk0", True)
        for r in (SRD_WR, SRD_PHI):
            g(f"s_mov_b32 s{r+2}, {sizes[r]}\ns_mov_b32 s{r+3}, 0x20000")
        P = 160
        nt = " nt" if "nt" in self.exp else ""
        self.nt = nt
        g(f"""
        v_mul_u32_u24 v10, 20, v1
        s_lshl_b32 s{S_T0}, s{S_RB}, 7
        s_lshl_b32 s{S_T1}, s{S_HP}, 3
        s_add_u32 s{S_T0}, s{S_T0}, s{S_T1}
        s_lshl_b32 s{S_T1}, s{S_WAVE}, 1
        s_add_u32 s{S_P0ROW}, s{S_T0}, s{S_T1}
        s_mul_i32 s{S_T4}, s{S_P0ROW}, 1280
        buffer_load_dwordx4 {v(P,4)}, v10, {srd(SRD_X)}, s{S_T4} offen
        buffer_load_dword v{P+4}, v10, {srd(SRD_X)}, s{S_T4} offen offset:16
        buffer_load_dwordx4 {v(P+6,4)}, v10, {srd(SRD_X)}, s{S_T4} offen offset:1280
        buffer_load_dword v{P+10}, v10, {srd(SRD_X)}, s{S_T4} offen offset:1296
        buffer_load_dwordx4 {v(P+12,4)}, v10, {srd(SRD_WR)}, 0 offen
        buffer_load_dword v{P+16}, v10, {srd(SRD_WR)}, 0 offen offset:16
        v_lshlrev_b32 v11, 4, v1
        s_mul_i32 s{S_T0}, s{S_HP}, 1600
        s_mul_i32 s{S_T1}, s{S_WAVE}, 1664
        s_add_u32 m0, s{S_T1}, {L_WPHI}
        s_add_u32 s{S_T4}, s{S_T1}, {L_WPHI + 1024}
        buffer_load_dwordx4 v11, {srd(SRD_PHI)}, s{S_T0} offen lds
        s_mov_b32 m0, s{S_T4}
        s_mov_b32 exec_lo, -1
        s_mov_b32 exec_hi, 15
        s_add_u32 s{S_T0}, s{S_T0}, 1024
        buffer_load_dwordx4 v11, {srd(SRD_PHI)}, s{S_T0} offen lds
        s_mov_b64 exec, -1
        """)
        g.vmi("p0", 6); g.vmi("phi", 2)
        tagged = lambda i: [(x, f"c{i}") for x in self.p1_refill(i)]
        for lines, tag in tagged(0):
            for x in lines: g(x)
            g.vmi(tag)
        self.stamp("c0iss")
        s1, s2_ = self.capture(self.setup1), self.capture(self.setup2)
        p0, pf = self.capture(self.phase0), self.capture(self.phi_frags)
        cut = 260
        rest2 = s2_
        for x in s1: self.emit_resolved(x)
        at = self.atoms(s2_); n = 0; head = [];
        while at and n < cut - len(s1):
            a_ = at.pop(0); n += len(a_); head += a_
        for x in head: self.emit_resolved(x)
        tail = [x for a_ in at for x in a_]
        if self.dist == 3:
            self.interleave(tagged(1), tail + p0)
            self.interleave(tagged(2), pf)
        else:
            self.interleave(tagged(1), tail + p0 + pf)
        self.stamp("filled")

    def setup1(self):
        g = self
        sizes = self.sizes
        for r in (SRD_WS, SRD_DBG):
            g(f"s_mov_b32 s{r+2}, {sizes[r]}\ns_mov_b32 s{r+3}, 0x20000")
        g(f"""
        s_lshl_b32 s{S_T0}, s{S_WAVE}, 8
        s_add_u32 s{S_T0}, s{S_T0}, s2
        s_cmp_lg_u32 s{S_T0}, 256
        s_cbranch_scc1 L_noinit
        v_lshlrev_b32 v11, 7, v1       ; HZ_SKIP_BEGIN
        v_mov_b32 v12, 0
        buffer_store_dword v12, v11, {srd(SRD_WS)}, 0 offen sc1   ; HZ_SKIP_END
L_noinit:
        """)
        for r in (SRD_WO, SRD_G, SRD_U, SRD_D, SRD_OUT):
            g(f"s_mov_b32 s{r+2}, {sizes[r]}\ns_mov_b32 s{r+3}, 0x20000")
        g(f"""
        v_and_b32 v2, 31, v1
        v_lshrrev_b32 v3, 5, v1
        v_mov_b32 v12, 0x3f80
        v_mov_b32 v13, 0
        v_mov_b32 v14, 0x3f80
        v_mov_b32 v15, 0
        v_lshrrev_b32 v9, 6, v0
        v_mul_u32_u24 v9, {SLOT}, v9
        v_mul_u32_u24 v11, 192, v1
        v_add_u32 v9, v9, v11
        ds_write_b128 v9, v[12:15] offset:{16384 + 160}
        v_add_u32 v11, {4*SLOT}, v11
        ds_write_b128 v11, v[12:15] offset:{16384 + 160}
        v_mov_b32 v16, 0
        v_mov_b32 v17, 0
        v_mov_b32 v18, 0
        v_mov_b32 v19, 0
        v_lshlrev_b32 v20, 4, v0
        v_add_u32 v20, {L_KVF}, v20
        ds_write_b128 v20, v[16:19]
        v_lshlrev_b32 v21, 3, v0
        v_add_u32 v21, {L_KVF + 4096}, v21
        ds_write_b64 v21, v[16:17]
        v_mov_b32 v84, 0x3f803f80
        v_mov_b32 v85, 0x3f803f80
        """)
        g(f"""
        v_lshrrev_b32 v9, 1, v2
        v_and_b32 v9, 7, v9
        v_xor_b32 v9, v9, v3
        v_lshlrev_b32 v9, 4, v9
        v_lshl_add_u32 v9, v2, 7, v9
        v_add_u32 v128, s{S_LX}, v9
        v_xor_b32 v129, 32, v128
        v_xor_b32 v130, 64, v128
        v_xor_b32 v131, 96, v128
        v_add_u32 v132, {3*SLOT}, v128
        v_add_u32 v133, {3*SLOT}, v129
        v_add_u32 v134, {3*SLOT}, v130
        v_add_u32 v135, {3*SLOT}, v131
        v_bfe_u32 v9, v1, 2, 2
        v_lshl_add_u32 v9, v3, 3, v9
        v_mul_u32_u24 v9, 192, v9
        v_bfe_u32 v11, v1, 4, 1
        v_and_b32 v12, 3, v1
        v_lshl_add_u32 v11, v11, 2, v12
        v_lshl_add_u32 v9, v11, 3, v9
        v_add_u32 v136, 16384, v9
        v_add_u32 v137, {16384 + 2*SLOT}, v9
        v_add_u32 v138, {16384 + 4*SLOT}, v9
        s_lshl_b32 s{S_T0}, s{S_WAVE}, 6
        v_add_u32 v72, s{S_T0}, v136
        v_add_u32 v73, s{S_T0}, v137
        v_add_u32 v74, s{S_T0}, v138
        """)

    def setup2(self):
        g = self
        self.moe_roles()
        self.kv_addresses()
        self.c_addresses()
        self.o_addresses()
        self.wq_setup()
        g(f"""
        s_lshl_b32 s{S_T0}, s{S_WAVE}, 5
        v_add_u32 v9, s{S_T0}, v2
        v_mul_u32_u24 v9, 336, v9
        v_add_u32 v9, {L_T}, v9
        v_lshl_add_u32 v9, v3, 3, v9
        v_accvgpr_write_b32 a192, v9
        s_lshr_b32 s{S_T0}, s{S_WAVE}, 1
        s_and_b32 s{S_T4}, s{S_WAVE}, 1
        v_bfe_u32 v9, v1, 2, 2
        v_lshlrev_b32 v9, 1, v9
        v_add_u32 v9, v9, v3
        v_lshlrev_b32 v9, 1, v9
        v_mul_u32_u24 v9, 336, v9
        v_add_u32 v9, {L_T}, v9
        v_bfe_u32 v11, v1, 4, 1
        v_and_b32 v12, 3, v1
        v_lshl_add_u32 v11, v11, 2, v12
        s_mul_i32 s{S_T2}, s{S_T0}, 12
        s_lshl_b32 s{S_T3}, s{S_T4}, 3
        s_add_u32 s{S_T2}, s{S_T2}, s{S_T3}
        v_add_u32 v12, s{S_T2}, v11
        v_lshl_add_u32 v13, v12, 3, v9
        v_accvgpr_write_b32 a193, v13
        s_mul_i32 s{S_T2}, s{S_T0}, 5
        s_add_u32 s{S_T2}, s{S_T2}, 24
        v_add_u32 v12, s{S_T2}, v11
        s_mul_i32 s{S_T3}, s{S_T0}, -3
        s_add_i32 s{S_T3}, s{S_T3}, 37
        v_mov_b32 v13, s{S_T3}
        v_cmp_eq_u32 vcc, 5, v11
        v_cndmask_b32 v12, v12, v13, vcc
        s_add_i32 s{S_T3}, s{S_T3}, -13
        v_add_u32 v13, s{S_T3}, v11
        v_cmp_lt_u32 vcc, 5, v11
        v_cndmask_b32 v12, v12, v13, vcc
        v_lshl_add_u32 v13, v12, 3, v9
        v_accvgpr_write_b32 a194, v13
        v_mul_u32_u24 v9, 336, v3
        v_lshl_add_u32 v9, v2, 4, v9
        v_accvgpr_write_b32 a195, v9
        s_lshl_b32 s{S_T2}, s{S_HP}, 4
        s_add_u32 s{S_T2}, s{S_T2}, s{S_RB}
        s_mul_i32 s{S_T2}, s{S_T2}, {KVP_SZ}
        s_add_u32 s{S_T2}, s{S_T2}, {WS_KVP}
        s_mul_i32 s{S_T3}, s{S_T0}, 3360
        s_add_u32 s{S_KVS}, s{S_T2}, s{S_T3}
        """)

    def phase0(self):
        g = self
        P = 160
        self.stamp("pre_p0")
        g.vmwait("phi")
        self.stamp("p0data")
        X0, X1, W = P, P + 6, P + 12
        A = 180
        for i in range(7): g(f"v_mov_b32 v{A+i}, 0")
        for d in range(5):
            g(f"""
            v_dot2c_f32_bf16 v{A+0}, v{X0+d}, v84
            v_dot2c_f32_bf16 v{A+1}, v{X0+d}, v{X0+d}
            v_dot2c_f32_bf16 v{A+2}, v{X0+d}, v{W+d}
            v_dot2c_f32_bf16 v{A+3}, v{X1+d}, v84
            v_dot2c_f32_bf16 v{A+4}, v{X1+d}, v{X1+d}
            v_dot2c_f32_bf16 v{A+5}, v{X1+d}, v{W+d}
            v_dot2c_f32_bf16 v{A+6}, v{W+d}, v84
            """)
        g("s_nop 2")
        for ctl in ("row_shr:1 row_mask:0xf bank_mask:0xf bound_ctrl:0", "row_shr:2 row_mask:0xf bank_mask:0xf bound_ctrl:0",
                    "row_shr:4 row_mask:0xf bank_mask:0xf bound_ctrl:0", "row_shr:8 row_mask:0xf bank_mask:0xf bound_ctrl:0",
                    "row_bcast:15 row_mask:0xa bank_mask:0xf", "row_bcast:31 row_mask:0xc bank_mask:0xf"):
            for i in range(7):
                g(f"v_add_f32_dpp v{A+i}, v{A+i}, v{A+i} {ctl}")
        T = 190
        g(f"v_mov_b32 v{T+8}, 0x3acccccd")
        for r in range(2):
            sx, sq, sw = A + 3*r, A + 3*r + 1, A + 3*r + 2
            m, t1, t2 = T + 3*r, T + 3*r + 1, T + 3*r + 2
            g(f"""
            v_mul_f32 v{m}, v{sx}, v{T+8}
            v_mul_f32 v{t1}, v{sq}, v{T+8}
            v_fma_f32 v{t1}, -v{m}, v{m}, v{t1}
            v_max_f32 v{t1}, 0, v{t1}
            """)
            g.rnd_bf16(t1, t1)
            g(f"v_add_f32 v{t1}, 0x3727c5ac, v{t1}")
            g.rnd_bf16(t1, t1)
            g(f"v_sqrt_f32 v{t1}, v{t1}")
            g.rnd_bf16(t1, t1)
            g.rnd_bf16(m, m)
            g(f"""
            v_rcp_f32 v{t1}, v{t1}
            v_fma_f32 v{t2}, -v{m}, v{A+6}, v{sw}
            v_mul_f32 v{t2}, v{t2}, v{t1}
            """)
        g(f"""
        v_mov_b32 v{T+7}, s{S_P0ROW}
        v_add_u32 v{T+9}, 1, v{T+7}
        v_cmp_gt_f32 vcc, v{T+5}, v{T+2}
        v_cndmask_b32 v{T+6}, v{T+2}, v{T+5}, vcc
        v_cndmask_b32 v{T+7}, v{T+7}, v{T+9}, vcc
        s_lshl_b32 s{S_T0}, s{S_WAVE}, 3
        s_add_u32 s{S_T0}, s{S_T0}, {L_P0}
        v_mov_b32 v9, s{S_T0}
        s_mov_b32 exec_lo, 0
        s_brev_b32 exec_hi, 1
        ds_write_b64 v9, {v(T+6,2)}
        s_mov_b64 exec, -1
        """)

    def phi_frags(self):
        g = self
        g(f"""
        v_lshrrev_b32 v9, 3, v2
        v_and_b32 v11, 3, v2
        v_lshl_add_u32 v9, v9, 2, v11
        v_min_u32 v9, 9, v9
        v_bfe_u32 v11, v2, 2, 1
        v_mad_u32_u24 v9, v11, 10, v9
        v_lshlrev_b32 v9, 1, v9
        s_mul_i32 s{S_T0}, s{S_WAVE}, 1664
        s_add_u32 s{S_T0}, s{S_T0}, {L_WPHI}
        v_add_u32 v9, s{S_T0}, v9
        v_mul_u32_u24 v11, 160, v3
        v_add_u32 v11, v11, v9
        """)
        def rd(reg, base, ds):
            for i, d in enumerate(ds):
                g(f"ds_read_u16 v{T0 + i}, v{base} offset:{d}")
            g("s_waitcnt lgkmcnt(0)")
            for i in range(0, len(ds), 2):
                g(f"v_lshl_or_b32 v{reg + i//2}, v{T0+i+1}, 16, v{T0+i}")
        T0 = 200
        rd(140, 11, [40*i for i in range(4)] + [40*(8+i) for i in range(4)] + [40*(16+i) for i in range(4)])
        rd(146, 9, [800 + 40*i for i in range(4)])
        rd(148, 11, [800 + 40*(4+i) for i in range(4)] + [800 + 40*(12+i) for i in range(4)])
        g(f"""
        s_mov_b32 s{S_MA}, 0
        s_mov_b32 s{S_MA+1}, -1
        s_waitcnt lgkmcnt(0)
        v_cndmask_b32 v144, v144, 0, {s2(S_MA)}
        v_cndmask_b32 v145, v145, 0, {s2(S_MA)}
        v_cndmask_b32 v146, 0, v146, {s2(S_MA)}
        v_cndmask_b32 v147, 0, v147, {s2(S_MA)}
        """)

    def p1_reads(self, n):
        c, ks = divmod(n, 4); s = c % 5; b = n % 3
        base = 128 + ks if s < 3 else 132 + ks
        imm = s * SLOT if s < 3 else (s - 3) * SLOT
        out = [f"ds_read_b128 {ac(4*n,4)}, v{base} offset:{imm}"]
        wb = 136 + s // 2
        imm0 = (s % 2) * SLOT + 16 * ks * 192
        for t in range(3):
            for rd in range(2):
                out.append(f"ds_read_b64_tr_b16 {v(92 + 12*b + 4*t + 2*rd, 2)}, v{wb} offset:{imm0 + 4*rd*192 + 64*t}")
        for rd in range(2):
            out.append(f"ds_read_b64_tr_b16 {v(160 + 4*b + 2*rd, 2)}, v{72 + s // 2} offset:{imm0 + 4*rd*192}")
        return out

    def p1_refill(self, i):
        s = i % 5
        nt = self.nt
        grp = []
        grp.append([f"s_add_u32 m0, s{S_LX}, {s*SLOT}", "s_nop 0" if False else f"s_add_u32 s{S_T1}, s{S_LW}, {s*SLOT}",
                    f"buffer_load_dwordx4 v4, {srd(SRD_X)}, s{S_CX} offen{nt} lds"])
        grp.append([f"buffer_load_dwordx4 v5, {srd(SRD_X)}, s{S_CX} offen offset:1024{nt} lds"])
        grp.append([f"buffer_load_dwordx4 v157, {srd(SRD_X)}, s{S_CX} offen offset:2048{nt} lds"])
        grp.append([f"buffer_load_dwordx4 v158, {srd(SRD_X)}, s{S_CX} offen offset:3072{nt} lds",
                    f"s_add_u32 s{S_CX}, s{S_CX}, 128"])
        grp.append([f"s_mov_b32 m0, s{S_T1}", f"s_mov_b64 exec, {s2(S_WM)}",
                    f"buffer_load_dwordx4 v6, {srd(SRD_W)}, s{S_CW} offen{nt} lds", "s_mov_b64 exec, -1"])
        grp.append([f"s_mov_b64 exec, {s2(S_WM+2)}",
                    f"buffer_load_dwordx4 v7, {srd(SRD_W)}, s{S_CW} offen offset:1024{nt} lds", "s_mov_b64 exec, -1"])
        grp.append([f"s_mov_b64 exec, {s2(S_WM+4)}",
                    f"buffer_load_dwordx4 v8, {srd(SRD_W)}, s{S_CW} offen offset:2048{nt} lds", "s_mov_b64 exec, -1",
                    f"s_add_u32 s{S_CW}, s{S_CW}, {64*3840}", f"s_cmp_eq_u32 s{S_CX}, s{S_CC}",
                    f"s_cselect_b32 s{S_CX}, s{S_XB}, s{S_CX}", f"s_cselect_b32 s{S_CW}, s{S_WB}, s{S_CW}"])
        return grp

    def wq_groups(self):
        grp = []
        for m in range(13):
            q, pt = divmod(m, 5)
            gl = [f"s_add_u32 m0, s{S_WQL}, {m*1024}", f"s_add_u32 s{S_T2}, s{S_WQG}, {q*64*3840}"]
            if m == 12:
                gl += ["s_mov_b32 exec_hi, 0", f"buffer_load_dwordx4 v{152+pt}, {srd(SRD_W)}, s{S_T2} offen lds", "s_mov_b64 exec, -1"]
            else:
                gl += [f"buffer_load_dwordx4 v{152+pt}, {srd(SRD_W)}, s{S_T2} offen lds"]
            grp.append(gl)
        return grp

    def wq_setup(self):
        g = self
        for pt in range(5):
            g(f"""
            v_add_u32 v9, {64*pt}, v1
            v_mul_u32_u24 v11, 52429, v9
            v_lshrrev_b32 v11, 18, v11
            v_mul_u32_u24 v12, 5, v11
            v_sub_u32 v12, v9, v12
            v_and_b32 v13, 3, v11
            v_bfe_u32 v14, v11, 2, 2
            v_and_b32 v11, 0xfffffff0, v11
            v_lshl_add_u32 v11, v13, 2, v11
            v_add_u32 v11, v11, v14
            v_mul_u32_u24 v11, 3840, v11
            v_lshl_add_u32 v{152+pt}, v12, 4, v11
            """)
        g(f"""
        s_mul_i32 s{S_WQL}, s{S_WAVE}, 12800
        s_add_u32 s{S_WQL}, s{S_WQL}, {L_WQ}
        s_mul_i32 s{S_WQG}, s{S_WAVE}, {160*3840}
        s_mul_i32 s{S_T0}, s{S_HP}, 80
        s_add_u32 s{S_WQG}, s{S_WQG}, s{S_T0}
        """)

    def pass1(self):
        g = self
        self.dbg_span(2, True); self.dbg_span(7, False)
        g.vmwait("c0")
        g("s_waitcnt lgkmcnt(0)\ns_barrier")
        self.stamp("c0")
        for x in self.p1_reads(0): g(x)
        g("s_waitcnt lgkmcnt(6)")
        for x in self.p1_reads(1): g(x)
        g(f"""
        s_cmp_lg_u32 s{S_WAVE}, 0
        s_cbranch_scc1 L_nopub
        v_mov_b32 v9, {L_P0}           ; HZ_SKIP_BEGIN
        ds_read_b128 v[172:175], v9
        ds_read_b128 v[176:179], v9 offset:16
        s_lshl_b32 s{S_T0}, s2, 3
        s_add_u32 s{S_T0}, s{S_T0}, {WS_RMAX}
        v_mov_b32 v11, s{S_T0}
        s_waitcnt lgkmcnt(0)
        v_cmp_gt_f32 vcc, v174, v172
        v_cndmask_b32 v172, v172, v174, vcc
        v_cndmask_b32 v173, v173, v175, vcc
        v_cmp_gt_f32 vcc, v176, v172
        v_cndmask_b32 v172, v172, v176, vcc
        v_cndmask_b32 v173, v173, v177, vcc
        v_cmp_gt_f32 vcc, v178, v172
        v_cndmask_b32 v172, v172, v178, vcc
        v_cndmask_b32 v173, v173, v179, vcc
        s_mov_b64 exec, 1
        buffer_store_dwordx2 v[172:173], v11, {srd(SRD_WS)}, 0 offen sc1
        s_mov_b64 exec, -1             ; HZ_SKIP_END
L_nopub:
        """)
        pend = []
        for n in range(40):
            c, ks = divmod(n, 4); b = n % 3
            if ks == 0:
                if c + self.dist <= 9:
                    pend += self.p1_refill(c + self.dist); self.vmq = getattr(self, "vmq", []) + [f"c{c+self.dist}"] * 7
                if c == 3:
                    pend.append(self.touch_wq()); self.vmq.append("tq")
                if c == 7:
                    pend += self.touch_moe(); self.vmq += ["tm"] * 3
                if c == 6:
                    pend.append([f"v_mov_b32 v75, 240", f"buffer_load_dword v75, v75, {srd(SRD_DBG)}, 0 offen sc1"]); self.vmq.append("rdy")
            if ks == 2 and c < 9:
                g(f"s_waitcnt lgkmcnt(6)")
                g.vmwait(f"c{c+1}")
                g("s_barrier")
                self.stamp(f"B{c}")
                if c == 0:
                    g(f"""
                    s_cmp_lg_u32 s2, 0
                    s_cbranch_scc1 L_noready
                    s_cmp_lg_u32 s{S_WAVE}, 1
                    s_cbranch_scc1 L_noready
                    v_mov_b32 v11, 240             ; HZ_SKIP_BEGIN
                    v_mov_b32 v12, 1
                    s_mov_b64 exec, 1
                    buffer_store_dword v12, v11, {srd(SRD_DBG)}, 0 offen sc1
                    s_mov_b64 exec, -1             ; HZ_SKIP_END
L_noready:
                    """)
                if c == self.dist - 1:
                    g(f"""
                    s_cmp_lg_u32 s{S_WAVE}, 0
                    s_cbranch_scc1 L_noatom
                    s_and_b32 s{S_T0}, s2, 3       ; HZ_SKIP_BEGIN
                    s_lshl_b32 s{S_T0}, s{S_T0}, 6
                    v_mov_b32 v11, s{S_T0}
                    v_mov_b32 v12, 1
                    s_mov_b64 exec, 1
                    buffer_atomic_add v12, v11, {srd(SRD_DBG)}, 0 offen sc1
                    s_mov_b64 exec, -1             ; HZ_SKIP_END
L_noatom:
                    """)
            elif n == 39: g("s_waitcnt lgkmcnt(0)")
            else: g("s_waitcnt lgkmcnt(6)")
            rd = self.p1_reads(n + 2) if n + 2 < 40 else []
            if "nords" in self.exp: rd = []
            XP = ac(4*n, 4)
            WF = lambda t: 92 + 12*b + 4*t
            first = (n == 0)
            def dma():
                if pend:
                    grp = pend.pop(0); tag = self.vmq.pop(0)
                    if "nodma" not in self.exp:
                        for x in grp: g(x)
                    if tag: g.vmi(tag)
            cin = lambda r, k: "0" if first else v(r, k)
            g(f"v_mfma_f32_32x32x16_bf16 v[16:31], {v(WF(0),4)}, {XP}, {cin(16,16)}")
            for x in rd[0:3]: g(x)
            dma()
            g(f"v_mfma_f32_32x32x16_bf16 v[32:47], {v(WF(1),4)}, {XP}, {cin(32,16)}")
            for x in rd[3:6]: g(x)
            g(f"v_mfma_f32_32x32x16_bf16 v[48:63], {v(WF(2),4)}, {XP}, {cin(48,16)}")
            for x in rd[6:9]: g(x)
            dma()
            if "nosq" not in self.exp:
                g(f"v_mfma_f32_4x4x4_16b_bf16 v[64:67], {ac(4*n,2)}, {ac(4*n,2)}, {cin(64,4)}")
                g(f"v_mfma_f32_4x4x4_16b_bf16 v[68:71], {ac(4*n+2,2)}, {ac(4*n+2,2)}, {cin(68,4)}")
            if "nocs" not in self.exp:
                g(f"v_mfma_f32_4x4x4_16b_bf16 v[76:79], {v(160+4*b,2)}, v[84:85], {cin(76,4)}")
                g(f"v_mfma_f32_4x4x4_16b_bf16 v[80:83], {v(160+4*b+2,2)}, v[84:85], {cin(80,4)}")
            if c in (3, 6, 7): dma()
        while pend:
            grp = pend.pop(0); tag = self.vmq.pop(0)
            for x in grp: g(x)
            if tag: g.vmi(tag)
        self.stamp("p1end")

    def touch_moe(self):
        return [
            [f"v_mul_u32_u24 v9, 13108, v1", "v_lshrrev_b32 v9, 16, v9", "v_mul_u32_u24 v10, 5, v9", "v_sub_u32 v10, v1, v10",
             "v_mul_u32_u24 v11, 3456, v9", "v_lshl_add_u32 v11, v10, 7, v11",
             f"s_mul_i32 s{S_T0}, s{S_XCD}, 448", f"s_and_b32 s{S_T0}, s{S_T0}, 0xffffff80",
             f"s_lshl_b32 s{S_T2}, s{S_SLOT}, 2", f"s_add_u32 s{S_T2}, s{S_T2}, s{S_WAVE}", f"s_mul_i32 s{S_T2}, s{S_T2}, {5*3456}",
             f"s_add_u32 s{S_T0}, s{S_T0}, s{S_T2}", "s_mov_b32 exec_lo, 0x1ffffff", "s_mov_b32 exec_hi, 0",
             f"buffer_load_dword v159, v11, {srd(SRD_G)}, s{S_T0} offen", "s_mov_b64 exec, -1"],
            ["s_mov_b32 exec_lo, 0x1ffffff", "s_mov_b32 exec_hi, 0",
             f"buffer_load_dword v159, v11, {srd(SRD_U)}, s{S_T0} offen", "s_mov_b64 exec, -1"],
            ["v_mul_u32_u24 v9, 6554, v1", "v_lshrrev_b32 v9, 16, v9", "v_mul_u32_u24 v10, 10, v9", "v_sub_u32 v10, v1, v10",
             "v_mul_u32_u24 v12, 1280, v9", "v_lshl_add_u32 v12, v10, 7, v12",
             f"s_mul_i32 s{S_T0}, s{S_XCD}, {224*1280}", f"s_mul_i32 s{S_T2}, s{S_SLOT}, 7", f"s_lshl_b32 s{S_T3}, s{S_WAVE}, 1",
             f"s_add_u32 s{S_T2}, s{S_T2}, s{S_T3}", f"s_mul_i32 s{S_T2}, s{S_T2}, 1280", f"s_add_u32 s{S_T0}, s{S_T0}, s{S_T2}",
             "s_mov_b32 exec_lo, 0xfffff", "s_mov_b32 exec_hi, 0",
             f"buffer_load_dword v159, v12, {srd(SRD_D)}, s{S_T0} offen", "s_mov_b64 exec, -1"]]

    def touch_wq(self):
        return ["v_mul_u32_u24 v9, 21846, v1", "v_lshrrev_b32 v9, 16, v9", "v_mul_u32_u24 v10, 3, v9", "v_sub_u32 v10, v1, v10",
                f"s_lshl_b32 s{S_T0}, s{S_SLOT}, 2", f"s_add_u32 s{S_T0}, s{S_T0}, s{S_WAVE}", f"s_mul_i32 s{S_T0}, s{S_T0}, 5",
                f"v_add_u32 v9, s{S_T0}, v9", "v_mul_u32_u24 v9, 3840, v9", "v_lshl_add_u32 v9, v10, 7, v9",
                f"s_lshr_b32 s{S_T0}, s{S_XCD}, 1", f"s_mul_i32 s{S_T0}, s{S_T0}, 320", f"s_and_b32 s{S_T0}, s{S_T0}, 0xffffff80",
                "s_mov_b32 exec_lo, 0x7fff", "s_mov_b32 exec_hi, 0",
                f"buffer_load_dword v159, v9, {srd(SRD_W)}, s{S_T0} offen", "s_mov_b64 exec, -1"]

    def stats_and_colsum(self, first):
        g = self
        csoff = 0 if first else 128 * 4
        for i in range(4): g(f"v_add_f32 v{76+i}, v{76+i}, v{80+i}")
        for i in range(4): g(f"v_mov_b32 v{80+i}, v{76+i}")
        for i in range(4): g(f"v_permlane32_swap_b32 v{76+i}, v{80+i}")
        for i in range(4): g(f"v_add_f32 v{76+i}, v{76+i}, v{80+i}")
        g(f"""
        s_lshl_b32 s{S_T0}, s{S_WAVE}, 7
        s_add_u32 s{S_T0}, s{S_T0}, {L_CS + csoff}
        v_lshl_add_u32 v9, v1, 2, s{S_T0}
        s_mov_b32 exec_lo, 0x11111111
        s_mov_b32 exec_hi, 0
        ds_write_b128 v9, v[76:79]
        s_mov_b64 exec, -1
        """)
        if first:
            for i in range(4): g(f"v_add_f32 v{64+i}, v{64+i}, v{68+i}")
            for i in range(1, 4):
                m = 0x11111111 << i
                g(f"s_mov_b32 s{S_MB}, {hex(m)}\ns_mov_b32 s{S_MB+1}, {hex(m)}\nv_cndmask_b32 v64, v64, v{64+i}, {s2(S_MB)}")
            g(f"""
            v_mov_b32 v65, v64
            v_mov_b32 v90, 0x3acccccd
            s_nop 0
            v_permlane32_swap_b32 v64, v65
            v_add_f32 v64, v64, v65
            v_mul_f32 v66, v56, v90
            v_mul_f32 v64, v64, v90
            v_fma_f32 v64, -v66, v66, v64
            v_max_f32 v64, 0, v64
            """)
            g.rnd_bf16(64, 64)
            g("v_add_f32 v64, 0x3727c5ac, v64")
            g.rnd_bf16(64, 64)
            g("v_sqrt_f32 v64, v64")
            g.rnd_bf16(90, 64)
            g.rnd_bf16(91, 66)
            g("v_rcp_f32 v88, v90\nv_sub_f32 v86, 0, v91")
        g("s_waitcnt lgkmcnt(0)\ns_barrier")
        self.stamp("csbar" if first else "csbar2")

    def normalise(self, quads, csoff):
        g = self
        g(f"v_lshlrev_b32 v9, 4, v3\nv_add_u32 v9, {L_CS + csoff}, v9")
        for i, (r, col) in enumerate(quads):
            g(f"ds_read_b128 {v(160+4*i,4)}, v9 offset:{col*4}")
        for i, (r, col) in enumerate(quads):
            g(f"s_waitcnt lgkmcnt({len(quads)-1-i})")
            for hh in range(2):
                g(f"v_pk_fma_f32 {v(r+2*hh,2)}, {v(160+4*i+2*hh,2)}, v[86:87], {v(r+2*hh,2)} op_sel_hi:[1,0,1]")
            for hh in range(2):
                g(f"v_pk_mul_f32 {v(r+2*hh,2)}, {v(r+2*hh,2)}, v[88:89] op_sel_hi:[1,0]")

    def softmax(self, H0, H1):
        g = self
        P = (92, 108)
        L = 0x3fb8aa3b
        g(f"v_mov_b32 v124, {hex(L)}\nv_mov_b32 v126, {hex(L | 0x80000000)}")
        for H in (H0, H1): g(f"v_mov_b32 v{H+10}, 0\nv_mov_b32 v{H+11}, 0")
        E = (160, 180)
        MX = (200, 204)
        for a in range(2):
            p, mx = P[a], MX[a]
            g(f"""
            v_max3_f32 v{mx}, v{p}, v{p+1}, v{p+2}
            v_min3_f32 v{mx+1}, v{p}, v{p+1}, v{p+2}
            v_max3_f32 v{mx}, v{mx}, v{p+3}, v{p+4}
            v_min3_f32 v{mx+1}, v{mx+1}, v{p+3}, v{p+4}
            v_max3_f32 v{mx}, v{mx}, v{p+5}, v{p+6}
            v_min3_f32 v{mx+1}, v{mx+1}, v{p+5}, v{p+6}
            v_max3_f32 v{mx}, v{mx}, v{p+7}, v{p+8}
            v_min3_f32 v{mx+1}, v{mx+1}, v{p+7}, v{p+8}
            v_max_f32 v{mx}, v{mx}, v{p+9}
            v_min_f32 v{mx+1}, v{mx+1}, v{p+9}
            v_sub_f32 v{mx+1}, 0, v{mx+1}
            """)
        for a in range(2): g(f"v_permlane32_swap_b32 v{MX[a]}, v{MX[a]+1}")
        for a in range(2): g(f"v_max_f32 v{MX[a]}, v{MX[a]}, v{MX[a]+1}")
        for a in range(2): g(f"v_mov_b32 v{MX[a]+1}, v{MX[a]}")
        for a in range(2): g(f"v_permlane32_swap_b32 v{MX[a]}, v{MX[a]+1}")
        for a in range(2):
            mx = MX[a]
            g(f"v_mul_f32 v{mx+2}, v{mx+1}, v126\nv_mul_f32 v{mx}, v{mx}, v126")
        for a in range(2):
            p, mx, e = P[a], MX[a], E[a]
            for i in range(5):
                g(f"v_pk_fma_f32 {v(e+2*i,2)}, {v(p+2*i,2)}, v[124:125], {v(mx,2)} op_sel_hi:[1,0,0]")
                g(f"v_pk_fma_f32 {v(e+10+2*i,2)}, {v(p+2*i,2)}, v[126:127], {v(mx+2,2)} op_sel_hi:[1,0,0]")
        self.stamp("sm_pre" + str(H0) + getattr(self, "smtag", ""))
        for a in range(2):
            for i in range(20): g(f"v_exp_f32 v{E[a]+i}, v{E[a]+i}")
        self.stamp("sm_exp" + getattr(self, "smtag", ""))
        SM = (208, 214)
        for a in range(2):
            e, sm = E[a], SM[a]
            g(f"v_pk_add_f32 {v(sm,2)}, {v(e,2)}, {v(e+2,2)}\nv_pk_add_f32 {v(sm+2,2)}, {v(e+10,2)}, {v(e+12,2)}")
        for i in range(2, 5):
            for a in range(2):
                e, sm = E[a], SM[a]
                g(f"v_pk_add_f32 {v(sm,2)}, {v(sm,2)}, {v(e+2*i,2)}\nv_pk_add_f32 {v(sm+2,2)}, {v(sm+2,2)}, {v(e+10+2*i,2)}")
        for a in range(2):
            sm = SM[a]
            g(f"v_add_f32 v{sm}, v{sm}, v{sm+1}\nv_add_f32 v{sm+1}, v{sm+2}, v{sm+3}")
        for a in range(2): g(f"v_permlane32_swap_b32 v{SM[a]}, v{SM[a]+1}")
        for a in range(2): g(f"v_add_f32 v{SM[a]}, v{SM[a]}, v{SM[a]+1}")
        for a in range(2): g(f"v_mov_b32 v{SM[a]+2}, v{SM[a]}")
        for a in range(2): g(f"v_permlane32_swap_b32 v{SM[a]}, v{SM[a]+2}")
        for a in range(2): g(f"v_rcp_f32 v{SM[a]}, v{SM[a]}\nv_rcp_f32 v{SM[a]+2}, v{SM[a]+2}")
        for a, H in ((0, H0), (1, H1)):
            e, sm = E[a], SM[a]
            for i in range(5):
                g(f"v_pk_mul_f32 {v(e+2*i,2)}, {v(e+2*i,2)}, {v(sm,2)} op_sel_hi:[1,0]")
                g(f"v_pk_mul_f32 {v(e+10+2*i,2)}, {v(e+10+2*i,2)}, {v(sm+2,2)} op_sel_hi:[1,0]")
            for i in range(10):
                g(f"v_cvt_pk_bf16_f32 v{H+i}, v{e+2*i}, v{e+2*i+1}")

    def norm_reads(self, quads, csoff, r0):
        g = self
        for i, (r, col) in enumerate(quads):
            g(f"ds_read_b128 {v(r0+4*i,4)}, v9 offset:{col*4}")

    def norm_apply(self, quads, r0, after):
        g = self
        for i, (r, col) in enumerate(quads):
            g(f"s_waitcnt lgkmcnt({len(quads)-1-i+after})")
            for hh in range(2):
                g(f"v_pk_fma_f32 {v(r+2*hh,2)}, {v(r0+4*i+2*hh,2)}, v[86:87], {v(r+2*hh,2)} op_sel_hi:[1,0,1]")
            for hh in range(2):
                g(f"v_pk_mul_f32 {v(r+2*hh,2)}, {v(r+2*hh,2)}, v[88:89] op_sel_hi:[1,0]")

    def featmap_mfma(self, PK):
        g = self
        g(f"v_mfma_f32_32x32x16_bf16 v[92:107], v[140:143], {v(PK,4)}, 0")
        g(f"v_mfma_f32_32x32x16_bf16 v[108:123], v[146:149], {v(PK+4,4)}, 0")
        g(f"v_mfma_f32_32x32x8_bf16 v[92:107], v[144:145], {v(PK+4,2)}, v[92:107]")
        g(f"v_mfma_f32_32x32x8_bf16 v[108:123], v[150:151], {v(PK+8,2)}, v[108:123]")

    def k_epilogue(self):
        g = self
        self.stats_and_colsum(True)
        PK, PV = 244, 210
        kq = [(16+4*j, 8*j) for j in range(4)] + [(32, 32)]
        vq = [(36, 40), (40, 48), (44, 56), (48, 64), (52, 72)]
        def part1():
            g(f"v_lshlrev_b32 v9, 4, v3\nv_add_u32 v9, {L_CS}, v9")
            self.norm_reads(kq, 0, 160); self.norm_reads(vq, 0, 180)
            self.norm_apply(kq, 160, 5)
            for i in range(10): g(f"v_cvt_pk_bf16_f32 v{PK+i}, v{16+2*i}, v{16+2*i+1}")
            self.stamp("k_cvt")
            self.featmap_mfma(PK)
            self.norm_apply(vq, 180, 0)
            self.stamp("v_norm")
            self.dump("kv_norm", list(range(16, 64)) + [86, 88, 90, 91])
            g(f"""
            v_accvgpr_read_b32 v11, a192
            v_mov_b32 v14, 0x3f80
            v_mov_b32 v15, 0
            v_lshl_add_u32 v12, v3, 4, v11
            v_lshl_add_u32 v13, v3, 3, v11
            ds_write_b64 v12, v[14:15] offset:{34*8}
            """)
            for i, (r, col) in enumerate(vq):
                g(f"v_cvt_pk_bf16_f32 v{PV+2*i}, v{r}, v{r+1}\nv_cvt_pk_bf16_f32 v{PV+2*i+1}, v{r+2}, v{r+3}")
                g(f"ds_write_b64 v11, {v(PV+2*i,2)} offset:{192 + 16*i}")
            self.stamp("prefm")
            self.softmax(220, 232)
            self.stamp("postfm")
        self.interleave([(x, "wq") for x in self.wq_groups()], self.capture(part1))
        self.dump("phik", list(range(220, 244)))
        for a, H in ((0, 220), (1, 232)):
            for st in range(3):
                g(f"ds_write_b128 v13, {v(H+4*st,4)} offset:{a*96 + st*32}")
        g("v_accvgpr_read_b32 v160, a193\nv_accvgpr_read_b32 v161, a194\nv_accvgpr_read_b32 v9, a195")
        g(f"v_cmp_gt_u32 vcc, 21, v2\ns_and_b32 s{S_T1}, s{S_WAVE}, 1\ns_mov_b64 {s2(S_MA)}, vcc")
        g("s_waitcnt lgkmcnt(0)\ns_barrier")
        self.stamp("Tbar")
        A0, B0 = 164, 196
        for ks in range(8):
            for rd in range(2):
                g(f"ds_read_b64_tr_b16 {v(A0+4*ks+2*rd,2)}, v160 offset:{(16*ks+rd)*336}")
                g(f"ds_read_b64_tr_b16 {v(B0+4*ks+2*rd,2)}, v161 offset:{(16*ks+rd)*336}")
            if ks >= 2:
                k = ks - 2
                g("s_waitcnt lgkmcnt(8)")
                cin = "0" if k == 0 else "v[92:107]"
                g(f"v_mfma_f32_32x32x16_bf16 v[92:107], {v(A0+4*k,4)}, {v(B0+4*k,4)}, {cin}")
        g("s_waitcnt lgkmcnt(4)")
        g(f"v_mfma_f32_32x32x16_bf16 v[92:107], {v(A0+24,4)}, {v(B0+24,4)}, v[92:107]")
        g("s_waitcnt lgkmcnt(0)")
        g(f"v_mfma_f32_32x32x16_bf16 v[92:107], {v(A0+28,4)}, {v(B0+28,4)}, v[92:107]")
        g(f"""
        s_cmp_lg_u32 s{S_T1}, 0
        s_cbranch_scc1 L_kvft1
        s_mov_b64 exec, {s2(S_MA)}     ; HZ_SKIP_BEGIN
        buffer_store_dwordx4 v[92:95], v9, {srd(SRD_WS)}, s{S_KVS} offen sc1
        buffer_store_dwordx4 v[96:99], v9, {srd(SRD_WS)}, s{S_KVS} offen offset:672 sc1
        buffer_store_dwordx4 v[100:103], v9, {srd(SRD_WS)}, s{S_KVS} offen offset:1344 sc1
        buffer_store_dwordx4 v[104:107], v9, {srd(SRD_WS)}, s{S_KVS} offen offset:2016 sc1
        s_branch L_kvdone              ; HZ_SKIP_END
L_kvft1:
        s_and_b32 s{S_MA}, s{S_MA}, 0x1fffff      ; HZ_SKIP_BEGIN
        s_mov_b32 s{S_MA+1}, 0
        s_mov_b64 exec, {s2(S_MA)}
        buffer_store_dwordx4 v[92:95], v9, {srd(SRD_WS)}, s{S_KVS} offen offset:2688 sc1
        buffer_store_dwordx4 v[96:99], v9, {srd(SRD_WS)}, s{S_KVS} offen offset:3024 sc1   ; HZ_SKIP_END
L_kvdone:
        s_mov_b64 exec, -1
        """)
        self.stamp("kvstore")

    def dbg_span(self, word, invert):
        if "span" not in self.exp: return
        g = self
        lab = f"L_span{word}"
        g(f"""
        s_and_b32 s74, s2, 15
        s_cmp_lg_u32 s74, 0
        s_cbranch_scc1 {lab}
        s_cmp_lg_u32 s{S_WAVE}, 0
        s_cbranch_scc1 {lab}
        s_memrealtime s[74:75]
        s_waitcnt lgkmcnt(0)
        {"s_not_b32 s74, s98" if invert else "s_nop 0"}
        v_mov_b32 v9, {word*4}
        v_mov_b32 v10, s74
        s_mov_b64 exec, 1
        buffer_atomic_umax v10, v9, {srd(SRD_DBG)}, 0 offen sc1
        s_mov_b64 exec, -1
{lab}:
        """)

    def finish(self):
        g = self
        self.dbg_span(3, False)
        if self.stamps:
            g("s_waitcnt lgkmcnt(0)")
            self.flush_stamps()
            g(f"""
            s_lshl_b32 s{S_T0}, s2, 2
            s_add_u32 s{S_T0}, s{S_T0}, s{S_WAVE}
            s_lshl_b32 s{S_T0}, s{S_T0}, 8
            s_add_u32 s{S_T0}, s{S_T0}, {WS_TS}
            v_lshlrev_b32 v9, 2, v1
            buffer_store_dword v255, v9, {srd(SRD_WS)}, s{S_T0} offen
            """)
        g("L_exit:\ns_endpgm\nL_code_end:")

    def pre_k_epilogue(self):
        pass

    def build(self):
        g = self
        self.prologue()
        self.dump("phifrag", list(range(140, 152)))
        self.pass1()
        self.dump("acc1", list(range(16, 84)))
        if self.stop != "pass1":
            self.pre_k_epilogue()
            self.k_epilogue()
        if self.stop not in ("pass1", "kv"):
            self.rest()
        self.finish()

    def text(self):
        body, nins = hazard.fix([l.strip() for l in self.a.lines])
        hdr = open("parallel_sum__linear_kernel_hedgehog__moe_arch_mod__prompt.s.ref").read().split("\n")
        top = [l for l in hdr if l.startswith(";") and "@launch" not in l and "Override" not in l and "grid=ceil" not in l]
        out = "\n".join(top) + "\n"
        out += f"; @launch grid=(256,1,1) block=(256,1,1) lds={LDS_SIZE}\n"
        out += '.amdgcn_target "amdgcn-amd-amdhsa--gfx950"\n.text\n' + kernel_header(NAME)
        out += "\n".join("    " + l if not l.endswith(":") else l for l in body if l) + "\n"
        out += f""".section .rodata,"a"
.p2align 6
.amdhsa_kernel {NAME}
  .amdhsa_next_free_vgpr 512
  .amdhsa_next_free_sgpr 102
  .amdhsa_accum_offset 256
  .amdhsa_group_segment_fixed_size 0
  .amdhsa_kernarg_size 96
  .amdhsa_user_sgpr_count 2
  .amdhsa_user_sgpr_kernarg_segment_ptr 1
  .amdhsa_system_sgpr_workgroup_id_x 1
  .amdhsa_float_denorm_mode_32 3
.end_amdhsa_kernel
"""
        return out, nins


if __name__ == "__main__":
    import argparse, json
    import gen_rest
    ap = argparse.ArgumentParser()
    ap.add_argument("-o", default="k.s")
    ap.add_argument("--stop", default=None)
    ap.add_argument("--dump", default="")
    ap.add_argument("--stamps", default="")
    ap.add_argument("--notouch", action="store_true")
    ap.add_argument("--exp", default="")
    args = ap.parse_args()
    G = gen_rest.Full(stop=args.stop, dumps=[d for d in args.dump.split(",") if d], stamps=set(args.stamps.split(",")) if args.stamps else False, touch=not args.notouch, exp=[e for e in args.exp.split(",") if e])
    G.build()
    t, nins = G.text()
    open(args.o, "w").write(t)
    json.dump({"dumps": G.dump_index, "stamps": getattr(G, "stamp_names", [])}, open(args.o + ".json", "w"))
    print("wrote", args.o, "lines", t.count("\n"), "nops inserted", nins)
```

```python
import sys, re
from asmlib import Asm, kernel_header
import hazard

NAME = "parallel_sum__linear_kernel_hedgehog__moe_arch_mod__prompt_kernel"

WS_CNT   = 0
WS_KVP   = 0x10000
KVP_SZ   = 6784
WS_O     = 0x200000
WS_STATS = 0x500000
WS_RMAX  = 0x508000
WS_Y     = 0x510000
WS_DBG   = 0x800000
WS_TS    = 0x700000
WS_SIZE  = 268435456

SLOT     = 28672
L_WQ     = 0
L_T      = 57344
L_WO     = 0
L_G      = 102400
L_U      = L_G + 20480 + 128
L_OST    = L_G
L_YR     = L_OST + 4 * 5376
L_MISC   = L_U + 20480
L_WPHI   = L_MISC
L_CS     = L_WPHI + 4 * 1664
L_P0     = L_CS + 1024
L_KVF    = L_P0 + 64
L_XS     = L_KVF + 6144
L_HP     = L_XS + 5120
L_END    = L_HP + 640
LDS_SIZE = 163840
assert L_END <= LDS_SIZE, L_END
assert 5 * SLOT <= L_MISC

S_WAVE = 3
SRD_X, SRD_W, SRD_PHI, SRD_WO, SRD_WR, SRD_G, SRD_U, SRD_D, SRD_OUT, SRD_DBG, SRD_WS = range(4, 48, 4)
S_XCD, S_SLOT, S_RB, S_HP = 48, 49, 50, 51
S_XB, S_WB, S_LX, S_LW = 52, 53, 54, 55
S_WM = 56
S_T0, S_T1, S_T2, S_T3, S_T4, S_T5 = 62, 63, 64, 65, 66, 67
S_MA, S_MB = 68, 70
S_C0, S_CC, S_CX, S_CW = 76, 77, 78, 79
S_WQL, S_WQG, S_P0ROW, S_IDX = 80, 81, 82, 83
S_KVS = 75
S_TS = 86

def srd(n): return f"s[{n}:{n+3}]"
def v(b, n=1): return f"v{b}" if n == 1 else f"v[{b}:{b+n-1}]"
def ac(b, n=1): return f"a{b}" if n == 1 else f"a[{b}:{b+n-1}]"
def s2(b): return f"s[{b}:{b+1}]"


class Gen:
    def __init__(self, stop=None, dumps=(), stamps=False, touch=True, exp=()):
        self.touch = touch
        self.dist = 2 if "d2" in exp else 3
        self.exp = set(exp)
        self.a = Asm()
        self.vm = []
        self.stop = stop
        self.dumps = set(dumps)
        self.stamps = stamps
        self.nstamp = 0
        self.pending = []
        self.dump_off = 0
        self.dump_index = {}

    def __call__(self, t):
        self.a(t)
        if self.stamps and self.pending and not getattr(self, "capturing", False) and not self.in_skip(t):
            last = t.strip().split("\n")[-1].strip()
            if last.startswith("s_waitcnt") and "lgkmcnt(0)" in last: self.flush_stamps()

    def in_skip(self, t):
        for l in t.split("\n"):
            if "HZ_SKIP_BEGIN" in l: self.skipdepth = 1
            if "HZ_SKIP_END" in l: self.skipdepth = 0
        return getattr(self, "skipdepth", 0) > 0

    def vmi(self, tag, n=1):
        self.vm += [tag] * n
    def capture(self, fn):
        old, self.a.lines = self.a.lines, []
        self.capturing = True
        fn()
        self.capturing = False
        out, self.a.lines = self.a.lines, old
        return [l.strip() for l in out if l.strip()]

    def atoms(self, lines):
        out, cur, hold = [], [], None
        for l in lines:
            cur.append(l)
            code = l.split(";")[0].strip()
            if hold is None:
                if re.match(r"s_(mov|brev|and_saveexec)\w* (exec|exec_lo|exec_hi)\b", code) or code.startswith("s_and_saveexec"):
                    if not code.endswith("exec, -1"): hold = "exec"
                elif code.startswith("s_cmp"): hold = "label"
            else:
                if hold == "exec" and code == "s_mov_b64 exec, -1": hold = None
                elif hold == "label" and (code.endswith(":") or code.startswith("s_cselect")): hold = None
            if hold is None and not l.endswith(";+"):
                out.append(cur); cur = []
        if cur: out.append(cur)
        return out

    def interleave(self, groups, filler):
        at = self.atoms(filler)
        total = sum(len(a) for a in at)
        done = 0
        for i, (lines, tag) in enumerate(groups):
            for x in lines: self(x)
            self.vmi(tag)
            target = total * (i + 1) // len(groups)
            while at and done < target:
                a = at.pop(0); done += len(a)
                for x in a: self.emit_resolved(x)
        for a in at:
            for x in a: self.emit_resolved(x)

    def emit_resolved(self, x):
        if x.startswith("@VMWAIT "): self.vmwait(x.split()[1])
        elif x.startswith("@STAMP "): self.stamp(x.split()[1])
        else: self(x)

    def vmwait(self, tag):
        if getattr(self, "capturing", False):
            self(f"@VMWAIT {tag}"); return
        last = max(i for i, t in enumerate(self.vm) if t == tag)
        n = len(self.vm) - 1 - last
        assert n <= 63, (tag, n)
        self(f"s_waitcnt vmcnt({n})")
    def vmwait_all(self):
        self("s_waitcnt vmcnt(0)")

    def stamp(self, name, clk=False):
        if not self.stamps: return
        if "all" not in self.stamps and name not in self.stamps: return
        if getattr(self, "capturing", False):
            self(f"@STAMP {name}"); return
        if "cyc" in self.exp: clk = True
        self.stamp_names = getattr(self, "stamp_names", [])
        if name in self.stamp_names: return
        used = {i for i, _ in self.pending}
        free = [i for i in range(8) if i not in used]
        if not free:
            Asm.__call__(self.a, "s_waitcnt lgkmcnt(0)"); self.flush_stamps()
            free = list(range(8))
        i = free[0]
        lane = len(self.stamp_names); assert lane < 63, name
        self.stamp_names.append(name)
        self.pending.append((i, lane))
        Asm.__call__(self.a, f"{'s_memtime' if clk else 's_memrealtime'} {s2(S_TS + 2*i)} ; stamp {name}")

    def flush_stamps(self):
        for i, lane in self.pending:
            Asm.__call__(self.a, f"v_writelane_b32 v255, s{S_TS + 2*i}, {lane}")
        self.pending = []

    def dump(self, name, regs, tmp=250):
        if name not in self.dumps: return
        g = self
        n = len(regs)
        base = WS_DBG + self.dump_off
        self.dump_index[name] = (self.dump_off, n)
        self.dump_off += 256 * 4 * n * 256
        g("s_waitcnt vmcnt(0) lgkmcnt(0)\ns_nop 15\ns_nop 15")
        g(f"s_lshl_b32 s74, s2, 2\ns_add_u32 s74, s74, s{S_WAVE}\ns_mul_i32 s74, s74, {n*256}\ns_add_u32 s74, s74, {base}")
        g(f"v_lshlrev_b32 v{tmp}, 2, v1")
        for i, r in enumerate(regs):
            if isinstance(r, str) and r.startswith("a"):
                g(f"v_accvgpr_read_b32 v{tmp+1}, {r}\ns_nop 1")
                src = f"v{tmp+1}"
            else:
                src = f"v{r}"
            g(f"buffer_store_dword {src}, v{tmp}, {srd(SRD_WS)}, s74 offen")
            g(f"s_add_u32 s74, s74, 256")
            g("s_waitcnt vmcnt(0)")

    def rnd_bf16(self, dst, src):
        self(f"v_cvt_pk_bf16_f32 v{dst}, v{src}, v{src}\nv_lshlrev_b32 v{dst}, 16, v{dst}")

    def prologue(self):
        g = self
        ptrs = [(SRD_X, 0), (SRD_W, 8), (SRD_WR, 40), (SRD_PHI, 16), (SRD_WS, 88), (SRD_DBG, 80),
                (SRD_WO, 24), (SRD_G, 48), (SRD_U, 56), (SRD_D, 64), (SRD_OUT, 72)]
        sizes = {SRD_X: 2621440, SRD_W: 2457600, SRD_WR: 1280, SRD_PHI: 25600, SRD_WS: WS_SIZE, SRD_DBG: 256,
                 SRD_WO: 819200, SRD_G: 2211840, SRD_U: 2211840, SRD_D: 2211840, SRD_OUT: 2621440}
        self.sizes = sizes
        if "span" in self.exp: g("s_memrealtime s[98:99]")
        g("s_getpc_b64 s[72:73]")
        g("L_pc:")
        for r, off in ptrs[:4]:
            g(f"s_load_dwordx2 {s2(r)}, s[0:1], {off}")
        g(f"""
        s_cmp_ge_u32 s2, 256
        s_cbranch_scc1 L_exit
        v_and_b32 v1, 63, v0
        v_lshrrev_b32 v9, 6, v0
        s_lshr_b32 s{S_SLOT}, s2, 3
        v_readfirstlane_b32 s{S_WAVE}, v9
        s_and_b32 s{S_XCD}, s2, 7
        """)
        g(f"""
        s_lshl_b32 s{S_T0}, s{S_SLOT}, 2
        s_add_u32 s{S_T0}, s{S_T0}, s{S_WAVE}
        s_lshl_b32 s{S_T0}, s{S_T0}, 9
        v_lshl_add_u32 v11, v1, 7, s{S_T0}
        v_cmp_gt_u32 vcc, L_code_end - L_pc, v11
        v_cmp_gt_u32 {s2(S_MA)}, 4, v1
        s_and_b64 vcc, vcc, {s2(S_MA)}
        s_and_saveexec_b64 {s2(S_MA)}, vcc
        s_cbranch_execz L_nopf
        global_load_dword v159, v11, s[72:73]       ; HZ_SKIP_BEGIN HZ_SKIP_END
L_nopf:
        s_mov_b64 exec, -1
        """)
        for r, off in ptrs[4:]:
            g(f"s_load_dwordx2 {s2(r)}, s[0:1], {off}")
        g(f"""
        s_and_b32 s{S_T0}, s{S_XCD}, 1
        s_lshl_b32 s{S_T0}, s{S_T0}, 3
        s_and_b32 s{S_T1}, s{S_SLOT}, 7
        s_add_u32 s{S_RB}, s{S_T0}, s{S_T1}
        s_lshr_b32 s{S_T0}, s{S_XCD}, 1
        s_lshl_b32 s{S_T0}, s{S_T0}, 2
        s_lshr_b32 s{S_T2}, s{S_SLOT}, 3
        s_add_u32 s{S_HP}, s{S_T0}, s{S_T2}
        s_lshl_b32 s{S_T2}, s{S_T2}, 1
        s_add_u32 s{S_T1}, s{S_T1}, s{S_T2}
        s_and_b32 s{S_T1}, s{S_T1}, 7
        s_mul_i32 s{S_T1}, s{S_T1}, 10
        s_lshr_b32 s{S_C0}, s{S_T1}, 3
        v_lshrrev_b32 v9, 3, v1
        v_mul_u32_u24 v9, 1280, v9
        v_and_b32 v11, 7, v1
        v_lshrrev_b32 v15, 4, v1
        v_xor_b32 v11, v11, v15
        v_lshl_add_u32 v4, v11, 4, v9
        v_xor_b32 v11, 4, v11
        v_lshl_add_u32 v5, v11, 4, v9
        v_add_u32 v5, {10240 - 1024}, v5
        v_add_u32 v157, {20480 - 2048}, v4
        v_add_u32 v158, {20480 - 2048}, v5
        s_lshl_b32 s{S_T0}, s{S_RB}, 7
        s_lshl_b32 s{S_T1}, s{S_WAVE}, 5
        s_add_u32 s{S_T1}, s{S_T1}, s{S_T0}
        s_mul_i32 s{S_XB}, s{S_T1}, 1280
        s_mul_i32 s{S_WB}, s{S_WAVE}, {16*3840}
        s_mul_i32 s{S_T1}, s{S_HP}, 80
        s_add_u32 s{S_WB}, s{S_WB}, s{S_T1}
        s_lshl_b32 s{S_LX}, s{S_WAVE}, 12
        s_mul_i32 s{S_LW}, s{S_WAVE}, 3072
        s_add_u32 s{S_LW}, s{S_LW}, 16384
        s_add_u32 s{S_CC}, s{S_XB}, 1280
        s_lshl_b32 s{S_CX}, s{S_C0}, 7
        s_add_u32 s{S_CX}, s{S_CX}, s{S_XB}
        s_mul_i32 s{S_CW}, s{S_C0}, {64*3840}
        s_add_u32 s{S_CW}, s{S_CW}, s{S_WB}
        """)
        for r in (SRD_X, SRD_W):
            g(f"s_mov_b32 s{r+2}, {sizes[r]}\ns_mov_b32 s{r+3}, 0x20000")
        for n in range(3):
            g(f"""
            v_add_u32 v9, {64*n}, v1
            v_mul_u32_u24 v11, 43691, v9
            v_lshrrev_b32 v11, 19, v11
            v_mul_u32_u24 v12, 12, v11
            v_sub_u32 v12, v9, v12
            v_cmp_gt_u32 {s2(S_WM+2*n)}, 10, v12
            v_cmp_gt_u32 vcc, 5, v12
            v_mul_u32_u24 v11, 3840, v11
            v_lshl_add_u32 v11, v12, 4, v11
            v_mov_b32 v13, 2480
            v_add_u32 v14, 1280, v11
            v_add_u32 v11, v13, v11
            v_cndmask_b32 v{6+n}, v11, v14, vcc
            """)
            if n: g(f"v_subrev_u32 v{6+n}, {1024*n}, v{6+n}")
        g("s_waitcnt lgkmcnt(0)")
        self.stamp("start"); self.stamp("clk0", True)
        for r in (SRD_WR, SRD_PHI):
            g(f"s_mov_b32 s{r+2}, {sizes[r]}\ns_mov_b32 s{r+3}, 0x20000")
        P = 160
        nt = " nt" if "nt" in self.exp else ""
        self.nt = nt
        g(f"""
        v_mul_u32_u24 v10, 20, v1
        s_lshl_b32 s{S_T0}, s{S_RB}, 7
        s_lshl_b32 s{S_T1}, s{S_HP}, 3
        s_add_u32 s{S_T0}, s{S_T0}, s{S_T1}
        s_lshl_b32 s{S_T1}, s{S_WAVE}, 1
        s_add_u32 s{S_P0ROW}, s{S_T0}, s{S_T1}
        s_mul_i32 s{S_T4}, s{S_P0ROW}, 1280
        buffer_load_dwordx4 {v(P,4)}, v10, {srd(SRD_X)}, s{S_T4} offen
        buffer_load_dword v{P+4}, v10, {srd(SRD_X)}, s{S_T4} offen offset:16
        buffer_load_dwordx4 {v(P+6,4)}, v10, {srd(SRD_X)}, s{S_T4} offen offset:1280
        buffer_load_dword v{P+10}, v10, {srd(SRD_X)}, s{S_T4} offen offset:1296
        buffer_load_dwordx4 {v(P+12,4)}, v10, {srd(SRD_WR)}, 0 offen
        buffer_load_dword v{P+16}, v10, {srd(SRD_WR)}, 0 offen offset:16
        v_lshlrev_b32 v11, 4, v1
        s_mul_i32 s{S_T0}, s{S_HP}, 1600
        s_mul_i32 s{S_T1}, s{S_WAVE}, 1664
        s_add_u32 m0, s{S_T1}, {L_WPHI}
        s_add_u32 s{S_T4}, s{S_T1}, {L_WPHI + 1024}
        buffer_load_dwordx4 v11, {srd(SRD_PHI)}, s{S_T0} offen lds
        s_mov_b32 m0, s{S_T4}
        s_mov_b32 exec_lo, -1
        s_mov_b32 exec_hi, 15
        s_add_u32 s{S_T0}, s{S_T0}, 1024
        buffer_load_dwordx4 v11, {srd(SRD_PHI)}, s{S_T0} offen lds
        s_mov_b64 exec, -1
        """)
        g.vmi("p0", 6); g.vmi("phi", 2)
        tagged = lambda i: [(x, f"c{i}") for x in self.p1_refill(i)]
        for lines, tag in tagged(0):
            for x in lines: g(x)
            g.vmi(tag)
        self.stamp("c0iss")
        s1, s2_ = self.capture(self.setup1), self.capture(self.setup2)
        p0, pf = self.capture(self.phase0), self.capture(self.phi_frags)
        cut = 260
        rest2 = s2_
        for x in s1: self.emit_resolved(x)
        at = self.atoms(s2_); n = 0; head = [];
        while at and n < cut - len(s1):
            a_ = at.pop(0); n += len(a_); head += a_
        for x in head: self.emit_resolved(x)
        tail = [x for a_ in at for x in a_]
        if self.dist == 3:
            self.interleave(tagged(1), tail + p0)
            self.interleave(tagged(2), pf)
        else:
            self.interleave(tagged(1), tail + p0 + pf)
        self.stamp("filled")

    def setup1(self):
        g = self
        sizes = self.sizes
        for r in (SRD_WS, SRD_DBG):
            g(f"s_mov_b32 s{r+2}, {sizes[r]}\ns_mov_b32 s{r+3}, 0x20000")
        g(f"""
        s_lshl_b32 s{S_T0}, s{S_WAVE}, 8
        s_add_u32 s{S_T0}, s{S_T0}, s2
        s_cmp_lg_u32 s{S_T0}, 256
        s_cbranch_scc1 L_noinit
        v_lshlrev_b32 v11, 7, v1       ; HZ_SKIP_BEGIN
        v_mov_b32 v12, 0
        buffer_store_dword v12, v11, {srd(SRD_WS)}, 0 offen sc1   ; HZ_SKIP_END
L_noinit:
        """)
        for r in (SRD_WO, SRD_G, SRD_U, SRD_D, SRD_OUT):
            g(f"s_mov_b32 s{r+2}, {sizes[r]}\ns_mov_b32 s{r+3}, 0x20000")
        g(f"""
        v_and_b32 v2, 31, v1
        v_lshrrev_b32 v3, 5, v1
        v_mov_b32 v12, 0x3f80
        v_mov_b32 v13, 0
        v_mov_b32 v14, 0x3f80
        v_mov_b32 v15, 0
        v_lshrrev_b32 v9, 6, v0
        v_mul_u32_u24 v9, {SLOT}, v9
        v_mul_u32_u24 v11, 192, v1
        v_add_u32 v9, v9, v11
        ds_write_b128 v9, v[12:15] offset:{16384 + 160}
        v_add_u32 v11, {4*SLOT}, v11
        ds_write_b128 v11, v[12:15] offset:{16384 + 160}
        v_mov_b32 v16, 0
        v_mov_b32 v17, 0
        v_mov_b32 v18, 0
        v_mov_b32 v19, 0
        v_lshlrev_b32 v20, 4, v0
        v_add_u32 v20, {L_KVF}, v20
        ds_write_b128 v20, v[16:19]
        v_lshlrev_b32 v21, 3, v0
        v_add_u32 v21, {L_KVF + 4096}, v21
        ds_write_b64 v21, v[16:17]
        v_mov_b32 v84, 0x3f803f80
        v_mov_b32 v85, 0x3f803f80
        """)
        g(f"""
        v_lshrrev_b32 v9, 1, v2
        v_and_b32 v9, 7, v9
        v_xor_b32 v9, v9, v3
        v_lshlrev_b32 v9, 4, v9
        v_lshl_add_u32 v9, v2, 7, v9
        v_add_u32 v128, s{S_LX}, v9
        v_xor_b32 v129, 32, v128
        v_xor_b32 v130, 64, v128
        v_xor_b32 v131, 96, v128
        v_add_u32 v132, {3*SLOT}, v128
        v_add_u32 v133, {3*SLOT}, v129
        v_add_u32 v134, {3*SLOT}, v130
        v_add_u32 v135, {3*SLOT}, v131
        v_bfe_u32 v9, v1, 2, 2
        v_lshl_add_u32 v9, v3, 3, v9
        v_mul_u32_u24 v9, 192, v9
        v_bfe_u32 v11, v1, 4, 1
        v_and_b32 v12, 3, v1
        v_lshl_add_u32 v11, v11, 2, v12
        v_lshl_add_u32 v9, v11, 3, v9
        v_add_u32 v136, 16384, v9
        v_add_u32 v137, {16384 + 2*SLOT}, v9
        v_add_u32 v138, {16384 + 4*SLOT}, v9
        s_lshl_b32 s{S_T0}, s{S_WAVE}, 6
        v_add_u32 v72, s{S_T0}, v136
        v_add_u32 v73, s{S_T0}, v137
        v_add_u32 v74, s{S_T0}, v138
        """)

    def setup2(self):
        g = self
        self.moe_roles()
        self.kv_addresses()
        self.c_addresses()
        self.o_addresses()
        self.wq_setup()
        g(f"""
        s_lshl_b32 s{S_T0}, s{S_WAVE}, 5
        v_add_u32 v9, s{S_T0}, v2
        v_mul_u32_u24 v9, 336, v9
        v_add_u32 v9, {L_T}, v9
        v_lshl_add_u32 v9, v3, 3, v9
        v_accvgpr_write_b32 a192, v9
        s_lshr_b32 s{S_T0}, s{S_WAVE}, 1
        s_and_b32 s{S_T4}, s{S_WAVE}, 1
        v_bfe_u32 v9, v1, 2, 2
        v_lshlrev_b32 v9, 1, v9
        v_add_u32 v9, v9, v3
        v_lshlrev_b32 v9, 1, v9
        v_mul_u32_u24 v9, 336, v9
        v_add_u32 v9, {L_T}, v9
        v_bfe_u32 v11, v1, 4, 1
        v_and_b32 v12, 3, v1
        v_lshl_add_u32 v11, v11, 2, v12
        s_mul_i32 s{S_T2}, s{S_T0}, 12
        s_lshl_b32 s{S_T3}, s{S_T4}, 3
        s_add_u32 s{S_T2}, s{S_T2}, s{S_T3}
        v_add_u32 v12, s{S_T2}, v11
        v_lshl_add_u32 v13, v12, 3, v9
        v_accvgpr_write_b32 a193, v13
        s_mul_i32 s{S_T2}, s{S_T0}, 5
        s_add_u32 s{S_T2}, s{S_T2}, 24
        v_add_u32 v12, s{S_T2}, v11
        s_mul_i32 s{S_T3}, s{S_T0}, -3
        s_add_i32 s{S_T3}, s{S_T3}, 37
        v_mov_b32 v13, s{S_T3}
        v_cmp_eq_u32 vcc, 5, v11
        v_cndmask_b32 v12, v12, v13, vcc
        s_add_i32 s{S_T3}, s{S_T3}, -13
        v_add_u32 v13, s{S_T3}, v11
        v_cmp_lt_u32 vcc, 5, v11
        v_cndmask_b32 v12, v12, v13, vcc
        v_lshl_add_u32 v13, v12, 3, v9
        v_accvgpr_write_b32 a194, v13
        v_mul_u32_u24 v9, 336, v3
        v_lshl_add_u32 v9, v2, 4, v9
        v_accvgpr_write_b32 a195, v9
        s_lshl_b32 s{S_T2}, s{S_HP}, 4
        s_add_u32 s{S_T2}, s{S_T2}, s{S_RB}
        s_mul_i32 s{S_T2}, s{S_T2}, {KVP_SZ}
        s_add_u32 s{S_T2}, s{S_T2}, {WS_KVP}
        s_mul_i32 s{S_T3}, s{S_T0}, 3360
        s_add_u32 s{S_KVS}, s{S_T2}, s{S_T3}
        """)

    def phase0(self):
        g = self
        P = 160
        self.stamp("pre_p0")
        g.vmwait("phi")
        self.stamp("p0data")
        X0, X1, W = P, P + 6, P + 12
        A = 180
        for i in range(7): g(f"v_mov_b32 v{A+i}, 0")
        for d in range(5):
            g(f"""
            v_dot2c_f32_bf16 v{A+0}, v{X0+d}, v84
            v_dot2c_f32_bf16 v{A+1}, v{X0+d}, v{X0+d}
            v_dot2c_f32_bf16 v{A+2}, v{X0+d}, v{W+d}
            v_dot2c_f32_bf16 v{A+3}, v{X1+d}, v84
            v_dot2c_f32_bf16 v{A+4}, v{X1+d}, v{X1+d}
            v_dot2c_f32_bf16 v{A+5}, v{X1+d}, v{W+d}
            v_dot2c_f32_bf16 v{A+6}, v{W+d}, v84
            """)
        g("s_nop 2")
        for ctl in ("row_shr:1 row_mask:0xf bank_mask:0xf bound_ctrl:0", "row_shr:2 row_mask:0xf bank_mask:0xf bound_ctrl:0",
                    "row_shr:4 row_mask:0xf bank_mask:0xf bound_ctrl:0", "row_shr:8 row_mask:0xf bank_mask:0xf bound_ctrl:0",
                    "row_bcast:15 row_mask:0xa bank_mask:0xf", "row_bcast:31 row_mask:0xc bank_mask:0xf"):
            for i in range(7):
                g(f"v_add_f32_dpp v{A+i}, v{A+i}, v{A+i} {ctl}")
        T = 190
        g(f"v_mov_b32 v{T+8}, 0x3acccccd")
        for r in range(2):
            sx, sq, sw = A + 3*r, A + 3*r + 1, A + 3*r + 2
            m, t1, t2 = T + 3*r, T + 3*r + 1, T + 3*r + 2
            g(f"""
            v_mul_f32 v{m}, v{sx}, v{T+8}
            v_mul_f32 v{t1}, v{sq}, v{T+8}
            v_fma_f32 v{t1}, -v{m}, v{m}, v{t1}
            v_max_f32 v{t1}, 0, v{t1}
            """)
            g.rnd_bf16(t1, t1)
            g(f"v_add_f32 v{t1}, 0x3727c5ac, v{t1}")
            g.rnd_bf16(t1, t1)
            g(f"v_sqrt_f32 v{t1}, v{t1}")
            g.rnd_bf16(t1, t1)
            g.rnd_bf16(m, m)
            g(f"""
            v_rcp_f32 v{t1}, v{t1}
            v_fma_f32 v{t2}, -v{m}, v{A+6}, v{sw}
            v_mul_f32 v{t2}, v{t2}, v{t1}
            """)
        g(f"""
        v_mov_b32 v{T+7}, s{S_P0ROW}
        v_add_u32 v{T+9}, 1, v{T+7}
        v_cmp_gt_f32 vcc, v{T+5}, v{T+2}
        v_cndmask_b32 v{T+6}, v{T+2}, v{T+5}, vcc
        v_cndmask_b32 v{T+7}, v{T+7}, v{T+9}, vcc
        s_lshl_b32 s{S_T0}, s{S_WAVE}, 3
        s_add_u32 s{S_T0}, s{S_T0}, {L_P0}
        v_mov_b32 v9, s{S_T0}
        s_mov_b32 exec_lo, 0
        s_brev_b32 exec_hi, 1
        ds_write_b64 v9, {v(T+6,2)}
        s_mov_b64 exec, -1
        """)

    def phi_frags(self):
        g = self
        g(f"""
        v_lshrrev_b32 v9, 3, v2
        v_and_b32 v11, 3, v2
        v_lshl_add_u32 v9, v9, 2, v11
        v_min_u32 v9, 9, v9
        v_bfe_u32 v11, v2, 2, 1
        v_mad_u32_u24 v9, v11, 10, v9
        v_lshlrev_b32 v9, 1, v9
        s_mul_i32 s{S_T0}, s{S_WAVE}, 1664
        s_add_u32 s{S_T0}, s{S_T0}, {L_WPHI}
        v_add_u32 v9, s{S_T0}, v9
        v_mul_u32_u24 v11, 160, v3
        v_add_u32 v11, v11, v9
        """)
        def rd(reg, base, ds):
            for i, d in enumerate(ds):
                g(f"ds_read_u16 v{T0 + i}, v{base} offset:{d}")
            g("s_waitcnt lgkmcnt(0)")
            for i in range(0, len(ds), 2):
                g(f"v_lshl_or_b32 v{reg + i//2}, v{T0+i+1}, 16, v{T0+i}")
        T0 = 200
        rd(140, 11, [40*i for i in range(4)] + [40*(8+i) for i in range(4)] + [40*(16+i) for i in range(4)])
        rd(146, 9, [800 + 40*i for i in range(4)])
        rd(148, 11, [800 + 40*(4+i) for i in range(4)] + [800 + 40*(12+i) for i in range(4)])
        g(f"""
        s_mov_b32 s{S_MA}, 0
        s_mov_b32 s{S_MA+1}, -1
        s_waitcnt lgkmcnt(0)
        v_cndmask_b32 v144, v144, 0, {s2(S_MA)}
        v_cndmask_b32 v145, v145, 0, {s2(S_MA)}
        v_cndmask_b32 v146, 0, v146, {s2(S_MA)}
        v_cndmask_b32 v147, 0, v147, {s2(S_MA)}
        """)

    def p1_reads(self, n):
        c, ks = divmod(n, 4); s = c % 5; b = n % 3
        base = 128 + ks if s < 3 else 132 + ks
        imm = s * SLOT if s < 3 else (s - 3) * SLOT
        out = [f"ds_read_b128 {ac(4*n,4)}, v{base} offset:{imm}"]
        wb = 136 + s // 2
        imm0 = (s % 2) * SLOT + 16 * ks * 192
        for t in range(3):
            for rd in range(2):
                out.append(f"ds_read_b64_tr_b16 {v(92 + 12*b + 4*t + 2*rd, 2)}, v{wb} offset:{imm0 + 4*rd*192 + 64*t}")
        for rd in range(2):
            out.append(f"ds_read_b64_tr_b16 {v(160 + 4*b + 2*rd, 2)}, v{72 + s // 2} offset:{imm0 + 4*rd*192}")
        return out

    def p1_refill(self, i):
        s = i % 5
        nt = self.nt
        grp = []
        grp.append([f"s_add_u32 m0, s{S_LX}, {s*SLOT}", "s_nop 0" if False else f"s_add_u32 s{S_T1}, s{S_LW}, {s*SLOT}",
                    f"buffer_load_dwordx4 v4, {srd(SRD_X)}, s{S_CX} offen{nt} lds"])
        grp.append([f"buffer_load_dwordx4 v5, {srd(SRD_X)}, s{S_CX} offen offset:1024{nt} lds"])
        grp.append([f"buffer_load_dwordx4 v157, {srd(SRD_X)}, s{S_CX} offen offset:2048{nt} lds"])
        grp.append([f"buffer_load_dwordx4 v158, {srd(SRD_X)}, s{S_CX} offen offset:3072{nt} lds",
                    f"s_add_u32 s{S_CX}, s{S_CX}, 128"])
        grp.append([f"s_mov_b32 m0, s{S_T1}", f"s_mov_b64 exec, {s2(S_WM)}",
                    f"buffer_load_dwordx4 v6, {srd(SRD_W)}, s{S_CW} offen{nt} lds", "s_mov_b64 exec, -1"])
        grp.append([f"s_mov_b64 exec, {s2(S_WM+2)}",
                    f"buffer_load_dwordx4 v7, {srd(SRD_W)}, s{S_CW} offen offset:1024{nt} lds", "s_mov_b64 exec, -1"])
        grp.append([f"s_mov_b64 exec, {s2(S_WM+4)}",
                    f"buffer_load_dwordx4 v8, {srd(SRD_W)}, s{S_CW} offen offset:2048{nt} lds", "s_mov_b64 exec, -1",
                    f"s_add_u32 s{S_CW}, s{S_CW}, {64*3840}", f"s_cmp_eq_u32 s{S_CX}, s{S_CC}",
                    f"s_cselect_b32 s{S_CX}, s{S_XB}, s{S_CX}", f"s_cselect_b32 s{S_CW}, s{S_WB}, s{S_CW}"])
        return grp

    def wq_groups(self):
        grp = []
        for m in range(13):
            q, pt = divmod(m, 5)
            gl = [f"s_add_u32 m0, s{S_WQL}, {m*1024}", f"s_add_u32 s{S_T2}, s{S_WQG}, {q*64*3840}"]
            if m == 12:
                gl += ["s_mov_b32 exec_hi, 0", f"buffer_load_dwordx4 v{152+pt}, {srd(SRD_W)}, s{S_T2} offen lds", "s_mov_b64 exec, -1"]
            else:
                gl += [f"buffer_load_dwordx4 v{152+pt}, {srd(SRD_W)}, s{S_T2} offen lds"]
            grp.append(gl)
        return grp

    def wq_setup(self):
        g = self
        for pt in range(5):
            g(f"""
            v_add_u32 v9, {64*pt}, v1
            v_mul_u32_u24 v11, 52429, v9
            v_lshrrev_b32 v11, 18, v11
            v_mul_u32_u24 v12, 5, v11
            v_sub_u32 v12, v9, v12
            v_and_b32 v13, 3, v11
            v_bfe_u32 v14, v11, 2, 2
            v_and_b32 v11, 0xfffffff0, v11
            v_lshl_add_u32 v11, v13, 2, v11
            v_add_u32 v11, v11, v14
            v_mul_u32_u24 v11, 3840, v11
            v_lshl_add_u32 v{152+pt}, v12, 4, v11
            """)
        g(f"""
        s_mul_i32 s{S_WQL}, s{S_WAVE}, 12800
        s_add_u32 s{S_WQL}, s{S_WQL}, {L_WQ}
        s_mul_i32 s{S_WQG}, s{S_WAVE}, {160*3840}
        s_mul_i32 s{S_T0}, s{S_HP}, 80
        s_add_u32 s{S_WQG}, s{S_WQG}, s{S_T0}
        """)

    def pass1(self):
        g = self
        self.dbg_span(2, True); self.dbg_span(7, False)
        g.vmwait("c0")
        g("s_waitcnt lgkmcnt(0)\ns_barrier")
        self.stamp("c0")
        for x in self.p1_reads(0): g(x)
        g("s_waitcnt lgkmcnt(6)")
        for x in self.p1_reads(1): g(x)
        g(f"""
        s_cmp_lg_u32 s{S_WAVE}, 0
        s_cbranch_scc1 L_nopub
        v_mov_b32 v9, {L_P0}           ; HZ_SKIP_BEGIN
        ds_read_b128 v[172:175], v9
        ds_read_b128 v[176:179], v9 offset:16
        s_lshl_b32 s{S_T0}, s2, 3
        s_add_u32 s{S_T0}, s{S_T0}, {WS_RMAX}
        v_mov_b32 v11, s{S_T0}
        s_waitcnt lgkmcnt(0)
        v_cmp_gt_f32 vcc, v174, v172
        v_cndmask_b32 v172, v172, v174, vcc
        v_cndmask_b32 v173, v173, v175, vcc
        v_cmp_gt_f32 vcc, v176, v172
        v_cndmask_b32 v172, v172, v176, vcc
        v_cndmask_b32 v173, v173, v177, vcc
        v_cmp_gt_f32 vcc, v178, v172
        v_cndmask_b32 v172, v172, v178, vcc
        v_cndmask_b32 v173, v173, v179, vcc
        s_mov_b64 exec, 1
        buffer_store_dwordx2 v[172:173], v11, {srd(SRD_WS)}, 0 offen sc1
        s_mov_b64 exec, -1             ; HZ_SKIP_END
L_nopub:
        """)
        pend = []
        for n in range(40):
            c, ks = divmod(n, 4); b = n % 3
            if ks == 0:
                if c + self.dist <= 9:
                    pend += self.p1_refill(c + self.dist); self.vmq = getattr(self, "vmq", []) + [f"c{c+self.dist}"] * 7
                if c == 3:
                    pend.append(self.touch_wq()); self.vmq.append("tq")
                if c == 7:
                    pend += self.touch_moe(); self.vmq += ["tm"] * 3
                if c == 6:
                    pend.append([f"v_mov_b32 v75, 240", f"buffer_load_dword v75, v75, {srd(SRD_DBG)}, 0 offen sc1"]); self.vmq.append("rdy")
            if ks == 2 and c < 9:
                g(f"s_waitcnt lgkmcnt(6)")
                g.vmwait(f"c{c+1}")
                g("s_barrier")
                self.stamp(f"B{c}")
                if c == 0:
                    g(f"""
                    s_cmp_lg_u32 s2, 0
                    s_cbranch_scc1 L_noready
                    s_cmp_lg_u32 s{S_WAVE}, 1
                    s_cbranch_scc1 L_noready
                    v_mov_b32 v11, 240             ; HZ_SKIP_BEGIN
                    v_mov_b32 v12, 1
                    s_mov_b64 exec, 1
                    buffer_store_dword v12, v11, {srd(SRD_DBG)}, 0 offen sc1
                    s_mov_b64 exec, -1             ; HZ_SKIP_END
L_noready:
                    """)
                if c == self.dist - 1:
                    g(f"""
                    s_cmp_lg_u32 s{S_WAVE}, 0
                    s_cbranch_scc1 L_noatom
                    s_and_b32 s{S_T0}, s2, 3       ; HZ_SKIP_BEGIN
                    s_lshl_b32 s{S_T0}, s{S_T0}, 6
                    v_mov_b32 v11, s{S_T0}
                    v_mov_b32 v12, 1
                    s_mov_b64 exec, 1
                    buffer_atomic_add v12, v11, {srd(SRD_DBG)}, 0 offen sc1
                    s_mov_b64 exec, -1             ; HZ_SKIP_END
L_noatom:
                    """)
            elif n == 39: g("s_waitcnt lgkmcnt(0)")
            else: g("s_waitcnt lgkmcnt(6)")
            rd = self.p1_reads(n + 2) if n + 2 < 40 else []
            if "nords" in self.exp: rd = []
            XP = ac(4*n, 4)
            WF = lambda t: 92 + 12*b + 4*t
            first = (n == 0)
            def dma():
                if pend:
                    grp = pend.pop(0); tag = self.vmq.pop(0)
                    if "nodma" not in self.exp:
                        for x in grp: g(x)
                    if tag: g.vmi(tag)
            cin = lambda r, k: "0" if first else v(r, k)
            g(f"v_mfma_f32_32x32x16_bf16 v[16:31], {v(WF(0),4)}, {XP}, {cin(16,16)}")
            for x in rd[0:3]: g(x)
            dma()
            g(f"v_mfma_f32_32x32x16_bf16 v[32:47], {v(WF(1),4)}, {XP}, {cin(32,16)}")
            for x in rd[3:6]: g(x)
            g(f"v_mfma_f32_32x32x16_bf16 v[48:63], {v(WF(2),4)}, {XP}, {cin(48,16)}")
            for x in rd[6:9]: g(x)
            dma()
            if "nosq" not in self.exp:
                g(f"v_mfma_f32_4x4x4_16b_bf16 v[64:67], {ac(4*n,2)}, {ac(4*n,2)}, {cin(64,4)}")
                g(f"v_mfma_f32_4x4x4_16b_bf16 v[68:71], {ac(4*n+2,2)}, {ac(4*n+2,2)}, {cin(68,4)}")
            if "nocs" not in self.exp:
                g(f"v_mfma_f32_4x4x4_16b_bf16 v[76:79], {v(160+4*b,2)}, v[84:85], {cin(76,4)}")
                g(f"v_mfma_f32_4x4x4_16b_bf16 v[80:83], {v(160+4*b+2,2)}, v[84:85], {cin(80,4)}")
            if c in (3, 6, 7): dma()
        while pend:
            grp = pend.pop(0); tag = self.vmq.pop(0)
            for x in grp: g(x)
            if tag: g.vmi(tag)
        self.stamp("p1end")

    def touch_moe(self):
        return [
            [f"v_mul_u32_u24 v9, 13108, v1", "v_lshrrev_b32 v9, 16, v9", "v_mul_u32_u24 v10, 5, v9", "v_sub_u32 v10, v1, v10",
             "v_mul_u32_u24 v11, 3456, v9", "v_lshl_add_u32 v11, v10, 7, v11",
             f"s_mul_i32 s{S_T0}, s{S_XCD}, 448", f"s_and_b32 s{S_T0}, s{S_T0}, 0xffffff80",
             f"s_lshl_b32 s{S_T2}, s{S_SLOT}, 2", f"s_add_u32 s{S_T2}, s{S_T2}, s{S_WAVE}", f"s_mul_i32 s{S_T2}, s{S_T2}, {5*3456}",
             f"s_add_u32 s{S_T0}, s{S_T0}, s{S_T2}", "s_mov_b32 exec_lo, 0x1ffffff", "s_mov_b32 exec_hi, 0",
             f"buffer_load_dword v159, v11, {srd(SRD_G)}, s{S_T0} offen", "s_mov_b64 exec, -1"],
            ["s_mov_b32 exec_lo, 0x1ffffff", "s_mov_b32 exec_hi, 0",
             f"buffer_load_dword v159, v11, {srd(SRD_U)}, s{S_T0} offen", "s_mov_b64 exec, -1"],
            ["v_mul_u32_u24 v9, 6554, v1", "v_lshrrev_b32 v9, 16, v9", "v_mul_u32_u24 v10, 10, v9", "v_sub_u32 v10, v1, v10",
             "v_mul_u32_u24 v12, 1280, v9", "v_lshl_add_u32 v12, v10, 7, v12",
             f"s_mul_i32 s{S_T0}, s{S_XCD}, {224*1280}", f"s_mul_i32 s{S_T2}, s{S_SLOT}, 7", f"s_lshl_b32 s{S_T3}, s{S_WAVE}, 1",
             f"s_add_u32 s{S_T2}, s{S_T2}, s{S_T3}", f"s_mul_i32 s{S_T2}, s{S_T2}, 1280", f"s_add_u32 s{S_T0}, s{S_T0}, s{S_T2}",
             "s_mov_b32 exec_lo, 0xfffff", "s_mov_b32 exec_hi, 0",
             f"buffer_load_dword v159, v12, {srd(SRD_D)}, s{S_T0} offen", "s_mov_b64 exec, -1"]]

    def touch_wq(self):
        return ["v_mul_u32_u24 v9, 21846, v1", "v_lshrrev_b32 v9, 16, v9", "v_mul_u32_u24 v10, 3, v9", "v_sub_u32 v10, v1, v10",
                f"s_lshl_b32 s{S_T0}, s{S_SLOT}, 2", f"s_add_u32 s{S_T0}, s{S_T0}, s{S_WAVE}", f"s_mul_i32 s{S_T0}, s{S_T0}, 5",
                f"v_add_u32 v9, s{S_T0}, v9", "v_mul_u32_u24 v9, 3840, v9", "v_lshl_add_u32 v9, v10, 7, v9",
                f"s_lshr_b32 s{S_T0}, s{S_XCD}, 1", f"s_mul_i32 s{S_T0}, s{S_T0}, 320", f"s_and_b32 s{S_T0}, s{S_T0}, 0xffffff80",
                "s_mov_b32 exec_lo, 0x7fff", "s_mov_b32 exec_hi, 0",
                f"buffer_load_dword v159, v9, {srd(SRD_W)}, s{S_T0} offen", "s_mov_b64 exec, -1"]

    def stats_and_colsum(self, first):
        g = self
        csoff = 0 if first else 128 * 4
        for i in range(4): g(f"v_add_f32 v{76+i}, v{76+i}, v{80+i}")
        for i in range(4): g(f"v_mov_b32 v{80+i}, v{76+i}")
        for i in range(4): g(f"v_permlane32_swap_b32 v{76+i}, v{80+i}")
        for i in range(4): g(f"v_add_f32 v{76+i}, v{76+i}, v{80+i}")
        g(f"""
        s_lshl_b32 s{S_T0}, s{S_WAVE}, 7
        s_add_u32 s{S_T0}, s{S_T0}, {L_CS + csoff}
        v_lshl_add_u32 v9, v1, 2, s{S_T0}
        s_mov_b32 exec_lo, 0x11111111
        s_mov_b32 exec_hi, 0
        ds_write_b128 v9, v[76:79]
        s_mov_b64 exec, -1
        """)
        if first:
            for i in range(4): g(f"v_add_f32 v{64+i}, v{64+i}, v{68+i}")
            for i in range(1, 4):
                m = 0x11111111 << i
                g(f"s_mov_b32 s{S_MB}, {hex(m)}\ns_mov_b32 s{S_MB+1}, {hex(m)}\nv_cndmask_b32 v64, v64, v{64+i}, {s2(S_MB)}")
            g(f"""
            v_mov_b32 v65, v64
            v_mov_b32 v90, 0x3acccccd
            s_nop 0
            v_permlane32_swap_b32 v64, v65
            v_add_f32 v64, v64, v65
            v_mul_f32 v66, v56, v90
            v_mul_f32 v64, v64, v90
            v_fma_f32 v64, -v66, v66, v64
            v_max_f32 v64, 0, v64
            """)
            g.rnd_bf16(64, 64)
            g("v_add_f32 v64, 0x3727c5ac, v64")
            g.rnd_bf16(64, 64)
            g("v_sqrt_f32 v64, v64")
            g.rnd_bf16(90, 64)
            g.rnd_bf16(91, 66)
            g("v_rcp_f32 v88, v90\nv_sub_f32 v86, 0, v91")
        g("s_waitcnt lgkmcnt(0)\ns_barrier")
        self.stamp("csbar" if first else "csbar2")

    def normalise(self, quads, csoff):
        g = self
        g(f"v_lshlrev_b32 v9, 4, v3\nv_add_u32 v9, {L_CS + csoff}, v9")
        for i, (r, col) in enumerate(quads):
            g(f"ds_read_b128 {v(160+4*i,4)}, v9 offset:{col*4}")
        for i, (r, col) in enumerate(quads):
            g(f"s_waitcnt lgkmcnt({len(quads)-1-i})")
            for hh in range(2):
                g(f"v_pk_fma_f32 {v(r+2*hh,2)}, {v(160+4*i+2*hh,2)}, v[86:87], {v(r+2*hh,2)} op_sel_hi:[1,0,1]")
            for hh in range(2):
                g(f"v_pk_mul_f32 {v(r+2*hh,2)}, {v(r+2*hh,2)}, v[88:89] op_sel_hi:[1,0]")

    def softmax(self, H0, H1):
        g = self
        P = (92, 108)
        L = 0x3fb8aa3b
        g(f"v_mov_b32 v124, {hex(L)}\nv_mov_b32 v126, {hex(L | 0x80000000)}")
        for H in (H0, H1): g(f"v_mov_b32 v{H+10}, 0\nv_mov_b32 v{H+11}, 0")
        E = (160, 180)
        MX = (200, 204)
        for a in range(2):
            p, mx = P[a], MX[a]
            g(f"""
            v_max3_f32 v{mx}, v{p}, v{p+1}, v{p+2}
            v_min3_f32 v{mx+1}, v{p}, v{p+1}, v{p+2}
            v_max3_f32 v{mx}, v{mx}, v{p+3}, v{p+4}
            v_min3_f32 v{mx+1}, v{mx+1}, v{p+3}, v{p+4}
            v_max3_f32 v{mx}, v{mx}, v{p+5}, v{p+6}
            v_min3_f32 v{mx+1}, v{mx+1}, v{p+5}, v{p+6}
            v_max3_f32 v{mx}, v{mx}, v{p+7}, v{p+8}
            v_min3_f32 v{mx+1}, v{mx+1}, v{p+7}, v{p+8}
            v_max_f32 v{mx}, v{mx}, v{p+9}
            v_min_f32 v{mx+1}, v{mx+1}, v{p+9}
            v_sub_f32 v{mx+1}, 0, v{mx+1}
            """)
        for a in range(2): g(f"v_permlane32_swap_b32 v{MX[a]}, v{MX[a]+1}")
        for a in range(2): g(f"v_max_f32 v{MX[a]}, v{MX[a]}, v{MX[a]+1}")
        for a in range(2): g(f"v_mov_b32 v{MX[a]+1}, v{MX[a]}")
        for a in range(2): g(f"v_permlane32_swap_b32 v{MX[a]}, v{MX[a]+1}")
        for a in range(2):
            mx = MX[a]
            g(f"v_mul_f32 v{mx+2}, v{mx+1}, v126\nv_mul_f32 v{mx}, v{mx}, v126")
        for a in range(2):
            p, mx, e = P[a], MX[a], E[a]
            for i in range(5):
                g(f"v_pk_fma_f32 {v(e+2*i,2)}, {v(p+2*i,2)}, v[124:125], {v(mx,2)} op_sel_hi:[1,0,0]")
                g(f"v_pk_fma_f32 {v(e+10+2*i,2)}, {v(p+2*i,2)}, v[126:127], {v(mx+2,2)} op_sel_hi:[1,0,0]")
        self.stamp("sm_pre" + str(H0) + getattr(self, "smtag", ""))
        for a in range(2):
            for i in range(20): g(f"v_exp_f32 v{E[a]+i}, v{E[a]+i}")
        self.stamp("sm_exp" + getattr(self, "smtag", ""))
        SM = (208, 214)
        for a in range(2):
            e, sm = E[a], SM[a]
            g(f"v_pk_add_f32 {v(sm,2)}, {v(e,2)}, {v(e+2,2)}\nv_pk_add_f32 {v(sm+2,2)}, {v(e+10,2)}, {v(e+12,2)}")
        for i in range(2, 5):
            for a in range(2):
                e, sm = E[a], SM[a]
                g(f"v_pk_add_f32 {v(sm,2)}, {v(sm,2)}, {v(e+2*i,2)}\nv_pk_add_f32 {v(sm+2,2)}, {v(sm+2,2)}, {v(e+10+2*i,2)}")
        for a in range(2):
            sm = SM[a]
            g(f"v_add_f32 v{sm}, v{sm}, v{sm+1}\nv_add_f32 v{sm+1}, v{sm+2}, v{sm+3}")
        for a in range(2): g(f"v_permlane32_swap_b32 v{SM[a]}, v{SM[a]+1}")
        for a in range(2): g(f"v_add_f32 v{SM[a]}, v{SM[a]}, v{SM[a]+1}")
        for a in range(2): g(f"v_mov_b32 v{SM[a]+2}, v{SM[a]}")
        for a in range(2): g(f"v_permlane32_swap_b32 v{SM[a]}, v{SM[a]+2}")
        for a in range(2): g(f"v_rcp_f32 v{SM[a]}, v{SM[a]}\nv_rcp_f32 v{SM[a]+2}, v{SM[a]+2}")
        for a, H in ((0, H0), (1, H1)):
            e, sm = E[a], SM[a]
            for i in range(5):
                g(f"v_pk_mul_f32 {v(e+2*i,2)}, {v(e+2*i,2)}, {v(sm,2)} op_sel_hi:[1,0]")
                g(f"v_pk_mul_f32 {v(e+10+2*i,2)}, {v(e+10+2*i,2)}, {v(sm+2,2)} op_sel_hi:[1,0]")
            for i in range(10):
                g(f"v_cvt_pk_bf16_f32 v{H+i}, v{e+2*i}, v{e+2*i+1}")

    def norm_reads(self, quads, csoff, r0):
        g = self
        for i, (r, col) in enumerate(quads):
            g(f"ds_read_b128 {v(r0+4*i,4)}, v9 offset:{col*4}")

    def norm_apply(self, quads, r0, after):
        g = self
        for i, (r, col) in enumerate(quads):
            g(f"s_waitcnt lgkmcnt({len(quads)-1-i+after})")
            for hh in range(2):
                g(f"v_pk_fma_f32 {v(r+2*hh,2)}, {v(r0+4*i+2*hh,2)}, v[86:87], {v(r+2*hh,2)} op_sel_hi:[1,0,1]")
            for hh in range(2):
                g(f"v_pk_mul_f32 {v(r+2*hh,2)}, {v(r+2*hh,2)}, v[88:89] op_sel_hi:[1,0]")

    def featmap_mfma(self, PK):
        g = self
        g(f"v_mfma_f32_32x32x16_bf16 v[92:107], v[140:143], {v(PK,4)}, 0")
        g(f"v_mfma_f32_32x32x16_bf16 v[108:123], v[146:149], {v(PK+4,4)}, 0")
        g(f"v_mfma_f32_32x32x8_bf16 v[92:107], v[144:145], {v(PK+4,2)}, v[92:107]")
        g(f"v_mfma_f32_32x32x8_bf16 v[108:123], v[150:151], {v(PK+8,2)}, v[108:123]")

    def k_epilogue(self):
        g = self
        self.stats_and_colsum(True)
        PK, PV = 244, 210
        kq = [(16+4*j, 8*j) for j in range(4)] + [(32, 32)]
        vq = [(36, 40), (40, 48), (44, 56), (48, 64), (52, 72)]
        def part1():
            g(f"v_lshlrev_b32 v9, 4, v3\nv_add_u32 v9, {L_CS}, v9")
            self.norm_reads(kq, 0, 160); self.norm_reads(vq, 0, 180)
            self.norm_apply(kq, 160, 5)
            for i in range(10): g(f"v_cvt_pk_bf16_f32 v{PK+i}, v{16+2*i}, v{16+2*i+1}")
            self.stamp("k_cvt")
            self.featmap_mfma(PK)
            self.norm_apply(vq, 180, 0)
            self.stamp("v_norm")
            self.dump("kv_norm", list(range(16, 64)) + [86, 88, 90, 91])
            g(f"""
            v_accvgpr_read_b32 v11, a192
            v_mov_b32 v14, 0x3f80
            v_mov_b32 v15, 0
            v_lshl_add_u32 v12, v3, 4, v11
            v_lshl_add_u32 v13, v3, 3, v11
            ds_write_b64 v12, v[14:15] offset:{34*8}
            """)
            for i, (r, col) in enumerate(vq):
                g(f"v_cvt_pk_bf16_f32 v{PV+2*i}, v{r}, v{r+1}\nv_cvt_pk_bf16_f32 v{PV+2*i+1}, v{r+2}, v{r+3}")
                g(f"ds_write_b64 v11, {v(PV+2*i,2)} offset:{192 + 16*i}")
            self.stamp("prefm")
            self.softmax(220, 232)
            self.stamp("postfm")
        self.interleave([(x, "wq") for x in self.wq_groups()], self.capture(part1))
        self.dump("phik", list(range(220, 244)))
        for a, H in ((0, 220), (1, 232)):
            for st in range(3):
                g(f"ds_write_b128 v13, {v(H+4*st,4)} offset:{a*96 + st*32}")
        g("v_accvgpr_read_b32 v160, a193\nv_accvgpr_read_b32 v161, a194\nv_accvgpr_read_b32 v9, a195")
        g(f"v_cmp_gt_u32 vcc, 21, v2\ns_and_b32 s{S_T1}, s{S_WAVE}, 1\ns_mov_b64 {s2(S_MA)}, vcc")
        g("s_waitcnt lgkmcnt(0)\ns_barrier")
        self.stamp("Tbar")
        A0, B0 = 164, 196
        for ks in range(8):
            for rd in range(2):
                g(f"ds_read_b64_tr_b16 {v(A0+4*ks+2*rd,2)}, v160 offset:{(16*ks+rd)*336}")
                g(f"ds_read_b64_tr_b16 {v(B0+4*ks+2*rd,2)}, v161 offset:{(16*ks+rd)*336}")
            if ks >= 2:
                k = ks - 2
                g("s_waitcnt lgkmcnt(8)")
                cin = "0" if k == 0 else "v[92:107]"
                g(f"v_mfma_f32_32x32x16_bf16 v[92:107], {v(A0+4*k,4)}, {v(B0+4*k,4)}, {cin}")
        g("s_waitcnt lgkmcnt(4)")
        g(f"v_mfma_f32_32x32x16_bf16 v[92:107], {v(A0+24,4)}, {v(B0+24,4)}, v[92:107]")
        g("s_waitcnt lgkmcnt(0)")
        g(f"v_mfma_f32_32x32x16_bf16 v[92:107], {v(A0+28,4)}, {v(B0+28,4)}, v[92:107]")
        g(f"""
        s_cmp_lg_u32 s{S_T1}, 0
        s_cbranch_scc1 L_kvft1
        s_mov_b64 exec, {s2(S_MA)}     ; HZ_SKIP_BEGIN
        buffer_store_dwordx4 v[92:95], v9, {srd(SRD_WS)}, s{S_KVS} offen sc1
        buffer_store_dwordx4 v[96:99], v9, {srd(SRD_WS)}, s{S_KVS} offen offset:672 sc1
        buffer_store_dwordx4 v[100:103], v9, {srd(SRD_WS)}, s{S_KVS} offen offset:1344 sc1
        buffer_store_dwordx4 v[104:107], v9, {srd(SRD_WS)}, s{S_KVS} offen offset:2016 sc1
        s_branch L_kvdone              ; HZ_SKIP_END
L_kvft1:
        s_and_b32 s{S_MA}, s{S_MA}, 0x1fffff      ; HZ_SKIP_BEGIN
        s_mov_b32 s{S_MA+1}, 0
        s_mov_b64 exec, {s2(S_MA)}
        buffer_store_dwordx4 v[92:95], v9, {srd(SRD_WS)}, s{S_KVS} offen offset:2688 sc1
        buffer_store_dwordx4 v[96:99], v9, {srd(SRD_WS)}, s{S_KVS} offen offset:3024 sc1   ; HZ_SKIP_END
L_kvdone:
        s_mov_b64 exec, -1
        """)
        self.stamp("kvstore")

    def dbg_span(self, word, invert):
        if "span" not in self.exp: return
        g = self
        lab = f"L_span{word}"
        g(f"""
        s_and_b32 s100, s2, 15
        s_cmp_lg_u32 s100, 0
        s_cbranch_scc1 {lab}
        s_cmp_lg_u32 s{S_WAVE}, 0
        s_cbranch_scc1 {lab}
        s_memrealtime s[100:101]
        s_waitcnt lgkmcnt(0)
        {"s_not_b32 s100, s98" if invert else "s_nop 0"}
        v_mov_b32 v9, {word*4}
        v_mov_b32 v10, s100
        s_mov_b64 exec, 1
        buffer_atomic_umax v10, v9, {srd(SRD_DBG)}, 0 offen sc1
        s_mov_b64 exec, -1
{lab}:
        """)

    def finish(self):
        g = self
        self.dbg_span(3, False)
        if self.stamps:
            g("s_waitcnt lgkmcnt(0)")
            self.flush_stamps()
            g(f"""
            s_lshl_b32 s{S_T0}, s2, 2
            s_add_u32 s{S_T0}, s{S_T0}, s{S_WAVE}
            s_lshl_b32 s{S_T0}, s{S_T0}, 8
            s_add_u32 s{S_T0}, s{S_T0}, {WS_TS}
            v_lshlrev_b32 v9, 2, v1
            buffer_store_dword v255, v9, {srd(SRD_WS)}, s{S_T0} offen
            """)
        g("L_exit:\ns_endpgm\nL_code_end:")

    def pre_k_epilogue(self):
        pass

    def build(self):
        g = self
        self.prologue()
        self.dump("phifrag", list(range(140, 152)))
        self.pass1()
        self.dump("acc1", list(range(16, 84)))
        if self.stop != "pass1":
            self.dbg_span(10, False)
            self.pre_k_epilogue()
            self.k_epilogue()
        if self.stop not in ("pass1", "kv"):
            self.rest()
        self.finish()

    def text(self):
        body, nins = hazard.fix([l.strip() for l in self.a.lines])
        hdr = open("parallel_sum__linear_kernel_hedgehog__moe_arch_mod__prompt.s.ref").read().split("\n")
        top = [l for l in hdr if l.startswith(";") and "@launch" not in l and "Override" not in l and "grid=ceil" not in l]
        out = "\n".join(top) + "\n"
        out += f"; @launch grid=(256,1,1) block=(256,1,1) lds={LDS_SIZE}\n"
        out += '.amdgcn_target "amdgcn-amd-amdhsa--gfx950"\n.text\n' + kernel_header(NAME)
        out += "\n".join("    " + l if not l.endswith(":") else l for l in body if l) + "\n"
        out += f""".section .rodata,"a"
.p2align 6
.amdhsa_kernel {NAME}
  .amdhsa_next_free_vgpr 512
  .amdhsa_next_free_sgpr 102
  .amdhsa_accum_offset 256
  .amdhsa_group_segment_fixed_size 0
  .amdhsa_kernarg_size 96
  .amdhsa_user_sgpr_count 2
  .amdhsa_user_sgpr_kernarg_segment_ptr 1
  .amdhsa_system_sgpr_workgroup_id_x 1
  .amdhsa_float_denorm_mode_32 3
.end_amdhsa_kernel
"""
        return out, nins


if __name__ == "__main__":
    import argparse, json
    import gen_rest
    ap = argparse.ArgumentParser()
    ap.add_argument("-o", default="k.s")
    ap.add_argument("--stop", default=None)
    ap.add_argument("--dump", default="")
    ap.add_argument("--stamps", default="")
    ap.add_argument("--notouch", action="store_true")
    ap.add_argument("--exp", default="")
    args = ap.parse_args()
    G = gen_rest.Full(stop=args.stop, dumps=[d for d in args.dump.split(",") if d], stamps=set(args.stamps.split(",")) if args.stamps else False, touch=not args.notouch, exp=[e for e in args.exp.split(",") if e])
    G.build()
    t, nins = G.text()
    open(args.o, "w").write(t)
    json.dump({"dumps": G.dump_index, "stamps": getattr(G, "stamp_names", [])}, open(args.o + ".json", "w"))
    print("wrote", args.o, "lines", t.count("\n"), "nops inserted", nins)
```

```python
from gen import *

S_RB64, S_CB, S_MU, S_RSEL, S_ROW0 = 20, 21, 22, 23, 12
S_QC = 13
S_WOG, S_WOL = 14, 15
S_WOS = 76
S_XO = 85
S_KVE, S_KVB = 79, 75
S_KVA, S_OS = 78, 84
CNT_KV, CNT_O, CNT_M = 0, 16, 32
SPIN_LIMIT = 200000

class Full(Gen):
    def poll(self, name, srd_n, vaddr_setup, target, nl=1):
        g = self
        lab = f"L_poll_{name}"
        g(vaddr_setup)
        g(f"s_mov_b32 exec_lo, {(1 << nl) - 1}\ns_mov_b32 exec_hi, 0")
        g(f"""
        s_mov_b32 s74, 0
{lab}:
        buffer_load_dword v10, v9, {srd(srd_n)}, 0 offen sc1
        s_add_u32 s74, s74, 1
        s_cmp_gt_u32 s74, {SPIN_LIMIT}
        s_cbranch_scc1 {lab}_out
        s_waitcnt vmcnt(0)
        v_cmp_ne_u32 vcc, {target}, v10
        s_cbranch_vccnz {lab}
{lab}_out:
        s_waitcnt vmcnt(0)
        s_mov_b64 exec, -1
        """)

    def poll_issue(self, srd_n, vaddr_setup, nl=1):
        g = self
        g(vaddr_setup)
        g(f"s_mov_b32 exec_lo, {(1 << nl) - 1}\ns_mov_b32 exec_hi, 0\nbuffer_load_dword v239, v238, {srd(srd_n)}, 0 offen sc1\ns_mov_b64 exec, -1")

    def poll_finish(self, name, srd_n, target, nl=1):
        g = self
        lab = f"L_poll_{name}"
        g(f"""
        s_mov_b32 exec_lo, {(1 << nl) - 1}
        s_mov_b32 exec_hi, 0
        s_mov_b32 s74, 0
        s_waitcnt vmcnt(0)
        v_cmp_ne_u32 vcc, {target}, v239
        s_cbranch_vccz {lab}_out
{lab}:
        buffer_load_dword v239, v238, {srd(srd_n)}, 0 offen sc1
        s_add_u32 s74, s74, 1
        s_cmp_gt_u32 s74, {SPIN_LIMIT}
        s_cbranch_scc1 {lab}_out
        s_waitcnt vmcnt(0)
        v_cmp_ne_u32 vcc, {target}, v239
        s_cbranch_vccnz {lab}
{lab}_out:
        s_waitcnt vmcnt(0)
        s_mov_b64 exec, -1
        """)

    def signal(self, name, cnt_sgpr_expr, drain=True):
        g = self
        if drain: g("s_waitcnt vmcnt(0)")
        g(f"""
        s_barrier
        s_cmp_lg_u32 s{S_WAVE}, 0
        s_cbranch_scc1 L_nosig_{name}
        """)
        g(cnt_sgpr_expr + " ; HZ_SKIP_BEGIN")
        g(f"""
        s_lshl_b32 s{S_T0}, s{S_T0}, 7
        v_mov_b32 v9, s{S_T0}
        v_mov_b32 v10, 1
        s_mov_b64 exec, 1
        buffer_atomic_add v10, v9, {srd(SRD_WS)}, 0 offen sc1
        s_mov_b64 exec, -1         ; HZ_SKIP_END
L_nosig_{name}:
        """)

    def publish_kv(self):
        g = self
        g(f"""
        s_cmp_lg_u32 s{S_HP}, 0
        s_cbranch_scc1 L_nostats
        s_lshl_b32 s{S_T0}, s{S_RB}, 7       ; HZ_SKIP_BEGIN
        s_lshl_b32 s{S_T1}, s{S_WAVE}, 5
        s_add_u32 s{S_T0}, s{S_T0}, s{S_T1}
        s_lshl_b32 s{S_T0}, s{S_T0}, 3
        s_add_u32 s{S_T0}, s{S_T0}, {WS_STATS}
        v_lshlrev_b32 v9, 3, v2
        v_mov_b32 v10, v91
        v_mov_b32 v11, v90
        s_mov_b32 exec_hi, 0
        buffer_store_dwordx2 v[10:11], v9, {srd(SRD_WS)}, s{S_T0} offen sc1
        s_mov_b64 exec, -1                   ; HZ_SKIP_END
L_nostats:
        """)
        g(f"""
        v_mul_u32_u24 v9, 6554, v1
        v_lshrrev_b32 v9, 16, v9
        v_mul_u32_u24 v10, 10, v9
        v_sub_u32 v10, v1, v10
        v_mul_u32_u24 v11, 1280, v9
        v_lshl_add_u32 v11, v10, 7, v11
        s_lshl_b32 s{S_T0}, s{S_SLOT}, 2
        s_add_u32 s{S_T0}, s{S_T0}, s{S_WAVE}
        s_mul_i32 s{S_T0}, s{S_T0}, {5*1280}
        s_mov_b32 exec_hi, 0x3ffff
        buffer_load_dword v159, v11, {srd(SRD_WO)}, s{S_T0} offen
        s_mov_b64 exec, -1
        s_waitcnt vmcnt(1)
        """)
        g(f"""
        v_readfirstlane_b32 s{S_T0}, v75
        s_cmp_eq_u32 s{S_T0}, 1
        s_cbranch_scc1 L_isready
        """)
        self.poll("ready", SRD_DBG, "v_mov_b32 v9, 240 ; HZ_SKIP_BEGIN", 1)
        g("s_nop 0 ; HZ_SKIP_END\nL_isready:")
        self.signal("kv", f"s_add_u32 s{S_T0}, s{S_HP}, {CNT_KV}", drain=False)
        self.stamp("kvsig")


    def moe_roles(self):
        g = self
        g(f"""
        s_lshr_b32 s{S_T0}, s{S_XCD}, 1
        s_lshr_b32 s{S_T1}, s{S_SLOT}, 3
        s_add_u32 s{S_T0}, s{S_T0}, s{S_T1}
        s_lshr_b32 s{S_T1}, s{S_SLOT}, 4
        s_lshl_b32 s{S_T1}, s{S_T1}, 3
        s_and_b32 s{S_T2}, s{S_SLOT}, 7
        s_add_u32 s{S_T1}, s{S_T1}, s{S_T2}
        s_mul_i32 s{S_MU}, s{S_XCD}, 14
        s_add_u32 s{S_MU}, s{S_MU}, s{S_T1}
        s_cmp_lt_u32 s{S_T1}, 14
        s_cselect_b32 s{S_MU}, s{S_MU}, 255
        s_bitcmp1_b32 s{S_T0}, 0
        s_cselect_b32 s{S_MU}, 255, s{S_MU}
        s_lshr_b32 s{S_T0}, s{S_SLOT}, 3
        s_lshl_b32 s{S_T1}, s{S_XCD}, 2
        s_add_u32 s{S_RB64}, s{S_T0}, s{S_T1}
        s_and_b32 s{S_CB}, s{S_SLOT}, 7
        s_lshl_b32 s{S_ROW0}, s{S_RB64}, 6
        s_lshl_b32 s{S_T0}, s{S_WAVE}, 4
        s_add_u32 s{S_ROW0}, s{S_ROW0}, s{S_T0}
        s_mul_i32 s{S_T1}, s{S_CB}, 160
        s_mov_b32 s{S_WOG}, s{S_T1}
        s_mul_i32 s{S_T0}, s{S_ROW0}, 1280
        s_add_u32 s{S_XO}, s{S_T0}, s{S_T1}
        s_lshl_b32 s{S_T0}, s{S_RB}, 1
        s_lshr_b32 s{S_T1}, s{S_WAVE}, 1
        s_add_u32 s{S_T0}, s{S_T0}, s{S_T1}
        s_mul_i32 s{S_T0}, s{S_T0}, 81920
        s_and_b32 s{S_T1}, s{S_WAVE}, 1
        s_mul_i32 s{S_T1}, s{S_T1}, 40960
        s_add_u32 s{S_T0}, s{S_T0}, s{S_T1}
        s_lshr_b32 s{S_T1}, s{S_HP}, 2
        s_mul_i32 s{S_T1}, s{S_T1}, 5120
        s_add_u32 s{S_T0}, s{S_T0}, s{S_T1}
        s_and_b32 s{S_T1}, s{S_HP}, 3
        s_lshl_b32 s{S_T1}, s{S_T1}, 8
        s_add_u32 s{S_T0}, s{S_T0}, s{S_T1}
        s_add_u32 s{S_OS}, s{S_T0}, {WS_O}
        """)

    WD = 160
    def moe_load_block(self, k):
        g = self
        lab = f"L_nomoeld{k}"
        g(f"s_cmp_ge_u32 s{S_MU}, 108\ns_cbranch_scc1 {lab}")
        if k == 0:
            g(f"""
            v_lshrrev_b32 v134, 1, v1                ; HZ_SKIP_BEGIN
            v_mul_u32_u24 v134, 3456, v134
            v_and_b32 v10, 1, v1
            v_lshl_add_u32 v134, v10, 4, v134
            v_lshlrev_b32 v135, 3, v0
            """)
        else:
            g("s_nop 0 ; HZ_SKIP_BEGIN")
        g(f"""
        s_and_b32 s{S_T0}, s{S_MU}, 3
        s_add_u32 s{S_T0}, s{S_T0}, {k}
        s_cmp_ge_u32 s{S_T0}, 5
        s_cselect_b32 s{S_T1}, 5, 0
        s_sub_u32 s{S_T3}, s{S_T0}, s{S_T1}
        s_mul_i32 s{S_T1}, s{S_WAVE}, 5
        s_add_u32 s{S_T3}, s{S_T3}, s{S_T1}
        s_mul_i32 s{S_T2}, s{S_T3}, {32*3456}
        s_lshl_b32 s{S_T0}, s{S_MU}, 5
        s_add_u32 s{S_T2}, s{S_T2}, s{S_T0}
        s_lshl_b32 s{S_T1}, s{S_T3}, 10
        s_add_u32 m0, s{S_T1}, {L_G}
        s_mul_i32 s{S_T0}, s{S_MU}, {16*1280}
        buffer_load_dwordx4 v134, {srd(SRD_G)}, s{S_T2} offen lds
        s_add_u32 m0, s{S_T1}, {L_U}
        v_cmp_gt_u32 vcc, 160, v0
        buffer_load_dwordx4 v134, {srd(SRD_U)}, s{S_T2} offen lds
        s_and_saveexec_b64 {s2(S_MA)}, vcc
        s_cbranch_execz {lab}_x
        """)
        us = list(range(16))[[0, 3, 6, 9, 12][k]:[3, 6, 9, 12, 16][k]]
        for u in us:
            g(f"s_add_u32 s{S_T1}, s{S_T0}, {u*1280}\nbuffer_load_dwordx2 {ac(self.WD+2*u,2)}, v135, {srd(SRD_D)}, s{S_T1} offen")
        g(f"{lab}_x:\ns_mov_b64 exec, -1 ; HZ_SKIP_END\n{lab}:")

    def p2_reads(self, n):
        i, ks = divmod(n, 4); b = n % 3
        base = 128 + (i & 1)
        out = []
        for t in range(2):
            for rd in range(2):
                out.append(f"ds_read_b64_tr_b16 {v(92+12*b+4*t+2*rd,2)}, v{base} offset:{(16*ks+rd)*80 + 64*t}")
        for rd in range(2):
            out.append(f"ds_read_b64_tr_b16 {v(160+4*b+2*rd,2)}, v{130 + (i & 1)} offset:{(16*ks+rd)*80}")
        return out

    def p2_base(self, i):
        r = i & 1
        return [f"v_add_u32 v{128+r}, s{S_QC}, v132", f"v_add_u32 v{130+r}, s{S_QC}, v133",
                f"s_add_u32 s{S_QC}, s{S_QC}, 5120", f"s_cmp_eq_u32 s{S_QC}, 51200", f"s_cselect_b32 s{S_QC}, 0, s{S_QC}"]

    def pass2(self):
        g = self
        g(f"""
        v_bfe_u32 v9, v1, 2, 2
        v_lshlrev_b32 v9, 1, v9
        v_add_u32 v9, v9, v3
        v_lshlrev_b32 v9, 1, v9
        v_mul_u32_u24 v9, 80, v9
        v_bfe_u32 v10, v1, 4, 1
        v_and_b32 v11, 3, v1
        v_lshl_add_u32 v10, v10, 2, v11
        v_lshl_add_u32 v9, v10, 3, v9
        v_add_u32 v132, {L_WQ}, v9
        s_lshl_b32 s{S_T0}, s{S_WAVE}, 6
        v_add_u32 v133, s{S_T0}, v132
        s_mul_i32 s{S_QC}, s{S_C0}, 5120
        """)
        for n in range(5): g(f"v_accvgpr_read_b32 v{152+n}, a{200+n}")
        self.wog = self.wo_groups()
        early = self.wog[:10]
        for x in self.p2_base(0): g(x)
        for x in self.p2_reads(0): g(x)
        for x in self.p2_reads(1): g(x)
        for n in range(40):
            i, ks = divmod(n, 4); b = n % 3
            if ks == 1 and i < 9:
                for x in self.p2_base(i + 1): g(x)
            g("s_waitcnt lgkmcnt(0)" if n == 39 else "s_waitcnt lgkmcnt(6)")
            rd = self.p2_reads(n + 2) if n + 2 < 40 else []
            XP = ac(4*n, 4)
            WF = lambda t: 92 + 12*b + 4*t
            cin = lambda r, k: "0" if n == 0 else v(r, k)
            g(f"v_mfma_f32_32x32x16_bf16 v[16:31], {v(WF(0),4)}, {XP}, {cin(16,16)}")
            for x in rd[0:3]: g(x)
            g(f"v_mfma_f32_32x32x16_bf16 v[32:47], {v(WF(1),4)}, {XP}, {cin(32,16)}")
            for x in rd[3:6]: g(x)
            g(f"v_mfma_f32_4x4x4_16b_bf16 v[76:79], {v(160+4*b,2)}, v[84:85], {cin(76,4)}")
            g(f"v_mfma_f32_4x4x4_16b_bf16 v[80:83], {v(160+4*b+2,2)}, v[84:85], {cin(80,4)}")
            if n in (3, 11, 19, 27, 35): self.moe_load_block((n - 3) // 8)
            if n >= 18 and n % 2 == 0 and early:
                for x in early.pop(0): g(x)
            if n in (9, 19, 29): self.stamp(f"p2_{n}")
        while early:
            for x in early.pop(0): g(x)
        self.stamp("p2end")

    def q_epilogue(self):
        g = self
        self.smtag = "q"
        self.stats_and_colsum(False)
        quads = [(16+4*j, 8*j) for j in range(4)] + [(32, 32)]
        g(f"v_lshlrev_b32 v9, 4, v3\nv_add_u32 v9, {L_CS + 512}, v9")
        self.norm_reads(quads, 512, 160)
        self.norm_apply(quads, 160, 0)
        PK = 244
        for i in range(10):
            g(f"v_cvt_pk_bf16_f32 v{PK+i}, v{16+2*i}, v{16+2*i+1}")
        self.stamp("q_cvt")
        self.featmap_mfma(PK)
        for i in range(4): g(f"v_accvgpr_read_b32 v{56+i}, a{196+i}")
        self.softmax(220, 232)
        self.dump("phiq", list(range(220, 244)))
        self.stamp("qdone")

    def kv_wait(self):
        g = self
        g(f"""
        s_add_u32 s{S_T0}, s{S_HP}, {CNT_KV}
        s_lshl_b32 s{S_T0}, s{S_T0}, 7
        v_mov_b32 v9, s{S_T0}
        v_cmp_eq_u32 vcc, 1, v1
        v_cndmask_b32 v9, v9, {CNT_KV * 128}, vcc
        v_lshlrev_b32 v11, 6, v1
        s_mov_b32 exec_lo, 15
        s_mov_b32 exec_hi, 0
        buffer_load_dword v12, v11, {srd(SRD_DBG)}, 0 offen sc1
        s_mov_b64 exec, -1
        """)
        self.poll("kv", SRD_WS, "s_nop 0", 16, nl=2)
        self.stamp("kvseen")
        g(f"""
        s_mov_b32 exec_lo, 15
        s_mov_b32 exec_hi, 0
        v_cmp_ne_u32 vcc, 64, v12
        s_mov_b64 exec, -1
        s_cbranch_vccz L_rmaxok
        """)
        self.poll("rmax", SRD_DBG, "v_lshlrev_b32 v9, 6, v1 ; HZ_SKIP_BEGIN", 64, nl=4)
        g(f"""
        s_nop 0 ; HZ_SKIP_END
L_rmaxok:
        s_mul_i32 s{S_KVA}, s{S_HP}, {16*KVP_SZ}
        s_add_u32 s{S_KVA}, s{S_KVA}, {WS_KVP}
        s_add_u32 s{S_KVE}, s{S_KVA}, {16*KVP_SZ}
        s_mov_b32 s{S_KVB}, s{S_KVA}
        s_and_b32 s{S_T0}, s{S_SLOT}, 7
        s_mul_i32 s{S_T0}, s{S_T0}, {2*KVP_SZ}
        s_add_u32 s{S_KVA}, s{S_KVA}, s{S_T0}
        v_lshlrev_b32 v64, 4, v0
        s_mul_i32 s{S_T0}, s{S_WAVE}, {41*16}
        s_add_u32 s{S_T0}, s{S_T0}, 4096
        v_lshl_add_u32 v65, v1, 4, s{S_T0}
        s_mov_b32 s{S_MB}, -1
        s_mov_b32 s{S_MB+1}, 0x1ff
        v_lshlrev_b32 v66, 5, v1
        v_add_u32 v66, {WS_RMAX}, v66
        """)

    def kv_load_groups(self):
        grp = []
        for p in range(16):
            grp.append([f"buffer_load_dwordx4 {ac(4*p,4)}, v64, {srd(SRD_WS)}, s{S_KVA} offen sc1", f"s_mov_b64 exec, {s2(S_MB)}",
                        ])
            grp[-1] = [f"buffer_load_dwordx4 {ac(4*p,4)}, v64, {srd(SRD_WS)}, s{S_KVA} offen sc1"]
            grp.append([f"s_mov_b64 exec, {s2(S_MB)}", f"buffer_load_dwordx4 {ac(64+4*p,4)}, v65, {srd(SRD_WS)}, s{S_KVA} offen sc1",
                        "s_mov_b64 exec, -1", f"s_add_u32 s{S_KVA}, s{S_KVA}, {KVP_SZ}",
                        f"s_cmp_eq_u32 s{S_KVA}, s{S_KVE}", f"s_cselect_b32 s{S_KVA}, s{S_KVB}, s{S_KVA}"])
        grp.append([f"buffer_load_dwordx4 v[48:51], v66, {srd(SRD_WS)}, 0 offen sc1"])
        grp.append([f"buffer_load_dwordx4 v[52:55], v66, {srd(SRD_WS)}, 0 offen offset:16 sc1"])
        return grp

    def argmax(self):
        g = self
        g(f"""
        v_cmp_gt_f32 vcc, v50, v48
        v_cndmask_b32 v48, v48, v50, vcc
        v_cndmask_b32 v49, v49, v51, vcc
        v_cmp_gt_f32 vcc, v52, v48
        v_cndmask_b32 v48, v48, v52, vcc
        v_cndmask_b32 v49, v49, v53, vcc
        v_cmp_gt_f32 vcc, v54, v48
        v_cndmask_b32 v48, v48, v54, vcc
        v_cndmask_b32 v49, v49, v55, vcc
        v_mov_b32 v50, v48
        """)
        for ctl in ("row_shr:1 row_mask:0xf bank_mask:0xf", "row_shr:2 row_mask:0xf bank_mask:0xf",
                    "row_shr:4 row_mask:0xf bank_mask:0xf", "row_shr:8 row_mask:0xf bank_mask:0xf",
                    "row_bcast:15 row_mask:0xa bank_mask:0xf", "row_bcast:31 row_mask:0xc bank_mask:0xf"):
            g(f"v_max_f32_dpp v50, v50, v50 {ctl}")
        g(f"""
        v_readlane_b32 s{S_RSEL}, v50, 63
        v_cmp_eq_f32 vcc, s{S_RSEL}, v48
        s_ff1_i32_b64 s{S_T0}, vcc
        s_max_i32 s{S_T0}, s{S_T0}, 0
        v_readlane_b32 s{S_IDX}, v49, s{S_T0}
        s_nop 0
        s_and_b32 s{S_IDX}, s{S_IDX}, 2047
        """)

    def moe(self):
        g = self
        WD = self.WD
        g("v_rcp_f32 v67, v67")
        for d in range(5):
            g(f"""
            v_lshlrev_b32 v168, 16, v{60+d}
            v_and_b32 v169, 0xffff0000, v{60+d}
            v_sub_f32 v168, v168, v66
            v_sub_f32 v169, v169, v66
            v_cvt_pk_bf16_f32 v168, v168, v169
            v_lshlrev_b32 v169, 16, v168
            v_and_b32 v168, 0xffff0000, v168
            v_mul_f32 v169, v169, v67
            v_mul_f32 v168, v168, v67
            v_cvt_pk_bf16_f32 v{60+d}, v169, v168
            """)
        g(f"""
        s_mul_i32 s{S_T0}, s{S_WAVE}, 1280
        s_add_u32 s{S_T0}, s{S_T0}, {L_XS}
        v_mul_u32_u24 v9, 20, v1
        v_add_u32 v9, s{S_T0}, v9
        ds_write_b32 v9, v60
        ds_write_b32 v9, v61 offset:4
        ds_write_b32 v9, v62 offset:8
        ds_write_b32 v9, v63 offset:12
        ds_write_b32 v9, v64 offset:16
        v_bfe_u32 v9, v1, 2, 2
        v_lshl_add_u32 v9, v3, 3, v9
        s_mul_i32 s{S_T1}, s{S_WAVE}, 160
        v_add_u32 v9, s{S_T1}, v9
        v_lshlrev_b32 v9, 5, v9
        v_and_b32 v10, 3, v1
        v_lshl_add_u32 v9, v10, 3, v9
        v_bfe_u32 v10, v1, 4, 1
        v_mul_u32_u24 v10, {L_U - L_G}, v10
        v_add_u32 v9, v9, v10
        v_add_u32 v9, {L_G}, v9
        s_mul_i32 s{S_T1}, s{S_WAVE}, 320
        s_add_u32 s{S_T0}, s{S_T0}, s{S_T1}
        v_lshlrev_b32 v10, 4, v3
        v_add_u32 v10, s{S_T0}, v10
        s_waitcnt lgkmcnt(0)
        """)
        def rd(ks):
            A = 32 + 8*ks
            g(f"""
            ds_read_b64_tr_b16 {v(A,2)}, v9 offset:{(16*ks)*32}
            ds_read_b64_tr_b16 {v(A+2,2)}, v9 offset:{(16*ks+4)*32}
            ds_read_b128 {v(A+4,4)}, v10 offset:{32*ks}
            """)
        for ks in range(4): rd(ks)
        for ks in range(10):
            if ks + 4 < 10:
                g("s_waitcnt lgkmcnt(9)"); rd(ks + 4) if False else None
                g(f"v_mfma_f32_32x32x16_bf16 v[16:31], {v(32+8*ks,4)}, {v(36+8*ks,4)}, {'0' if ks == 0 else 'v[16:31]'}")
                rd(ks + 4)
            else:
                g(f"s_waitcnt lgkmcnt({3*(9-ks)})")
                g(f"v_mfma_f32_32x32x16_bf16 v[16:31], {v(32+8*ks,4)}, {v(36+8*ks,4)}, v[16:31]")
        g(f"""
        s_lshl_b32 s{S_T0}, s{S_WAVE}, 7
        s_add_u32 s{S_T0}, s{S_T0}, {L_HP}
        v_lshlrev_b32 v9, 4, v3
        v_add_u32 v9, s{S_T0}, v9
        s_mov_b32 exec_lo, 1
        s_mov_b32 exec_hi, 1
        ds_write_b128 v9, v[16:19]
        ds_write_b128 v9, v[20:23] offset:32
        ds_write_b128 v9, v[24:27] offset:64
        ds_write_b128 v9, v[28:31] offset:96
        s_mov_b64 exec, -1
        s_waitcnt lgkmcnt(0)
        s_barrier
        v_and_b32 v9, 15, v1
        v_lshlrev_b32 v9, 2, v9
        v_add_u32 v9, {L_HP}, v9
        ds_read_b32 v160, v9
        ds_read_b32 v161, v9 offset:128
        ds_read_b32 v162, v9 offset:256
        ds_read_b32 v163, v9 offset:384
        ds_read_b32 v164, v9 offset:64
        ds_read_b32 v165, v9 offset:192
        ds_read_b32 v166, v9 offset:320
        ds_read_b32 v167, v9 offset:448
        s_waitcnt lgkmcnt(0)
        v_add_f32 v160, v160, v161
        v_add_f32 v162, v162, v163
        v_add_f32 v164, v164, v165
        v_add_f32 v166, v166, v167
        v_add_f32 v160, v160, v162
        v_add_f32 v164, v164, v166
        """)
        g.rnd_bf16(160, 160); g.rnd_bf16(164, 164)
        g(f"""
        v_mul_f32 v161, 0xbfb8aa3b, v160
        v_exp_f32 v161, v161
        v_add_f32 v161, 1.0, v161
        v_rcp_f32 v161, v161
        v_mul_f32 v160, v160, v161
        """)
        g.rnd_bf16(160, 160)
        g("v_mul_f32 v160, v160, v164")
        g.rnd_bf16(160, 160)
        g("""
        v_mov_b32 v161, v160
        s_nop 1
        v_mov_b32_dpp v161, v160 row_shl:1 row_mask:0xf bank_mask:0xf
        s_nop 1
        v_cvt_pk_bf16_f32 v160, v160, v161
        """)
        for i in range(4): g(f"v_mov_b32 v{16+i}, 0")
        g("s_mov_b32 s74, 0x05040100\nv_mov_b32 v26, s74\ns_mov_b32 s74, 0x07060302\nv_mov_b32 v27, s74")
        for p in range(8):
            a0, a1 = WD + 4*p, WD + 4*p + 2
            g(f"""
            v_readlane_b32 s74, v160, {2*p}
            v_accvgpr_read_b32 v20, a{a0}
            v_accvgpr_read_b32 v21, a{a0+1}
            v_accvgpr_read_b32 v22, a{a1}
            v_accvgpr_read_b32 v23, a{a1+1}
            v_perm_b32 v24, v22, v20, v26
            v_perm_b32 v25, v22, v20, v27
            v_perm_b32 v28, v23, v21, v26
            v_perm_b32 v29, v23, v21, v27
            v_dot2c_f32_bf16 v16, s74, v24
            v_dot2c_f32_bf16 v17, s74, v25
            v_dot2c_f32_bf16 v18, s74, v28
            v_dot2c_f32_bf16 v19, s74, v29
            """)
        g("s_nop 2")

    def kv_addresses(self):
        g = self
        for k, (gi, out1, out2) in enumerate(((0, 196, 197), (256, 198, 199))):
            if k == 0: g("v_mov_b32 v9, v0")
            else: g(f"s_mul_i32 s{S_T0}, s{S_WAVE}, 41\ns_add_u32 s{S_T0}, s{S_T0}, 256\nv_add_u32 v9, s{S_T0}, v1")
            g(f"""
            v_cmp_lt_u32 vcc, 209, v9
            v_cndmask_b32 v10, 0, 1, vcc
            v_mul_u32_u24 v11, 210, v10
            v_sub_u32 v9, v9, v11
            v_mul_u32_u24 v11, 3121, v9
            v_lshrrev_b32 v11, 16, v11
            v_mul_u32_u24 v12, 21, v11
            v_sub_u32 v12, v9, v12
            v_lshrrev_b32 v13, 1, v11
            v_and_b32 v14, 1, v11
            v_cmp_lt_u32 vcc, 7, v11
            v_subrev_u32 v15, 4, v11
            v_cndmask_b32 v13, v13, v15, vcc
            v_cndmask_b32 v14, v14, 0, vcc
            v_lshrrev_b32 v15, 1, v13
            v_and_b32 v13, 1, v13
            v_mul_u32_u24 v15, 1024, v15
            v_lshl_add_u32 v15, v13, 9, v15
            v_lshl_add_u32 v15, v14, 3, v15
            v_mul_u32_u24 v13, 3072, v10
            v_add_u32 v15, v15, v13
            v_add_u32 v15, {L_KVF}, v15
            v_lshlrev_b32 v13, 2, v10
            v_sub_u32 v13, v12, v13
            v_add_u32 v14, 20, v13
            v_cmp_gt_i32 vcc, 0, v13
            v_cndmask_b32 v13, v13, v14, vcc
            v_subrev_u32 v14, 16, v13
            v_lshrrev_b32 v60, 3, v13
            v_and_b32 v61, 7, v13
            v_lshrrev_b32 v62, 1, v14
            v_and_b32 v63, 1, v14
            v_add_u32 v63, 8, v63
            v_cmp_lt_u32 vcc, 15, v13
            v_cndmask_b32 v60, v60, v62, vcc
            v_cndmask_b32 v61, v61, v63, vcc
            v_lshrrev_b32 v62, 2, v61
            v_lshlrev_b32 v62, 3, v62
            v_lshl_add_u32 v62, v60, 2, v62
            v_and_b32 v61, 3, v61
            v_add_u32 v62, v62, v61
            v_cmp_eq_u32 vcc, 20, v12
            v_cndmask_b32 v63, v62, 22, vcc
            v_cndmask_b32 v62, v62, 18, vcc
            v_lshl_add_u32 v62, v62, 4, v15
            v_lshl_add_u32 v63, v63, 4, v15
            v_accvgpr_write_b32 a{out1}, v62
            v_accvgpr_write_b32 a{out2}, v63
            """)

    def kv_reduce_and_o(self):
        g = self
        for n in range(3):
            g(f"v_accvgpr_read_b32 v{134+n}, a{205+n}\nv_accvgpr_read_b32 v{137+n}, a{208+n}\nv_accvgpr_read_b32 v{140+n}, a{211+n}\nv_accvgpr_read_b32 v{143+n}, a{214+n}")
        g(f"s_lshl_b32 s{S_T0}, s{S_ROW0}, 3\ns_add_u32 s{S_T0}, s{S_T0}, {WS_STATS}")
        g("s_waitcnt vmcnt(0)")
        self.stamp("kvdata")
        g(f"s_cmp_ge_u32 s{S_MU}, 108\ns_cbranch_scc1 L_noxrow\ns_nop 0 ; HZ_SKIP_BEGIN")
        self.argmax()
        g(f"""
        v_mul_u32_u24 v9, 20, v1
        s_mul_i32 s{S_T1}, s{S_IDX}, 1280
        buffer_load_dwordx4 v[60:63], v9, {srd(SRD_X)}, s{S_T1} offen
        buffer_load_dword v64, v9, {srd(SRD_X)}, s{S_T1} offen offset:16
        s_lshl_b32 s{S_T1}, s{S_IDX}, 3
        s_add_u32 s{S_T1}, s{S_T1}, {WS_STATS}
        v_mov_b32 v9, 0
        buffer_load_dwordx2 v[66:67], v9, {srd(SRD_WS)}, s{S_T1} offen sc1   ; HZ_SKIP_END
L_noxrow:
        """)
        XR, ST = self.XR, self.ST
        g(f"s_lshl_b32 s{S_T0}, s{S_ROW0}, 3\ns_add_u32 s{S_T0}, s{S_T0}, {WS_STATS}")
        for n in range(3):
            g(f"buffer_load_dwordx4 {v(XR+4*n,4)}, v{134+n}, {srd(SRD_X)}, s{S_XO} offen")
            g(f"v_lshlrev_b32 v10, 3, v{140+n}\nbuffer_load_dwordx2 {v(ST+2*n,2)}, v10, {srd(SRD_WS)}, s{S_T0} offen sc1")
        def reduce():
            for base, acc in ((0, 16), (64, 92)):
                for e in range(4): g(f"v_accvgpr_read_b32 v{acc+e}, a{base+e}")
                for p in range(1, 16):
                    t = acc + 4 + 4 * (p & 1)
                    for e in range(4): g(f"v_accvgpr_read_b32 v{t+e}, a{base+4*p+e}")
                    g(f"v_pk_add_f32 {v(acc,2)}, {v(acc,2)}, {v(t,2)}\nv_pk_add_f32 {v(acc+2,2)}, {v(acc+2,2)}, {v(t+2,2)}")
        reduce()
        self.stamp("r_sum")
        g(f"""
        v_cvt_pk_bf16_f32 v16, v16, v17
        v_cvt_pk_bf16_f32 v17, v18, v19
        v_cvt_pk_bf16_f32 v92, v92, v93
        v_cvt_pk_bf16_f32 v93, v94, v95
        ds_write_b64 v56, v[16:17]
        ds_write_b64 v57, v[16:17]
        s_mov_b64 exec, {s2(S_MB)}
        ds_write_b64 v58, v[92:93]
        ds_write_b64 v59, v[92:93]
        s_mov_b64 exec, -1
        s_waitcnt lgkmcnt(0)
        s_barrier
        v_lshlrev_b32 v9, 4, v1
        v_add_u32 v9, {L_KVF}, v9
        """)
        self.stamp("r_bar")
        for a in range(2):
            for t in range(3):
                g(f"ds_read_b128 {v(160+12*a+4*t,4)}, v9 offset:{a*3072 + t*1024}")
        self.dump("kvf", list(range(160, 184)))
        for a, (acc, H) in enumerate(((16, 220), (32, 232))):
            g(f"s_waitcnt lgkmcnt({3 - 3*a})")
            for t in range(3):
                g(f"v_mfma_f32_32x32x16_bf16 {v(acc,16)}, {v(160+12*a+4*t,4)}, {v(H+4*t,4)}, {'0' if t == 0 else v(acc,16)}")
        self.dump("num", list(range(16, 48)))
        g("v_accvgpr_read_b32 v10, a217\nv_accvgpr_read_b32 v11, a218\nv_mov_b32 v12, 0x358637bd")
        for a, (acc, P) in enumerate(((16, 160), (32, 166))):
            g(f"v_add_f32 v{acc+10}, v{acc+10}, v12\nv_rcp_f32 v{acc+10}, v{acc+10}")
        for a, (acc, P) in enumerate(((16, 160), (32, 166))):
            for i in range(5):
                g(f"v_pk_mul_f32 {v(acc+2*i,2)}, {v(acc+2*i,2)}, {v(acc+10,2)} op_sel_hi:[1,0]")
            for i in range(5):
                g(f"v_cvt_pk_bf16_f32 v{P+i}, v{acc+2*i}, v{acc+2*i+1}")
        self.dump("o", list(range(160, 165)) + list(range(166, 171)))
        g(f"""
        v_mov_b32 v172, v164
        v_mov_b32 v173, v170
        s_nop 1
        v_permlane32_swap_b32 v172, v173
        buffer_store_dwordx4 v[160:163], v10, {srd(SRD_WS)}, s{S_OS} offen sc1
        v_mov_b32 v174, v166
        v_mov_b32 v175, v167
        v_mov_b32 v176, v168
        v_mov_b32 v177, v169
        buffer_store_dwordx2 v[172:173], v11, {srd(SRD_WS)}, s{S_OS} offen offset:2048 sc1
        buffer_store_dwordx4 v[174:177], v10, {srd(SRD_WS)}, s{S_OS} offen offset:3072 sc1
        """)
        self.stamp("o_store")
        for grp in self.wog[10:18]:
            for x in grp: g(x)
        self.stamp("o_wo8")
        g("s_waitcnt vmcnt(8)")
        self.stamp("o_drain")
        self.signal("o", f"s_add_u32 s{S_T0}, s{S_RB}, {CNT_O}", drain=False)
        self.stamp("osig")

    XR, RS, ST = 200, 176, 212
    NA = 8
    def wo_groups(self):
        grp = []
        for j in (3, 4, 0, 1, 2):
            for n in range(5):
                gl = []
                if n == 0:
                    gl += [f"s_add_u32 s{S_T3}, s{S_WAVE}, {4*j}", f"s_mul_i32 s{S_WOL}, s{S_T3}, 5120",
                           f"s_mul_i32 s{S_T4}, s{S_T3}, 13108", f"s_lshr_b32 s{S_T4}, s{S_T4}, 16",
                           f"s_mul_i32 s{S_T4}, s{S_T4}, {120*1280}", f"s_mul_i32 s{S_T3}, s{S_T3}, {8*1280}",
                           f"s_add_u32 s{S_T3}, s{S_T3}, s{S_T4}", f"s_add_u32 s{S_WOS}, s{S_T3}, s{S_WOG}"]
                gl += [f"s_add_u32 m0, s{S_WOL}, {L_WO + n*1024}", "s_nop 0",
                       f"buffer_load_dwordx4 v{152+n}, {srd(SRD_WO)}, s{S_WOS} offen lds"]
                grp.append(gl)
        return grp

    def c_addresses(self):
        g = self
        for n in range(5):
            g(f"""
            v_add_u32 v9, {64*n}, v1
            v_mul_u32_u24 v10, 6554, v9
            v_lshrrev_b32 v10, 16, v10
            v_mul_u32_u24 v11, 10, v10
            v_sub_u32 v11, v9, v11
            v_bfe_u32 v12, v10, 3, 1
            v_bfe_u32 v13, v10, 2, 1
            v_lshl_add_u32 v12, v12, 1, v13
            v_mul_u32_u24 v12, 40, v12
            v_lshrrev_b32 v13, 4, v10
            v_lshl_add_u32 v12, v13, 2, v12
            v_and_b32 v13, 3, v10
            v_add_u32 v12, v12, v13
            v_mul_u32_u24 v12, 1280, v12
            v_lshl_add_u32 v12, v11, 4, v12
            v_accvgpr_write_b32 a{200+n}, v12
            """)
            if n < 3:
                g(f"""
                v_min_u32 v10, 15, v10
                v_mul_u32_u24 v12, 1280, v10
                v_lshl_add_u32 v12, v11, 4, v12
                v_accvgpr_write_b32 a{205+n}, v12
                v_mul_u32_u24 v12, 336, v10
                v_lshl_add_u32 v12, v11, 5, v12
                v_accvgpr_write_b32 a{208+n}, v12
                v_accvgpr_write_b32 a{211+n}, v10
                v_lshlrev_b32 v12, 5, v11
                v_accvgpr_write_b32 a{214+n}, v12
                """)

    def o_addresses(self):
        g = self
        g("""
        v_lshrrev_b32 v9, 4, v2
        v_mul_u32_u24 v9, 20480, v9
        v_and_b32 v10, 15, v2
        v_lshl_add_u32 v9, v10, 4, v9
        v_lshl_add_u32 v10, v3, 10, v9
        v_lshl_add_u32 v11, v3, 3, v9
        v_accvgpr_write_b32 a217, v10
        v_accvgpr_write_b32 a218, v11
        """)

    def residual(self):
        g = self
        XR, RS, ST = self.XR, self.RS, self.ST
        for n in range(3):
            xr, rs, st = XR + 4*n, RS + 8*n, ST + 2*n
            g(f"v_rcp_f32 v{st+1}, v{st+1}")
            for d in range(4):
                g(f"""
                v_lshlrev_b32 v10, 16, v{xr+d}
                v_and_b32 v11, 0xffff0000, v{xr+d}
                v_sub_f32 v12, v10, v{st}
                v_sub_f32 v13, v11, v{st}
                v_cvt_pk_bf16_f32 v12, v12, v13
                v_lshlrev_b32 v13, 16, v12
                v_and_b32 v12, 0xffff0000, v12
                v_mul_f32 v13, v13, v{st+1}
                v_mul_f32 v12, v12, v{st+1}
                v_cvt_pk_bf16_f32 v12, v13, v12
                v_lshlrev_b32 v13, 16, v12
                v_and_b32 v12, 0xffff0000, v12
                v_add_f32 v{rs+2*d}, v13, v10
                v_add_f32 v{rs+2*d+1}, v12, v11
                """)

    def phase_c(self):
        g = self
        XR, RS, ST = self.XR, self.RS, self.ST
        self.stamp("argmax")
        rest = self.wog[18:]
        g(f"s_cmp_ge_u32 s{S_MU}, 108\ns_cbranch_scc1 L_plainwo")
        g("s_nop 0 ; HZ_SKIP_BEGIN")
        self.interleave([(x, "wo") for x in rest], self.capture(self.residual) + self.capture(self.moe))
        g(f"""
        s_waitcnt vmcnt(0)
        s_mul_i32 s{S_T0}, s{S_MU}, 2560
        s_add_u32 s{S_T0}, s{S_T0}, {WS_Y}
        v_lshlrev_b32 v9, 4, v0
        v_cmp_gt_u32 vcc, 160, v0
        s_and_saveexec_b64 {s2(S_MA)}, vcc
        s_cbranch_execz L_noy
        buffer_store_dwordx4 v[16:19], v9, {srd(SRD_WS)}, s{S_T0} offen sc1
L_noy:
        s_mov_b64 exec, -1
        """)
        g("s_barrier")
        g("s_branch L_wodone ; HZ_SKIP_END\nL_plainwo:")
        g("s_nop 0 ; HZ_SKIP_BEGIN")
        self.argmax()
        self.interleave([(x, "wo") for x in rest], self.capture(self.residual))
        g("s_waitcnt vmcnt(0)\ns_barrier")
        g("s_nop 0 ; HZ_SKIP_END\nL_wodone:")
        self.stamp("moedone")
        g(f"""
        v_bfe_u32 v10, v1, 5, 1
        v_lshlrev_b32 v10, 3, v10
        v_bfe_u32 v11, v1, 4, 1
        v_lshl_add_u32 v10, v11, 2, v10
        v_bfe_u32 v11, v1, 2, 2
        v_add_u32 v10, v10, v11
        v_mul_u32_u24 v10, 160, v10
        v_and_b32 v11, 3, v1
        v_lshl_add_u32 v10, v11, 3, v10
        v_add_u32 v236, {L_WO}, v10
        v_add_u32 v237, {L_WO + 10*5120}, v10
        """)
        NA = self.NA
        def wo_reads(ks):
            base = 236 + ks // 10
            out = []
            for ct in range(5):
                for rd in range(2):
                    dst = ac(20*ks + 4*ct + 2*rd, 2) if ks < NA else v(40 + 20*(ks % 3) + 4*ct + 2*rd, 2)
                    out.append(f"ds_read_b64_tr_b16 {dst}, v{base} offset:{(ks % 10)*5120 + rd*2560 + ct*32}")
            return out
        self.poll_issue(SRD_WS, f"s_lshr_b32 s{S_T0}, s{S_RB64}, 1\ns_add_u32 s{S_T0}, s{S_T0}, {CNT_O}\ns_lshl_b32 s{S_T0}, s{S_T0}, 7\nv_mov_b32 v238, s{S_T0}")
        for ks in range(NA + 2):
            for x in wo_reads(ks): g(x)
            if ks < NA + 1: g("s_waitcnt lgkmcnt(5)")
        self.poll_finish("o", SRD_WS, 16)
        g(f"s_cmp_ge_u32 s{S_MU}, 108\ns_cbranch_scc1 L_nomoesig")
        g("s_nop 0 ; HZ_SKIP_BEGIN")
        self.signal("moe", f"s_and_b32 s{S_T0}, s{S_MU}, 3\ns_add_u32 s{S_T0}, s{S_T0}, {CNT_M}", drain=False)
        g("s_nop 0 ; HZ_SKIP_END\nL_nomoesig:")
        self.stamp("oseen"); self.dbg_span(8, False); self.mark("oseen")
        g(f"""
        s_mul_i32 s{S_T0}, s{S_RB64}, 81920
        s_mul_i32 s{S_T1}, s{S_WAVE}, 20480
        s_add_u32 s{S_T0}, s{S_T0}, s{S_T1}
        s_add_u32 s{S_T0}, s{S_T0}, {WS_O}
        v_lshlrev_b32 v9, 4, v1
        """)
        self.vm = []
        regs_o = list(range(100, 128, 4)) + list(range(146, 174, 4)) + [220, 224, 228, 232, 240, 244]
        assert len(regs_o) == 20, len(regs_o)
        def oload(ks):
            g(f"buffer_load_dwordx4 {v(regs_o[ks],4)}, v9, {srd(SRD_WS)}, s{S_T0} offen sc1\ns_add_u32 s{S_T0}, s{S_T0}, 1024")
            g.vmi(f"o{ks}")
        AHEAD = 10
        for ks in range(AHEAD): oload(ks)
        self.stamp("c_issued")
        for ks in range(20):
            if ks == 0: g("s_waitcnt lgkmcnt(0)")
            elif ks >= NA: g("s_waitcnt lgkmcnt(5)" if ks < 18 else ("s_waitcnt lgkmcnt(10)" if ks < 19 else "s_waitcnt lgkmcnt(0)"))
            g.vmwait(f"o{ks}")
            if ks in (0, 5, 10, 15): self.stamp(f"c_o{ks}")
            rd = wo_reads(ks + 2) if NA <= ks < 18 else []
            for ct in range(5):
                cin = "0" if ks == 0 else v(16+4*ct, 4)
                A = ac(20*ks + 4*ct, 4) if ks < NA else v(40 + 20*(ks % 3) + 4*ct, 4)
                g(f"v_mfma_f32_16x16x32_bf16 {v(16+4*ct,4)}, {A}, {v(regs_o[ks],4)}, {cin}")
                for x in rd[2*ct:2*ct+2]: g(x)
            if ks + AHEAD < 20: oload(ks + AHEAD)
        self.stamp("cmfma")
        g(f"""
        s_sub_u32 s{S_T4}, s{S_IDX}, s{S_ROW0}
        s_cmp_ge_u32 s{S_T4}, 16
        s_cbranch_scc1 L_norow
        s_nop 0                      ; HZ_SKIP_BEGIN
        """)
        self.poll("m", SRD_WS, f"v_lshlrev_b32 v9, 7, v1\nv_add_u32 v9, {CNT_M*128}, v9", 27, nl=4)
        g(f"""
        v_mul_u32_u24 v10, 3277, v1
        v_lshrrev_b32 v10, 16, v10
        v_mul_u32_u24 v11, 20, v10
        v_sub_u32 v11, v1, v11
        v_mul_u32_u24 v12, 2560, v10
        v_lshl_add_u32 v12, v11, 4, v12
        s_mul_i32 s{S_T0}, s{S_CB}, 320
        s_add_u32 s{S_T0}, s{S_T0}, {WS_Y}
        v_mov_b32 v40, 0
        v_mov_b32 v41, 0
        v_mov_b32 v42, 0
        v_mov_b32 v43, 0
        s_mov_b32 exec_hi, 0x0fffffff
        """)
        yregs = list(range(44, 80, 4)) + list(range(92, 128, 4))
        for half in range(2):
            for j in range(18):
                g(f"buffer_load_dwordx4 {v(yregs[j],4)}, v12, {srd(SRD_WS)}, s{S_T0} offen sc1\ns_add_u32 s{S_T0}, s{S_T0}, {3*2560}")
            g("s_waitcnt vmcnt(0)")
            for j in range(18):
                g(f"v_pk_add_f32 v[40:41], v[40:41], {v(yregs[j],2)}\nv_pk_add_f32 v[42:43], v[42:43], {v(yregs[j]+2,2)}")
        g(f"""
        v_mul_u32_u24 v12, 320, v10
        v_lshl_add_u32 v12, v11, 4, v12
        v_add_u32 v12, {L_YR}, v12
        ds_write_b128 v12, v[40:43]
        s_mov_b64 exec, -1
        v_mov_b32 v44, s{S_RSEL}
        """)
        g.rnd_bf16(44, 44)
        g(f"""
        v_mul_f32 v44, 0xbfb8aa3b, v44
        v_exp_f32 v44, v44
        v_add_f32 v44, 1.0, v44
        v_rcp_f32 v44, v44
        """)
        g.rnd_bf16(44, 44)
        g("s_waitcnt lgkmcnt(0)")
        for n in range(3):
            rs, xr = RS + 8*n, XR + 4*n
            g(f"v_add_u32 v12, {L_YR}, v{143+n}")
            for pg in range(3):
                g(f"ds_read_b128 {v(48+8*pg,4)}, v12 offset:{320*pg}\nds_read_b128 {v(52+8*pg,4)}, v12 offset:{320*pg+16}")
            g("s_waitcnt lgkmcnt(0)")
            g(f"v_cmp_eq_u32 vcc, s{S_T4}, v{140+n}")
            for e in range(8):
                unp = f"v_lshlrev_b32 v45, 16, v{xr + e//2}" if e % 2 == 0 else f"v_and_b32 v45, 0xffff0000, v{xr + e//2}"
                g(f"v_add_f32 v{48+e}, v{48+e}, v{56+e}\nv_add_f32 v{48+e}, v{48+e}, v{64+e}")
                g.rnd_bf16(48+e, 48+e)
                g(f"v_mul_f32 v{48+e}, v{48+e}, v44")
                g.rnd_bf16(48+e, 48+e)
                g(f"{unp}\nv_sub_f32 v46, v{rs+e}, v45\nv_add_f32 v{48+e}, v{48+e}, v46")
                g.rnd_bf16(48+e, 48+e)
                g(f"v_add_f32 v{48+e}, v{48+e}, v45\nv_cndmask_b32 v{rs+e}, v{rs+e}, v{48+e}, vcc")
        g("s_nop 0                      ; HZ_SKIP_END\nL_norow:")
        g(f"""
        s_mul_i32 s{S_T0}, s{S_WAVE}, 5376
        s_add_u32 s{S_T0}, s{S_T0}, {L_OST}
        v_and_b32 v9, 15, v1
        v_mul_u32_u24 v9, 336, v9
        v_lshrrev_b32 v10, 4, v1
        v_lshl_add_u32 v9, v10, 4, v9
        v_add_u32 v9, s{S_T0}, v9
        """)
        for ct in range(5): g(f"ds_write_b128 v9, {v(16+4*ct,4)} offset:{64*ct}")
        for n in range(3): g(f"v_add_u32 v{10+n}, s{S_T0}, v{137+n}")
        g("s_waitcnt lgkmcnt(0)")
        for n in range(3):
            g(f"ds_read_b128 {v(40+8*n,4)}, v{10+n}\nds_read_b128 {v(44+8*n,4)}, v{10+n} offset:16")
        for n in range(3):
            rs = RS + 8*n
            g(f"s_waitcnt lgkmcnt({4 - 2*n})")
            for e in range(0, 8, 2):
                g(f"v_pk_add_f32 {v(40+8*n+e,2)}, {v(40+8*n+e,2)}, {v(rs+e,2)}")
            for e in range(4):
                g(f"v_cvt_pk_bf16_f32 v{64+4*n+e}, v{40+8*n+2*e}, v{40+8*n+2*e+1}")
            if n == 2: g("s_mov_b32 exec_hi, 0")
            g(f"buffer_store_dwordx4 {v(64+4*n,4)}, v{134+n}, {srd(SRD_OUT)}, s{S_XO} offen")
        g("s_mov_b64 exec, -1")
        self.stamp("end"); self.stamp("clk1", True)

    def rest(self):
        self.publish_kv()
        self.dbg_span(4, False); self.mark("kvsig")
        self.pass2()
        self.kv_wait()
        self.dbg_span(9, False); self.mark("kvseen")
        self.interleave([(x, "kvp") for x in self.kv_load_groups()], self.capture(self.q_epilogue))
        self.dbg_span(5, False)
        self.kv_reduce_and_o()
        self.dbg_span(6, False); self.mark("osig")
        self.phase_c()
```

```python
import sys, re
from asmlib import Asm, kernel_header
import hazard

NAME = "parallel_sum__linear_kernel_hedgehog__moe_arch_mod__prompt_kernel"

WS_CNT   = 0
WS_KVP   = 0x10000
KVP_SZ   = 6784
WS_O     = 0x200000
WS_STATS = 0x500000
WS_RMAX  = 0x508000
WS_Y     = 0x510000
WS_DBG   = 0x800000
WS_TS    = 0x700000
WS_SIZE  = 268435456

SLOT     = 28672
L_WQ     = 0
L_T      = 57344
L_WO     = 0
L_G      = 102400
L_U      = L_G + 20480 + 128
L_OST    = L_G
L_YR     = L_OST + 4 * 5376
L_MISC   = L_U + 20480
L_WPHI   = L_MISC
L_CS     = L_WPHI + 4 * 1664
L_P0     = L_CS + 1024
L_KVF    = L_P0 + 64
L_XS     = L_KVF + 6144
L_HP     = L_XS + 5120
L_END    = L_HP + 640
LDS_SIZE = 163840
assert L_END <= LDS_SIZE, L_END
assert 5 * SLOT <= L_MISC

S_WAVE = 3
SRD_X, SRD_W, SRD_PHI, SRD_WO, SRD_WR, SRD_G, SRD_U, SRD_D, SRD_OUT, SRD_DBG, SRD_WS = range(4, 48, 4)
S_XCD, S_SLOT, S_RB, S_HP = 48, 49, 50, 51
S_XB, S_WB, S_LX, S_LW = 52, 53, 54, 55
S_WM = 56
S_T0, S_T1, S_T2, S_T3, S_T4, S_T5 = 62, 63, 64, 65, 66, 67
S_MA, S_MB = 68, 70
S_C0, S_CC, S_CX, S_CW = 76, 77, 78, 79
S_WQL, S_WQG, S_P0ROW, S_IDX = 80, 81, 82, 83
S_KVS = 75
S_TS = 86

def srd(n): return f"s[{n}:{n+3}]"
def v(b, n=1): return f"v{b}" if n == 1 else f"v[{b}:{b+n-1}]"
def ac(b, n=1): return f"a{b}" if n == 1 else f"a[{b}:{b+n-1}]"
def s2(b): return f"s[{b}:{b+1}]"


class Gen:
    def __init__(self, stop=None, dumps=(), stamps=False, touch=True, exp=()):
        self.touch = touch
        self.dist = 2 if "d2" in exp else 3
        self.exp = set(exp)
        self.a = Asm()
        self.vm = []
        self.stop = stop
        self.dumps = set(dumps)
        self.stamps = stamps
        self.nstamp = 0
        self.pending = []
        self.dump_off = 0
        self.dump_index = {}

    def __call__(self, t):
        self.a(t)
        if self.stamps and self.pending and not getattr(self, "capturing", False) and not self.in_skip(t):
            last = t.strip().split("\n")[-1].strip()
            if last.startswith("s_waitcnt") and "lgkmcnt(0)" in last: self.flush_stamps()

    def in_skip(self, t):
        for l in t.split("\n"):
            if "HZ_SKIP_BEGIN" in l: self.skipdepth = 1
            if "HZ_SKIP_END" in l: self.skipdepth = 0
        return getattr(self, "skipdepth", 0) > 0

    def vmi(self, tag, n=1):
        self.vm += [tag] * n
    def capture(self, fn):
        old, self.a.lines = self.a.lines, []
        self.capturing = True
        fn()
        self.capturing = False
        out, self.a.lines = self.a.lines, old
        return [l.strip() for l in out if l.strip()]

    def atoms(self, lines):
        out, cur, hold = [], [], None
        for l in lines:
            cur.append(l)
            code = l.split(";")[0].strip()
            if hold is None:
                if re.match(r"s_(mov|brev|and_saveexec)\w* (exec|exec_lo|exec_hi)\b", code) or code.startswith("s_and_saveexec"):
                    if not code.endswith("exec, -1"): hold = "exec"
                elif code.startswith("s_cmp"): hold = "label"
            else:
                if hold == "exec" and code == "s_mov_b64 exec, -1": hold = None
                elif hold == "label" and (code.endswith(":") or code.startswith("s_cselect")): hold = None
            if hold is None and not l.endswith(";+"):
                out.append(cur); cur = []
        if cur: out.append(cur)
        return out

    def interleave(self, groups, filler):
        at = self.atoms(filler)
        total = sum(len(a) for a in at)
        done = 0
        for i, (lines, tag) in enumerate(groups):
            for x in lines: self(x)
            self.vmi(tag)
            target = total * (i + 1) // len(groups)
            while at and done < target:
                a = at.pop(0); done += len(a)
                for x in a: self.emit_resolved(x)
        for a in at:
            for x in a: self.emit_resolved(x)

    def emit_resolved(self, x):
        if x.startswith("@VMWAIT "): self.vmwait(x.split()[1])
        elif x.startswith("@STAMP "): self.stamp(x.split()[1])
        else: self(x)

    def vmwait(self, tag):
        if getattr(self, "capturing", False):
            self(f"@VMWAIT {tag}"); return
        last = max(i for i, t in enumerate(self.vm) if t == tag)
        n = len(self.vm) - 1 - last
        assert n <= 63, (tag, n)
        self(f"s_waitcnt vmcnt({n})")
    def vmwait_all(self):
        self("s_waitcnt vmcnt(0)")

    def stamp(self, name, clk=False):
        if not self.stamps: return
        if "all" not in self.stamps and name not in self.stamps: return
        if getattr(self, "capturing", False):
            self(f"@STAMP {name}"); return
        if "cyc" in self.exp: clk = True
        self.stamp_names = getattr(self, "stamp_names", [])
        if name in self.stamp_names: return
        used = {i for i, _ in self.pending}
        free = [i for i in range(8) if i not in used]
        if not free:
            Asm.__call__(self.a, "s_waitcnt lgkmcnt(0)"); self.flush_stamps()
            free = list(range(8))
        i = free[0]
        lane = len(self.stamp_names); assert lane < 63, name
        self.stamp_names.append(name)
        self.pending.append((i, lane))
        Asm.__call__(self.a, f"{'s_memtime' if clk else 's_memrealtime'} {s2(S_TS + 2*i)} ; stamp {name}")

    def flush_stamps(self):
        for i, lane in self.pending:
            Asm.__call__(self.a, f"v_writelane_b32 v255, s{S_TS + 2*i}, {lane}")
        self.pending = []

    def dump(self, name, regs, tmp=250):
        if name not in self.dumps: return
        g = self
        n = len(regs)
        base = WS_DBG + self.dump_off
        self.dump_index[name] = (self.dump_off, n)
        self.dump_off += 256 * 4 * n * 256
        g("s_waitcnt vmcnt(0) lgkmcnt(0)\ns_nop 15\ns_nop 15")
        g(f"s_lshl_b32 s74, s2, 2\ns_add_u32 s74, s74, s{S_WAVE}\ns_mul_i32 s74, s74, {n*256}\ns_add_u32 s74, s74, {base}")
        g(f"v_lshlrev_b32 v{tmp}, 2, v1")
        for i, r in enumerate(regs):
            if isinstance(r, str) and r.startswith("a"):
                g(f"v_accvgpr_read_b32 v{tmp+1}, {r}\ns_nop 1")
                src = f"v{tmp+1}"
            else:
                src = f"v{r}"
            g(f"buffer_store_dword {src}, v{tmp}, {srd(SRD_WS)}, s74 offen")
            g(f"s_add_u32 s74, s74, 256")
            g("s_waitcnt vmcnt(0)")

    def rnd_bf16(self, dst, src):
        self(f"v_cvt_pk_bf16_f32 v{dst}, v{src}, v{src}\nv_lshlrev_b32 v{dst}, 16, v{dst}")

    def prologue(self):
        g = self
        ptrs = [(SRD_X, 0), (SRD_W, 8), (SRD_WR, 40), (SRD_PHI, 16), (SRD_WS, 88), (SRD_DBG, 80),
                (SRD_WO, 24), (SRD_G, 48), (SRD_U, 56), (SRD_D, 64), (SRD_OUT, 72)]
        sizes = {SRD_X: 2621440, SRD_W: 2457600, SRD_WR: 1280, SRD_PHI: 25600, SRD_WS: WS_SIZE, SRD_DBG: 256,
                 SRD_WO: 819200, SRD_G: 2211840, SRD_U: 2211840, SRD_D: 2211840, SRD_OUT: 2621440}
        self.sizes = sizes
        if "span" in self.exp: g("s_memrealtime s[98:99]")
        self.mark("start")
        g("s_getpc_b64 s[72:73]")
        g("L_pc:")
        for r, off in ptrs[:4]:
            g(f"s_load_dwordx2 {s2(r)}, s[0:1], {off}")
        g(f"""
        s_cmp_ge_u32 s2, 256
        s_cbranch_scc1 L_exit
        v_and_b32 v1, 63, v0
        v_lshrrev_b32 v9, 6, v0
        s_lshr_b32 s{S_SLOT}, s2, 3
        v_readfirstlane_b32 s{S_WAVE}, v9
        s_and_b32 s{S_XCD}, s2, 7
        """)
        g(f"""
        s_lshl_b32 s{S_T0}, s{S_SLOT}, 2
        s_add_u32 s{S_T0}, s{S_T0}, s{S_WAVE}
        s_lshl_b32 s{S_T0}, s{S_T0}, 9
        v_lshl_add_u32 v11, v1, 7, s{S_T0}
        v_cmp_gt_u32 vcc, L_code_end - L_pc, v11
        v_cmp_gt_u32 {s2(S_MA)}, 4, v1
        s_and_b64 vcc, vcc, {s2(S_MA)}
        s_and_saveexec_b64 {s2(S_MA)}, vcc
        s_cbranch_execz L_nopf
        global_load_dword v159, v11, s[72:73]       ; HZ_SKIP_BEGIN HZ_SKIP_END
L_nopf:
        s_mov_b64 exec, -1
        """)
        for r, off in ptrs[4:]:
            g(f"s_load_dwordx2 {s2(r)}, s[0:1], {off}")
        g(f"""
        s_and_b32 s{S_T0}, s{S_XCD}, 1
        s_lshl_b32 s{S_T0}, s{S_T0}, 3
        s_and_b32 s{S_T1}, s{S_SLOT}, 7
        s_add_u32 s{S_RB}, s{S_T0}, s{S_T1}
        s_lshr_b32 s{S_T0}, s{S_XCD}, 1
        s_lshl_b32 s{S_T0}, s{S_T0}, 2
        s_lshr_b32 s{S_T2}, s{S_SLOT}, 3
        s_add_u32 s{S_HP}, s{S_T0}, s{S_T2}
        s_lshl_b32 s{S_T2}, s{S_T2}, 1
        s_add_u32 s{S_T1}, s{S_T1}, s{S_T2}
        s_and_b32 s{S_T1}, s{S_T1}, 7
        s_mul_i32 s{S_T1}, s{S_T1}, 10
        s_lshr_b32 s{S_C0}, s{S_T1}, 3
        v_lshrrev_b32 v9, 3, v1
        v_mul_u32_u24 v9, 1280, v9
        v_and_b32 v11, 7, v1
        v_lshrrev_b32 v15, 4, v1
        v_xor_b32 v11, v11, v15
        v_lshl_add_u32 v4, v11, 4, v9
        v_xor_b32 v11, 4, v11
        v_lshl_add_u32 v5, v11, 4, v9
        v_add_u32 v5, {10240 - 1024}, v5
        v_add_u32 v157, {20480 - 2048}, v4
        v_add_u32 v158, {20480 - 2048}, v5
        s_lshl_b32 s{S_T0}, s{S_RB}, 7
        s_lshl_b32 s{S_T1}, s{S_WAVE}, 5
        s_add_u32 s{S_T1}, s{S_T1}, s{S_T0}
        s_mul_i32 s{S_XB}, s{S_T1}, 1280
        s_mul_i32 s{S_WB}, s{S_WAVE}, {16*3840}
        s_mul_i32 s{S_T1}, s{S_HP}, 80
        s_add_u32 s{S_WB}, s{S_WB}, s{S_T1}
        s_lshl_b32 s{S_LX}, s{S_WAVE}, 12
        s_mul_i32 s{S_LW}, s{S_WAVE}, 3072
        s_add_u32 s{S_LW}, s{S_LW}, 16384
        s_add_u32 s{S_CC}, s{S_XB}, 1280
        s_lshl_b32 s{S_CX}, s{S_C0}, 7
        s_add_u32 s{S_CX}, s{S_CX}, s{S_XB}
        s_mul_i32 s{S_CW}, s{S_C0}, {64*3840}
        s_add_u32 s{S_CW}, s{S_CW}, s{S_WB}
        """)
        for r in (SRD_X, SRD_W):
            g(f"s_mov_b32 s{r+2}, {sizes[r]}\ns_mov_b32 s{r+3}, 0x20000")
        for n in range(3):
            g(f"""
            v_add_u32 v9, {64*n}, v1
            v_mul_u32_u24 v11, 43691, v9
            v_lshrrev_b32 v11, 19, v11
            v_mul_u32_u24 v12, 12, v11
            v_sub_u32 v12, v9, v12
            v_cmp_gt_u32 {s2(S_WM+2*n)}, 10, v12
            v_cmp_gt_u32 vcc, 5, v12
            v_mul_u32_u24 v11, 3840, v11
            v_lshl_add_u32 v11, v12, 4, v11
            v_mov_b32 v13, 2480
            v_add_u32 v14, 1280, v11
            v_add_u32 v11, v13, v11
            v_cndmask_b32 v{6+n}, v11, v14, vcc
            """)
            if n: g(f"v_subrev_u32 v{6+n}, {1024*n}, v{6+n}")
        g("s_waitcnt lgkmcnt(0)")
        self.stamp("start"); self.stamp("clk0", True)
        for r in (SRD_WR, SRD_PHI):
            g(f"s_mov_b32 s{r+2}, {sizes[r]}\ns_mov_b32 s{r+3}, 0x20000")
        P = 160
        nt = " nt" if "nt" in self.exp else ""
        self.nt = nt
        g(f"""
        v_mul_u32_u24 v10, 20, v1
        s_lshl_b32 s{S_T0}, s{S_RB}, 7
        s_lshl_b32 s{S_T1}, s{S_HP}, 3
        s_add_u32 s{S_T0}, s{S_T0}, s{S_T1}
        s_lshl_b32 s{S_T1}, s{S_WAVE}, 1
        s_add_u32 s{S_P0ROW}, s{S_T0}, s{S_T1}
        s_mul_i32 s{S_T4}, s{S_P0ROW}, 1280
        buffer_load_dwordx4 {v(P,4)}, v10, {srd(SRD_X)}, s{S_T4} offen
        buffer_load_dword v{P+4}, v10, {srd(SRD_X)}, s{S_T4} offen offset:16
        buffer_load_dwordx4 {v(P+6,4)}, v10, {srd(SRD_X)}, s{S_T4} offen offset:1280
        buffer_load_dword v{P+10}, v10, {srd(SRD_X)}, s{S_T4} offen offset:1296
        buffer_load_dwordx4 {v(P+12,4)}, v10, {srd(SRD_WR)}, 0 offen
        buffer_load_dword v{P+16}, v10, {srd(SRD_WR)}, 0 offen offset:16
        v_lshlrev_b32 v11, 4, v1
        s_mul_i32 s{S_T0}, s{S_HP}, 1600
        s_mul_i32 s{S_T1}, s{S_WAVE}, 1664
        s_add_u32 m0, s{S_T1}, {L_WPHI}
        s_add_u32 s{S_T4}, s{S_T1}, {L_WPHI + 1024}
        buffer_load_dwordx4 v11, {srd(SRD_PHI)}, s{S_T0} offen lds
        s_mov_b32 m0, s{S_T4}
        s_mov_b32 exec_lo, -1
        s_mov_b32 exec_hi, 15
        s_add_u32 s{S_T0}, s{S_T0}, 1024
        buffer_load_dwordx4 v11, {srd(SRD_PHI)}, s{S_T0} offen lds
        s_mov_b64 exec, -1
        """)
        g.vmi("p0", 6); g.vmi("phi", 2)
        tagged = lambda i: [(x, f"c{i}") for x in self.p1_refill(i)]
        for lines, tag in tagged(0):
            for x in lines: g(x)
            g.vmi(tag)
        self.stamp("c0iss")
        s1, s2_ = self.capture(self.setup1), self.capture(self.setup2)
        p0, pf = self.capture(self.phase0), self.capture(self.phi_frags)
        cut = 260
        rest2 = s2_
        for x in s1: self.emit_resolved(x)
        at = self.atoms(s2_); n = 0; head = [];
        while at and n < cut - len(s1):
            a_ = at.pop(0); n += len(a_); head += a_
        for x in head: self.emit_resolved(x)
        tail = [x for a_ in at for x in a_]
        if self.dist == 3:
            self.interleave(tagged(1), tail + p0)
            self.interleave(tagged(2), pf)
        else:
            self.interleave(tagged(1), tail + p0 + pf)
        self.stamp("filled")

    def setup1(self):
        g = self
        sizes = self.sizes
        for r in (SRD_WS, SRD_DBG):
            g(f"s_mov_b32 s{r+2}, {sizes[r]}\ns_mov_b32 s{r+3}, 0x20000")
        g(f"""
        s_lshl_b32 s{S_T0}, s{S_WAVE}, 8
        s_add_u32 s{S_T0}, s{S_T0}, s2
        s_cmp_lg_u32 s{S_T0}, 256
        s_cbranch_scc1 L_noinit
        v_lshlrev_b32 v11, 7, v1       ; HZ_SKIP_BEGIN
        v_mov_b32 v12, 0
        buffer_store_dword v12, v11, {srd(SRD_WS)}, 0 offen sc1   ; HZ_SKIP_END
L_noinit:
        """)
        for r in (SRD_WO, SRD_G, SRD_U, SRD_D, SRD_OUT):
            g(f"s_mov_b32 s{r+2}, {sizes[r]}\ns_mov_b32 s{r+3}, 0x20000")
        g(f"""
        v_and_b32 v2, 31, v1
        v_lshrrev_b32 v3, 5, v1
        v_mov_b32 v12, 0x3f80
        v_mov_b32 v13, 0
        v_mov_b32 v14, 0x3f80
        v_mov_b32 v15, 0
        v_lshrrev_b32 v9, 6, v0
        v_mul_u32_u24 v9, {SLOT}, v9
        v_mul_u32_u24 v11, 192, v1
        v_add_u32 v9, v9, v11
        ds_write_b128 v9, v[12:15] offset:{16384 + 160}
        v_add_u32 v11, {4*SLOT}, v11
        ds_write_b128 v11, v[12:15] offset:{16384 + 160}
        v_mov_b32 v16, 0
        v_mov_b32 v17, 0
        v_mov_b32 v18, 0
        v_mov_b32 v19, 0
        v_lshlrev_b32 v20, 4, v0
        v_add_u32 v20, {L_KVF}, v20
        ds_write_b128 v20, v[16:19]
        v_lshlrev_b32 v21, 3, v0
        v_add_u32 v21, {L_KVF + 4096}, v21
        ds_write_b64 v21, v[16:17]
        v_mov_b32 v84, 0x3f803f80
        v_mov_b32 v85, 0x3f803f80
        """)
        g(f"""
        v_lshrrev_b32 v9, 1, v2
        v_and_b32 v9, 7, v9
        v_xor_b32 v9, v9, v3
        v_lshlrev_b32 v9, 4, v9
        v_lshl_add_u32 v9, v2, 7, v9
        v_add_u32 v128, s{S_LX}, v9
        v_xor_b32 v129, 32, v128
        v_xor_b32 v130, 64, v128
        v_xor_b32 v131, 96, v128
        v_add_u32 v132, {3*SLOT}, v128
        v_add_u32 v133, {3*SLOT}, v129
        v_add_u32 v134, {3*SLOT}, v130
        v_add_u32 v135, {3*SLOT}, v131
        v_bfe_u32 v9, v1, 2, 2
        v_lshl_add_u32 v9, v3, 3, v9
        v_mul_u32_u24 v9, 192, v9
        v_bfe_u32 v11, v1, 4, 1
        v_and_b32 v12, 3, v1
        v_lshl_add_u32 v11, v11, 2, v12
        v_lshl_add_u32 v9, v11, 3, v9
        v_add_u32 v136, 16384, v9
        v_add_u32 v137, {16384 + 2*SLOT}, v9
        v_add_u32 v138, {16384 + 4*SLOT}, v9
        s_lshl_b32 s{S_T0}, s{S_WAVE}, 6
        v_add_u32 v72, s{S_T0}, v136
        v_add_u32 v73, s{S_T0}, v137
        v_add_u32 v74, s{S_T0}, v138
        """)

    def setup2(self):
        g = self
        self.moe_roles()
        self.kv_addresses()
        self.c_addresses()
        self.o_addresses()
        self.wq_setup()
        g(f"""
        s_lshl_b32 s{S_T0}, s{S_WAVE}, 5
        v_add_u32 v9, s{S_T0}, v2
        v_mul_u32_u24 v9, 336, v9
        v_add_u32 v9, {L_T}, v9
        v_lshl_add_u32 v9, v3, 3, v9
        v_accvgpr_write_b32 a192, v9
        s_lshr_b32 s{S_T0}, s{S_WAVE}, 1
        s_and_b32 s{S_T4}, s{S_WAVE}, 1
        v_bfe_u32 v9, v1, 2, 2
        v_lshlrev_b32 v9, 1, v9
        v_add_u32 v9, v9, v3
        v_lshlrev_b32 v9, 1, v9
        v_mul_u32_u24 v9, 336, v9
        v_add_u32 v9, {L_T}, v9
        v_bfe_u32 v11, v1, 4, 1
        v_and_b32 v12, 3, v1
        v_lshl_add_u32 v11, v11, 2, v12
        s_mul_i32 s{S_T2}, s{S_T0}, 12
        s_lshl_b32 s{S_T3}, s{S_T4}, 3
        s_add_u32 s{S_T2}, s{S_T2}, s{S_T3}
        v_add_u32 v12, s{S_T2}, v11
        v_lshl_add_u32 v13, v12, 3, v9
        v_accvgpr_write_b32 a193, v13
        s_mul_i32 s{S_T2}, s{S_T0}, 5
        s_add_u32 s{S_T2}, s{S_T2}, 24
        v_add_u32 v12, s{S_T2}, v11
        s_mul_i32 s{S_T3}, s{S_T0}, -3
        s_add_i32 s{S_T3}, s{S_T3}, 37
        v_mov_b32 v13, s{S_T3}
        v_cmp_eq_u32 vcc, 5, v11
        v_cndmask_b32 v12, v12, v13, vcc
        s_add_i32 s{S_T3}, s{S_T3}, -13
        v_add_u32 v13, s{S_T3}, v11
        v_cmp_lt_u32 vcc, 5, v11
        v_cndmask_b32 v12, v12, v13, vcc
        v_lshl_add_u32 v13, v12, 3, v9
        v_accvgpr_write_b32 a194, v13
        v_mul_u32_u24 v9, 336, v3
        v_lshl_add_u32 v9, v2, 4, v9
        v_accvgpr_write_b32 a195, v9
        s_lshl_b32 s{S_T2}, s{S_HP}, 4
        s_add_u32 s{S_T2}, s{S_T2}, s{S_RB}
        s_mul_i32 s{S_T2}, s{S_T2}, {KVP_SZ}
        s_add_u32 s{S_T2}, s{S_T2}, {WS_KVP}
        s_mul_i32 s{S_T3}, s{S_T0}, 3360
        s_add_u32 s{S_KVS}, s{S_T2}, s{S_T3}
        """)

    def phase0(self):
        g = self
        P = 160
        self.stamp("pre_p0")
        g.vmwait("phi")
        self.stamp("p0data")
        X0, X1, W = P, P + 6, P + 12
        A = 180
        for i in range(7): g(f"v_mov_b32 v{A+i}, 0")
        for d in range(5):
            g(f"""
            v_dot2c_f32_bf16 v{A+0}, v{X0+d}, v84
            v_dot2c_f32_bf16 v{A+1}, v{X0+d}, v{X0+d}
            v_dot2c_f32_bf16 v{A+2}, v{X0+d}, v{W+d}
            v_dot2c_f32_bf16 v{A+3}, v{X1+d}, v84
            v_dot2c_f32_bf16 v{A+4}, v{X1+d}, v{X1+d}
            v_dot2c_f32_bf16 v{A+5}, v{X1+d}, v{W+d}
            v_dot2c_f32_bf16 v{A+6}, v{W+d}, v84
            """)
        g("s_nop 2")
        for ctl in ("row_shr:1 row_mask:0xf bank_mask:0xf bound_ctrl:0", "row_shr:2 row_mask:0xf bank_mask:0xf bound_ctrl:0",
                    "row_shr:4 row_mask:0xf bank_mask:0xf bound_ctrl:0", "row_shr:8 row_mask:0xf bank_mask:0xf bound_ctrl:0",
                    "row_bcast:15 row_mask:0xa bank_mask:0xf", "row_bcast:31 row_mask:0xc bank_mask:0xf"):
            for i in range(7):
                g(f"v_add_f32_dpp v{A+i}, v{A+i}, v{A+i} {ctl}")
        T = 190
        g(f"v_mov_b32 v{T+8}, 0x3acccccd")
        for r in range(2):
            sx, sq, sw = A + 3*r, A + 3*r + 1, A + 3*r + 2
            m, t1, t2 = T + 3*r, T + 3*r + 1, T + 3*r + 2
            g(f"""
            v_mul_f32 v{m}, v{sx}, v{T+8}
            v_mul_f32 v{t1}, v{sq}, v{T+8}
            v_fma_f32 v{t1}, -v{m}, v{m}, v{t1}
            v_max_f32 v{t1}, 0, v{t1}
            """)
            g.rnd_bf16(t1, t1)
            g(f"v_add_f32 v{t1}, 0x3727c5ac, v{t1}")
            g.rnd_bf16(t1, t1)
            g(f"v_sqrt_f32 v{t1}, v{t1}")
            g.rnd_bf16(t1, t1)
            g.rnd_bf16(m, m)
            g(f"""
            v_rcp_f32 v{t1}, v{t1}
            v_fma_f32 v{t2}, -v{m}, v{A+6}, v{sw}
            v_mul_f32 v{t2}, v{t2}, v{t1}
            """)
        g(f"""
        v_mov_b32 v{T+7}, s{S_P0ROW}
        v_add_u32 v{T+9}, 1, v{T+7}
        v_cmp_gt_f32 vcc, v{T+5}, v{T+2}
        v_cndmask_b32 v{T+6}, v{T+2}, v{T+5}, vcc
        v_cndmask_b32 v{T+7}, v{T+7}, v{T+9}, vcc
        s_lshl_b32 s{S_T0}, s{S_WAVE}, 3
        s_add_u32 s{S_T0}, s{S_T0}, {L_P0}
        v_mov_b32 v9, s{S_T0}
        s_mov_b32 exec_lo, 0
        s_brev_b32 exec_hi, 1
        ds_write_b64 v9, {v(T+6,2)}
        s_mov_b64 exec, -1
        """)

    def phi_frags(self):
        g = self
        g(f"""
        v_lshrrev_b32 v9, 3, v2
        v_and_b32 v11, 3, v2
        v_lshl_add_u32 v9, v9, 2, v11
        v_min_u32 v9, 9, v9
        v_bfe_u32 v11, v2, 2, 1
        v_mad_u32_u24 v9, v11, 10, v9
        v_lshlrev_b32 v9, 1, v9
        s_mul_i32 s{S_T0}, s{S_WAVE}, 1664
        s_add_u32 s{S_T0}, s{S_T0}, {L_WPHI}
        v_add_u32 v9, s{S_T0}, v9
        v_mul_u32_u24 v11, 160, v3
        v_add_u32 v11, v11, v9
        """)
        def rd(reg, base, ds):
            for i, d in enumerate(ds):
                g(f"ds_read_u16 v{T0 + i}, v{base} offset:{d}")
            g("s_waitcnt lgkmcnt(0)")
            for i in range(0, len(ds), 2):
                g(f"v_lshl_or_b32 v{reg + i//2}, v{T0+i+1}, 16, v{T0+i}")
        T0 = 200
        rd(140, 11, [40*i for i in range(4)] + [40*(8+i) for i in range(4)] + [40*(16+i) for i in range(4)])
        rd(146, 9, [800 + 40*i for i in range(4)])
        rd(148, 11, [800 + 40*(4+i) for i in range(4)] + [800 + 40*(12+i) for i in range(4)])
        g(f"""
        s_mov_b32 s{S_MA}, 0
        s_mov_b32 s{S_MA+1}, -1
        s_waitcnt lgkmcnt(0)
        v_cndmask_b32 v144, v144, 0, {s2(S_MA)}
        v_cndmask_b32 v145, v145, 0, {s2(S_MA)}
        v_cndmask_b32 v146, 0, v146, {s2(S_MA)}
        v_cndmask_b32 v147, 0, v147, {s2(S_MA)}
        """)

    def p1_reads(self, n):
        c, ks = divmod(n, 4); s = c % 5; b = n % 3
        base = 128 + ks if s < 3 else 132 + ks
        imm = s * SLOT if s < 3 else (s - 3) * SLOT
        out = [f"ds_read_b128 {ac(4*n,4)}, v{base} offset:{imm}"]
        wb = 136 + s // 2
        imm0 = (s % 2) * SLOT + 16 * ks * 192
        for t in range(3):
            for rd in range(2):
                out.append(f"ds_read_b64_tr_b16 {v(92 + 12*b + 4*t + 2*rd, 2)}, v{wb} offset:{imm0 + 4*rd*192 + 64*t}")
        for rd in range(2):
            out.append(f"ds_read_b64_tr_b16 {v(160 + 4*b + 2*rd, 2)}, v{72 + s // 2} offset:{imm0 + 4*rd*192}")
        return out

    def p1_refill(self, i):
        s = i % 5
        nt = self.nt
        grp = []
        grp.append([f"s_add_u32 m0, s{S_LX}, {s*SLOT}", "s_nop 0" if False else f"s_add_u32 s{S_T1}, s{S_LW}, {s*SLOT}",
                    f"buffer_load_dwordx4 v4, {srd(SRD_X)}, s{S_CX} offen{nt} lds"])
        grp.append([f"buffer_load_dwordx4 v5, {srd(SRD_X)}, s{S_CX} offen offset:1024{nt} lds"])
        grp.append([f"buffer_load_dwordx4 v157, {srd(SRD_X)}, s{S_CX} offen offset:2048{nt} lds"])
        grp.append([f"buffer_load_dwordx4 v158, {srd(SRD_X)}, s{S_CX} offen offset:3072{nt} lds",
                    f"s_add_u32 s{S_CX}, s{S_CX}, 128"])
        grp.append([f"s_mov_b32 m0, s{S_T1}", f"s_mov_b64 exec, {s2(S_WM)}",
                    f"buffer_load_dwordx4 v6, {srd(SRD_W)}, s{S_CW} offen{nt} lds", "s_mov_b64 exec, -1"])
        grp.append([f"s_mov_b64 exec, {s2(S_WM+2)}",
                    f"buffer_load_dwordx4 v7, {srd(SRD_W)}, s{S_CW} offen offset:1024{nt} lds", "s_mov_b64 exec, -1"])
        grp.append([f"s_mov_b64 exec, {s2(S_WM+4)}",
                    f"buffer_load_dwordx4 v8, {srd(SRD_W)}, s{S_CW} offen offset:2048{nt} lds", "s_mov_b64 exec, -1",
                    f"s_add_u32 s{S_CW}, s{S_CW}, {64*3840}", f"s_cmp_eq_u32 s{S_CX}, s{S_CC}",
                    f"s_cselect_b32 s{S_CX}, s{S_XB}, s{S_CX}", f"s_cselect_b32 s{S_CW}, s{S_WB}, s{S_CW}"])
        return grp

    def wq_groups(self):
        grp = []
        for m in range(13):
            q, pt = divmod(m, 5)
            gl = [f"s_add_u32 m0, s{S_WQL}, {m*1024}", f"s_add_u32 s{S_T2}, s{S_WQG}, {q*64*3840}"]
            if m == 12:
                gl += ["s_mov_b32 exec_hi, 0", f"buffer_load_dwordx4 v{152+pt}, {srd(SRD_W)}, s{S_T2} offen lds", "s_mov_b64 exec, -1"]
            else:
                gl += [f"buffer_load_dwordx4 v{152+pt}, {srd(SRD_W)}, s{S_T2} offen lds"]
            grp.append(gl)
        return grp

    def wq_setup(self):
        g = self
        for pt in range(5):
            g(f"""
            v_add_u32 v9, {64*pt}, v1
            v_mul_u32_u24 v11, 52429, v9
            v_lshrrev_b32 v11, 18, v11
            v_mul_u32_u24 v12, 5, v11
            v_sub_u32 v12, v9, v12
            v_and_b32 v13, 3, v11
            v_bfe_u32 v14, v11, 2, 2
            v_and_b32 v11, 0xfffffff0, v11
            v_lshl_add_u32 v11, v13, 2, v11
            v_add_u32 v11, v11, v14
            v_mul_u32_u24 v11, 3840, v11
            v_lshl_add_u32 v{152+pt}, v12, 4, v11
            """)
        g(f"""
        s_mul_i32 s{S_WQL}, s{S_WAVE}, 12800
        s_add_u32 s{S_WQL}, s{S_WQL}, {L_WQ}
        s_mul_i32 s{S_WQG}, s{S_WAVE}, {160*3840}
        s_mul_i32 s{S_T0}, s{S_HP}, 80
        s_add_u32 s{S_WQG}, s{S_WQG}, s{S_T0}
        """)

    def pass1(self):
        g = self
        self.dbg_span(2, True); self.dbg_span(7, False); self.mark("filled")
        g.vmwait("c0")
        g("s_waitcnt lgkmcnt(0)\ns_barrier")
        self.stamp("c0")
        for x in self.p1_reads(0): g(x)
        g("s_waitcnt lgkmcnt(6)")
        for x in self.p1_reads(1): g(x)
        g(f"""
        s_cmp_lg_u32 s{S_WAVE}, 0
        s_cbranch_scc1 L_nopub
        v_mov_b32 v9, {L_P0}           ; HZ_SKIP_BEGIN
        ds_read_b128 v[172:175], v9
        ds_read_b128 v[176:179], v9 offset:16
        s_lshl_b32 s{S_T0}, s2, 3
        s_add_u32 s{S_T0}, s{S_T0}, {WS_RMAX}
        v_mov_b32 v11, s{S_T0}
        s_waitcnt lgkmcnt(0)
        v_cmp_gt_f32 vcc, v174, v172
        v_cndmask_b32 v172, v172, v174, vcc
        v_cndmask_b32 v173, v173, v175, vcc
        v_cmp_gt_f32 vcc, v176, v172
        v_cndmask_b32 v172, v172, v176, vcc
        v_cndmask_b32 v173, v173, v177, vcc
        v_cmp_gt_f32 vcc, v178, v172
        v_cndmask_b32 v172, v172, v178, vcc
        v_cndmask_b32 v173, v173, v179, vcc
        s_mov_b64 exec, 1
        buffer_store_dwordx2 v[172:173], v11, {srd(SRD_WS)}, 0 offen sc1
        s_mov_b64 exec, -1             ; HZ_SKIP_END
L_nopub:
        """)
        pend = []
        for n in range(40):
            c, ks = divmod(n, 4); b = n % 3
            if ks == 0:
                if c + self.dist <= 9:
                    pend += self.p1_refill(c + self.dist); self.vmq = getattr(self, "vmq", []) + [f"c{c+self.dist}"] * 7
                if c == 3:
                    pend.append(self.touch_wq()); self.vmq.append("tq")
                if c == 7:
                    pend += self.touch_moe(); self.vmq += ["tm"] * 3
                if c == 6:
                    pend.append([f"v_mov_b32 v75, 240", f"buffer_load_dword v75, v75, {srd(SRD_DBG)}, 0 offen sc1"]); self.vmq.append("rdy")
            if ks == 2 and c < 9:
                g(f"s_waitcnt lgkmcnt(6)")
                g.vmwait(f"c{c+1}")
                g("s_barrier")
                self.stamp(f"B{c}")
                if c == 0:
                    g(f"""
                    s_cmp_lg_u32 s2, 0
                    s_cbranch_scc1 L_noready
                    s_cmp_lg_u32 s{S_WAVE}, 1
                    s_cbranch_scc1 L_noready
                    v_mov_b32 v11, 240             ; HZ_SKIP_BEGIN
                    v_mov_b32 v12, 1
                    s_mov_b64 exec, 1
                    buffer_store_dword v12, v11, {srd(SRD_DBG)}, 0 offen sc1
                    s_mov_b64 exec, -1             ; HZ_SKIP_END
L_noready:
                    """)
                if c == self.dist - 1:
                    g(f"""
                    s_cmp_lg_u32 s{S_WAVE}, 0
                    s_cbranch_scc1 L_noatom
                    s_and_b32 s{S_T0}, s2, 3       ; HZ_SKIP_BEGIN
                    s_lshl_b32 s{S_T0}, s{S_T0}, 6
                    v_mov_b32 v11, s{S_T0}
                    v_mov_b32 v12, 1
                    s_mov_b64 exec, 1
                    buffer_atomic_add v12, v11, {srd(SRD_DBG)}, 0 offen sc1
                    s_mov_b64 exec, -1             ; HZ_SKIP_END
L_noatom:
                    """)
            elif n == 39: g("s_waitcnt lgkmcnt(0)")
            else: g("s_waitcnt lgkmcnt(6)")
            rd = self.p1_reads(n + 2) if n + 2 < 40 else []
            if "nords" in self.exp: rd = []
            XP = ac(4*n, 4)
            WF = lambda t: 92 + 12*b + 4*t
            first = (n == 0)
            def dma():
                if pend:
                    grp = pend.pop(0); tag = self.vmq.pop(0)
                    if "nodma" not in self.exp:
                        for x in grp: g(x)
                    if tag: g.vmi(tag)
            cin = lambda r, k: "0" if first else v(r, k)
            g(f"v_mfma_f32_32x32x16_bf16 v[16:31], {v(WF(0),4)}, {XP}, {cin(16,16)}")
            for x in rd[0:3]: g(x)
            dma()
            g(f"v_mfma_f32_32x32x16_bf16 v[32:47], {v(WF(1),4)}, {XP}, {cin(32,16)}")
            for x in rd[3:6]: g(x)
            g(f"v_mfma_f32_32x32x16_bf16 v[48:63], {v(WF(2),4)}, {XP}, {cin(48,16)}")
            for x in rd[6:9]: g(x)
            dma()
            if "nosq" not in self.exp:
                g(f"v_mfma_f32_4x4x4_16b_bf16 v[64:67], {ac(4*n,2)}, {ac(4*n,2)}, {cin(64,4)}")
                g(f"v_mfma_f32_4x4x4_16b_bf16 v[68:71], {ac(4*n+2,2)}, {ac(4*n+2,2)}, {cin(68,4)}")
            if "nocs" not in self.exp:
                g(f"v_mfma_f32_4x4x4_16b_bf16 v[76:79], {v(160+4*b,2)}, v[84:85], {cin(76,4)}")
                g(f"v_mfma_f32_4x4x4_16b_bf16 v[80:83], {v(160+4*b+2,2)}, v[84:85], {cin(80,4)}")
            if c in (3, 6, 7): dma()
        while pend:
            grp = pend.pop(0); tag = self.vmq.pop(0)
            for x in grp: g(x)
            if tag: g.vmi(tag)
        self.stamp("p1end")

    def touch_moe(self):
        return [
            [f"v_mul_u32_u24 v9, 13108, v1", "v_lshrrev_b32 v9, 16, v9", "v_mul_u32_u24 v10, 5, v9", "v_sub_u32 v10, v1, v10",
             "v_mul_u32_u24 v11, 3456, v9", "v_lshl_add_u32 v11, v10, 7, v11",
             f"s_mul_i32 s{S_T0}, s{S_XCD}, 448", f"s_and_b32 s{S_T0}, s{S_T0}, 0xffffff80",
             f"s_lshl_b32 s{S_T2}, s{S_SLOT}, 2", f"s_add_u32 s{S_T2}, s{S_T2}, s{S_WAVE}", f"s_mul_i32 s{S_T2}, s{S_T2}, {5*3456}",
             f"s_add_u32 s{S_T0}, s{S_T0}, s{S_T2}", "s_mov_b32 exec_lo, 0x1ffffff", "s_mov_b32 exec_hi, 0",
             f"buffer_load_dword v159, v11, {srd(SRD_G)}, s{S_T0} offen", "s_mov_b64 exec, -1"],
            ["s_mov_b32 exec_lo, 0x1ffffff", "s_mov_b32 exec_hi, 0",
             f"buffer_load_dword v159, v11, {srd(SRD_U)}, s{S_T0} offen", "s_mov_b64 exec, -1"],
            ["v_mul_u32_u24 v9, 6554, v1", "v_lshrrev_b32 v9, 16, v9", "v_mul_u32_u24 v10, 10, v9", "v_sub_u32 v10, v1, v10",
             "v_mul_u32_u24 v12, 1280, v9", "v_lshl_add_u32 v12, v10, 7, v12",
             f"s_mul_i32 s{S_T0}, s{S_XCD}, {224*1280}", f"s_mul_i32 s{S_T2}, s{S_SLOT}, 7", f"s_lshl_b32 s{S_T3}, s{S_WAVE}, 1",
             f"s_add_u32 s{S_T2}, s{S_T2}, s{S_T3}", f"s_mul_i32 s{S_T2}, s{S_T2}, 1280", f"s_add_u32 s{S_T0}, s{S_T0}, s{S_T2}",
             "s_mov_b32 exec_lo, 0xfffff", "s_mov_b32 exec_hi, 0",
             f"buffer_load_dword v159, v12, {srd(SRD_D)}, s{S_T0} offen", "s_mov_b64 exec, -1"]]

    def touch_wq(self):
        return ["v_mul_u32_u24 v9, 21846, v1", "v_lshrrev_b32 v9, 16, v9", "v_mul_u32_u24 v10, 3, v9", "v_sub_u32 v10, v1, v10",
                f"s_lshl_b32 s{S_T0}, s{S_SLOT}, 2", f"s_add_u32 s{S_T0}, s{S_T0}, s{S_WAVE}", f"s_mul_i32 s{S_T0}, s{S_T0}, 5",
                f"v_add_u32 v9, s{S_T0}, v9", "v_mul_u32_u24 v9, 3840, v9", "v_lshl_add_u32 v9, v10, 7, v9",
                f"s_lshr_b32 s{S_T0}, s{S_XCD}, 1", f"s_mul_i32 s{S_T0}, s{S_T0}, 320", f"s_and_b32 s{S_T0}, s{S_T0}, 0xffffff80",
                "s_mov_b32 exec_lo, 0x7fff", "s_mov_b32 exec_hi, 0",
                f"buffer_load_dword v159, v9, {srd(SRD_W)}, s{S_T0} offen", "s_mov_b64 exec, -1"]

    def stats_and_colsum(self, first):
        g = self
        csoff = 0 if first else 128 * 4
        for i in range(4): g(f"v_add_f32 v{76+i}, v{76+i}, v{80+i}")
        for i in range(4): g(f"v_mov_b32 v{80+i}, v{76+i}")
        for i in range(4): g(f"v_permlane32_swap_b32 v{76+i}, v{80+i}")
        for i in range(4): g(f"v_add_f32 v{76+i}, v{76+i}, v{80+i}")
        g(f"""
        s_lshl_b32 s{S_T0}, s{S_WAVE}, 7
        s_add_u32 s{S_T0}, s{S_T0}, {L_CS + csoff}
        v_lshl_add_u32 v9, v1, 2, s{S_T0}
        s_mov_b32 exec_lo, 0x11111111
        s_mov_b32 exec_hi, 0
        ds_write_b128 v9, v[76:79]
        s_mov_b64 exec, -1
        """)
        if first:
            for i in range(4): g(f"v_add_f32 v{64+i}, v{64+i}, v{68+i}")
            for i in range(1, 4):
                m = 0x11111111 << i
                g(f"s_mov_b32 s{S_MB}, {hex(m)}\ns_mov_b32 s{S_MB+1}, {hex(m)}\nv_cndmask_b32 v64, v64, v{64+i}, {s2(S_MB)}")
            g(f"""
            v_mov_b32 v65, v64
            v_mov_b32 v90, 0x3acccccd
            s_nop 0
            v_permlane32_swap_b32 v64, v65
            v_add_f32 v64, v64, v65
            v_mul_f32 v66, v56, v90
            v_mul_f32 v64, v64, v90
            v_fma_f32 v64, -v66, v66, v64
            v_max_f32 v64, 0, v64
            """)
            g.rnd_bf16(64, 64)
            g("v_add_f32 v64, 0x3727c5ac, v64")
            g.rnd_bf16(64, 64)
            g("v_sqrt_f32 v64, v64")
            g.rnd_bf16(90, 64)
            g.rnd_bf16(91, 66)
            g("v_rcp_f32 v88, v90\nv_sub_f32 v86, 0, v91")
        g("s_waitcnt lgkmcnt(0)\ns_barrier")
        self.stamp("csbar" if first else "csbar2")

    def normalise(self, quads, csoff):
        g = self
        g(f"v_lshlrev_b32 v9, 4, v3\nv_add_u32 v9, {L_CS + csoff}, v9")
        for i, (r, col) in enumerate(quads):
            g(f"ds_read_b128 {v(160+4*i,4)}, v9 offset:{col*4}")
        for i, (r, col) in enumerate(quads):
            g(f"s_waitcnt lgkmcnt({len(quads)-1-i})")
            for hh in range(2):
                g(f"v_pk_fma_f32 {v(r+2*hh,2)}, {v(160+4*i+2*hh,2)}, v[86:87], {v(r+2*hh,2)} op_sel_hi:[1,0,1]")
            for hh in range(2):
                g(f"v_pk_mul_f32 {v(r+2*hh,2)}, {v(r+2*hh,2)}, v[88:89] op_sel_hi:[1,0]")

    def softmax(self, H0, H1):
        g = self
        P = (92, 108)
        L = 0x3fb8aa3b
        g(f"v_mov_b32 v124, {hex(L)}\nv_mov_b32 v126, {hex(L | 0x80000000)}")
        for H in (H0, H1): g(f"v_mov_b32 v{H+10}, 0\nv_mov_b32 v{H+11}, 0")
        E = (160, 180)
        MX = (200, 204)
        for a in range(2):
            p, mx = P[a], MX[a]
            g(f"""
            v_max3_f32 v{mx}, v{p}, v{p+1}, v{p+2}
            v_min3_f32 v{mx+1}, v{p}, v{p+1}, v{p+2}
            v_max3_f32 v{mx}, v{mx}, v{p+3}, v{p+4}
            v_min3_f32 v{mx+1}, v{mx+1}, v{p+3}, v{p+4}
            v_max3_f32 v{mx}, v{mx}, v{p+5}, v{p+6}
            v_min3_f32 v{mx+1}, v{mx+1}, v{p+5}, v{p+6}
            v_max3_f32 v{mx}, v{mx}, v{p+7}, v{p+8}
            v_min3_f32 v{mx+1}, v{mx+1}, v{p+7}, v{p+8}
            v_max_f32 v{mx}, v{mx}, v{p+9}
            v_min_f32 v{mx+1}, v{mx+1}, v{p+9}
            v_sub_f32 v{mx+1}, 0, v{mx+1}
            """)
        for a in range(2): g(f"v_permlane32_swap_b32 v{MX[a]}, v{MX[a]+1}")
        for a in range(2): g(f"v_max_f32 v{MX[a]}, v{MX[a]}, v{MX[a]+1}")
        for a in range(2): g(f"v_mov_b32 v{MX[a]+1}, v{MX[a]}")
        for a in range(2): g(f"v_permlane32_swap_b32 v{MX[a]}, v{MX[a]+1}")
        for a in range(2):
            mx = MX[a]
            g(f"v_mul_f32 v{mx+2}, v{mx+1}, v126\nv_mul_f32 v{mx}, v{mx}, v126")
        for a in range(2):
            p, mx, e = P[a], MX[a], E[a]
            for i in range(5):
                g(f"v_pk_fma_f32 {v(e+2*i,2)}, {v(p+2*i,2)}, v[124:125], {v(mx,2)} op_sel_hi:[1,0,0]")
                g(f"v_pk_fma_f32 {v(e+10+2*i,2)}, {v(p+2*i,2)}, v[126:127], {v(mx+2,2)} op_sel_hi:[1,0,0]")
        self.stamp("sm_pre" + str(H0) + getattr(self, "smtag", ""))
        for a in range(2):
            for i in range(20): g(f"v_exp_f32 v{E[a]+i}, v{E[a]+i}")
        self.stamp("sm_exp" + getattr(self, "smtag", ""))
        SM = (208, 214)
        for a in range(2):
            e, sm = E[a], SM[a]
            g(f"v_pk_add_f32 {v(sm,2)}, {v(e,2)}, {v(e+2,2)}\nv_pk_add_f32 {v(sm+2,2)}, {v(e+10,2)}, {v(e+12,2)}")
        for i in range(2, 5):
            for a in range(2):
                e, sm = E[a], SM[a]
                g(f"v_pk_add_f32 {v(sm,2)}, {v(sm,2)}, {v(e+2*i,2)}\nv_pk_add_f32 {v(sm+2,2)}, {v(sm+2,2)}, {v(e+10+2*i,2)}")
        for a in range(2):
            sm = SM[a]
            g(f"v_add_f32 v{sm}, v{sm}, v{sm+1}\nv_add_f32 v{sm+1}, v{sm+2}, v{sm+3}")
        for a in range(2): g(f"v_permlane32_swap_b32 v{SM[a]}, v{SM[a]+1}")
        for a in range(2): g(f"v_add_f32 v{SM[a]}, v{SM[a]}, v{SM[a]+1}")
        for a in range(2): g(f"v_mov_b32 v{SM[a]+2}, v{SM[a]}")
        for a in range(2): g(f"v_permlane32_swap_b32 v{SM[a]}, v{SM[a]+2}")
        for a in range(2): g(f"v_rcp_f32 v{SM[a]}, v{SM[a]}\nv_rcp_f32 v{SM[a]+2}, v{SM[a]+2}")
        for a, H in ((0, H0), (1, H1)):
            e, sm = E[a], SM[a]
            for i in range(5):
                g(f"v_pk_mul_f32 {v(e+2*i,2)}, {v(e+2*i,2)}, {v(sm,2)} op_sel_hi:[1,0]")
                g(f"v_pk_mul_f32 {v(e+10+2*i,2)}, {v(e+10+2*i,2)}, {v(sm+2,2)} op_sel_hi:[1,0]")
            for i in range(10):
                g(f"v_cvt_pk_bf16_f32 v{H+i}, v{e+2*i}, v{e+2*i+1}")

    def norm_reads(self, quads, csoff, r0):
        g = self
        for i, (r, col) in enumerate(quads):
            g(f"ds_read_b128 {v(r0+4*i,4)}, v9 offset:{col*4}")

    def norm_apply(self, quads, r0, after):
        g = self
        for i, (r, col) in enumerate(quads):
            g(f"s_waitcnt lgkmcnt({len(quads)-1-i+after})")
            for hh in range(2):
                g(f"v_pk_fma_f32 {v(r+2*hh,2)}, {v(r0+4*i+2*hh,2)}, v[86:87], {v(r+2*hh,2)} op_sel_hi:[1,0,1]")
            for hh in range(2):
                g(f"v_pk_mul_f32 {v(r+2*hh,2)}, {v(r+2*hh,2)}, v[88:89] op_sel_hi:[1,0]")

    def featmap_mfma(self, PK):
        g = self
        g(f"v_mfma_f32_32x32x16_bf16 v[92:107], v[140:143], {v(PK,4)}, 0")
        g(f"v_mfma_f32_32x32x16_bf16 v[108:123], v[146:149], {v(PK+4,4)}, 0")
        g(f"v_mfma_f32_32x32x8_bf16 v[92:107], v[144:145], {v(PK+4,2)}, v[92:107]")
        g(f"v_mfma_f32_32x32x8_bf16 v[108:123], v[150:151], {v(PK+8,2)}, v[108:123]")

    def k_epilogue(self):
        g = self
        self.stats_and_colsum(True)
        PK, PV = 244, 210
        kq = [(16+4*j, 8*j) for j in range(4)] + [(32, 32)]
        vq = [(36, 40), (40, 48), (44, 56), (48, 64), (52, 72)]
        def part1():
            g(f"v_lshlrev_b32 v9, 4, v3\nv_add_u32 v9, {L_CS}, v9")
            self.norm_reads(kq, 0, 160); self.norm_reads(vq, 0, 180)
            self.norm_apply(kq, 160, 5)
            for i in range(10): g(f"v_cvt_pk_bf16_f32 v{PK+i}, v{16+2*i}, v{16+2*i+1}")
            self.stamp("k_cvt")
            self.featmap_mfma(PK)
            self.norm_apply(vq, 180, 0)
            self.stamp("v_norm")
            self.dump("kv_norm", list(range(16, 64)) + [86, 88, 90, 91])
            g(f"""
            v_accvgpr_read_b32 v11, a192
            v_mov_b32 v14, 0x3f80
            v_mov_b32 v15, 0
            v_lshl_add_u32 v12, v3, 4, v11
            v_lshl_add_u32 v13, v3, 3, v11
            ds_write_b64 v12, v[14:15] offset:{34*8}
            """)
            for i, (r, col) in enumerate(vq):
                g(f"v_cvt_pk_bf16_f32 v{PV+2*i}, v{r}, v{r+1}\nv_cvt_pk_bf16_f32 v{PV+2*i+1}, v{r+2}, v{r+3}")
                g(f"ds_write_b64 v11, {v(PV+2*i,2)} offset:{192 + 16*i}")
            self.stamp("prefm")
            self.softmax(220, 232)
            self.stamp("postfm")
        self.interleave([(x, "wq") for x in self.wq_groups()], self.capture(part1))
        self.dump("phik", list(range(220, 244)))
        for a, H in ((0, 220), (1, 232)):
            for st in range(3):
                g(f"ds_write_b128 v13, {v(H+4*st,4)} offset:{a*96 + st*32}")
        g("v_accvgpr_read_b32 v160, a193\nv_accvgpr_read_b32 v161, a194\nv_accvgpr_read_b32 v9, a195")
        g(f"v_cmp_gt_u32 vcc, 21, v2\ns_and_b32 s{S_T1}, s{S_WAVE}, 1\ns_mov_b64 {s2(S_MA)}, vcc")
        g("s_waitcnt lgkmcnt(0)\ns_barrier")
        self.stamp("Tbar")
        A0, B0 = 164, 196
        for ks in range(8):
            for rd in range(2):
                g(f"ds_read_b64_tr_b16 {v(A0+4*ks+2*rd,2)}, v160 offset:{(16*ks+rd)*336}")
                g(f"ds_read_b64_tr_b16 {v(B0+4*ks+2*rd,2)}, v161 offset:{(16*ks+rd)*336}")
            if ks >= 2:
                k = ks - 2
                g("s_waitcnt lgkmcnt(8)")
                cin = "0" if k == 0 else "v[92:107]"
                g(f"v_mfma_f32_32x32x16_bf16 v[92:107], {v(A0+4*k,4)}, {v(B0+4*k,4)}, {cin}")
        g("s_waitcnt lgkmcnt(4)")
        g(f"v_mfma_f32_32x32x16_bf16 v[92:107], {v(A0+24,4)}, {v(B0+24,4)}, v[92:107]")
        g("s_waitcnt lgkmcnt(0)")
        g(f"v_mfma_f32_32x32x16_bf16 v[92:107], {v(A0+28,4)}, {v(B0+28,4)}, v[92:107]")
        g(f"""
        s_cmp_lg_u32 s{S_T1}, 0
        s_cbranch_scc1 L_kvft1
        s_mov_b64 exec, {s2(S_MA)}     ; HZ_SKIP_BEGIN
        buffer_store_dwordx4 v[92:95], v9, {srd(SRD_WS)}, s{S_KVS} offen sc1
        buffer_store_dwordx4 v[96:99], v9, {srd(SRD_WS)}, s{S_KVS} offen offset:672 sc1
        buffer_store_dwordx4 v[100:103], v9, {srd(SRD_WS)}, s{S_KVS} offen offset:1344 sc1
        buffer_store_dwordx4 v[104:107], v9, {srd(SRD_WS)}, s{S_KVS} offen offset:2016 sc1
        s_branch L_kvdone              ; HZ_SKIP_END
L_kvft1:
        s_and_b32 s{S_MA}, s{S_MA}, 0x1fffff      ; HZ_SKIP_BEGIN
        s_mov_b32 s{S_MA+1}, 0
        s_mov_b64 exec, {s2(S_MA)}
        buffer_store_dwordx4 v[92:95], v9, {srd(SRD_WS)}, s{S_KVS} offen offset:2688 sc1
        buffer_store_dwordx4 v[96:99], v9, {srd(SRD_WS)}, s{S_KVS} offen offset:3024 sc1   ; HZ_SKIP_END
L_kvdone:
        s_mov_b64 exec, -1
        """)
        self.stamp("kvstore")

    def mark(self, name):
        for e in self.exp:
            if e.startswith("probe:"):
                _, a, b, k = e.split(":")
                if name == a: self("s_memrealtime s[86:87]")
                if name == b: self("s_memrealtime s[88:89]")

    def probe_spin(self):
        for e in self.exp:
            if e.startswith("probe:"):
                _, a, b, k = e.split(":")
                self(f"""
                s_memrealtime s[90:91]
                s_waitcnt lgkmcnt(0)
                s_sub_u32 s92, s88, s86
                s_mul_i32 s92, s92, {k}
                s_add_u32 s92, s92, s90
L_probe:
                s_memrealtime s[90:91]
                s_waitcnt lgkmcnt(0)
                s_sub_u32 s93, s92, s90
                s_cmp_gt_i32 s93, 0
                s_cbranch_scc1 L_probe
                """)

    def dbg_span(self, word, invert):
        if "span" not in self.exp: return
        g = self
        lab = f"L_span{word}"
        g(f"""
        s_and_b32 s100, s2, 15
        s_cmp_lg_u32 s100, 0
        s_cbranch_scc1 {lab}
        s_cmp_lg_u32 s{S_WAVE}, 0
        s_cbranch_scc1 {lab}
        s_memrealtime s[100:101]
        s_waitcnt lgkmcnt(0)
        {"s_not_b32 s100, s98" if invert else "s_nop 0"}
        v_mov_b32 v9, {word*4}
        v_mov_b32 v10, s100
        s_mov_b64 exec, 1
        buffer_atomic_umax v10, v9, {srd(SRD_DBG)}, 0 offen sc1
        s_mov_b64 exec, -1
{lab}:
        """)

    def finish(self):
        g = self
        self.mark("end")
        self.probe_spin()
        self.dbg_span(3, False)
        if self.stamps:
            g("s_waitcnt lgkmcnt(0)")
            self.flush_stamps()
            g(f"""
            s_lshl_b32 s{S_T0}, s2, 2
            s_add_u32 s{S_T0}, s{S_T0}, s{S_WAVE}
            s_lshl_b32 s{S_T0}, s{S_T0}, 8
            s_add_u32 s{S_T0}, s{S_T0}, {WS_TS}
            v_lshlrev_b32 v9, 2, v1
            buffer_store_dword v255, v9, {srd(SRD_WS)}, s{S_T0} offen
            """)
        g("L_exit:\ns_endpgm\nL_code_end:")

    def pre_k_epilogue(self):
        pass

    def build(self):
        g = self
        self.prologue()
        self.dump("phifrag", list(range(140, 152)))
        self.pass1()
        self.dump("acc1", list(range(16, 84)))
        if self.stop != "pass1":
            self.dbg_span(10, False); self.mark("p1end")
            self.pre_k_epilogue()
            self.k_epilogue()
        if self.stop not in ("pass1", "kv"):
            self.rest()
        self.finish()

    def text(self):
        body, nins = hazard.fix([l.strip() for l in self.a.lines])
        hdr = open("parallel_sum__linear_kernel_hedgehog__moe_arch_mod__prompt.s.ref").read().split("\n")
        top = [l for l in hdr if l.startswith(";") and "@launch" not in l and "Override" not in l and "grid=ceil" not in l]
        out = "\n".join(top) + "\n"
        out += f"; @launch grid=(256,1,1) block=(256,1,1) lds={LDS_SIZE}\n"
        out += '.amdgcn_target "amdgcn-amd-amdhsa--gfx950"\n.text\n' + kernel_header(NAME)
        out += "\n".join("    " + l if not l.endswith(":") else l for l in body if l) + "\n"
        out += f""".section .rodata,"a"
.p2align 6
.amdhsa_kernel {NAME}
  .amdhsa_next_free_vgpr 512
  .amdhsa_next_free_sgpr 102
  .amdhsa_accum_offset 256
  .amdhsa_group_segment_fixed_size 0
  .amdhsa_kernarg_size 96
  .amdhsa_user_sgpr_count 2
  .amdhsa_user_sgpr_kernarg_segment_ptr 1
  .amdhsa_system_sgpr_workgroup_id_x 1
  .amdhsa_float_denorm_mode_32 3
.end_amdhsa_kernel
"""
        return out, nins


if __name__ == "__main__":
    import argparse, json
    import gen_rest
    ap = argparse.ArgumentParser()
    ap.add_argument("-o", default="k.s")
    ap.add_argument("--stop", default=None)
    ap.add_argument("--dump", default="")
    ap.add_argument("--stamps", default="")
    ap.add_argument("--notouch", action="store_true")
    ap.add_argument("--exp", default="")
    args = ap.parse_args()
    G = gen_rest.Full(stop=args.stop, dumps=[d for d in args.dump.split(",") if d], stamps=set(args.stamps.split(",")) if args.stamps else False, touch=not args.notouch, exp=[e for e in args.exp.split(",") if e])
    G.build()
    t, nins = G.text()
    open(args.o, "w").write(t)
    json.dump({"dumps": G.dump_index, "stamps": getattr(G, "stamp_names", [])}, open(args.o + ".json", "w"))
    print("wrote", args.o, "lines", t.count("\n"), "nops inserted", nins)
```

```python
import sys, re
from asmlib import Asm, kernel_header
import hazard

NAME = "parallel_sum__linear_kernel_hedgehog__moe_arch_mod__prompt_kernel"

WS_CNT   = 0
WS_KVP   = 0x10000
KVP_SZ   = 6784
WS_O     = 0x200000
WS_STATS = 0x500000
WS_RMAX  = 0x508000
WS_Y     = 0x510000
WS_DBG   = 0x800000
WS_TS    = 0x700000
WS_SIZE  = 268435456

SLOT     = 28672
L_WQ     = 0
L_T      = 57344
L_WO     = 0
L_G      = 102400
L_U      = L_G + 20480 + 128
L_OST    = L_G
L_YR     = L_OST + 4 * 5376
L_MISC   = L_U + 20480
L_WPHI   = L_MISC
L_CS     = L_WPHI + 4 * 1664
L_P0     = L_CS + 1024
L_KVF    = L_P0 + 64
L_XS     = L_KVF + 6144
L_HP     = L_XS + 5120
L_END    = L_HP + 640
LDS_SIZE = 163840
assert L_END <= LDS_SIZE, L_END
assert 5 * SLOT <= L_MISC

S_WAVE = 3
SRD_X, SRD_W, SRD_PHI, SRD_WO, SRD_WR, SRD_G, SRD_U, SRD_D, SRD_OUT, SRD_DBG, SRD_WS = range(4, 48, 4)
S_XCD, S_SLOT, S_RB, S_HP = 48, 49, 50, 51
S_XB, S_WB, S_LX, S_LW = 52, 53, 54, 55
S_WM = 56
S_T0, S_T1, S_T2, S_T3, S_T4, S_T5 = 62, 63, 64, 65, 66, 67
S_MA, S_MB = 68, 70
S_C0, S_CC, S_CX, S_CW = 76, 77, 78, 79
S_WQL, S_WQG, S_P0ROW, S_IDX = 80, 81, 82, 83
S_KVS = 75
S_TS = 86

def srd(n): return f"s[{n}:{n+3}]"
def v(b, n=1): return f"v{b}" if n == 1 else f"v[{b}:{b+n-1}]"
def ac(b, n=1): return f"a{b}" if n == 1 else f"a[{b}:{b+n-1}]"
def s2(b): return f"s[{b}:{b+1}]"


class Gen:
    def __init__(self, stop=None, dumps=(), stamps=False, touch=True, exp=()):
        self.touch = touch
        self.dist = 2 if "d2" in exp else 3
        self.exp = set(exp)
        self.a = Asm()
        self.vm = []
        self.stop = stop
        self.dumps = set(dumps)
        self.stamps = stamps
        self.nstamp = 0
        self.pending = []
        self.dump_off = 0
        self.dump_index = {}

    def __call__(self, t):
        self.a(t)
        if self.stamps and self.pending and not getattr(self, "capturing", False) and not self.in_skip(t):
            last = t.strip().split("\n")[-1].strip()
            if last.startswith("s_waitcnt") and "lgkmcnt(0)" in last: self.flush_stamps()

    def in_skip(self, t):
        for l in t.split("\n"):
            if "HZ_SKIP_BEGIN" in l: self.skipdepth = 1
            if "HZ_SKIP_END" in l: self.skipdepth = 0
        return getattr(self, "skipdepth", 0) > 0

    def vmi(self, tag, n=1):
        self.vm += [tag] * n
    def capture(self, fn):
        old, self.a.lines = self.a.lines, []
        self.capturing = True
        fn()
        self.capturing = False
        out, self.a.lines = self.a.lines, old
        return [l.strip() for l in out if l.strip()]

    def atoms(self, lines):
        out, cur, hold = [], [], None
        for l in lines:
            cur.append(l)
            code = l.split(";")[0].strip()
            if hold is None:
                if re.match(r"s_(mov|brev|and_saveexec)\w* (exec|exec_lo|exec_hi)\b", code) or code.startswith("s_and_saveexec"):
                    if not code.endswith("exec, -1"): hold = "exec"
                elif code.startswith("s_cmp"): hold = "label"
            else:
                if hold == "exec" and code == "s_mov_b64 exec, -1": hold = None
                elif hold == "label" and (code.endswith(":") or code.startswith("s_cselect")): hold = None
            if hold is None and not l.endswith(";+"):
                out.append(cur); cur = []
        if cur: out.append(cur)
        return out

    def interleave(self, groups, filler):
        at = self.atoms(filler)
        total = sum(len(a) for a in at)
        done = 0
        for i, (lines, tag) in enumerate(groups):
            for x in lines: self(x)
            self.vmi(tag)
            target = total * (i + 1) // len(groups)
            while at and done < target:
                a = at.pop(0); done += len(a)
                for x in a: self.emit_resolved(x)
        for a in at:
            for x in a: self.emit_resolved(x)

    def emit_resolved(self, x):
        if x.startswith("@VMWAIT "): self.vmwait(x.split()[1])
        elif x.startswith("@STAMP "): self.stamp(x.split()[1])
        else: self(x)

    def vmwait(self, tag):
        if getattr(self, "capturing", False):
            self(f"@VMWAIT {tag}"); return
        last = max(i for i, t in enumerate(self.vm) if t == tag)
        n = len(self.vm) - 1 - last
        assert n <= 63, (tag, n)
        self(f"s_waitcnt vmcnt({n})")
    def vmwait_all(self):
        self("s_waitcnt vmcnt(0)")

    def stamp(self, name, clk=False):
        if not self.stamps: return
        if "all" not in self.stamps and name not in self.stamps: return
        if getattr(self, "capturing", False):
            self(f"@STAMP {name}"); return
        if "cyc" in self.exp: clk = True
        self.stamp_names = getattr(self, "stamp_names", [])
        if name in self.stamp_names: return
        used = {i for i, _ in self.pending}
        free = [i for i in range(8) if i not in used]
        if not free:
            Asm.__call__(self.a, "s_waitcnt lgkmcnt(0)"); self.flush_stamps()
            free = list(range(8))
        i = free[0]
        lane = len(self.stamp_names); assert lane < 63, name
        self.stamp_names.append(name)
        self.pending.append((i, lane))
        Asm.__call__(self.a, f"{'s_memtime' if clk else 's_memrealtime'} {s2(S_TS + 2*i)} ; stamp {name}")

    def flush_stamps(self):
        for i, lane in self.pending:
            Asm.__call__(self.a, f"v_writelane_b32 v255, s{S_TS + 2*i}, {lane}")
        self.pending = []

    def dump(self, name, regs, tmp=250):
        if name not in self.dumps: return
        g = self
        n = len(regs)
        base = WS_DBG + self.dump_off
        self.dump_index[name] = (self.dump_off, n)
        self.dump_off += 256 * 4 * n * 256
        g("s_waitcnt vmcnt(0) lgkmcnt(0)\ns_nop 15\ns_nop 15")
        g(f"s_lshl_b32 s74, s2, 2\ns_add_u32 s74, s74, s{S_WAVE}\ns_mul_i32 s74, s74, {n*256}\ns_add_u32 s74, s74, {base}")
        g(f"v_lshlrev_b32 v{tmp}, 2, v1")
        for i, r in enumerate(regs):
            if isinstance(r, str) and r.startswith("a"):
                g(f"v_accvgpr_read_b32 v{tmp+1}, {r}\ns_nop 1")
                src = f"v{tmp+1}"
            else:
                src = f"v{r}"
            g(f"buffer_store_dword {src}, v{tmp}, {srd(SRD_WS)}, s74 offen")
            g(f"s_add_u32 s74, s74, 256")
            g("s_waitcnt vmcnt(0)")

    def rnd_bf16(self, dst, src):
        self(f"v_cvt_pk_bf16_f32 v{dst}, v{src}, v{src}\nv_lshlrev_b32 v{dst}, 16, v{dst}")

    def prologue(self):
        g = self
        ptrs = [(SRD_X, 0), (SRD_W, 8), (SRD_WR, 40), (SRD_PHI, 16), (SRD_WS, 88), (SRD_DBG, 80),
                (SRD_WO, 24), (SRD_G, 48), (SRD_U, 56), (SRD_D, 64), (SRD_OUT, 72)]
        sizes = {SRD_X: 2621440, SRD_W: 2457600, SRD_WR: 1280, SRD_PHI: 25600, SRD_WS: WS_SIZE, SRD_DBG: 256,
                 SRD_WO: 819200, SRD_G: 2211840, SRD_U: 2211840, SRD_D: 2211840, SRD_OUT: 2621440}
        self.sizes = sizes
        if "span" in self.exp: g("s_memrealtime s[98:99]")
        self.mark("start")
        g("s_getpc_b64 s[72:73]")
        g("L_pc:")
        for r, off in ptrs[:4]:
            g(f"s_load_dwordx2 {s2(r)}, s[0:1], {off}")
        g(f"""
        s_cmp_ge_u32 s2, 256
        s_cbranch_scc1 L_exit
        v_and_b32 v1, 63, v0
        v_lshrrev_b32 v9, 6, v0
        s_lshr_b32 s{S_SLOT}, s2, 3
        v_readfirstlane_b32 s{S_WAVE}, v9
        s_and_b32 s{S_XCD}, s2, 7
        """)
        g(f"""
        s_lshl_b32 s{S_T0}, s{S_SLOT}, 2
        s_add_u32 s{S_T0}, s{S_T0}, s{S_WAVE}
        s_lshl_b32 s{S_T0}, s{S_T0}, 9
        v_lshl_add_u32 v11, v1, 7, s{S_T0}
        v_cmp_gt_u32 vcc, L_code_end - L_pc, v11
        v_cmp_gt_u32 {s2(S_MA)}, 4, v1
        s_and_b64 vcc, vcc, {s2(S_MA)}
        s_and_saveexec_b64 {s2(S_MA)}, vcc
        s_cbranch_execz L_nopf
        global_load_dword v159, v11, s[72:73]       ; HZ_SKIP_BEGIN HZ_SKIP_END
L_nopf:
        s_mov_b64 exec, -1
        """)
        for r, off in ptrs[4:]:
            g(f"s_load_dwordx2 {s2(r)}, s[0:1], {off}")
        g(f"""
        s_and_b32 s{S_T0}, s{S_XCD}, 1
        s_lshl_b32 s{S_T0}, s{S_T0}, 3
        s_and_b32 s{S_T1}, s{S_SLOT}, 7
        s_add_u32 s{S_RB}, s{S_T0}, s{S_T1}
        s_lshr_b32 s{S_T0}, s{S_XCD}, 1
        s_lshl_b32 s{S_T0}, s{S_T0}, 2
        s_lshr_b32 s{S_T2}, s{S_SLOT}, 3
        s_add_u32 s{S_HP}, s{S_T0}, s{S_T2}
        s_lshl_b32 s{S_T2}, s{S_T2}, 1
        s_add_u32 s{S_T1}, s{S_T1}, s{S_T2}
        s_and_b32 s{S_T1}, s{S_T1}, 7
        s_mul_i32 s{S_T1}, s{S_T1}, 10
        s_lshr_b32 s{S_C0}, s{S_T1}, 3
        v_lshrrev_b32 v9, 3, v1
        v_mul_u32_u24 v9, 1280, v9
        v_and_b32 v11, 7, v1
        v_lshrrev_b32 v15, 4, v1
        v_xor_b32 v11, v11, v15
        v_lshl_add_u32 v4, v11, 4, v9
        v_xor_b32 v11, 4, v11
        v_lshl_add_u32 v5, v11, 4, v9
        v_add_u32 v5, {10240 - 1024}, v5
        v_add_u32 v157, {20480 - 2048}, v4
        v_add_u32 v158, {20480 - 2048}, v5
        s_lshl_b32 s{S_T0}, s{S_RB}, 7
        s_lshl_b32 s{S_T1}, s{S_WAVE}, 5
        s_add_u32 s{S_T1}, s{S_T1}, s{S_T0}
        s_mul_i32 s{S_XB}, s{S_T1}, 1280
        s_mul_i32 s{S_WB}, s{S_WAVE}, {16*3840}
        s_mul_i32 s{S_T1}, s{S_HP}, 80
        s_add_u32 s{S_WB}, s{S_WB}, s{S_T1}
        s_lshl_b32 s{S_LX}, s{S_WAVE}, 12
        s_mul_i32 s{S_LW}, s{S_WAVE}, 3072
        s_add_u32 s{S_LW}, s{S_LW}, 16384
        s_add_u32 s{S_CC}, s{S_XB}, 1280
        s_lshl_b32 s{S_CX}, s{S_C0}, 7
        s_add_u32 s{S_CX}, s{S_CX}, s{S_XB}
        s_mul_i32 s{S_CW}, s{S_C0}, {64*3840}
        s_add_u32 s{S_CW}, s{S_CW}, s{S_WB}
        """)
        for r in (SRD_X, SRD_W):
            g(f"s_mov_b32 s{r+2}, {sizes[r]}\ns_mov_b32 s{r+3}, 0x20000")
        for n in range(3):
            g(f"""
            v_add_u32 v9, {64*n}, v1
            v_mul_u32_u24 v11, 43691, v9
            v_lshrrev_b32 v11, 19, v11
            v_mul_u32_u24 v12, 12, v11
            v_sub_u32 v12, v9, v12
            v_cmp_gt_u32 {s2(S_WM+2*n)}, 10, v12
            v_cmp_gt_u32 vcc, 5, v12
            v_mul_u32_u24 v11, 3840, v11
            v_lshl_add_u32 v11, v12, 4, v11
            v_mov_b32 v13, 2480
            v_add_u32 v14, 1280, v11
            v_add_u32 v11, v13, v11
            v_cndmask_b32 v{6+n}, v11, v14, vcc
            """)
            if n: g(f"v_subrev_u32 v{6+n}, {1024*n}, v{6+n}")
        g("s_waitcnt lgkmcnt(0)")
        self.stamp("start"); self.stamp("clk0", True)
        for r in (SRD_WR, SRD_PHI):
            g(f"s_mov_b32 s{r+2}, {sizes[r]}\ns_mov_b32 s{r+3}, 0x20000")
        P = 160
        nt = " nt" if "nt" in self.exp else ""
        self.nt = nt
        g(f"""
        v_mul_u32_u24 v10, 20, v1
        s_lshl_b32 s{S_T0}, s{S_RB}, 7
        s_lshl_b32 s{S_T1}, s{S_HP}, 3
        s_add_u32 s{S_T0}, s{S_T0}, s{S_T1}
        s_lshl_b32 s{S_T1}, s{S_WAVE}, 1
        s_add_u32 s{S_P0ROW}, s{S_T0}, s{S_T1}
        s_mul_i32 s{S_T4}, s{S_P0ROW}, 1280
        buffer_load_dwordx4 {v(P,4)}, v10, {srd(SRD_X)}, s{S_T4} offen
        buffer_load_dword v{P+4}, v10, {srd(SRD_X)}, s{S_T4} offen offset:16
        buffer_load_dwordx4 {v(P+6,4)}, v10, {srd(SRD_X)}, s{S_T4} offen offset:1280
        buffer_load_dword v{P+10}, v10, {srd(SRD_X)}, s{S_T4} offen offset:1296
        buffer_load_dwordx4 {v(P+12,4)}, v10, {srd(SRD_WR)}, 0 offen
        buffer_load_dword v{P+16}, v10, {srd(SRD_WR)}, 0 offen offset:16
        v_lshlrev_b32 v11, 4, v1
        s_mul_i32 s{S_T0}, s{S_HP}, 1600
        s_mul_i32 s{S_T1}, s{S_WAVE}, 1664
        s_add_u32 m0, s{S_T1}, {L_WPHI}
        s_add_u32 s{S_T4}, s{S_T1}, {L_WPHI + 1024}
        buffer_load_dwordx4 v11, {srd(SRD_PHI)}, s{S_T0} offen lds
        s_mov_b32 m0, s{S_T4}
        s_mov_b32 exec_lo, -1
        s_mov_b32 exec_hi, 15
        s_add_u32 s{S_T0}, s{S_T0}, 1024
        buffer_load_dwordx4 v11, {srd(SRD_PHI)}, s{S_T0} offen lds
        s_mov_b64 exec, -1
        """)
        g.vmi("p0", 6); g.vmi("phi", 2)
        tagged = lambda i: [(x, f"c{i}") for x in self.p1_refill(i)]
        for lines, tag in tagged(0):
            for x in lines: g(x)
            g.vmi(tag)
        self.stamp("c0iss")
        s1, s2_ = self.capture(self.setup1), self.capture(self.setup2)
        p0, pf = self.capture(self.phase0), self.capture(self.phi_frags)
        cut = 260
        rest2 = s2_
        for x in s1: self.emit_resolved(x)
        at = self.atoms(s2_); n = 0; head = [];
        while at and n < cut - len(s1):
            a_ = at.pop(0); n += len(a_); head += a_
        for x in head: self.emit_resolved(x)
        tail = [x for a_ in at for x in a_]
        if self.dist == 3:
            self.interleave(tagged(1), tail + p0)
            self.interleave(tagged(2), pf)
        else:
            self.interleave(tagged(1), tail + p0 + pf)
        self.stamp("filled")

    def setup1(self):
        g = self
        sizes = self.sizes
        for r in (SRD_WS, SRD_DBG):
            g(f"s_mov_b32 s{r+2}, {sizes[r]}\ns_mov_b32 s{r+3}, 0x20000")
        g(f"""
        s_lshl_b32 s{S_T0}, s{S_WAVE}, 8
        s_add_u32 s{S_T0}, s{S_T0}, s2
        s_cmp_lg_u32 s{S_T0}, 256
        s_cbranch_scc1 L_noinit
        v_lshlrev_b32 v11, 7, v1       ; HZ_SKIP_BEGIN
        v_mov_b32 v12, 0
        buffer_store_dword v12, v11, {srd(SRD_WS)}, 0 offen sc1   ; HZ_SKIP_END
L_noinit:
        """)
        for r in (SRD_WO, SRD_G, SRD_U, SRD_D, SRD_OUT):
            g(f"s_mov_b32 s{r+2}, {sizes[r]}\ns_mov_b32 s{r+3}, 0x20000")
        g(f"""
        v_and_b32 v2, 31, v1
        v_lshrrev_b32 v3, 5, v1
        v_mov_b32 v12, 0x3f80
        v_mov_b32 v13, 0
        v_mov_b32 v14, 0x3f80
        v_mov_b32 v15, 0
        v_lshrrev_b32 v9, 6, v0
        v_mul_u32_u24 v9, {SLOT}, v9
        v_mul_u32_u24 v11, 192, v1
        v_add_u32 v9, v9, v11
        ds_write_b128 v9, v[12:15] offset:{16384 + 160}
        v_add_u32 v11, {4*SLOT}, v11
        ds_write_b128 v11, v[12:15] offset:{16384 + 160}
        v_mov_b32 v16, 0
        v_mov_b32 v17, 0
        v_mov_b32 v18, 0
        v_mov_b32 v19, 0
        v_lshlrev_b32 v20, 4, v0
        v_add_u32 v20, {L_KVF}, v20
        ds_write_b128 v20, v[16:19]
        v_lshlrev_b32 v21, 3, v0
        v_add_u32 v21, {L_KVF + 4096}, v21
        ds_write_b64 v21, v[16:17]
        v_mov_b32 v84, 0x3f803f80
        v_mov_b32 v85, 0x3f803f80
        """)
        g(f"""
        v_lshrrev_b32 v9, 1, v2
        v_and_b32 v9, 7, v9
        v_xor_b32 v9, v9, v3
        v_lshlrev_b32 v9, 4, v9
        v_lshl_add_u32 v9, v2, 7, v9
        v_add_u32 v128, s{S_LX}, v9
        v_xor_b32 v129, 32, v128
        v_xor_b32 v130, 64, v128
        v_xor_b32 v131, 96, v128
        v_add_u32 v132, {3*SLOT}, v128
        v_add_u32 v133, {3*SLOT}, v129
        v_add_u32 v134, {3*SLOT}, v130
        v_add_u32 v135, {3*SLOT}, v131
        v_bfe_u32 v9, v1, 2, 2
        v_lshl_add_u32 v9, v3, 3, v9
        v_mul_u32_u24 v9, 192, v9
        v_bfe_u32 v11, v1, 4, 1
        v_and_b32 v12, 3, v1
        v_lshl_add_u32 v11, v11, 2, v12
        v_lshl_add_u32 v9, v11, 3, v9
        v_add_u32 v136, 16384, v9
        v_add_u32 v137, {16384 + 2*SLOT}, v9
        v_add_u32 v138, {16384 + 4*SLOT}, v9
        s_lshl_b32 s{S_T0}, s{S_WAVE}, 6
        v_add_u32 v72, s{S_T0}, v136
        v_add_u32 v73, s{S_T0}, v137
        v_add_u32 v74, s{S_T0}, v138
        """)

    def setup2(self):
        g = self
        self.moe_roles()
        self.kv_addresses()
        self.c_addresses()
        self.o_addresses()
        self.wq_setup()
        g(f"""
        s_lshl_b32 s{S_T0}, s{S_WAVE}, 5
        v_add_u32 v9, s{S_T0}, v2
        v_mul_u32_u24 v9, 336, v9
        v_add_u32 v9, {L_T}, v9
        v_lshl_add_u32 v9, v3, 3, v9
        v_accvgpr_write_b32 a192, v9
        s_lshr_b32 s{S_T0}, s{S_WAVE}, 1
        s_and_b32 s{S_T4}, s{S_WAVE}, 1
        v_bfe_u32 v9, v1, 2, 2
        v_lshlrev_b32 v9, 1, v9
        v_add_u32 v9, v9, v3
        v_lshlrev_b32 v9, 1, v9
        v_mul_u32_u24 v9, 336, v9
        v_add_u32 v9, {L_T}, v9
        v_bfe_u32 v11, v1, 4, 1
        v_and_b32 v12, 3, v1
        v_lshl_add_u32 v11, v11, 2, v12
        s_mul_i32 s{S_T2}, s{S_T0}, 12
        s_lshl_b32 s{S_T3}, s{S_T4}, 3
        s_add_u32 s{S_T2}, s{S_T2}, s{S_T3}
        v_add_u32 v12, s{S_T2}, v11
        v_lshl_add_u32 v13, v12, 3, v9
        v_accvgpr_write_b32 a193, v13
        s_mul_i32 s{S_T2}, s{S_T0}, 5
        s_add_u32 s{S_T2}, s{S_T2}, 24
        v_add_u32 v12, s{S_T2}, v11
        s_mul_i32 s{S_T3}, s{S_T0}, -3
        s_add_i32 s{S_T3}, s{S_T3}, 37
        v_mov_b32 v13, s{S_T3}
        v_cmp_eq_u32 vcc, 5, v11
        v_cndmask_b32 v12, v12, v13, vcc
        s_add_i32 s{S_T3}, s{S_T3}, -13
        v_add_u32 v13, s{S_T3}, v11
        v_cmp_lt_u32 vcc, 5, v11
        v_cndmask_b32 v12, v12, v13, vcc
        v_lshl_add_u32 v13, v12, 3, v9
        v_accvgpr_write_b32 a194, v13
        v_mul_u32_u24 v9, 336, v3
        v_lshl_add_u32 v9, v2, 4, v9
        v_accvgpr_write_b32 a195, v9
        s_lshl_b32 s{S_T2}, s{S_HP}, 4
        s_add_u32 s{S_T2}, s{S_T2}, s{S_RB}
        s_mul_i32 s{S_T2}, s{S_T2}, {KVP_SZ}
        s_add_u32 s{S_T2}, s{S_T2}, {WS_KVP}
        s_mul_i32 s{S_T3}, s{S_T0}, 3360
        s_add_u32 s{S_KVS}, s{S_T2}, s{S_T3}
        """)

    def phase0(self):
        g = self
        P = 160
        self.stamp("pre_p0")
        g.vmwait("phi")
        self.stamp("p0data")
        X0, X1, W = P, P + 6, P + 12
        A = 180
        for i in range(7): g(f"v_mov_b32 v{A+i}, 0")
        for d in range(5):
            g(f"""
            v_dot2c_f32_bf16 v{A+0}, v{X0+d}, v84
            v_dot2c_f32_bf16 v{A+1}, v{X0+d}, v{X0+d}
            v_dot2c_f32_bf16 v{A+2}, v{X0+d}, v{W+d}
            v_dot2c_f32_bf16 v{A+3}, v{X1+d}, v84
            v_dot2c_f32_bf16 v{A+4}, v{X1+d}, v{X1+d}
            v_dot2c_f32_bf16 v{A+5}, v{X1+d}, v{W+d}
            v_dot2c_f32_bf16 v{A+6}, v{W+d}, v84
            """)
        g("s_nop 2")
        for ctl in ("row_shr:1 row_mask:0xf bank_mask:0xf bound_ctrl:0", "row_shr:2 row_mask:0xf bank_mask:0xf bound_ctrl:0",
                    "row_shr:4 row_mask:0xf bank_mask:0xf bound_ctrl:0", "row_shr:8 row_mask:0xf bank_mask:0xf bound_ctrl:0",
                    "row_bcast:15 row_mask:0xa bank_mask:0xf", "row_bcast:31 row_mask:0xc bank_mask:0xf"):
            for i in range(7):
                g(f"v_add_f32_dpp v{A+i}, v{A+i}, v{A+i} {ctl}")
        T = 190
        g(f"v_mov_b32 v{T+8}, 0x3acccccd")
        for r in range(2):
            sx, sq, sw = A + 3*r, A + 3*r + 1, A + 3*r + 2
            m, t1, t2 = T + 3*r, T + 3*r + 1, T + 3*r + 2
            g(f"""
            v_mul_f32 v{m}, v{sx}, v{T+8}
            v_mul_f32 v{t1}, v{sq}, v{T+8}
            v_fma_f32 v{t1}, -v{m}, v{m}, v{t1}
            v_max_f32 v{t1}, 0, v{t1}
            """)
            g.rnd_bf16(t1, t1)
            g(f"v_add_f32 v{t1}, 0x3727c5ac, v{t1}")
            g.rnd_bf16(t1, t1)
            g(f"v_sqrt_f32 v{t1}, v{t1}")
            g.rnd_bf16(t1, t1)
            g.rnd_bf16(m, m)
            g(f"""
            v_rcp_f32 v{t1}, v{t1}
            v_fma_f32 v{t2}, -v{m}, v{A+6}, v{sw}
            v_mul_f32 v{t2}, v{t2}, v{t1}
            """)
        g(f"""
        v_mov_b32 v{T+7}, s{S_P0ROW}
        v_add_u32 v{T+9}, 1, v{T+7}
        v_cmp_gt_f32 vcc, v{T+5}, v{T+2}
        v_cndmask_b32 v{T+6}, v{T+2}, v{T+5}, vcc
        v_cndmask_b32 v{T+7}, v{T+7}, v{T+9}, vcc
        s_lshl_b32 s{S_T0}, s{S_WAVE}, 3
        s_add_u32 s{S_T0}, s{S_T0}, {L_P0}
        v_mov_b32 v9, s{S_T0}
        s_mov_b32 exec_lo, 0
        s_brev_b32 exec_hi, 1
        ds_write_b64 v9, {v(T+6,2)}
        s_mov_b64 exec, -1
        """)

    def phi_frags(self):
        g = self
        g(f"""
        v_lshrrev_b32 v9, 3, v2
        v_and_b32 v11, 3, v2
        v_lshl_add_u32 v9, v9, 2, v11
        v_min_u32 v9, 9, v9
        v_bfe_u32 v11, v2, 2, 1
        v_mad_u32_u24 v9, v11, 10, v9
        v_lshlrev_b32 v9, 1, v9
        s_mul_i32 s{S_T0}, s{S_WAVE}, 1664
        s_add_u32 s{S_T0}, s{S_T0}, {L_WPHI}
        v_add_u32 v9, s{S_T0}, v9
        v_mul_u32_u24 v11, 160, v3
        v_add_u32 v11, v11, v9
        """)
        def rd(reg, base, ds):
            for i, d in enumerate(ds):
                g(f"ds_read_u16 v{T0 + i}, v{base} offset:{d}")
            g("s_waitcnt lgkmcnt(0)")
            for i in range(0, len(ds), 2):
                g(f"v_lshl_or_b32 v{reg + i//2}, v{T0+i+1}, 16, v{T0+i}")
        T0 = 200
        rd(140, 11, [40*i for i in range(4)] + [40*(8+i) for i in range(4)] + [40*(16+i) for i in range(4)])
        rd(146, 9, [800 + 40*i for i in range(4)])
        rd(148, 11, [800 + 40*(4+i) for i in range(4)] + [800 + 40*(12+i) for i in range(4)])
        g(f"""
        s_mov_b32 s{S_MA}, 0
        s_mov_b32 s{S_MA+1}, -1
        s_waitcnt lgkmcnt(0)
        v_cndmask_b32 v144, v144, 0, {s2(S_MA)}
        v_cndmask_b32 v145, v145, 0, {s2(S_MA)}
        v_cndmask_b32 v146, 0, v146, {s2(S_MA)}
        v_cndmask_b32 v147, 0, v147, {s2(S_MA)}
        """)

    def p1_reads(self, n):
        c, ks = divmod(n, 4); s = c % 5; b = n % 3
        base = 128 + ks if s < 3 else 132 + ks
        imm = s * SLOT if s < 3 else (s - 3) * SLOT
        out = [f"ds_read_b128 {ac(4*n,4)}, v{base} offset:{imm}"]
        wb = 136 + s // 2
        imm0 = (s % 2) * SLOT + 16 * ks * 192
        for t in range(3):
            for rd in range(2):
                out.append(f"ds_read_b64_tr_b16 {v(92 + 12*b + 4*t + 2*rd, 2)}, v{wb} offset:{imm0 + 4*rd*192 + 64*t}")
        for rd in range(2):
            out.append(f"ds_read_b64_tr_b16 {v(160 + 4*b + 2*rd, 2)}, v{72 + s // 2} offset:{imm0 + 4*rd*192}")
        return out

    def p1_refill(self, i):
        s = i % 5
        nt = self.nt
        grp = []
        grp.append([f"s_add_u32 m0, s{S_LX}, {s*SLOT}", "s_nop 0" if False else f"s_add_u32 s{S_T1}, s{S_LW}, {s*SLOT}",
                    f"buffer_load_dwordx4 v4, {srd(SRD_X)}, s{S_CX} offen{nt} lds"])
        grp.append([f"buffer_load_dwordx4 v5, {srd(SRD_X)}, s{S_CX} offen offset:1024{nt} lds"])
        grp.append([f"buffer_load_dwordx4 v157, {srd(SRD_X)}, s{S_CX} offen offset:2048{nt} lds"])
        grp.append([f"buffer_load_dwordx4 v158, {srd(SRD_X)}, s{S_CX} offen offset:3072{nt} lds",
                    f"s_add_u32 s{S_CX}, s{S_CX}, 128"])
        grp.append([f"s_mov_b32 m0, s{S_T1}", f"s_mov_b64 exec, {s2(S_WM)}",
                    f"buffer_load_dwordx4 v6, {srd(SRD_W)}, s{S_CW} offen{nt} lds", "s_mov_b64 exec, -1"])
        grp.append([f"s_mov_b64 exec, {s2(S_WM+2)}",
                    f"buffer_load_dwordx4 v7, {srd(SRD_W)}, s{S_CW} offen offset:1024{nt} lds", "s_mov_b64 exec, -1"])
        grp.append([f"s_mov_b64 exec, {s2(S_WM+4)}",
                    f"buffer_load_dwordx4 v8, {srd(SRD_W)}, s{S_CW} offen offset:2048{nt} lds", "s_mov_b64 exec, -1",
                    f"s_add_u32 s{S_CW}, s{S_CW}, {64*3840}", f"s_cmp_eq_u32 s{S_CX}, s{S_CC}",
                    f"s_cselect_b32 s{S_CX}, s{S_XB}, s{S_CX}", f"s_cselect_b32 s{S_CW}, s{S_WB}, s{S_CW}"])
        return grp

    def wq_groups(self):
        grp = []
        for m in range(13):
            q, pt = divmod(m, 5)
            gl = [f"s_add_u32 m0, s{S_WQL}, {m*1024}", f"s_add_u32 s{S_T2}, s{S_WQG}, {q*64*3840}"]
            if m == 12:
                gl += ["s_mov_b32 exec_hi, 0", f"buffer_load_dwordx4 v{152+pt}, {srd(SRD_W)}, s{S_T2} offen lds", "s_mov_b64 exec, -1"]
            else:
                gl += [f"buffer_load_dwordx4 v{152+pt}, {srd(SRD_W)}, s{S_T2} offen lds"]
            grp.append(gl)
        return grp

    def wq_setup(self):
        g = self
        for pt in range(5):
            g(f"""
            v_add_u32 v9, {64*pt}, v1
            v_mul_u32_u24 v11, 52429, v9
            v_lshrrev_b32 v11, 18, v11
            v_mul_u32_u24 v12, 5, v11
            v_sub_u32 v12, v9, v12
            v_and_b32 v13, 3, v11
            v_bfe_u32 v14, v11, 2, 2
            v_and_b32 v11, 0xfffffff0, v11
            v_lshl_add_u32 v11, v13, 2, v11
            v_add_u32 v11, v11, v14
            v_mul_u32_u24 v11, 3840, v11
            v_lshl_add_u32 v{152+pt}, v12, 4, v11
            """)
        g(f"""
        s_mul_i32 s{S_WQL}, s{S_WAVE}, 12800
        s_add_u32 s{S_WQL}, s{S_WQL}, {L_WQ}
        s_mul_i32 s{S_WQG}, s{S_WAVE}, {160*3840}
        s_mul_i32 s{S_T0}, s{S_HP}, 80
        s_add_u32 s{S_WQG}, s{S_WQG}, s{S_T0}
        """)

    def pass1(self):
        g = self
        self.dbg_span(2, True); self.dbg_span(7, False); self.mark("filled")
        g.vmwait("c0")
        g("s_waitcnt lgkmcnt(0)\ns_barrier")
        self.stamp("c0")
        for x in self.p1_reads(0): g(x)
        g("s_waitcnt lgkmcnt(6)")
        for x in self.p1_reads(1): g(x)
        g(f"""
        s_cmp_lg_u32 s{S_WAVE}, 0
        s_cbranch_scc1 L_nopub
        v_mov_b32 v9, {L_P0}           ; HZ_SKIP_BEGIN
        ds_read_b128 v[172:175], v9
        ds_read_b128 v[176:179], v9 offset:16
        s_lshl_b32 s{S_T0}, s2, 3
        s_add_u32 s{S_T0}, s{S_T0}, {WS_RMAX}
        v_mov_b32 v11, s{S_T0}
        s_waitcnt lgkmcnt(0)
        v_cmp_gt_f32 vcc, v174, v172
        v_cndmask_b32 v172, v172, v174, vcc
        v_cndmask_b32 v173, v173, v175, vcc
        v_cmp_gt_f32 vcc, v176, v172
        v_cndmask_b32 v172, v172, v176, vcc
        v_cndmask_b32 v173, v173, v177, vcc
        v_cmp_gt_f32 vcc, v178, v172
        v_cndmask_b32 v172, v172, v178, vcc
        v_cndmask_b32 v173, v173, v179, vcc
        s_mov_b64 exec, 1
        buffer_store_dwordx2 v[172:173], v11, {srd(SRD_WS)}, 0 offen sc1
        s_mov_b64 exec, -1             ; HZ_SKIP_END
L_nopub:
        """)
        pend = []
        for n in range(40):
            c, ks = divmod(n, 4); b = n % 3
            if ks == 0:
                if c + self.dist <= 9:
                    pend += self.p1_refill(c + self.dist); self.vmq = getattr(self, "vmq", []) + [f"c{c+self.dist}"] * 7
                if c == 3:
                    pend.append(self.touch_wq()); self.vmq.append("tq")
                if c == 7:
                    pend += self.touch_moe(); self.vmq += ["tm"] * 3
                if c == 6:
                    pend.append([f"v_mov_b32 v75, 240", f"buffer_load_dword v75, v75, {srd(SRD_DBG)}, 0 offen sc1"]); self.vmq.append("rdy")
            if ks == 2 and c < 9:
                g(f"s_waitcnt lgkmcnt(6)")
                g.vmwait(f"c{c+1}")
                g("s_barrier")
                self.stamp(f"B{c}")
                if c == 0:
                    g(f"""
                    s_cmp_lg_u32 s2, 0
                    s_cbranch_scc1 L_noready
                    s_cmp_lg_u32 s{S_WAVE}, 1
                    s_cbranch_scc1 L_noready
                    v_mov_b32 v11, 240             ; HZ_SKIP_BEGIN
                    v_mov_b32 v12, 1
                    s_mov_b64 exec, 1
                    buffer_store_dword v12, v11, {srd(SRD_DBG)}, 0 offen sc1
                    s_mov_b64 exec, -1             ; HZ_SKIP_END
L_noready:
                    """)
                if c == self.dist - 1:
                    g(f"""
                    s_cmp_lg_u32 s{S_WAVE}, 0
                    s_cbranch_scc1 L_noatom
                    s_and_b32 s{S_T0}, s2, 3       ; HZ_SKIP_BEGIN
                    s_lshl_b32 s{S_T0}, s{S_T0}, 6
                    v_mov_b32 v11, s{S_T0}
                    v_mov_b32 v12, 1
                    s_mov_b64 exec, 1
                    buffer_atomic_add v12, v11, {srd(SRD_DBG)}, 0 offen sc1
                    s_mov_b64 exec, -1             ; HZ_SKIP_END
L_noatom:
                    """)
            elif n == 39: g("s_waitcnt lgkmcnt(0)")
            else: g("s_waitcnt lgkmcnt(6)")
            rd = self.p1_reads(n + 2) if n + 2 < 40 else []
            if "nords" in self.exp: rd = []
            XP = ac(4*n, 4)
            WF = lambda t: 92 + 12*b + 4*t
            first = (n == 0)
            def dma():
                if pend:
                    grp = pend.pop(0); tag = self.vmq.pop(0)
                    if "nodma" not in self.exp:
                        for x in grp: g(x)
                    if tag: g.vmi(tag)
            cin = lambda r, k: "0" if first else v(r, k)
            g(f"v_mfma_f32_32x32x16_bf16 v[16:31], {v(WF(0),4)}, {XP}, {cin(16,16)}")
            for x in rd[0:3]: g(x)
            dma()
            g(f"v_mfma_f32_32x32x16_bf16 v[32:47], {v(WF(1),4)}, {XP}, {cin(32,16)}")
            for x in rd[3:6]: g(x)
            g(f"v_mfma_f32_32x32x16_bf16 v[48:63], {v(WF(2),4)}, {XP}, {cin(48,16)}")
            for x in rd[6:9]: g(x)
            dma()
            if "nosq" not in self.exp:
                g(f"v_mfma_f32_4x4x4_16b_bf16 v[64:67], {ac(4*n,2)}, {ac(4*n,2)}, {cin(64,4)}")
                g(f"v_mfma_f32_4x4x4_16b_bf16 v[68:71], {ac(4*n+2,2)}, {ac(4*n+2,2)}, {cin(68,4)}")
            if "nocs" not in self.exp:
                g(f"v_mfma_f32_4x4x4_16b_bf16 v[76:79], {v(160+4*b,2)}, v[84:85], {cin(76,4)}")
                g(f"v_mfma_f32_4x4x4_16b_bf16 v[80:83], {v(160+4*b+2,2)}, v[84:85], {cin(80,4)}")
            if c in (3, 6, 7): dma()
        while pend:
            grp = pend.pop(0); tag = self.vmq.pop(0)
            for x in grp: g(x)
            if tag: g.vmi(tag)
        self.stamp("p1end")

    def touch_moe(self):
        return [
            [f"v_mul_u32_u24 v9, 13108, v1", "v_lshrrev_b32 v9, 16, v9", "v_mul_u32_u24 v10, 5, v9", "v_sub_u32 v10, v1, v10",
             "v_mul_u32_u24 v11, 3456, v9", "v_lshl_add_u32 v11, v10, 7, v11",
             f"s_mul_i32 s{S_T0}, s{S_XCD}, 448", f"s_and_b32 s{S_T0}, s{S_T0}, 0xffffff80",
             f"s_lshl_b32 s{S_T2}, s{S_SLOT}, 2", f"s_add_u32 s{S_T2}, s{S_T2}, s{S_WAVE}", f"s_mul_i32 s{S_T2}, s{S_T2}, {5*3456}",
             f"s_add_u32 s{S_T0}, s{S_T0}, s{S_T2}", "s_mov_b32 exec_lo, 0x1ffffff", "s_mov_b32 exec_hi, 0",
             f"buffer_load_dword v159, v11, {srd(SRD_G)}, s{S_T0} offen", "s_mov_b64 exec, -1"],
            ["s_mov_b32 exec_lo, 0x1ffffff", "s_mov_b32 exec_hi, 0",
             f"buffer_load_dword v159, v11, {srd(SRD_U)}, s{S_T0} offen", "s_mov_b64 exec, -1"],
            ["v_mul_u32_u24 v9, 6554, v1", "v_lshrrev_b32 v9, 16, v9", "v_mul_u32_u24 v10, 10, v9", "v_sub_u32 v10, v1, v10",
             "v_mul_u32_u24 v12, 1280, v9", "v_lshl_add_u32 v12, v10, 7, v12",
             f"s_mul_i32 s{S_T0}, s{S_XCD}, {224*1280}", f"s_mul_i32 s{S_T2}, s{S_SLOT}, 7", f"s_lshl_b32 s{S_T3}, s{S_WAVE}, 1",
             f"s_add_u32 s{S_T2}, s{S_T2}, s{S_T3}", f"s_mul_i32 s{S_T2}, s{S_T2}, 1280", f"s_add_u32 s{S_T0}, s{S_T0}, s{S_T2}",
             "s_mov_b32 exec_lo, 0xfffff", "s_mov_b32 exec_hi, 0",
             f"buffer_load_dword v159, v12, {srd(SRD_D)}, s{S_T0} offen", "s_mov_b64 exec, -1"]]

    def touch_wq(self):
        return ["v_mul_u32_u24 v9, 21846, v1", "v_lshrrev_b32 v9, 16, v9", "v_mul_u32_u24 v10, 3, v9", "v_sub_u32 v10, v1, v10",
                f"s_lshl_b32 s{S_T0}, s{S_SLOT}, 2", f"s_add_u32 s{S_T0}, s{S_T0}, s{S_WAVE}", f"s_mul_i32 s{S_T0}, s{S_T0}, 5",
                f"v_add_u32 v9, s{S_T0}, v9", "v_mul_u32_u24 v9, 3840, v9", "v_lshl_add_u32 v9, v10, 7, v9",
                f"s_lshr_b32 s{S_T0}, s{S_XCD}, 1", f"s_mul_i32 s{S_T0}, s{S_T0}, 320", f"s_and_b32 s{S_T0}, s{S_T0}, 0xffffff80",
                "s_mov_b32 exec_lo, 0x7fff", "s_mov_b32 exec_hi, 0",
                f"buffer_load_dword v159, v9, {srd(SRD_W)}, s{S_T0} offen", "s_mov_b64 exec, -1"]

    def stats_and_colsum(self, first):
        g = self
        csoff = 0 if first else 128 * 4
        for i in range(4): g(f"v_add_f32 v{76+i}, v{76+i}, v{80+i}")
        for i in range(4): g(f"v_mov_b32 v{80+i}, v{76+i}")
        for i in range(4): g(f"v_permlane32_swap_b32 v{76+i}, v{80+i}")
        for i in range(4): g(f"v_add_f32 v{76+i}, v{76+i}, v{80+i}")
        g(f"""
        s_lshl_b32 s{S_T0}, s{S_WAVE}, 7
        s_add_u32 s{S_T0}, s{S_T0}, {L_CS + csoff}
        v_lshl_add_u32 v9, v1, 2, s{S_T0}
        s_mov_b32 exec_lo, 0x11111111
        s_mov_b32 exec_hi, 0
        ds_write_b128 v9, v[76:79]
        s_mov_b64 exec, -1
        """)
        if first:
            for i in range(4): g(f"v_add_f32 v{64+i}, v{64+i}, v{68+i}")
            for i in range(1, 4):
                m = 0x11111111 << i
                g(f"s_mov_b32 s{S_MB}, {hex(m)}\ns_mov_b32 s{S_MB+1}, {hex(m)}\nv_cndmask_b32 v64, v64, v{64+i}, {s2(S_MB)}")
            g(f"""
            v_mov_b32 v65, v64
            v_mov_b32 v90, 0x3acccccd
            s_nop 0
            v_permlane32_swap_b32 v64, v65
            v_add_f32 v64, v64, v65
            v_mul_f32 v66, v56, v90
            v_mul_f32 v64, v64, v90
            v_fma_f32 v64, -v66, v66, v64
            v_max_f32 v64, 0, v64
            """)
            g.rnd_bf16(64, 64)
            g("v_add_f32 v64, 0x3727c5ac, v64")
            g.rnd_bf16(64, 64)
            g("v_sqrt_f32 v64, v64")
            g.rnd_bf16(90, 64)
            g.rnd_bf16(91, 66)
            g("v_rcp_f32 v88, v90\nv_sub_f32 v86, 0, v91")
        g("s_waitcnt lgkmcnt(0)\ns_barrier")
        self.stamp("csbar" if first else "csbar2")

    def normalise(self, quads, csoff):
        g = self
        g(f"v_lshlrev_b32 v9, 4, v3\nv_add_u32 v9, {L_CS + csoff}, v9")
        for i, (r, col) in enumerate(quads):
            g(f"ds_read_b128 {v(160+4*i,4)}, v9 offset:{col*4}")
        for i, (r, col) in enumerate(quads):
            g(f"s_waitcnt lgkmcnt({len(quads)-1-i})")
            for hh in range(2):
                g(f"v_pk_fma_f32 {v(r+2*hh,2)}, {v(160+4*i+2*hh,2)}, v[86:87], {v(r+2*hh,2)} op_sel_hi:[1,0,1]")
            for hh in range(2):
                g(f"v_pk_mul_f32 {v(r+2*hh,2)}, {v(r+2*hh,2)}, v[88:89] op_sel_hi:[1,0]")

    def softmax(self, H0, H1):
        g = self
        P = (92, 108)
        L = 0x3fb8aa3b
        g(f"v_mov_b32 v124, {hex(L)}\nv_mov_b32 v126, {hex(L | 0x80000000)}")
        for H in (H0, H1): g(f"v_mov_b32 v{H+10}, 0\nv_mov_b32 v{H+11}, 0")
        E = (160, 180)
        MX = (200, 204)
        for a in range(2):
            p, mx = P[a], MX[a]
            g(f"""
            v_max3_f32 v{mx}, v{p}, v{p+1}, v{p+2}
            v_min3_f32 v{mx+1}, v{p}, v{p+1}, v{p+2}
            v_max3_f32 v{mx}, v{mx}, v{p+3}, v{p+4}
            v_min3_f32 v{mx+1}, v{mx+1}, v{p+3}, v{p+4}
            v_max3_f32 v{mx}, v{mx}, v{p+5}, v{p+6}
            v_min3_f32 v{mx+1}, v{mx+1}, v{p+5}, v{p+6}
            v_max3_f32 v{mx}, v{mx}, v{p+7}, v{p+8}
            v_min3_f32 v{mx+1}, v{mx+1}, v{p+7}, v{p+8}
            v_max_f32 v{mx}, v{mx}, v{p+9}
            v_min_f32 v{mx+1}, v{mx+1}, v{p+9}
            v_sub_f32 v{mx+1}, 0, v{mx+1}
            """)
        for a in range(2): g(f"v_permlane32_swap_b32 v{MX[a]}, v{MX[a]+1}")
        for a in range(2): g(f"v_max_f32 v{MX[a]}, v{MX[a]}, v{MX[a]+1}")
        for a in range(2): g(f"v_mov_b32 v{MX[a]+1}, v{MX[a]}")
        for a in range(2): g(f"v_permlane32_swap_b32 v{MX[a]}, v{MX[a]+1}")
        for a in range(2):
            mx = MX[a]
            g(f"v_mul_f32 v{mx+2}, v{mx+1}, v126\nv_mul_f32 v{mx}, v{mx}, v126")
        for a in range(2):
            p, mx, e = P[a], MX[a], E[a]
            for i in range(5):
                g(f"v_pk_fma_f32 {v(e+2*i,2)}, {v(p+2*i,2)}, v[124:125], {v(mx,2)} op_sel_hi:[1,0,0]")
                g(f"v_pk_fma_f32 {v(e+10+2*i,2)}, {v(p+2*i,2)}, v[126:127], {v(mx+2,2)} op_sel_hi:[1,0,0]")
        self.stamp("sm_pre" + str(H0) + getattr(self, "smtag", ""))
        for a in range(2):
            for i in range(20): g(f"v_exp_f32 v{E[a]+i}, v{E[a]+i}")
        self.stamp("sm_exp" + getattr(self, "smtag", ""))
        SM = (208, 214)
        for a in range(2):
            e, sm = E[a], SM[a]
            g(f"v_pk_add_f32 {v(sm,2)}, {v(e,2)}, {v(e+2,2)}\nv_pk_add_f32 {v(sm+2,2)}, {v(e+10,2)}, {v(e+12,2)}")
        for i in range(2, 5):
            for a in range(2):
                e, sm = E[a], SM[a]
                g(f"v_pk_add_f32 {v(sm,2)}, {v(sm,2)}, {v(e+2*i,2)}\nv_pk_add_f32 {v(sm+2,2)}, {v(sm+2,2)}, {v(e+10+2*i,2)}")
        for a in range(2):
            sm = SM[a]
            g(f"v_add_f32 v{sm}, v{sm}, v{sm+1}\nv_add_f32 v{sm+1}, v{sm+2}, v{sm+3}")
        for a in range(2): g(f"v_permlane32_swap_b32 v{SM[a]}, v{SM[a]+1}")
        for a in range(2): g(f"v_add_f32 v{SM[a]}, v{SM[a]}, v{SM[a]+1}")
        for a in range(2): g(f"v_mov_b32 v{SM[a]+2}, v{SM[a]}")
        for a in range(2): g(f"v_permlane32_swap_b32 v{SM[a]}, v{SM[a]+2}")
        for a in range(2): g(f"v_rcp_f32 v{SM[a]}, v{SM[a]}\nv_rcp_f32 v{SM[a]+2}, v{SM[a]+2}")
        for a, H in ((0, H0), (1, H1)):
            e, sm = E[a], SM[a]
            for i in range(5):
                g(f"v_pk_mul_f32 {v(e+2*i,2)}, {v(e+2*i,2)}, {v(sm,2)} op_sel_hi:[1,0]")
                g(f"v_pk_mul_f32 {v(e+10+2*i,2)}, {v(e+10+2*i,2)}, {v(sm+2,2)} op_sel_hi:[1,0]")
            for i in range(10):
                g(f"v_cvt_pk_bf16_f32 v{H+i}, v{e+2*i}, v{e+2*i+1}")

    def norm_reads(self, quads, csoff, r0):
        g = self
        for i, (r, col) in enumerate(quads):
            g(f"ds_read_b128 {v(r0+4*i,4)}, v9 offset:{col*4}")

    def norm_apply(self, quads, r0, after):
        g = self
        for i, (r, col) in enumerate(quads):
            g(f"s_waitcnt lgkmcnt({len(quads)-1-i+after})")
            for hh in range(2):
                g(f"v_pk_fma_f32 {v(r+2*hh,2)}, {v(r0+4*i+2*hh,2)}, v[86:87], {v(r+2*hh,2)} op_sel_hi:[1,0,1]")
            for hh in range(2):
                g(f"v_pk_mul_f32 {v(r+2*hh,2)}, {v(r+2*hh,2)}, v[88:89] op_sel_hi:[1,0]")

    def featmap_mfma(self, PK):
        g = self
        g(f"v_mfma_f32_32x32x16_bf16 v[92:107], v[140:143], {v(PK,4)}, 0")
        g(f"v_mfma_f32_32x32x16_bf16 v[108:123], v[146:149], {v(PK+4,4)}, 0")
        g(f"v_mfma_f32_32x32x8_bf16 v[92:107], v[144:145], {v(PK+4,2)}, v[92:107]")
        g(f"v_mfma_f32_32x32x8_bf16 v[108:123], v[150:151], {v(PK+8,2)}, v[108:123]")

    def k_epilogue(self):
        g = self
        self.stats_and_colsum(True)
        PK, PV = 244, 210
        kq = [(16+4*j, 8*j) for j in range(4)] + [(32, 32)]
        vq = [(36, 40), (40, 48), (44, 56), (48, 64), (52, 72)]
        def part1():
            g(f"v_lshlrev_b32 v9, 4, v3\nv_add_u32 v9, {L_CS}, v9")
            self.norm_reads(kq, 0, 160); self.norm_reads(vq, 0, 180)
            self.norm_apply(kq, 160, 5)
            for i in range(10): g(f"v_cvt_pk_bf16_f32 v{PK+i}, v{16+2*i}, v{16+2*i+1}")
            self.stamp("k_cvt")
            self.featmap_mfma(PK)
            self.norm_apply(vq, 180, 0)
            self.stamp("v_norm")
            self.dump("kv_norm", list(range(16, 64)) + [86, 88, 90, 91])
            g(f"""
            v_accvgpr_read_b32 v11, a192
            v_mov_b32 v14, 0x3f80
            v_mov_b32 v15, 0
            v_lshl_add_u32 v12, v3, 4, v11
            v_lshl_add_u32 v13, v3, 3, v11
            ds_write_b64 v12, v[14:15] offset:{34*8}
            """)
            for i, (r, col) in enumerate(vq):
                g(f"v_cvt_pk_bf16_f32 v{PV+2*i}, v{r}, v{r+1}\nv_cvt_pk_bf16_f32 v{PV+2*i+1}, v{r+2}, v{r+3}")
                g(f"ds_write_b64 v11, {v(PV+2*i,2)} offset:{192 + 16*i}")
            self.stamp("prefm")
            self.softmax(220, 232)
            self.stamp("postfm")
        self.interleave([(x, "wq") for x in self.wq_groups()], self.capture(part1))
        self.dump("phik", list(range(220, 244)))
        for a, H in ((0, 220), (1, 232)):
            for st in range(3):
                g(f"ds_write_b128 v13, {v(H+4*st,4)} offset:{a*96 + st*32}")
        g("v_accvgpr_read_b32 v160, a193\nv_accvgpr_read_b32 v161, a194\nv_accvgpr_read_b32 v9, a195")
        g(f"v_cmp_gt_u32 vcc, 21, v2\ns_and_b32 s{S_T1}, s{S_WAVE}, 1\ns_mov_b64 {s2(S_MA)}, vcc")
        g("s_waitcnt lgkmcnt(0)\ns_barrier")
        self.stamp("Tbar")
        A0, B0 = 164, 196
        for ks in range(8):
            for rd in range(2):
                g(f"ds_read_b64_tr_b16 {v(A0+4*ks+2*rd,2)}, v160 offset:{(16*ks+rd)*336}")
                g(f"ds_read_b64_tr_b16 {v(B0+4*ks+2*rd,2)}, v161 offset:{(16*ks+rd)*336}")
            if ks >= 2:
                k = ks - 2
                g("s_waitcnt lgkmcnt(8)")
                cin = "0" if k == 0 else "v[92:107]"
                g(f"v_mfma_f32_32x32x16_bf16 v[92:107], {v(A0+4*k,4)}, {v(B0+4*k,4)}, {cin}")
        g("s_waitcnt lgkmcnt(4)")
        g(f"v_mfma_f32_32x32x16_bf16 v[92:107], {v(A0+24,4)}, {v(B0+24,4)}, v[92:107]")
        g("s_waitcnt lgkmcnt(0)")
        g(f"v_mfma_f32_32x32x16_bf16 v[92:107], {v(A0+28,4)}, {v(B0+28,4)}, v[92:107]")
        g(f"""
        s_cmp_lg_u32 s{S_T1}, 0
        s_cbranch_scc1 L_kvft1
        s_mov_b64 exec, {s2(S_MA)}     ; HZ_SKIP_BEGIN
        buffer_store_dwordx4 v[92:95], v9, {srd(SRD_WS)}, s{S_KVS} offen sc1
        buffer_store_dwordx4 v[96:99], v9, {srd(SRD_WS)}, s{S_KVS} offen offset:672 sc1
        buffer_store_dwordx4 v[100:103], v9, {srd(SRD_WS)}, s{S_KVS} offen offset:1344 sc1
        buffer_store_dwordx4 v[104:107], v9, {srd(SRD_WS)}, s{S_KVS} offen offset:2016 sc1
        s_branch L_kvdone              ; HZ_SKIP_END
L_kvft1:
        s_and_b32 s{S_MA}, s{S_MA}, 0x1fffff      ; HZ_SKIP_BEGIN
        s_mov_b32 s{S_MA+1}, 0
        s_mov_b64 exec, {s2(S_MA)}
        buffer_store_dwordx4 v[92:95], v9, {srd(SRD_WS)}, s{S_KVS} offen offset:2688 sc1
        buffer_store_dwordx4 v[96:99], v9, {srd(SRD_WS)}, s{S_KVS} offen offset:3024 sc1   ; HZ_SKIP_END
L_kvdone:
        s_mov_b64 exec, -1
        """)
        self.stamp("kvstore")

    def mark(self, name):
        for e in self.exp:
            if e.startswith("probe:"):
                _, a, b, k = e.split(":")
                ins = "s_memtime" if k.startswith("c") else "s_memrealtime"
                if name == a: self(f"{ins} s[86:87]")
                if name == b: self(f"{ins} s[88:89]")

    def probe_spin(self):
        for e in self.exp:
            if e.startswith("probe:"):
                _, a, b, k = e.split(":")
                self(f"""
                s_memrealtime s[90:91]
                s_waitcnt lgkmcnt(0)
                s_sub_u32 s92, s88, s86
                {f"s_lshr_b32 s92, s92, {k[1:]}" if k.startswith("c") else f"s_mul_i32 s92, s92, {k}"}
                s_add_u32 s92, s92, s90
L_probe:
                s_memrealtime s[90:91]
                s_waitcnt lgkmcnt(0)
                s_sub_u32 s93, s92, s90
                s_cmp_gt_i32 s93, 0
                s_cbranch_scc1 L_probe
                """)

    def dbg_span(self, word, invert):
        if "span" not in self.exp: return
        g = self
        lab = f"L_span{word}"
        g(f"""
        s_and_b32 s100, s2, 15
        s_cmp_lg_u32 s100, 0
        s_cbranch_scc1 {lab}
        s_cmp_lg_u32 s{S_WAVE}, 0
        s_cbranch_scc1 {lab}
        s_memrealtime s[100:101]
        s_waitcnt lgkmcnt(0)
        {"s_not_b32 s100, s98" if invert else "s_nop 0"}
        v_mov_b32 v9, {word*4}
        v_mov_b32 v10, s100
        s_mov_b64 exec, 1
        buffer_atomic_umax v10, v9, {srd(SRD_DBG)}, 0 offen sc1
        s_mov_b64 exec, -1
{lab}:
        """)

    def finish(self):
        g = self
        self.mark("end")
        self.probe_spin()
        self.dbg_span(3, False)
        if self.stamps:
            g("s_waitcnt lgkmcnt(0)")
            self.flush_stamps()
            g(f"""
            s_lshl_b32 s{S_T0}, s2, 2
            s_add_u32 s{S_T0}, s{S_T0}, s{S_WAVE}
            s_lshl_b32 s{S_T0}, s{S_T0}, 8
            s_add_u32 s{S_T0}, s{S_T0}, {WS_TS}
            v_lshlrev_b32 v9, 2, v1
            buffer_store_dword v255, v9, {srd(SRD_WS)}, s{S_T0} offen
            """)
        g("L_exit:\ns_endpgm\nL_code_end:")

    def pre_k_epilogue(self):
        pass

    def build(self):
        g = self
        self.prologue()
        self.dump("phifrag", list(range(140, 152)))
        self.pass1()
        self.dump("acc1", list(range(16, 84)))
        if self.stop != "pass1":
            self.dbg_span(10, False); self.mark("p1end")
            self.pre_k_epilogue()
            self.k_epilogue()
        if self.stop not in ("pass1", "kv"):
            self.rest()
        self.finish()

    def text(self):
        body, nins = hazard.fix([l.strip() for l in self.a.lines])
        hdr = open("parallel_sum__linear_kernel_hedgehog__moe_arch_mod__prompt.s.ref").read().split("\n")
        top = [l for l in hdr if l.startswith(";") and "@launch" not in l and "Override" not in l and "grid=ceil" not in l]
        out = "\n".join(top) + "\n"
        out += f"; @launch grid=(256,1,1) block=(256,1,1) lds={LDS_SIZE}\n"
        out += '.amdgcn_target "amdgcn-amd-amdhsa--gfx950"\n.text\n' + kernel_header(NAME)
        out += "\n".join("    " + l if not l.endswith(":") else l for l in body if l) + "\n"
        out += f""".section .rodata,"a"
.p2align 6
.amdhsa_kernel {NAME}
  .amdhsa_next_free_vgpr 512
  .amdhsa_next_free_sgpr 102
  .amdhsa_accum_offset 256
  .amdhsa_group_segment_fixed_size 0
  .amdhsa_kernarg_size 96
  .amdhsa_user_sgpr_count 2
  .amdhsa_user_sgpr_kernarg_segment_ptr 1
  .amdhsa_system_sgpr_workgroup_id_x 1
  .amdhsa_float_denorm_mode_32 3
.end_amdhsa_kernel
"""
        return out, nins


if __name__ == "__main__":
    import argparse, json
    import gen_rest
    ap = argparse.ArgumentParser()
    ap.add_argument("-o", default="k.s")
    ap.add_argument("--stop", default=None)
    ap.add_argument("--dump", default="")
    ap.add_argument("--stamps", default="")
    ap.add_argument("--notouch", action="store_true")
    ap.add_argument("--exp", default="")
    args = ap.parse_args()
    G = gen_rest.Full(stop=args.stop, dumps=[d for d in args.dump.split(",") if d], stamps=set(args.stamps.split(",")) if args.stamps else False, touch=not args.notouch, exp=[e for e in args.exp.split(",") if e])
    G.build()
    t, nins = G.text()
    open(args.o, "w").write(t)
    json.dump({"dumps": G.dump_index, "stamps": getattr(G, "stamp_names", [])}, open(args.o + ".json", "w"))
    print("wrote", args.o, "lines", t.count("\n"), "nops inserted", nins)
```

```python
from gen import *

S_RB64, S_CB, S_MU, S_RSEL, S_ROW0 = 20, 21, 22, 23, 12
S_QC = 13
S_WOG, S_WOL = 14, 15
S_WOS = 76
S_STA = 81
S_XO = 85
S_KVE, S_KVB = 79, 75
S_KVA, S_OS = 78, 84
CNT_KV, CNT_O, CNT_M = 0, 16, 32
SPIN_LIMIT = 200000

class Full(Gen):
    def poll(self, name, srd_n, vaddr_setup, target, nl=1):
        g = self
        lab = f"L_poll_{name}"
        g(vaddr_setup)
        g(f"s_mov_b32 exec_lo, {(1 << nl) - 1}\ns_mov_b32 exec_hi, 0")
        g(f"""
        s_mov_b32 s74, 0
{lab}:
        buffer_load_dword v10, v9, {srd(srd_n)}, 0 offen sc1
        s_add_u32 s74, s74, 1
        s_cmp_gt_u32 s74, {SPIN_LIMIT}
        s_cbranch_scc1 {lab}_out
        s_waitcnt vmcnt(0)
        v_cmp_ne_u32 vcc, {target}, v10
        s_cbranch_vccnz {lab}
{lab}_out:
        s_waitcnt vmcnt(0)
        s_mov_b64 exec, -1
        """)

    def poll_issue(self, srd_n, vaddr_setup, nl=1):
        g = self
        g(vaddr_setup)
        g(f"s_mov_b32 exec_lo, {(1 << nl) - 1}\ns_mov_b32 exec_hi, 0\nbuffer_load_dword v239, v238, {srd(srd_n)}, 0 offen sc1\ns_mov_b64 exec, -1")

    def poll_finish(self, name, srd_n, target, nl=1):
        g = self
        lab = f"L_poll_{name}"
        g(f"""
        s_mov_b32 exec_lo, {(1 << nl) - 1}
        s_mov_b32 exec_hi, 0
        s_mov_b32 s74, 0
        s_waitcnt vmcnt(0)
        v_cmp_ne_u32 vcc, {target}, v239
        s_cbranch_vccz {lab}_out
{lab}:
        buffer_load_dword v239, v238, {srd(srd_n)}, 0 offen sc1
        s_add_u32 s74, s74, 1
        s_cmp_gt_u32 s74, {SPIN_LIMIT}
        s_cbranch_scc1 {lab}_out
        s_waitcnt vmcnt(0)
        v_cmp_ne_u32 vcc, {target}, v239
        s_cbranch_vccnz {lab}
{lab}_out:
        s_waitcnt vmcnt(0)
        s_mov_b64 exec, -1
        """)

    def signal(self, name, cnt_sgpr_expr, drain=True):
        g = self
        if drain: g("s_waitcnt vmcnt(0)")
        g(f"""
        s_barrier
        s_cmp_lg_u32 s{S_WAVE}, 0
        s_cbranch_scc1 L_nosig_{name}
        """)
        g(cnt_sgpr_expr + " ; HZ_SKIP_BEGIN")
        g(f"""
        s_lshl_b32 s{S_T0}, s{S_T0}, 7
        v_mov_b32 v9, s{S_T0}
        v_mov_b32 v10, 1
        s_mov_b64 exec, 1
        buffer_atomic_add v10, v9, {srd(SRD_WS)}, 0 offen sc1
        s_mov_b64 exec, -1         ; HZ_SKIP_END
L_nosig_{name}:
        """)

    def publish_kv(self):
        g = self
        g(f"""
        s_cmp_lg_u32 s{S_HP}, 0
        s_cbranch_scc1 L_nostats
        s_lshl_b32 s{S_T0}, s{S_RB}, 7       ; HZ_SKIP_BEGIN
        s_lshl_b32 s{S_T1}, s{S_WAVE}, 5
        s_add_u32 s{S_T0}, s{S_T0}, s{S_T1}
        s_lshl_b32 s{S_T0}, s{S_T0}, 3
        s_add_u32 s{S_T0}, s{S_T0}, {WS_STATS}
        v_lshlrev_b32 v9, 3, v2
        v_mov_b32 v10, v91
        v_mov_b32 v11, v90
        s_mov_b32 exec_hi, 0
        buffer_store_dwordx2 v[10:11], v9, {srd(SRD_WS)}, s{S_T0} offen sc1
        s_mov_b64 exec, -1                   ; HZ_SKIP_END
L_nostats:
        """)
        g(f"""
        v_mul_u32_u24 v9, 6554, v1
        v_lshrrev_b32 v9, 16, v9
        v_mul_u32_u24 v10, 10, v9
        v_sub_u32 v10, v1, v10
        v_mul_u32_u24 v11, 1280, v9
        v_lshl_add_u32 v11, v10, 7, v11
        s_lshl_b32 s{S_T0}, s{S_SLOT}, 2
        s_add_u32 s{S_T0}, s{S_T0}, s{S_WAVE}
        s_mul_i32 s{S_T0}, s{S_T0}, {5*1280}
        s_mov_b32 exec_hi, 0x3ffff
        buffer_load_dword v159, v11, {srd(SRD_WO)}, s{S_T0} offen
        s_mov_b64 exec, -1
        s_waitcnt vmcnt(1)
        """)
        g(f"""
        v_readfirstlane_b32 s{S_T0}, v75
        s_cmp_eq_u32 s{S_T0}, 1
        s_cbranch_scc1 L_isready
        """)
        self.poll("ready", SRD_DBG, "v_mov_b32 v9, 240 ; HZ_SKIP_BEGIN", 1)
        g("s_nop 0 ; HZ_SKIP_END\nL_isready:")
        self.signal("kv", f"s_add_u32 s{S_T0}, s{S_HP}, {CNT_KV}", drain=False)
        self.stamp("kvsig")


    def moe_roles(self):
        g = self
        g(f"""
        s_lshr_b32 s{S_T0}, s{S_XCD}, 1
        s_lshr_b32 s{S_T1}, s{S_SLOT}, 3
        s_add_u32 s{S_T0}, s{S_T0}, s{S_T1}
        s_lshr_b32 s{S_T1}, s{S_SLOT}, 4
        s_lshl_b32 s{S_T1}, s{S_T1}, 3
        s_and_b32 s{S_T2}, s{S_SLOT}, 7
        s_add_u32 s{S_T1}, s{S_T1}, s{S_T2}
        s_mul_i32 s{S_MU}, s{S_XCD}, 14
        s_add_u32 s{S_MU}, s{S_MU}, s{S_T1}
        s_cmp_lt_u32 s{S_T1}, 14
        s_cselect_b32 s{S_MU}, s{S_MU}, 255
        s_bitcmp1_b32 s{S_T0}, 0
        s_cselect_b32 s{S_MU}, 255, s{S_MU}
        s_lshr_b32 s{S_T0}, s{S_SLOT}, 3
        s_lshl_b32 s{S_T1}, s{S_XCD}, 2
        s_add_u32 s{S_RB64}, s{S_T0}, s{S_T1}
        s_and_b32 s{S_CB}, s{S_SLOT}, 7
        s_lshl_b32 s{S_ROW0}, s{S_RB64}, 6
        s_lshl_b32 s{S_T0}, s{S_WAVE}, 4
        s_add_u32 s{S_ROW0}, s{S_ROW0}, s{S_T0}
        s_mul_i32 s{S_T1}, s{S_CB}, 160
        s_mov_b32 s{S_WOG}, s{S_T1}
        s_mul_i32 s{S_T0}, s{S_ROW0}, 1280
        s_add_u32 s{S_XO}, s{S_T0}, s{S_T1}
        s_lshl_b32 s{S_T0}, s{S_RB}, 1
        s_lshr_b32 s{S_T1}, s{S_WAVE}, 1
        s_add_u32 s{S_T0}, s{S_T0}, s{S_T1}
        s_mul_i32 s{S_T0}, s{S_T0}, 81920
        s_and_b32 s{S_T1}, s{S_WAVE}, 1
        s_mul_i32 s{S_T1}, s{S_T1}, 40960
        s_add_u32 s{S_T0}, s{S_T0}, s{S_T1}
        s_lshr_b32 s{S_T1}, s{S_HP}, 2
        s_mul_i32 s{S_T1}, s{S_T1}, 5120
        s_add_u32 s{S_T0}, s{S_T0}, s{S_T1}
        s_and_b32 s{S_T1}, s{S_HP}, 3
        s_lshl_b32 s{S_T1}, s{S_T1}, 8
        s_add_u32 s{S_T0}, s{S_T0}, s{S_T1}
        s_add_u32 s{S_OS}, s{S_T0}, {WS_O}
        """)

    WD = 160
    def moe_load_block(self, k):
        g = self
        lab = f"L_nomoeld{k}"
        g(f"s_cmp_ge_u32 s{S_MU}, 108\ns_cbranch_scc1 {lab}")
        if k == 0:
            g(f"""
            v_lshrrev_b32 v134, 1, v1                ; HZ_SKIP_BEGIN
            v_mul_u32_u24 v134, 3456, v134
            v_and_b32 v10, 1, v1
            v_lshl_add_u32 v134, v10, 4, v134
            v_lshlrev_b32 v135, 3, v0
            """)
        else:
            g("s_nop 0 ; HZ_SKIP_BEGIN")
        g(f"""
        s_and_b32 s{S_T0}, s{S_MU}, 3
        s_add_u32 s{S_T0}, s{S_T0}, {k}
        s_cmp_ge_u32 s{S_T0}, 5
        s_cselect_b32 s{S_T1}, 5, 0
        s_sub_u32 s{S_T3}, s{S_T0}, s{S_T1}
        s_mul_i32 s{S_T1}, s{S_WAVE}, 5
        s_add_u32 s{S_T3}, s{S_T3}, s{S_T1}
        s_mul_i32 s{S_T2}, s{S_T3}, {32*3456}
        s_lshl_b32 s{S_T0}, s{S_MU}, 5
        s_add_u32 s{S_T2}, s{S_T2}, s{S_T0}
        s_lshl_b32 s{S_T1}, s{S_T3}, 10
        s_add_u32 m0, s{S_T1}, {L_G}
        s_mul_i32 s{S_T0}, s{S_MU}, {16*1280}
        buffer_load_dwordx4 v134, {srd(SRD_G)}, s{S_T2} offen lds
        s_add_u32 m0, s{S_T1}, {L_U}
        v_cmp_gt_u32 vcc, 160, v0
        buffer_load_dwordx4 v134, {srd(SRD_U)}, s{S_T2} offen lds
        s_and_saveexec_b64 {s2(S_MA)}, vcc
        s_cbranch_execz {lab}_x
        """)
        us = list(range(16))[[0, 3, 6, 9, 12][k]:[3, 6, 9, 12, 16][k]]
        for u in us:
            g(f"s_add_u32 s{S_T1}, s{S_T0}, {u*1280}\nbuffer_load_dwordx2 {ac(self.WD+2*u,2)}, v135, {srd(SRD_D)}, s{S_T1} offen")
        g(f"{lab}_x:\ns_mov_b64 exec, -1 ; HZ_SKIP_END\n{lab}:")

    def p2_reads(self, n):
        i, ks = divmod(n, 4); b = n % 3
        base = 128 + (i & 1)
        out = []
        for t in range(2):
            for rd in range(2):
                out.append(f"ds_read_b64_tr_b16 {v(92+12*b+4*t+2*rd,2)}, v{base} offset:{(16*ks+rd)*80 + 64*t}")
        for rd in range(2):
            out.append(f"ds_read_b64_tr_b16 {v(160+4*b+2*rd,2)}, v{130 + (i & 1)} offset:{(16*ks+rd)*80}")
        return out

    def p2_base(self, i):
        r = i & 1
        return [f"v_add_u32 v{128+r}, s{S_QC}, v132", f"v_add_u32 v{130+r}, s{S_QC}, v133",
                f"s_add_u32 s{S_QC}, s{S_QC}, 5120", f"s_cmp_eq_u32 s{S_QC}, 51200", f"s_cselect_b32 s{S_QC}, 0, s{S_QC}"]

    def pass2(self):
        g = self
        g(f"""
        v_bfe_u32 v9, v1, 2, 2
        v_lshlrev_b32 v9, 1, v9
        v_add_u32 v9, v9, v3
        v_lshlrev_b32 v9, 1, v9
        v_mul_u32_u24 v9, 80, v9
        v_bfe_u32 v10, v1, 4, 1
        v_and_b32 v11, 3, v1
        v_lshl_add_u32 v10, v10, 2, v11
        v_lshl_add_u32 v9, v10, 3, v9
        v_add_u32 v132, {L_WQ}, v9
        s_lshl_b32 s{S_T0}, s{S_WAVE}, 6
        v_add_u32 v133, s{S_T0}, v132
        s_mul_i32 s{S_QC}, s{S_C0}, 5120
        """)
        for n in range(5): g(f"v_accvgpr_read_b32 v{152+n}, a{200+n}")
        self.wog = self.wo_groups()
        early = self.wog[:10]
        for x in self.p2_base(0): g(x)
        for x in self.p2_reads(0): g(x)
        for x in self.p2_reads(1): g(x)
        for n in range(40):
            i, ks = divmod(n, 4); b = n % 3
            if ks == 1 and i < 9:
                for x in self.p2_base(i + 1): g(x)
            g("s_waitcnt lgkmcnt(0)" if n == 39 else "s_waitcnt lgkmcnt(6)")
            rd = self.p2_reads(n + 2) if n + 2 < 40 else []
            XP = ac(4*n, 4)
            WF = lambda t: 92 + 12*b + 4*t
            cin = lambda r, k: "0" if n == 0 else v(r, k)
            g(f"v_mfma_f32_32x32x16_bf16 v[16:31], {v(WF(0),4)}, {XP}, {cin(16,16)}")
            for x in rd[0:3]: g(x)
            g(f"v_mfma_f32_32x32x16_bf16 v[32:47], {v(WF(1),4)}, {XP}, {cin(32,16)}")
            for x in rd[3:6]: g(x)
            g(f"v_mfma_f32_4x4x4_16b_bf16 v[76:79], {v(160+4*b,2)}, v[84:85], {cin(76,4)}")
            g(f"v_mfma_f32_4x4x4_16b_bf16 v[80:83], {v(160+4*b+2,2)}, v[84:85], {cin(80,4)}")
            if n in (3, 11, 19, 27, 35): self.moe_load_block((n - 3) // 8)
            if n >= 18 and n % 2 == 0 and early:
                for x in early.pop(0): g(x)
            if n == 36: self.kv_poll_issue()
            if n in (9, 19, 29): self.stamp(f"p2_{n}")
        while early:
            for x in early.pop(0): g(x)
        self.stamp("p2end")

    def q_epilogue_a(self):
        g = self
        self.smtag = "q"
        for n in range(3):
            g(f"v_accvgpr_read_b32 v{134+n}, a{205+n}\nv_accvgpr_read_b32 v{68+n}, a{211+n}")
        self.stats_and_colsum(False)
        quads = [(16+4*j, 8*j) for j in range(4)] + [(32, 32)]
        g(f"v_lshlrev_b32 v9, 4, v3\nv_add_u32 v9, {L_CS + 512}, v9")
        self.norm_reads(quads, 512, 160)
        self.norm_apply(quads, 160, 0)
        PK = 244
        for i in range(10):
            g(f"v_cvt_pk_bf16_f32 v{PK+i}, v{16+2*i}, v{16+2*i+1}")
        self.stamp("q_cvt")

    def q_epilogue_b(self):
        g = self
        self.featmap_mfma(244)
        for i in range(4): g(f"v_accvgpr_read_b32 v{56+i}, a{196+i}")
        self.softmax(220, 232)
        self.stamp("qdone")

    def xres_groups(self):
        XR, ST = self.XR, self.ST
        grp = []
        for n in range(3):
            grp.append([f"buffer_load_dwordx4 {v(XR+4*n,4)}, v{134+n}, {srd(SRD_X)}, s{S_XO} offen"])
            pre = [f"s_lshl_b32 s{S_T0}, s{S_ROW0}, 3", f"s_add_u32 s{S_STA}, s{S_T0}, {WS_STATS}"] if n == 0 else []
            grp.append(pre + [f"v_lshlrev_b32 v67, 3, v{68+n}", f"buffer_load_dwordx2 {v(ST+2*n,2)}, v67, {srd(SRD_WS)}, s{S_STA} offen sc1"])
        return grp

    def q_epilogue(self):
        kg = self.kv_load_groups()
        self.interleave([(x, "kvp") for x in kg[:8]], self.capture(self.q_epilogue_a))
        self.interleave([(x, "xres") for x in self.xres_groups()] + [(x, "kvp") for x in kg[8:]], self.capture(self.q_epilogue_b))
        self.dump("phiq", list(range(220, 244)))
        self.vmwait("xres")
        self.interleave([(x, "wo") for x in self.wog[10:18]], self.capture(self.residual))
        self.stamp("resid")

    def kv_poll_issue(self):
        g = self
        g(f"""
        s_add_u32 s{S_T0}, s{S_HP}, {CNT_KV}
        s_lshl_b32 s{S_T0}, s{S_T0}, 7
        v_mov_b32 v238, s{S_T0}
        v_cmp_eq_u32 vcc, 1, v1
        v_cndmask_b32 v238, v238, {CNT_KV * 128}, vcc
        v_lshlrev_b32 v240, 6, v1
        s_mov_b32 exec_lo, 15
        s_mov_b32 exec_hi, 0
        buffer_load_dword v241, v240, {srd(SRD_DBG)}, 0 offen sc1
        s_mov_b32 exec_lo, 3
        buffer_load_dword v239, v238, {srd(SRD_WS)}, 0 offen sc1
        s_mov_b64 exec, -1
        """)

    def kv_wait(self):
        g = self
        self.poll_finish("kv", SRD_WS, 16, nl=2)
        self.stamp("kvseen")
        g(f"""
        s_mov_b32 exec_lo, 15
        s_mov_b32 exec_hi, 0
        v_cmp_ne_u32 vcc, 64, v241
        s_mov_b64 exec, -1
        s_cbranch_vccz L_rmaxok
        """)
        self.poll("rmax", SRD_DBG, "v_lshlrev_b32 v9, 6, v1 ; HZ_SKIP_BEGIN", 64, nl=4)
        g(f"""
        s_nop 0 ; HZ_SKIP_END
L_rmaxok:
        s_mul_i32 s{S_KVA}, s{S_HP}, {16*KVP_SZ}
        s_add_u32 s{S_KVA}, s{S_KVA}, {WS_KVP}
        s_add_u32 s{S_KVE}, s{S_KVA}, {16*KVP_SZ}
        s_mov_b32 s{S_KVB}, s{S_KVA}
        s_and_b32 s{S_T0}, s{S_SLOT}, 7
        s_mul_i32 s{S_T0}, s{S_T0}, {2*KVP_SZ}
        s_add_u32 s{S_KVA}, s{S_KVA}, s{S_T0}
        v_lshlrev_b32 v64, 4, v0
        s_mul_i32 s{S_T0}, s{S_WAVE}, {41*16}
        s_add_u32 s{S_T0}, s{S_T0}, 4096
        v_lshl_add_u32 v65, v1, 4, s{S_T0}
        s_mov_b32 s{S_MB}, -1
        s_mov_b32 s{S_MB+1}, 0x1ff
        v_lshlrev_b32 v66, 5, v1
        v_add_u32 v66, {WS_RMAX}, v66
        """)

    def kv_load_groups(self):
        grp = []
        for p in range(16):
            grp.append([f"buffer_load_dwordx4 {ac(4*p,4)}, v64, {srd(SRD_WS)}, s{S_KVA} offen sc1", f"s_mov_b64 exec, {s2(S_MB)}",
                        ])
            grp[-1] = [f"buffer_load_dwordx4 {ac(4*p,4)}, v64, {srd(SRD_WS)}, s{S_KVA} offen sc1"]
            grp.append([f"s_mov_b64 exec, {s2(S_MB)}", f"buffer_load_dwordx4 {ac(64+4*p,4)}, v65, {srd(SRD_WS)}, s{S_KVA} offen sc1",
                        "s_mov_b64 exec, -1", f"s_add_u32 s{S_KVA}, s{S_KVA}, {KVP_SZ}",
                        f"s_cmp_eq_u32 s{S_KVA}, s{S_KVE}", f"s_cselect_b32 s{S_KVA}, s{S_KVB}, s{S_KVA}"])
        grp.append([f"buffer_load_dwordx4 v[48:51], v66, {srd(SRD_WS)}, 0 offen sc1"])
        grp.append([f"buffer_load_dwordx4 v[52:55], v66, {srd(SRD_WS)}, 0 offen offset:16 sc1"])
        return grp

    def argmax(self):
        g = self
        g(f"""
        v_cmp_gt_f32 vcc, v50, v48
        v_cndmask_b32 v48, v48, v50, vcc
        v_cndmask_b32 v49, v49, v51, vcc
        v_cmp_gt_f32 vcc, v52, v48
        v_cndmask_b32 v48, v48, v52, vcc
        v_cndmask_b32 v49, v49, v53, vcc
        v_cmp_gt_f32 vcc, v54, v48
        v_cndmask_b32 v48, v48, v54, vcc
        v_cndmask_b32 v49, v49, v55, vcc
        v_mov_b32 v50, v48
        """)
        for ctl in ("row_shr:1 row_mask:0xf bank_mask:0xf", "row_shr:2 row_mask:0xf bank_mask:0xf",
                    "row_shr:4 row_mask:0xf bank_mask:0xf", "row_shr:8 row_mask:0xf bank_mask:0xf",
                    "row_bcast:15 row_mask:0xa bank_mask:0xf", "row_bcast:31 row_mask:0xc bank_mask:0xf"):
            g(f"v_max_f32_dpp v50, v50, v50 {ctl}")
        g(f"""
        v_readlane_b32 s{S_RSEL}, v50, 63
        v_cmp_eq_f32 vcc, s{S_RSEL}, v48
        s_ff1_i32_b64 s{S_T0}, vcc
        s_max_i32 s{S_T0}, s{S_T0}, 0
        v_readlane_b32 s{S_IDX}, v49, s{S_T0}
        s_nop 0
        s_and_b32 s{S_IDX}, s{S_IDX}, 2047
        """)

    def moe(self):
        g = self
        WD = self.WD
        g("v_rcp_f32 v67, v67")
        for d in range(5):
            g(f"""
            v_lshlrev_b32 v168, 16, v{60+d}
            v_and_b32 v169, 0xffff0000, v{60+d}
            v_sub_f32 v168, v168, v66
            v_sub_f32 v169, v169, v66
            v_cvt_pk_bf16_f32 v168, v168, v169
            v_lshlrev_b32 v169, 16, v168
            v_and_b32 v168, 0xffff0000, v168
            v_mul_f32 v169, v169, v67
            v_mul_f32 v168, v168, v67
            v_cvt_pk_bf16_f32 v{60+d}, v169, v168
            """)
        g(f"""
        s_mul_i32 s{S_T0}, s{S_WAVE}, 1280
        s_add_u32 s{S_T0}, s{S_T0}, {L_XS}
        v_mul_u32_u24 v9, 20, v1
        v_add_u32 v9, s{S_T0}, v9
        ds_write_b32 v9, v60
        ds_write_b32 v9, v61 offset:4
        ds_write_b32 v9, v62 offset:8
        ds_write_b32 v9, v63 offset:12
        ds_write_b32 v9, v64 offset:16
        v_bfe_u32 v9, v1, 2, 2
        v_lshl_add_u32 v9, v3, 3, v9
        s_mul_i32 s{S_T1}, s{S_WAVE}, 160
        v_add_u32 v9, s{S_T1}, v9
        v_lshlrev_b32 v9, 5, v9
        v_and_b32 v10, 3, v1
        v_lshl_add_u32 v9, v10, 3, v9
        v_bfe_u32 v10, v1, 4, 1
        v_mul_u32_u24 v10, {L_U - L_G}, v10
        v_add_u32 v9, v9, v10
        v_add_u32 v9, {L_G}, v9
        s_mul_i32 s{S_T1}, s{S_WAVE}, 320
        s_add_u32 s{S_T0}, s{S_T0}, s{S_T1}
        v_lshlrev_b32 v10, 4, v3
        v_add_u32 v10, s{S_T0}, v10
        s_waitcnt lgkmcnt(0)
        """)
        def rd(ks):
            A = 32 + 8*ks
            g(f"""
            ds_read_b64_tr_b16 {v(A,2)}, v9 offset:{(16*ks)*32}
            ds_read_b64_tr_b16 {v(A+2,2)}, v9 offset:{(16*ks+4)*32}
            ds_read_b128 {v(A+4,4)}, v10 offset:{32*ks}
            """)
        for ks in range(4): rd(ks)
        for ks in range(10):
            if ks + 4 < 10:
                g("s_waitcnt lgkmcnt(9)"); rd(ks + 4) if False else None
                g(f"v_mfma_f32_32x32x16_bf16 v[16:31], {v(32+8*ks,4)}, {v(36+8*ks,4)}, {'0' if ks == 0 else 'v[16:31]'}")
                rd(ks + 4)
            else:
                g(f"s_waitcnt lgkmcnt({3*(9-ks)})")
                g(f"v_mfma_f32_32x32x16_bf16 v[16:31], {v(32+8*ks,4)}, {v(36+8*ks,4)}, v[16:31]")
        g(f"""
        s_lshl_b32 s{S_T0}, s{S_WAVE}, 7
        s_add_u32 s{S_T0}, s{S_T0}, {L_HP}
        v_lshlrev_b32 v9, 4, v3
        v_add_u32 v9, s{S_T0}, v9
        s_mov_b32 exec_lo, 1
        s_mov_b32 exec_hi, 1
        ds_write_b128 v9, v[16:19]
        ds_write_b128 v9, v[20:23] offset:32
        ds_write_b128 v9, v[24:27] offset:64
        ds_write_b128 v9, v[28:31] offset:96
        s_mov_b64 exec, -1
        s_waitcnt lgkmcnt(0)
        s_barrier
        v_and_b32 v9, 15, v1
        v_lshlrev_b32 v9, 2, v9
        v_add_u32 v9, {L_HP}, v9
        ds_read_b32 v160, v9
        ds_read_b32 v161, v9 offset:128
        ds_read_b32 v162, v9 offset:256
        ds_read_b32 v163, v9 offset:384
        ds_read_b32 v164, v9 offset:64
        ds_read_b32 v165, v9 offset:192
        ds_read_b32 v166, v9 offset:320
        ds_read_b32 v167, v9 offset:448
        s_waitcnt lgkmcnt(0)
        v_add_f32 v160, v160, v161
        v_add_f32 v162, v162, v163
        v_add_f32 v164, v164, v165
        v_add_f32 v166, v166, v167
        v_add_f32 v160, v160, v162
        v_add_f32 v164, v164, v166
        """)
        g.rnd_bf16(160, 160); g.rnd_bf16(164, 164)
        g(f"""
        v_mul_f32 v161, 0xbfb8aa3b, v160
        v_exp_f32 v161, v161
        v_add_f32 v161, 1.0, v161
        v_rcp_f32 v161, v161
        v_mul_f32 v160, v160, v161
        """)
        g.rnd_bf16(160, 160)
        g("v_mul_f32 v160, v160, v164")
        g.rnd_bf16(160, 160)
        g("""
        v_mov_b32 v161, v160
        s_nop 1
        v_mov_b32_dpp v161, v160 row_shl:1 row_mask:0xf bank_mask:0xf
        s_nop 1
        v_cvt_pk_bf16_f32 v160, v160, v161
        """)
        for i in range(4): g(f"v_mov_b32 v{16+i}, 0")
        g("s_mov_b32 s74, 0x05040100\nv_mov_b32 v26, s74\ns_mov_b32 s74, 0x07060302\nv_mov_b32 v27, s74")
        for p in range(8):
            a0, a1 = WD + 4*p, WD + 4*p + 2
            g(f"""
            v_readlane_b32 s74, v160, {2*p}
            v_accvgpr_read_b32 v20, a{a0}
            v_accvgpr_read_b32 v21, a{a0+1}
            v_accvgpr_read_b32 v22, a{a1}
            v_accvgpr_read_b32 v23, a{a1+1}
            v_perm_b32 v24, v22, v20, v26
            v_perm_b32 v25, v22, v20, v27
            v_perm_b32 v28, v23, v21, v26
            v_perm_b32 v29, v23, v21, v27
            v_dot2c_f32_bf16 v16, s74, v24
            v_dot2c_f32_bf16 v17, s74, v25
            v_dot2c_f32_bf16 v18, s74, v28
            v_dot2c_f32_bf16 v19, s74, v29
            """)
        g("s_nop 2")

    def kv_addresses(self):
        g = self
        for k, (gi, out1, out2) in enumerate(((0, 196, 197), (256, 198, 199))):
            if k == 0: g("v_mov_b32 v9, v0")
            else: g(f"s_mul_i32 s{S_T0}, s{S_WAVE}, 41\ns_add_u32 s{S_T0}, s{S_T0}, 256\nv_add_u32 v9, s{S_T0}, v1")
            g(f"""
            v_cmp_lt_u32 vcc, 209, v9
            v_cndmask_b32 v10, 0, 1, vcc
            v_mul_u32_u24 v11, 210, v10
            v_sub_u32 v9, v9, v11
            v_mul_u32_u24 v11, 3121, v9
            v_lshrrev_b32 v11, 16, v11
            v_mul_u32_u24 v12, 21, v11
            v_sub_u32 v12, v9, v12
            v_lshrrev_b32 v13, 1, v11
            v_and_b32 v14, 1, v11
            v_cmp_lt_u32 vcc, 7, v11
            v_subrev_u32 v15, 4, v11
            v_cndmask_b32 v13, v13, v15, vcc
            v_cndmask_b32 v14, v14, 0, vcc
            v_lshrrev_b32 v15, 1, v13
            v_and_b32 v13, 1, v13
            v_mul_u32_u24 v15, 1024, v15
            v_lshl_add_u32 v15, v13, 9, v15
            v_lshl_add_u32 v15, v14, 3, v15
            v_mul_u32_u24 v13, 3072, v10
            v_add_u32 v15, v15, v13
            v_add_u32 v15, {L_KVF}, v15
            v_lshlrev_b32 v13, 2, v10
            v_sub_u32 v13, v12, v13
            v_add_u32 v14, 20, v13
            v_cmp_gt_i32 vcc, 0, v13
            v_cndmask_b32 v13, v13, v14, vcc
            v_subrev_u32 v14, 16, v13
            v_lshrrev_b32 v60, 3, v13
            v_and_b32 v61, 7, v13
            v_lshrrev_b32 v62, 1, v14
            v_and_b32 v63, 1, v14
            v_add_u32 v63, 8, v63
            v_cmp_lt_u32 vcc, 15, v13
            v_cndmask_b32 v60, v60, v62, vcc
            v_cndmask_b32 v61, v61, v63, vcc
            v_lshrrev_b32 v62, 2, v61
            v_lshlrev_b32 v62, 3, v62
            v_lshl_add_u32 v62, v60, 2, v62
            v_and_b32 v61, 3, v61
            v_add_u32 v62, v62, v61
            v_cmp_eq_u32 vcc, 20, v12
            v_cndmask_b32 v63, v62, 22, vcc
            v_cndmask_b32 v62, v62, 18, vcc
            v_lshl_add_u32 v62, v62, 4, v15
            v_lshl_add_u32 v63, v63, 4, v15
            v_accvgpr_write_b32 a{out1}, v62
            v_accvgpr_write_b32 a{out2}, v63
            """)

    def kv_reduce_and_o(self):
        g = self
        for n in range(3):
            g(f"v_accvgpr_read_b32 v{137+n}, a{208+n}\nv_accvgpr_read_b32 v{140+n}, a{211+n}\nv_accvgpr_read_b32 v{143+n}, a{214+n}")
        g.vmwait("kvp")
        self.stamp("kvdata")
        g(f"s_cmp_ge_u32 s{S_MU}, 108\ns_cbranch_scc1 L_noxrow\ns_nop 0 ; HZ_SKIP_BEGIN")
        self.argmax()
        g(f"""
        v_mul_u32_u24 v9, 20, v1
        s_mul_i32 s{S_T1}, s{S_IDX}, 1280
        buffer_load_dwordx4 v[60:63], v9, {srd(SRD_X)}, s{S_T1} offen
        buffer_load_dword v64, v9, {srd(SRD_X)}, s{S_T1} offen offset:16
        s_lshl_b32 s{S_T1}, s{S_IDX}, 3
        s_add_u32 s{S_T1}, s{S_T1}, {WS_STATS}
        v_mov_b32 v9, 0
        buffer_load_dwordx2 v[66:67], v9, {srd(SRD_WS)}, s{S_T1} offen sc1   ; HZ_SKIP_END
L_noxrow:
        """)
        def reduce():
            for base, acc in ((0, 16), (64, 92)):
                for e in range(4): g(f"v_accvgpr_read_b32 v{acc+e}, a{base+e}")
                for p in range(1, 16):
                    t = acc + 4 + 4 * (p & 1)
                    for e in range(4): g(f"v_accvgpr_read_b32 v{t+e}, a{base+4*p+e}")
                    g(f"v_pk_add_f32 {v(acc,2)}, {v(acc,2)}, {v(t,2)}\nv_pk_add_f32 {v(acc+2,2)}, {v(acc+2,2)}, {v(t+2,2)}")
        self.interleave([(x, "wo") for x in self.wog[18:]], self.capture(reduce))
        self.stamp("r_sum")
        g(f"""
        v_cvt_pk_bf16_f32 v16, v16, v17
        v_cvt_pk_bf16_f32 v17, v18, v19
        v_cvt_pk_bf16_f32 v92, v92, v93
        v_cvt_pk_bf16_f32 v93, v94, v95
        ds_write_b64 v56, v[16:17]
        ds_write_b64 v57, v[16:17]
        s_mov_b64 exec, {s2(S_MB)}
        ds_write_b64 v58, v[92:93]
        ds_write_b64 v59, v[92:93]
        s_mov_b64 exec, -1
        s_waitcnt lgkmcnt(0)
        s_barrier
        v_lshlrev_b32 v9, 4, v1
        v_add_u32 v9, {L_KVF}, v9
        """)
        self.stamp("r_bar")
        for a in range(2):
            for t in range(3):
                g(f"ds_read_b128 {v(92+12*a+4*t,4)}, v9 offset:{a*3072 + t*1024}")
        self.dump("kvf", list(range(92, 116)))
        for a, (acc, H) in enumerate(((16, 220), (32, 232))):
            g(f"s_waitcnt lgkmcnt({3 - 3*a})")
            for t in range(3):
                g(f"v_mfma_f32_32x32x16_bf16 {v(acc,16)}, {v(92+12*a+4*t,4)}, {v(H+4*t,4)}, {'0' if t == 0 else v(acc,16)}")
        self.dump("num", list(range(16, 48)))
        g("v_accvgpr_read_b32 v10, a217\nv_accvgpr_read_b32 v11, a218\nv_mov_b32 v12, 0x358637bd")
        for a, (acc, P) in enumerate(((16, 160), (32, 166))):
            g(f"v_add_f32 v{acc+10}, v{acc+10}, v12\nv_rcp_f32 v{acc+10}, v{acc+10}")
        for a, (acc, P) in enumerate(((16, 160), (32, 166))):
            for i in range(5):
                g(f"v_pk_mul_f32 {v(acc+2*i,2)}, {v(acc+2*i,2)}, {v(acc+10,2)} op_sel_hi:[1,0]")
            for i in range(5):
                g(f"v_cvt_pk_bf16_f32 v{P+i}, v{acc+2*i}, v{acc+2*i+1}")
        self.dump("o", list(range(160, 165)) + list(range(166, 171)))
        g(f"""
        v_mov_b32 v172, v164
        v_mov_b32 v173, v170
        s_nop 1
        v_permlane32_swap_b32 v172, v173
        buffer_store_dwordx4 v[160:163], v10, {srd(SRD_WS)}, s{S_OS} offen sc1
        buffer_store_dwordx2 v[172:173], v11, {srd(SRD_WS)}, s{S_OS} offen offset:2048 sc1
        buffer_store_dwordx4 v[166:169], v10, {srd(SRD_WS)}, s{S_OS} offen offset:3072 sc1
        """)
        self.stamp("o_store")
        g(f"s_cmp_lt_u32 s{S_MU}, 108\ns_cbranch_scc1 L_noarg2\ns_nop 0 ; HZ_SKIP_BEGIN")
        self.argmax()
        g("s_nop 0 ; HZ_SKIP_END\nL_noarg2:")
        self.stamp("o_wo8")
        g("s_waitcnt vmcnt(0)")
        self.stamp("o_drain")
        self.signal("o", f"s_add_u32 s{S_T0}, s{S_RB}, {CNT_O}", drain=False)
        self.stamp("osig")

    XR, RS, ST = 16, 176, 28
    NA = 8
    def wo_groups(self):
        grp = []
        for j in (3, 4, 0, 1, 2):
            for n in range(5):
                gl = []
                if n == 0:
                    gl += [f"s_add_u32 s{S_T3}, s{S_WAVE}, {4*j}", f"s_mul_i32 s{S_WOL}, s{S_T3}, 5120",
                           f"s_mul_i32 s{S_T4}, s{S_T3}, 13108", f"s_lshr_b32 s{S_T4}, s{S_T4}, 16",
                           f"s_mul_i32 s{S_T4}, s{S_T4}, {120*1280}", f"s_mul_i32 s{S_T3}, s{S_T3}, {8*1280}",
                           f"s_add_u32 s{S_T3}, s{S_T3}, s{S_T4}", f"s_add_u32 s{S_WOS}, s{S_T3}, s{S_WOG}"]
                gl += [f"s_add_u32 m0, s{S_WOL}, {L_WO + n*1024}", "s_nop 0",
                       f"buffer_load_dwordx4 v{152+n}, {srd(SRD_WO)}, s{S_WOS} offen lds"]
                grp.append(gl)
        return grp

    def c_addresses(self):
        g = self
        for n in range(5):
            g(f"""
            v_add_u32 v9, {64*n}, v1
            v_mul_u32_u24 v10, 6554, v9
            v_lshrrev_b32 v10, 16, v10
            v_mul_u32_u24 v11, 10, v10
            v_sub_u32 v11, v9, v11
            v_bfe_u32 v12, v10, 3, 1
            v_bfe_u32 v13, v10, 2, 1
            v_lshl_add_u32 v12, v12, 1, v13
            v_mul_u32_u24 v12, 40, v12
            v_lshrrev_b32 v13, 4, v10
            v_lshl_add_u32 v12, v13, 2, v12
            v_and_b32 v13, 3, v10
            v_add_u32 v12, v12, v13
            v_mul_u32_u24 v12, 1280, v12
            v_lshl_add_u32 v12, v11, 4, v12
            v_accvgpr_write_b32 a{200+n}, v12
            """)
            if n < 3:
                g(f"""
                v_min_u32 v10, 15, v10
                v_mul_u32_u24 v12, 1280, v10
                v_lshl_add_u32 v12, v11, 4, v12
                v_accvgpr_write_b32 a{205+n}, v12
                v_mul_u32_u24 v12, 336, v10
                v_lshl_add_u32 v12, v11, 5, v12
                v_accvgpr_write_b32 a{208+n}, v12
                v_accvgpr_write_b32 a{211+n}, v10
                v_lshlrev_b32 v12, 5, v11
                v_accvgpr_write_b32 a{214+n}, v12
                """)

    def o_addresses(self):
        g = self
        g("""
        v_lshrrev_b32 v9, 4, v2
        v_mul_u32_u24 v9, 20480, v9
        v_and_b32 v10, 15, v2
        v_lshl_add_u32 v9, v10, 4, v9
        v_lshl_add_u32 v10, v3, 10, v9
        v_lshl_add_u32 v11, v3, 3, v9
        v_accvgpr_write_b32 a217, v10
        v_accvgpr_write_b32 a218, v11
        """)

    def residual(self):
        g = self
        XR, RS, ST = self.XR, self.RS, self.ST
        for n in range(3):
            xr, rs, st = XR + 4*n, RS + 8*n, ST + 2*n
            g(f"v_rcp_f32 v{st+1}, v{st+1}")
            for d in range(4):
                g(f"""
                v_lshlrev_b32 v10, 16, v{xr+d}
                v_and_b32 v11, 0xffff0000, v{xr+d}
                v_sub_f32 v12, v10, v{st}
                v_sub_f32 v13, v11, v{st}
                v_cvt_pk_bf16_f32 v12, v12, v13
                v_lshlrev_b32 v13, 16, v12
                v_and_b32 v12, 0xffff0000, v12
                v_mul_f32 v13, v13, v{st+1}
                v_mul_f32 v12, v12, v{st+1}
                v_cvt_pk_bf16_f32 v12, v13, v12
                v_lshlrev_b32 v13, 16, v12
                v_and_b32 v12, 0xffff0000, v12
                v_add_f32 v{rs+2*d}, v13, v10
                v_add_f32 v{rs+2*d+1}, v12, v11
                """)

    def phase_c(self):
        g = self
        XR, RS, ST = self.XR, self.RS, self.ST
        self.stamp("argmax")
        g(f"s_cmp_ge_u32 s{S_MU}, 108\ns_cbranch_scc1 L_wodone")
        g("s_nop 0 ; HZ_SKIP_BEGIN")
        self.moe()
        g(f"""
        s_mul_i32 s{S_T0}, s{S_MU}, 2560
        s_add_u32 s{S_T0}, s{S_T0}, {WS_Y}
        v_lshlrev_b32 v9, 4, v0
        v_cmp_gt_u32 vcc, 160, v0
        s_and_saveexec_b64 {s2(S_MA)}, vcc
        s_cbranch_execz L_noy
        buffer_store_dwordx4 v[16:19], v9, {srd(SRD_WS)}, s{S_T0} offen sc1
L_noy:
        s_mov_b64 exec, -1
        s_nop 0 ; HZ_SKIP_END
L_wodone:
        """)
        self.stamp("moedone"); self.mark("moedone")
        g(f"""
        v_bfe_u32 v10, v1, 5, 1
        v_lshlrev_b32 v10, 3, v10
        v_bfe_u32 v11, v1, 4, 1
        v_lshl_add_u32 v10, v11, 2, v10
        v_bfe_u32 v11, v1, 2, 2
        v_add_u32 v10, v10, v11
        v_mul_u32_u24 v10, 160, v10
        v_and_b32 v11, 3, v1
        v_lshl_add_u32 v10, v11, 3, v10
        v_add_u32 v236, {L_WO}, v10
        v_add_u32 v237, {L_WO + 10*5120}, v10
        """)
        NA = self.NA
        def wo_reads(ks):
            base = 236 + ks // 10
            out = []
            for ct in range(5):
                for rd in range(2):
                    dst = ac(20*ks + 4*ct + 2*rd, 2) if ks < NA else v(40 + 20*(ks % 3) + 4*ct + 2*rd, 2)
                    out.append(f"ds_read_b64_tr_b16 {dst}, v{base} offset:{(ks % 10)*5120 + rd*2560 + ct*32}")
            return out
        self.poll_issue(SRD_WS, f"s_lshr_b32 s{S_T0}, s{S_RB64}, 1\ns_add_u32 s{S_T0}, s{S_T0}, {CNT_O}\ns_lshl_b32 s{S_T0}, s{S_T0}, 7\nv_mov_b32 v238, s{S_T0}")
        for ks in range(NA + 2):
            for x in wo_reads(ks): g(x)
            if ks < NA + 1: g("s_waitcnt lgkmcnt(5)")
        self.poll_finish("o", SRD_WS, 16)
        g(f"s_cmp_ge_u32 s{S_MU}, 108\ns_cbranch_scc1 L_nomoesig")
        g("s_nop 0 ; HZ_SKIP_BEGIN")
        self.signal("moe", f"s_and_b32 s{S_T0}, s{S_MU}, 3\ns_add_u32 s{S_T0}, s{S_T0}, {CNT_M}", drain=False)
        g("s_nop 0 ; HZ_SKIP_END\nL_nomoesig:")
        self.stamp("oseen"); self.dbg_span(8, False); self.mark("oseen")
        g(f"""
        s_mul_i32 s{S_T0}, s{S_RB64}, 81920
        s_mul_i32 s{S_T1}, s{S_WAVE}, 20480
        s_add_u32 s{S_T0}, s{S_T0}, s{S_T1}
        s_add_u32 s{S_T0}, s{S_T0}, {WS_O}
        v_lshlrev_b32 v9, 4, v1
        """)
        self.vm = []
        regs_o = list(range(100, 128, 4)) + list(range(146, 174, 4)) + [220, 224, 228, 232, 240, 244]
        assert len(regs_o) == 20, len(regs_o)
        def oload(ks):
            g(f"buffer_load_dwordx4 {v(regs_o[ks],4)}, v9, {srd(SRD_WS)}, s{S_T0} offen sc1\ns_add_u32 s{S_T0}, s{S_T0}, 1024")
            g.vmi(f"o{ks}")
        AHEAD = 10
        for ks in range(AHEAD): oload(ks)
        self.stamp("c_issued")
        for ks in range(20):
            if ks == 0: g("s_waitcnt lgkmcnt(0)")
            elif ks >= NA: g("s_waitcnt lgkmcnt(5)" if ks < 18 else ("s_waitcnt lgkmcnt(10)" if ks < 19 else "s_waitcnt lgkmcnt(0)"))
            g.vmwait(f"o{ks}")
            if ks in (0, 5, 10, 15): self.stamp(f"c_o{ks}")
            rd = wo_reads(ks + 2) if NA <= ks < 18 else []
            for ct in range(5):
                cin = "0" if ks == 0 else v(16+4*ct, 4)
                A = ac(20*ks + 4*ct, 4) if ks < NA else v(40 + 20*(ks % 3) + 4*ct, 4)
                g(f"v_mfma_f32_16x16x32_bf16 {v(16+4*ct,4)}, {A}, {v(regs_o[ks],4)}, {cin}")
                for x in rd[2*ct:2*ct+2]: g(x)
            if ks + AHEAD < 20: oload(ks + AHEAD)
        self.stamp("cmfma"); self.mark("cmfma")
        g(f"""
        s_sub_u32 s{S_T4}, s{S_IDX}, s{S_ROW0}
        s_cmp_ge_u32 s{S_T4}, 16
        s_cbranch_scc1 L_norow
        s_nop 0                      ; HZ_SKIP_BEGIN
        """)
        XR = 200
        for n in range(3):
            g(f"buffer_load_dwordx4 {v(XR+4*n,4)}, v{134+n}, {srd(SRD_X)}, s{S_XO} offen")
        self.poll("m", SRD_WS, f"v_lshlrev_b32 v9, 7, v1\nv_add_u32 v9, {CNT_M*128}, v9", 27, nl=4)
        g(f"""
        v_mul_u32_u24 v10, 3277, v1
        v_lshrrev_b32 v10, 16, v10
        v_mul_u32_u24 v11, 20, v10
        v_sub_u32 v11, v1, v11
        v_mul_u32_u24 v12, 2560, v10
        v_lshl_add_u32 v12, v11, 4, v12
        s_mul_i32 s{S_T0}, s{S_CB}, 320
        s_add_u32 s{S_T0}, s{S_T0}, {WS_Y}
        v_mov_b32 v40, 0
        v_mov_b32 v41, 0
        v_mov_b32 v42, 0
        v_mov_b32 v43, 0
        s_mov_b32 exec_hi, 0x0fffffff
        """)
        yregs = list(range(44, 80, 4)) + list(range(92, 128, 4))
        for half in range(2):
            for j in range(18):
                g(f"buffer_load_dwordx4 {v(yregs[j],4)}, v12, {srd(SRD_WS)}, s{S_T0} offen sc1\ns_add_u32 s{S_T0}, s{S_T0}, {3*2560}")
            g("s_waitcnt vmcnt(0)")
            for j in range(18):
                g(f"v_pk_add_f32 v[40:41], v[40:41], {v(yregs[j],2)}\nv_pk_add_f32 v[42:43], v[42:43], {v(yregs[j]+2,2)}")
        g(f"""
        v_mul_u32_u24 v12, 320, v10
        v_lshl_add_u32 v12, v11, 4, v12
        v_add_u32 v12, {L_YR}, v12
        ds_write_b128 v12, v[40:43]
        s_mov_b64 exec, -1
        v_mov_b32 v44, s{S_RSEL}
        """)
        g.rnd_bf16(44, 44)
        g(f"""
        v_mul_f32 v44, 0xbfb8aa3b, v44
        v_exp_f32 v44, v44
        v_add_f32 v44, 1.0, v44
        v_rcp_f32 v44, v44
        """)
        g.rnd_bf16(44, 44)
        g("s_waitcnt lgkmcnt(0)")
        for n in range(3):
            rs, xr = RS + 8*n, XR + 4*n
            g(f"v_add_u32 v12, {L_YR}, v{143+n}")
            for pg in range(3):
                g(f"ds_read_b128 {v(48+8*pg,4)}, v12 offset:{320*pg}\nds_read_b128 {v(52+8*pg,4)}, v12 offset:{320*pg+16}")
            g("s_waitcnt lgkmcnt(0)")
            g(f"v_cmp_eq_u32 vcc, s{S_T4}, v{140+n}")
            for e in range(8):
                unp = f"v_lshlrev_b32 v45, 16, v{xr + e//2}" if e % 2 == 0 else f"v_and_b32 v45, 0xffff0000, v{xr + e//2}"
                g(f"v_add_f32 v{48+e}, v{48+e}, v{56+e}\nv_add_f32 v{48+e}, v{48+e}, v{64+e}")
                g.rnd_bf16(48+e, 48+e)
                g(f"v_mul_f32 v{48+e}, v{48+e}, v44")
                g.rnd_bf16(48+e, 48+e)
                g(f"{unp}\nv_sub_f32 v46, v{rs+e}, v45\nv_add_f32 v{48+e}, v{48+e}, v46")
                g.rnd_bf16(48+e, 48+e)
                g(f"v_add_f32 v{48+e}, v{48+e}, v45\nv_cndmask_b32 v{rs+e}, v{rs+e}, v{48+e}, vcc")
        g("s_nop 0                      ; HZ_SKIP_END\nL_norow:")
        g(f"""
        s_mul_i32 s{S_T0}, s{S_WAVE}, 5376
        s_add_u32 s{S_T0}, s{S_T0}, {L_OST}
        v_and_b32 v9, 15, v1
        v_mul_u32_u24 v9, 336, v9
        v_lshrrev_b32 v10, 4, v1
        v_lshl_add_u32 v9, v10, 4, v9
        v_add_u32 v9, s{S_T0}, v9
        """)
        for ct in range(5): g(f"ds_write_b128 v9, {v(16+4*ct,4)} offset:{64*ct}")
        for n in range(3): g(f"v_add_u32 v{10+n}, s{S_T0}, v{137+n}")
        g("s_waitcnt lgkmcnt(0)")
        for n in range(3):
            g(f"ds_read_b128 {v(40+8*n,4)}, v{10+n}\nds_read_b128 {v(44+8*n,4)}, v{10+n} offset:16")
        for n in range(3):
            rs = RS + 8*n
            g(f"s_waitcnt lgkmcnt({4 - 2*n})")
            for e in range(0, 8, 2):
                g(f"v_pk_add_f32 {v(40+8*n+e,2)}, {v(40+8*n+e,2)}, {v(rs+e,2)}")
            for e in range(4):
                g(f"v_cvt_pk_bf16_f32 v{64+4*n+e}, v{40+8*n+2*e}, v{40+8*n+2*e+1}")
            if n == 2: g("s_mov_b32 exec_hi, 0")
            g(f"buffer_store_dwordx4 {v(64+4*n,4)}, v{134+n}, {srd(SRD_OUT)}, s{S_XO} offen")
        g("s_mov_b64 exec, -1")
        self.stamp("end"); self.stamp("clk1", True)

    def rest(self):
        self.publish_kv()
        self.dbg_span(4, False); self.mark("kvsig")
        self.pass2()
        self.kv_wait()
        self.dbg_span(9, False); self.mark("kvseen")
        self.q_epilogue()
        self.dbg_span(5, False)
        self.kv_reduce_and_o()
        self.dbg_span(6, False); self.mark("osig")
        self.phase_c()
```

```python
import sys, re
from asmlib import Asm, kernel_header
import hazard

NAME = "parallel_sum__linear_kernel_hedgehog__moe_arch_mod__prompt_kernel"

WS_CNT   = 0
WS_KVP   = 0x10000
KVP_SZ   = 6784
WS_O     = 0x200000
WS_STATS = 0x500000
WS_RMAX  = 0x508000
WS_Y     = 0x510000
WS_DBG   = 0x800000
WS_TS    = 0x700000
WS_SIZE  = 268435456

SLOT     = 28672
L_WQ     = 0
L_T      = 57344
L_WO     = 0
L_G      = 102400
L_U      = L_G + 20480 + 128
L_OST    = L_G
L_YR     = L_OST + 4 * 5376
L_MISC   = L_U + 20480
L_WPHI   = L_MISC
L_CS     = L_WPHI + 4 * 1664
L_P0     = L_CS + 1024
L_KVF    = L_P0 + 64
L_XS     = L_KVF + 6144
L_HP     = L_XS + 5120
L_END    = L_HP + 640
LDS_SIZE = 163840
assert L_END <= LDS_SIZE, L_END
assert 5 * SLOT <= L_MISC

S_WAVE = 3
SRD_X, SRD_W, SRD_PHI, SRD_WO, SRD_WR, SRD_G, SRD_U, SRD_D, SRD_OUT, SRD_DBG, SRD_WS = range(4, 48, 4)
S_XCD, S_SLOT, S_RB, S_HP = 48, 49, 50, 51
S_XB, S_WB, S_LX, S_LW = 52, 53, 54, 55
S_WM = 56
S_T0, S_T1, S_T2, S_T3, S_T4, S_T5 = 62, 63, 64, 65, 66, 67
S_MA, S_MB = 68, 70
S_C0, S_CC, S_CX, S_CW = 76, 77, 78, 79
S_WQL, S_WQG, S_P0ROW, S_IDX = 80, 81, 82, 83
S_KVS = 75
S_TS = 86

def srd(n): return f"s[{n}:{n+3}]"
def v(b, n=1): return f"v{b}" if n == 1 else f"v[{b}:{b+n-1}]"
def ac(b, n=1): return f"a{b}" if n == 1 else f"a[{b}:{b+n-1}]"
def s2(b): return f"s[{b}:{b+1}]"


class Gen:
    def __init__(self, stop=None, dumps=(), stamps=False, touch=True, exp=()):
        self.touch = touch
        self.dist = 2 if "d2" in exp else 3
        self.exp = set(exp)
        self.a = Asm()
        self.vm = []
        self.stop = stop
        self.dumps = set(dumps)
        self.stamps = stamps
        self.nstamp = 0
        self.pending = []
        self.dump_off = 0
        self.dump_index = {}

    def __call__(self, t):
        self.a(t)
        if self.stamps and self.pending and not getattr(self, "capturing", False) and not self.in_skip(t):
            last = t.strip().split("\n")[-1].strip()
            if last.startswith("s_waitcnt") and "lgkmcnt(0)" in last: self.flush_stamps()

    def in_skip(self, t):
        for l in t.split("\n"):
            if "HZ_SKIP_BEGIN" in l: self.skipdepth = 1
            if "HZ_SKIP_END" in l: self.skipdepth = 0
        return getattr(self, "skipdepth", 0) > 0

    def vmi(self, tag, n=1):
        self.vm += [tag] * n
    def capture(self, fn):
        old, self.a.lines = self.a.lines, []
        self.capturing = True
        fn()
        self.capturing = False
        out, self.a.lines = self.a.lines, old
        return [l.strip() for l in out if l.strip()]

    def atoms(self, lines):
        out, cur, hold = [], [], None
        for l in lines:
            cur.append(l)
            code = l.split(";")[0].strip()
            if hold is None:
                if re.match(r"s_(mov|brev|and_saveexec)\w* (exec|exec_lo|exec_hi)\b", code) or code.startswith("s_and_saveexec"):
                    if not code.endswith("exec, -1"): hold = "exec"
                elif code.startswith("s_cmp"): hold = "label"
            else:
                if hold == "exec" and code == "s_mov_b64 exec, -1": hold = None
                elif hold == "label" and (code.endswith(":") or code.startswith("s_cselect")): hold = None
            if hold is None and not l.endswith(";+"):
                out.append(cur); cur = []
        if cur: out.append(cur)
        return out

    def interleave(self, groups, filler):
        at = self.atoms(filler)
        total = sum(len(a) for a in at)
        done = 0
        for i, (lines, tag) in enumerate(groups):
            for x in lines: self(x)
            self.vmi(tag)
            target = total * (i + 1) // len(groups)
            while at and done < target:
                a = at.pop(0); done += len(a)
                for x in a: self.emit_resolved(x)
        for a in at:
            for x in a: self.emit_resolved(x)

    def emit_resolved(self, x):
        if x.startswith("@VMWAIT "): self.vmwait(x.split()[1])
        elif x.startswith("@STAMP "): self.stamp(x.split()[1])
        else: self(x)

    def vmwait(self, tag):
        if getattr(self, "capturing", False):
            self(f"@VMWAIT {tag}"); return
        last = max(i for i, t in enumerate(self.vm) if t == tag)
        n = len(self.vm) - 1 - last
        assert n <= 63, (tag, n)
        self(f"s_waitcnt vmcnt({n})")
    def vmwait_all(self):
        self("s_waitcnt vmcnt(0)")

    def stamp(self, name, clk=False):
        if not self.stamps: return
        if "all" not in self.stamps and name not in self.stamps: return
        if getattr(self, "capturing", False):
            self(f"@STAMP {name}"); return
        if "cyc" in self.exp: clk = True
        self.stamp_names = getattr(self, "stamp_names", [])
        if name in self.stamp_names: return
        used = {i for i, _ in self.pending}
        free = [i for i in range(8) if i not in used]
        if not free:
            Asm.__call__(self.a, "s_waitcnt lgkmcnt(0)"); self.flush_stamps()
            free = list(range(8))
        i = free[0]
        lane = len(self.stamp_names); assert lane < 63, name
        self.stamp_names.append(name)
        self.pending.append((i, lane))
        Asm.__call__(self.a, f"{'s_memtime' if clk else 's_memrealtime'} {s2(S_TS + 2*i)} ; stamp {name}")

    def flush_stamps(self):
        for i, lane in self.pending:
            Asm.__call__(self.a, f"v_writelane_b32 v255, s{S_TS + 2*i}, {lane}")
        self.pending = []

    def dump(self, name, regs, tmp=250):
        if name not in self.dumps: return
        g = self
        n = len(regs)
        base = WS_DBG + self.dump_off
        self.dump_index[name] = (self.dump_off, n)
        self.dump_off += 256 * 4 * n * 256
        g("s_waitcnt vmcnt(0) lgkmcnt(0)\ns_nop 15\ns_nop 15")
        g(f"s_lshl_b32 s74, s2, 2\ns_add_u32 s74, s74, s{S_WAVE}\ns_mul_i32 s74, s74, {n*256}\ns_add_u32 s74, s74, {base}")
        g(f"v_lshlrev_b32 v{tmp}, 2, v1")
        for i, r in enumerate(regs):
            if isinstance(r, str) and r.startswith("a"):
                g(f"v_accvgpr_read_b32 v{tmp+1}, {r}\ns_nop 1")
                src = f"v{tmp+1}"
            else:
                src = f"v{r}"
            g(f"buffer_store_dword {src}, v{tmp}, {srd(SRD_WS)}, s74 offen")
            g(f"s_add_u32 s74, s74, 256")
            g("s_waitcnt vmcnt(0)")

    def rnd_bf16(self, dst, src):
        self(f"v_cvt_pk_bf16_f32 v{dst}, v{src}, v{src}\nv_lshlrev_b32 v{dst}, 16, v{dst}")

    def prologue(self):
        g = self
        ptrs = [(SRD_X, 0), (SRD_W, 8), (SRD_WR, 40), (SRD_PHI, 16), (SRD_WS, 88), (SRD_DBG, 80),
                (SRD_WO, 24), (SRD_G, 48), (SRD_U, 56), (SRD_D, 64), (SRD_OUT, 72)]
        sizes = {SRD_X: 2621440, SRD_W: 2457600, SRD_WR: 1280, SRD_PHI: 25600, SRD_WS: WS_SIZE, SRD_DBG: 256,
                 SRD_WO: 819200, SRD_G: 2211840, SRD_U: 2211840, SRD_D: 2211840, SRD_OUT: 2621440}
        self.sizes = sizes
        if "span" in self.exp or "skew" in self.exp: g("s_memrealtime s[98:99]")
        self.mark("start")
        g("s_getpc_b64 s[72:73]")
        g("L_pc:")
        for r, off in ptrs[:4]:
            g(f"s_load_dwordx2 {s2(r)}, s[0:1], {off}")
        g(f"""
        s_cmp_ge_u32 s2, 256
        s_cbranch_scc1 L_exit
        v_and_b32 v1, 63, v0
        v_lshrrev_b32 v9, 6, v0
        s_lshr_b32 s{S_SLOT}, s2, 3
        v_readfirstlane_b32 s{S_WAVE}, v9
        s_and_b32 s{S_XCD}, s2, 7
        """)
        g(f"""
        s_lshl_b32 s{S_T0}, s{S_SLOT}, 2
        s_add_u32 s{S_T0}, s{S_T0}, s{S_WAVE}
        s_lshl_b32 s{S_T0}, s{S_T0}, 9
        v_lshl_add_u32 v11, v1, 7, s{S_T0}
        v_cmp_gt_u32 vcc, L_code_end - L_pc, v11
        v_cmp_gt_u32 {s2(S_MA)}, 4, v1
        s_and_b64 vcc, vcc, {s2(S_MA)}
        s_and_saveexec_b64 {s2(S_MA)}, vcc
        s_cbranch_execz L_nopf
        global_load_dword v159, v11, s[72:73]       ; HZ_SKIP_BEGIN HZ_SKIP_END
L_nopf:
        s_mov_b64 exec, -1
        """)
        for r, off in ptrs[4:]:
            g(f"s_load_dwordx2 {s2(r)}, s[0:1], {off}")
        g(f"""
        s_and_b32 s{S_T0}, s{S_XCD}, 1
        s_lshl_b32 s{S_T0}, s{S_T0}, 3
        s_and_b32 s{S_T1}, s{S_SLOT}, 7
        s_add_u32 s{S_RB}, s{S_T0}, s{S_T1}
        s_lshr_b32 s{S_T0}, s{S_XCD}, 1
        s_lshl_b32 s{S_T0}, s{S_T0}, 2
        s_lshr_b32 s{S_T2}, s{S_SLOT}, 3
        s_add_u32 s{S_HP}, s{S_T0}, s{S_T2}
        s_lshl_b32 s{S_T2}, s{S_T2}, 1
        s_add_u32 s{S_T1}, s{S_T1}, s{S_T2}
        s_and_b32 s{S_T1}, s{S_T1}, 7
        s_mul_i32 s{S_T1}, s{S_T1}, 10
        s_lshr_b32 s{S_C0}, s{S_T1}, 3
        v_lshrrev_b32 v9, 3, v1
        v_mul_u32_u24 v9, 1280, v9
        v_and_b32 v11, 7, v1
        v_lshrrev_b32 v15, 4, v1
        v_xor_b32 v11, v11, v15
        v_lshl_add_u32 v4, v11, 4, v9
        v_xor_b32 v11, 4, v11
        v_lshl_add_u32 v5, v11, 4, v9
        v_add_u32 v5, {10240 - 1024}, v5
        v_add_u32 v157, {20480 - 2048}, v4
        v_add_u32 v158, {20480 - 2048}, v5
        s_lshl_b32 s{S_T0}, s{S_RB}, 7
        s_lshl_b32 s{S_T1}, s{S_WAVE}, 5
        s_add_u32 s{S_T1}, s{S_T1}, s{S_T0}
        s_mul_i32 s{S_XB}, s{S_T1}, 1280
        s_mul_i32 s{S_WB}, s{S_WAVE}, {16*3840}
        s_mul_i32 s{S_T1}, s{S_HP}, 80
        s_add_u32 s{S_WB}, s{S_WB}, s{S_T1}
        s_lshl_b32 s{S_LX}, s{S_WAVE}, 12
        s_mul_i32 s{S_LW}, s{S_WAVE}, 3072
        s_add_u32 s{S_LW}, s{S_LW}, 16384
        s_add_u32 s{S_CC}, s{S_XB}, 1280
        s_lshl_b32 s{S_CX}, s{S_C0}, 7
        s_add_u32 s{S_CX}, s{S_CX}, s{S_XB}
        s_mul_i32 s{S_CW}, s{S_C0}, {64*3840}
        s_add_u32 s{S_CW}, s{S_CW}, s{S_WB}
        """)
        for r in (SRD_X, SRD_W):
            g(f"s_mov_b32 s{r+2}, {sizes[r]}\ns_mov_b32 s{r+3}, 0x20000")
        for n in range(3):
            g(f"""
            v_add_u32 v9, {64*n}, v1
            v_mul_u32_u24 v11, 43691, v9
            v_lshrrev_b32 v11, 19, v11
            v_mul_u32_u24 v12, 12, v11
            v_sub_u32 v12, v9, v12
            v_cmp_gt_u32 {s2(S_WM+2*n)}, 10, v12
            v_cmp_gt_u32 vcc, 5, v12
            v_mul_u32_u24 v11, 3840, v11
            v_lshl_add_u32 v11, v12, 4, v11
            v_mov_b32 v13, 2480
            v_add_u32 v14, 1280, v11
            v_add_u32 v11, v13, v11
            v_cndmask_b32 v{6+n}, v11, v14, vcc
            """)
            if n: g(f"v_subrev_u32 v{6+n}, {1024*n}, v{6+n}")
        g("s_waitcnt lgkmcnt(0)")
        self.stamp("start"); self.stamp("clk0", True)
        for r in (SRD_WR, SRD_PHI):
            g(f"s_mov_b32 s{r+2}, {sizes[r]}\ns_mov_b32 s{r+3}, 0x20000")
        P = 160
        nt = " nt" if "nt" in self.exp else ""
        self.nt = nt
        g(f"""
        v_mul_u32_u24 v10, 20, v1
        s_lshl_b32 s{S_T0}, s{S_RB}, 7
        s_lshl_b32 s{S_T1}, s{S_HP}, 3
        s_add_u32 s{S_T0}, s{S_T0}, s{S_T1}
        s_lshl_b32 s{S_T1}, s{S_WAVE}, 1
        s_add_u32 s{S_P0ROW}, s{S_T0}, s{S_T1}
        s_mul_i32 s{S_T4}, s{S_P0ROW}, 1280
        buffer_load_dwordx4 {v(P,4)}, v10, {srd(SRD_X)}, s{S_T4} offen
        buffer_load_dword v{P+4}, v10, {srd(SRD_X)}, s{S_T4} offen offset:16
        buffer_load_dwordx4 {v(P+6,4)}, v10, {srd(SRD_X)}, s{S_T4} offen offset:1280
        buffer_load_dword v{P+10}, v10, {srd(SRD_X)}, s{S_T4} offen offset:1296
        buffer_load_dwordx4 {v(P+12,4)}, v10, {srd(SRD_WR)}, 0 offen
        buffer_load_dword v{P+16}, v10, {srd(SRD_WR)}, 0 offen offset:16
        v_lshlrev_b32 v11, 4, v1
        s_mul_i32 s{S_T0}, s{S_HP}, 1600
        s_mul_i32 s{S_T1}, s{S_WAVE}, 1664
        s_add_u32 m0, s{S_T1}, {L_WPHI}
        s_add_u32 s{S_T4}, s{S_T1}, {L_WPHI + 1024}
        buffer_load_dwordx4 v11, {srd(SRD_PHI)}, s{S_T0} offen lds
        s_mov_b32 m0, s{S_T4}
        s_mov_b32 exec_lo, -1
        s_mov_b32 exec_hi, 15
        s_add_u32 s{S_T0}, s{S_T0}, 1024
        buffer_load_dwordx4 v11, {srd(SRD_PHI)}, s{S_T0} offen lds
        s_mov_b64 exec, -1
        """)
        g.vmi("p0", 6); g.vmi("phi", 2)
        tagged = lambda i: [(x, f"c{i}") for x in self.p1_refill(i)]
        for lines, tag in tagged(0):
            for x in lines: g(x)
            g.vmi(tag)
        self.stamp("c0iss")
        s1, s2_ = self.capture(self.setup1), self.capture(self.setup2)
        p0, pf = self.capture(self.phase0), self.capture(self.phi_frags)
        cut = 260
        rest2 = s2_
        for x in s1: self.emit_resolved(x)
        at = self.atoms(s2_); n = 0; head = [];
        while at and n < cut - len(s1):
            a_ = at.pop(0); n += len(a_); head += a_
        for x in head: self.emit_resolved(x)
        tail = [x for a_ in at for x in a_]
        if self.dist == 3:
            self.interleave(tagged(1), tail + p0)
            self.interleave(tagged(2), pf)
        else:
            self.interleave(tagged(1), tail + p0 + pf)
        self.stamp("filled")

    def setup1(self):
        g = self
        sizes = self.sizes
        for r in (SRD_WS, SRD_DBG):
            g(f"s_mov_b32 s{r+2}, {sizes[r]}\ns_mov_b32 s{r+3}, 0x20000")
        g(f"""
        s_lshl_b32 s{S_T0}, s{S_WAVE}, 8
        s_add_u32 s{S_T0}, s{S_T0}, s2
        s_cmp_lg_u32 s{S_T0}, 256
        s_cbranch_scc1 L_noinit
        v_lshlrev_b32 v11, 7, v1       ; HZ_SKIP_BEGIN
        v_mov_b32 v12, 0
        buffer_store_dword v12, v11, {srd(SRD_WS)}, 0 offen sc1   ; HZ_SKIP_END
L_noinit:
        """)
        for r in (SRD_WO, SRD_G, SRD_U, SRD_D, SRD_OUT):
            g(f"s_mov_b32 s{r+2}, {sizes[r]}\ns_mov_b32 s{r+3}, 0x20000")
        g(f"""
        v_and_b32 v2, 31, v1
        v_lshrrev_b32 v3, 5, v1
        v_mov_b32 v12, 0x3f80
        v_mov_b32 v13, 0
        v_mov_b32 v14, 0x3f80
        v_mov_b32 v15, 0
        v_lshrrev_b32 v9, 6, v0
        v_mul_u32_u24 v9, {SLOT}, v9
        v_mul_u32_u24 v11, 192, v1
        v_add_u32 v9, v9, v11
        ds_write_b128 v9, v[12:15] offset:{16384 + 160}
        v_add_u32 v11, {4*SLOT}, v11
        ds_write_b128 v11, v[12:15] offset:{16384 + 160}
        v_mov_b32 v16, 0
        v_mov_b32 v17, 0
        v_mov_b32 v18, 0
        v_mov_b32 v19, 0
        v_lshlrev_b32 v20, 4, v0
        v_add_u32 v20, {L_KVF}, v20
        ds_write_b128 v20, v[16:19]
        v_lshlrev_b32 v21, 3, v0
        v_add_u32 v21, {L_KVF + 4096}, v21
        ds_write_b64 v21, v[16:17]
        v_mov_b32 v84, 0x3f803f80
        v_mov_b32 v85, 0x3f803f80
        """)
        g(f"""
        v_lshrrev_b32 v9, 1, v2
        v_and_b32 v9, 7, v9
        v_xor_b32 v9, v9, v3
        v_lshlrev_b32 v9, 4, v9
        v_lshl_add_u32 v9, v2, 7, v9
        v_add_u32 v128, s{S_LX}, v9
        v_xor_b32 v129, 32, v128
        v_xor_b32 v130, 64, v128
        v_xor_b32 v131, 96, v128
        v_add_u32 v132, {3*SLOT}, v128
        v_add_u32 v133, {3*SLOT}, v129
        v_add_u32 v134, {3*SLOT}, v130
        v_add_u32 v135, {3*SLOT}, v131
        v_bfe_u32 v9, v1, 2, 2
        v_lshl_add_u32 v9, v3, 3, v9
        v_mul_u32_u24 v9, 192, v9
        v_bfe_u32 v11, v1, 4, 1
        v_and_b32 v12, 3, v1
        v_lshl_add_u32 v11, v11, 2, v12
        v_lshl_add_u32 v9, v11, 3, v9
        v_add_u32 v136, 16384, v9
        v_add_u32 v137, {16384 + 2*SLOT}, v9
        v_add_u32 v138, {16384 + 4*SLOT}, v9
        s_lshl_b32 s{S_T0}, s{S_WAVE}, 6
        v_add_u32 v72, s{S_T0}, v136
        v_add_u32 v73, s{S_T0}, v137
        v_add_u32 v74, s{S_T0}, v138
        """)

    def setup2(self):
        g = self
        self.moe_roles()
        self.kv_addresses()
        self.c_addresses()
        self.o_addresses()
        self.wq_setup()
        g(f"""
        s_lshl_b32 s{S_T0}, s{S_WAVE}, 5
        v_add_u32 v9, s{S_T0}, v2
        v_mul_u32_u24 v9, 336, v9
        v_add_u32 v9, {L_T}, v9
        v_lshl_add_u32 v9, v3, 3, v9
        v_accvgpr_write_b32 a192, v9
        s_lshr_b32 s{S_T0}, s{S_WAVE}, 1
        s_and_b32 s{S_T4}, s{S_WAVE}, 1
        v_bfe_u32 v9, v1, 2, 2
        v_lshlrev_b32 v9, 1, v9
        v_add_u32 v9, v9, v3
        v_lshlrev_b32 v9, 1, v9
        v_mul_u32_u24 v9, 336, v9
        v_add_u32 v9, {L_T}, v9
        v_bfe_u32 v11, v1, 4, 1
        v_and_b32 v12, 3, v1
        v_lshl_add_u32 v11, v11, 2, v12
        s_mul_i32 s{S_T2}, s{S_T0}, 12
        s_lshl_b32 s{S_T3}, s{S_T4}, 3
        s_add_u32 s{S_T2}, s{S_T2}, s{S_T3}
        v_add_u32 v12, s{S_T2}, v11
        v_lshl_add_u32 v13, v12, 3, v9
        v_accvgpr_write_b32 a193, v13
        s_mul_i32 s{S_T2}, s{S_T0}, 5
        s_add_u32 s{S_T2}, s{S_T2}, 24
        v_add_u32 v12, s{S_T2}, v11
        s_mul_i32 s{S_T3}, s{S_T0}, -3
        s_add_i32 s{S_T3}, s{S_T3}, 37
        v_mov_b32 v13, s{S_T3}
        v_cmp_eq_u32 vcc, 5, v11
        v_cndmask_b32 v12, v12, v13, vcc
        s_add_i32 s{S_T3}, s{S_T3}, -13
        v_add_u32 v13, s{S_T3}, v11
        v_cmp_lt_u32 vcc, 5, v11
        v_cndmask_b32 v12, v12, v13, vcc
        v_lshl_add_u32 v13, v12, 3, v9
        v_accvgpr_write_b32 a194, v13
        v_mul_u32_u24 v9, 336, v3
        v_lshl_add_u32 v9, v2, 4, v9
        v_accvgpr_write_b32 a195, v9
        s_lshl_b32 s{S_T2}, s{S_HP}, 4
        s_add_u32 s{S_T2}, s{S_T2}, s{S_RB}
        s_mul_i32 s{S_T2}, s{S_T2}, {KVP_SZ}
        s_add_u32 s{S_T2}, s{S_T2}, {WS_KVP}
        s_mul_i32 s{S_T3}, s{S_T0}, 3360
        s_add_u32 s{S_KVS}, s{S_T2}, s{S_T3}
        """)

    def phase0(self):
        g = self
        P = 160
        self.stamp("pre_p0")
        g.vmwait("phi")
        self.stamp("p0data")
        X0, X1, W = P, P + 6, P + 12
        A = 180
        for i in range(7): g(f"v_mov_b32 v{A+i}, 0")
        for d in range(5):
            g(f"""
            v_dot2c_f32_bf16 v{A+0}, v{X0+d}, v84
            v_dot2c_f32_bf16 v{A+1}, v{X0+d}, v{X0+d}
            v_dot2c_f32_bf16 v{A+2}, v{X0+d}, v{W+d}
            v_dot2c_f32_bf16 v{A+3}, v{X1+d}, v84
            v_dot2c_f32_bf16 v{A+4}, v{X1+d}, v{X1+d}
            v_dot2c_f32_bf16 v{A+5}, v{X1+d}, v{W+d}
            v_dot2c_f32_bf16 v{A+6}, v{W+d}, v84
            """)
        g("s_nop 2")
        for ctl in ("row_shr:1 row_mask:0xf bank_mask:0xf bound_ctrl:0", "row_shr:2 row_mask:0xf bank_mask:0xf bound_ctrl:0",
                    "row_shr:4 row_mask:0xf bank_mask:0xf bound_ctrl:0", "row_shr:8 row_mask:0xf bank_mask:0xf bound_ctrl:0",
                    "row_bcast:15 row_mask:0xa bank_mask:0xf", "row_bcast:31 row_mask:0xc bank_mask:0xf"):
            for i in range(7):
                g(f"v_add_f32_dpp v{A+i}, v{A+i}, v{A+i} {ctl}")
        T = 190
        g(f"v_mov_b32 v{T+8}, 0x3acccccd")
        for r in range(2):
            sx, sq, sw = A + 3*r, A + 3*r + 1, A + 3*r + 2
            m, t1, t2 = T + 3*r, T + 3*r + 1, T + 3*r + 2
            g(f"""
            v_mul_f32 v{m}, v{sx}, v{T+8}
            v_mul_f32 v{t1}, v{sq}, v{T+8}
            v_fma_f32 v{t1}, -v{m}, v{m}, v{t1}
            v_max_f32 v{t1}, 0, v{t1}
            """)
            g.rnd_bf16(t1, t1)
            g(f"v_add_f32 v{t1}, 0x3727c5ac, v{t1}")
            g.rnd_bf16(t1, t1)
            g(f"v_sqrt_f32 v{t1}, v{t1}")
            g.rnd_bf16(t1, t1)
            g.rnd_bf16(m, m)
            g(f"""
            v_rcp_f32 v{t1}, v{t1}
            v_fma_f32 v{t2}, -v{m}, v{A+6}, v{sw}
            v_mul_f32 v{t2}, v{t2}, v{t1}
            """)
        g(f"""
        v_mov_b32 v{T+7}, s{S_P0ROW}
        v_add_u32 v{T+9}, 1, v{T+7}
        v_cmp_gt_f32 vcc, v{T+5}, v{T+2}
        v_cndmask_b32 v{T+6}, v{T+2}, v{T+5}, vcc
        v_cndmask_b32 v{T+7}, v{T+7}, v{T+9}, vcc
        s_lshl_b32 s{S_T0}, s{S_WAVE}, 3
        s_add_u32 s{S_T0}, s{S_T0}, {L_P0}
        v_mov_b32 v9, s{S_T0}
        s_mov_b32 exec_lo, 0
        s_brev_b32 exec_hi, 1
        ds_write_b64 v9, {v(T+6,2)}
        s_mov_b64 exec, -1
        """)

    def phi_frags(self):
        g = self
        g(f"""
        v_lshrrev_b32 v9, 3, v2
        v_and_b32 v11, 3, v2
        v_lshl_add_u32 v9, v9, 2, v11
        v_min_u32 v9, 9, v9
        v_bfe_u32 v11, v2, 2, 1
        v_mad_u32_u24 v9, v11, 10, v9
        v_lshlrev_b32 v9, 1, v9
        s_mul_i32 s{S_T0}, s{S_WAVE}, 1664
        s_add_u32 s{S_T0}, s{S_T0}, {L_WPHI}
        v_add_u32 v9, s{S_T0}, v9
        v_mul_u32_u24 v11, 160, v3
        v_add_u32 v11, v11, v9
        """)
        def rd(reg, base, ds):
            for i, d in enumerate(ds):
                g(f"ds_read_u16 v{T0 + i}, v{base} offset:{d}")
            g("s_waitcnt lgkmcnt(0)")
            for i in range(0, len(ds), 2):
                g(f"v_lshl_or_b32 v{reg + i//2}, v{T0+i+1}, 16, v{T0+i}")
        T0 = 200
        rd(140, 11, [40*i for i in range(4)] + [40*(8+i) for i in range(4)] + [40*(16+i) for i in range(4)])
        rd(146, 9, [800 + 40*i for i in range(4)])
        rd(148, 11, [800 + 40*(4+i) for i in range(4)] + [800 + 40*(12+i) for i in range(4)])
        g(f"""
        s_mov_b32 s{S_MA}, 0
        s_mov_b32 s{S_MA+1}, -1
        s_waitcnt lgkmcnt(0)
        v_cndmask_b32 v144, v144, 0, {s2(S_MA)}
        v_cndmask_b32 v145, v145, 0, {s2(S_MA)}
        v_cndmask_b32 v146, 0, v146, {s2(S_MA)}
        v_cndmask_b32 v147, 0, v147, {s2(S_MA)}
        """)

    def p1_reads(self, n):
        c, ks = divmod(n, 4); s = c % 5; b = n % 3
        base = 128 + ks if s < 3 else 132 + ks
        imm = s * SLOT if s < 3 else (s - 3) * SLOT
        out = [f"ds_read_b128 {ac(4*n,4)}, v{base} offset:{imm}"]
        wb = 136 + s // 2
        imm0 = (s % 2) * SLOT + 16 * ks * 192
        for t in range(3):
            for rd in range(2):
                out.append(f"ds_read_b64_tr_b16 {v(92 + 12*b + 4*t + 2*rd, 2)}, v{wb} offset:{imm0 + 4*rd*192 + 64*t}")
        for rd in range(2):
            out.append(f"ds_read_b64_tr_b16 {v(160 + 4*b + 2*rd, 2)}, v{72 + s // 2} offset:{imm0 + 4*rd*192}")
        return out

    def p1_refill(self, i):
        s = i % 5
        nt = self.nt
        grp = []
        grp.append([f"s_add_u32 m0, s{S_LX}, {s*SLOT}", "s_nop 0" if False else f"s_add_u32 s{S_T1}, s{S_LW}, {s*SLOT}",
                    f"buffer_load_dwordx4 v4, {srd(SRD_X)}, s{S_CX} offen{nt} lds"])
        grp.append([f"buffer_load_dwordx4 v5, {srd(SRD_X)}, s{S_CX} offen offset:1024{nt} lds"])
        grp.append([f"buffer_load_dwordx4 v157, {srd(SRD_X)}, s{S_CX} offen offset:2048{nt} lds"])
        grp.append([f"buffer_load_dwordx4 v158, {srd(SRD_X)}, s{S_CX} offen offset:3072{nt} lds",
                    f"s_add_u32 s{S_CX}, s{S_CX}, 128"])
        grp.append([f"s_mov_b32 m0, s{S_T1}", f"s_mov_b64 exec, {s2(S_WM)}",
                    f"buffer_load_dwordx4 v6, {srd(SRD_W)}, s{S_CW} offen{nt} lds", "s_mov_b64 exec, -1"])
        grp.append([f"s_mov_b64 exec, {s2(S_WM+2)}",
                    f"buffer_load_dwordx4 v7, {srd(SRD_W)}, s{S_CW} offen offset:1024{nt} lds", "s_mov_b64 exec, -1"])
        grp.append([f"s_mov_b64 exec, {s2(S_WM+4)}",
                    f"buffer_load_dwordx4 v8, {srd(SRD_W)}, s{S_CW} offen offset:2048{nt} lds", "s_mov_b64 exec, -1",
                    f"s_add_u32 s{S_CW}, s{S_CW}, {64*3840}", f"s_cmp_eq_u32 s{S_CX}, s{S_CC}",
                    f"s_cselect_b32 s{S_CX}, s{S_XB}, s{S_CX}", f"s_cselect_b32 s{S_CW}, s{S_WB}, s{S_CW}"])
        return grp

    def wq_groups(self):
        grp = []
        for m in range(13):
            q, pt = divmod(m, 5)
            gl = [f"s_add_u32 m0, s{S_WQL}, {m*1024}", f"s_add_u32 s{S_T2}, s{S_WQG}, {q*64*3840}"]
            if m == 12:
                gl += ["s_mov_b32 exec_hi, 0", f"buffer_load_dwordx4 v{152+pt}, {srd(SRD_W)}, s{S_T2} offen lds", "s_mov_b64 exec, -1"]
            else:
                gl += [f"buffer_load_dwordx4 v{152+pt}, {srd(SRD_W)}, s{S_T2} offen lds"]
            grp.append(gl)
        return grp

    def wq_setup(self):
        g = self
        for pt in range(5):
            g(f"""
            v_add_u32 v9, {64*pt}, v1
            v_mul_u32_u24 v11, 52429, v9
            v_lshrrev_b32 v11, 18, v11
            v_mul_u32_u24 v12, 5, v11
            v_sub_u32 v12, v9, v12
            v_and_b32 v13, 3, v11
            v_bfe_u32 v14, v11, 2, 2
            v_and_b32 v11, 0xfffffff0, v11
            v_lshl_add_u32 v11, v13, 2, v11
            v_add_u32 v11, v11, v14
            v_mul_u32_u24 v11, 3840, v11
            v_lshl_add_u32 v{152+pt}, v12, 4, v11
            """)
        g(f"""
        s_mul_i32 s{S_WQL}, s{S_WAVE}, 12800
        s_add_u32 s{S_WQL}, s{S_WQL}, {L_WQ}
        s_mul_i32 s{S_WQG}, s{S_WAVE}, {160*3840}
        s_mul_i32 s{S_T0}, s{S_HP}, 80
        s_add_u32 s{S_WQG}, s{S_WQG}, s{S_T0}
        """)

    def pass1(self):
        g = self
        self.dbg_span(2, True); self.dbg_span(7, False); self.mark("filled"); self.skew_record()
        g.vmwait("c0")
        g("s_waitcnt lgkmcnt(0)\ns_barrier")
        self.stamp("c0")
        for x in self.p1_reads(0): g(x)
        g("s_waitcnt lgkmcnt(6)")
        for x in self.p1_reads(1): g(x)
        g(f"""
        s_cmp_lg_u32 s{S_WAVE}, 0
        s_cbranch_scc1 L_nopub
        v_mov_b32 v9, {L_P0}           ; HZ_SKIP_BEGIN
        ds_read_b128 v[172:175], v9
        ds_read_b128 v[176:179], v9 offset:16
        s_lshl_b32 s{S_T0}, s2, 3
        s_add_u32 s{S_T0}, s{S_T0}, {WS_RMAX}
        v_mov_b32 v11, s{S_T0}
        s_waitcnt lgkmcnt(0)
        v_cmp_gt_f32 vcc, v174, v172
        v_cndmask_b32 v172, v172, v174, vcc
        v_cndmask_b32 v173, v173, v175, vcc
        v_cmp_gt_f32 vcc, v176, v172
        v_cndmask_b32 v172, v172, v176, vcc
        v_cndmask_b32 v173, v173, v177, vcc
        v_cmp_gt_f32 vcc, v178, v172
        v_cndmask_b32 v172, v172, v178, vcc
        v_cndmask_b32 v173, v173, v179, vcc
        s_mov_b64 exec, 1
        buffer_store_dwordx2 v[172:173], v11, {srd(SRD_WS)}, 0 offen sc1
        s_mov_b64 exec, -1             ; HZ_SKIP_END
L_nopub:
        """)
        pend = []
        for n in range(40):
            c, ks = divmod(n, 4); b = n % 3
            if ks == 0:
                if c + self.dist <= 9:
                    pend += self.p1_refill(c + self.dist); self.vmq = getattr(self, "vmq", []) + [f"c{c+self.dist}"] * 7
                if c == 3:
                    pend.append(self.touch_wq()); self.vmq.append("tq")
                if c == 7:
                    pend += self.touch_moe(); self.vmq += ["tm"] * 3
                if c == 6:
                    pend.append([f"v_mov_b32 v75, 240", f"buffer_load_dword v75, v75, {srd(SRD_DBG)}, 0 offen sc1"]); self.vmq.append("rdy")
            if ks == 2 and c < 9:
                g(f"s_waitcnt lgkmcnt(6)")
                g.vmwait(f"c{c+1}")
                g("s_barrier")
                self.stamp(f"B{c}")
                if c == 0:
                    g(f"""
                    s_cmp_lg_u32 s2, 0
                    s_cbranch_scc1 L_noready
                    s_cmp_lg_u32 s{S_WAVE}, 1
                    s_cbranch_scc1 L_noready
                    v_mov_b32 v11, 240             ; HZ_SKIP_BEGIN
                    v_mov_b32 v12, 1
                    s_mov_b64 exec, 1
                    buffer_store_dword v12, v11, {srd(SRD_DBG)}, 0 offen sc1
                    s_mov_b64 exec, -1             ; HZ_SKIP_END
L_noready:
                    """)
                if c == self.dist - 1:
                    g(f"""
                    s_cmp_lg_u32 s{S_WAVE}, 0
                    s_cbranch_scc1 L_noatom
                    s_and_b32 s{S_T0}, s2, 3       ; HZ_SKIP_BEGIN
                    s_lshl_b32 s{S_T0}, s{S_T0}, 6
                    v_mov_b32 v11, s{S_T0}
                    v_mov_b32 v12, 1
                    s_mov_b64 exec, 1
                    buffer_atomic_add v12, v11, {srd(SRD_DBG)}, 0 offen sc1
                    s_mov_b64 exec, -1             ; HZ_SKIP_END
L_noatom:
                    """)
            elif n == 39: g("s_waitcnt lgkmcnt(0)")
            else: g("s_waitcnt lgkmcnt(6)")
            rd = self.p1_reads(n + 2) if n + 2 < 40 else []
            if "nords" in self.exp: rd = []
            XP = ac(4*n, 4)
            WF = lambda t: 92 + 12*b + 4*t
            first = (n == 0)
            def dma():
                if pend:
                    grp = pend.pop(0); tag = self.vmq.pop(0)
                    if "nodma" not in self.exp:
                        for x in grp: g(x)
                    if tag: g.vmi(tag)
            cin = lambda r, k: "0" if first else v(r, k)
            g(f"v_mfma_f32_32x32x16_bf16 v[16:31], {v(WF(0),4)}, {XP}, {cin(16,16)}")
            for x in rd[0:3]: g(x)
            dma()
            g(f"v_mfma_f32_32x32x16_bf16 v[32:47], {v(WF(1),4)}, {XP}, {cin(32,16)}")
            for x in rd[3:6]: g(x)
            g(f"v_mfma_f32_32x32x16_bf16 v[48:63], {v(WF(2),4)}, {XP}, {cin(48,16)}")
            for x in rd[6:9]: g(x)
            dma()
            if "nosq" not in self.exp:
                g(f"v_mfma_f32_4x4x4_16b_bf16 v[64:67], {ac(4*n,2)}, {ac(4*n,2)}, {cin(64,4)}")
                g(f"v_mfma_f32_4x4x4_16b_bf16 v[68:71], {ac(4*n+2,2)}, {ac(4*n+2,2)}, {cin(68,4)}")
            if "nocs" not in self.exp:
                g(f"v_mfma_f32_4x4x4_16b_bf16 v[76:79], {v(160+4*b,2)}, v[84:85], {cin(76,4)}")
                g(f"v_mfma_f32_4x4x4_16b_bf16 v[80:83], {v(160+4*b+2,2)}, v[84:85], {cin(80,4)}")
            if c in (3, 6, 7): dma()
        while pend:
            grp = pend.pop(0); tag = self.vmq.pop(0)
            for x in grp: g(x)
            if tag: g.vmi(tag)
        self.stamp("p1end")

    def touch_moe(self):
        return [
            [f"v_mul_u32_u24 v9, 13108, v1", "v_lshrrev_b32 v9, 16, v9", "v_mul_u32_u24 v10, 5, v9", "v_sub_u32 v10, v1, v10",
             "v_mul_u32_u24 v11, 3456, v9", "v_lshl_add_u32 v11, v10, 7, v11",
             f"s_mul_i32 s{S_T0}, s{S_XCD}, 448", f"s_and_b32 s{S_T0}, s{S_T0}, 0xffffff80",
             f"s_lshl_b32 s{S_T2}, s{S_SLOT}, 2", f"s_add_u32 s{S_T2}, s{S_T2}, s{S_WAVE}", f"s_mul_i32 s{S_T2}, s{S_T2}, {5*3456}",
             f"s_add_u32 s{S_T0}, s{S_T0}, s{S_T2}", "s_mov_b32 exec_lo, 0x1ffffff", "s_mov_b32 exec_hi, 0",
             f"buffer_load_dword v159, v11, {srd(SRD_G)}, s{S_T0} offen", "s_mov_b64 exec, -1"],
            ["s_mov_b32 exec_lo, 0x1ffffff", "s_mov_b32 exec_hi, 0",
             f"buffer_load_dword v159, v11, {srd(SRD_U)}, s{S_T0} offen", "s_mov_b64 exec, -1"],
            ["v_mul_u32_u24 v9, 6554, v1", "v_lshrrev_b32 v9, 16, v9", "v_mul_u32_u24 v10, 10, v9", "v_sub_u32 v10, v1, v10",
             "v_mul_u32_u24 v12, 1280, v9", "v_lshl_add_u32 v12, v10, 7, v12",
             f"s_mul_i32 s{S_T0}, s{S_XCD}, {224*1280}", f"s_mul_i32 s{S_T2}, s{S_SLOT}, 7", f"s_lshl_b32 s{S_T3}, s{S_WAVE}, 1",
             f"s_add_u32 s{S_T2}, s{S_T2}, s{S_T3}", f"s_mul_i32 s{S_T2}, s{S_T2}, 1280", f"s_add_u32 s{S_T0}, s{S_T0}, s{S_T2}",
             "s_mov_b32 exec_lo, 0xfffff", "s_mov_b32 exec_hi, 0",
             f"buffer_load_dword v159, v12, {srd(SRD_D)}, s{S_T0} offen", "s_mov_b64 exec, -1"]]

    def touch_wq(self):
        return ["v_mul_u32_u24 v9, 21846, v1", "v_lshrrev_b32 v9, 16, v9", "v_mul_u32_u24 v10, 3, v9", "v_sub_u32 v10, v1, v10",
                f"s_lshl_b32 s{S_T0}, s{S_SLOT}, 2", f"s_add_u32 s{S_T0}, s{S_T0}, s{S_WAVE}", f"s_mul_i32 s{S_T0}, s{S_T0}, 5",
                f"v_add_u32 v9, s{S_T0}, v9", "v_mul_u32_u24 v9, 3840, v9", "v_lshl_add_u32 v9, v10, 7, v9",
                f"s_lshr_b32 s{S_T0}, s{S_XCD}, 1", f"s_mul_i32 s{S_T0}, s{S_T0}, 320", f"s_and_b32 s{S_T0}, s{S_T0}, 0xffffff80",
                "s_mov_b32 exec_lo, 0x7fff", "s_mov_b32 exec_hi, 0",
                f"buffer_load_dword v159, v9, {srd(SRD_W)}, s{S_T0} offen", "s_mov_b64 exec, -1"]

    def stats_and_colsum(self, first):
        g = self
        csoff = 0 if first else 128 * 4
        for i in range(4): g(f"v_add_f32 v{76+i}, v{76+i}, v{80+i}")
        for i in range(4): g(f"v_mov_b32 v{80+i}, v{76+i}")
        for i in range(4): g(f"v_permlane32_swap_b32 v{76+i}, v{80+i}")
        for i in range(4): g(f"v_add_f32 v{76+i}, v{76+i}, v{80+i}")
        g(f"""
        s_lshl_b32 s{S_T0}, s{S_WAVE}, 7
        s_add_u32 s{S_T0}, s{S_T0}, {L_CS + csoff}
        v_lshl_add_u32 v9, v1, 2, s{S_T0}
        s_mov_b32 exec_lo, 0x11111111
        s_mov_b32 exec_hi, 0
        ds_write_b128 v9, v[76:79]
        s_mov_b64 exec, -1
        """)
        if first:
            for i in range(4): g(f"v_add_f32 v{64+i}, v{64+i}, v{68+i}")
            for i in range(1, 4):
                m = 0x11111111 << i
                g(f"s_mov_b32 s{S_MB}, {hex(m)}\ns_mov_b32 s{S_MB+1}, {hex(m)}\nv_cndmask_b32 v64, v64, v{64+i}, {s2(S_MB)}")
            g(f"""
            v_mov_b32 v65, v64
            v_mov_b32 v90, 0x3acccccd
            s_nop 0
            v_permlane32_swap_b32 v64, v65
            v_add_f32 v64, v64, v65
            v_mul_f32 v66, v56, v90
            v_mul_f32 v64, v64, v90
            v_fma_f32 v64, -v66, v66, v64
            v_max_f32 v64, 0, v64
            """)
            g.rnd_bf16(64, 64)
            g("v_add_f32 v64, 0x3727c5ac, v64")
            g.rnd_bf16(64, 64)
            g("v_sqrt_f32 v64, v64")
            g.rnd_bf16(90, 64)
            g.rnd_bf16(91, 66)
            g("v_rcp_f32 v88, v90\nv_sub_f32 v86, 0, v91")
        g("s_waitcnt lgkmcnt(0)\ns_barrier")
        self.stamp("csbar" if first else "csbar2")

    def normalise(self, quads, csoff):
        g = self
        g(f"v_lshlrev_b32 v9, 4, v3\nv_add_u32 v9, {L_CS + csoff}, v9")
        for i, (r, col) in enumerate(quads):
            g(f"ds_read_b128 {v(160+4*i,4)}, v9 offset:{col*4}")
        for i, (r, col) in enumerate(quads):
            g(f"s_waitcnt lgkmcnt({len(quads)-1-i})")
            for hh in range(2):
                g(f"v_pk_fma_f32 {v(r+2*hh,2)}, {v(160+4*i+2*hh,2)}, v[86:87], {v(r+2*hh,2)} op_sel_hi:[1,0,1]")
            for hh in range(2):
                g(f"v_pk_mul_f32 {v(r+2*hh,2)}, {v(r+2*hh,2)}, v[88:89] op_sel_hi:[1,0]")

    def softmax(self, H0, H1):
        g = self
        P = (92, 108)
        L = 0x3fb8aa3b
        g(f"v_mov_b32 v124, {hex(L)}\nv_mov_b32 v126, {hex(L | 0x80000000)}")
        for H in (H0, H1): g(f"v_mov_b32 v{H+10}, 0\nv_mov_b32 v{H+11}, 0")
        E = (160, 180)
        MX = (200, 204)
        for a in range(2):
            p, mx = P[a], MX[a]
            g(f"""
            v_max3_f32 v{mx}, v{p}, v{p+1}, v{p+2}
            v_min3_f32 v{mx+1}, v{p}, v{p+1}, v{p+2}
            v_max3_f32 v{mx}, v{mx}, v{p+3}, v{p+4}
            v_min3_f32 v{mx+1}, v{mx+1}, v{p+3}, v{p+4}
            v_max3_f32 v{mx}, v{mx}, v{p+5}, v{p+6}
            v_min3_f32 v{mx+1}, v{mx+1}, v{p+5}, v{p+6}
            v_max3_f32 v{mx}, v{mx}, v{p+7}, v{p+8}
            v_min3_f32 v{mx+1}, v{mx+1}, v{p+7}, v{p+8}
            v_max_f32 v{mx}, v{mx}, v{p+9}
            v_min_f32 v{mx+1}, v{mx+1}, v{p+9}
            v_sub_f32 v{mx+1}, 0, v{mx+1}
            """)
        for a in range(2): g(f"v_permlane32_swap_b32 v{MX[a]}, v{MX[a]+1}")
        for a in range(2): g(f"v_max_f32 v{MX[a]}, v{MX[a]}, v{MX[a]+1}")
        for a in range(2): g(f"v_mov_b32 v{MX[a]+1}, v{MX[a]}")
        for a in range(2): g(f"v_permlane32_swap_b32 v{MX[a]}, v{MX[a]+1}")
        for a in range(2):
            mx = MX[a]
            g(f"v_mul_f32 v{mx+2}, v{mx+1}, v126\nv_mul_f32 v{mx}, v{mx}, v126")
        for a in range(2):
            p, mx, e = P[a], MX[a], E[a]
            for i in range(5):
                g(f"v_pk_fma_f32 {v(e+2*i,2)}, {v(p+2*i,2)}, v[124:125], {v(mx,2)} op_sel_hi:[1,0,0]")
                g(f"v_pk_fma_f32 {v(e+10+2*i,2)}, {v(p+2*i,2)}, v[126:127], {v(mx+2,2)} op_sel_hi:[1,0,0]")
        self.stamp("sm_pre" + str(H0) + getattr(self, "smtag", ""))
        for a in range(2):
            for i in range(20): g(f"v_exp_f32 v{E[a]+i}, v{E[a]+i}")
        self.stamp("sm_exp" + getattr(self, "smtag", ""))
        SM = (208, 214)
        for a in range(2):
            e, sm = E[a], SM[a]
            g(f"v_pk_add_f32 {v(sm,2)}, {v(e,2)}, {v(e+2,2)}\nv_pk_add_f32 {v(sm+2,2)}, {v(e+10,2)}, {v(e+12,2)}")
        for i in range(2, 5):
            for a in range(2):
                e, sm = E[a], SM[a]
                g(f"v_pk_add_f32 {v(sm,2)}, {v(sm,2)}, {v(e+2*i,2)}\nv_pk_add_f32 {v(sm+2,2)}, {v(sm+2,2)}, {v(e+10+2*i,2)}")
        for a in range(2):
            sm = SM[a]
            g(f"v_add_f32 v{sm}, v{sm}, v{sm+1}\nv_add_f32 v{sm+1}, v{sm+2}, v{sm+3}")
        for a in range(2): g(f"v_permlane32_swap_b32 v{SM[a]}, v{SM[a]+1}")
        for a in range(2): g(f"v_add_f32 v{SM[a]}, v{SM[a]}, v{SM[a]+1}")
        for a in range(2): g(f"v_mov_b32 v{SM[a]+2}, v{SM[a]}")
        for a in range(2): g(f"v_permlane32_swap_b32 v{SM[a]}, v{SM[a]+2}")
        for a in range(2): g(f"v_rcp_f32 v{SM[a]}, v{SM[a]}\nv_rcp_f32 v{SM[a]+2}, v{SM[a]+2}")
        for a, H in ((0, H0), (1, H1)):
            e, sm = E[a], SM[a]
            for i in range(5):
                g(f"v_pk_mul_f32 {v(e+2*i,2)}, {v(e+2*i,2)}, {v(sm,2)} op_sel_hi:[1,0]")
                g(f"v_pk_mul_f32 {v(e+10+2*i,2)}, {v(e+10+2*i,2)}, {v(sm+2,2)} op_sel_hi:[1,0]")
            for i in range(10):
                g(f"v_cvt_pk_bf16_f32 v{H+i}, v{e+2*i}, v{e+2*i+1}")

    def norm_reads(self, quads, csoff, r0):
        g = self
        for i, (r, col) in enumerate(quads):
            g(f"ds_read_b128 {v(r0+4*i,4)}, v9 offset:{col*4}")

    def norm_apply(self, quads, r0, after):
        g = self
        for i, (r, col) in enumerate(quads):
            g(f"s_waitcnt lgkmcnt({len(quads)-1-i+after})")
            for hh in range(2):
                g(f"v_pk_fma_f32 {v(r+2*hh,2)}, {v(r0+4*i+2*hh,2)}, v[86:87], {v(r+2*hh,2)} op_sel_hi:[1,0,1]")
            for hh in range(2):
                g(f"v_pk_mul_f32 {v(r+2*hh,2)}, {v(r+2*hh,2)}, v[88:89] op_sel_hi:[1,0]")

    def featmap_mfma(self, PK):
        g = self
        g(f"v_mfma_f32_32x32x16_bf16 v[92:107], v[140:143], {v(PK,4)}, 0")
        g(f"v_mfma_f32_32x32x16_bf16 v[108:123], v[146:149], {v(PK+4,4)}, 0")
        g(f"v_mfma_f32_32x32x8_bf16 v[92:107], v[144:145], {v(PK+4,2)}, v[92:107]")
        g(f"v_mfma_f32_32x32x8_bf16 v[108:123], v[150:151], {v(PK+8,2)}, v[108:123]")

    def k_epilogue(self):
        g = self
        self.stats_and_colsum(True)
        PK, PV = 244, 210
        kq = [(16+4*j, 8*j) for j in range(4)] + [(32, 32)]
        vq = [(36, 40), (40, 48), (44, 56), (48, 64), (52, 72)]
        def part1():
            g(f"v_lshlrev_b32 v9, 4, v3\nv_add_u32 v9, {L_CS}, v9")
            self.norm_reads(kq, 0, 160); self.norm_reads(vq, 0, 180)
            self.norm_apply(kq, 160, 5)
            for i in range(10): g(f"v_cvt_pk_bf16_f32 v{PK+i}, v{16+2*i}, v{16+2*i+1}")
            self.stamp("k_cvt")
            self.featmap_mfma(PK)
            self.norm_apply(vq, 180, 0)
            self.stamp("v_norm")
            self.dump("kv_norm", list(range(16, 64)) + [86, 88, 90, 91])
            g(f"""
            v_accvgpr_read_b32 v11, a192
            v_mov_b32 v14, 0x3f80
            v_mov_b32 v15, 0
            v_lshl_add_u32 v12, v3, 4, v11
            v_lshl_add_u32 v13, v3, 3, v11
            ds_write_b64 v12, v[14:15] offset:{34*8}
            """)
            for i, (r, col) in enumerate(vq):
                g(f"v_cvt_pk_bf16_f32 v{PV+2*i}, v{r}, v{r+1}\nv_cvt_pk_bf16_f32 v{PV+2*i+1}, v{r+2}, v{r+3}")
                g(f"ds_write_b64 v11, {v(PV+2*i,2)} offset:{192 + 16*i}")
            self.stamp("prefm")
            self.softmax(220, 232)
            self.stamp("postfm")
        self.interleave([(x, "wq") for x in self.wq_groups()], self.capture(part1))
        self.dump("phik", list(range(220, 244)))
        for a, H in ((0, 220), (1, 232)):
            for st in range(3):
                g(f"ds_write_b128 v13, {v(H+4*st,4)} offset:{a*96 + st*32}")
        g("v_accvgpr_read_b32 v160, a193\nv_accvgpr_read_b32 v161, a194\nv_accvgpr_read_b32 v9, a195")
        g(f"v_cmp_gt_u32 vcc, 21, v2\ns_and_b32 s{S_T1}, s{S_WAVE}, 1\ns_mov_b64 {s2(S_MA)}, vcc")
        g.vmwait("wq")
        g("s_waitcnt lgkmcnt(0)\ns_barrier")
        self.stamp("Tbar")
        A0, B0 = 164, 196
        for ks in range(8):
            for rd in range(2):
                g(f"ds_read_b64_tr_b16 {v(A0+4*ks+2*rd,2)}, v160 offset:{(16*ks+rd)*336}")
                g(f"ds_read_b64_tr_b16 {v(B0+4*ks+2*rd,2)}, v161 offset:{(16*ks+rd)*336}")
            if ks >= 2:
                k = ks - 2
                g("s_waitcnt lgkmcnt(8)")
                cin = "0" if k == 0 else "v[92:107]"
                g(f"v_mfma_f32_32x32x16_bf16 v[92:107], {v(A0+4*k,4)}, {v(B0+4*k,4)}, {cin}")
        g("s_waitcnt lgkmcnt(4)")
        g(f"v_mfma_f32_32x32x16_bf16 v[92:107], {v(A0+24,4)}, {v(B0+24,4)}, v[92:107]")
        g("s_waitcnt lgkmcnt(0)")
        g(f"v_mfma_f32_32x32x16_bf16 v[92:107], {v(A0+28,4)}, {v(B0+28,4)}, v[92:107]")
        g(f"""
        s_cmp_lg_u32 s{S_T1}, 0
        s_cbranch_scc1 L_kvft1
        s_mov_b64 exec, {s2(S_MA)}     ; HZ_SKIP_BEGIN
        buffer_store_dwordx4 v[92:95], v9, {srd(SRD_WS)}, s{S_KVS} offen sc1
        buffer_store_dwordx4 v[96:99], v9, {srd(SRD_WS)}, s{S_KVS} offen offset:672 sc1
        buffer_store_dwordx4 v[100:103], v9, {srd(SRD_WS)}, s{S_KVS} offen offset:1344 sc1
        buffer_store_dwordx4 v[104:107], v9, {srd(SRD_WS)}, s{S_KVS} offen offset:2016 sc1
        s_branch L_kvdone              ; HZ_SKIP_END
L_kvft1:
        s_and_b32 s{S_MA}, s{S_MA}, 0x1fffff      ; HZ_SKIP_BEGIN
        s_mov_b32 s{S_MA+1}, 0
        s_mov_b64 exec, {s2(S_MA)}
        buffer_store_dwordx4 v[92:95], v9, {srd(SRD_WS)}, s{S_KVS} offen offset:2688 sc1
        buffer_store_dwordx4 v[96:99], v9, {srd(SRD_WS)}, s{S_KVS} offen offset:3024 sc1   ; HZ_SKIP_END
L_kvdone:
        s_mov_b64 exec, -1
        """)
        self.stamp("kvstore")

    def mark(self, name):
        for e in self.exp:
            if e.startswith("probe:"):
                _, a, b, k = e.split(":")
                ins = "s_memtime" if k.startswith("c") else "s_memrealtime"
                if name == a: self(f"{ins} s[86:87]")
                if name == b: self(f"{ins} s[88:89]")

    def skew_record(self):
        if "skew" not in self.exp: return
        self(f"""
        s_add_u32 s100, s2, 8
        s_and_b32 s100, s100, 0xf0
        s_cmp_lg_u32 s100, 0
        s_cbranch_scc1 L_noskew
        s_cmp_lg_u32 s{S_WAVE}, 0
        s_cbranch_scc1 L_noskew
        s_not_b32 s100, s98
        v_mov_b32 v9, 8
        v_mov_b32 v10, s100
        v_mov_b32 v11, 12
        v_mov_b32 v12, s98
        s_mov_b64 exec, 1
        buffer_atomic_umax v10, v9, {srd(SRD_DBG)}, 0 offen sc1
        buffer_atomic_umax v12, v11, {srd(SRD_DBG)}, 0 offen sc1
        s_mov_b64 exec, -1
L_noskew:
        """)

    def skew_spin(self):
        if "skew" not in self.exp: return
        self(f"""
        v_mov_b32 v9, 8
        buffer_load_dwordx2 v[10:11], v9, {srd(SRD_DBG)}, 0 offen sc1
        s_waitcnt vmcnt(0)
        v_readfirstlane_b32 s92, v10
        v_readfirstlane_b32 s93, v11
        s_not_b32 s92, s92
        s_sub_u32 s92, s93, s92
        s_mul_i32 s92, s92, 4
        s_memrealtime s[90:91]
        s_waitcnt lgkmcnt(0)
        s_add_u32 s92, s92, s90
L_skewspin:
        s_memrealtime s[90:91]
        s_waitcnt lgkmcnt(0)
        s_sub_u32 s93, s92, s90
        s_cmp_gt_i32 s93, 0
        s_cbranch_scc1 L_skewspin
        """)

    def probe_spin(self):
        for e in self.exp:
            if e.startswith("probe:"):
                _, a, b, k = e.split(":")
                self(f"""
                s_memrealtime s[90:91]
                s_waitcnt lgkmcnt(0)
                s_sub_u32 s92, s88, s86
                {f"s_lshr_b32 s92, s92, {k[1:]}" if k.startswith("c") else f"s_mul_i32 s92, s92, {k}"}
                s_add_u32 s92, s92, s90
L_probe:
                s_memrealtime s[90:91]
                s_waitcnt lgkmcnt(0)
                s_sub_u32 s93, s92, s90
                s_cmp_gt_i32 s93, 0
                s_cbranch_scc1 L_probe
                """)

    def dbg_span(self, word, invert):
        if "span" not in self.exp: return
        g = self
        lab = f"L_span{word}"
        g(f"""
        s_and_b32 s100, s2, 15
        s_cmp_lg_u32 s100, 0
        s_cbranch_scc1 {lab}
        s_cmp_lg_u32 s{S_WAVE}, 0
        s_cbranch_scc1 {lab}
        s_memrealtime s[100:101]
        s_waitcnt lgkmcnt(0)
        {"s_not_b32 s100, s98" if invert else "s_nop 0"}
        v_mov_b32 v9, {word*4}
        v_mov_b32 v10, s100
        s_mov_b64 exec, 1
        buffer_atomic_umax v10, v9, {srd(SRD_DBG)}, 0 offen sc1
        s_mov_b64 exec, -1
{lab}:
        """)

    def finish(self):
        g = self
        self.mark("end")
        self.probe_spin()
        self.skew_spin()
        self.dbg_span(3, False)
        if self.stamps:
            g("s_waitcnt lgkmcnt(0)")
            self.flush_stamps()
            g(f"""
            s_lshl_b32 s{S_T0}, s2, 2
            s_add_u32 s{S_T0}, s{S_T0}, s{S_WAVE}
            s_lshl_b32 s{S_T0}, s{S_T0}, 8
            s_add_u32 s{S_T0}, s{S_T0}, {WS_TS}
            v_lshlrev_b32 v9, 2, v1
            buffer_store_dword v255, v9, {srd(SRD_WS)}, s{S_T0} offen
            """)
        g("L_exit:\ns_endpgm\nL_code_end:")

    def pre_k_epilogue(self):
        pass

    def build(self):
        g = self
        self.prologue()
        self.dump("phifrag", list(range(140, 152)))
        self.pass1()
        self.dump("acc1", list(range(16, 84)))
        if self.stop != "pass1":
            self.dbg_span(10, False); self.mark("p1end")
            self.pre_k_epilogue()
            self.k_epilogue()
        if self.stop not in ("pass1", "kv"):
            self.rest()
        self.finish()

    def text(self):
        body, nins = hazard.fix([l.strip() for l in self.a.lines])
        hdr = open("parallel_sum__linear_kernel_hedgehog__moe_arch_mod__prompt.s.ref").read().split("\n")
        top = [l for l in hdr if l.startswith(";") and "@launch" not in l and "Override" not in l and "grid=ceil" not in l]
        out = "\n".join(top) + "\n"
        out += f"; @launch grid=(256,1,1) block=(256,1,1) lds={LDS_SIZE}\n"
        out += '.amdgcn_target "amdgcn-amd-amdhsa--gfx950"\n.text\n' + kernel_header(NAME)
        out += "\n".join("    " + l if not l.endswith(":") else l for l in body if l) + "\n"
        out += f""".section .rodata,"a"
.p2align 6
.amdhsa_kernel {NAME}
  .amdhsa_next_free_vgpr 512
  .amdhsa_next_free_sgpr 102
  .amdhsa_accum_offset 256
  .amdhsa_group_segment_fixed_size 0
  .amdhsa_kernarg_size 96
  .amdhsa_user_sgpr_count 2
  .amdhsa_user_sgpr_kernarg_segment_ptr 1
  .amdhsa_system_sgpr_workgroup_id_x 1
  .amdhsa_float_denorm_mode_32 3
.end_amdhsa_kernel
"""
        return out, nins


if __name__ == "__main__":
    import argparse, json
    import gen_rest
    ap = argparse.ArgumentParser()
    ap.add_argument("-o", default="k.s")
    ap.add_argument("--stop", default=None)
    ap.add_argument("--dump", default="")
    ap.add_argument("--stamps", default="")
    ap.add_argument("--notouch", action="store_true")
    ap.add_argument("--exp", default="")
    args = ap.parse_args()
    G = gen_rest.Full(stop=args.stop, dumps=[d for d in args.dump.split(",") if d], stamps=set(args.stamps.split(",")) if args.stamps else False, touch=not args.notouch, exp=[e for e in args.exp.split(",") if e])
    G.build()
    t, nins = G.text()
    open(args.o, "w").write(t)
    json.dump({"dumps": G.dump_index, "stamps": getattr(G, "stamp_names", [])}, open(args.o + ".json", "w"))
    print("wrote", args.o, "lines", t.count("\n"), "nops inserted", nins)
```

```python
from gen import *

S_RB64, S_CB, S_MU, S_RSEL, S_ROW0 = 20, 21, 22, 23, 12
S_QC = 13
S_WOG, S_WOL = 14, 15
S_WOS = 76
S_OWN = 80
S_STA = 81
S_XO = 85
S_KVE, S_KVB = 79, 75
S_KVA, S_OS = 78, 84
CNT_KV, CNT_O, CNT_M = 0, 16, 32
SPIN_LIMIT = 200000

class Full(Gen):
    def poll(self, name, srd_n, vaddr_setup, target, nl=1):
        g = self
        lab = f"L_poll_{name}"
        g(vaddr_setup)
        g(f"s_mov_b32 exec_lo, {(1 << nl) - 1}\ns_mov_b32 exec_hi, 0")
        g(f"""
        s_mov_b32 s74, 0
{lab}:
        buffer_load_dword v10, v9, {srd(srd_n)}, 0 offen sc1
        s_add_u32 s74, s74, 1
        s_cmp_gt_u32 s74, {SPIN_LIMIT}
        s_cbranch_scc1 {lab}_out
        s_waitcnt vmcnt(0)
        v_cmp_ne_u32 vcc, {target}, v10
        s_cbranch_vccnz {lab}
{lab}_out:
        s_waitcnt vmcnt(0)
        s_mov_b64 exec, -1
        """)

    def poll_issue(self, srd_n, vaddr_setup, nl=1):
        g = self
        g(vaddr_setup)
        g(f"s_mov_b32 exec_lo, {(1 << nl) - 1}\ns_mov_b32 exec_hi, 0\nbuffer_load_dword v239, v238, {srd(srd_n)}, 0 offen sc1\ns_mov_b64 exec, -1")

    def poll_finish(self, name, srd_n, target, nl=1):
        g = self
        lab = f"L_poll_{name}"
        g(f"""
        s_mov_b32 exec_lo, {(1 << nl) - 1}
        s_mov_b32 exec_hi, 0
        s_mov_b32 s74, 0
        s_waitcnt vmcnt(0)
        v_cmp_ne_u32 vcc, {target}, v239
        s_cbranch_vccz {lab}_out
{lab}:
        buffer_load_dword v239, v238, {srd(srd_n)}, 0 offen sc1
        s_add_u32 s74, s74, 1
        s_cmp_gt_u32 s74, {SPIN_LIMIT}
        s_cbranch_scc1 {lab}_out
        s_waitcnt vmcnt(0)
        v_cmp_ne_u32 vcc, {target}, v239
        s_cbranch_vccnz {lab}
{lab}_out:
        s_waitcnt vmcnt(0)
        s_mov_b64 exec, -1
        """)

    def signal(self, name, cnt_sgpr_expr, drain=True):
        g = self
        if drain: g("s_waitcnt vmcnt(0)")
        g(f"""
        s_barrier
        s_cmp_lg_u32 s{S_WAVE}, 0
        s_cbranch_scc1 L_nosig_{name}
        """)
        g(cnt_sgpr_expr + " ; HZ_SKIP_BEGIN")
        g(f"""
        s_lshl_b32 s{S_T0}, s{S_T0}, 7
        v_mov_b32 v9, s{S_T0}
        v_mov_b32 v10, 1
        s_mov_b64 exec, 1
        buffer_atomic_add v10, v9, {srd(SRD_WS)}, 0 offen sc1
        s_mov_b64 exec, -1         ; HZ_SKIP_END
L_nosig_{name}:
        """)

    def publish_kv(self):
        g = self
        g(f"""
        s_cmp_lg_u32 s{S_HP}, 0
        s_cbranch_scc1 L_nostats
        s_lshl_b32 s{S_T0}, s{S_RB}, 7       ; HZ_SKIP_BEGIN
        s_lshl_b32 s{S_T1}, s{S_WAVE}, 5
        s_add_u32 s{S_T0}, s{S_T0}, s{S_T1}
        s_lshl_b32 s{S_T0}, s{S_T0}, 3
        s_add_u32 s{S_T0}, s{S_T0}, {WS_STATS}
        v_lshlrev_b32 v9, 3, v2
        v_mov_b32 v10, v91
        v_mov_b32 v11, v90
        s_mov_b32 exec_hi, 0
        buffer_store_dwordx2 v[10:11], v9, {srd(SRD_WS)}, s{S_T0} offen sc1
        s_mov_b64 exec, -1                   ; HZ_SKIP_END
L_nostats:
        """)
        g(f"""
        v_mul_u32_u24 v9, 6554, v1
        v_lshrrev_b32 v9, 16, v9
        v_mul_u32_u24 v10, 10, v9
        v_sub_u32 v10, v1, v10
        v_mul_u32_u24 v11, 1280, v9
        v_lshl_add_u32 v11, v10, 7, v11
        s_lshl_b32 s{S_T0}, s{S_SLOT}, 2
        s_add_u32 s{S_T0}, s{S_T0}, s{S_WAVE}
        s_mul_i32 s{S_T0}, s{S_T0}, {5*1280}
        s_mov_b32 exec_hi, 0x3ffff
        buffer_load_dword v159, v11, {srd(SRD_WO)}, s{S_T0} offen
        s_mov_b64 exec, -1
        s_waitcnt vmcnt(1)
        """)
        g(f"""
        v_readfirstlane_b32 s{S_T0}, v75
        s_cmp_eq_u32 s{S_T0}, 1
        s_cbranch_scc1 L_isready
        """)
        self.poll("ready", SRD_DBG, "v_mov_b32 v9, 240 ; HZ_SKIP_BEGIN", 1)
        g("s_nop 0 ; HZ_SKIP_END\nL_isready:")
        self.signal("kv", f"s_add_u32 s{S_T0}, s{S_HP}, {CNT_KV}", drain=False)
        self.stamp("kvsig")


    def moe_roles(self):
        g = self
        g(f"""
        s_lshr_b32 s{S_T0}, s{S_XCD}, 1
        s_lshr_b32 s{S_T1}, s{S_SLOT}, 3
        s_add_u32 s{S_T0}, s{S_T0}, s{S_T1}
        s_lshr_b32 s{S_T1}, s{S_SLOT}, 4
        s_lshl_b32 s{S_T1}, s{S_T1}, 3
        s_and_b32 s{S_T2}, s{S_SLOT}, 7
        s_add_u32 s{S_T1}, s{S_T1}, s{S_T2}
        s_mul_i32 s{S_MU}, s{S_XCD}, 14
        s_add_u32 s{S_MU}, s{S_MU}, s{S_T1}
        s_cmp_lt_u32 s{S_T1}, 14
        s_cselect_b32 s{S_MU}, s{S_MU}, 255
        s_bitcmp1_b32 s{S_T0}, 0
        s_cselect_b32 s{S_MU}, 255, s{S_MU}
        s_lshr_b32 s{S_T0}, s{S_SLOT}, 3
        s_lshl_b32 s{S_T1}, s{S_XCD}, 2
        s_add_u32 s{S_RB64}, s{S_T0}, s{S_T1}
        s_and_b32 s{S_CB}, s{S_SLOT}, 7
        s_lshl_b32 s{S_ROW0}, s{S_RB64}, 6
        s_lshl_b32 s{S_T0}, s{S_WAVE}, 4
        s_add_u32 s{S_ROW0}, s{S_ROW0}, s{S_T0}
        s_mul_i32 s{S_T1}, s{S_CB}, 160
        s_mov_b32 s{S_WOG}, s{S_T1}
        s_mul_i32 s{S_T0}, s{S_ROW0}, 1280
        s_add_u32 s{S_XO}, s{S_T0}, s{S_T1}
        s_lshl_b32 s{S_T0}, s{S_RB}, 1
        s_lshr_b32 s{S_T1}, s{S_WAVE}, 1
        s_add_u32 s{S_T0}, s{S_T0}, s{S_T1}
        s_mul_i32 s{S_T0}, s{S_T0}, 81920
        s_and_b32 s{S_T1}, s{S_WAVE}, 1
        s_mul_i32 s{S_T1}, s{S_T1}, 40960
        s_add_u32 s{S_T0}, s{S_T0}, s{S_T1}
        s_lshr_b32 s{S_T1}, s{S_HP}, 2
        s_mul_i32 s{S_T1}, s{S_T1}, 5120
        s_add_u32 s{S_T0}, s{S_T0}, s{S_T1}
        s_and_b32 s{S_T1}, s{S_HP}, 3
        s_lshl_b32 s{S_T1}, s{S_T1}, 8
        s_add_u32 s{S_T0}, s{S_T0}, s{S_T1}
        s_add_u32 s{S_OS}, s{S_T0}, {WS_O}
        """)

    WD = 160
    def moe_load_block(self, k):
        g = self
        lab = f"L_nomoeld{k}"
        g(f"s_cmp_ge_u32 s{S_MU}, 108\ns_cbranch_scc1 {lab}")
        if k == 0:
            g(f"""
            v_lshrrev_b32 v134, 1, v1                ; HZ_SKIP_BEGIN
            v_mul_u32_u24 v134, 3456, v134
            v_and_b32 v10, 1, v1
            v_lshl_add_u32 v134, v10, 4, v134
            v_lshlrev_b32 v135, 3, v0
            """)
        else:
            g("s_nop 0 ; HZ_SKIP_BEGIN")
        g(f"""
        s_and_b32 s{S_T0}, s{S_MU}, 3
        s_add_u32 s{S_T0}, s{S_T0}, {k}
        s_cmp_ge_u32 s{S_T0}, 5
        s_cselect_b32 s{S_T1}, 5, 0
        s_sub_u32 s{S_T3}, s{S_T0}, s{S_T1}
        s_mul_i32 s{S_T1}, s{S_WAVE}, 5
        s_add_u32 s{S_T3}, s{S_T3}, s{S_T1}
        s_mul_i32 s{S_T2}, s{S_T3}, {32*3456}
        s_lshl_b32 s{S_T0}, s{S_MU}, 5
        s_add_u32 s{S_T2}, s{S_T2}, s{S_T0}
        s_lshl_b32 s{S_T1}, s{S_T3}, 10
        s_add_u32 m0, s{S_T1}, {L_G}
        s_mul_i32 s{S_T0}, s{S_MU}, {16*1280}
        buffer_load_dwordx4 v134, {srd(SRD_G)}, s{S_T2} offen lds
        s_add_u32 m0, s{S_T1}, {L_U}
        v_cmp_gt_u32 vcc, 160, v0
        buffer_load_dwordx4 v134, {srd(SRD_U)}, s{S_T2} offen lds
        s_and_saveexec_b64 {s2(S_MA)}, vcc
        s_cbranch_execz {lab}_x
        """)
        us = list(range(16))[[0, 3, 6, 9, 12][k]:[3, 6, 9, 12, 16][k]]
        for u in us:
            g(f"s_add_u32 s{S_T1}, s{S_T0}, {u*1280}\nbuffer_load_dwordx2 {ac(self.WD+2*u,2)}, v135, {srd(SRD_D)}, s{S_T1} offen")
        g(f"{lab}_x:\ns_mov_b64 exec, -1 ; HZ_SKIP_END\n{lab}:")

    def p2_reads(self, n):
        i, ks = divmod(n, 4); b = n % 3
        base = 128 + (i & 1)
        out = []
        for t in range(2):
            for rd in range(2):
                out.append(f"ds_read_b64_tr_b16 {v(92+12*b+4*t+2*rd,2)}, v{base} offset:{(16*ks+rd)*80 + 64*t}")
        for rd in range(2):
            out.append(f"ds_read_b64_tr_b16 {v(160+4*b+2*rd,2)}, v{130 + (i & 1)} offset:{(16*ks+rd)*80}")
        return out

    def p2_base(self, i):
        r = i & 1
        return [f"v_add_u32 v{128+r}, s{S_QC}, v132", f"v_add_u32 v{130+r}, s{S_QC}, v133",
                f"s_add_u32 s{S_QC}, s{S_QC}, 5120", f"s_cmp_eq_u32 s{S_QC}, 51200", f"s_cselect_b32 s{S_QC}, 0, s{S_QC}"]

    def pass2(self):
        g = self
        g(f"""
        v_bfe_u32 v9, v1, 2, 2
        v_lshlrev_b32 v9, 1, v9
        v_add_u32 v9, v9, v3
        v_lshlrev_b32 v9, 1, v9
        v_mul_u32_u24 v9, 80, v9
        v_bfe_u32 v10, v1, 4, 1
        v_and_b32 v11, 3, v1
        v_lshl_add_u32 v10, v10, 2, v11
        v_lshl_add_u32 v9, v10, 3, v9
        v_add_u32 v132, {L_WQ}, v9
        s_lshl_b32 s{S_T0}, s{S_WAVE}, 6
        v_add_u32 v133, s{S_T0}, v132
        s_mul_i32 s{S_QC}, s{S_C0}, 5120
        """)
        for n in range(5): g(f"v_accvgpr_read_b32 v{152+n}, a{200+n}")
        self.wog = self.wo_groups()
        early = self.wog[:10]
        for x in self.p2_base(0): g(x)
        for x in self.p2_reads(0): g(x)
        for x in self.p2_reads(1): g(x)
        for n in range(40):
            i, ks = divmod(n, 4); b = n % 3
            if ks == 1 and i < 9:
                for x in self.p2_base(i + 1): g(x)
            g("s_waitcnt lgkmcnt(0)" if n == 39 else "s_waitcnt lgkmcnt(6)")
            rd = self.p2_reads(n + 2) if n + 2 < 40 else []
            XP = ac(4*n, 4)
            WF = lambda t: 92 + 12*b + 4*t
            cin = lambda r, k: "0" if n == 0 else v(r, k)
            g(f"v_mfma_f32_32x32x16_bf16 v[16:31], {v(WF(0),4)}, {XP}, {cin(16,16)}")
            for x in rd[0:3]: g(x)
            g(f"v_mfma_f32_32x32x16_bf16 v[32:47], {v(WF(1),4)}, {XP}, {cin(32,16)}")
            for x in rd[3:6]: g(x)
            g(f"v_mfma_f32_4x4x4_16b_bf16 v[76:79], {v(160+4*b,2)}, v[84:85], {cin(76,4)}")
            g(f"v_mfma_f32_4x4x4_16b_bf16 v[80:83], {v(160+4*b+2,2)}, v[84:85], {cin(80,4)}")
            if n in (3, 11, 19, 27, 35): self.moe_load_block((n - 3) // 8)
            if n >= 18 and n % 2 == 0 and early:
                for x in early.pop(0): g(x)
            if n == 36: self.kv_poll_issue()
            if n in (9, 19, 29): self.stamp(f"p2_{n}")
        while early:
            for x in early.pop(0): g(x)
        self.stamp("p2end")

    def q_epilogue_a(self):
        g = self
        self.smtag = "q"
        for n in range(3):
            g(f"v_accvgpr_read_b32 v{134+n}, a{205+n}\nv_accvgpr_read_b32 v{68+n}, a{211+n}")
        self.stats_and_colsum(False)
        quads = [(16+4*j, 8*j) for j in range(4)] + [(32, 32)]
        g(f"v_lshlrev_b32 v9, 4, v3\nv_add_u32 v9, {L_CS + 512}, v9")
        self.norm_reads(quads, 512, 160)
        self.norm_apply(quads, 160, 0)
        PK = 244
        for i in range(10):
            g(f"v_cvt_pk_bf16_f32 v{PK+i}, v{16+2*i}, v{16+2*i+1}")
        self.stamp("q_cvt")

    def q_epilogue_b(self):
        g = self
        self.featmap_mfma(244)
        for i in range(4): g(f"v_accvgpr_read_b32 v{56+i}, a{196+i}")
        self.softmax(220, 232)
        self.stamp("qdone")

    def xres_groups(self):
        XR, ST = self.XR, self.ST
        grp = []
        for n in range(3):
            grp.append([f"buffer_load_dwordx4 {v(XR+4*n,4)}, v{134+n}, {srd(SRD_X)}, s{S_XO} offen"])
            pre = [f"s_lshl_b32 s{S_T0}, s{S_ROW0}, 3", f"s_add_u32 s{S_STA}, s{S_T0}, {WS_STATS}"] if n == 0 else []
            grp.append(pre + [f"v_lshlrev_b32 v67, 3, v{68+n}", f"buffer_load_dwordx2 {v(ST+2*n,2)}, v67, {srd(SRD_WS)}, s{S_STA} offen sc1"])
        return grp

    def q_epilogue(self):
        kg = self.kv_load_groups()
        self.interleave([(x, "kvp") for x in kg[:8]], self.capture(self.q_epilogue_a))
        self.interleave([(x, "xres") for x in self.xres_groups()] + [(x, "kvp") for x in kg[8:]], self.capture(self.q_epilogue_b))
        self.dump("phiq", list(range(220, 244)))
        self.vmwait("xres")
        self.interleave([(x, "wo") for x in self.wog[10:18]], self.capture(self.residual))
        self.stamp("resid")

    def kv_poll_issue(self):
        g = self
        g(f"""
        s_add_u32 s{S_T0}, s{S_HP}, {CNT_KV}
        s_lshl_b32 s{S_T0}, s{S_T0}, 7
        v_mov_b32 v238, s{S_T0}
        v_cmp_eq_u32 vcc, 1, v1
        v_cndmask_b32 v238, v238, {CNT_KV * 128}, vcc
        v_lshlrev_b32 v240, 6, v1
        s_mov_b32 exec_lo, 15
        s_mov_b32 exec_hi, 0
        buffer_load_dword v241, v240, {srd(SRD_DBG)}, 0 offen sc1
        s_mov_b32 exec_lo, 3
        buffer_load_dword v239, v238, {srd(SRD_WS)}, 0 offen sc1
        s_mov_b64 exec, -1
        """)

    def kv_wait(self):
        g = self
        self.poll_finish("kv", SRD_WS, 16, nl=2)
        self.stamp("kvseen")
        g(f"""
        s_mov_b32 exec_lo, 15
        s_mov_b32 exec_hi, 0
        v_cmp_ne_u32 vcc, 64, v241
        s_mov_b64 exec, -1
        s_cbranch_vccz L_rmaxok
        """)
        self.poll("rmax", SRD_DBG, "v_lshlrev_b32 v9, 6, v1 ; HZ_SKIP_BEGIN", 64, nl=4)
        g(f"""
        s_nop 0 ; HZ_SKIP_END
L_rmaxok:
        s_mul_i32 s{S_KVA}, s{S_HP}, {16*KVP_SZ}
        s_add_u32 s{S_KVA}, s{S_KVA}, {WS_KVP}
        s_add_u32 s{S_KVE}, s{S_KVA}, {16*KVP_SZ}
        s_mov_b32 s{S_KVB}, s{S_KVA}
        s_and_b32 s{S_T0}, s{S_SLOT}, 7
        s_mul_i32 s{S_T0}, s{S_T0}, {2*KVP_SZ}
        s_add_u32 s{S_KVA}, s{S_KVA}, s{S_T0}
        v_lshlrev_b32 v64, 4, v0
        s_mul_i32 s{S_T0}, s{S_WAVE}, {41*16}
        s_add_u32 s{S_T0}, s{S_T0}, 4096
        v_lshl_add_u32 v65, v1, 4, s{S_T0}
        s_mov_b32 s{S_MB}, -1
        s_mov_b32 s{S_MB+1}, 0x1ff
        v_lshlrev_b32 v66, 5, v1
        v_add_u32 v66, {WS_RMAX}, v66
        """)

    def kv_load_groups(self):
        grp = []
        for p in range(16):
            grp.append([f"buffer_load_dwordx4 {ac(4*p,4)}, v64, {srd(SRD_WS)}, s{S_KVA} offen sc1", f"s_mov_b64 exec, {s2(S_MB)}",
                        ])
            grp[-1] = [f"buffer_load_dwordx4 {ac(4*p,4)}, v64, {srd(SRD_WS)}, s{S_KVA} offen sc1"]
            grp.append([f"s_mov_b64 exec, {s2(S_MB)}", f"buffer_load_dwordx4 {ac(64+4*p,4)}, v65, {srd(SRD_WS)}, s{S_KVA} offen sc1",
                        "s_mov_b64 exec, -1", f"s_add_u32 s{S_KVA}, s{S_KVA}, {KVP_SZ}",
                        f"s_cmp_eq_u32 s{S_KVA}, s{S_KVE}", f"s_cselect_b32 s{S_KVA}, s{S_KVB}, s{S_KVA}"])
        grp.append([f"buffer_load_dwordx4 v[48:51], v66, {srd(SRD_WS)}, 0 offen sc1"])
        grp.append([f"buffer_load_dwordx4 v[52:55], v66, {srd(SRD_WS)}, 0 offen offset:16 sc1"])
        return grp

    def argmax(self):
        g = self
        g(f"""
        v_cmp_gt_f32 vcc, v50, v48
        v_cndmask_b32 v48, v48, v50, vcc
        v_cndmask_b32 v49, v49, v51, vcc
        v_cmp_gt_f32 vcc, v52, v48
        v_cndmask_b32 v48, v48, v52, vcc
        v_cndmask_b32 v49, v49, v53, vcc
        v_cmp_gt_f32 vcc, v54, v48
        v_cndmask_b32 v48, v48, v54, vcc
        v_cndmask_b32 v49, v49, v55, vcc
        v_mov_b32 v50, v48
        """)
        for ctl in ("row_shr:1 row_mask:0xf bank_mask:0xf", "row_shr:2 row_mask:0xf bank_mask:0xf",
                    "row_shr:4 row_mask:0xf bank_mask:0xf", "row_shr:8 row_mask:0xf bank_mask:0xf",
                    "row_bcast:15 row_mask:0xa bank_mask:0xf", "row_bcast:31 row_mask:0xc bank_mask:0xf"):
            g(f"v_max_f32_dpp v50, v50, v50 {ctl}")
        g(f"""
        v_readlane_b32 s{S_RSEL}, v50, 63
        v_cmp_eq_f32 vcc, s{S_RSEL}, v48
        s_ff1_i32_b64 s{S_T0}, vcc
        s_max_i32 s{S_T0}, s{S_T0}, 0
        v_readlane_b32 s{S_IDX}, v49, s{S_T0}
        s_nop 0
        s_and_b32 s{S_IDX}, s{S_IDX}, 2047
        """)

    def moe(self):
        g = self
        WD = self.WD
        g("v_rcp_f32 v67, v67")
        for d in range(5):
            g(f"""
            v_lshlrev_b32 v168, 16, v{60+d}
            v_and_b32 v169, 0xffff0000, v{60+d}
            v_sub_f32 v168, v168, v66
            v_sub_f32 v169, v169, v66
            v_cvt_pk_bf16_f32 v168, v168, v169
            v_lshlrev_b32 v169, 16, v168
            v_and_b32 v168, 0xffff0000, v168
            v_mul_f32 v169, v169, v67
            v_mul_f32 v168, v168, v67
            v_cvt_pk_bf16_f32 v{60+d}, v169, v168
            """)
        g(f"""
        s_mul_i32 s{S_T0}, s{S_WAVE}, 1280
        s_add_u32 s{S_T0}, s{S_T0}, {L_XS}
        v_mul_u32_u24 v9, 20, v1
        v_add_u32 v9, s{S_T0}, v9
        ds_write_b32 v9, v60
        ds_write_b32 v9, v61 offset:4
        ds_write_b32 v9, v62 offset:8
        ds_write_b32 v9, v63 offset:12
        ds_write_b32 v9, v64 offset:16
        v_bfe_u32 v9, v1, 2, 2
        v_lshl_add_u32 v9, v3, 3, v9
        s_mul_i32 s{S_T1}, s{S_WAVE}, 160
        v_add_u32 v9, s{S_T1}, v9
        v_lshlrev_b32 v9, 5, v9
        v_and_b32 v10, 3, v1
        v_lshl_add_u32 v9, v10, 3, v9
        v_bfe_u32 v10, v1, 4, 1
        v_mul_u32_u24 v10, {L_U - L_G}, v10
        v_add_u32 v9, v9, v10
        v_add_u32 v9, {L_G}, v9
        s_mul_i32 s{S_T1}, s{S_WAVE}, 320
        s_add_u32 s{S_T0}, s{S_T0}, s{S_T1}
        v_lshlrev_b32 v10, 4, v3
        v_add_u32 v10, s{S_T0}, v10
        s_waitcnt lgkmcnt(0)
        """)
        def rd(ks):
            A = 32 + 8*ks
            g(f"""
            ds_read_b64_tr_b16 {v(A,2)}, v9 offset:{(16*ks)*32}
            ds_read_b64_tr_b16 {v(A+2,2)}, v9 offset:{(16*ks+4)*32}
            ds_read_b128 {v(A+4,4)}, v10 offset:{32*ks}
            """)
        for ks in range(4): rd(ks)
        for ks in range(10):
            if ks + 4 < 10:
                g("s_waitcnt lgkmcnt(9)"); rd(ks + 4) if False else None
                g(f"v_mfma_f32_32x32x16_bf16 v[16:31], {v(32+8*ks,4)}, {v(36+8*ks,4)}, {'0' if ks == 0 else 'v[16:31]'}")
                rd(ks + 4)
            else:
                g(f"s_waitcnt lgkmcnt({3*(9-ks)})")
                g(f"v_mfma_f32_32x32x16_bf16 v[16:31], {v(32+8*ks,4)}, {v(36+8*ks,4)}, v[16:31]")
        g(f"""
        s_lshl_b32 s{S_T0}, s{S_WAVE}, 7
        s_add_u32 s{S_T0}, s{S_T0}, {L_HP}
        v_lshlrev_b32 v9, 4, v3
        v_add_u32 v9, s{S_T0}, v9
        s_mov_b32 exec_lo, 1
        s_mov_b32 exec_hi, 1
        ds_write_b128 v9, v[16:19]
        ds_write_b128 v9, v[20:23] offset:32
        ds_write_b128 v9, v[24:27] offset:64
        ds_write_b128 v9, v[28:31] offset:96
        s_mov_b64 exec, -1
        s_waitcnt lgkmcnt(0)
        s_barrier
        v_and_b32 v9, 15, v1
        v_lshlrev_b32 v9, 2, v9
        v_add_u32 v9, {L_HP}, v9
        ds_read_b32 v160, v9
        ds_read_b32 v161, v9 offset:128
        ds_read_b32 v162, v9 offset:256
        ds_read_b32 v163, v9 offset:384
        ds_read_b32 v164, v9 offset:64
        ds_read_b32 v165, v9 offset:192
        ds_read_b32 v166, v9 offset:320
        ds_read_b32 v167, v9 offset:448
        s_waitcnt lgkmcnt(0)
        v_add_f32 v160, v160, v161
        v_add_f32 v162, v162, v163
        v_add_f32 v164, v164, v165
        v_add_f32 v166, v166, v167
        v_add_f32 v160, v160, v162
        v_add_f32 v164, v164, v166
        """)
        g.rnd_bf16(160, 160); g.rnd_bf16(164, 164)
        g(f"""
        v_mul_f32 v161, 0xbfb8aa3b, v160
        v_exp_f32 v161, v161
        v_add_f32 v161, 1.0, v161
        v_rcp_f32 v161, v161
        v_mul_f32 v160, v160, v161
        """)
        g.rnd_bf16(160, 160)
        g("v_mul_f32 v160, v160, v164")
        g.rnd_bf16(160, 160)
        g("""
        v_mov_b32 v161, v160
        s_nop 1
        v_mov_b32_dpp v161, v160 row_shl:1 row_mask:0xf bank_mask:0xf
        s_nop 1
        v_cvt_pk_bf16_f32 v160, v160, v161
        """)
        for i in range(4): g(f"v_mov_b32 v{16+i}, 0")
        g("s_mov_b32 s74, 0x05040100\nv_mov_b32 v26, s74\ns_mov_b32 s74, 0x07060302\nv_mov_b32 v27, s74")
        for p in range(8):
            a0, a1 = WD + 4*p, WD + 4*p + 2
            g(f"""
            v_readlane_b32 s74, v160, {2*p}
            v_accvgpr_read_b32 v20, a{a0}
            v_accvgpr_read_b32 v21, a{a0+1}
            v_accvgpr_read_b32 v22, a{a1}
            v_accvgpr_read_b32 v23, a{a1+1}
            v_perm_b32 v24, v22, v20, v26
            v_perm_b32 v25, v22, v20, v27
            v_perm_b32 v28, v23, v21, v26
            v_perm_b32 v29, v23, v21, v27
            v_dot2c_f32_bf16 v16, s74, v24
            v_dot2c_f32_bf16 v17, s74, v25
            v_dot2c_f32_bf16 v18, s74, v28
            v_dot2c_f32_bf16 v19, s74, v29
            """)
        g("s_nop 2")

    def kv_addresses(self):
        g = self
        for k, (gi, out1, out2) in enumerate(((0, 196, 197), (256, 198, 199))):
            if k == 0: g("v_mov_b32 v9, v0")
            else: g(f"s_mul_i32 s{S_T0}, s{S_WAVE}, 41\ns_add_u32 s{S_T0}, s{S_T0}, 256\nv_add_u32 v9, s{S_T0}, v1")
            g(f"""
            v_cmp_lt_u32 vcc, 209, v9
            v_cndmask_b32 v10, 0, 1, vcc
            v_mul_u32_u24 v11, 210, v10
            v_sub_u32 v9, v9, v11
            v_mul_u32_u24 v11, 3121, v9
            v_lshrrev_b32 v11, 16, v11
            v_mul_u32_u24 v12, 21, v11
            v_sub_u32 v12, v9, v12
            v_lshrrev_b32 v13, 1, v11
            v_and_b32 v14, 1, v11
            v_cmp_lt_u32 vcc, 7, v11
            v_subrev_u32 v15, 4, v11
            v_cndmask_b32 v13, v13, v15, vcc
            v_cndmask_b32 v14, v14, 0, vcc
            v_lshrrev_b32 v15, 1, v13
            v_and_b32 v13, 1, v13
            v_mul_u32_u24 v15, 1024, v15
            v_lshl_add_u32 v15, v13, 9, v15
            v_lshl_add_u32 v15, v14, 3, v15
            v_mul_u32_u24 v13, 3072, v10
            v_add_u32 v15, v15, v13
            v_add_u32 v15, {L_KVF}, v15
            v_lshlrev_b32 v13, 2, v10
            v_sub_u32 v13, v12, v13
            v_add_u32 v14, 20, v13
            v_cmp_gt_i32 vcc, 0, v13
            v_cndmask_b32 v13, v13, v14, vcc
            v_subrev_u32 v14, 16, v13
            v_lshrrev_b32 v60, 3, v13
            v_and_b32 v61, 7, v13
            v_lshrrev_b32 v62, 1, v14
            v_and_b32 v63, 1, v14
            v_add_u32 v63, 8, v63
            v_cmp_lt_u32 vcc, 15, v13
            v_cndmask_b32 v60, v60, v62, vcc
            v_cndmask_b32 v61, v61, v63, vcc
            v_lshrrev_b32 v62, 2, v61
            v_lshlrev_b32 v62, 3, v62
            v_lshl_add_u32 v62, v60, 2, v62
            v_and_b32 v61, 3, v61
            v_add_u32 v62, v62, v61
            v_cmp_eq_u32 vcc, 20, v12
            v_cndmask_b32 v63, v62, 22, vcc
            v_cndmask_b32 v62, v62, 18, vcc
            v_lshl_add_u32 v62, v62, 4, v15
            v_lshl_add_u32 v63, v63, 4, v15
            v_accvgpr_write_b32 a{out1}, v62
            v_accvgpr_write_b32 a{out2}, v63
            """)

    def kv_reduce_and_o(self):
        g = self
        for n in range(3):
            g(f"v_accvgpr_read_b32 v{137+n}, a{208+n}\nv_accvgpr_read_b32 v{140+n}, a{211+n}\nv_accvgpr_read_b32 v{143+n}, a{214+n}")
        g.vmwait("kvp")
        self.stamp("kvdata")
        g(f"s_cmp_ge_u32 s{S_MU}, 108\ns_cbranch_scc1 L_noxrow\ns_nop 0 ; HZ_SKIP_BEGIN")
        self.argmax()
        g(f"""
        v_mul_u32_u24 v9, 20, v1
        s_mul_i32 s{S_T1}, s{S_IDX}, 1280
        buffer_load_dwordx4 v[60:63], v9, {srd(SRD_X)}, s{S_T1} offen
        buffer_load_dword v64, v9, {srd(SRD_X)}, s{S_T1} offen offset:16
        s_lshl_b32 s{S_T1}, s{S_IDX}, 3
        s_add_u32 s{S_T1}, s{S_T1}, {WS_STATS}
        v_mov_b32 v9, 0
        buffer_load_dwordx2 v[66:67], v9, {srd(SRD_WS)}, s{S_T1} offen sc1   ; HZ_SKIP_END
L_noxrow:
        """)
        def reduce():
            for base, acc in ((0, 16), (64, 92)):
                for e in range(4): g(f"v_accvgpr_read_b32 v{acc+e}, a{base+e}")
                for p in range(1, 16):
                    t = acc + 4 + 4 * (p & 1)
                    for e in range(4): g(f"v_accvgpr_read_b32 v{t+e}, a{base+4*p+e}")
                    g(f"v_pk_add_f32 {v(acc,2)}, {v(acc,2)}, {v(t,2)}\nv_pk_add_f32 {v(acc+2,2)}, {v(acc+2,2)}, {v(t+2,2)}")
        self.interleave([(x, "wo") for x in self.wog[18:]], self.capture(reduce))
        self.stamp("r_sum")
        g(f"""
        v_cvt_pk_bf16_f32 v16, v16, v17
        v_cvt_pk_bf16_f32 v17, v18, v19
        v_cvt_pk_bf16_f32 v92, v92, v93
        v_cvt_pk_bf16_f32 v93, v94, v95
        ds_write_b64 v56, v[16:17]
        ds_write_b64 v57, v[16:17]
        s_mov_b64 exec, {s2(S_MB)}
        ds_write_b64 v58, v[92:93]
        ds_write_b64 v59, v[92:93]
        s_mov_b64 exec, -1
        s_waitcnt lgkmcnt(0)
        s_barrier
        v_lshlrev_b32 v9, 4, v1
        v_add_u32 v9, {L_KVF}, v9
        """)
        self.stamp("r_bar")
        for a in range(2):
            for t in range(3):
                g(f"ds_read_b128 {v(92+12*a+4*t,4)}, v9 offset:{a*3072 + t*1024}")
        self.dump("kvf", list(range(92, 116)))
        for a, (acc, H) in enumerate(((16, 220), (32, 232))):
            g(f"s_waitcnt lgkmcnt({3 - 3*a})")
            for t in range(3):
                g(f"v_mfma_f32_32x32x16_bf16 {v(acc,16)}, {v(92+12*a+4*t,4)}, {v(H+4*t,4)}, {'0' if t == 0 else v(acc,16)}")
        self.dump("num", list(range(16, 48)))
        g("v_accvgpr_read_b32 v10, a217\nv_accvgpr_read_b32 v11, a218\nv_mov_b32 v12, 0x358637bd")
        for a, (acc, P) in enumerate(((16, 160), (32, 166))):
            g(f"v_add_f32 v{acc+10}, v{acc+10}, v12\nv_rcp_f32 v{acc+10}, v{acc+10}")
        for a, (acc, P) in enumerate(((16, 160), (32, 166))):
            for i in range(5):
                g(f"v_pk_mul_f32 {v(acc+2*i,2)}, {v(acc+2*i,2)}, {v(acc+10,2)} op_sel_hi:[1,0]")
            for i in range(5):
                g(f"v_cvt_pk_bf16_f32 v{P+i}, v{acc+2*i}, v{acc+2*i+1}")
        self.dump("o", list(range(160, 165)) + list(range(166, 171)))
        g(f"""
        v_mov_b32 v172, v164
        v_mov_b32 v173, v170
        s_nop 1
        v_permlane32_swap_b32 v172, v173
        buffer_store_dwordx4 v[160:163], v10, {srd(SRD_WS)}, s{S_OS} offen sc1
        buffer_store_dwordx2 v[172:173], v11, {srd(SRD_WS)}, s{S_OS} offen offset:2048 sc1
        buffer_store_dwordx4 v[166:169], v10, {srd(SRD_WS)}, s{S_OS} offen offset:3072 sc1
        """)
        self.stamp("o_store")
        g(f"s_cmp_lt_u32 s{S_MU}, 108\ns_cbranch_scc1 L_noarg2\ns_nop 0 ; HZ_SKIP_BEGIN")
        self.argmax()
        g("s_nop 0 ; HZ_SKIP_END\nL_noarg2:")
        self.stamp("o_wo8")
        g("s_waitcnt vmcnt(0)")
        self.stamp("o_drain")
        self.signal("o", f"s_add_u32 s{S_T0}, s{S_RB}, {CNT_O}", drain=False)
        self.stamp("osig")

    XR, RS, ST = 16, 176, 28
    NA = 8
    YQ = [100, 104, 108, 112, 116, 120, 124, 146, 150]
    def wo_groups(self):
        grp = []
        for j in (3, 4, 0, 1, 2):
            for n in range(5):
                gl = []
                if n == 0:
                    gl += [f"s_add_u32 s{S_T3}, s{S_WAVE}, {4*j}", f"s_mul_i32 s{S_WOL}, s{S_T3}, 5120",
                           f"s_mul_i32 s{S_T4}, s{S_T3}, 13108", f"s_lshr_b32 s{S_T4}, s{S_T4}, 16",
                           f"s_mul_i32 s{S_T4}, s{S_T4}, {120*1280}", f"s_mul_i32 s{S_T3}, s{S_T3}, {8*1280}",
                           f"s_add_u32 s{S_T3}, s{S_T3}, s{S_T4}", f"s_add_u32 s{S_WOS}, s{S_T3}, s{S_WOG}"]
                gl += [f"s_add_u32 m0, s{S_WOL}, {L_WO + n*1024}", "s_nop 0",
                       f"buffer_load_dwordx4 v{152+n}, {srd(SRD_WO)}, s{S_WOS} offen lds"]
                grp.append(gl)
        return grp

    def c_addresses(self):
        g = self
        for n in range(5):
            g(f"""
            v_add_u32 v9, {64*n}, v1
            v_mul_u32_u24 v10, 6554, v9
            v_lshrrev_b32 v10, 16, v10
            v_mul_u32_u24 v11, 10, v10
            v_sub_u32 v11, v9, v11
            v_bfe_u32 v12, v10, 3, 1
            v_bfe_u32 v13, v10, 2, 1
            v_lshl_add_u32 v12, v12, 1, v13
            v_mul_u32_u24 v12, 40, v12
            v_lshrrev_b32 v13, 4, v10
            v_lshl_add_u32 v12, v13, 2, v12
            v_and_b32 v13, 3, v10
            v_add_u32 v12, v12, v13
            v_mul_u32_u24 v12, 1280, v12
            v_lshl_add_u32 v12, v11, 4, v12
            v_accvgpr_write_b32 a{200+n}, v12
            """)
            if n < 3:
                g(f"""
                v_min_u32 v10, 15, v10
                v_mul_u32_u24 v12, 1280, v10
                v_lshl_add_u32 v12, v11, 4, v12
                v_accvgpr_write_b32 a{205+n}, v12
                v_mul_u32_u24 v12, 336, v10
                v_lshl_add_u32 v12, v11, 5, v12
                v_accvgpr_write_b32 a{208+n}, v12
                v_accvgpr_write_b32 a{211+n}, v10
                v_lshlrev_b32 v12, 5, v11
                v_accvgpr_write_b32 a{214+n}, v12
                """)

    def o_addresses(self):
        g = self
        g("""
        v_lshrrev_b32 v9, 4, v2
        v_mul_u32_u24 v9, 20480, v9
        v_and_b32 v10, 15, v2
        v_lshl_add_u32 v9, v10, 4, v9
        v_lshl_add_u32 v10, v3, 10, v9
        v_lshl_add_u32 v11, v3, 3, v9
        v_accvgpr_write_b32 a217, v10
        v_accvgpr_write_b32 a218, v11
        """)

    def residual(self):
        g = self
        XR, RS, ST = self.XR, self.RS, self.ST
        for n in range(3):
            xr, rs, st = XR + 4*n, RS + 8*n, ST + 2*n
            g(f"v_rcp_f32 v{st+1}, v{st+1}")
            for d in range(4):
                g(f"""
                v_lshlrev_b32 v10, 16, v{xr+d}
                v_and_b32 v11, 0xffff0000, v{xr+d}
                v_sub_f32 v12, v10, v{st}
                v_sub_f32 v13, v11, v{st}
                v_cvt_pk_bf16_f32 v12, v12, v13
                v_lshlrev_b32 v13, 16, v12
                v_and_b32 v12, 0xffff0000, v12
                v_mul_f32 v13, v13, v{st+1}
                v_mul_f32 v12, v12, v{st+1}
                v_cvt_pk_bf16_f32 v12, v13, v12
                v_lshlrev_b32 v13, 16, v12
                v_and_b32 v12, 0xffff0000, v12
                v_add_f32 v{rs+2*d}, v13, v10
                v_add_f32 v{rs+2*d+1}, v12, v11
                """)

    def phase_c(self):
        g = self
        XR, RS, ST = self.XR, self.RS, self.ST
        self.stamp("argmax")
        g(f"s_cmp_ge_u32 s{S_MU}, 108\ns_cbranch_scc1 L_wodone")
        g("s_nop 0 ; HZ_SKIP_BEGIN")
        self.moe()
        g(f"""
        s_mul_i32 s{S_T0}, s{S_MU}, 2560
        s_add_u32 s{S_T0}, s{S_T0}, {WS_Y}
        v_lshlrev_b32 v9, 4, v0
        v_cmp_gt_u32 vcc, 160, v0
        s_and_saveexec_b64 {s2(S_MA)}, vcc
        s_cbranch_execz L_noy
        buffer_store_dwordx4 v[16:19], v9, {srd(SRD_WS)}, s{S_T0} offen sc1
L_noy:
        s_mov_b64 exec, -1
        s_nop 0 ; HZ_SKIP_END
L_wodone:
        """)
        self.stamp("moedone"); self.mark("moedone")
        g(f"""
        v_bfe_u32 v10, v1, 5, 1
        v_lshlrev_b32 v10, 3, v10
        v_bfe_u32 v11, v1, 4, 1
        v_lshl_add_u32 v10, v11, 2, v10
        v_bfe_u32 v11, v1, 2, 2
        v_add_u32 v10, v10, v11
        v_mul_u32_u24 v10, 160, v10
        v_and_b32 v11, 3, v1
        v_lshl_add_u32 v10, v11, 3, v10
        v_add_u32 v236, {L_WO}, v10
        v_add_u32 v237, {L_WO + 10*5120}, v10
        """)
        NA = self.NA
        def wo_reads(ks):
            base = 236 + ks // 10
            out = []
            for ct in range(5):
                for rd in range(2):
                    dst = ac(20*ks + 4*ct + 2*rd, 2) if ks < NA else v(40 + 20*(ks % 3) + 4*ct + 2*rd, 2)
                    out.append(f"ds_read_b64_tr_b16 {dst}, v{base} offset:{(ks % 10)*5120 + rd*2560 + ct*32}")
            return out
        self.poll_issue(SRD_WS, f"s_lshr_b32 s{S_T0}, s{S_RB64}, 1\ns_add_u32 s{S_T0}, s{S_T0}, {CNT_O}\ns_lshl_b32 s{S_T0}, s{S_T0}, 7\nv_mov_b32 v238, s{S_T0}")
        for ks in range(NA + 2):
            for x in wo_reads(ks): g(x)
            if ks < NA + 1: g("s_waitcnt lgkmcnt(5)")
        g(f"s_cmp_ge_u32 s{S_MU}, 108\ns_cbranch_scc1 L_nomoesig")
        g("s_waitcnt vmcnt(0) ; HZ_SKIP_BEGIN")
        self.signal("moe", f"s_and_b32 s{S_T0}, s{S_MU}, 3\ns_add_u32 s{S_T0}, s{S_T0}, {CNT_M}", drain=False)
        g("s_nop 0 ; HZ_SKIP_END\nL_nomoesig:")
        g(f"""
        s_lshl_b32 s{S_T0}, s{S_RB64}, 6
        s_sub_u32 s{S_OWN}, s{S_IDX}, s{S_T0}
        s_cmp_ge_u32 s{S_OWN}, 64
        s_cbranch_scc1 L_noown0
        v_min_u32 v10, 19, v1                  ; HZ_SKIP_BEGIN
        v_lshlrev_b32 v10, 3, v10
        s_mul_i32 s{S_T0}, s{S_IDX}, 1280
        s_mul_i32 s{S_T1}, s{S_CB}, 160
        s_add_u32 s{S_T0}, s{S_T0}, s{S_T1}
        buffer_load_dwordx2 v[200:201], v10, {srd(SRD_X)}, s{S_T0} offen
        s_lshl_b32 s{S_T0}, s{S_IDX}, 3
        s_add_u32 s{S_T0}, s{S_T0}, {WS_STATS}
        v_mov_b32 v10, 0
        buffer_load_dwordx2 v[202:203], v10, {srd(SRD_WS)}, s{S_T0} offen sc1   ; HZ_SKIP_END
L_noown0:
        """)
        self.poll_finish("o", SRD_WS, 16)
        self.stamp("oseen"); self.dbg_span(8, False); self.mark("oseen")
        g(f"""
        s_mul_i32 s{S_T0}, s{S_RB64}, 81920
        s_mul_i32 s{S_T1}, s{S_WAVE}, 20480
        s_add_u32 s{S_T0}, s{S_T0}, s{S_T1}
        s_add_u32 s{S_T0}, s{S_T0}, {WS_O}
        v_lshlrev_b32 v9, 4, v1
        """)
        self.vm = []
        regs_o = list(range(100, 128, 4)) + list(range(146, 174, 4)) + [220, 224, 228, 232, 240, 244]
        assert len(regs_o) == 20, len(regs_o)
        def oload(ks):
            g(f"buffer_load_dwordx4 {v(regs_o[ks],4)}, v9, {srd(SRD_WS)}, s{S_T0} offen sc1\ns_add_u32 s{S_T0}, s{S_T0}, 1024")
            g.vmi(f"o{ks}")
        AHEAD = 10
        for ks in range(AHEAD): oload(ks)
        g(f"""
        v_lshlrev_b32 v238, 7, v1
        v_add_u32 v238, {CNT_M*128}, v238
        s_mov_b32 exec_lo, 15
        s_mov_b32 exec_hi, 0
        buffer_load_dword v239, v238, {srd(SRD_WS)}, 0 offen sc1
        s_mov_b64 exec, -1
        """)
        g.vmi("cm")
        self.stamp("c_issued")
        for ks in range(20):
            if ks == 0: g("s_waitcnt lgkmcnt(0)")
            elif ks >= NA: g("s_waitcnt lgkmcnt(5)" if ks < 18 else ("s_waitcnt lgkmcnt(10)" if ks < 19 else "s_waitcnt lgkmcnt(0)"))
            if ks < 15: g.vmwait(f"o{ks}")
            if ks == 15:
                g("s_waitcnt vmcnt(0)")
                g(f"s_cmp_ge_u32 s{S_OWN}, 64\ns_cbranch_scc1 L_noown1\ns_nop 0 ; HZ_SKIP_BEGIN")
                self.poll_finish("m", SRD_WS, 27, nl=4)
                g(f"""
                v_mul_u32_u24 v10, 3277, v1
                v_lshrrev_b32 v10, 16, v10
                v_mul_u32_u24 v11, 20, v10
                v_sub_u32 v11, v1, v11
                v_mul_u32_u24 v12, 2560, v10
                v_lshl_add_u32 v12, v11, 4, v12
                s_mul_i32 s{S_T0}, s{S_CB}, 320
                s_mul_i32 s{S_T1}, s{S_WAVE}, {27*2560}
                s_add_u32 s{S_T0}, s{S_T0}, s{S_T1}
                s_add_u32 s{S_T0}, s{S_T0}, {WS_Y}
                s_mov_b32 exec_hi, 0x0fffffff
                """)
                for j in range(9):
                    g(f"buffer_load_dwordx4 {v(self.YQ[j],4)}, v12, {srd(SRD_WS)}, s{S_T0} offen sc1\ns_add_u32 s{S_T0}, s{S_T0}, {3*2560}")
                g(f"""
                s_mov_b64 exec, -1
                v_mul_u32_u24 v12, 320, v10
                v_lshl_add_u32 v12, v11, 4, v12
                s_mul_i32 s{S_T1}, s{S_WAVE}, 960
                s_add_u32 s{S_T1}, s{S_T1}, {L_YR}
                v_add_u32 v204, s{S_T1}, v12
                s_nop 0 ; HZ_SKIP_END
L_noown1:
                """)
            if ks in (0, 5, 10, 15): self.stamp(f"c_o{ks}")
            rd = wo_reads(ks + 2) if NA <= ks < 18 else []
            for ct in range(5):
                cin = "0" if ks == 0 else v(16+4*ct, 4)
                A = ac(20*ks + 4*ct, 4) if ks < NA else v(40 + 20*(ks % 3) + 4*ct, 4)
                g(f"v_mfma_f32_16x16x32_bf16 {v(16+4*ct,4)}, {A}, {v(regs_o[ks],4)}, {cin}")
                for x in rd[2*ct:2*ct+2]: g(x)
            if ks + AHEAD < 20: oload(ks + AHEAD)
        self.stamp("cmfma"); self.mark("cmfma")
        Y = self.YQ[0]
        g(f"""
        s_cmp_ge_u32 s{S_OWN}, 64
        s_cbranch_scc1 L_noown2
        s_waitcnt vmcnt(0)                     ; HZ_SKIP_BEGIN
        """)
        for j in range(1, 9):
            q = self.YQ[j]
            g(f"v_pk_add_f32 {v(Y,2)}, {v(Y,2)}, {v(q,2)}\nv_pk_add_f32 {v(Y+2,2)}, {v(Y+2,2)}, {v(q+2,2)}")
        g(f"""
        s_mov_b32 exec_hi, 0x0fffffff
        ds_write_b128 v204, {v(Y,4)}
        s_mov_b64 exec, -1
        v_mov_b32 v205, s{S_RSEL}
        """)
        g.rnd_bf16(205, 205)
        g(f"""
        v_mul_f32 v205, 0xbfb8aa3b, v205
        v_exp_f32 v205, v205
        v_rcp_f32 v203, v203
        v_add_f32 v205, 1.0, v205
        v_rcp_f32 v205, v205
        v_lshlrev_b32 v206, 16, v200
        v_and_b32 v207, 0xffff0000, v200
        v_lshlrev_b32 v208, 16, v201
        v_and_b32 v209, 0xffff0000, v201
        """)
        g.rnd_bf16(205, 205)
        for e in range(4):
            g(f"v_sub_f32 v{206+e}, v{206+e}, v202")
            g.rnd_bf16(206+e, 206+e)
            g(f"v_mul_f32 v{206+e}, v{206+e}, v203")
            g.rnd_bf16(206+e, 206+e)
        g(f"""
        v_min_u32 v10, 19, v1
        v_lshlrev_b32 v10, 4, v10
        v_add_u32 v10, {L_YR}, v10
        s_waitcnt lgkmcnt(0)
        s_barrier
        """)
        Y = 40
        for j in range(12):
            g(f"ds_read_b128 {v(Y+4*j,4)}, v10 offset:{320*j}")
        g("s_waitcnt lgkmcnt(0)")
        for j in range(1, 12):
            g(f"v_pk_add_f32 {v(Y,2)}, {v(Y,2)}, {v(Y+4*j,2)}\nv_pk_add_f32 {v(Y+2,2)}, {v(Y+2,2)}, {v(Y+4*j+2,2)}")
        for e in range(4):
            g.rnd_bf16(Y+e, Y+e)
            g(f"v_mul_f32 v{Y+e}, v{Y+e}, v205")
            g.rnd_bf16(Y+e, Y+e)
            g(f"v_add_f32 v{Y+e}, v{Y+e}, v{206+e}")
            g.rnd_bf16(Y+e, Y+e)
            g(f"v_sub_f32 v{210+e}, v{Y+e}, v{206+e}")
        g("s_nop 0 ; HZ_SKIP_END\nL_noown2:")
        g(f"""
        s_mul_i32 s{S_T0}, s{S_WAVE}, 5376
        s_add_u32 s{S_T0}, s{S_T0}, {L_OST}
        v_and_b32 v9, 15, v1
        v_mul_u32_u24 v9, 336, v9
        v_lshrrev_b32 v10, 4, v1
        v_lshl_add_u32 v9, v10, 4, v9
        v_add_u32 v9, s{S_T0}, v9
        """)
        for ct in range(5): g(f"ds_write_b128 v9, {v(16+4*ct,4)} offset:{64*ct}")
        for n in range(3): g(f"v_add_u32 v{10+n}, s{S_T0}, v{137+n}")
        g(f"""
        s_waitcnt lgkmcnt(0)
        s_sub_u32 s{S_T4}, s{S_IDX}, s{S_ROW0}
        s_cmp_ge_u32 s{S_T4}, 16
        s_cbranch_scc1 L_norow
        s_mul_i32 s{S_T4}, s{S_T4}, 336            ; HZ_SKIP_BEGIN
        s_add_u32 s{S_T4}, s{S_T4}, s{S_T0}
        v_lshl_add_u32 v9, v1, 4, s{S_T4}
        s_mov_b32 exec_lo, 0xfffff
        s_mov_b32 exec_hi, 0
        ds_read_b128 v[40:43], v9
        s_waitcnt lgkmcnt(0)
        v_pk_add_f32 v[40:41], v[40:41], v[210:211]
        v_pk_add_f32 v[42:43], v[42:43], v[212:213]
        ds_write_b128 v9, v[40:43]
        s_waitcnt lgkmcnt(0)
        s_mov_b64 exec, -1                         ; HZ_SKIP_END
L_norow:
        """)
        for n in range(3):
            g(f"ds_read_b128 {v(40+8*n,4)}, v{10+n}\nds_read_b128 {v(44+8*n,4)}, v{10+n} offset:16")
        for n in range(3):
            rs = RS + 8*n
            g(f"s_waitcnt lgkmcnt({4 - 2*n})")
            for e in range(0, 8, 2):
                g(f"v_pk_add_f32 {v(40+8*n+e,2)}, {v(40+8*n+e,2)}, {v(rs+e,2)}")
            for e in range(4):
                g(f"v_cvt_pk_bf16_f32 v{64+4*n+e}, v{40+8*n+2*e}, v{40+8*n+2*e+1}")
            if n == 2: g("s_mov_b32 exec_hi, 0")
            g(f"buffer_store_dwordx4 {v(64+4*n,4)}, v{134+n}, {srd(SRD_OUT)}, s{S_XO} offen")
        g("s_mov_b64 exec, -1")
        self.stamp("end"); self.stamp("clk1", True)

    def rest(self):
        self.publish_kv()
        self.dbg_span(4, False); self.mark("kvsig")
        self.pass2()
        self.kv_wait()
        self.dbg_span(9, False); self.mark("kvseen")
        self.q_epilogue()
        self.dbg_span(5, False)
        self.kv_reduce_and_o()
        self.dbg_span(6, False); self.mark("osig")
        self.phase_c()
```

```python
from gen import *

S_RB64, S_CB, S_MU, S_RSEL, S_ROW0 = 20, 21, 22, 23, 12
S_QC = 13
S_WOG, S_WOL = 14, 15
S_WOS = 76
S_OWN = 80
S_STA = 81
S_XO = 85
S_KVE, S_KVB = 79, 75
S_KVA, S_OS = 78, 84
CNT_KV, CNT_O, CNT_M = 0, 16, 32
SPIN_LIMIT = 200000

class Full(Gen):
    def poll(self, name, srd_n, vaddr_setup, target, nl=1):
        g = self
        lab = f"L_poll_{name}"
        g(vaddr_setup)
        g(f"s_mov_b32 exec_lo, {(1 << nl) - 1}\ns_mov_b32 exec_hi, 0")
        g(f"""
        s_mov_b32 s74, 0
{lab}:
        buffer_load_dword v10, v9, {srd(srd_n)}, 0 offen sc1
        s_add_u32 s74, s74, 1
        s_cmp_gt_u32 s74, {SPIN_LIMIT}
        s_cbranch_scc1 {lab}_out
        s_waitcnt vmcnt(0)
        v_cmp_ne_u32 vcc, {target}, v10
        s_cbranch_vccnz {lab}
{lab}_out:
        s_waitcnt vmcnt(0)
        s_mov_b64 exec, -1
        """)

    def poll_issue(self, srd_n, vaddr_setup, nl=1):
        g = self
        g(vaddr_setup)
        g(f"s_mov_b32 exec_lo, {(1 << nl) - 1}\ns_mov_b32 exec_hi, 0\nbuffer_load_dword v239, v238, {srd(srd_n)}, 0 offen sc1\ns_mov_b64 exec, -1")

    def poll_finish(self, name, srd_n, target, nl=1):
        g = self
        lab = f"L_poll_{name}"
        g(f"""
        s_mov_b32 exec_lo, {(1 << nl) - 1}
        s_mov_b32 exec_hi, 0
        s_mov_b32 s74, 0
        s_waitcnt vmcnt(0)
        v_cmp_ne_u32 vcc, {target}, v239
        s_cbranch_vccz {lab}_out
{lab}:
        buffer_load_dword v239, v238, {srd(srd_n)}, 0 offen sc1
        s_add_u32 s74, s74, 1
        s_cmp_gt_u32 s74, {SPIN_LIMIT}
        s_cbranch_scc1 {lab}_out
        s_waitcnt vmcnt(0)
        v_cmp_ne_u32 vcc, {target}, v239
        s_cbranch_vccnz {lab}
{lab}_out:
        s_waitcnt vmcnt(0)
        s_mov_b64 exec, -1
        """)

    def signal(self, name, cnt_sgpr_expr, drain=True):
        g = self
        if drain: g("s_waitcnt vmcnt(0)")
        g(f"""
        s_barrier
        s_cmp_lg_u32 s{S_WAVE}, 0
        s_cbranch_scc1 L_nosig_{name}
        """)
        g(cnt_sgpr_expr + " ; HZ_SKIP_BEGIN")
        g(f"""
        s_lshl_b32 s{S_T0}, s{S_T0}, 7
        v_mov_b32 v9, s{S_T0}
        v_mov_b32 v10, 1
        s_mov_b64 exec, 1
        buffer_atomic_add v10, v9, {srd(SRD_WS)}, 0 offen sc1
        s_mov_b64 exec, -1         ; HZ_SKIP_END
L_nosig_{name}:
        """)

    def publish_kv(self):
        g = self
        g(f"""
        s_cmp_lg_u32 s{S_HP}, 0
        s_cbranch_scc1 L_nostats
        s_lshl_b32 s{S_T0}, s{S_RB}, 7       ; HZ_SKIP_BEGIN
        s_lshl_b32 s{S_T1}, s{S_WAVE}, 5
        s_add_u32 s{S_T0}, s{S_T0}, s{S_T1}
        s_lshl_b32 s{S_T0}, s{S_T0}, 3
        s_add_u32 s{S_T0}, s{S_T0}, {WS_STATS}
        v_lshlrev_b32 v9, 3, v2
        v_mov_b32 v10, v91
        v_mov_b32 v11, v90
        s_mov_b32 exec_hi, 0
        buffer_store_dwordx2 v[10:11], v9, {srd(SRD_WS)}, s{S_T0} offen sc1
        s_mov_b64 exec, -1                   ; HZ_SKIP_END
L_nostats:
        """)
        g(f"""
        v_mul_u32_u24 v9, 6554, v1
        v_lshrrev_b32 v9, 16, v9
        v_mul_u32_u24 v10, 10, v9
        v_sub_u32 v10, v1, v10
        v_mul_u32_u24 v11, 1280, v9
        v_lshl_add_u32 v11, v10, 7, v11
        s_lshl_b32 s{S_T0}, s{S_SLOT}, 2
        s_add_u32 s{S_T0}, s{S_T0}, s{S_WAVE}
        s_mul_i32 s{S_T0}, s{S_T0}, {5*1280}
        s_mov_b32 exec_hi, 0x3ffff
        buffer_load_dword v159, v11, {srd(SRD_WO)}, s{S_T0} offen
        s_mov_b64 exec, -1
        s_waitcnt vmcnt(1)
        """)
        g(f"""
        v_readfirstlane_b32 s{S_T0}, v75
        s_cmp_eq_u32 s{S_T0}, 1
        s_cbranch_scc1 L_isready
        """)
        self.poll("ready", SRD_DBG, "v_mov_b32 v9, 240 ; HZ_SKIP_BEGIN", 1)
        g("s_nop 0 ; HZ_SKIP_END\nL_isready:")
        self.signal("kv", f"s_add_u32 s{S_T0}, s{S_HP}, {CNT_KV}", drain=False)
        self.stamp("kvsig")


    def moe_roles(self):
        g = self
        g(f"""
        s_lshr_b32 s{S_T0}, s{S_XCD}, 1
        s_lshr_b32 s{S_T1}, s{S_SLOT}, 3
        s_add_u32 s{S_T0}, s{S_T0}, s{S_T1}
        s_lshr_b32 s{S_T1}, s{S_SLOT}, 4
        s_lshl_b32 s{S_T1}, s{S_T1}, 3
        s_and_b32 s{S_T2}, s{S_SLOT}, 7
        s_add_u32 s{S_T1}, s{S_T1}, s{S_T2}
        s_mul_i32 s{S_MU}, s{S_XCD}, 14
        s_add_u32 s{S_MU}, s{S_MU}, s{S_T1}
        s_cmp_lt_u32 s{S_T1}, 14
        s_cselect_b32 s{S_MU}, s{S_MU}, 255
        s_bitcmp1_b32 s{S_T0}, 0
        s_cselect_b32 s{S_MU}, 255, s{S_MU}
        s_lshr_b32 s{S_T0}, s{S_SLOT}, 3
        s_lshl_b32 s{S_T1}, s{S_XCD}, 2
        s_add_u32 s{S_RB64}, s{S_T0}, s{S_T1}
        s_and_b32 s{S_CB}, s{S_SLOT}, 7
        s_lshl_b32 s{S_ROW0}, s{S_RB64}, 6
        s_lshl_b32 s{S_T0}, s{S_WAVE}, 4
        s_add_u32 s{S_ROW0}, s{S_ROW0}, s{S_T0}
        s_mul_i32 s{S_T1}, s{S_CB}, 160
        s_mov_b32 s{S_WOG}, s{S_T1}
        s_mul_i32 s{S_T0}, s{S_ROW0}, 1280
        s_add_u32 s{S_XO}, s{S_T0}, s{S_T1}
        s_lshl_b32 s{S_T0}, s{S_RB}, 1
        s_lshr_b32 s{S_T1}, s{S_WAVE}, 1
        s_add_u32 s{S_T0}, s{S_T0}, s{S_T1}
        s_mul_i32 s{S_T0}, s{S_T0}, 81920
        s_and_b32 s{S_T1}, s{S_WAVE}, 1
        s_mul_i32 s{S_T1}, s{S_T1}, 40960
        s_add_u32 s{S_T0}, s{S_T0}, s{S_T1}
        s_lshr_b32 s{S_T1}, s{S_HP}, 2
        s_mul_i32 s{S_T1}, s{S_T1}, 5120
        s_add_u32 s{S_T0}, s{S_T0}, s{S_T1}
        s_and_b32 s{S_T1}, s{S_HP}, 3
        s_lshl_b32 s{S_T1}, s{S_T1}, 8
        s_add_u32 s{S_T0}, s{S_T0}, s{S_T1}
        s_add_u32 s{S_OS}, s{S_T0}, {WS_O}
        """)

    WD = 160
    def moe_load_block(self, k):
        g = self
        lab = f"L_nomoeld{k}"
        g(f"s_cmp_ge_u32 s{S_MU}, 108\ns_cbranch_scc1 {lab}")
        if k == 0:
            g(f"""
            v_lshrrev_b32 v134, 1, v1                ; HZ_SKIP_BEGIN
            v_mul_u32_u24 v134, 3456, v134
            v_and_b32 v10, 1, v1
            v_lshl_add_u32 v134, v10, 4, v134
            v_lshlrev_b32 v135, 3, v0
            """)
        else:
            g("s_nop 0 ; HZ_SKIP_BEGIN")
        g(f"""
        s_and_b32 s{S_T0}, s{S_MU}, 3
        s_add_u32 s{S_T0}, s{S_T0}, {k}
        s_cmp_ge_u32 s{S_T0}, 5
        s_cselect_b32 s{S_T1}, 5, 0
        s_sub_u32 s{S_T3}, s{S_T0}, s{S_T1}
        s_mul_i32 s{S_T1}, s{S_WAVE}, 5
        s_add_u32 s{S_T3}, s{S_T3}, s{S_T1}
        s_mul_i32 s{S_T2}, s{S_T3}, {32*3456}
        s_lshl_b32 s{S_T0}, s{S_MU}, 5
        s_add_u32 s{S_T2}, s{S_T2}, s{S_T0}
        s_lshl_b32 s{S_T1}, s{S_T3}, 10
        s_add_u32 m0, s{S_T1}, {L_G}
        s_mul_i32 s{S_T0}, s{S_MU}, {16*1280}
        buffer_load_dwordx4 v134, {srd(SRD_G)}, s{S_T2} offen lds
        s_add_u32 m0, s{S_T1}, {L_U}
        v_cmp_gt_u32 vcc, 160, v0
        buffer_load_dwordx4 v134, {srd(SRD_U)}, s{S_T2} offen lds
        s_and_saveexec_b64 {s2(S_MA)}, vcc
        s_cbranch_execz {lab}_x
        """)
        us = list(range(16))[[0, 3, 6, 9, 12][k]:[3, 6, 9, 12, 16][k]]
        for u in us:
            g(f"s_add_u32 s{S_T1}, s{S_T0}, {u*1280}\nbuffer_load_dwordx2 {ac(self.WD+2*u,2)}, v135, {srd(SRD_D)}, s{S_T1} offen")
        g(f"{lab}_x:\ns_mov_b64 exec, -1 ; HZ_SKIP_END\n{lab}:")

    def p2_reads(self, n):
        i, ks = divmod(n, 4); b = n % 3
        base = 128 + (i & 1)
        out = []
        for t in range(2):
            for rd in range(2):
                out.append(f"ds_read_b64_tr_b16 {v(92+12*b+4*t+2*rd,2)}, v{base} offset:{(16*ks+rd)*80 + 64*t}")
        for rd in range(2):
            out.append(f"ds_read_b64_tr_b16 {v(160+4*b+2*rd,2)}, v{130 + (i & 1)} offset:{(16*ks+rd)*80}")
        return out

    def p2_base(self, i):
        r = i & 1
        return [f"v_add_u32 v{128+r}, s{S_QC}, v132", f"v_add_u32 v{130+r}, s{S_QC}, v133",
                f"s_add_u32 s{S_QC}, s{S_QC}, 5120", f"s_cmp_eq_u32 s{S_QC}, 51200", f"s_cselect_b32 s{S_QC}, 0, s{S_QC}"]

    def pass2(self):
        g = self
        g(f"""
        v_bfe_u32 v9, v1, 2, 2
        v_lshlrev_b32 v9, 1, v9
        v_add_u32 v9, v9, v3
        v_lshlrev_b32 v9, 1, v9
        v_mul_u32_u24 v9, 80, v9
        v_bfe_u32 v10, v1, 4, 1
        v_and_b32 v11, 3, v1
        v_lshl_add_u32 v10, v10, 2, v11
        v_lshl_add_u32 v9, v10, 3, v9
        v_add_u32 v132, {L_WQ}, v9
        s_lshl_b32 s{S_T0}, s{S_WAVE}, 6
        v_add_u32 v133, s{S_T0}, v132
        s_mul_i32 s{S_QC}, s{S_C0}, 5120
        """)
        for n in range(5): g(f"v_accvgpr_read_b32 v{152+n}, a{200+n}")
        self.wog = self.wo_groups()
        early = self.wog[:10]
        for x in self.p2_base(0): g(x)
        for x in self.p2_reads(0): g(x)
        for x in self.p2_reads(1): g(x)
        for n in range(40):
            i, ks = divmod(n, 4); b = n % 3
            if ks == 1 and i < 9:
                for x in self.p2_base(i + 1): g(x)
            g("s_waitcnt lgkmcnt(0)" if n == 39 else "s_waitcnt lgkmcnt(6)")
            rd = self.p2_reads(n + 2) if n + 2 < 40 else []
            XP = ac(4*n, 4)
            WF = lambda t: 92 + 12*b + 4*t
            cin = lambda r, k: "0" if n == 0 else v(r, k)
            g(f"v_mfma_f32_32x32x16_bf16 v[16:31], {v(WF(0),4)}, {XP}, {cin(16,16)}")
            for x in rd[0:3]: g(x)
            g(f"v_mfma_f32_32x32x16_bf16 v[32:47], {v(WF(1),4)}, {XP}, {cin(32,16)}")
            for x in rd[3:6]: g(x)
            g(f"v_mfma_f32_4x4x4_16b_bf16 v[76:79], {v(160+4*b,2)}, v[84:85], {cin(76,4)}")
            g(f"v_mfma_f32_4x4x4_16b_bf16 v[80:83], {v(160+4*b+2,2)}, v[84:85], {cin(80,4)}")
            if n in (3, 11, 19, 27, 35): self.moe_load_block((n - 3) // 8)
            if n >= 18 and n % 2 == 0 and early:
                for x in early.pop(0): g(x)
            if n == 36: self.kv_poll_issue()
            if n in (9, 19, 29): self.stamp(f"p2_{n}")
        while early:
            for x in early.pop(0): g(x)
        self.stamp("p2end")

    def q_epilogue_a(self):
        g = self
        self.smtag = "q"
        for n in range(3):
            g(f"v_accvgpr_read_b32 v{134+n}, a{205+n}\nv_accvgpr_read_b32 v{68+n}, a{211+n}")
        self.stats_and_colsum(False)
        quads = [(16+4*j, 8*j) for j in range(4)] + [(32, 32)]
        g(f"v_lshlrev_b32 v9, 4, v3\nv_add_u32 v9, {L_CS + 512}, v9")
        self.norm_reads(quads, 512, 160)
        self.norm_apply(quads, 160, 0)
        PK = 244
        for i in range(10):
            g(f"v_cvt_pk_bf16_f32 v{PK+i}, v{16+2*i}, v{16+2*i+1}")
        self.stamp("q_cvt")

    def q_epilogue_b(self):
        g = self
        self.featmap_mfma(244)
        for i in range(4): g(f"v_accvgpr_read_b32 v{56+i}, a{196+i}")
        self.softmax(220, 232)
        self.stamp("qdone")

    def xres_groups(self):
        XR, ST = self.XR, self.ST
        grp = []
        for n in range(3):
            grp.append([f"buffer_load_dwordx4 {v(XR+4*n,4)}, v{134+n}, {srd(SRD_X)}, s{S_XO} offen"])
            pre = [f"s_lshl_b32 s{S_T0}, s{S_ROW0}, 3", f"s_add_u32 s{S_STA}, s{S_T0}, {WS_STATS}"] if n == 0 else []
            grp.append(pre + [f"v_lshlrev_b32 v67, 3, v{68+n}", f"buffer_load_dwordx2 {v(ST+2*n,2)}, v67, {srd(SRD_WS)}, s{S_STA} offen sc1"])
        return grp

    def q_epilogue(self):
        kg = self.kv_load_groups()
        self.interleave([(x, "kvp") for x in kg[:8]], self.capture(self.q_epilogue_a))
        self.interleave([(x, "xres") for x in self.xres_groups()] + [(x, "kvp") for x in kg[8:]], self.capture(self.q_epilogue_b))
        self.dump("phiq", list(range(220, 244)))
        self.vmwait("xres")
        self.interleave([(x, "wo") for x in self.wog[10:18]], self.capture(self.residual))
        self.stamp("resid")

    def kv_poll_issue(self):
        g = self
        g(f"""
        s_add_u32 s{S_T0}, s{S_HP}, {CNT_KV}
        s_lshl_b32 s{S_T0}, s{S_T0}, 7
        v_mov_b32 v238, s{S_T0}
        v_cmp_eq_u32 vcc, 1, v1
        v_cndmask_b32 v238, v238, {CNT_KV * 128}, vcc
        v_lshlrev_b32 v240, 6, v1
        s_mov_b32 exec_lo, 15
        s_mov_b32 exec_hi, 0
        buffer_load_dword v241, v240, {srd(SRD_DBG)}, 0 offen sc1
        s_mov_b32 exec_lo, 3
        buffer_load_dword v239, v238, {srd(SRD_WS)}, 0 offen sc1
        s_mov_b64 exec, -1
        """)

    def kv_wait(self):
        g = self
        self.poll_finish("kv", SRD_WS, 16, nl=2)
        self.stamp("kvseen")
        g(f"""
        s_mov_b32 exec_lo, 15
        s_mov_b32 exec_hi, 0
        v_cmp_ne_u32 vcc, 64, v241
        s_mov_b64 exec, -1
        s_cbranch_vccz L_rmaxok
        """)
        self.poll("rmax", SRD_DBG, "v_lshlrev_b32 v9, 6, v1 ; HZ_SKIP_BEGIN", 64, nl=4)
        g(f"""
        s_nop 0 ; HZ_SKIP_END
L_rmaxok:
        s_mul_i32 s{S_KVA}, s{S_HP}, {16*KVP_SZ}
        s_add_u32 s{S_KVA}, s{S_KVA}, {WS_KVP}
        s_add_u32 s{S_KVE}, s{S_KVA}, {16*KVP_SZ}
        s_mov_b32 s{S_KVB}, s{S_KVA}
        s_and_b32 s{S_T0}, s{S_SLOT}, 7
        s_mul_i32 s{S_T0}, s{S_T0}, {2*KVP_SZ}
        s_add_u32 s{S_KVA}, s{S_KVA}, s{S_T0}
        v_lshlrev_b32 v64, 4, v0
        s_mul_i32 s{S_T0}, s{S_WAVE}, {41*16}
        s_add_u32 s{S_T0}, s{S_T0}, 4096
        v_lshl_add_u32 v65, v1, 4, s{S_T0}
        s_mov_b32 s{S_MB}, -1
        s_mov_b32 s{S_MB+1}, 0x1ff
        v_lshlrev_b32 v66, 5, v1
        v_add_u32 v66, {WS_RMAX}, v66
        """)

    def kv_load_groups(self):
        grp = []
        for p in range(16):
            grp.append([f"buffer_load_dwordx4 {ac(4*p,4)}, v64, {srd(SRD_WS)}, s{S_KVA} offen sc1", f"s_mov_b64 exec, {s2(S_MB)}",
                        ])
            grp[-1] = [f"buffer_load_dwordx4 {ac(4*p,4)}, v64, {srd(SRD_WS)}, s{S_KVA} offen sc1"]
            grp.append([f"s_mov_b64 exec, {s2(S_MB)}", f"buffer_load_dwordx4 {ac(64+4*p,4)}, v65, {srd(SRD_WS)}, s{S_KVA} offen sc1",
                        "s_mov_b64 exec, -1", f"s_add_u32 s{S_KVA}, s{S_KVA}, {KVP_SZ}",
                        f"s_cmp_eq_u32 s{S_KVA}, s{S_KVE}", f"s_cselect_b32 s{S_KVA}, s{S_KVB}, s{S_KVA}"])
        grp.append([f"buffer_load_dwordx4 v[48:51], v66, {srd(SRD_WS)}, 0 offen sc1"])
        grp.append([f"buffer_load_dwordx4 v[52:55], v66, {srd(SRD_WS)}, 0 offen offset:16 sc1"])
        return grp

    def argmax(self):
        g = self
        g(f"""
        v_cmp_gt_f32 vcc, v50, v48
        v_cndmask_b32 v48, v48, v50, vcc
        v_cndmask_b32 v49, v49, v51, vcc
        v_cmp_gt_f32 vcc, v52, v48
        v_cndmask_b32 v48, v48, v52, vcc
        v_cndmask_b32 v49, v49, v53, vcc
        v_cmp_gt_f32 vcc, v54, v48
        v_cndmask_b32 v48, v48, v54, vcc
        v_cndmask_b32 v49, v49, v55, vcc
        v_mov_b32 v50, v48
        """)
        for ctl in ("row_shr:1 row_mask:0xf bank_mask:0xf", "row_shr:2 row_mask:0xf bank_mask:0xf",
                    "row_shr:4 row_mask:0xf bank_mask:0xf", "row_shr:8 row_mask:0xf bank_mask:0xf",
                    "row_bcast:15 row_mask:0xa bank_mask:0xf", "row_bcast:31 row_mask:0xc bank_mask:0xf"):
            g(f"v_max_f32_dpp v50, v50, v50 {ctl}")
        g(f"""
        v_readlane_b32 s{S_RSEL}, v50, 63
        v_cmp_eq_f32 vcc, s{S_RSEL}, v48
        s_ff1_i32_b64 s{S_T0}, vcc
        s_max_i32 s{S_T0}, s{S_T0}, 0
        v_readlane_b32 s{S_IDX}, v49, s{S_T0}
        s_nop 0
        s_and_b32 s{S_IDX}, s{S_IDX}, 2047
        """)

    def moe(self):
        g = self
        WD = self.WD
        g("v_rcp_f32 v67, v67")
        for d in range(5):
            g(f"""
            v_lshlrev_b32 v168, 16, v{60+d}
            v_and_b32 v169, 0xffff0000, v{60+d}
            v_sub_f32 v168, v168, v66
            v_sub_f32 v169, v169, v66
            v_cvt_pk_bf16_f32 v168, v168, v169
            v_lshlrev_b32 v169, 16, v168
            v_and_b32 v168, 0xffff0000, v168
            v_mul_f32 v169, v169, v67
            v_mul_f32 v168, v168, v67
            v_cvt_pk_bf16_f32 v{60+d}, v169, v168
            """)
        g(f"""
        s_mul_i32 s{S_T0}, s{S_WAVE}, 1280
        s_add_u32 s{S_T0}, s{S_T0}, {L_XS}
        v_mul_u32_u24 v9, 20, v1
        v_add_u32 v9, s{S_T0}, v9
        ds_write_b32 v9, v60
        ds_write_b32 v9, v61 offset:4
        ds_write_b32 v9, v62 offset:8
        ds_write_b32 v9, v63 offset:12
        ds_write_b32 v9, v64 offset:16
        v_bfe_u32 v9, v1, 2, 2
        v_lshl_add_u32 v9, v3, 3, v9
        s_mul_i32 s{S_T1}, s{S_WAVE}, 160
        v_add_u32 v9, s{S_T1}, v9
        v_lshlrev_b32 v9, 5, v9
        v_and_b32 v10, 3, v1
        v_lshl_add_u32 v9, v10, 3, v9
        v_bfe_u32 v10, v1, 4, 1
        v_mul_u32_u24 v10, {L_U - L_G}, v10
        v_add_u32 v9, v9, v10
        v_add_u32 v9, {L_G}, v9
        s_mul_i32 s{S_T1}, s{S_WAVE}, 320
        s_add_u32 s{S_T0}, s{S_T0}, s{S_T1}
        v_lshlrev_b32 v10, 4, v3
        v_add_u32 v10, s{S_T0}, v10
        s_waitcnt lgkmcnt(0)
        """)
        def rd(ks):
            A = 32 + 8*ks
            g(f"""
            ds_read_b64_tr_b16 {v(A,2)}, v9 offset:{(16*ks)*32}
            ds_read_b64_tr_b16 {v(A+2,2)}, v9 offset:{(16*ks+4)*32}
            ds_read_b128 {v(A+4,4)}, v10 offset:{32*ks}
            """)
        for ks in range(4): rd(ks)
        for ks in range(10):
            if ks + 4 < 10:
                g("s_waitcnt lgkmcnt(9)"); rd(ks + 4) if False else None
                g(f"v_mfma_f32_32x32x16_bf16 v[16:31], {v(32+8*ks,4)}, {v(36+8*ks,4)}, {'0' if ks == 0 else 'v[16:31]'}")
                rd(ks + 4)
            else:
                g(f"s_waitcnt lgkmcnt({3*(9-ks)})")
                g(f"v_mfma_f32_32x32x16_bf16 v[16:31], {v(32+8*ks,4)}, {v(36+8*ks,4)}, v[16:31]")
        g(f"""
        s_lshl_b32 s{S_T0}, s{S_WAVE}, 7
        s_add_u32 s{S_T0}, s{S_T0}, {L_HP}
        v_lshlrev_b32 v9, 4, v3
        v_add_u32 v9, s{S_T0}, v9
        s_mov_b32 exec_lo, 1
        s_mov_b32 exec_hi, 1
        ds_write_b128 v9, v[16:19]
        ds_write_b128 v9, v[20:23] offset:32
        ds_write_b128 v9, v[24:27] offset:64
        ds_write_b128 v9, v[28:31] offset:96
        s_mov_b64 exec, -1
        s_waitcnt lgkmcnt(0)
        s_barrier
        v_and_b32 v9, 15, v1
        v_lshlrev_b32 v9, 2, v9
        v_add_u32 v9, {L_HP}, v9
        ds_read_b32 v160, v9
        ds_read_b32 v161, v9 offset:128
        ds_read_b32 v162, v9 offset:256
        ds_read_b32 v163, v9 offset:384
        ds_read_b32 v164, v9 offset:64
        ds_read_b32 v165, v9 offset:192
        ds_read_b32 v166, v9 offset:320
        ds_read_b32 v167, v9 offset:448
        s_waitcnt lgkmcnt(0)
        v_add_f32 v160, v160, v161
        v_add_f32 v162, v162, v163
        v_add_f32 v164, v164, v165
        v_add_f32 v166, v166, v167
        v_add_f32 v160, v160, v162
        v_add_f32 v164, v164, v166
        """)
        g.rnd_bf16(160, 160); g.rnd_bf16(164, 164)
        g(f"""
        v_mul_f32 v161, 0xbfb8aa3b, v160
        v_exp_f32 v161, v161
        v_add_f32 v161, 1.0, v161
        v_rcp_f32 v161, v161
        v_mul_f32 v160, v160, v161
        """)
        g.rnd_bf16(160, 160)
        g("v_mul_f32 v160, v160, v164")
        g.rnd_bf16(160, 160)
        g("""
        v_mov_b32 v161, v160
        s_nop 1
        v_mov_b32_dpp v161, v160 row_shl:1 row_mask:0xf bank_mask:0xf
        s_nop 1
        v_cvt_pk_bf16_f32 v160, v160, v161
        """)
        for i in range(4): g(f"v_mov_b32 v{16+i}, 0")
        g("s_mov_b32 s74, 0x05040100\nv_mov_b32 v26, s74\ns_mov_b32 s74, 0x07060302\nv_mov_b32 v27, s74")
        for p in range(8):
            a0, a1 = WD + 4*p, WD + 4*p + 2
            g(f"""
            v_readlane_b32 s74, v160, {2*p}
            v_accvgpr_read_b32 v20, a{a0}
            v_accvgpr_read_b32 v21, a{a0+1}
            v_accvgpr_read_b32 v22, a{a1}
            v_accvgpr_read_b32 v23, a{a1+1}
            v_perm_b32 v24, v22, v20, v26
            v_perm_b32 v25, v22, v20, v27
            v_perm_b32 v28, v23, v21, v26
            v_perm_b32 v29, v23, v21, v27
            v_dot2c_f32_bf16 v16, s74, v24
            v_dot2c_f32_bf16 v17, s74, v25
            v_dot2c_f32_bf16 v18, s74, v28
            v_dot2c_f32_bf16 v19, s74, v29
            """)
        g("s_nop 2")

    def kv_addresses(self):
        g = self
        for k, (gi, out1, out2) in enumerate(((0, 196, 197), (256, 198, 199))):
            if k == 0: g("v_mov_b32 v9, v0")
            else: g(f"s_mul_i32 s{S_T0}, s{S_WAVE}, 41\ns_add_u32 s{S_T0}, s{S_T0}, 256\nv_add_u32 v9, s{S_T0}, v1")
            g(f"""
            v_cmp_lt_u32 vcc, 209, v9
            v_cndmask_b32 v10, 0, 1, vcc
            v_mul_u32_u24 v11, 210, v10
            v_sub_u32 v9, v9, v11
            v_mul_u32_u24 v11, 3121, v9
            v_lshrrev_b32 v11, 16, v11
            v_mul_u32_u24 v12, 21, v11
            v_sub_u32 v12, v9, v12
            v_lshrrev_b32 v13, 1, v11
            v_and_b32 v14, 1, v11
            v_cmp_lt_u32 vcc, 7, v11
            v_subrev_u32 v15, 4, v11
            v_cndmask_b32 v13, v13, v15, vcc
            v_cndmask_b32 v14, v14, 0, vcc
            v_lshrrev_b32 v15, 1, v13
            v_and_b32 v13, 1, v13
            v_mul_u32_u24 v15, 1024, v15
            v_lshl_add_u32 v15, v13, 9, v15
            v_lshl_add_u32 v15, v14, 3, v15
            v_mul_u32_u24 v13, 3072, v10
            v_add_u32 v15, v15, v13
            v_add_u32 v15, {L_KVF}, v15
            v_lshlrev_b32 v13, 2, v10
            v_sub_u32 v13, v12, v13
            v_add_u32 v14, 20, v13
            v_cmp_gt_i32 vcc, 0, v13
            v_cndmask_b32 v13, v13, v14, vcc
            v_subrev_u32 v14, 16, v13
            v_lshrrev_b32 v60, 3, v13
            v_and_b32 v61, 7, v13
            v_lshrrev_b32 v62, 1, v14
            v_and_b32 v63, 1, v14
            v_add_u32 v63, 8, v63
            v_cmp_lt_u32 vcc, 15, v13
            v_cndmask_b32 v60, v60, v62, vcc
            v_cndmask_b32 v61, v61, v63, vcc
            v_lshrrev_b32 v62, 2, v61
            v_lshlrev_b32 v62, 3, v62
            v_lshl_add_u32 v62, v60, 2, v62
            v_and_b32 v61, 3, v61
            v_add_u32 v62, v62, v61
            v_cmp_eq_u32 vcc, 20, v12
            v_cndmask_b32 v63, v62, 22, vcc
            v_cndmask_b32 v62, v62, 18, vcc
            v_lshl_add_u32 v62, v62, 4, v15
            v_lshl_add_u32 v63, v63, 4, v15
            v_accvgpr_write_b32 a{out1}, v62
            v_accvgpr_write_b32 a{out2}, v63
            """)

    def kv_reduce_and_o(self):
        g = self
        for n in range(3):
            g(f"v_accvgpr_read_b32 v{137+n}, a{208+n}\nv_accvgpr_read_b32 v{140+n}, a{211+n}\nv_accvgpr_read_b32 v{143+n}, a{214+n}")
        g.vmwait("kvp")
        self.stamp("kvdata")
        g(f"s_cmp_ge_u32 s{S_MU}, 108\ns_cbranch_scc1 L_noxrow\ns_nop 0 ; HZ_SKIP_BEGIN")
        self.argmax()
        g(f"""
        v_mul_u32_u24 v9, 20, v1
        s_mul_i32 s{S_T1}, s{S_IDX}, 1280
        buffer_load_dwordx4 v[60:63], v9, {srd(SRD_X)}, s{S_T1} offen
        buffer_load_dword v64, v9, {srd(SRD_X)}, s{S_T1} offen offset:16
        s_lshl_b32 s{S_T1}, s{S_IDX}, 3
        s_add_u32 s{S_T1}, s{S_T1}, {WS_STATS}
        v_mov_b32 v9, 0
        buffer_load_dwordx2 v[66:67], v9, {srd(SRD_WS)}, s{S_T1} offen sc1   ; HZ_SKIP_END
L_noxrow:
        """)
        def reduce():
            for base, acc in ((0, 16), (64, 92)):
                for e in range(4): g(f"v_accvgpr_read_b32 v{acc+e}, a{base+e}")
                for p in range(1, 16):
                    t = acc + 4 + 4 * (p & 1)
                    for e in range(4): g(f"v_accvgpr_read_b32 v{t+e}, a{base+4*p+e}")
                    g(f"v_pk_add_f32 {v(acc,2)}, {v(acc,2)}, {v(t,2)}\nv_pk_add_f32 {v(acc+2,2)}, {v(acc+2,2)}, {v(t+2,2)}")
        self.interleave([(x, "wo") for x in self.wog[18:]], self.capture(reduce))
        self.stamp("r_sum")
        g(f"""
        v_cvt_pk_bf16_f32 v16, v16, v17
        v_cvt_pk_bf16_f32 v17, v18, v19
        v_cvt_pk_bf16_f32 v92, v92, v93
        v_cvt_pk_bf16_f32 v93, v94, v95
        ds_write_b64 v56, v[16:17]
        ds_write_b64 v57, v[16:17]
        s_mov_b64 exec, {s2(S_MB)}
        ds_write_b64 v58, v[92:93]
        ds_write_b64 v59, v[92:93]
        s_mov_b64 exec, -1
        s_waitcnt lgkmcnt(0)
        s_barrier
        v_lshlrev_b32 v9, 4, v1
        v_add_u32 v9, {L_KVF}, v9
        """)
        self.stamp("r_bar")
        for a in range(2):
            for t in range(3):
                g(f"ds_read_b128 {v(92+12*a+4*t,4)}, v9 offset:{a*3072 + t*1024}")
        self.dump("kvf", list(range(92, 116)))
        for a, (acc, H) in enumerate(((16, 220), (32, 232))):
            g(f"s_waitcnt lgkmcnt({3 - 3*a})")
            for t in range(3):
                g(f"v_mfma_f32_32x32x16_bf16 {v(acc,16)}, {v(92+12*a+4*t,4)}, {v(H+4*t,4)}, {'0' if t == 0 else v(acc,16)}")
        self.dump("num", list(range(16, 48)))
        g("v_accvgpr_read_b32 v10, a217\nv_accvgpr_read_b32 v11, a218\nv_mov_b32 v12, 0x358637bd")
        for a, (acc, P) in enumerate(((16, 160), (32, 166))):
            g(f"v_add_f32 v{acc+10}, v{acc+10}, v12\nv_rcp_f32 v{acc+10}, v{acc+10}")
        for a, (acc, P) in enumerate(((16, 160), (32, 166))):
            for i in range(5):
                g(f"v_pk_mul_f32 {v(acc+2*i,2)}, {v(acc+2*i,2)}, {v(acc+10,2)} op_sel_hi:[1,0]")
            for i in range(5):
                g(f"v_cvt_pk_bf16_f32 v{P+i}, v{acc+2*i}, v{acc+2*i+1}")
        self.dump("o", list(range(160, 165)) + list(range(166, 171)))
        g(f"""
        v_mov_b32 v172, v164
        v_mov_b32 v173, v170
        s_nop 1
        v_permlane32_swap_b32 v172, v173
        buffer_store_dwordx4 v[160:163], v10, {srd(SRD_WS)}, s{S_OS} offen sc1
        buffer_store_dwordx2 v[172:173], v11, {srd(SRD_WS)}, s{S_OS} offen offset:2048 sc1
        buffer_store_dwordx4 v[166:169], v10, {srd(SRD_WS)}, s{S_OS} offen offset:3072 sc1
        """)
        self.stamp("o_store")
        g(f"s_cmp_lt_u32 s{S_MU}, 108\ns_cbranch_scc1 L_noarg2\ns_nop 0 ; HZ_SKIP_BEGIN")
        self.argmax()
        g("s_nop 0 ; HZ_SKIP_END\nL_noarg2:")
        self.stamp("o_wo8")
        g("s_waitcnt vmcnt(0)")
        self.stamp("o_drain")
        self.signal("o", f"s_add_u32 s{S_T0}, s{S_RB}, {CNT_O}", drain=False)
        self.stamp("osig")

    XR, RS, ST = 16, 176, 28
    NA = 8
    YQ = [100, 104, 108, 112, 116, 120, 124, 146, 150]
    def wo_groups(self):
        grp = []
        for j in (3, 4, 0, 1, 2):
            for n in range(5):
                gl = []
                if n == 0:
                    gl += [f"s_add_u32 s{S_T3}, s{S_WAVE}, {4*j}", f"s_mul_i32 s{S_WOL}, s{S_T3}, 5120",
                           f"s_mul_i32 s{S_T4}, s{S_T3}, 13108", f"s_lshr_b32 s{S_T4}, s{S_T4}, 16",
                           f"s_mul_i32 s{S_T4}, s{S_T4}, {120*1280}", f"s_mul_i32 s{S_T3}, s{S_T3}, {8*1280}",
                           f"s_add_u32 s{S_T3}, s{S_T3}, s{S_T4}", f"s_add_u32 s{S_WOS}, s{S_T3}, s{S_WOG}"]
                gl += [f"s_add_u32 m0, s{S_WOL}, {L_WO + n*1024}", "s_nop 0",
                       f"buffer_load_dwordx4 v{152+n}, {srd(SRD_WO)}, s{S_WOS} offen lds"]
                grp.append(gl)
        return grp

    def c_addresses(self):
        g = self
        for n in range(5):
            g(f"""
            v_add_u32 v9, {64*n}, v1
            v_mul_u32_u24 v10, 6554, v9
            v_lshrrev_b32 v10, 16, v10
            v_mul_u32_u24 v11, 10, v10
            v_sub_u32 v11, v9, v11
            v_bfe_u32 v12, v10, 3, 1
            v_bfe_u32 v13, v10, 2, 1
            v_lshl_add_u32 v12, v12, 1, v13
            v_mul_u32_u24 v12, 40, v12
            v_lshrrev_b32 v13, 4, v10
            v_lshl_add_u32 v12, v13, 2, v12
            v_and_b32 v13, 3, v10
            v_add_u32 v12, v12, v13
            v_mul_u32_u24 v12, 1280, v12
            v_lshl_add_u32 v12, v11, 4, v12
            v_accvgpr_write_b32 a{200+n}, v12
            """)
            if n < 3:
                g(f"""
                v_min_u32 v10, 15, v10
                v_mul_u32_u24 v12, 1280, v10
                v_lshl_add_u32 v12, v11, 4, v12
                v_accvgpr_write_b32 a{205+n}, v12
                v_mul_u32_u24 v12, 336, v10
                v_lshl_add_u32 v12, v11, 5, v12
                v_accvgpr_write_b32 a{208+n}, v12
                v_accvgpr_write_b32 a{211+n}, v10
                v_lshlrev_b32 v12, 5, v11
                v_accvgpr_write_b32 a{214+n}, v12
                """)

    def o_addresses(self):
        g = self
        g("""
        v_lshrrev_b32 v9, 4, v2
        v_mul_u32_u24 v9, 20480, v9
        v_and_b32 v10, 15, v2
        v_lshl_add_u32 v9, v10, 4, v9
        v_lshl_add_u32 v10, v3, 10, v9
        v_lshl_add_u32 v11, v3, 3, v9
        v_accvgpr_write_b32 a217, v10
        v_accvgpr_write_b32 a218, v11
        """)

    def residual(self):
        g = self
        XR, RS, ST = self.XR, self.RS, self.ST
        for n in range(3):
            xr, rs, st = XR + 4*n, RS + 8*n, ST + 2*n
            g(f"v_rcp_f32 v{st+1}, v{st+1}")
            for d in range(4):
                g(f"""
                v_lshlrev_b32 v10, 16, v{xr+d}
                v_and_b32 v11, 0xffff0000, v{xr+d}
                v_sub_f32 v12, v10, v{st}
                v_sub_f32 v13, v11, v{st}
                v_cvt_pk_bf16_f32 v12, v12, v13
                v_lshlrev_b32 v13, 16, v12
                v_and_b32 v12, 0xffff0000, v12
                v_mul_f32 v13, v13, v{st+1}
                v_mul_f32 v12, v12, v{st+1}
                v_cvt_pk_bf16_f32 v12, v13, v12
                v_lshlrev_b32 v13, 16, v12
                v_and_b32 v12, 0xffff0000, v12
                v_add_f32 v{rs+2*d}, v13, v10
                v_add_f32 v{rs+2*d+1}, v12, v11
                """)

    def phase_c(self):
        g = self
        XR, RS, ST = self.XR, self.RS, self.ST
        self.stamp("argmax")
        g(f"s_cmp_ge_u32 s{S_MU}, 108\ns_cbranch_scc1 L_wodone")
        g("s_nop 0 ; HZ_SKIP_BEGIN")
        self.moe()
        g(f"""
        s_mul_i32 s{S_T0}, s{S_MU}, 2560
        s_add_u32 s{S_T0}, s{S_T0}, {WS_Y}
        v_lshlrev_b32 v9, 4, v0
        v_cmp_gt_u32 vcc, 160, v0
        s_and_saveexec_b64 {s2(S_MA)}, vcc
        s_cbranch_execz L_noy
        buffer_store_dwordx4 v[16:19], v9, {srd(SRD_WS)}, s{S_T0} offen sc1
L_noy:
        s_mov_b64 exec, -1
        s_nop 0 ; HZ_SKIP_END
L_wodone:
        """)
        self.stamp("moedone"); self.mark("moedone")
        g(f"""
        v_bfe_u32 v10, v1, 5, 1
        v_lshlrev_b32 v10, 3, v10
        v_bfe_u32 v11, v1, 4, 1
        v_lshl_add_u32 v10, v11, 2, v10
        v_bfe_u32 v11, v1, 2, 2
        v_add_u32 v10, v10, v11
        v_mul_u32_u24 v10, 160, v10
        v_and_b32 v11, 3, v1
        v_lshl_add_u32 v10, v11, 3, v10
        v_add_u32 v236, {L_WO}, v10
        v_add_u32 v237, {L_WO + 10*5120}, v10
        """)
        NA = self.NA
        def wo_reads(ks):
            base = 236 + ks // 10
            out = []
            for ct in range(5):
                for rd in range(2):
                    dst = ac(20*ks + 4*ct + 2*rd, 2) if ks < NA else v(40 + 20*(ks % 3) + 4*ct + 2*rd, 2)
                    out.append(f"ds_read_b64_tr_b16 {dst}, v{base} offset:{(ks % 10)*5120 + rd*2560 + ct*32}")
            return out
        self.poll_issue(SRD_WS, f"s_lshr_b32 s{S_T0}, s{S_RB64}, 1\ns_add_u32 s{S_T0}, s{S_T0}, {CNT_O}\ns_lshl_b32 s{S_T0}, s{S_T0}, 7\nv_mov_b32 v238, s{S_T0}")
        for ks in range(NA + 2):
            for x in wo_reads(ks): g(x)
            if ks < NA + 1: g("s_waitcnt lgkmcnt(5)")
        g(f"s_cmp_ge_u32 s{S_MU}, 108\ns_cbranch_scc1 L_nomoesig")
        g("s_waitcnt vmcnt(0) ; HZ_SKIP_BEGIN")
        self.signal("moe", f"s_and_b32 s{S_T0}, s{S_MU}, 3\ns_add_u32 s{S_T0}, s{S_T0}, {CNT_M}", drain=False)
        g("s_nop 0 ; HZ_SKIP_END\nL_nomoesig:")
        g(f"""
        s_lshl_b32 s{S_T0}, s{S_RB64}, 6
        s_sub_u32 s{S_OWN}, s{S_IDX}, s{S_T0}
        s_cmp_ge_u32 s{S_OWN}, 64
        s_cbranch_scc1 L_noown0
        v_min_u32 v10, 19, v1                  ; HZ_SKIP_BEGIN
        v_lshlrev_b32 v10, 3, v10
        s_mul_i32 s{S_T0}, s{S_IDX}, 1280
        s_mul_i32 s{S_T1}, s{S_CB}, 160
        s_add_u32 s{S_T0}, s{S_T0}, s{S_T1}
        buffer_load_dwordx2 v[200:201], v10, {srd(SRD_X)}, s{S_T0} offen
        s_lshl_b32 s{S_T0}, s{S_IDX}, 3
        s_add_u32 s{S_T0}, s{S_T0}, {WS_STATS}
        v_mov_b32 v10, 0
        buffer_load_dwordx2 v[202:203], v10, {srd(SRD_WS)}, s{S_T0} offen sc1   ; HZ_SKIP_END
L_noown0:
        """)
        self.poll_finish("o", SRD_WS, 16)
        self.stamp("oseen"); self.dbg_span(8, False); self.mark("oseen")
        g(f"""
        s_mul_i32 s{S_T0}, s{S_RB64}, 81920
        s_mul_i32 s{S_T1}, s{S_WAVE}, 20480
        s_add_u32 s{S_T0}, s{S_T0}, s{S_T1}
        s_add_u32 s{S_T0}, s{S_T0}, {WS_O}
        v_lshlrev_b32 v9, 4, v1
        """)
        self.vm = []
        regs_o = list(range(100, 128, 4)) + list(range(146, 174, 4)) + [220, 224, 228, 232, 240, 244]
        assert len(regs_o) == 20, len(regs_o)
        def oload(ks):
            g(f"buffer_load_dwordx4 {v(regs_o[ks],4)}, v9, {srd(SRD_WS)}, s{S_T0} offen sc1\ns_add_u32 s{S_T0}, s{S_T0}, 1024")
            g.vmi(f"o{ks}")
        AHEAD = 10
        for ks in range(AHEAD): oload(ks)
        self.stamp("c_issued")
        for ks in range(20):
            if ks == 0: g("s_waitcnt lgkmcnt(0)")
            elif ks >= NA: g("s_waitcnt lgkmcnt(5)" if ks < 18 else ("s_waitcnt lgkmcnt(10)" if ks < 19 else "s_waitcnt lgkmcnt(0)"))
            if ks < 15: g.vmwait(f"o{ks}")
            if ks == 15:
                g("s_waitcnt vmcnt(0)")
                g(f"s_cmp_ge_u32 s{S_OWN}, 64\ns_cbranch_scc1 L_noown1\ns_nop 0 ; HZ_SKIP_BEGIN")
                self.poll_issue(SRD_WS, f"v_lshlrev_b32 v238, 7, v1\nv_add_u32 v238, {CNT_M*128}, v238", nl=4)
                self.poll_finish("m", SRD_WS, 27, nl=4)
                g(f"""
                v_mul_u32_u24 v10, 3277, v1
                v_lshrrev_b32 v10, 16, v10
                v_mul_u32_u24 v11, 20, v10
                v_sub_u32 v11, v1, v11
                v_mul_u32_u24 v12, 2560, v10
                v_lshl_add_u32 v12, v11, 4, v12
                s_mul_i32 s{S_T0}, s{S_CB}, 320
                s_mul_i32 s{S_T1}, s{S_WAVE}, {27*2560}
                s_add_u32 s{S_T0}, s{S_T0}, s{S_T1}
                s_add_u32 s{S_T0}, s{S_T0}, {WS_Y}
                s_mov_b32 exec_hi, 0x0fffffff
                """)
                for j in range(9):
                    g(f"buffer_load_dwordx4 {v(self.YQ[j],4)}, v12, {srd(SRD_WS)}, s{S_T0} offen sc1\ns_add_u32 s{S_T0}, s{S_T0}, {3*2560}")
                g(f"""
                s_mov_b64 exec, -1
                v_mul_u32_u24 v12, 320, v10
                v_lshl_add_u32 v12, v11, 4, v12
                s_mul_i32 s{S_T1}, s{S_WAVE}, 960
                s_add_u32 s{S_T1}, s{S_T1}, {L_YR}
                v_add_u32 v204, s{S_T1}, v12
                s_nop 0 ; HZ_SKIP_END
L_noown1:
                """)
            if ks in (0, 5, 10, 15): self.stamp(f"c_o{ks}")
            rd = wo_reads(ks + 2) if NA <= ks < 18 else []
            for ct in range(5):
                cin = "0" if ks == 0 else v(16+4*ct, 4)
                A = ac(20*ks + 4*ct, 4) if ks < NA else v(40 + 20*(ks % 3) + 4*ct, 4)
                g(f"v_mfma_f32_16x16x32_bf16 {v(16+4*ct,4)}, {A}, {v(regs_o[ks],4)}, {cin}")
                for x in rd[2*ct:2*ct+2]: g(x)
            if ks + AHEAD < 20: oload(ks + AHEAD)
        self.stamp("cmfma"); self.mark("cmfma")
        Y = self.YQ[0]
        g(f"""
        s_cmp_ge_u32 s{S_OWN}, 64
        s_cbranch_scc1 L_noown2
        s_waitcnt vmcnt(0)                     ; HZ_SKIP_BEGIN
        """)
        for j in range(1, 9):
            q = self.YQ[j]
            g(f"v_pk_add_f32 {v(Y,2)}, {v(Y,2)}, {v(q,2)}\nv_pk_add_f32 {v(Y+2,2)}, {v(Y+2,2)}, {v(q+2,2)}")
        g(f"""
        s_mov_b32 exec_hi, 0x0fffffff
        ds_write_b128 v204, {v(Y,4)}
        s_mov_b64 exec, -1
        v_mov_b32 v205, s{S_RSEL}
        """)
        g.rnd_bf16(205, 205)
        g(f"""
        v_mul_f32 v205, 0xbfb8aa3b, v205
        v_exp_f32 v205, v205
        v_rcp_f32 v203, v203
        v_add_f32 v205, 1.0, v205
        v_rcp_f32 v205, v205
        v_lshlrev_b32 v206, 16, v200
        v_and_b32 v207, 0xffff0000, v200
        v_lshlrev_b32 v208, 16, v201
        v_and_b32 v209, 0xffff0000, v201
        """)
        g.rnd_bf16(205, 205)
        for e in range(4):
            g(f"v_sub_f32 v{206+e}, v{206+e}, v202")
            g.rnd_bf16(206+e, 206+e)
            g(f"v_mul_f32 v{206+e}, v{206+e}, v203")
            g.rnd_bf16(206+e, 206+e)
        g(f"""
        v_min_u32 v10, 19, v1
        v_lshlrev_b32 v10, 4, v10
        v_add_u32 v10, {L_YR}, v10
        s_waitcnt lgkmcnt(0)
        s_barrier
        """)
        Y = 40
        for j in range(12):
            g(f"ds_read_b128 {v(Y+4*j,4)}, v10 offset:{320*j}")
        g("s_waitcnt lgkmcnt(0)")
        for j in range(1, 12):
            g(f"v_pk_add_f32 {v(Y,2)}, {v(Y,2)}, {v(Y+4*j,2)}\nv_pk_add_f32 {v(Y+2,2)}, {v(Y+2,2)}, {v(Y+4*j+2,2)}")
        for e in range(4):
            g.rnd_bf16(Y+e, Y+e)
            g(f"v_mul_f32 v{Y+e}, v{Y+e}, v205")
            g.rnd_bf16(Y+e, Y+e)
            g(f"v_add_f32 v{Y+e}, v{Y+e}, v{206+e}")
            g.rnd_bf16(Y+e, Y+e)
            g(f"v_sub_f32 v{210+e}, v{Y+e}, v{206+e}")
        g("s_nop 0 ; HZ_SKIP_END\nL_noown2:")
        g(f"""
        s_mul_i32 s{S_T0}, s{S_WAVE}, 5376
        s_add_u32 s{S_T0}, s{S_T0}, {L_OST}
        v_and_b32 v9, 15, v1
        v_mul_u32_u24 v9, 336, v9
        v_lshrrev_b32 v10, 4, v1
        v_lshl_add_u32 v9, v10, 4, v9
        v_add_u32 v9, s{S_T0}, v9
        """)
        for ct in range(5): g(f"ds_write_b128 v9, {v(16+4*ct,4)} offset:{64*ct}")
        for n in range(3): g(f"v_add_u32 v{10+n}, s{S_T0}, v{137+n}")
        g(f"""
        s_waitcnt lgkmcnt(0)
        s_sub_u32 s{S_T4}, s{S_IDX}, s{S_ROW0}
        s_cmp_ge_u32 s{S_T4}, 16
        s_cbranch_scc1 L_norow
        s_mul_i32 s{S_T4}, s{S_T4}, 336            ; HZ_SKIP_BEGIN
        s_add_u32 s{S_T4}, s{S_T4}, s{S_T0}
        v_lshl_add_u32 v9, v1, 4, s{S_T4}
        s_mov_b32 exec_lo, 0xfffff
        s_mov_b32 exec_hi, 0
        ds_read_b128 v[40:43], v9
        s_waitcnt lgkmcnt(0)
        v_pk_add_f32 v[40:41], v[40:41], v[210:211]
        v_pk_add_f32 v[42:43], v[42:43], v[212:213]
        ds_write_b128 v9, v[40:43]
        s_waitcnt lgkmcnt(0)
        s_mov_b64 exec, -1                         ; HZ_SKIP_END
L_norow:
        """)
        for n in range(3):
            g(f"ds_read_b128 {v(40+8*n,4)}, v{10+n}\nds_read_b128 {v(44+8*n,4)}, v{10+n} offset:16")
        for n in range(3):
            rs = RS + 8*n
            g(f"s_waitcnt lgkmcnt({4 - 2*n})")
            for e in range(0, 8, 2):
                g(f"v_pk_add_f32 {v(40+8*n+e,2)}, {v(40+8*n+e,2)}, {v(rs+e,2)}")
            for e in range(4):
                g(f"v_cvt_pk_bf16_f32 v{64+4*n+e}, v{40+8*n+2*e}, v{40+8*n+2*e+1}")
            if n == 2: g("s_mov_b32 exec_hi, 0")
            g(f"buffer_store_dwordx4 {v(64+4*n,4)}, v{134+n}, {srd(SRD_OUT)}, s{S_XO} offen")
        g("s_mov_b64 exec, -1")
        self.stamp("end"); self.stamp("clk1", True)

    def rest(self):
        self.publish_kv()
        self.dbg_span(4, False); self.mark("kvsig")
        self.pass2()
        self.kv_wait()
        self.dbg_span(9, False); self.mark("kvseen")
        self.q_epilogue()
        self.dbg_span(5, False)
        self.kv_reduce_and_o()
        self.dbg_span(6, False); self.mark("osig")
        self.phase_c()
```

```python
from gen import *

S_RB64, S_CB, S_MU, S_RSEL, S_ROW0 = 20, 21, 22, 23, 12
S_QC = 13
S_WOG, S_WOL = 14, 15
S_WOS = 76
S_OWN = 80
S_STA = 81
S_XO = 85
S_KVE, S_KVB = 79, 75
S_KVA, S_OS = 78, 84
CNT_KV, CNT_O, CNT_M = 0, 16, 32
SPIN_LIMIT = 200000

class Full(Gen):
    def poll(self, name, srd_n, vaddr_setup, target, nl=1):
        g = self
        lab = f"L_poll_{name}"
        g(vaddr_setup)
        g(f"s_mov_b32 exec_lo, {(1 << nl) - 1}\ns_mov_b32 exec_hi, 0")
        g(f"""
        s_mov_b32 s74, 0
{lab}:
        buffer_load_dword v10, v9, {srd(srd_n)}, 0 offen sc1
        s_add_u32 s74, s74, 1
        s_cmp_gt_u32 s74, {SPIN_LIMIT}
        s_cbranch_scc1 {lab}_out
        s_waitcnt vmcnt(0)
        v_cmp_ne_u32 vcc, {target}, v10
        s_cbranch_vccnz {lab}
{lab}_out:
        s_waitcnt vmcnt(0)
        s_mov_b64 exec, -1
        """)

    def poll_issue(self, srd_n, vaddr_setup, nl=1):
        g = self
        g(vaddr_setup)
        g(f"s_mov_b32 exec_lo, {(1 << nl) - 1}\ns_mov_b32 exec_hi, 0\nbuffer_load_dword v239, v238, {srd(srd_n)}, 0 offen sc1\ns_mov_b64 exec, -1")

    def poll_finish(self, name, srd_n, target, nl=1):
        g = self
        lab = f"L_poll_{name}"
        g(f"""
        s_mov_b32 exec_lo, {(1 << nl) - 1}
        s_mov_b32 exec_hi, 0
        s_mov_b32 s74, 0
        s_waitcnt vmcnt(0)
        v_cmp_ne_u32 vcc, {target}, v239
        s_cbranch_vccz {lab}_out
{lab}:
        buffer_load_dword v239, v238, {srd(srd_n)}, 0 offen sc1
        s_add_u32 s74, s74, 1
        s_cmp_gt_u32 s74, {SPIN_LIMIT}
        s_cbranch_scc1 {lab}_out
        s_waitcnt vmcnt(0)
        v_cmp_ne_u32 vcc, {target}, v239
        s_cbranch_vccnz {lab}
{lab}_out:
        s_waitcnt vmcnt(0)
        s_mov_b64 exec, -1
        """)

    def signal(self, name, cnt_sgpr_expr, drain=True):
        g = self
        if drain: g("s_waitcnt vmcnt(0)")
        g(f"""
        s_barrier
        s_cmp_lg_u32 s{S_WAVE}, 0
        s_cbranch_scc1 L_nosig_{name}
        """)
        g(cnt_sgpr_expr + " ; HZ_SKIP_BEGIN")
        g(f"""
        s_lshl_b32 s{S_T0}, s{S_T0}, 7
        v_mov_b32 v9, s{S_T0}
        v_mov_b32 v10, 1
        s_mov_b64 exec, 1
        buffer_atomic_add v10, v9, {srd(SRD_WS)}, 0 offen sc1
        s_mov_b64 exec, -1         ; HZ_SKIP_END
L_nosig_{name}:
        """)

    def publish_kv(self):
        g = self
        g(f"""
        s_cmp_lg_u32 s{S_HP}, 0
        s_cbranch_scc1 L_nostats
        s_lshl_b32 s{S_T0}, s{S_RB}, 7       ; HZ_SKIP_BEGIN
        s_lshl_b32 s{S_T1}, s{S_WAVE}, 5
        s_add_u32 s{S_T0}, s{S_T0}, s{S_T1}
        s_lshl_b32 s{S_T0}, s{S_T0}, 3
        s_add_u32 s{S_T0}, s{S_T0}, {WS_STATS}
        v_lshlrev_b32 v9, 3, v2
        v_mov_b32 v10, v91
        v_mov_b32 v11, v90
        s_mov_b32 exec_hi, 0
        buffer_store_dwordx2 v[10:11], v9, {srd(SRD_WS)}, s{S_T0} offen sc1
        s_mov_b64 exec, -1                   ; HZ_SKIP_END
L_nostats:
        """)
        g(f"""
        v_mul_u32_u24 v9, 6554, v1
        v_lshrrev_b32 v9, 16, v9
        v_mul_u32_u24 v10, 10, v9
        v_sub_u32 v10, v1, v10
        v_mul_u32_u24 v11, 1280, v9
        v_lshl_add_u32 v11, v10, 7, v11
        s_lshl_b32 s{S_T0}, s{S_SLOT}, 2
        s_add_u32 s{S_T0}, s{S_T0}, s{S_WAVE}
        s_mul_i32 s{S_T0}, s{S_T0}, {5*1280}
        s_mov_b32 exec_hi, 0x3ffff
        buffer_load_dword v159, v11, {srd(SRD_WO)}, s{S_T0} offen
        s_mov_b64 exec, -1
        s_waitcnt vmcnt(1)
        """)
        g(f"""
        v_readfirstlane_b32 s{S_T0}, v75
        s_cmp_eq_u32 s{S_T0}, 1
        s_cbranch_scc1 L_isready
        """)
        self.poll("ready", SRD_DBG, "v_mov_b32 v9, 240 ; HZ_SKIP_BEGIN", 1)
        g("s_nop 0 ; HZ_SKIP_END\nL_isready:")
        self.signal("kv", f"s_add_u32 s{S_T0}, s{S_HP}, {CNT_KV}", drain=False)
        self.stamp("kvsig")


    def moe_roles(self):
        g = self
        g(f"""
        s_lshr_b32 s{S_T0}, s{S_XCD}, 1
        s_lshr_b32 s{S_T1}, s{S_SLOT}, 3
        s_add_u32 s{S_T0}, s{S_T0}, s{S_T1}
        s_lshr_b32 s{S_T1}, s{S_SLOT}, 4
        s_lshl_b32 s{S_T1}, s{S_T1}, 3
        s_and_b32 s{S_T2}, s{S_SLOT}, 7
        s_add_u32 s{S_T1}, s{S_T1}, s{S_T2}
        s_mul_i32 s{S_MU}, s{S_XCD}, 14
        s_add_u32 s{S_MU}, s{S_MU}, s{S_T1}
        s_cmp_lt_u32 s{S_T1}, 14
        s_cselect_b32 s{S_MU}, s{S_MU}, 255
        s_bitcmp1_b32 s{S_T0}, 0
        s_cselect_b32 s{S_MU}, 255, s{S_MU}
        s_lshr_b32 s{S_T0}, s{S_SLOT}, 3
        s_lshl_b32 s{S_T1}, s{S_XCD}, 2
        s_add_u32 s{S_RB64}, s{S_T0}, s{S_T1}
        s_and_b32 s{S_CB}, s{S_SLOT}, 7
        s_lshl_b32 s{S_ROW0}, s{S_RB64}, 6
        s_lshl_b32 s{S_T0}, s{S_WAVE}, 4
        s_add_u32 s{S_ROW0}, s{S_ROW0}, s{S_T0}
        s_mul_i32 s{S_T1}, s{S_CB}, 160
        s_mov_b32 s{S_WOG}, s{S_T1}
        s_mul_i32 s{S_T0}, s{S_ROW0}, 1280
        s_add_u32 s{S_XO}, s{S_T0}, s{S_T1}
        s_lshl_b32 s{S_T0}, s{S_RB}, 1
        s_lshr_b32 s{S_T1}, s{S_WAVE}, 1
        s_add_u32 s{S_T0}, s{S_T0}, s{S_T1}
        s_mul_i32 s{S_T0}, s{S_T0}, 81920
        s_and_b32 s{S_T1}, s{S_WAVE}, 1
        s_mul_i32 s{S_T1}, s{S_T1}, 40960
        s_add_u32 s{S_T0}, s{S_T0}, s{S_T1}
        s_lshr_b32 s{S_T1}, s{S_HP}, 2
        s_mul_i32 s{S_T1}, s{S_T1}, 5120
        s_add_u32 s{S_T0}, s{S_T0}, s{S_T1}
        s_and_b32 s{S_T1}, s{S_HP}, 3
        s_lshl_b32 s{S_T1}, s{S_T1}, 8
        s_add_u32 s{S_T0}, s{S_T0}, s{S_T1}
        s_add_u32 s{S_OS}, s{S_T0}, {WS_O}
        """)

    WD = 160
    def moe_load_block(self, k):
        g = self
        lab = f"L_nomoeld{k}"
        g(f"s_cmp_ge_u32 s{S_MU}, 108\ns_cbranch_scc1 {lab}")
        if k == 0:
            g(f"""
            v_lshrrev_b32 v134, 1, v1                ; HZ_SKIP_BEGIN
            v_mul_u32_u24 v134, 3456, v134
            v_and_b32 v10, 1, v1
            v_lshl_add_u32 v134, v10, 4, v134
            v_lshlrev_b32 v135, 3, v0
            """)
        else:
            g("s_nop 0 ; HZ_SKIP_BEGIN")
        g(f"""
        s_and_b32 s{S_T0}, s{S_MU}, 3
        s_add_u32 s{S_T0}, s{S_T0}, {k}
        s_cmp_ge_u32 s{S_T0}, 5
        s_cselect_b32 s{S_T1}, 5, 0
        s_sub_u32 s{S_T3}, s{S_T0}, s{S_T1}
        s_mul_i32 s{S_T1}, s{S_WAVE}, 5
        s_add_u32 s{S_T3}, s{S_T3}, s{S_T1}
        s_mul_i32 s{S_T2}, s{S_T3}, {32*3456}
        s_lshl_b32 s{S_T0}, s{S_MU}, 5
        s_add_u32 s{S_T2}, s{S_T2}, s{S_T0}
        s_lshl_b32 s{S_T1}, s{S_T3}, 10
        s_add_u32 m0, s{S_T1}, {L_G}
        s_mul_i32 s{S_T0}, s{S_MU}, {16*1280}
        buffer_load_dwordx4 v134, {srd(SRD_G)}, s{S_T2} offen lds
        s_add_u32 m0, s{S_T1}, {L_U}
        v_cmp_gt_u32 vcc, 160, v0
        buffer_load_dwordx4 v134, {srd(SRD_U)}, s{S_T2} offen lds
        s_and_saveexec_b64 {s2(S_MA)}, vcc
        s_cbranch_execz {lab}_x
        """)
        us = list(range(16))[[0, 3, 6, 9, 12][k]:[3, 6, 9, 12, 16][k]]
        for u in us:
            g(f"s_add_u32 s{S_T1}, s{S_T0}, {u*1280}\nbuffer_load_dwordx2 {ac(self.WD+2*u,2)}, v135, {srd(SRD_D)}, s{S_T1} offen")
        g(f"{lab}_x:\ns_mov_b64 exec, -1 ; HZ_SKIP_END\n{lab}:")

    def p2_reads(self, n):
        i, ks = divmod(n, 4); b = n % 3
        base = 128 + (i & 1)
        out = []
        for t in range(2):
            for rd in range(2):
                out.append(f"ds_read_b64_tr_b16 {v(92+12*b+4*t+2*rd,2)}, v{base} offset:{(16*ks+rd)*80 + 64*t}")
        for rd in range(2):
            out.append(f"ds_read_b64_tr_b16 {v(160+4*b+2*rd,2)}, v{130 + (i & 1)} offset:{(16*ks+rd)*80}")
        return out

    def p2_base(self, i):
        r = i & 1
        return [f"v_add_u32 v{128+r}, s{S_QC}, v132", f"v_add_u32 v{130+r}, s{S_QC}, v133",
                f"s_add_u32 s{S_QC}, s{S_QC}, 5120", f"s_cmp_eq_u32 s{S_QC}, 51200", f"s_cselect_b32 s{S_QC}, 0, s{S_QC}"]

    def pass2(self):
        g = self
        g(f"""
        v_bfe_u32 v9, v1, 2, 2
        v_lshlrev_b32 v9, 1, v9
        v_add_u32 v9, v9, v3
        v_lshlrev_b32 v9, 1, v9
        v_mul_u32_u24 v9, 80, v9
        v_bfe_u32 v10, v1, 4, 1
        v_and_b32 v11, 3, v1
        v_lshl_add_u32 v10, v10, 2, v11
        v_lshl_add_u32 v9, v10, 3, v9
        v_add_u32 v132, {L_WQ}, v9
        s_lshl_b32 s{S_T0}, s{S_WAVE}, 6
        v_add_u32 v133, s{S_T0}, v132
        s_mul_i32 s{S_QC}, s{S_C0}, 5120
        """)
        for n in range(5): g(f"v_accvgpr_read_b32 v{152+n}, a{200+n}")
        self.wog = self.wo_groups()
        early = self.wog[:10]
        for x in self.p2_base(0): g(x)
        for x in self.p2_reads(0): g(x)
        for x in self.p2_reads(1): g(x)
        for n in range(40):
            i, ks = divmod(n, 4); b = n % 3
            if ks == 1 and i < 9:
                for x in self.p2_base(i + 1): g(x)
            g("s_waitcnt lgkmcnt(0)" if n == 39 else "s_waitcnt lgkmcnt(6)")
            rd = self.p2_reads(n + 2) if n + 2 < 40 else []
            XP = ac(4*n, 4)
            WF = lambda t: 92 + 12*b + 4*t
            cin = lambda r, k: "0" if n == 0 else v(r, k)
            g(f"v_mfma_f32_32x32x16_bf16 v[16:31], {v(WF(0),4)}, {XP}, {cin(16,16)}")
            for x in rd[0:3]: g(x)
            g(f"v_mfma_f32_32x32x16_bf16 v[32:47], {v(WF(1),4)}, {XP}, {cin(32,16)}")
            for x in rd[3:6]: g(x)
            g(f"v_mfma_f32_4x4x4_16b_bf16 v[76:79], {v(160+4*b,2)}, v[84:85], {cin(76,4)}")
            g(f"v_mfma_f32_4x4x4_16b_bf16 v[80:83], {v(160+4*b+2,2)}, v[84:85], {cin(80,4)}")
            if n in (3, 11, 19, 27, 35): self.moe_load_block((n - 3) // 8)
            if n >= 18 and n % 2 == 0 and early:
                for x in early.pop(0): g(x)
            if n == 36: self.kv_poll_issue()
            if n in (9, 19, 29): self.stamp(f"p2_{n}")
        while early:
            for x in early.pop(0): g(x)
        self.stamp("p2end")

    def q_epilogue_a(self):
        g = self
        self.smtag = "q"
        for n in range(3):
            g(f"v_accvgpr_read_b32 v{134+n}, a{205+n}\nv_accvgpr_read_b32 v{68+n}, a{211+n}")
        self.stats_and_colsum(False)
        quads = [(16+4*j, 8*j) for j in range(4)] + [(32, 32)]
        g(f"v_lshlrev_b32 v9, 4, v3\nv_add_u32 v9, {L_CS + 512}, v9")
        self.norm_reads(quads, 512, 160)
        self.norm_apply(quads, 160, 0)
        PK = 244
        for i in range(10):
            g(f"v_cvt_pk_bf16_f32 v{PK+i}, v{16+2*i}, v{16+2*i+1}")
        self.stamp("q_cvt")

    def q_epilogue_b(self):
        g = self
        self.featmap_mfma(244)
        for i in range(4): g(f"v_accvgpr_read_b32 v{56+i}, a{196+i}")
        self.softmax(220, 232)
        self.stamp("qdone")

    def xres_groups(self):
        XR, ST = self.XR, self.ST
        grp = []
        for n in range(3):
            grp.append([f"buffer_load_dwordx4 {v(XR+4*n,4)}, v{134+n}, {srd(SRD_X)}, s{S_XO} offen"])
            pre = [f"s_lshl_b32 s{S_T0}, s{S_ROW0}, 3", f"s_add_u32 s{S_STA}, s{S_T0}, {WS_STATS}"] if n == 0 else []
            grp.append(pre + [f"v_lshlrev_b32 v67, 3, v{68+n}", f"buffer_load_dwordx2 {v(ST+2*n,2)}, v67, {srd(SRD_WS)}, s{S_STA} offen sc1"])
        return grp

    def q_epilogue(self):
        kg = self.kv_load_groups()
        self.interleave([(x, "kvp") for x in kg[:8]], self.capture(self.q_epilogue_a))
        self.interleave([(x, "xres") for x in self.xres_groups()] + [(x, "kvp") for x in kg[8:]], self.capture(self.q_epilogue_b))
        self.dump("phiq", list(range(220, 244)))
        self.vmwait("xres")
        self.interleave([(x, "wo") for x in self.wog[10:18]], self.capture(self.residual))
        self.stamp("resid")

    def kv_poll_issue(self):
        g = self
        g(f"""
        s_add_u32 s{S_T0}, s{S_HP}, {CNT_KV}
        s_lshl_b32 s{S_T0}, s{S_T0}, 7
        v_mov_b32 v238, s{S_T0}
        v_cmp_eq_u32 vcc, 1, v1
        v_cndmask_b32 v238, v238, {CNT_KV * 128}, vcc
        v_lshlrev_b32 v240, 6, v1
        s_mov_b32 exec_lo, 15
        s_mov_b32 exec_hi, 0
        buffer_load_dword v241, v240, {srd(SRD_DBG)}, 0 offen sc1
        s_mov_b32 exec_lo, 3
        buffer_load_dword v239, v238, {srd(SRD_WS)}, 0 offen sc1
        s_mov_b64 exec, -1
        """)

    def kv_wait(self):
        g = self
        self.poll_finish("kv", SRD_WS, 16, nl=2)
        self.stamp("kvseen")
        g(f"""
        s_mov_b32 exec_lo, 15
        s_mov_b32 exec_hi, 0
        v_cmp_ne_u32 vcc, 64, v241
        s_mov_b64 exec, -1
        s_cbranch_vccz L_rmaxok
        """)
        self.poll("rmax", SRD_DBG, "v_lshlrev_b32 v9, 6, v1 ; HZ_SKIP_BEGIN", 64, nl=4)
        g(f"""
        s_nop 0 ; HZ_SKIP_END
L_rmaxok:
        s_mul_i32 s{S_KVA}, s{S_HP}, {16*KVP_SZ}
        s_add_u32 s{S_KVA}, s{S_KVA}, {WS_KVP}
        s_add_u32 s{S_KVE}, s{S_KVA}, {16*KVP_SZ}
        s_mov_b32 s{S_KVB}, s{S_KVA}
        s_and_b32 s{S_T0}, s{S_SLOT}, 7
        s_mul_i32 s{S_T0}, s{S_T0}, {2*KVP_SZ}
        s_add_u32 s{S_KVA}, s{S_KVA}, s{S_T0}
        v_lshlrev_b32 v64, 4, v0
        s_mul_i32 s{S_T0}, s{S_WAVE}, {41*16}
        s_add_u32 s{S_T0}, s{S_T0}, 4096
        v_lshl_add_u32 v65, v1, 4, s{S_T0}
        s_mov_b32 s{S_MB}, -1
        s_mov_b32 s{S_MB+1}, 0x1ff
        v_lshlrev_b32 v66, 5, v1
        v_add_u32 v66, {WS_RMAX}, v66
        """)

    def kv_load_groups(self):
        grp = []
        for p in range(16):
            grp.append([f"buffer_load_dwordx4 {ac(4*p,4)}, v64, {srd(SRD_WS)}, s{S_KVA} offen sc1", f"s_mov_b64 exec, {s2(S_MB)}",
                        ])
            grp[-1] = [f"buffer_load_dwordx4 {ac(4*p,4)}, v64, {srd(SRD_WS)}, s{S_KVA} offen sc1"]
            grp.append([f"s_mov_b64 exec, {s2(S_MB)}", f"buffer_load_dwordx4 {ac(64+4*p,4)}, v65, {srd(SRD_WS)}, s{S_KVA} offen sc1",
                        "s_mov_b64 exec, -1", f"s_add_u32 s{S_KVA}, s{S_KVA}, {KVP_SZ}",
                        f"s_cmp_eq_u32 s{S_KVA}, s{S_KVE}", f"s_cselect_b32 s{S_KVA}, s{S_KVB}, s{S_KVA}"])
        grp.append([f"buffer_load_dwordx4 v[48:51], v66, {srd(SRD_WS)}, 0 offen sc1"])
        grp.append([f"buffer_load_dwordx4 v[52:55], v66, {srd(SRD_WS)}, 0 offen offset:16 sc1"])
        return grp

    def argmax(self):
        g = self
        g(f"""
        v_cmp_gt_f32 vcc, v50, v48
        v_cndmask_b32 v48, v48, v50, vcc
        v_cndmask_b32 v49, v49, v51, vcc
        v_cmp_gt_f32 vcc, v52, v48
        v_cndmask_b32 v48, v48, v52, vcc
        v_cndmask_b32 v49, v49, v53, vcc
        v_cmp_gt_f32 vcc, v54, v48
        v_cndmask_b32 v48, v48, v54, vcc
        v_cndmask_b32 v49, v49, v55, vcc
        v_mov_b32 v50, v48
        """)
        for ctl in ("row_shr:1 row_mask:0xf bank_mask:0xf", "row_shr:2 row_mask:0xf bank_mask:0xf",
                    "row_shr:4 row_mask:0xf bank_mask:0xf", "row_shr:8 row_mask:0xf bank_mask:0xf",
                    "row_bcast:15 row_mask:0xa bank_mask:0xf", "row_bcast:31 row_mask:0xc bank_mask:0xf"):
            g(f"v_max_f32_dpp v50, v50, v50 {ctl}")
        g(f"""
        v_readlane_b32 s{S_RSEL}, v50, 63
        v_cmp_eq_f32 vcc, s{S_RSEL}, v48
        s_ff1_i32_b64 s{S_T0}, vcc
        s_max_i32 s{S_T0}, s{S_T0}, 0
        v_readlane_b32 s{S_IDX}, v49, s{S_T0}
        s_nop 0
        s_and_b32 s{S_IDX}, s{S_IDX}, 2047
        """)

    def moe_a(self):
        g = self
        WD = self.WD
        g("v_rcp_f32 v67, v67")
        for d in range(5):
            g(f"""
            v_lshlrev_b32 v168, 16, v{60+d}
            v_and_b32 v169, 0xffff0000, v{60+d}
            v_sub_f32 v168, v168, v66
            v_sub_f32 v169, v169, v66
            v_cvt_pk_bf16_f32 v168, v168, v169
            v_lshlrev_b32 v169, 16, v168
            v_and_b32 v168, 0xffff0000, v168
            v_mul_f32 v169, v169, v67
            v_mul_f32 v168, v168, v67
            v_cvt_pk_bf16_f32 v{60+d}, v169, v168
            """)
        g(f"""
        s_mul_i32 s{S_T0}, s{S_WAVE}, 1280
        s_add_u32 s{S_T0}, s{S_T0}, {L_XS}
        v_mul_u32_u24 v9, 20, v1
        v_add_u32 v9, s{S_T0}, v9
        ds_write_b32 v9, v60
        ds_write_b32 v9, v61 offset:4
        ds_write_b32 v9, v62 offset:8
        ds_write_b32 v9, v63 offset:12
        ds_write_b32 v9, v64 offset:16
        v_bfe_u32 v9, v1, 2, 2
        v_lshl_add_u32 v9, v3, 3, v9
        s_mul_i32 s{S_T1}, s{S_WAVE}, 160
        v_add_u32 v9, s{S_T1}, v9
        v_lshlrev_b32 v9, 5, v9
        v_and_b32 v10, 3, v1
        v_lshl_add_u32 v9, v10, 3, v9
        v_bfe_u32 v10, v1, 4, 1
        v_mul_u32_u24 v10, {L_U - L_G}, v10
        v_add_u32 v9, v9, v10
        v_add_u32 v9, {L_G}, v9
        s_mul_i32 s{S_T1}, s{S_WAVE}, 320
        s_add_u32 s{S_T0}, s{S_T0}, s{S_T1}
        v_lshlrev_b32 v10, 4, v3
        v_add_u32 v10, s{S_T0}, v10
        s_waitcnt lgkmcnt(0)
        """)
        def rd(ks):
            A = 32 + 8*ks
            g(f"""
            ds_read_b64_tr_b16 {v(A,2)}, v9 offset:{(16*ks)*32}
            ds_read_b64_tr_b16 {v(A+2,2)}, v9 offset:{(16*ks+4)*32}
            ds_read_b128 {v(A+4,4)}, v10 offset:{32*ks}
            """)
        for ks in range(4): rd(ks)
        for ks in range(10):
            if ks + 4 < 10:
                g("s_waitcnt lgkmcnt(9)"); rd(ks + 4) if False else None
                g(f"v_mfma_f32_32x32x16_bf16 v[16:31], {v(32+8*ks,4)}, {v(36+8*ks,4)}, {'0' if ks == 0 else 'v[16:31]'}")
                rd(ks + 4)
            else:
                g(f"s_waitcnt lgkmcnt({3*(9-ks)})")
                g(f"v_mfma_f32_32x32x16_bf16 v[16:31], {v(32+8*ks,4)}, {v(36+8*ks,4)}, v[16:31]")
        g(f"""
        s_lshl_b32 s{S_T0}, s{S_WAVE}, 7
        s_add_u32 s{S_T0}, s{S_T0}, {L_HP}
        v_lshlrev_b32 v9, 4, v3
        v_add_u32 v9, s{S_T0}, v9
        s_mov_b32 exec_lo, 1
        s_mov_b32 exec_hi, 1
        ds_write_b128 v9, v[16:19]
        ds_write_b128 v9, v[20:23] offset:32
        ds_write_b128 v9, v[24:27] offset:64
        ds_write_b128 v9, v[28:31] offset:96
        s_mov_b64 exec, -1
        s_waitcnt lgkmcnt(0)
        """)

    def moe_b(self):
        g = self
        WD = self.WD
        g(f"""
        v_and_b32 v9, 15, v1
        v_lshlrev_b32 v9, 2, v9
        v_add_u32 v9, {L_HP}, v9
        ds_read_b32 v160, v9
        ds_read_b32 v161, v9 offset:128
        ds_read_b32 v162, v9 offset:256
        ds_read_b32 v163, v9 offset:384
        ds_read_b32 v164, v9 offset:64
        ds_read_b32 v165, v9 offset:192
        ds_read_b32 v166, v9 offset:320
        ds_read_b32 v167, v9 offset:448
        s_waitcnt lgkmcnt(0)
        v_add_f32 v160, v160, v161
        v_add_f32 v162, v162, v163
        v_add_f32 v164, v164, v165
        v_add_f32 v166, v166, v167
        v_add_f32 v160, v160, v162
        v_add_f32 v164, v164, v166
        """)
        g.rnd_bf16(160, 160); g.rnd_bf16(164, 164)
        g(f"""
        v_mul_f32 v161, 0xbfb8aa3b, v160
        v_exp_f32 v161, v161
        v_add_f32 v161, 1.0, v161
        v_rcp_f32 v161, v161
        v_mul_f32 v160, v160, v161
        """)
        g.rnd_bf16(160, 160)
        g("v_mul_f32 v160, v160, v164")
        g.rnd_bf16(160, 160)
        g("""
        v_mov_b32 v161, v160
        s_nop 1
        v_mov_b32_dpp v161, v160 row_shl:1 row_mask:0xf bank_mask:0xf
        s_nop 1
        v_cvt_pk_bf16_f32 v160, v160, v161
        """)
        for i in range(4): g(f"v_mov_b32 v{16+i}, 0")
        g("s_mov_b32 s74, 0x05040100\nv_mov_b32 v26, s74\ns_mov_b32 s74, 0x07060302\nv_mov_b32 v27, s74")
        for p in range(8):
            a0, a1 = WD + 4*p, WD + 4*p + 2
            g(f"""
            v_readlane_b32 s74, v160, {2*p}
            v_accvgpr_read_b32 v20, a{a0}
            v_accvgpr_read_b32 v21, a{a0+1}
            v_accvgpr_read_b32 v22, a{a1}
            v_accvgpr_read_b32 v23, a{a1+1}
            v_perm_b32 v24, v22, v20, v26
            v_perm_b32 v25, v22, v20, v27
            v_perm_b32 v28, v23, v21, v26
            v_perm_b32 v29, v23, v21, v27
            v_dot2c_f32_bf16 v16, s74, v24
            v_dot2c_f32_bf16 v17, s74, v25
            v_dot2c_f32_bf16 v18, s74, v28
            v_dot2c_f32_bf16 v19, s74, v29
            """)
        g("s_nop 2")

    def kv_addresses(self):
        g = self
        for k, (gi, out1, out2) in enumerate(((0, 196, 197), (256, 198, 199))):
            if k == 0: g("v_mov_b32 v9, v0")
            else: g(f"s_mul_i32 s{S_T0}, s{S_WAVE}, 41\ns_add_u32 s{S_T0}, s{S_T0}, 256\nv_add_u32 v9, s{S_T0}, v1")
            g(f"""
            v_cmp_lt_u32 vcc, 209, v9
            v_cndmask_b32 v10, 0, 1, vcc
            v_mul_u32_u24 v11, 210, v10
            v_sub_u32 v9, v9, v11
            v_mul_u32_u24 v11, 3121, v9
            v_lshrrev_b32 v11, 16, v11
            v_mul_u32_u24 v12, 21, v11
            v_sub_u32 v12, v9, v12
            v_lshrrev_b32 v13, 1, v11
            v_and_b32 v14, 1, v11
            v_cmp_lt_u32 vcc, 7, v11
            v_subrev_u32 v15, 4, v11
            v_cndmask_b32 v13, v13, v15, vcc
            v_cndmask_b32 v14, v14, 0, vcc
            v_lshrrev_b32 v15, 1, v13
            v_and_b32 v13, 1, v13
            v_mul_u32_u24 v15, 1024, v15
            v_lshl_add_u32 v15, v13, 9, v15
            v_lshl_add_u32 v15, v14, 3, v15
            v_mul_u32_u24 v13, 3072, v10
            v_add_u32 v15, v15, v13
            v_add_u32 v15, {L_KVF}, v15
            v_lshlrev_b32 v13, 2, v10
            v_sub_u32 v13, v12, v13
            v_add_u32 v14, 20, v13
            v_cmp_gt_i32 vcc, 0, v13
            v_cndmask_b32 v13, v13, v14, vcc
            v_subrev_u32 v14, 16, v13
            v_lshrrev_b32 v60, 3, v13
            v_and_b32 v61, 7, v13
            v_lshrrev_b32 v62, 1, v14
            v_and_b32 v63, 1, v14
            v_add_u32 v63, 8, v63
            v_cmp_lt_u32 vcc, 15, v13
            v_cndmask_b32 v60, v60, v62, vcc
            v_cndmask_b32 v61, v61, v63, vcc
            v_lshrrev_b32 v62, 2, v61
            v_lshlrev_b32 v62, 3, v62
            v_lshl_add_u32 v62, v60, 2, v62
            v_and_b32 v61, 3, v61
            v_add_u32 v62, v62, v61
            v_cmp_eq_u32 vcc, 20, v12
            v_cndmask_b32 v63, v62, 22, vcc
            v_cndmask_b32 v62, v62, 18, vcc
            v_lshl_add_u32 v62, v62, 4, v15
            v_lshl_add_u32 v63, v63, 4, v15
            v_accvgpr_write_b32 a{out1}, v62
            v_accvgpr_write_b32 a{out2}, v63
            """)

    def kv_reduce_and_o(self):
        g = self
        for n in range(3):
            g(f"v_accvgpr_read_b32 v{137+n}, a{208+n}\nv_accvgpr_read_b32 v{140+n}, a{211+n}\nv_accvgpr_read_b32 v{143+n}, a{214+n}")
        g.vmwait("kvp")
        self.stamp("kvdata")
        g(f"s_cmp_ge_u32 s{S_MU}, 108\ns_cbranch_scc1 L_noxrow\ns_nop 0 ; HZ_SKIP_BEGIN")
        self.argmax()
        g(f"""
        v_mul_u32_u24 v9, 20, v1
        s_mul_i32 s{S_T1}, s{S_IDX}, 1280
        buffer_load_dwordx4 v[60:63], v9, {srd(SRD_X)}, s{S_T1} offen
        buffer_load_dword v64, v9, {srd(SRD_X)}, s{S_T1} offen offset:16
        s_lshl_b32 s{S_T1}, s{S_IDX}, 3
        s_add_u32 s{S_T1}, s{S_T1}, {WS_STATS}
        v_mov_b32 v9, 0
        buffer_load_dwordx2 v[66:67], v9, {srd(SRD_WS)}, s{S_T1} offen sc1   ; HZ_SKIP_END
L_noxrow:
        """)
        def reduce():
            for base, acc in ((0, 16), (64, 92)):
                for e in range(4): g(f"v_accvgpr_read_b32 v{acc+e}, a{base+e}")
                for p in range(1, 16):
                    t = acc + 4 + 4 * (p & 1)
                    for e in range(4): g(f"v_accvgpr_read_b32 v{t+e}, a{base+4*p+e}")
                    g(f"v_pk_add_f32 {v(acc,2)}, {v(acc,2)}, {v(t,2)}\nv_pk_add_f32 {v(acc+2,2)}, {v(acc+2,2)}, {v(t+2,2)}")
        self.interleave([(x, "wo") for x in self.wog[18:]], self.capture(reduce))
        self.stamp("r_sum")
        g(f"""
        v_cvt_pk_bf16_f32 v16, v16, v17
        v_cvt_pk_bf16_f32 v17, v18, v19
        v_cvt_pk_bf16_f32 v92, v92, v93
        v_cvt_pk_bf16_f32 v93, v94, v95
        ds_write_b64 v56, v[16:17]
        ds_write_b64 v57, v[16:17]
        s_mov_b64 exec, {s2(S_MB)}
        ds_write_b64 v58, v[92:93]
        ds_write_b64 v59, v[92:93]
        s_mov_b64 exec, -1
        s_waitcnt lgkmcnt(0)
        s_barrier
        v_lshlrev_b32 v9, 4, v1
        v_add_u32 v9, {L_KVF}, v9
        """)
        self.stamp("r_bar")
        for a in range(2):
            for t in range(3):
                g(f"ds_read_b128 {v(92+12*a+4*t,4)}, v9 offset:{a*3072 + t*1024}")
        self.dump("kvf", list(range(92, 116)))
        for a, (acc, H) in enumerate(((16, 220), (32, 232))):
            g(f"s_waitcnt lgkmcnt({3 - 3*a})")
            for t in range(3):
                g(f"v_mfma_f32_32x32x16_bf16 {v(acc,16)}, {v(92+12*a+4*t,4)}, {v(H+4*t,4)}, {'0' if t == 0 else v(acc,16)}")
        self.dump("num", list(range(16, 48)))
        g("v_accvgpr_read_b32 v10, a217\nv_accvgpr_read_b32 v11, a218\nv_mov_b32 v12, 0x358637bd")
        for a, (acc, P) in enumerate(((16, 160), (32, 166))):
            g(f"v_add_f32 v{acc+10}, v{acc+10}, v12\nv_rcp_f32 v{acc+10}, v{acc+10}")
        for a, (acc, P) in enumerate(((16, 160), (32, 166))):
            for i in range(5):
                g(f"v_pk_mul_f32 {v(acc+2*i,2)}, {v(acc+2*i,2)}, {v(acc+10,2)} op_sel_hi:[1,0]")
            for i in range(5):
                g(f"v_cvt_pk_bf16_f32 v{P+i}, v{acc+2*i}, v{acc+2*i+1}")
        self.dump("o", list(range(160, 165)) + list(range(166, 171)))
        g(f"""
        v_mov_b32 v172, v164
        v_mov_b32 v173, v170
        s_nop 1
        v_permlane32_swap_b32 v172, v173
        buffer_store_dwordx4 v[160:163], v10, {srd(SRD_WS)}, s{S_OS} offen sc1
        buffer_store_dwordx2 v[172:173], v11, {srd(SRD_WS)}, s{S_OS} offen offset:2048 sc1
        buffer_store_dwordx4 v[166:169], v10, {srd(SRD_WS)}, s{S_OS} offen offset:3072 sc1
        """)
        self.stamp("o_store")
        g(f"s_cmp_lt_u32 s{S_MU}, 108\ns_cbranch_scc1 L_moea\ns_nop 0 ; HZ_SKIP_BEGIN")
        self.argmax()
        g("s_branch L_moeadone ; HZ_SKIP_END\nL_moea:\ns_waitcnt vmcnt(10) ; HZ_SKIP_BEGIN")
        self.moe_a()
        g("s_nop 0 ; HZ_SKIP_END\nL_moeadone:")
        self.stamp("o_wo8")
        g("s_waitcnt vmcnt(0)")
        self.stamp("o_drain")
        self.signal("o", f"s_add_u32 s{S_T0}, s{S_RB}, {CNT_O}", drain=False)
        self.stamp("osig")

    XR, RS, ST = 16, 176, 28
    NA = 8
    YQ = [100, 104, 108, 112, 116, 120, 124, 146, 150]
    def wo_groups(self):
        grp = []
        for j in (3, 4, 0, 1, 2):
            for n in range(5):
                gl = []
                if n == 0:
                    gl += [f"s_add_u32 s{S_T3}, s{S_WAVE}, {4*j}", f"s_mul_i32 s{S_WOL}, s{S_T3}, 5120",
                           f"s_mul_i32 s{S_T4}, s{S_T3}, 13108", f"s_lshr_b32 s{S_T4}, s{S_T4}, 16",
                           f"s_mul_i32 s{S_T4}, s{S_T4}, {120*1280}", f"s_mul_i32 s{S_T3}, s{S_T3}, {8*1280}",
                           f"s_add_u32 s{S_T3}, s{S_T3}, s{S_T4}", f"s_add_u32 s{S_WOS}, s{S_T3}, s{S_WOG}"]
                gl += [f"s_add_u32 m0, s{S_WOL}, {L_WO + n*1024}", "s_nop 0",
                       f"buffer_load_dwordx4 v{152+n}, {srd(SRD_WO)}, s{S_WOS} offen lds"]
                grp.append(gl)
        return grp

    def c_addresses(self):
        g = self
        for n in range(5):
            g(f"""
            v_add_u32 v9, {64*n}, v1
            v_mul_u32_u24 v10, 6554, v9
            v_lshrrev_b32 v10, 16, v10
            v_mul_u32_u24 v11, 10, v10
            v_sub_u32 v11, v9, v11
            v_bfe_u32 v12, v10, 3, 1
            v_bfe_u32 v13, v10, 2, 1
            v_lshl_add_u32 v12, v12, 1, v13
            v_mul_u32_u24 v12, 40, v12
            v_lshrrev_b32 v13, 4, v10
            v_lshl_add_u32 v12, v13, 2, v12
            v_and_b32 v13, 3, v10
            v_add_u32 v12, v12, v13
            v_mul_u32_u24 v12, 1280, v12
            v_lshl_add_u32 v12, v11, 4, v12
            v_accvgpr_write_b32 a{200+n}, v12
            """)
            if n < 3:
                g(f"""
                v_min_u32 v10, 15, v10
                v_mul_u32_u24 v12, 1280, v10
                v_lshl_add_u32 v12, v11, 4, v12
                v_accvgpr_write_b32 a{205+n}, v12
                v_mul_u32_u24 v12, 336, v10
                v_lshl_add_u32 v12, v11, 5, v12
                v_accvgpr_write_b32 a{208+n}, v12
                v_accvgpr_write_b32 a{211+n}, v10
                v_lshlrev_b32 v12, 5, v11
                v_accvgpr_write_b32 a{214+n}, v12
                """)

    def o_addresses(self):
        g = self
        g("""
        v_lshrrev_b32 v9, 4, v2
        v_mul_u32_u24 v9, 20480, v9
        v_and_b32 v10, 15, v2
        v_lshl_add_u32 v9, v10, 4, v9
        v_lshl_add_u32 v10, v3, 10, v9
        v_lshl_add_u32 v11, v3, 3, v9
        v_accvgpr_write_b32 a217, v10
        v_accvgpr_write_b32 a218, v11
        """)

    def residual(self):
        g = self
        XR, RS, ST = self.XR, self.RS, self.ST
        for n in range(3):
            xr, rs, st = XR + 4*n, RS + 8*n, ST + 2*n
            g(f"v_rcp_f32 v{st+1}, v{st+1}")
            for d in range(4):
                g(f"""
                v_lshlrev_b32 v10, 16, v{xr+d}
                v_and_b32 v11, 0xffff0000, v{xr+d}
                v_sub_f32 v12, v10, v{st}
                v_sub_f32 v13, v11, v{st}
                v_cvt_pk_bf16_f32 v12, v12, v13
                v_lshlrev_b32 v13, 16, v12
                v_and_b32 v12, 0xffff0000, v12
                v_mul_f32 v13, v13, v{st+1}
                v_mul_f32 v12, v12, v{st+1}
                v_cvt_pk_bf16_f32 v12, v13, v12
                v_lshlrev_b32 v13, 16, v12
                v_and_b32 v12, 0xffff0000, v12
                v_add_f32 v{rs+2*d}, v13, v10
                v_add_f32 v{rs+2*d+1}, v12, v11
                """)

    def phase_c(self):
        g = self
        XR, RS, ST = self.XR, self.RS, self.ST
        self.stamp("argmax")
        g(f"s_cmp_ge_u32 s{S_MU}, 108\ns_cbranch_scc1 L_wodone")
        g("s_nop 0 ; HZ_SKIP_BEGIN")
        self.moe_b()
        g(f"""
        s_mul_i32 s{S_T0}, s{S_MU}, 2560
        s_add_u32 s{S_T0}, s{S_T0}, {WS_Y}
        v_lshlrev_b32 v9, 4, v0
        v_cmp_gt_u32 vcc, 160, v0
        s_and_saveexec_b64 {s2(S_MA)}, vcc
        s_cbranch_execz L_noy
        buffer_store_dwordx4 v[16:19], v9, {srd(SRD_WS)}, s{S_T0} offen sc1
L_noy:
        s_mov_b64 exec, -1
        s_nop 0 ; HZ_SKIP_END
L_wodone:
        """)
        self.stamp("moedone"); self.mark("moedone")
        g(f"""
        v_bfe_u32 v10, v1, 5, 1
        v_lshlrev_b32 v10, 3, v10
        v_bfe_u32 v11, v1, 4, 1
        v_lshl_add_u32 v10, v11, 2, v10
        v_bfe_u32 v11, v1, 2, 2
        v_add_u32 v10, v10, v11
        v_mul_u32_u24 v10, 160, v10
        v_and_b32 v11, 3, v1
        v_lshl_add_u32 v10, v11, 3, v10
        v_add_u32 v236, {L_WO}, v10
        v_add_u32 v237, {L_WO + 10*5120}, v10
        """)
        NA = self.NA
        def wo_reads(ks):
            base = 236 + ks // 10
            out = []
            for ct in range(5):
                for rd in range(2):
                    dst = ac(20*ks + 4*ct + 2*rd, 2) if ks < NA else v(40 + 20*(ks % 3) + 4*ct + 2*rd, 2)
                    out.append(f"ds_read_b64_tr_b16 {dst}, v{base} offset:{(ks % 10)*5120 + rd*2560 + ct*32}")
            return out
        self.poll_issue(SRD_WS, f"s_lshr_b32 s{S_T0}, s{S_RB64}, 1\ns_add_u32 s{S_T0}, s{S_T0}, {CNT_O}\ns_lshl_b32 s{S_T0}, s{S_T0}, 7\nv_mov_b32 v238, s{S_T0}")
        for ks in range(NA + 2):
            for x in wo_reads(ks): g(x)
            if ks < NA + 1: g("s_waitcnt lgkmcnt(5)")
        g(f"s_cmp_ge_u32 s{S_MU}, 108\ns_cbranch_scc1 L_nomoesig")
        g("s_waitcnt vmcnt(0) ; HZ_SKIP_BEGIN")
        self.signal("moe", f"s_and_b32 s{S_T0}, s{S_MU}, 3\ns_add_u32 s{S_T0}, s{S_T0}, {CNT_M}", drain=False)
        g("s_nop 0 ; HZ_SKIP_END\nL_nomoesig:")
        g(f"""
        s_lshl_b32 s{S_T0}, s{S_RB64}, 6
        s_sub_u32 s{S_OWN}, s{S_IDX}, s{S_T0}
        s_cmp_ge_u32 s{S_OWN}, 64
        s_cbranch_scc1 L_noown0
        v_min_u32 v10, 19, v1                  ; HZ_SKIP_BEGIN
        v_lshlrev_b32 v10, 3, v10
        s_mul_i32 s{S_T0}, s{S_IDX}, 1280
        s_mul_i32 s{S_T1}, s{S_CB}, 160
        s_add_u32 s{S_T0}, s{S_T0}, s{S_T1}
        buffer_load_dwordx2 v[200:201], v10, {srd(SRD_X)}, s{S_T0} offen
        s_lshl_b32 s{S_T0}, s{S_IDX}, 3
        s_add_u32 s{S_T0}, s{S_T0}, {WS_STATS}
        v_mov_b32 v10, 0
        buffer_load_dwordx2 v[202:203], v10, {srd(SRD_WS)}, s{S_T0} offen sc1   ; HZ_SKIP_END
L_noown0:
        """)
        self.poll_finish("o", SRD_WS, 16)
        self.stamp("oseen"); self.dbg_span(8, False); self.mark("oseen")
        g(f"""
        s_mul_i32 s{S_T0}, s{S_RB64}, 81920
        s_mul_i32 s{S_T1}, s{S_WAVE}, 20480
        s_add_u32 s{S_T0}, s{S_T0}, s{S_T1}
        s_add_u32 s{S_T0}, s{S_T0}, {WS_O}
        v_lshlrev_b32 v9, 4, v1
        """)
        self.vm = []
        regs_o = list(range(100, 128, 4)) + list(range(146, 174, 4)) + [220, 224, 228, 232, 240, 244]
        assert len(regs_o) == 20, len(regs_o)
        def oload(ks):
            g(f"buffer_load_dwordx4 {v(regs_o[ks],4)}, v9, {srd(SRD_WS)}, s{S_T0} offen sc1\ns_add_u32 s{S_T0}, s{S_T0}, 1024")
            g.vmi(f"o{ks}")
        AHEAD = 10
        for ks in range(AHEAD): oload(ks)
        self.stamp("c_issued")
        for ks in range(20):
            if ks == 0: g("s_waitcnt lgkmcnt(0)")
            elif ks >= NA: g("s_waitcnt lgkmcnt(5)" if ks < 18 else ("s_waitcnt lgkmcnt(10)" if ks < 19 else "s_waitcnt lgkmcnt(0)"))
            if ks < 15: g.vmwait(f"o{ks}")
            if ks == 15:
                g("s_waitcnt vmcnt(0)")
                g(f"s_cmp_ge_u32 s{S_OWN}, 64\ns_cbranch_scc1 L_noown1\ns_nop 0 ; HZ_SKIP_BEGIN")
                self.poll_issue(SRD_WS, f"v_lshlrev_b32 v238, 7, v1\nv_add_u32 v238, {CNT_M*128}, v238", nl=4)
                self.poll_finish("m", SRD_WS, 27, nl=4)
                g(f"""
                v_mul_u32_u24 v10, 3277, v1
                v_lshrrev_b32 v10, 16, v10
                v_mul_u32_u24 v11, 20, v10
                v_sub_u32 v11, v1, v11
                v_mul_u32_u24 v12, 2560, v10
                v_lshl_add_u32 v12, v11, 4, v12
                s_mul_i32 s{S_T0}, s{S_CB}, 320
                s_mul_i32 s{S_T1}, s{S_WAVE}, {27*2560}
                s_add_u32 s{S_T0}, s{S_T0}, s{S_T1}
                s_add_u32 s{S_T0}, s{S_T0}, {WS_Y}
                s_mov_b32 exec_hi, 0x0fffffff
                """)
                for j in range(9):
                    g(f"buffer_load_dwordx4 {v(self.YQ[j],4)}, v12, {srd(SRD_WS)}, s{S_T0} offen sc1\ns_add_u32 s{S_T0}, s{S_T0}, {3*2560}")
                g(f"""
                s_mov_b64 exec, -1
                v_mul_u32_u24 v12, 320, v10
                v_lshl_add_u32 v12, v11, 4, v12
                s_mul_i32 s{S_T1}, s{S_WAVE}, 960
                s_add_u32 s{S_T1}, s{S_T1}, {L_YR}
                v_add_u32 v204, s{S_T1}, v12
                s_nop 0 ; HZ_SKIP_END
L_noown1:
                """)
            if ks in (0, 5, 10, 15): self.stamp(f"c_o{ks}")
            rd = wo_reads(ks + 2) if NA <= ks < 18 else []
            for ct in range(5):
                cin = "0" if ks == 0 else v(16+4*ct, 4)
                A = ac(20*ks + 4*ct, 4) if ks < NA else v(40 + 20*(ks % 3) + 4*ct, 4)
                g(f"v_mfma_f32_16x16x32_bf16 {v(16+4*ct,4)}, {A}, {v(regs_o[ks],4)}, {cin}")
                for x in rd[2*ct:2*ct+2]: g(x)
            if ks + AHEAD < 20: oload(ks + AHEAD)
        self.stamp("cmfma"); self.mark("cmfma")
        Y = self.YQ[0]
        g(f"""
        s_cmp_ge_u32 s{S_OWN}, 64
        s_cbranch_scc1 L_noown2
        s_waitcnt vmcnt(0)                     ; HZ_SKIP_BEGIN
        """)
        for j in range(1, 9):
            q = self.YQ[j]
            g(f"v_pk_add_f32 {v(Y,2)}, {v(Y,2)}, {v(q,2)}\nv_pk_add_f32 {v(Y+2,2)}, {v(Y+2,2)}, {v(q+2,2)}")
        g(f"""
        s_mov_b32 exec_hi, 0x0fffffff
        ds_write_b128 v204, {v(Y,4)}
        s_mov_b64 exec, -1
        v_mov_b32 v205, s{S_RSEL}
        """)
        g.rnd_bf16(205, 205)
        g(f"""
        v_mul_f32 v205, 0xbfb8aa3b, v205
        v_exp_f32 v205, v205
        v_rcp_f32 v203, v203
        v_add_f32 v205, 1.0, v205
        v_rcp_f32 v205, v205
        v_lshlrev_b32 v206, 16, v200
        v_and_b32 v207, 0xffff0000, v200
        v_lshlrev_b32 v208, 16, v201
        v_and_b32 v209, 0xffff0000, v201
        """)
        g.rnd_bf16(205, 205)
        for e in range(4):
            g(f"v_sub_f32 v{206+e}, v{206+e}, v202")
            g.rnd_bf16(206+e, 206+e)
            g(f"v_mul_f32 v{206+e}, v{206+e}, v203")
            g.rnd_bf16(206+e, 206+e)
        g(f"""
        v_min_u32 v10, 19, v1
        v_lshlrev_b32 v10, 4, v10
        v_add_u32 v10, {L_YR}, v10
        s_waitcnt lgkmcnt(0)
        s_barrier
        """)
        Y = 40
        for j in range(12):
            g(f"ds_read_b128 {v(Y+4*j,4)}, v10 offset:{320*j}")
        g("s_waitcnt lgkmcnt(0)")
        for j in range(1, 12):
            g(f"v_pk_add_f32 {v(Y,2)}, {v(Y,2)}, {v(Y+4*j,2)}\nv_pk_add_f32 {v(Y+2,2)}, {v(Y+2,2)}, {v(Y+4*j+2,2)}")
        for e in range(4):
            g.rnd_bf16(Y+e, Y+e)
            g(f"v_mul_f32 v{Y+e}, v{Y+e}, v205")
            g.rnd_bf16(Y+e, Y+e)
            g(f"v_add_f32 v{Y+e}, v{Y+e}, v{206+e}")
            g.rnd_bf16(Y+e, Y+e)
            g(f"v_sub_f32 v{210+e}, v{Y+e}, v{206+e}")
        g("s_nop 0 ; HZ_SKIP_END\nL_noown2:")
        g(f"""
        s_mul_i32 s{S_T0}, s{S_WAVE}, 5376
        s_add_u32 s{S_T0}, s{S_T0}, {L_OST}
        v_and_b32 v9, 15, v1
        v_mul_u32_u24 v9, 336, v9
        v_lshrrev_b32 v10, 4, v1
        v_lshl_add_u32 v9, v10, 4, v9
        v_add_u32 v9, s{S_T0}, v9
        """)
        for ct in range(5): g(f"ds_write_b128 v9, {v(16+4*ct,4)} offset:{64*ct}")
        for n in range(3): g(f"v_add_u32 v{10+n}, s{S_T0}, v{137+n}")
        g(f"""
        s_waitcnt lgkmcnt(0)
        s_sub_u32 s{S_T4}, s{S_IDX}, s{S_ROW0}
        s_cmp_ge_u32 s{S_T4}, 16
        s_cbranch_scc1 L_norow
        s_mul_i32 s{S_T4}, s{S_T4}, 336            ; HZ_SKIP_BEGIN
        s_add_u32 s{S_T4}, s{S_T4}, s{S_T0}
        v_lshl_add_u32 v9, v1, 4, s{S_T4}
        s_mov_b32 exec_lo, 0xfffff
        s_mov_b32 exec_hi, 0
        ds_read_b128 v[40:43], v9
        s_waitcnt lgkmcnt(0)
        v_pk_add_f32 v[40:41], v[40:41], v[210:211]
        v_pk_add_f32 v[42:43], v[42:43], v[212:213]
        ds_write_b128 v9, v[40:43]
        s_waitcnt lgkmcnt(0)
        s_mov_b64 exec, -1                         ; HZ_SKIP_END
L_norow:
        """)
        for n in range(3):
            g(f"ds_read_b128 {v(40+8*n,4)}, v{10+n}\nds_read_b128 {v(44+8*n,4)}, v{10+n} offset:16")
        for n in range(3):
            rs = RS + 8*n
            g(f"s_waitcnt lgkmcnt({4 - 2*n})")
            for e in range(0, 8, 2):
                g(f"v_pk_add_f32 {v(40+8*n+e,2)}, {v(40+8*n+e,2)}, {v(rs+e,2)}")
            for e in range(4):
                g(f"v_cvt_pk_bf16_f32 v{64+4*n+e}, v{40+8*n+2*e}, v{40+8*n+2*e+1}")
            if n == 2: g("s_mov_b32 exec_hi, 0")
            g(f"buffer_store_dwordx4 {v(64+4*n,4)}, v{134+n}, {srd(SRD_OUT)}, s{S_XO} offen")
        g("s_mov_b64 exec, -1")
        self.stamp("end"); self.stamp("clk1", True)

    def rest(self):
        self.publish_kv()
        self.dbg_span(4, False); self.mark("kvsig")
        self.pass2()
        self.kv_wait()
        self.dbg_span(9, False); self.mark("kvseen")
        self.q_epilogue()
        self.dbg_span(5, False)
        self.kv_reduce_and_o()
        self.dbg_span(6, False); self.mark("osig")
        self.phase_c()
```

```python
from gen import *

S_RB64, S_CB, S_MU, S_RSEL, S_ROW0 = 20, 21, 22, 23, 12
S_QC = 13
S_WOG, S_WOL = 14, 15
S_WOS = 76
S_OWN = 80
S_STA = 81
S_XO = 85
S_KVE, S_KVB = 79, 75
S_KVA, S_OS = 78, 84
CNT_KV, CNT_O, CNT_M = 0, 16, 32
SPIN_LIMIT = 200000

class Full(Gen):
    def poll(self, name, srd_n, vaddr_setup, target, nl=1):
        g = self
        lab = f"L_poll_{name}"
        g(vaddr_setup)
        g(f"s_mov_b32 exec_lo, {(1 << nl) - 1}\ns_mov_b32 exec_hi, 0")
        g(f"""
        s_mov_b32 s74, 0
{lab}:
        buffer_load_dword v10, v9, {srd(srd_n)}, 0 offen sc1
        s_add_u32 s74, s74, 1
        s_cmp_gt_u32 s74, {SPIN_LIMIT}
        s_cbranch_scc1 {lab}_out
        s_waitcnt vmcnt(0)
        v_cmp_ne_u32 vcc, {target}, v10
        s_cbranch_vccnz {lab}
{lab}_out:
        s_waitcnt vmcnt(0)
        s_mov_b64 exec, -1
        """)

    def poll_issue(self, srd_n, vaddr_setup, nl=1):
        g = self
        g(vaddr_setup)
        g(f"s_mov_b32 exec_lo, {(1 << nl) - 1}\ns_mov_b32 exec_hi, 0\nbuffer_load_dword v239, v238, {srd(srd_n)}, 0 offen sc1\ns_mov_b64 exec, -1")

    def poll_finish(self, name, srd_n, target, nl=1):
        g = self
        lab = f"L_poll_{name}"
        g(f"""
        s_mov_b32 exec_lo, {(1 << nl) - 1}
        s_mov_b32 exec_hi, 0
        s_mov_b32 s74, 0
        s_waitcnt vmcnt(0)
        v_cmp_ne_u32 vcc, {target}, v239
        s_cbranch_vccz {lab}_out
{lab}:
        buffer_load_dword v239, v238, {srd(srd_n)}, 0 offen sc1
        s_add_u32 s74, s74, 1
        s_cmp_gt_u32 s74, {SPIN_LIMIT}
        s_cbranch_scc1 {lab}_out
        s_waitcnt vmcnt(0)
        v_cmp_ne_u32 vcc, {target}, v239
        s_cbranch_vccnz {lab}
{lab}_out:
        s_waitcnt vmcnt(0)
        s_mov_b64 exec, -1
        """)

    def signal(self, name, cnt_sgpr_expr, drain=True):
        g = self
        if drain: g("s_waitcnt vmcnt(0)")
        g(f"""
        s_barrier
        s_cmp_lg_u32 s{S_WAVE}, 0
        s_cbranch_scc1 L_nosig_{name}
        """)
        g(cnt_sgpr_expr + " ; HZ_SKIP_BEGIN")
        g(f"""
        s_lshl_b32 s{S_T0}, s{S_T0}, 7
        v_mov_b32 v9, s{S_T0}
        v_mov_b32 v10, 1
        s_mov_b64 exec, 1
        buffer_atomic_add v10, v9, {srd(SRD_WS)}, 0 offen sc1
        s_mov_b64 exec, -1         ; HZ_SKIP_END
L_nosig_{name}:
        """)

    def publish_kv(self):
        g = self
        g(f"""
        s_cmp_lg_u32 s{S_HP}, 0
        s_cbranch_scc1 L_nostats
        s_lshl_b32 s{S_T0}, s{S_RB}, 7       ; HZ_SKIP_BEGIN
        s_lshl_b32 s{S_T1}, s{S_WAVE}, 5
        s_add_u32 s{S_T0}, s{S_T0}, s{S_T1}
        s_lshl_b32 s{S_T0}, s{S_T0}, 3
        s_add_u32 s{S_T0}, s{S_T0}, {WS_STATS}
        v_lshlrev_b32 v9, 3, v2
        v_mov_b32 v10, v91
        v_mov_b32 v11, v90
        s_mov_b32 exec_hi, 0
        buffer_store_dwordx2 v[10:11], v9, {srd(SRD_WS)}, s{S_T0} offen sc1
        s_mov_b64 exec, -1                   ; HZ_SKIP_END
L_nostats:
        """)
        g(f"""
        v_mul_u32_u24 v9, 6554, v1
        v_lshrrev_b32 v9, 16, v9
        v_mul_u32_u24 v10, 10, v9
        v_sub_u32 v10, v1, v10
        v_mul_u32_u24 v11, 1280, v9
        v_lshl_add_u32 v11, v10, 7, v11
        s_lshl_b32 s{S_T0}, s{S_SLOT}, 2
        s_add_u32 s{S_T0}, s{S_T0}, s{S_WAVE}
        s_mul_i32 s{S_T0}, s{S_T0}, {5*1280}
        s_mov_b32 exec_hi, 0x3ffff
        buffer_load_dword v159, v11, {srd(SRD_WO)}, s{S_T0} offen
        s_mov_b64 exec, -1
        """)

    def kv_signal(self):
        g = self
        g("s_waitcnt vmcnt(1)")
        g(f"""
        v_readfirstlane_b32 s{S_T0}, v75
        s_cmp_eq_u32 s{S_T0}, 1
        s_cbranch_scc1 L_isready
        """)
        self.poll("ready", SRD_DBG, "v_mov_b32 v9, 240 ; HZ_SKIP_BEGIN", 1)
        g("s_nop 0 ; HZ_SKIP_END\nL_isready:")
        self.signal("kv", f"s_add_u32 s{S_T0}, s{S_HP}, {CNT_KV}", drain=False)
        self.stamp("kvsig")

    def moe_roles(self):
        g = self
        g(f"""
        s_lshr_b32 s{S_T0}, s{S_XCD}, 1
        s_lshr_b32 s{S_T1}, s{S_SLOT}, 3
        s_add_u32 s{S_T0}, s{S_T0}, s{S_T1}
        s_lshr_b32 s{S_T1}, s{S_SLOT}, 4
        s_lshl_b32 s{S_T1}, s{S_T1}, 3
        s_and_b32 s{S_T2}, s{S_SLOT}, 7
        s_add_u32 s{S_T1}, s{S_T1}, s{S_T2}
        s_mul_i32 s{S_MU}, s{S_XCD}, 14
        s_add_u32 s{S_MU}, s{S_MU}, s{S_T1}
        s_cmp_lt_u32 s{S_T1}, 14
        s_cselect_b32 s{S_MU}, s{S_MU}, 255
        s_bitcmp1_b32 s{S_T0}, 0
        s_cselect_b32 s{S_MU}, 255, s{S_MU}
        s_lshr_b32 s{S_T0}, s{S_SLOT}, 3
        s_lshl_b32 s{S_T1}, s{S_XCD}, 2
        s_add_u32 s{S_RB64}, s{S_T0}, s{S_T1}
        s_and_b32 s{S_CB}, s{S_SLOT}, 7
        s_lshl_b32 s{S_ROW0}, s{S_RB64}, 6
        s_lshl_b32 s{S_T0}, s{S_WAVE}, 4
        s_add_u32 s{S_ROW0}, s{S_ROW0}, s{S_T0}
        s_mul_i32 s{S_T1}, s{S_CB}, 160
        s_mov_b32 s{S_WOG}, s{S_T1}
        s_mul_i32 s{S_T0}, s{S_ROW0}, 1280
        s_add_u32 s{S_XO}, s{S_T0}, s{S_T1}
        s_lshl_b32 s{S_T0}, s{S_RB}, 1
        s_lshr_b32 s{S_T1}, s{S_WAVE}, 1
        s_add_u32 s{S_T0}, s{S_T0}, s{S_T1}
        s_mul_i32 s{S_T0}, s{S_T0}, 81920
        s_and_b32 s{S_T1}, s{S_WAVE}, 1
        s_mul_i32 s{S_T1}, s{S_T1}, 40960
        s_add_u32 s{S_T0}, s{S_T0}, s{S_T1}
        s_lshr_b32 s{S_T1}, s{S_HP}, 2
        s_mul_i32 s{S_T1}, s{S_T1}, 5120
        s_add_u32 s{S_T0}, s{S_T0}, s{S_T1}
        s_and_b32 s{S_T1}, s{S_HP}, 3
        s_lshl_b32 s{S_T1}, s{S_T1}, 8
        s_add_u32 s{S_T0}, s{S_T0}, s{S_T1}
        s_add_u32 s{S_OS}, s{S_T0}, {WS_O}
        """)

    WD = 160
    def moe_load_block(self, k):
        g = self
        lab = f"L_nomoeld{k}"
        g(f"s_cmp_ge_u32 s{S_MU}, 108\ns_cbranch_scc1 {lab}")
        if k == 0:
            g(f"""
            v_lshrrev_b32 v134, 1, v1                ; HZ_SKIP_BEGIN
            v_mul_u32_u24 v134, 3456, v134
            v_and_b32 v10, 1, v1
            v_lshl_add_u32 v134, v10, 4, v134
            v_lshlrev_b32 v135, 3, v0
            """)
        else:
            g("s_nop 0 ; HZ_SKIP_BEGIN")
        g(f"""
        s_and_b32 s{S_T0}, s{S_MU}, 3
        s_add_u32 s{S_T0}, s{S_T0}, {k}
        s_cmp_ge_u32 s{S_T0}, 5
        s_cselect_b32 s{S_T1}, 5, 0
        s_sub_u32 s{S_T3}, s{S_T0}, s{S_T1}
        s_mul_i32 s{S_T1}, s{S_WAVE}, 5
        s_add_u32 s{S_T3}, s{S_T3}, s{S_T1}
        s_mul_i32 s{S_T2}, s{S_T3}, {32*3456}
        s_lshl_b32 s{S_T0}, s{S_MU}, 5
        s_add_u32 s{S_T2}, s{S_T2}, s{S_T0}
        s_lshl_b32 s{S_T1}, s{S_T3}, 10
        s_add_u32 m0, s{S_T1}, {L_G}
        s_mul_i32 s{S_T0}, s{S_MU}, {16*1280}
        buffer_load_dwordx4 v134, {srd(SRD_G)}, s{S_T2} offen lds
        s_add_u32 m0, s{S_T1}, {L_U}
        v_cmp_gt_u32 vcc, 160, v0
        buffer_load_dwordx4 v134, {srd(SRD_U)}, s{S_T2} offen lds
        s_and_saveexec_b64 {s2(S_MA)}, vcc
        s_cbranch_execz {lab}_x
        """)
        us = list(range(16))[[0, 3, 6, 9, 12][k]:[3, 6, 9, 12, 16][k]]
        for u in us:
            g(f"s_add_u32 s{S_T1}, s{S_T0}, {u*1280}\nbuffer_load_dwordx2 {ac(self.WD+2*u,2)}, v135, {srd(SRD_D)}, s{S_T1} offen")
        g(f"{lab}_x:\ns_mov_b64 exec, -1 ; HZ_SKIP_END\n{lab}:")

    def p2_reads(self, n):
        i, ks = divmod(n, 4); b = n % 3
        base = 128 + (i & 1)
        out = []
        for t in range(2):
            for rd in range(2):
                out.append(f"ds_read_b64_tr_b16 {v(92+12*b+4*t+2*rd,2)}, v{base} offset:{(16*ks+rd)*80 + 64*t}")
        for rd in range(2):
            out.append(f"ds_read_b64_tr_b16 {v(160+4*b+2*rd,2)}, v{130 + (i & 1)} offset:{(16*ks+rd)*80}")
        return out

    def p2_base(self, i):
        r = i & 1
        return [f"v_add_u32 v{128+r}, s{S_QC}, v132", f"v_add_u32 v{130+r}, s{S_QC}, v133",
                f"s_add_u32 s{S_QC}, s{S_QC}, 5120", f"s_cmp_eq_u32 s{S_QC}, 51200", f"s_cselect_b32 s{S_QC}, 0, s{S_QC}"]

    def pass2(self):
        g = self
        g(f"""
        v_bfe_u32 v9, v1, 2, 2
        v_lshlrev_b32 v9, 1, v9
        v_add_u32 v9, v9, v3
        v_lshlrev_b32 v9, 1, v9
        v_mul_u32_u24 v9, 80, v9
        v_bfe_u32 v10, v1, 4, 1
        v_and_b32 v11, 3, v1
        v_lshl_add_u32 v10, v10, 2, v11
        v_lshl_add_u32 v9, v10, 3, v9
        v_add_u32 v132, {L_WQ}, v9
        s_lshl_b32 s{S_T0}, s{S_WAVE}, 6
        v_add_u32 v133, s{S_T0}, v132
        s_mul_i32 s{S_QC}, s{S_C0}, 5120
        """)
        for n in range(5): g(f"v_accvgpr_read_b32 v{152+n}, a{200+n}")
        self.wog = self.wo_groups()
        early = self.wog[:10]
        for x in self.p2_base(0): g(x)
        for x in self.p2_reads(0): g(x)
        for x in self.p2_reads(1): g(x)
        for n in range(40):
            i, ks = divmod(n, 4); b = n % 3
            if ks == 1 and i < 9:
                for x in self.p2_base(i + 1): g(x)
            g("s_waitcnt lgkmcnt(0)" if n == 39 else "s_waitcnt lgkmcnt(6)")
            rd = self.p2_reads(n + 2) if n + 2 < 40 else []
            XP = ac(4*n, 4)
            WF = lambda t: 92 + 12*b + 4*t
            cin = lambda r, k: "0" if n == 0 else v(r, k)
            g(f"v_mfma_f32_32x32x16_bf16 v[16:31], {v(WF(0),4)}, {XP}, {cin(16,16)}")
            for x in rd[0:3]: g(x)
            g(f"v_mfma_f32_32x32x16_bf16 v[32:47], {v(WF(1),4)}, {XP}, {cin(32,16)}")
            for x in rd[3:6]: g(x)
            g(f"v_mfma_f32_4x4x4_16b_bf16 v[76:79], {v(160+4*b,2)}, v[84:85], {cin(76,4)}")
            g(f"v_mfma_f32_4x4x4_16b_bf16 v[80:83], {v(160+4*b+2,2)}, v[84:85], {cin(80,4)}")
            if n == 12: self.kv_signal()
            if n in (13, 18, 23, 28, 33): self.moe_load_block((n - 13) // 5)
            if n >= 18 and n % 2 == 0 and early:
                for x in early.pop(0): g(x)
            if n == 36: self.kv_poll_issue()
            if n in (9, 19, 29): self.stamp(f"p2_{n}")
        while early:
            for x in early.pop(0): g(x)
        self.stamp("p2end")

    def q_epilogue_a(self):
        g = self
        self.smtag = "q"
        for n in range(3):
            g(f"v_accvgpr_read_b32 v{134+n}, a{205+n}\nv_accvgpr_read_b32 v{68+n}, a{211+n}")
        self.stats_and_colsum(False)
        quads = [(16+4*j, 8*j) for j in range(4)] + [(32, 32)]
        g(f"v_lshlrev_b32 v9, 4, v3\nv_add_u32 v9, {L_CS + 512}, v9")
        self.norm_reads(quads, 512, 160)
        self.norm_apply(quads, 160, 0)
        PK = 244
        for i in range(10):
            g(f"v_cvt_pk_bf16_f32 v{PK+i}, v{16+2*i}, v{16+2*i+1}")
        self.stamp("q_cvt")

    def q_epilogue_b(self):
        g = self
        self.featmap_mfma(244)
        for i in range(4): g(f"v_accvgpr_read_b32 v{56+i}, a{196+i}")
        self.softmax(220, 232)
        self.stamp("qdone")

    def xres_groups(self):
        XR, ST = self.XR, self.ST
        grp = []
        for n in range(3):
            grp.append([f"buffer_load_dwordx4 {v(XR+4*n,4)}, v{134+n}, {srd(SRD_X)}, s{S_XO} offen"])
            pre = [f"s_lshl_b32 s{S_T0}, s{S_ROW0}, 3", f"s_add_u32 s{S_STA}, s{S_T0}, {WS_STATS}"] if n == 0 else []
            grp.append(pre + [f"v_lshlrev_b32 v67, 3, v{68+n}", f"buffer_load_dwordx2 {v(ST+2*n,2)}, v67, {srd(SRD_WS)}, s{S_STA} offen sc1"])
        return grp

    def q_epilogue(self):
        kg = self.kv_load_groups()
        self.interleave([(x, "kvp") for x in kg[:8]], self.capture(self.q_epilogue_a))
        self.interleave([(x, "xres") for x in self.xres_groups()] + [(x, "kvp") for x in kg[8:]], self.capture(self.q_epilogue_b))
        self.dump("phiq", list(range(220, 244)))
        self.vmwait("xres")
        self.interleave([(x, "wo") for x in self.wog[10:18]], self.capture(self.residual))
        self.stamp("resid")

    def kv_poll_issue(self):
        g = self
        g(f"""
        s_add_u32 s{S_T0}, s{S_HP}, {CNT_KV}
        s_lshl_b32 s{S_T0}, s{S_T0}, 7
        v_mov_b32 v238, s{S_T0}
        v_cmp_eq_u32 vcc, 1, v1
        v_cndmask_b32 v238, v238, {CNT_KV * 128}, vcc
        v_lshlrev_b32 v240, 6, v1
        s_mov_b32 exec_lo, 15
        s_mov_b32 exec_hi, 0
        buffer_load_dword v241, v240, {srd(SRD_DBG)}, 0 offen sc1
        s_mov_b32 exec_lo, 3
        buffer_load_dword v239, v238, {srd(SRD_WS)}, 0 offen sc1
        s_mov_b64 exec, -1
        """)

    def kv_wait(self):
        g = self
        self.poll_finish("kv", SRD_WS, 16, nl=2)
        self.stamp("kvseen")
        g(f"""
        s_mov_b32 exec_lo, 15
        s_mov_b32 exec_hi, 0
        v_cmp_ne_u32 vcc, 64, v241
        s_mov_b64 exec, -1
        s_cbranch_vccz L_rmaxok
        """)
        self.poll("rmax", SRD_DBG, "v_lshlrev_b32 v9, 6, v1 ; HZ_SKIP_BEGIN", 64, nl=4)
        g(f"""
        s_nop 0 ; HZ_SKIP_END
L_rmaxok:
        s_mul_i32 s{S_KVA}, s{S_HP}, {16*KVP_SZ}
        s_add_u32 s{S_KVA}, s{S_KVA}, {WS_KVP}
        s_add_u32 s{S_KVE}, s{S_KVA}, {16*KVP_SZ}
        s_mov_b32 s{S_KVB}, s{S_KVA}
        s_and_b32 s{S_T0}, s{S_SLOT}, 7
        s_mul_i32 s{S_T0}, s{S_T0}, {2*KVP_SZ}
        s_add_u32 s{S_KVA}, s{S_KVA}, s{S_T0}
        v_lshlrev_b32 v64, 4, v0
        s_mul_i32 s{S_T0}, s{S_WAVE}, {41*16}
        s_add_u32 s{S_T0}, s{S_T0}, 4096
        v_lshl_add_u32 v65, v1, 4, s{S_T0}
        s_mov_b32 s{S_MB}, -1
        s_mov_b32 s{S_MB+1}, 0x1ff
        v_lshlrev_b32 v66, 5, v1
        v_add_u32 v66, {WS_RMAX}, v66
        """)

    def kv_load_groups(self):
        grp = []
        for p in range(16):
            grp.append([f"buffer_load_dwordx4 {ac(4*p,4)}, v64, {srd(SRD_WS)}, s{S_KVA} offen sc1", f"s_mov_b64 exec, {s2(S_MB)}",
                        ])
            grp[-1] = [f"buffer_load_dwordx4 {ac(4*p,4)}, v64, {srd(SRD_WS)}, s{S_KVA} offen sc1"]
            grp.append([f"s_mov_b64 exec, {s2(S_MB)}", f"buffer_load_dwordx4 {ac(64+4*p,4)}, v65, {srd(SRD_WS)}, s{S_KVA} offen sc1",
                        "s_mov_b64 exec, -1", f"s_add_u32 s{S_KVA}, s{S_KVA}, {KVP_SZ}",
                        f"s_cmp_eq_u32 s{S_KVA}, s{S_KVE}", f"s_cselect_b32 s{S_KVA}, s{S_KVB}, s{S_KVA}"])
        grp.append([f"buffer_load_dwordx4 v[48:51], v66, {srd(SRD_WS)}, 0 offen sc1"])
        grp.append([f"buffer_load_dwordx4 v[52:55], v66, {srd(SRD_WS)}, 0 offen offset:16 sc1"])
        return grp

    def argmax(self):
        g = self
        g(f"""
        v_cmp_gt_f32 vcc, v50, v48
        v_cndmask_b32 v48, v48, v50, vcc
        v_cndmask_b32 v49, v49, v51, vcc
        v_cmp_gt_f32 vcc, v52, v48
        v_cndmask_b32 v48, v48, v52, vcc
        v_cndmask_b32 v49, v49, v53, vcc
        v_cmp_gt_f32 vcc, v54, v48
        v_cndmask_b32 v48, v48, v54, vcc
        v_cndmask_b32 v49, v49, v55, vcc
        v_mov_b32 v50, v48
        """)
        for ctl in ("row_shr:1 row_mask:0xf bank_mask:0xf", "row_shr:2 row_mask:0xf bank_mask:0xf",
                    "row_shr:4 row_mask:0xf bank_mask:0xf", "row_shr:8 row_mask:0xf bank_mask:0xf",
                    "row_bcast:15 row_mask:0xa bank_mask:0xf", "row_bcast:31 row_mask:0xc bank_mask:0xf"):
            g(f"v_max_f32_dpp v50, v50, v50 {ctl}")
        g(f"""
        v_readlane_b32 s{S_RSEL}, v50, 63
        v_cmp_eq_f32 vcc, s{S_RSEL}, v48
        s_ff1_i32_b64 s{S_T0}, vcc
        s_max_i32 s{S_T0}, s{S_T0}, 0
        v_readlane_b32 s{S_IDX}, v49, s{S_T0}
        s_nop 0
        s_and_b32 s{S_IDX}, s{S_IDX}, 2047
        """)

    def moe_a(self):
        g = self
        WD = self.WD
        g("v_rcp_f32 v67, v67")
        for d in range(5):
            g(f"""
            v_lshlrev_b32 v168, 16, v{60+d}
            v_and_b32 v169, 0xffff0000, v{60+d}
            v_sub_f32 v168, v168, v66
            v_sub_f32 v169, v169, v66
            v_cvt_pk_bf16_f32 v168, v168, v169
            v_lshlrev_b32 v169, 16, v168
            v_and_b32 v168, 0xffff0000, v168
            v_mul_f32 v169, v169, v67
            v_mul_f32 v168, v168, v67
            v_cvt_pk_bf16_f32 v{60+d}, v169, v168
            """)
        g(f"""
        s_mul_i32 s{S_T0}, s{S_WAVE}, 1280
        s_add_u32 s{S_T0}, s{S_T0}, {L_XS}
        v_mul_u32_u24 v9, 20, v1
        v_add_u32 v9, s{S_T0}, v9
        ds_write_b32 v9, v60
        ds_write_b32 v9, v61 offset:4
        ds_write_b32 v9, v62 offset:8
        ds_write_b32 v9, v63 offset:12
        ds_write_b32 v9, v64 offset:16
        v_bfe_u32 v9, v1, 2, 2
        v_lshl_add_u32 v9, v3, 3, v9
        s_mul_i32 s{S_T1}, s{S_WAVE}, 160
        v_add_u32 v9, s{S_T1}, v9
        v_lshlrev_b32 v9, 5, v9
        v_and_b32 v10, 3, v1
        v_lshl_add_u32 v9, v10, 3, v9
        v_bfe_u32 v10, v1, 4, 1
        v_mul_u32_u24 v10, {L_U - L_G}, v10
        v_add_u32 v9, v9, v10
        v_add_u32 v9, {L_G}, v9
        s_mul_i32 s{S_T1}, s{S_WAVE}, 320
        s_add_u32 s{S_T0}, s{S_T0}, s{S_T1}
        v_lshlrev_b32 v10, 4, v3
        v_add_u32 v10, s{S_T0}, v10
        s_waitcnt lgkmcnt(0)
        """)
        def rd(ks):
            A = 32 + 8*ks
            g(f"""
            ds_read_b64_tr_b16 {v(A,2)}, v9 offset:{(16*ks)*32}
            ds_read_b64_tr_b16 {v(A+2,2)}, v9 offset:{(16*ks+4)*32}
            ds_read_b128 {v(A+4,4)}, v10 offset:{32*ks}
            """)
        for ks in range(4): rd(ks)
        for ks in range(10):
            if ks + 4 < 10:
                g("s_waitcnt lgkmcnt(9)"); rd(ks + 4) if False else None
                g(f"v_mfma_f32_32x32x16_bf16 v[16:31], {v(32+8*ks,4)}, {v(36+8*ks,4)}, {'0' if ks == 0 else 'v[16:31]'}")
                rd(ks + 4)
            else:
                g(f"s_waitcnt lgkmcnt({3*(9-ks)})")
                g(f"v_mfma_f32_32x32x16_bf16 v[16:31], {v(32+8*ks,4)}, {v(36+8*ks,4)}, v[16:31]")
        g(f"""
        s_lshl_b32 s{S_T0}, s{S_WAVE}, 7
        s_add_u32 s{S_T0}, s{S_T0}, {L_HP}
        v_lshlrev_b32 v9, 4, v3
        v_add_u32 v9, s{S_T0}, v9
        s_mov_b32 exec_lo, 1
        s_mov_b32 exec_hi, 1
        ds_write_b128 v9, v[16:19]
        ds_write_b128 v9, v[20:23] offset:32
        ds_write_b128 v9, v[24:27] offset:64
        ds_write_b128 v9, v[28:31] offset:96
        s_mov_b64 exec, -1
        s_waitcnt lgkmcnt(0)
        """)

    def moe_b(self):
        g = self
        WD = self.WD
        g(f"""
        v_and_b32 v9, 15, v1
        v_lshlrev_b32 v9, 2, v9
        v_add_u32 v9, {L_HP}, v9
        ds_read_b32 v160, v9
        ds_read_b32 v161, v9 offset:128
        ds_read_b32 v162, v9 offset:256
        ds_read_b32 v163, v9 offset:384
        ds_read_b32 v164, v9 offset:64
        ds_read_b32 v165, v9 offset:192
        ds_read_b32 v166, v9 offset:320
        ds_read_b32 v167, v9 offset:448
        s_waitcnt lgkmcnt(0)
        v_add_f32 v160, v160, v161
        v_add_f32 v162, v162, v163
        v_add_f32 v164, v164, v165
        v_add_f32 v166, v166, v167
        v_add_f32 v160, v160, v162
        v_add_f32 v164, v164, v166
        """)
        g.rnd_bf16(160, 160); g.rnd_bf16(164, 164)
        g(f"""
        v_mul_f32 v161, 0xbfb8aa3b, v160
        v_exp_f32 v161, v161
        v_add_f32 v161, 1.0, v161
        v_rcp_f32 v161, v161
        v_mul_f32 v160, v160, v161
        """)
        g.rnd_bf16(160, 160)
        g("v_mul_f32 v160, v160, v164")
        g.rnd_bf16(160, 160)
        g("""
        v_mov_b32 v161, v160
        s_nop 1
        v_mov_b32_dpp v161, v160 row_shl:1 row_mask:0xf bank_mask:0xf
        s_nop 1
        v_cvt_pk_bf16_f32 v160, v160, v161
        """)
        for i in range(4): g(f"v_mov_b32 v{16+i}, 0")
        g("s_mov_b32 s74, 0x05040100\nv_mov_b32 v26, s74\ns_mov_b32 s74, 0x07060302\nv_mov_b32 v27, s74")
        for p in range(8):
            a0, a1 = WD + 4*p, WD + 4*p + 2
            g(f"""
            v_readlane_b32 s74, v160, {2*p}
            v_accvgpr_read_b32 v20, a{a0}
            v_accvgpr_read_b32 v21, a{a0+1}
            v_accvgpr_read_b32 v22, a{a1}
            v_accvgpr_read_b32 v23, a{a1+1}
            v_perm_b32 v24, v22, v20, v26
            v_perm_b32 v25, v22, v20, v27
            v_perm_b32 v28, v23, v21, v26
            v_perm_b32 v29, v23, v21, v27
            v_dot2c_f32_bf16 v16, s74, v24
            v_dot2c_f32_bf16 v17, s74, v25
            v_dot2c_f32_bf16 v18, s74, v28
            v_dot2c_f32_bf16 v19, s74, v29
            """)
        g("s_nop 2")

    def kv_addresses(self):
        g = self
        for k, (gi, out1, out2) in enumerate(((0, 196, 197), (256, 198, 199))):
            if k == 0: g("v_mov_b32 v9, v0")
            else: g(f"s_mul_i32 s{S_T0}, s{S_WAVE}, 41\ns_add_u32 s{S_T0}, s{S_T0}, 256\nv_add_u32 v9, s{S_T0}, v1")
            g(f"""
            v_cmp_lt_u32 vcc, 209, v9
            v_cndmask_b32 v10, 0, 1, vcc
            v_mul_u32_u24 v11, 210, v10
            v_sub_u32 v9, v9, v11
            v_mul_u32_u24 v11, 3121, v9
            v_lshrrev_b32 v11, 16, v11
            v_mul_u32_u24 v12, 21, v11
            v_sub_u32 v12, v9, v12
            v_lshrrev_b32 v13, 1, v11
            v_and_b32 v14, 1, v11
            v_cmp_lt_u32 vcc, 7, v11
            v_subrev_u32 v15, 4, v11
            v_cndmask_b32 v13, v13, v15, vcc
            v_cndmask_b32 v14, v14, 0, vcc
            v_lshrrev_b32 v15, 1, v13
            v_and_b32 v13, 1, v13
            v_mul_u32_u24 v15, 1024, v15
            v_lshl_add_u32 v15, v13, 9, v15
            v_lshl_add_u32 v15, v14, 3, v15
            v_mul_u32_u24 v13, 3072, v10
            v_add_u32 v15, v15, v13
            v_add_u32 v15, {L_KVF}, v15
            v_lshlrev_b32 v13, 2, v10
            v_sub_u32 v13, v12, v13
            v_add_u32 v14, 20, v13
            v_cmp_gt_i32 vcc, 0, v13
            v_cndmask_b32 v13, v13, v14, vcc
            v_subrev_u32 v14, 16, v13
            v_lshrrev_b32 v60, 3, v13
            v_and_b32 v61, 7, v13
            v_lshrrev_b32 v62, 1, v14
            v_and_b32 v63, 1, v14
            v_add_u32 v63, 8, v63
            v_cmp_lt_u32 vcc, 15, v13
            v_cndmask_b32 v60, v60, v62, vcc
            v_cndmask_b32 v61, v61, v63, vcc
            v_lshrrev_b32 v62, 2, v61
            v_lshlrev_b32 v62, 3, v62
            v_lshl_add_u32 v62, v60, 2, v62
            v_and_b32 v61, 3, v61
            v_add_u32 v62, v62, v61
            v_cmp_eq_u32 vcc, 20, v12
            v_cndmask_b32 v63, v62, 22, vcc
            v_cndmask_b32 v62, v62, 18, vcc
            v_lshl_add_u32 v62, v62, 4, v15
            v_lshl_add_u32 v63, v63, 4, v15
            v_accvgpr_write_b32 a{out1}, v62
            v_accvgpr_write_b32 a{out2}, v63
            """)

    def kv_reduce_and_o(self):
        g = self
        for n in range(3):
            g(f"v_accvgpr_read_b32 v{137+n}, a{208+n}\nv_accvgpr_read_b32 v{140+n}, a{211+n}\nv_accvgpr_read_b32 v{143+n}, a{214+n}")
        g.vmwait("kvp")
        self.stamp("kvdata")
        g(f"s_cmp_ge_u32 s{S_MU}, 108\ns_cbranch_scc1 L_noxrow\ns_nop 0 ; HZ_SKIP_BEGIN")
        self.argmax()
        g(f"""
        v_mul_u32_u24 v9, 20, v1
        s_mul_i32 s{S_T1}, s{S_IDX}, 1280
        buffer_load_dwordx4 v[60:63], v9, {srd(SRD_X)}, s{S_T1} offen
        buffer_load_dword v64, v9, {srd(SRD_X)}, s{S_T1} offen offset:16
        s_lshl_b32 s{S_T1}, s{S_IDX}, 3
        s_add_u32 s{S_T1}, s{S_T1}, {WS_STATS}
        v_mov_b32 v9, 0
        buffer_load_dwordx2 v[66:67], v9, {srd(SRD_WS)}, s{S_T1} offen sc1   ; HZ_SKIP_END
L_noxrow:
        """)
        def reduce():
            for base, acc in ((0, 16), (64, 92)):
                for e in range(4): g(f"v_accvgpr_read_b32 v{acc+e}, a{base+e}")
                for p in range(1, 16):
                    t = acc + 4 + 4 * (p & 1)
                    for e in range(4): g(f"v_accvgpr_read_b32 v{t+e}, a{base+4*p+e}")
                    g(f"v_pk_add_f32 {v(acc,2)}, {v(acc,2)}, {v(t,2)}\nv_pk_add_f32 {v(acc+2,2)}, {v(acc+2,2)}, {v(t+2,2)}")
        self.interleave([(x, "wo") for x in self.wog[18:]], self.capture(reduce))
        self.stamp("r_sum")
        g(f"""
        v_cvt_pk_bf16_f32 v16, v16, v17
        v_cvt_pk_bf16_f32 v17, v18, v19
        v_cvt_pk_bf16_f32 v92, v92, v93
        v_cvt_pk_bf16_f32 v93, v94, v95
        ds_write_b64 v56, v[16:17]
        ds_write_b64 v57, v[16:17]
        s_mov_b64 exec, {s2(S_MB)}
        ds_write_b64 v58, v[92:93]
        ds_write_b64 v59, v[92:93]
        s_mov_b64 exec, -1
        s_waitcnt lgkmcnt(0)
        s_barrier
        v_lshlrev_b32 v9, 4, v1
        v_add_u32 v9, {L_KVF}, v9
        """)
        self.stamp("r_bar")
        for a in range(2):
            for t in range(3):
                g(f"ds_read_b128 {v(92+12*a+4*t,4)}, v9 offset:{a*3072 + t*1024}")
        self.dump("kvf", list(range(92, 116)))
        for a, (acc, H) in enumerate(((16, 220), (32, 232))):
            g(f"s_waitcnt lgkmcnt({3 - 3*a})")
            for t in range(3):
                g(f"v_mfma_f32_32x32x16_bf16 {v(acc,16)}, {v(92+12*a+4*t,4)}, {v(H+4*t,4)}, {'0' if t == 0 else v(acc,16)}")
        self.dump("num", list(range(16, 48)))
        g("v_accvgpr_read_b32 v10, a217\nv_accvgpr_read_b32 v11, a218\nv_mov_b32 v12, 0x358637bd")
        for a, (acc, P) in enumerate(((16, 160), (32, 166))):
            g(f"v_add_f32 v{acc+10}, v{acc+10}, v12\nv_rcp_f32 v{acc+10}, v{acc+10}")
        for a, (acc, P) in enumerate(((16, 160), (32, 166))):
            for i in range(5):
                g(f"v_pk_mul_f32 {v(acc+2*i,2)}, {v(acc+2*i,2)}, {v(acc+10,2)} op_sel_hi:[1,0]")
            for i in range(5):
                g(f"v_cvt_pk_bf16_f32 v{P+i}, v{acc+2*i}, v{acc+2*i+1}")
        self.dump("o", list(range(160, 165)) + list(range(166, 171)))
        g(f"""
        v_mov_b32 v172, v164
        v_mov_b32 v173, v170
        s_nop 1
        v_permlane32_swap_b32 v172, v173
        buffer_store_dwordx4 v[160:163], v10, {srd(SRD_WS)}, s{S_OS} offen sc1
        buffer_store_dwordx2 v[172:173], v11, {srd(SRD_WS)}, s{S_OS} offen offset:2048 sc1
        buffer_store_dwordx4 v[166:169], v10, {srd(SRD_WS)}, s{S_OS} offen offset:3072 sc1
        """)
        self.stamp("o_store")
        g(f"s_cmp_lt_u32 s{S_MU}, 108\ns_cbranch_scc1 L_moea\ns_nop 0 ; HZ_SKIP_BEGIN")
        self.argmax()
        g("s_branch L_moeadone ; HZ_SKIP_END\nL_moea:\ns_waitcnt vmcnt(10) ; HZ_SKIP_BEGIN")
        self.moe_a()
        g("s_nop 0 ; HZ_SKIP_END\nL_moeadone:")
        self.stamp("o_wo8")
        g("s_waitcnt vmcnt(0)")
        self.stamp("o_drain")
        self.signal("o", f"s_add_u32 s{S_T0}, s{S_RB}, {CNT_O}", drain=False)
        self.stamp("osig")

    XR, RS, ST = 16, 176, 28
    NA = 8
    YQ = [100, 104, 108, 112, 116, 120, 124, 146, 150]
    def wo_groups(self):
        grp = []
        for j in (3, 4, 0, 1, 2):
            for n in range(5):
                gl = []
                if n == 0:
                    gl += [f"s_add_u32 s{S_T3}, s{S_WAVE}, {4*j}", f"s_mul_i32 s{S_WOL}, s{S_T3}, 5120",
                           f"s_mul_i32 s{S_T4}, s{S_T3}, 13108", f"s_lshr_b32 s{S_T4}, s{S_T4}, 16",
                           f"s_mul_i32 s{S_T4}, s{S_T4}, {120*1280}", f"s_mul_i32 s{S_T3}, s{S_T3}, {8*1280}",
                           f"s_add_u32 s{S_T3}, s{S_T3}, s{S_T4}", f"s_add_u32 s{S_WOS}, s{S_T3}, s{S_WOG}"]
                gl += [f"s_add_u32 m0, s{S_WOL}, {L_WO + n*1024}", "s_nop 0",
                       f"buffer_load_dwordx4 v{152+n}, {srd(SRD_WO)}, s{S_WOS} offen lds"]
                grp.append(gl)
        return grp

    def c_addresses(self):
        g = self
        for n in range(5):
            g(f"""
            v_add_u32 v9, {64*n}, v1
            v_mul_u32_u24 v10, 6554, v9
            v_lshrrev_b32 v10, 16, v10
            v_mul_u32_u24 v11, 10, v10
            v_sub_u32 v11, v9, v11
            v_bfe_u32 v12, v10, 3, 1
            v_bfe_u32 v13, v10, 2, 1
            v_lshl_add_u32 v12, v12, 1, v13
            v_mul_u32_u24 v12, 40, v12
            v_lshrrev_b32 v13, 4, v10
            v_lshl_add_u32 v12, v13, 2, v12
            v_and_b32 v13, 3, v10
            v_add_u32 v12, v12, v13
            v_mul_u32_u24 v12, 1280, v12
            v_lshl_add_u32 v12, v11, 4, v12
            v_accvgpr_write_b32 a{200+n}, v12
            """)
            if n < 3:
                g(f"""
                v_min_u32 v10, 15, v10
                v_mul_u32_u24 v12, 1280, v10
                v_lshl_add_u32 v12, v11, 4, v12
                v_accvgpr_write_b32 a{205+n}, v12
                v_mul_u32_u24 v12, 336, v10
                v_lshl_add_u32 v12, v11, 5, v12
                v_accvgpr_write_b32 a{208+n}, v12
                v_accvgpr_write_b32 a{211+n}, v10
                v_lshlrev_b32 v12, 5, v11
                v_accvgpr_write_b32 a{214+n}, v12
                """)

    def o_addresses(self):
        g = self
        g("""
        v_lshrrev_b32 v9, 4, v2
        v_mul_u32_u24 v9, 20480, v9
        v_and_b32 v10, 15, v2
        v_lshl_add_u32 v9, v10, 4, v9
        v_lshl_add_u32 v10, v3, 10, v9
        v_lshl_add_u32 v11, v3, 3, v9
        v_accvgpr_write_b32 a217, v10
        v_accvgpr_write_b32 a218, v11
        """)

    def residual(self):
        g = self
        XR, RS, ST = self.XR, self.RS, self.ST
        for n in range(3):
            xr, rs, st = XR + 4*n, RS + 8*n, ST + 2*n
            g(f"v_rcp_f32 v{st+1}, v{st+1}")
            for d in range(4):
                g(f"""
                v_lshlrev_b32 v10, 16, v{xr+d}
                v_and_b32 v11, 0xffff0000, v{xr+d}
                v_sub_f32 v12, v10, v{st}
                v_sub_f32 v13, v11, v{st}
                v_cvt_pk_bf16_f32 v12, v12, v13
                v_lshlrev_b32 v13, 16, v12
                v_and_b32 v12, 0xffff0000, v12
                v_mul_f32 v13, v13, v{st+1}
                v_mul_f32 v12, v12, v{st+1}
                v_cvt_pk_bf16_f32 v12, v13, v12
                v_lshlrev_b32 v13, 16, v12
                v_and_b32 v12, 0xffff0000, v12
                v_add_f32 v{rs+2*d}, v13, v10
                v_add_f32 v{rs+2*d+1}, v12, v11
                """)

    def phase_c(self):
        g = self
        XR, RS, ST = self.XR, self.RS, self.ST
        self.stamp("argmax")
        g(f"s_cmp_ge_u32 s{S_MU}, 108\ns_cbranch_scc1 L_wodone")
        g("s_nop 0 ; HZ_SKIP_BEGIN")
        self.moe_b()
        g(f"""
        s_mul_i32 s{S_T0}, s{S_MU}, 2560
        s_add_u32 s{S_T0}, s{S_T0}, {WS_Y}
        v_lshlrev_b32 v9, 4, v0
        v_cmp_gt_u32 vcc, 160, v0
        s_and_saveexec_b64 {s2(S_MA)}, vcc
        s_cbranch_execz L_noy
        buffer_store_dwordx4 v[16:19], v9, {srd(SRD_WS)}, s{S_T0} offen sc1
L_noy:
        s_mov_b64 exec, -1
        s_nop 0 ; HZ_SKIP_END
L_wodone:
        """)
        self.stamp("moedone"); self.mark("moedone")
        g(f"""
        v_bfe_u32 v10, v1, 5, 1
        v_lshlrev_b32 v10, 3, v10
        v_bfe_u32 v11, v1, 4, 1
        v_lshl_add_u32 v10, v11, 2, v10
        v_bfe_u32 v11, v1, 2, 2
        v_add_u32 v10, v10, v11
        v_mul_u32_u24 v10, 160, v10
        v_and_b32 v11, 3, v1
        v_lshl_add_u32 v10, v11, 3, v10
        v_add_u32 v236, {L_WO}, v10
        v_add_u32 v237, {L_WO + 10*5120}, v10
        """)
        NA = self.NA
        def wo_reads(ks):
            base = 236 + ks // 10
            out = []
            for ct in range(5):
                for rd in range(2):
                    dst = ac(20*ks + 4*ct + 2*rd, 2) if ks < NA else v(40 + 20*(ks % 3) + 4*ct + 2*rd, 2)
                    out.append(f"ds_read_b64_tr_b16 {dst}, v{base} offset:{(ks % 10)*5120 + rd*2560 + ct*32}")
            return out
        self.poll_issue(SRD_WS, f"s_lshr_b32 s{S_T0}, s{S_RB64}, 1\ns_add_u32 s{S_T0}, s{S_T0}, {CNT_O}\ns_lshl_b32 s{S_T0}, s{S_T0}, 7\nv_mov_b32 v238, s{S_T0}")
        for ks in range(NA + 2):
            for x in wo_reads(ks): g(x)
            if ks < NA + 1: g("s_waitcnt lgkmcnt(5)")
        g(f"s_cmp_ge_u32 s{S_MU}, 108\ns_cbranch_scc1 L_nomoesig")
        g("s_waitcnt vmcnt(0) ; HZ_SKIP_BEGIN")
        self.signal("moe", f"s_and_b32 s{S_T0}, s{S_MU}, 3\ns_add_u32 s{S_T0}, s{S_T0}, {CNT_M}", drain=False)
        g("s_nop 0 ; HZ_SKIP_END\nL_nomoesig:")
        g(f"""
        s_lshl_b32 s{S_T0}, s{S_RB64}, 6
        s_sub_u32 s{S_OWN}, s{S_IDX}, s{S_T0}
        s_cmp_ge_u32 s{S_OWN}, 64
        s_cbranch_scc1 L_noown0
        v_min_u32 v10, 19, v1                  ; HZ_SKIP_BEGIN
        v_lshlrev_b32 v10, 3, v10
        s_mul_i32 s{S_T0}, s{S_IDX}, 1280
        s_mul_i32 s{S_T1}, s{S_CB}, 160
        s_add_u32 s{S_T0}, s{S_T0}, s{S_T1}
        buffer_load_dwordx2 v[200:201], v10, {srd(SRD_X)}, s{S_T0} offen
        s_lshl_b32 s{S_T0}, s{S_IDX}, 3
        s_add_u32 s{S_T0}, s{S_T0}, {WS_STATS}
        v_mov_b32 v10, 0
        buffer_load_dwordx2 v[202:203], v10, {srd(SRD_WS)}, s{S_T0} offen sc1   ; HZ_SKIP_END
L_noown0:
        """)
        self.poll_finish("o", SRD_WS, 16)
        self.stamp("oseen"); self.dbg_span(8, False); self.mark("oseen")
        g(f"""
        s_mul_i32 s{S_T0}, s{S_RB64}, 81920
        s_mul_i32 s{S_T1}, s{S_WAVE}, 20480
        s_add_u32 s{S_T0}, s{S_T0}, s{S_T1}
        s_add_u32 s{S_T0}, s{S_T0}, {WS_O}
        v_lshlrev_b32 v9, 4, v1
        """)
        self.vm = []
        regs_o = list(range(100, 128, 4)) + list(range(146, 174, 4)) + [220, 224, 228, 232, 240, 244]
        assert len(regs_o) == 20, len(regs_o)
        def oload(ks):
            g(f"buffer_load_dwordx4 {v(regs_o[ks],4)}, v9, {srd(SRD_WS)}, s{S_T0} offen sc1\ns_add_u32 s{S_T0}, s{S_T0}, 1024")
            g.vmi(f"o{ks}")
        AHEAD = 10
        for ks in range(AHEAD): oload(ks)
        self.stamp("c_issued")
        for ks in range(20):
            if ks == 0: g("s_waitcnt lgkmcnt(0)")
            elif ks >= NA: g("s_waitcnt lgkmcnt(5)" if ks < 18 else ("s_waitcnt lgkmcnt(10)" if ks < 19 else "s_waitcnt lgkmcnt(0)"))
            if ks < 15: g.vmwait(f"o{ks}")
            if ks == 15:
                g("s_waitcnt vmcnt(0)")
                g(f"s_cmp_ge_u32 s{S_OWN}, 64\ns_cbranch_scc1 L_noown1\ns_nop 0 ; HZ_SKIP_BEGIN")
                self.poll_issue(SRD_WS, f"v_lshlrev_b32 v238, 7, v1\nv_add_u32 v238, {CNT_M*128}, v238", nl=4)
                self.poll_finish("m", SRD_WS, 27, nl=4)
                g(f"""
                v_mul_u32_u24 v10, 3277, v1
                v_lshrrev_b32 v10, 16, v10
                v_mul_u32_u24 v11, 20, v10
                v_sub_u32 v11, v1, v11
                v_mul_u32_u24 v12, 2560, v10
                v_lshl_add_u32 v12, v11, 4, v12
                s_mul_i32 s{S_T0}, s{S_CB}, 320
                s_mul_i32 s{S_T1}, s{S_WAVE}, {27*2560}
                s_add_u32 s{S_T0}, s{S_T0}, s{S_T1}
                s_add_u32 s{S_T0}, s{S_T0}, {WS_Y}
                s_mov_b32 exec_hi, 0x0fffffff
                """)
                for j in range(9):
                    g(f"buffer_load_dwordx4 {v(self.YQ[j],4)}, v12, {srd(SRD_WS)}, s{S_T0} offen sc1\ns_add_u32 s{S_T0}, s{S_T0}, {3*2560}")
                g(f"""
                s_mov_b64 exec, -1
                v_mul_u32_u24 v12, 320, v10
                v_lshl_add_u32 v12, v11, 4, v12
                s_mul_i32 s{S_T1}, s{S_WAVE}, 960
                s_add_u32 s{S_T1}, s{S_T1}, {L_YR}
                v_add_u32 v204, s{S_T1}, v12
                s_nop 0 ; HZ_SKIP_END
L_noown1:
                """)
            if ks in (0, 5, 10, 15): self.stamp(f"c_o{ks}")
            rd = wo_reads(ks + 2) if NA <= ks < 18 else []
            for ct in range(5):
                cin = "0" if ks == 0 else v(16+4*ct, 4)
                A = ac(20*ks + 4*ct, 4) if ks < NA else v(40 + 20*(ks % 3) + 4*ct, 4)
                g(f"v_mfma_f32_16x16x32_bf16 {v(16+4*ct,4)}, {A}, {v(regs_o[ks],4)}, {cin}")
                for x in rd[2*ct:2*ct+2]: g(x)
            if ks + AHEAD < 20: oload(ks + AHEAD)
        self.stamp("cmfma"); self.mark("cmfma")
        Y = self.YQ[0]
        g(f"""
        s_cmp_ge_u32 s{S_OWN}, 64
        s_cbranch_scc1 L_noown2
        s_waitcnt vmcnt(0)                     ; HZ_SKIP_BEGIN
        """)
        for j in range(1, 9):
            q = self.YQ[j]
            g(f"v_pk_add_f32 {v(Y,2)}, {v(Y,2)}, {v(q,2)}\nv_pk_add_f32 {v(Y+2,2)}, {v(Y+2,2)}, {v(q+2,2)}")
        g(f"""
        s_mov_b32 exec_hi, 0x0fffffff
        ds_write_b128 v204, {v(Y,4)}
        s_mov_b64 exec, -1
        v_mov_b32 v205, s{S_RSEL}
        """)
        g.rnd_bf16(205, 205)
        g(f"""
        v_mul_f32 v205, 0xbfb8aa3b, v205
        v_exp_f32 v205, v205
        v_rcp_f32 v203, v203
        v_add_f32 v205, 1.0, v205
        v_rcp_f32 v205, v205
        v_lshlrev_b32 v206, 16, v200
        v_and_b32 v207, 0xffff0000, v200
        v_lshlrev_b32 v208, 16, v201
        v_and_b32 v209, 0xffff0000, v201
        """)
        g.rnd_bf16(205, 205)
        for e in range(4):
            g(f"v_sub_f32 v{206+e}, v{206+e}, v202")
            g.rnd_bf16(206+e, 206+e)
            g(f"v_mul_f32 v{206+e}, v{206+e}, v203")
            g.rnd_bf16(206+e, 206+e)
        g(f"""
        v_min_u32 v10, 19, v1
        v_lshlrev_b32 v10, 4, v10
        v_add_u32 v10, {L_YR}, v10
        s_waitcnt lgkmcnt(0)
        s_barrier
        """)
        Y = 40
        for j in range(12):
            g(f"ds_read_b128 {v(Y+4*j,4)}, v10 offset:{320*j}")
        g("s_waitcnt lgkmcnt(0)")
        for j in range(1, 12):
            g(f"v_pk_add_f32 {v(Y,2)}, {v(Y,2)}, {v(Y+4*j,2)}\nv_pk_add_f32 {v(Y+2,2)}, {v(Y+2,2)}, {v(Y+4*j+2,2)}")
        for e in range(4):
            g.rnd_bf16(Y+e, Y+e)
            g(f"v_mul_f32 v{Y+e}, v{Y+e}, v205")
            g.rnd_bf16(Y+e, Y+e)
            g(f"v_add_f32 v{Y+e}, v{Y+e}, v{206+e}")
            g.rnd_bf16(Y+e, Y+e)
            g(f"v_sub_f32 v{210+e}, v{Y+e}, v{206+e}")
        g("s_nop 0 ; HZ_SKIP_END\nL_noown2:")
        g(f"""
        s_mul_i32 s{S_T0}, s{S_WAVE}, 5376
        s_add_u32 s{S_T0}, s{S_T0}, {L_OST}
        v_and_b32 v9, 15, v1
        v_mul_u32_u24 v9, 336, v9
        v_lshrrev_b32 v10, 4, v1
        v_lshl_add_u32 v9, v10, 4, v9
        v_add_u32 v9, s{S_T0}, v9
        """)
        for ct in range(5): g(f"ds_write_b128 v9, {v(16+4*ct,4)} offset:{64*ct}")
        for n in range(3): g(f"v_add_u32 v{10+n}, s{S_T0}, v{137+n}")
        g(f"""
        s_waitcnt lgkmcnt(0)
        s_sub_u32 s{S_T4}, s{S_IDX}, s{S_ROW0}
        s_cmp_ge_u32 s{S_T4}, 16
        s_cbranch_scc1 L_norow
        s_mul_i32 s{S_T4}, s{S_T4}, 336            ; HZ_SKIP_BEGIN
        s_add_u32 s{S_T4}, s{S_T4}, s{S_T0}
        v_lshl_add_u32 v9, v1, 4, s{S_T4}
        s_mov_b32 exec_lo, 0xfffff
        s_mov_b32 exec_hi, 0
        ds_read_b128 v[40:43], v9
        s_waitcnt lgkmcnt(0)
        v_pk_add_f32 v[40:41], v[40:41], v[210:211]
        v_pk_add_f32 v[42:43], v[42:43], v[212:213]
        ds_write_b128 v9, v[40:43]
        s_waitcnt lgkmcnt(0)
        s_mov_b64 exec, -1                         ; HZ_SKIP_END
L_norow:
        """)
        for n in range(3):
            g(f"ds_read_b128 {v(40+8*n,4)}, v{10+n}\nds_read_b128 {v(44+8*n,4)}, v{10+n} offset:16")
        for n in range(3):
            rs = RS + 8*n
            g(f"s_waitcnt lgkmcnt({4 - 2*n})")
            for e in range(0, 8, 2):
                g(f"v_pk_add_f32 {v(40+8*n+e,2)}, {v(40+8*n+e,2)}, {v(rs+e,2)}")
            for e in range(4):
                g(f"v_cvt_pk_bf16_f32 v{64+4*n+e}, v{40+8*n+2*e}, v{40+8*n+2*e+1}")
            if n == 2: g("s_mov_b32 exec_hi, 0")
            g(f"buffer_store_dwordx4 {v(64+4*n,4)}, v{134+n}, {srd(SRD_OUT)}, s{S_XO} offen")
        g("s_mov_b64 exec, -1")
        self.stamp("end"); self.stamp("clk1", True)

    def rest(self):
        self.publish_kv()
        self.dbg_span(4, False); self.mark("kvsig")
        self.pass2()
        self.kv_wait()
        self.dbg_span(9, False); self.mark("kvseen")
        self.q_epilogue()
        self.dbg_span(5, False)
        self.kv_reduce_and_o()
        self.dbg_span(6, False); self.mark("osig")
        self.phase_c()
```

```python
from gen import *

S_RB64, S_CB, S_MU, S_RSEL, S_ROW0 = 20, 21, 22, 23, 12
S_QC = 13
S_WOG, S_WOL = 14, 15
S_WOS = 76
S_YA = 79
S_TAG = 82
S_OWN = 80
S_STA = 81
S_XO = 85
S_KVE, S_KVB = 79, 75
S_KVA, S_OS = 78, 84
CNT_KV, CNT_O, CNT_M = 0, 16, 32
SPIN_LIMIT = 200000

class Full(Gen):
    def poll(self, name, srd_n, vaddr_setup, target, nl=1):
        g = self
        lab = f"L_poll_{name}"
        g(vaddr_setup)
        g(f"s_mov_b32 exec_lo, {(1 << nl) - 1}\ns_mov_b32 exec_hi, 0")
        g(f"""
        s_mov_b32 s74, 0
{lab}:
        buffer_load_dword v10, v9, {srd(srd_n)}, 0 offen sc1
        s_add_u32 s74, s74, 1
        s_cmp_gt_u32 s74, {SPIN_LIMIT}
        s_cbranch_scc1 {lab}_out
        s_waitcnt vmcnt(0)
        v_cmp_ne_u32 vcc, {target}, v10
        s_cbranch_vccnz {lab}
{lab}_out:
        s_waitcnt vmcnt(0)
        s_mov_b64 exec, -1
        """)

    def poll_issue(self, srd_n, vaddr_setup, nl=1):
        g = self
        g(vaddr_setup)
        g(f"s_mov_b32 exec_lo, {(1 << nl) - 1}\ns_mov_b32 exec_hi, 0\nbuffer_load_dword v239, v238, {srd(srd_n)}, 0 offen sc1\ns_mov_b64 exec, -1")

    def poll_finish(self, name, srd_n, target, nl=1):
        g = self
        lab = f"L_poll_{name}"
        g(f"""
        s_mov_b32 exec_lo, {(1 << nl) - 1}
        s_mov_b32 exec_hi, 0
        s_mov_b32 s74, 0
        s_waitcnt vmcnt(0)
        v_cmp_ne_u32 vcc, {target}, v239
        s_cbranch_vccz {lab}_out
{lab}:
        buffer_load_dword v239, v238, {srd(srd_n)}, 0 offen sc1
        s_add_u32 s74, s74, 1
        s_cmp_gt_u32 s74, {SPIN_LIMIT}
        s_cbranch_scc1 {lab}_out
        s_waitcnt vmcnt(0)
        v_cmp_ne_u32 vcc, {target}, v239
        s_cbranch_vccnz {lab}
{lab}_out:
        s_waitcnt vmcnt(0)
        s_mov_b64 exec, -1
        """)

    def signal(self, name, cnt_sgpr_expr, drain=True):
        g = self
        if drain: g("s_waitcnt vmcnt(0)")
        g(f"""
        s_barrier
        s_cmp_lg_u32 s{S_WAVE}, 0
        s_cbranch_scc1 L_nosig_{name}
        """)
        g(cnt_sgpr_expr + " ; HZ_SKIP_BEGIN")
        g(f"""
        s_lshl_b32 s{S_T0}, s{S_T0}, 7
        v_mov_b32 v9, s{S_T0}
        v_mov_b32 v10, 1
        s_mov_b64 exec, 1
        buffer_atomic_add v10, v9, {srd(SRD_WS)}, 0 offen sc1
        s_mov_b64 exec, -1         ; HZ_SKIP_END
L_nosig_{name}:
        """)

    def publish_kv(self):
        g = self
        g(f"""
        s_cmp_lg_u32 s{S_HP}, 0
        s_cbranch_scc1 L_nostats
        s_lshl_b32 s{S_T0}, s{S_RB}, 7       ; HZ_SKIP_BEGIN
        s_lshl_b32 s{S_T1}, s{S_WAVE}, 5
        s_add_u32 s{S_T0}, s{S_T0}, s{S_T1}
        s_lshl_b32 s{S_T0}, s{S_T0}, 3
        s_add_u32 s{S_T0}, s{S_T0}, {WS_STATS}
        v_lshlrev_b32 v9, 3, v2
        v_mov_b32 v10, v91
        v_mov_b32 v11, v90
        s_mov_b32 exec_hi, 0
        buffer_store_dwordx2 v[10:11], v9, {srd(SRD_WS)}, s{S_T0} offen sc1
        s_mov_b64 exec, -1                   ; HZ_SKIP_END
L_nostats:
        """)
        g(f"""
        v_mul_u32_u24 v9, 6554, v1
        v_lshrrev_b32 v9, 16, v9
        v_mul_u32_u24 v10, 10, v9
        v_sub_u32 v10, v1, v10
        v_mul_u32_u24 v11, 1280, v9
        v_lshl_add_u32 v11, v10, 7, v11
        s_lshl_b32 s{S_T0}, s{S_SLOT}, 2
        s_add_u32 s{S_T0}, s{S_T0}, s{S_WAVE}
        s_mul_i32 s{S_T0}, s{S_T0}, {5*1280}
        s_mov_b32 exec_hi, 0x3ffff
        buffer_load_dword v159, v11, {srd(SRD_WO)}, s{S_T0} offen
        s_mov_b64 exec, -1
        """)

    def kv_signal(self):
        g = self
        g("s_waitcnt vmcnt(1)")
        g(f"""
        v_readfirstlane_b32 s{S_TAG}, v75
        s_cmp_lg_u32 s{S_TAG}, 0
        s_cbranch_scc1 L_isready
        v_mov_b32 v9, 240              ; HZ_SKIP_BEGIN
        s_mov_b32 s74, 0
L_poll_ready:
        buffer_load_dword v10, v9, {srd(SRD_DBG)}, 0 offen sc1
        s_add_u32 s74, s74, 1
        s_waitcnt vmcnt(0)
        v_readfirstlane_b32 s{S_TAG}, v10
        s_cmp_gt_u32 s74, {SPIN_LIMIT}
        s_cbranch_scc1 L_isready
        s_cmp_eq_u32 s{S_TAG}, 0
        s_cbranch_scc1 L_poll_ready    ; HZ_SKIP_END
L_isready:
        """)
        self.signal("kv", f"s_add_u32 s{S_T0}, s{S_HP}, {CNT_KV}", drain=False)
        self.stamp("kvsig")

    def moe_roles(self):
        g = self
        g(f"""
        s_lshr_b32 s{S_T0}, s{S_XCD}, 1
        s_lshr_b32 s{S_T1}, s{S_SLOT}, 3
        s_add_u32 s{S_T0}, s{S_T0}, s{S_T1}
        s_lshr_b32 s{S_T1}, s{S_SLOT}, 4
        s_lshl_b32 s{S_T1}, s{S_T1}, 3
        s_and_b32 s{S_T2}, s{S_SLOT}, 7
        s_add_u32 s{S_T1}, s{S_T1}, s{S_T2}
        s_mul_i32 s{S_MU}, s{S_XCD}, 14
        s_add_u32 s{S_MU}, s{S_MU}, s{S_T1}
        s_cmp_lt_u32 s{S_T1}, 14
        s_cselect_b32 s{S_MU}, s{S_MU}, 255
        s_bitcmp1_b32 s{S_T0}, 0
        s_cselect_b32 s{S_MU}, 255, s{S_MU}
        s_lshr_b32 s{S_T0}, s{S_SLOT}, 3
        s_lshl_b32 s{S_T1}, s{S_XCD}, 2
        s_add_u32 s{S_RB64}, s{S_T0}, s{S_T1}
        s_and_b32 s{S_CB}, s{S_SLOT}, 7
        s_lshl_b32 s{S_ROW0}, s{S_RB64}, 6
        s_lshl_b32 s{S_T0}, s{S_WAVE}, 4
        s_add_u32 s{S_ROW0}, s{S_ROW0}, s{S_T0}
        s_mul_i32 s{S_T1}, s{S_CB}, 160
        s_mov_b32 s{S_WOG}, s{S_T1}
        s_mul_i32 s{S_T0}, s{S_ROW0}, 1280
        s_add_u32 s{S_XO}, s{S_T0}, s{S_T1}
        s_lshl_b32 s{S_T0}, s{S_RB}, 1
        s_lshr_b32 s{S_T1}, s{S_WAVE}, 1
        s_add_u32 s{S_T0}, s{S_T0}, s{S_T1}
        s_mul_i32 s{S_T0}, s{S_T0}, 81920
        s_and_b32 s{S_T1}, s{S_WAVE}, 1
        s_mul_i32 s{S_T1}, s{S_T1}, 40960
        s_add_u32 s{S_T0}, s{S_T0}, s{S_T1}
        s_lshr_b32 s{S_T1}, s{S_HP}, 2
        s_mul_i32 s{S_T1}, s{S_T1}, 5120
        s_add_u32 s{S_T0}, s{S_T0}, s{S_T1}
        s_and_b32 s{S_T1}, s{S_HP}, 3
        s_lshl_b32 s{S_T1}, s{S_T1}, 8
        s_add_u32 s{S_T0}, s{S_T0}, s{S_T1}
        s_add_u32 s{S_OS}, s{S_T0}, {WS_O}
        """)

    WD = 160
    def moe_load_block(self, k):
        g = self
        lab = f"L_nomoeld{k}"
        g(f"s_cmp_ge_u32 s{S_MU}, 108\ns_cbranch_scc1 {lab}")
        if k == 0:
            g(f"""
            v_lshrrev_b32 v134, 1, v1                ; HZ_SKIP_BEGIN
            v_mul_u32_u24 v134, 3456, v134
            v_and_b32 v10, 1, v1
            v_lshl_add_u32 v134, v10, 4, v134
            v_lshlrev_b32 v135, 3, v0
            """)
        else:
            g("s_nop 0 ; HZ_SKIP_BEGIN")
        g(f"""
        s_and_b32 s{S_T0}, s{S_MU}, 3
        s_add_u32 s{S_T0}, s{S_T0}, {k}
        s_cmp_ge_u32 s{S_T0}, 5
        s_cselect_b32 s{S_T1}, 5, 0
        s_sub_u32 s{S_T3}, s{S_T0}, s{S_T1}
        s_mul_i32 s{S_T1}, s{S_WAVE}, 5
        s_add_u32 s{S_T3}, s{S_T3}, s{S_T1}
        s_mul_i32 s{S_T2}, s{S_T3}, {32*3456}
        s_lshl_b32 s{S_T0}, s{S_MU}, 5
        s_add_u32 s{S_T2}, s{S_T2}, s{S_T0}
        s_lshl_b32 s{S_T1}, s{S_T3}, 10
        s_add_u32 m0, s{S_T1}, {L_G}
        s_mul_i32 s{S_T0}, s{S_MU}, {16*1280}
        buffer_load_dwordx4 v134, {srd(SRD_G)}, s{S_T2} offen lds
        s_add_u32 m0, s{S_T1}, {L_U}
        v_cmp_gt_u32 vcc, 160, v0
        buffer_load_dwordx4 v134, {srd(SRD_U)}, s{S_T2} offen lds
        s_and_saveexec_b64 {s2(S_MA)}, vcc
        s_cbranch_execz {lab}_x
        """)
        us = list(range(16))[[0, 3, 6, 9, 12][k]:[3, 6, 9, 12, 16][k]]
        for u in us:
            g(f"s_add_u32 s{S_T1}, s{S_T0}, {u*1280}\nbuffer_load_dwordx2 {ac(self.WD+2*u,2)}, v135, {srd(SRD_D)}, s{S_T1} offen")
        g(f"{lab}_x:\ns_mov_b64 exec, -1 ; HZ_SKIP_END\n{lab}:")

    def p2_reads(self, n):
        i, ks = divmod(n, 4); b = n % 3
        base = 128 + (i & 1)
        out = []
        for t in range(2):
            for rd in range(2):
                out.append(f"ds_read_b64_tr_b16 {v(92+12*b+4*t+2*rd,2)}, v{base} offset:{(16*ks+rd)*80 + 64*t}")
        for rd in range(2):
            out.append(f"ds_read_b64_tr_b16 {v(160+4*b+2*rd,2)}, v{130 + (i & 1)} offset:{(16*ks+rd)*80}")
        return out

    def p2_base(self, i):
        r = i & 1
        return [f"v_add_u32 v{128+r}, s{S_QC}, v132", f"v_add_u32 v{130+r}, s{S_QC}, v133",
                f"s_add_u32 s{S_QC}, s{S_QC}, 5120", f"s_cmp_eq_u32 s{S_QC}, 51200", f"s_cselect_b32 s{S_QC}, 0, s{S_QC}"]

    def pass2(self):
        g = self
        g(f"""
        v_bfe_u32 v9, v1, 2, 2
        v_lshlrev_b32 v9, 1, v9
        v_add_u32 v9, v9, v3
        v_lshlrev_b32 v9, 1, v9
        v_mul_u32_u24 v9, 80, v9
        v_bfe_u32 v10, v1, 4, 1
        v_and_b32 v11, 3, v1
        v_lshl_add_u32 v10, v10, 2, v11
        v_lshl_add_u32 v9, v10, 3, v9
        v_add_u32 v132, {L_WQ}, v9
        s_lshl_b32 s{S_T0}, s{S_WAVE}, 6
        v_add_u32 v133, s{S_T0}, v132
        s_mul_i32 s{S_QC}, s{S_C0}, 5120
        """)
        for n in range(5): g(f"v_accvgpr_read_b32 v{152+n}, a{200+n}")
        self.wog = self.wo_groups()
        early = self.wog[:10]
        for x in self.p2_base(0): g(x)
        for x in self.p2_reads(0): g(x)
        for x in self.p2_reads(1): g(x)
        for n in range(40):
            i, ks = divmod(n, 4); b = n % 3
            if ks == 1 and i < 9:
                for x in self.p2_base(i + 1): g(x)
            g("s_waitcnt lgkmcnt(0)" if n == 39 else "s_waitcnt lgkmcnt(6)")
            rd = self.p2_reads(n + 2) if n + 2 < 40 else []
            XP = ac(4*n, 4)
            WF = lambda t: 92 + 12*b + 4*t
            cin = lambda r, k: "0" if n == 0 else v(r, k)
            g(f"v_mfma_f32_32x32x16_bf16 v[16:31], {v(WF(0),4)}, {XP}, {cin(16,16)}")
            for x in rd[0:3]: g(x)
            g(f"v_mfma_f32_32x32x16_bf16 v[32:47], {v(WF(1),4)}, {XP}, {cin(32,16)}")
            for x in rd[3:6]: g(x)
            g(f"v_mfma_f32_4x4x4_16b_bf16 v[76:79], {v(160+4*b,2)}, v[84:85], {cin(76,4)}")
            g(f"v_mfma_f32_4x4x4_16b_bf16 v[80:83], {v(160+4*b+2,2)}, v[84:85], {cin(80,4)}")
            if n == 12: self.kv_signal()
            if n in (13, 18, 23, 28, 33): self.moe_load_block((n - 13) // 5)
            if n >= 18 and n % 2 == 0 and early:
                for x in early.pop(0): g(x)
            if n == 36: self.kv_poll_issue()
            if n in (9, 19, 29): self.stamp(f"p2_{n}")
        while early:
            for x in early.pop(0): g(x)
        self.stamp("p2end")

    def q_epilogue_a(self):
        g = self
        self.smtag = "q"
        for n in range(3):
            g(f"v_accvgpr_read_b32 v{134+n}, a{205+n}\nv_accvgpr_read_b32 v{68+n}, a{211+n}")
        self.stats_and_colsum(False)
        quads = [(16+4*j, 8*j) for j in range(4)] + [(32, 32)]
        g(f"v_lshlrev_b32 v9, 4, v3\nv_add_u32 v9, {L_CS + 512}, v9")
        self.norm_reads(quads, 512, 160)
        self.norm_apply(quads, 160, 0)
        PK = 244
        for i in range(10):
            g(f"v_cvt_pk_bf16_f32 v{PK+i}, v{16+2*i}, v{16+2*i+1}")
        self.stamp("q_cvt")

    def q_epilogue_b(self):
        g = self
        self.featmap_mfma(244)
        for i in range(4): g(f"v_accvgpr_read_b32 v{56+i}, a{196+i}")
        self.softmax(220, 232)
        self.stamp("qdone")

    def xres_groups(self):
        XR, ST = self.XR, self.ST
        grp = []
        for n in range(3):
            grp.append([f"buffer_load_dwordx4 {v(XR+4*n,4)}, v{134+n}, {srd(SRD_X)}, s{S_XO} offen"])
            pre = [f"s_lshl_b32 s{S_T0}, s{S_ROW0}, 3", f"s_add_u32 s{S_STA}, s{S_T0}, {WS_STATS}"] if n == 0 else []
            grp.append(pre + [f"v_lshlrev_b32 v67, 3, v{68+n}", f"buffer_load_dwordx2 {v(ST+2*n,2)}, v67, {srd(SRD_WS)}, s{S_STA} offen sc1"])
        return grp

    def q_epilogue(self):
        kg = self.kv_load_groups()
        self.interleave([(x, "kvp") for x in kg[:8]], self.capture(self.q_epilogue_a))
        self.interleave([(x, "xres") for x in self.xres_groups()] + [(x, "kvp") for x in kg[8:]], self.capture(self.q_epilogue_b))
        self.dump("phiq", list(range(220, 244)))
        self.vmwait("xres")
        self.interleave([(x, "wo") for x in self.wog[10:18]], self.capture(self.residual))
        self.stamp("resid")

    def kv_poll_issue(self):
        g = self
        g(f"""
        s_add_u32 s{S_T0}, s{S_HP}, {CNT_KV}
        s_lshl_b32 s{S_T0}, s{S_T0}, 7
        v_mov_b32 v238, s{S_T0}
        v_cmp_eq_u32 vcc, 1, v1
        v_cndmask_b32 v238, v238, {CNT_KV * 128}, vcc
        v_lshlrev_b32 v240, 6, v1
        s_mov_b32 exec_lo, 15
        s_mov_b32 exec_hi, 0
        buffer_load_dword v241, v240, {srd(SRD_DBG)}, 0 offen sc1
        s_mov_b32 exec_lo, 3
        buffer_load_dword v239, v238, {srd(SRD_WS)}, 0 offen sc1
        s_mov_b64 exec, -1
        """)

    def kv_wait(self):
        g = self
        self.poll_finish("kv", SRD_WS, 16, nl=2)
        self.stamp("kvseen")
        g(f"""
        s_mov_b32 exec_lo, 15
        s_mov_b32 exec_hi, 0
        v_cmp_ne_u32 vcc, 64, v241
        s_mov_b64 exec, -1
        s_cbranch_vccz L_rmaxok
        """)
        self.poll("rmax", SRD_DBG, "v_lshlrev_b32 v9, 6, v1 ; HZ_SKIP_BEGIN", 64, nl=4)
        g(f"""
        s_nop 0 ; HZ_SKIP_END
L_rmaxok:
        s_mul_i32 s{S_KVA}, s{S_HP}, {16*KVP_SZ}
        s_add_u32 s{S_KVA}, s{S_KVA}, {WS_KVP}
        s_add_u32 s{S_KVE}, s{S_KVA}, {16*KVP_SZ}
        s_mov_b32 s{S_KVB}, s{S_KVA}
        s_and_b32 s{S_T0}, s{S_SLOT}, 7
        s_mul_i32 s{S_T0}, s{S_T0}, {2*KVP_SZ}
        s_add_u32 s{S_KVA}, s{S_KVA}, s{S_T0}
        v_lshlrev_b32 v64, 4, v0
        s_mul_i32 s{S_T0}, s{S_WAVE}, {41*16}
        s_add_u32 s{S_T0}, s{S_T0}, 4096
        v_lshl_add_u32 v65, v1, 4, s{S_T0}
        s_mov_b32 s{S_MB}, -1
        s_mov_b32 s{S_MB+1}, 0x1ff
        v_lshlrev_b32 v66, 5, v1
        v_add_u32 v66, {WS_RMAX}, v66
        """)

    def kv_load_groups(self):
        grp = []
        for p in range(16):
            grp.append([f"buffer_load_dwordx4 {ac(4*p,4)}, v64, {srd(SRD_WS)}, s{S_KVA} offen sc1", f"s_mov_b64 exec, {s2(S_MB)}",
                        ])
            grp[-1] = [f"buffer_load_dwordx4 {ac(4*p,4)}, v64, {srd(SRD_WS)}, s{S_KVA} offen sc1"]
            grp.append([f"s_mov_b64 exec, {s2(S_MB)}", f"buffer_load_dwordx4 {ac(64+4*p,4)}, v65, {srd(SRD_WS)}, s{S_KVA} offen sc1",
                        "s_mov_b64 exec, -1", f"s_add_u32 s{S_KVA}, s{S_KVA}, {KVP_SZ}",
                        f"s_cmp_eq_u32 s{S_KVA}, s{S_KVE}", f"s_cselect_b32 s{S_KVA}, s{S_KVB}, s{S_KVA}"])
        grp.append([f"buffer_load_dwordx4 v[48:51], v66, {srd(SRD_WS)}, 0 offen sc1"])
        grp.append([f"buffer_load_dwordx4 v[52:55], v66, {srd(SRD_WS)}, 0 offen offset:16 sc1"])
        return grp

    def argmax(self):
        g = self
        g(f"""
        v_cmp_gt_f32 vcc, v50, v48
        v_cndmask_b32 v48, v48, v50, vcc
        v_cndmask_b32 v49, v49, v51, vcc
        v_cmp_gt_f32 vcc, v52, v48
        v_cndmask_b32 v48, v48, v52, vcc
        v_cndmask_b32 v49, v49, v53, vcc
        v_cmp_gt_f32 vcc, v54, v48
        v_cndmask_b32 v48, v48, v54, vcc
        v_cndmask_b32 v49, v49, v55, vcc
        v_mov_b32 v50, v48
        """)
        for ctl in ("row_shr:1 row_mask:0xf bank_mask:0xf", "row_shr:2 row_mask:0xf bank_mask:0xf",
                    "row_shr:4 row_mask:0xf bank_mask:0xf", "row_shr:8 row_mask:0xf bank_mask:0xf",
                    "row_bcast:15 row_mask:0xa bank_mask:0xf", "row_bcast:31 row_mask:0xc bank_mask:0xf"):
            g(f"v_max_f32_dpp v50, v50, v50 {ctl}")
        g(f"""
        v_readlane_b32 s{S_RSEL}, v50, 63
        v_cmp_eq_f32 vcc, s{S_RSEL}, v48
        s_ff1_i32_b64 s{S_T0}, vcc
        s_max_i32 s{S_T0}, s{S_T0}, 0
        v_readlane_b32 s{S_IDX}, v49, s{S_T0}
        s_nop 0
        s_and_b32 s{S_IDX}, s{S_IDX}, 2047
        """)

    def moe_a(self):
        g = self
        WD = self.WD
        g("v_rcp_f32 v67, v67")
        for d in range(5):
            g(f"""
            v_lshlrev_b32 v168, 16, v{60+d}
            v_and_b32 v169, 0xffff0000, v{60+d}
            v_sub_f32 v168, v168, v66
            v_sub_f32 v169, v169, v66
            v_cvt_pk_bf16_f32 v168, v168, v169
            v_lshlrev_b32 v169, 16, v168
            v_and_b32 v168, 0xffff0000, v168
            v_mul_f32 v169, v169, v67
            v_mul_f32 v168, v168, v67
            v_cvt_pk_bf16_f32 v{60+d}, v169, v168
            """)
        g(f"""
        s_mul_i32 s{S_T0}, s{S_WAVE}, 1280
        s_add_u32 s{S_T0}, s{S_T0}, {L_XS}
        v_mul_u32_u24 v9, 20, v1
        v_add_u32 v9, s{S_T0}, v9
        ds_write_b32 v9, v60
        ds_write_b32 v9, v61 offset:4
        ds_write_b32 v9, v62 offset:8
        ds_write_b32 v9, v63 offset:12
        ds_write_b32 v9, v64 offset:16
        v_bfe_u32 v9, v1, 2, 2
        v_lshl_add_u32 v9, v3, 3, v9
        s_mul_i32 s{S_T1}, s{S_WAVE}, 160
        v_add_u32 v9, s{S_T1}, v9
        v_lshlrev_b32 v9, 5, v9
        v_and_b32 v10, 3, v1
        v_lshl_add_u32 v9, v10, 3, v9
        v_bfe_u32 v10, v1, 4, 1
        v_mul_u32_u24 v10, {L_U - L_G}, v10
        v_add_u32 v9, v9, v10
        v_add_u32 v9, {L_G}, v9
        s_mul_i32 s{S_T1}, s{S_WAVE}, 320
        s_add_u32 s{S_T0}, s{S_T0}, s{S_T1}
        v_lshlrev_b32 v10, 4, v3
        v_add_u32 v10, s{S_T0}, v10
        s_waitcnt lgkmcnt(0)
        """)
        def rd(ks):
            A = 32 + 8*ks
            g(f"""
            ds_read_b64_tr_b16 {v(A,2)}, v9 offset:{(16*ks)*32}
            ds_read_b64_tr_b16 {v(A+2,2)}, v9 offset:{(16*ks+4)*32}
            ds_read_b128 {v(A+4,4)}, v10 offset:{32*ks}
            """)
        for ks in range(4): rd(ks)
        for ks in range(10):
            if ks + 4 < 10:
                g("s_waitcnt lgkmcnt(9)"); rd(ks + 4) if False else None
                g(f"v_mfma_f32_32x32x16_bf16 v[16:31], {v(32+8*ks,4)}, {v(36+8*ks,4)}, {'0' if ks == 0 else 'v[16:31]'}")
                rd(ks + 4)
            else:
                g(f"s_waitcnt lgkmcnt({3*(9-ks)})")
                g(f"v_mfma_f32_32x32x16_bf16 v[16:31], {v(32+8*ks,4)}, {v(36+8*ks,4)}, v[16:31]")
        g(f"""
        s_lshl_b32 s{S_T0}, s{S_WAVE}, 7
        s_add_u32 s{S_T0}, s{S_T0}, {L_HP}
        v_lshlrev_b32 v9, 4, v3
        v_add_u32 v9, s{S_T0}, v9
        s_mov_b32 exec_lo, 1
        s_mov_b32 exec_hi, 1
        ds_write_b128 v9, v[16:19]
        ds_write_b128 v9, v[20:23] offset:32
        ds_write_b128 v9, v[24:27] offset:64
        ds_write_b128 v9, v[28:31] offset:96
        s_mov_b64 exec, -1
        s_waitcnt lgkmcnt(0)
        """)

    def moe_b(self):
        g = self
        WD = self.WD
        g(f"""
        v_and_b32 v9, 15, v1
        v_lshlrev_b32 v9, 2, v9
        v_add_u32 v9, {L_HP}, v9
        ds_read_b32 v160, v9
        ds_read_b32 v161, v9 offset:128
        ds_read_b32 v162, v9 offset:256
        ds_read_b32 v163, v9 offset:384
        ds_read_b32 v164, v9 offset:64
        ds_read_b32 v165, v9 offset:192
        ds_read_b32 v166, v9 offset:320
        ds_read_b32 v167, v9 offset:448
        s_waitcnt lgkmcnt(0)
        v_add_f32 v160, v160, v161
        v_add_f32 v162, v162, v163
        v_add_f32 v164, v164, v165
        v_add_f32 v166, v166, v167
        v_add_f32 v160, v160, v162
        v_add_f32 v164, v164, v166
        """)
        g.rnd_bf16(160, 160); g.rnd_bf16(164, 164)
        g(f"""
        v_mul_f32 v161, 0xbfb8aa3b, v160
        v_exp_f32 v161, v161
        v_add_f32 v161, 1.0, v161
        v_rcp_f32 v161, v161
        v_mul_f32 v160, v160, v161
        """)
        g.rnd_bf16(160, 160)
        g("v_mul_f32 v160, v160, v164")
        g.rnd_bf16(160, 160)
        g("""
        v_mov_b32 v161, v160
        s_nop 1
        v_mov_b32_dpp v161, v160 row_shl:1 row_mask:0xf bank_mask:0xf
        s_nop 1
        v_cvt_pk_bf16_f32 v160, v160, v161
        """)
        for i in range(4): g(f"v_mov_b32 v{16+i}, 0")
        g("s_mov_b32 s74, 0x05040100\nv_mov_b32 v26, s74\ns_mov_b32 s74, 0x07060302\nv_mov_b32 v27, s74")
        for p in range(8):
            a0, a1 = WD + 4*p, WD + 4*p + 2
            g(f"""
            v_readlane_b32 s74, v160, {2*p}
            v_accvgpr_read_b32 v20, a{a0}
            v_accvgpr_read_b32 v21, a{a0+1}
            v_accvgpr_read_b32 v22, a{a1}
            v_accvgpr_read_b32 v23, a{a1+1}
            v_perm_b32 v24, v22, v20, v26
            v_perm_b32 v25, v22, v20, v27
            v_perm_b32 v28, v23, v21, v26
            v_perm_b32 v29, v23, v21, v27
            v_dot2c_f32_bf16 v16, s74, v24
            v_dot2c_f32_bf16 v17, s74, v25
            v_dot2c_f32_bf16 v18, s74, v28
            v_dot2c_f32_bf16 v19, s74, v29
            """)
        g("s_nop 2")

    def kv_addresses(self):
        g = self
        for k, (gi, out1, out2) in enumerate(((0, 196, 197), (256, 198, 199))):
            if k == 0: g("v_mov_b32 v9, v0")
            else: g(f"s_mul_i32 s{S_T0}, s{S_WAVE}, 41\ns_add_u32 s{S_T0}, s{S_T0}, 256\nv_add_u32 v9, s{S_T0}, v1")
            g(f"""
            v_cmp_lt_u32 vcc, 209, v9
            v_cndmask_b32 v10, 0, 1, vcc
            v_mul_u32_u24 v11, 210, v10
            v_sub_u32 v9, v9, v11
            v_mul_u32_u24 v11, 3121, v9
            v_lshrrev_b32 v11, 16, v11
            v_mul_u32_u24 v12, 21, v11
            v_sub_u32 v12, v9, v12
            v_lshrrev_b32 v13, 1, v11
            v_and_b32 v14, 1, v11
            v_cmp_lt_u32 vcc, 7, v11
            v_subrev_u32 v15, 4, v11
            v_cndmask_b32 v13, v13, v15, vcc
            v_cndmask_b32 v14, v14, 0, vcc
            v_lshrrev_b32 v15, 1, v13
            v_and_b32 v13, 1, v13
            v_mul_u32_u24 v15, 1024, v15
            v_lshl_add_u32 v15, v13, 9, v15
            v_lshl_add_u32 v15, v14, 3, v15
            v_mul_u32_u24 v13, 3072, v10
            v_add_u32 v15, v15, v13
            v_add_u32 v15, {L_KVF}, v15
            v_lshlrev_b32 v13, 2, v10
            v_sub_u32 v13, v12, v13
            v_add_u32 v14, 20, v13
            v_cmp_gt_i32 vcc, 0, v13
            v_cndmask_b32 v13, v13, v14, vcc
            v_subrev_u32 v14, 16, v13
            v_lshrrev_b32 v60, 3, v13
            v_and_b32 v61, 7, v13
            v_lshrrev_b32 v62, 1, v14
            v_and_b32 v63, 1, v14
            v_add_u32 v63, 8, v63
            v_cmp_lt_u32 vcc, 15, v13
            v_cndmask_b32 v60, v60, v62, vcc
            v_cndmask_b32 v61, v61, v63, vcc
            v_lshrrev_b32 v62, 2, v61
            v_lshlrev_b32 v62, 3, v62
            v_lshl_add_u32 v62, v60, 2, v62
            v_and_b32 v61, 3, v61
            v_add_u32 v62, v62, v61
            v_cmp_eq_u32 vcc, 20, v12
            v_cndmask_b32 v63, v62, 22, vcc
            v_cndmask_b32 v62, v62, 18, vcc
            v_lshl_add_u32 v62, v62, 4, v15
            v_lshl_add_u32 v63, v63, 4, v15
            v_accvgpr_write_b32 a{out1}, v62
            v_accvgpr_write_b32 a{out2}, v63
            """)

    def kv_reduce_and_o(self):
        g = self
        for n in range(3):
            g(f"v_accvgpr_read_b32 v{137+n}, a{208+n}\nv_accvgpr_read_b32 v{140+n}, a{211+n}\nv_accvgpr_read_b32 v{143+n}, a{214+n}")
        g.vmwait("kvp")
        self.stamp("kvdata")
        g(f"s_cmp_ge_u32 s{S_MU}, 108\ns_cbranch_scc1 L_noxrow\ns_nop 0 ; HZ_SKIP_BEGIN")
        self.argmax()
        g(f"""
        v_mul_u32_u24 v9, 20, v1
        s_mul_i32 s{S_T1}, s{S_IDX}, 1280
        buffer_load_dwordx4 v[60:63], v9, {srd(SRD_X)}, s{S_T1} offen
        buffer_load_dword v64, v9, {srd(SRD_X)}, s{S_T1} offen offset:16
        s_lshl_b32 s{S_T1}, s{S_IDX}, 3
        s_add_u32 s{S_T1}, s{S_T1}, {WS_STATS}
        v_mov_b32 v9, 0
        buffer_load_dwordx2 v[66:67], v9, {srd(SRD_WS)}, s{S_T1} offen sc1   ; HZ_SKIP_END
L_noxrow:
        """)
        def reduce():
            for base, acc in ((0, 16), (64, 92)):
                for e in range(4): g(f"v_accvgpr_read_b32 v{acc+e}, a{base+e}")
                for p in range(1, 16):
                    t = acc + 4 + 4 * (p & 1)
                    for e in range(4): g(f"v_accvgpr_read_b32 v{t+e}, a{base+4*p+e}")
                    g(f"v_pk_add_f32 {v(acc,2)}, {v(acc,2)}, {v(t,2)}\nv_pk_add_f32 {v(acc+2,2)}, {v(acc+2,2)}, {v(t+2,2)}")
        self.interleave([(x, "wo") for x in self.wog[18:]], self.capture(reduce))
        self.stamp("r_sum")
        g(f"""
        v_cvt_pk_bf16_f32 v16, v16, v17
        v_cvt_pk_bf16_f32 v17, v18, v19
        v_cvt_pk_bf16_f32 v92, v92, v93
        v_cvt_pk_bf16_f32 v93, v94, v95
        ds_write_b64 v56, v[16:17]
        ds_write_b64 v57, v[16:17]
        s_mov_b64 exec, {s2(S_MB)}
        ds_write_b64 v58, v[92:93]
        ds_write_b64 v59, v[92:93]
        s_mov_b64 exec, -1
        s_waitcnt lgkmcnt(0)
        s_barrier
        v_lshlrev_b32 v9, 4, v1
        v_add_u32 v9, {L_KVF}, v9
        """)
        self.stamp("r_bar")
        for a in range(2):
            for t in range(3):
                g(f"ds_read_b128 {v(92+12*a+4*t,4)}, v9 offset:{a*3072 + t*1024}")
        self.dump("kvf", list(range(92, 116)))
        for a, (acc, H) in enumerate(((16, 220), (32, 232))):
            g(f"s_waitcnt lgkmcnt({3 - 3*a})")
            for t in range(3):
                g(f"v_mfma_f32_32x32x16_bf16 {v(acc,16)}, {v(92+12*a+4*t,4)}, {v(H+4*t,4)}, {'0' if t == 0 else v(acc,16)}")
        self.dump("num", list(range(16, 48)))
        g("v_accvgpr_read_b32 v10, a217\nv_accvgpr_read_b32 v11, a218\nv_mov_b32 v12, 0x358637bd")
        for a, (acc, P) in enumerate(((16, 160), (32, 166))):
            g(f"v_add_f32 v{acc+10}, v{acc+10}, v12\nv_rcp_f32 v{acc+10}, v{acc+10}")
        for a, (acc, P) in enumerate(((16, 160), (32, 166))):
            for i in range(5):
                g(f"v_pk_mul_f32 {v(acc+2*i,2)}, {v(acc+2*i,2)}, {v(acc+10,2)} op_sel_hi:[1,0]")
            for i in range(5):
                g(f"v_cvt_pk_bf16_f32 v{P+i}, v{acc+2*i}, v{acc+2*i+1}")
        self.dump("o", list(range(160, 165)) + list(range(166, 171)))
        g(f"""
        v_mov_b32 v172, v164
        v_mov_b32 v173, v170
        s_nop 1
        v_permlane32_swap_b32 v172, v173
        buffer_store_dwordx4 v[160:163], v10, {srd(SRD_WS)}, s{S_OS} offen sc1
        buffer_store_dwordx2 v[172:173], v11, {srd(SRD_WS)}, s{S_OS} offen offset:2048 sc1
        buffer_store_dwordx4 v[166:169], v10, {srd(SRD_WS)}, s{S_OS} offen offset:3072 sc1
        """)
        self.stamp("o_store")
        g(f"s_cmp_lt_u32 s{S_MU}, 108\ns_cbranch_scc1 L_moea\ns_nop 0 ; HZ_SKIP_BEGIN")
        self.argmax()
        g("s_branch L_moeadone ; HZ_SKIP_END\nL_moea:\ns_waitcnt vmcnt(10) ; HZ_SKIP_BEGIN")
        self.moe_a()
        g("s_nop 0 ; HZ_SKIP_END\nL_moeadone:")
        self.stamp("o_wo8")
        g("s_waitcnt vmcnt(0)")
        self.stamp("o_drain")
        self.signal("o", f"s_add_u32 s{S_T0}, s{S_RB}, {CNT_O}", drain=False)
        self.stamp("osig")

    XR, RS, ST = 16, 176, 28
    NA = 8
    YQ = [100, 104, 108, 112, 116, 120, 124, 146, 150]
    def wo_groups(self):
        grp = []
        for j in (3, 4, 0, 1, 2):
            for n in range(5):
                gl = []
                if n == 0:
                    gl += [f"s_add_u32 s{S_T3}, s{S_WAVE}, {4*j}", f"s_mul_i32 s{S_WOL}, s{S_T3}, 5120",
                           f"s_mul_i32 s{S_T4}, s{S_T3}, 13108", f"s_lshr_b32 s{S_T4}, s{S_T4}, 16",
                           f"s_mul_i32 s{S_T4}, s{S_T4}, {120*1280}", f"s_mul_i32 s{S_T3}, s{S_T3}, {8*1280}",
                           f"s_add_u32 s{S_T3}, s{S_T3}, s{S_T4}", f"s_add_u32 s{S_WOS}, s{S_T3}, s{S_WOG}"]
                gl += [f"s_add_u32 m0, s{S_WOL}, {L_WO + n*1024}", "s_nop 0",
                       f"buffer_load_dwordx4 v{152+n}, {srd(SRD_WO)}, s{S_WOS} offen lds"]
                grp.append(gl)
        return grp

    def c_addresses(self):
        g = self
        for n in range(5):
            g(f"""
            v_add_u32 v9, {64*n}, v1
            v_mul_u32_u24 v10, 6554, v9
            v_lshrrev_b32 v10, 16, v10
            v_mul_u32_u24 v11, 10, v10
            v_sub_u32 v11, v9, v11
            v_bfe_u32 v12, v10, 3, 1
            v_bfe_u32 v13, v10, 2, 1
            v_lshl_add_u32 v12, v12, 1, v13
            v_mul_u32_u24 v12, 40, v12
            v_lshrrev_b32 v13, 4, v10
            v_lshl_add_u32 v12, v13, 2, v12
            v_and_b32 v13, 3, v10
            v_add_u32 v12, v12, v13
            v_mul_u32_u24 v12, 1280, v12
            v_lshl_add_u32 v12, v11, 4, v12
            v_accvgpr_write_b32 a{200+n}, v12
            """)
            if n < 3:
                g(f"""
                v_min_u32 v10, 15, v10
                v_mul_u32_u24 v12, 1280, v10
                v_lshl_add_u32 v12, v11, 4, v12
                v_accvgpr_write_b32 a{205+n}, v12
                v_mul_u32_u24 v12, 336, v10
                v_lshl_add_u32 v12, v11, 5, v12
                v_accvgpr_write_b32 a{208+n}, v12
                v_accvgpr_write_b32 a{211+n}, v10
                v_lshlrev_b32 v12, 5, v11
                v_accvgpr_write_b32 a{214+n}, v12
                """)

    def o_addresses(self):
        g = self
        g("""
        v_lshrrev_b32 v9, 4, v2
        v_mul_u32_u24 v9, 20480, v9
        v_and_b32 v10, 15, v2
        v_lshl_add_u32 v9, v10, 4, v9
        v_lshl_add_u32 v10, v3, 10, v9
        v_lshl_add_u32 v11, v3, 3, v9
        v_accvgpr_write_b32 a217, v10
        v_accvgpr_write_b32 a218, v11
        """)

    def residual(self):
        g = self
        XR, RS, ST = self.XR, self.RS, self.ST
        for n in range(3):
            xr, rs, st = XR + 4*n, RS + 8*n, ST + 2*n
            g(f"v_rcp_f32 v{st+1}, v{st+1}")
            for d in range(4):
                g(f"""
                v_lshlrev_b32 v10, 16, v{xr+d}
                v_and_b32 v11, 0xffff0000, v{xr+d}
                v_sub_f32 v12, v10, v{st}
                v_sub_f32 v13, v11, v{st}
                v_cvt_pk_bf16_f32 v12, v12, v13
                v_lshlrev_b32 v13, 16, v12
                v_and_b32 v12, 0xffff0000, v12
                v_mul_f32 v13, v13, v{st+1}
                v_mul_f32 v12, v12, v{st+1}
                v_cvt_pk_bf16_f32 v12, v13, v12
                v_lshlrev_b32 v13, 16, v12
                v_and_b32 v12, 0xffff0000, v12
                v_add_f32 v{rs+2*d}, v13, v10
                v_add_f32 v{rs+2*d+1}, v12, v11
                """)

    def phase_c(self):
        g = self
        XR, RS, ST = self.XR, self.RS, self.ST
        self.stamp("argmax")
        g(f"s_cmp_ge_u32 s{S_MU}, 108\ns_cbranch_scc1 L_wodone")
        g("s_nop 0 ; HZ_SKIP_BEGIN")
        self.moe_b()
        g(f"""
        s_movk_i32 s{S_T1}, 0xff
        s_lshr_b32 s{S_T2}, s{S_TAG}, 8
        s_lshr_b32 s{S_T3}, s{S_TAG}, 16
        s_lshr_b32 s{S_T4}, s{S_TAG}, 24
        v_mov_b32 v20, s{S_TAG}
        v_mov_b32 v21, s{S_T2}
        v_mov_b32 v22, s{S_T3}
        v_mov_b32 v23, s{S_T4}
        v_bfi_b32 v16, s{S_T1}, v20, v16
        v_bfi_b32 v17, s{S_T1}, v21, v17
        v_bfi_b32 v18, s{S_T1}, v22, v18
        v_bfi_b32 v19, s{S_T1}, v23, v19
        s_mul_i32 s{S_T0}, s{S_MU}, 2560
        s_add_u32 s{S_T0}, s{S_T0}, {WS_Y}
        v_lshlrev_b32 v9, 4, v0
        v_cmp_gt_u32 vcc, 160, v0
        s_and_saveexec_b64 {s2(S_MA)}, vcc
        s_cbranch_execz L_noy
        buffer_store_dwordx4 v[16:19], v9, {srd(SRD_WS)}, s{S_T0} offen sc1
L_noy:
        s_mov_b64 exec, -1
        s_nop 0 ; HZ_SKIP_END
L_wodone:
        """)
        self.stamp("moedone"); self.mark("moedone")
        g(f"""
        v_bfe_u32 v10, v1, 5, 1
        v_lshlrev_b32 v10, 3, v10
        v_bfe_u32 v11, v1, 4, 1
        v_lshl_add_u32 v10, v11, 2, v10
        v_bfe_u32 v11, v1, 2, 2
        v_add_u32 v10, v10, v11
        v_mul_u32_u24 v10, 160, v10
        v_and_b32 v11, 3, v1
        v_lshl_add_u32 v10, v11, 3, v10
        v_add_u32 v236, {L_WO}, v10
        v_add_u32 v237, {L_WO + 10*5120}, v10
        """)
        NA = self.NA
        def wo_reads(ks):
            base = 236 + ks // 10
            out = []
            for ct in range(5):
                for rd in range(2):
                    dst = ac(20*ks + 4*ct + 2*rd, 2) if ks < NA else v(40 + 20*(ks % 3) + 4*ct + 2*rd, 2)
                    out.append(f"ds_read_b64_tr_b16 {dst}, v{base} offset:{(ks % 10)*5120 + rd*2560 + ct*32}")
            return out
        self.poll_issue(SRD_WS, f"s_lshr_b32 s{S_T0}, s{S_RB64}, 1\ns_add_u32 s{S_T0}, s{S_T0}, {CNT_O}\ns_lshl_b32 s{S_T0}, s{S_T0}, 7\nv_mov_b32 v238, s{S_T0}")
        for ks in range(NA + 2):
            for x in wo_reads(ks): g(x)
            if ks < NA + 1: g("s_waitcnt lgkmcnt(5)")
        g(f"""
        s_lshl_b32 s{S_T0}, s{S_RB64}, 6
        s_sub_u32 s{S_OWN}, s{S_IDX}, s{S_T0}
        s_cmp_ge_u32 s{S_OWN}, 64
        s_cbranch_scc1 L_noown0
        v_min_u32 v10, 19, v1                  ; HZ_SKIP_BEGIN
        v_lshlrev_b32 v10, 3, v10
        s_mul_i32 s{S_T0}, s{S_IDX}, 1280
        s_mul_i32 s{S_T1}, s{S_CB}, 160
        s_add_u32 s{S_T0}, s{S_T0}, s{S_T1}
        buffer_load_dwordx2 v[200:201], v10, {srd(SRD_X)}, s{S_T0} offen
        s_lshl_b32 s{S_T0}, s{S_IDX}, 3
        s_add_u32 s{S_T0}, s{S_T0}, {WS_STATS}
        v_mov_b32 v10, 0
        buffer_load_dwordx2 v[202:203], v10, {srd(SRD_WS)}, s{S_T0} offen sc1   ; HZ_SKIP_END
L_noown0:
        """)
        self.poll_finish("o", SRD_WS, 16)
        self.stamp("oseen"); self.dbg_span(8, False); self.mark("oseen")
        g(f"""
        s_mul_i32 s{S_T0}, s{S_RB64}, 81920
        s_mul_i32 s{S_T1}, s{S_WAVE}, 20480
        s_add_u32 s{S_T0}, s{S_T0}, s{S_T1}
        s_add_u32 s{S_T0}, s{S_T0}, {WS_O}
        v_lshlrev_b32 v9, 4, v1
        """)
        self.vm = []
        regs_o = list(range(100, 128, 4)) + list(range(146, 174, 4)) + [220, 224, 228, 232, 240, 244]
        assert len(regs_o) == 20, len(regs_o)
        def oload(ks):
            g(f"buffer_load_dwordx4 {v(regs_o[ks],4)}, v9, {srd(SRD_WS)}, s{S_T0} offen sc1\ns_add_u32 s{S_T0}, s{S_T0}, 1024")
            g.vmi(f"o{ks}")
        AHEAD = 10
        for ks in range(AHEAD): oload(ks)
        self.stamp("c_issued")
        for ks in range(20):
            if ks == 0: g("s_waitcnt lgkmcnt(0)")
            elif ks >= NA: g("s_waitcnt lgkmcnt(5)" if ks < 18 else ("s_waitcnt lgkmcnt(10)" if ks < 19 else "s_waitcnt lgkmcnt(0)"))
            if ks < 15: g.vmwait(f"o{ks}")
            if ks == 15:
                g("s_waitcnt vmcnt(0)")
                g(f"s_cmp_ge_u32 s{S_OWN}, 64\ns_cbranch_scc1 L_noown1\ns_nop 0 ; HZ_SKIP_BEGIN")
                g(f"""
                v_mul_u32_u24 v10, 3277, v1
                v_lshrrev_b32 v10, 16, v10
                v_mul_u32_u24 v11, 20, v10
                v_sub_u32 v11, v1, v11
                v_mul_u32_u24 v214, 2560, v10
                v_lshl_add_u32 v214, v11, 4, v214
                s_mul_i32 s{S_T0}, s{S_CB}, 320
                s_mul_i32 s{S_T1}, s{S_WAVE}, {27*2560}
                s_add_u32 s{S_T0}, s{S_T0}, s{S_T1}
                s_add_u32 s{S_YA}, s{S_T0}, {WS_Y}
                s_mov_b32 s{S_T0}, s{S_YA}
                s_mov_b32 exec_hi, 0x0fffffff
                """)
                for j in range(9):
                    g(f"buffer_load_dwordx4 {v(self.YQ[j],4)}, v214, {srd(SRD_WS)}, s{S_T0} offen sc1\ns_add_u32 s{S_T0}, s{S_T0}, {3*2560}")
                g(f"""
                s_mov_b64 exec, -1
                v_mul_u32_u24 v12, 320, v10
                v_lshl_add_u32 v12, v11, 4, v12
                s_mul_i32 s{S_T1}, s{S_WAVE}, 960
                s_add_u32 s{S_T1}, s{S_T1}, {L_YR}
                v_add_u32 v204, s{S_T1}, v12
                s_nop 0 ; HZ_SKIP_END
L_noown1:
                """)
            if ks in (0, 5, 10, 15): self.stamp(f"c_o{ks}")
            rd = wo_reads(ks + 2) if NA <= ks < 18 else []
            for ct in range(5):
                cin = "0" if ks == 0 else v(16+4*ct, 4)
                A = ac(20*ks + 4*ct, 4) if ks < NA else v(40 + 20*(ks % 3) + 4*ct, 4)
                g(f"v_mfma_f32_16x16x32_bf16 {v(16+4*ct,4)}, {A}, {v(regs_o[ks],4)}, {cin}")
                for x in rd[2*ct:2*ct+2]: g(x)
            if ks + AHEAD < 20: oload(ks + AHEAD)
        self.stamp("cmfma"); self.mark("cmfma")
        Y = self.YQ[0]
        g(f"""
        s_cmp_ge_u32 s{S_OWN}, 64
        s_cbranch_scc1 L_noown2
        s_mov_b32 s74, 0                       ; HZ_SKIP_BEGIN
        s_mov_b32 s{S_T2}, 0x0c0c0400
        s_mov_b32 s{S_T3}, 0x04000c0c
        v_mov_b32 v215, s{S_T2}
        v_mov_b32 v216, s{S_T3}
        s_sub_u32 s{S_T4}, 0, s{S_TAG}
        s_mov_b32 exec_hi, 0x0fffffff
L_ycheck:
        s_waitcnt vmcnt(0)
        v_mov_b32 v217, 0
        """)
        for j in range(9):
            q = self.YQ[j]
            g(f"""
            v_perm_b32 v218, v{q+1}, v{q}, v215
            v_perm_b32 v219, v{q+3}, v{q+2}, v216
            v_add3_u32 v218, v218, v219, s{S_T4}
            v_or_b32 v217, v217, v218
            """)
        g(f"""
        v_cmp_ne_u32 vcc, 0, v217
        s_cbranch_vccz L_yok
        s_add_u32 s74, s74, 1
        s_cmp_gt_u32 s74, {SPIN_LIMIT}
        s_cbranch_scc1 L_yok
        s_mov_b32 s{S_T0}, s{S_YA}
        """)
        for j in range(9):
            g(f"buffer_load_dwordx4 {v(self.YQ[j],4)}, v214, {srd(SRD_WS)}, s{S_T0} offen sc1\ns_add_u32 s{S_T0}, s{S_T0}, {3*2560}")
        g("""
        s_branch L_ycheck
L_yok:
        s_mov_b64 exec, -1
        """)
        for j in range(1, 9):
            q = self.YQ[j]
            g(f"v_pk_add_f32 {v(Y,2)}, {v(Y,2)}, {v(q,2)}\nv_pk_add_f32 {v(Y+2,2)}, {v(Y+2,2)}, {v(q+2,2)}")
        g(f"""
        s_mov_b32 exec_hi, 0x0fffffff
        ds_write_b128 v204, {v(Y,4)}
        s_mov_b64 exec, -1
        v_mov_b32 v205, s{S_RSEL}
        """)
        g.rnd_bf16(205, 205)
        g(f"""
        v_mul_f32 v205, 0xbfb8aa3b, v205
        v_exp_f32 v205, v205
        v_rcp_f32 v203, v203
        v_add_f32 v205, 1.0, v205
        v_rcp_f32 v205, v205
        v_lshlrev_b32 v206, 16, v200
        v_and_b32 v207, 0xffff0000, v200
        v_lshlrev_b32 v208, 16, v201
        v_and_b32 v209, 0xffff0000, v201
        """)
        g.rnd_bf16(205, 205)
        for e in range(4):
            g(f"v_sub_f32 v{206+e}, v{206+e}, v202")
            g.rnd_bf16(206+e, 206+e)
            g(f"v_mul_f32 v{206+e}, v{206+e}, v203")
            g.rnd_bf16(206+e, 206+e)
        g(f"""
        v_min_u32 v10, 19, v1
        v_lshlrev_b32 v10, 4, v10
        v_add_u32 v10, {L_YR}, v10
        s_waitcnt lgkmcnt(0)
        s_barrier
        """)
        Y = 40
        for j in range(12):
            g(f"ds_read_b128 {v(Y+4*j,4)}, v10 offset:{320*j}")
        g("s_waitcnt lgkmcnt(0)")
        for j in range(1, 12):
            g(f"v_pk_add_f32 {v(Y,2)}, {v(Y,2)}, {v(Y+4*j,2)}\nv_pk_add_f32 {v(Y+2,2)}, {v(Y+2,2)}, {v(Y+4*j+2,2)}")
        for e in range(4):
            g.rnd_bf16(Y+e, Y+e)
            g(f"v_mul_f32 v{Y+e}, v{Y+e}, v205")
            g.rnd_bf16(Y+e, Y+e)
            g(f"v_add_f32 v{Y+e}, v{Y+e}, v{206+e}")
            g.rnd_bf16(Y+e, Y+e)
            g(f"v_sub_f32 v{210+e}, v{Y+e}, v{206+e}")
        g("s_nop 0 ; HZ_SKIP_END\nL_noown2:")
        g(f"""
        s_mul_i32 s{S_T0}, s{S_WAVE}, 5376
        s_add_u32 s{S_T0}, s{S_T0}, {L_OST}
        v_and_b32 v9, 15, v1
        v_mul_u32_u24 v9, 336, v9
        v_lshrrev_b32 v10, 4, v1
        v_lshl_add_u32 v9, v10, 4, v9
        v_add_u32 v9, s{S_T0}, v9
        """)
        for ct in range(5): g(f"ds_write_b128 v9, {v(16+4*ct,4)} offset:{64*ct}")
        for n in range(3): g(f"v_add_u32 v{10+n}, s{S_T0}, v{137+n}")
        g(f"""
        s_waitcnt lgkmcnt(0)
        s_sub_u32 s{S_T4}, s{S_IDX}, s{S_ROW0}
        s_cmp_ge_u32 s{S_T4}, 16
        s_cbranch_scc1 L_norow
        s_mul_i32 s{S_T4}, s{S_T4}, 336            ; HZ_SKIP_BEGIN
        s_add_u32 s{S_T4}, s{S_T4}, s{S_T0}
        v_lshl_add_u32 v9, v1, 4, s{S_T4}
        s_mov_b32 exec_lo, 0xfffff
        s_mov_b32 exec_hi, 0
        ds_read_b128 v[40:43], v9
        s_waitcnt lgkmcnt(0)
        v_pk_add_f32 v[40:41], v[40:41], v[210:211]
        v_pk_add_f32 v[42:43], v[42:43], v[212:213]
        ds_write_b128 v9, v[40:43]
        s_waitcnt lgkmcnt(0)
        s_mov_b64 exec, -1                         ; HZ_SKIP_END
L_norow:
        """)
        for n in range(3):
            g(f"ds_read_b128 {v(40+8*n,4)}, v{10+n}\nds_read_b128 {v(44+8*n,4)}, v{10+n} offset:16")
        for n in range(3):
            rs = RS + 8*n
            g(f"s_waitcnt lgkmcnt({4 - 2*n})")
            for e in range(0, 8, 2):
                g(f"v_pk_add_f32 {v(40+8*n+e,2)}, {v(40+8*n+e,2)}, {v(rs+e,2)}")
            for e in range(4):
                g(f"v_cvt_pk_bf16_f32 v{64+4*n+e}, v{40+8*n+2*e}, v{40+8*n+2*e+1}")
            if n == 2: g("s_mov_b32 exec_hi, 0")
            g(f"buffer_store_dwordx4 {v(64+4*n,4)}, v{134+n}, {srd(SRD_OUT)}, s{S_XO} offen")
        g("s_mov_b64 exec, -1")
        self.stamp("end"); self.stamp("clk1", True)

    def rest(self):
        self.publish_kv()
        self.dbg_span(4, False); self.mark("kvsig")
        self.pass2()
        self.kv_wait()
        self.dbg_span(9, False); self.mark("kvseen")
        self.q_epilogue()
        self.dbg_span(5, False)
        self.kv_reduce_and_o()
        self.dbg_span(6, False); self.mark("osig")
        self.phase_c()
```

```python
import sys, re
from asmlib import Asm, kernel_header
import hazard

NAME = "parallel_sum__linear_kernel_hedgehog__moe_arch_mod__prompt_kernel"

WS_CNT   = 0
WS_KVP   = 0x10000
KVP_SZ   = 6784
WS_O     = 0x200000
WS_STATS = 0x500000
WS_RMAX  = 0x508000
WS_Y     = 0x510000
WS_DBG   = 0x800000
WS_TS    = 0x700000
WS_SIZE  = 268435456

SLOT     = 28672
L_WQ     = 0
L_T      = 57344
L_WO     = 0
L_G      = 102400
L_U      = L_G + 20480 + 128
L_OST    = L_G
L_YR     = L_OST + 4 * 5376
L_MISC   = L_U + 20480
L_WPHI   = L_MISC
L_CS     = L_WPHI + 4 * 1664
L_P0     = L_CS + 1024
L_KVF    = L_P0 + 64
L_XS     = L_KVF + 6144
L_HP     = L_XS + 5120
L_END    = L_HP + 640
LDS_SIZE = 163840
assert L_END <= LDS_SIZE, L_END
assert 5 * SLOT <= L_MISC

S_WAVE = 3
SRD_X, SRD_W, SRD_PHI, SRD_WO, SRD_WR, SRD_G, SRD_U, SRD_D, SRD_OUT, SRD_DBG, SRD_WS = range(4, 48, 4)
S_XCD, S_SLOT, S_RB, S_HP = 48, 49, 50, 51
S_XB, S_WB, S_LX, S_LW = 52, 53, 54, 55
S_WM = 56
S_T0, S_T1, S_T2, S_T3, S_T4, S_T5 = 62, 63, 64, 65, 66, 67
S_MA, S_MB = 68, 70
S_C0, S_CC, S_CX, S_CW = 76, 77, 78, 79
S_WQL, S_WQG, S_P0ROW, S_IDX = 80, 81, 82, 83
S_KVS = 75
S_TS = 86

def srd(n): return f"s[{n}:{n+3}]"
def v(b, n=1): return f"v{b}" if n == 1 else f"v[{b}:{b+n-1}]"
def ac(b, n=1): return f"a{b}" if n == 1 else f"a[{b}:{b+n-1}]"
def s2(b): return f"s[{b}:{b+1}]"


class Gen:
    def __init__(self, stop=None, dumps=(), stamps=False, touch=True, exp=()):
        self.touch = touch
        self.dist = 2 if "d2" in exp else 3
        self.exp = set(exp)
        self.a = Asm()
        self.vm = []
        self.stop = stop
        self.dumps = set(dumps)
        self.stamps = stamps
        self.nstamp = 0
        self.pending = []
        self.dump_off = 0
        self.dump_index = {}

    def __call__(self, t):
        self.a(t)
        if self.stamps and self.pending and not getattr(self, "capturing", False) and not self.in_skip(t):
            last = t.strip().split("\n")[-1].strip()
            if last.startswith("s_waitcnt") and "lgkmcnt(0)" in last: self.flush_stamps()

    def in_skip(self, t):
        for l in t.split("\n"):
            if "HZ_SKIP_BEGIN" in l: self.skipdepth = 1
            if "HZ_SKIP_END" in l: self.skipdepth = 0
        return getattr(self, "skipdepth", 0) > 0

    def vmi(self, tag, n=1):
        self.vm += [tag] * n
    def capture(self, fn):
        old, self.a.lines = self.a.lines, []
        self.capturing = True
        fn()
        self.capturing = False
        out, self.a.lines = self.a.lines, old
        return [l.strip() for l in out if l.strip()]

    def atoms(self, lines):
        out, cur, hold = [], [], None
        for l in lines:
            cur.append(l)
            code = l.split(";")[0].strip()
            if hold is None:
                if re.match(r"s_(mov|brev|and_saveexec)\w* (exec|exec_lo|exec_hi)\b", code) or code.startswith("s_and_saveexec"):
                    if not code.endswith("exec, -1"): hold = "exec"
                elif code.startswith("s_cmp"): hold = "label"
            else:
                if hold == "exec" and code == "s_mov_b64 exec, -1": hold = None
                elif hold == "label" and (code.endswith(":") or code.startswith("s_cselect")): hold = None
            if hold is None and not l.endswith(";+"):
                out.append(cur); cur = []
        if cur: out.append(cur)
        return out

    def interleave(self, groups, filler):
        at = self.atoms(filler)
        total = sum(len(a) for a in at)
        done = 0
        for i, (lines, tag) in enumerate(groups):
            for x in lines: self(x)
            self.vmi(tag)
            target = total * (i + 1) // len(groups)
            while at and done < target:
                a = at.pop(0); done += len(a)
                for x in a: self.emit_resolved(x)
        for a in at:
            for x in a: self.emit_resolved(x)

    def emit_resolved(self, x):
        if x.startswith("@VMWAIT "): self.vmwait(x.split()[1])
        elif x.startswith("@STAMP "): self.stamp(x.split()[1])
        else: self(x)

    def vmwait(self, tag):
        if getattr(self, "capturing", False):
            self(f"@VMWAIT {tag}"); return
        last = max(i for i, t in enumerate(self.vm) if t == tag)
        n = len(self.vm) - 1 - last
        assert n <= 63, (tag, n)
        self(f"s_waitcnt vmcnt({n})")
    def vmwait_all(self):
        self("s_waitcnt vmcnt(0)")

    def stamp(self, name, clk=False):
        if not self.stamps: return
        if "all" not in self.stamps and name not in self.stamps: return
        if getattr(self, "capturing", False):
            self(f"@STAMP {name}"); return
        if "cyc" in self.exp: clk = True
        self.stamp_names = getattr(self, "stamp_names", [])
        if name in self.stamp_names: return
        used = {i for i, _ in self.pending}
        free = [i for i in range(8) if i not in used]
        if not free:
            Asm.__call__(self.a, "s_waitcnt lgkmcnt(0)"); self.flush_stamps()
            free = list(range(8))
        i = free[0]
        lane = len(self.stamp_names); assert lane < 63, name
        self.stamp_names.append(name)
        self.pending.append((i, lane))
        Asm.__call__(self.a, f"{'s_memtime' if clk else 's_memrealtime'} {s2(S_TS + 2*i)} ; stamp {name}")

    def flush_stamps(self):
        for i, lane in self.pending:
            Asm.__call__(self.a, f"v_writelane_b32 v255, s{S_TS + 2*i}, {lane}")
        self.pending = []

    def dump(self, name, regs, tmp=250):
        if name not in self.dumps: return
        g = self
        n = len(regs)
        base = WS_DBG + self.dump_off
        self.dump_index[name] = (self.dump_off, n)
        self.dump_off += 256 * 4 * n * 256
        g("s_waitcnt vmcnt(0) lgkmcnt(0)\ns_nop 15\ns_nop 15")
        g(f"s_lshl_b32 s74, s2, 2\ns_add_u32 s74, s74, s{S_WAVE}\ns_mul_i32 s74, s74, {n*256}\ns_add_u32 s74, s74, {base}")
        g(f"v_lshlrev_b32 v{tmp}, 2, v1")
        for i, r in enumerate(regs):
            if isinstance(r, str) and r.startswith("a"):
                g(f"v_accvgpr_read_b32 v{tmp+1}, {r}\ns_nop 1")
                src = f"v{tmp+1}"
            else:
                src = f"v{r}"
            g(f"buffer_store_dword {src}, v{tmp}, {srd(SRD_WS)}, s74 offen")
            g(f"s_add_u32 s74, s74, 256")
            g("s_waitcnt vmcnt(0)")

    def rnd_bf16(self, dst, src):
        self(f"v_cvt_pk_bf16_f32 v{dst}, v{src}, v{src}\nv_lshlrev_b32 v{dst}, 16, v{dst}")

    def prologue(self):
        g = self
        ptrs = [(SRD_X, 0), (SRD_W, 8), (SRD_WR, 40), (SRD_PHI, 16), (SRD_WS, 88), (SRD_DBG, 80),
                (SRD_WO, 24), (SRD_G, 48), (SRD_U, 56), (SRD_D, 64), (SRD_OUT, 72)]
        sizes = {SRD_X: 2621440, SRD_W: 2457600, SRD_WR: 1280, SRD_PHI: 25600, SRD_WS: WS_SIZE, SRD_DBG: 256,
                 SRD_WO: 819200, SRD_G: 2211840, SRD_U: 2211840, SRD_D: 2211840, SRD_OUT: 2621440}
        self.sizes = sizes
        if "span" in self.exp or "skew" in self.exp: g("s_memrealtime s[98:99]")
        self.mark("start")
        g("s_getpc_b64 s[72:73]")
        g("L_pc:")
        for r, off in ptrs[:4]:
            g(f"s_load_dwordx2 {s2(r)}, s[0:1], {off}")
        g(f"""
        s_cmp_ge_u32 s2, 256
        s_cbranch_scc1 L_exit
        v_and_b32 v1, 63, v0
        v_lshrrev_b32 v9, 6, v0
        s_lshr_b32 s{S_SLOT}, s2, 3
        v_readfirstlane_b32 s{S_WAVE}, v9
        s_and_b32 s{S_XCD}, s2, 7
        """)
        g(f"""
        s_lshl_b32 s{S_T0}, s{S_SLOT}, 2
        s_add_u32 s{S_T0}, s{S_T0}, s{S_WAVE}
        s_lshl_b32 s{S_T0}, s{S_T0}, 9
        v_lshl_add_u32 v11, v1, 7, s{S_T0}
        v_cmp_gt_u32 vcc, L_code_end - L_pc, v11
        v_cmp_gt_u32 {s2(S_MA)}, 4, v1
        s_and_b64 vcc, vcc, {s2(S_MA)}
        s_and_saveexec_b64 {s2(S_MA)}, vcc
        s_cbranch_execz L_nopf
        global_load_dword v159, v11, s[72:73]       ; HZ_SKIP_BEGIN HZ_SKIP_END
L_nopf:
        s_mov_b64 exec, -1
        """)
        for r, off in ptrs[4:]:
            g(f"s_load_dwordx2 {s2(r)}, s[0:1], {off}")
        g(f"""
        s_and_b32 s{S_T0}, s{S_XCD}, 1
        s_lshl_b32 s{S_T0}, s{S_T0}, 3
        s_and_b32 s{S_T1}, s{S_SLOT}, 7
        s_add_u32 s{S_RB}, s{S_T0}, s{S_T1}
        s_lshr_b32 s{S_T0}, s{S_XCD}, 1
        s_lshl_b32 s{S_T0}, s{S_T0}, 2
        s_lshr_b32 s{S_T2}, s{S_SLOT}, 3
        s_add_u32 s{S_HP}, s{S_T0}, s{S_T2}
        s_lshl_b32 s{S_T2}, s{S_T2}, 1
        s_add_u32 s{S_T1}, s{S_T1}, s{S_T2}
        s_and_b32 s{S_T1}, s{S_T1}, 7
        s_mul_i32 s{S_T1}, s{S_T1}, 10
        s_lshr_b32 s{S_C0}, s{S_T1}, 3
        v_lshrrev_b32 v9, 3, v1
        v_mul_u32_u24 v9, 1280, v9
        v_and_b32 v11, 7, v1
        v_lshrrev_b32 v15, 4, v1
        v_xor_b32 v11, v11, v15
        v_lshl_add_u32 v4, v11, 4, v9
        v_xor_b32 v11, 4, v11
        v_lshl_add_u32 v5, v11, 4, v9
        v_add_u32 v5, {10240 - 1024}, v5
        v_add_u32 v157, {20480 - 2048}, v4
        v_add_u32 v158, {20480 - 2048}, v5
        s_lshl_b32 s{S_T0}, s{S_RB}, 7
        s_lshl_b32 s{S_T1}, s{S_WAVE}, 5
        s_add_u32 s{S_T1}, s{S_T1}, s{S_T0}
        s_mul_i32 s{S_XB}, s{S_T1}, 1280
        s_mul_i32 s{S_WB}, s{S_WAVE}, {16*3840}
        s_mul_i32 s{S_T1}, s{S_HP}, 80
        s_add_u32 s{S_WB}, s{S_WB}, s{S_T1}
        s_lshl_b32 s{S_LX}, s{S_WAVE}, 12
        s_mul_i32 s{S_LW}, s{S_WAVE}, 3072
        s_add_u32 s{S_LW}, s{S_LW}, 16384
        s_add_u32 s{S_CC}, s{S_XB}, 1280
        s_lshl_b32 s{S_CX}, s{S_C0}, 7
        s_add_u32 s{S_CX}, s{S_CX}, s{S_XB}
        s_mul_i32 s{S_CW}, s{S_C0}, {64*3840}
        s_add_u32 s{S_CW}, s{S_CW}, s{S_WB}
        """)
        for r in (SRD_X, SRD_W):
            g(f"s_mov_b32 s{r+2}, {sizes[r]}\ns_mov_b32 s{r+3}, 0x20000")
        for n in range(3):
            g(f"""
            v_add_u32 v9, {64*n}, v1
            v_mul_u32_u24 v11, 43691, v9
            v_lshrrev_b32 v11, 19, v11
            v_mul_u32_u24 v12, 12, v11
            v_sub_u32 v12, v9, v12
            v_cmp_gt_u32 {s2(S_WM+2*n)}, 10, v12
            v_cmp_gt_u32 vcc, 5, v12
            v_mul_u32_u24 v11, 3840, v11
            v_lshl_add_u32 v11, v12, 4, v11
            v_mov_b32 v13, 2480
            v_add_u32 v14, 1280, v11
            v_add_u32 v11, v13, v11
            v_cndmask_b32 v{6+n}, v11, v14, vcc
            """)
            if n: g(f"v_subrev_u32 v{6+n}, {1024*n}, v{6+n}")
        g("s_waitcnt lgkmcnt(0)")
        self.stamp("start"); self.stamp("clk0", True)
        for r in (SRD_WR, SRD_PHI):
            g(f"s_mov_b32 s{r+2}, {sizes[r]}\ns_mov_b32 s{r+3}, 0x20000")
        P = 160
        nt = " nt" if "nt" in self.exp else ""
        self.nt = nt
        g(f"""
        v_mul_u32_u24 v10, 20, v1
        s_lshl_b32 s{S_T0}, s{S_RB}, 7
        s_lshl_b32 s{S_T1}, s{S_HP}, 3
        s_add_u32 s{S_T0}, s{S_T0}, s{S_T1}
        s_lshl_b32 s{S_T1}, s{S_WAVE}, 1
        s_add_u32 s{S_P0ROW}, s{S_T0}, s{S_T1}
        s_mul_i32 s{S_T4}, s{S_P0ROW}, 1280
        buffer_load_dwordx4 {v(P,4)}, v10, {srd(SRD_X)}, s{S_T4} offen
        buffer_load_dword v{P+4}, v10, {srd(SRD_X)}, s{S_T4} offen offset:16
        buffer_load_dwordx4 {v(P+6,4)}, v10, {srd(SRD_X)}, s{S_T4} offen offset:1280
        buffer_load_dword v{P+10}, v10, {srd(SRD_X)}, s{S_T4} offen offset:1296
        buffer_load_dwordx4 {v(P+12,4)}, v10, {srd(SRD_WR)}, 0 offen
        buffer_load_dword v{P+16}, v10, {srd(SRD_WR)}, 0 offen offset:16
        v_lshlrev_b32 v11, 4, v1
        s_mul_i32 s{S_T0}, s{S_HP}, 1600
        s_mul_i32 s{S_T1}, s{S_WAVE}, 1664
        s_add_u32 m0, s{S_T1}, {L_WPHI}
        s_add_u32 s{S_T4}, s{S_T1}, {L_WPHI + 1024}
        buffer_load_dwordx4 v11, {srd(SRD_PHI)}, s{S_T0} offen lds
        s_mov_b32 m0, s{S_T4}
        s_mov_b32 exec_lo, -1
        s_mov_b32 exec_hi, 15
        s_add_u32 s{S_T0}, s{S_T0}, 1024
        buffer_load_dwordx4 v11, {srd(SRD_PHI)}, s{S_T0} offen lds
        s_mov_b64 exec, -1
        """)
        g.vmi("p0", 6); g.vmi("phi", 2)
        tagged = lambda i: [(x, f"c{i}") for x in self.p1_refill(i)]
        for lines, tag in tagged(0):
            for x in lines: g(x)
            g.vmi(tag)
        self.stamp("c0iss")
        s1, s2_ = self.capture(self.setup1), self.capture(self.setup2)
        p0, pf = self.capture(self.phase0), self.capture(self.phi_frags)
        cut = 260
        rest2 = s2_
        for x in s1: self.emit_resolved(x)
        at = self.atoms(s2_); n = 0; head = [];
        while at and n < cut - len(s1):
            a_ = at.pop(0); n += len(a_); head += a_
        for x in head: self.emit_resolved(x)
        tail = [x for a_ in at for x in a_]
        if self.dist == 3:
            self.interleave(tagged(1), tail + p0)
            self.interleave(tagged(2), pf)
        else:
            self.interleave(tagged(1), tail + p0 + pf)
        self.stamp("filled")

    def setup1(self):
        g = self
        sizes = self.sizes
        for r in (SRD_WS, SRD_DBG):
            g(f"s_mov_b32 s{r+2}, {sizes[r]}\ns_mov_b32 s{r+3}, 0x20000")
        g(f"""
        s_lshl_b32 s{S_T0}, s{S_WAVE}, 8
        s_add_u32 s{S_T0}, s{S_T0}, s2
        s_cmp_lg_u32 s{S_T0}, 256
        s_cbranch_scc1 L_noinit
        v_lshlrev_b32 v11, 7, v1       ; HZ_SKIP_BEGIN
        v_mov_b32 v12, 0
        buffer_store_dword v12, v11, {srd(SRD_WS)}, 0 offen sc1   ; HZ_SKIP_END
L_noinit:
        """)
        for r in (SRD_WO, SRD_G, SRD_U, SRD_D, SRD_OUT):
            g(f"s_mov_b32 s{r+2}, {sizes[r]}\ns_mov_b32 s{r+3}, 0x20000")
        g(f"""
        v_and_b32 v2, 31, v1
        v_lshrrev_b32 v3, 5, v1
        v_mov_b32 v12, 0x3f80
        v_mov_b32 v13, 0
        v_mov_b32 v14, 0x3f80
        v_mov_b32 v15, 0
        v_lshrrev_b32 v9, 6, v0
        v_mul_u32_u24 v9, {SLOT}, v9
        v_mul_u32_u24 v11, 192, v1
        v_add_u32 v9, v9, v11
        ds_write_b128 v9, v[12:15] offset:{16384 + 160}
        v_add_u32 v11, {4*SLOT}, v11
        ds_write_b128 v11, v[12:15] offset:{16384 + 160}
        v_mov_b32 v16, 0
        v_mov_b32 v17, 0
        v_mov_b32 v18, 0
        v_mov_b32 v19, 0
        v_lshlrev_b32 v20, 4, v0
        v_add_u32 v20, {L_KVF}, v20
        ds_write_b128 v20, v[16:19]
        v_lshlrev_b32 v21, 3, v0
        v_add_u32 v21, {L_KVF + 4096}, v21
        ds_write_b64 v21, v[16:17]
        v_mov_b32 v84, 0x3f803f80
        v_mov_b32 v85, 0x3f803f80
        """)
        g(f"""
        v_lshrrev_b32 v9, 1, v2
        v_and_b32 v9, 7, v9
        v_xor_b32 v9, v9, v3
        v_lshlrev_b32 v9, 4, v9
        v_lshl_add_u32 v9, v2, 7, v9
        v_add_u32 v128, s{S_LX}, v9
        v_xor_b32 v129, 32, v128
        v_xor_b32 v130, 64, v128
        v_xor_b32 v131, 96, v128
        v_add_u32 v132, {3*SLOT}, v128
        v_add_u32 v133, {3*SLOT}, v129
        v_add_u32 v134, {3*SLOT}, v130
        v_add_u32 v135, {3*SLOT}, v131
        v_bfe_u32 v9, v1, 2, 2
        v_lshl_add_u32 v9, v3, 3, v9
        v_mul_u32_u24 v9, 192, v9
        v_bfe_u32 v11, v1, 4, 1
        v_and_b32 v12, 3, v1
        v_lshl_add_u32 v11, v11, 2, v12
        v_lshl_add_u32 v9, v11, 3, v9
        v_add_u32 v136, 16384, v9
        v_add_u32 v137, {16384 + 2*SLOT}, v9
        v_add_u32 v138, {16384 + 4*SLOT}, v9
        s_lshl_b32 s{S_T0}, s{S_WAVE}, 6
        v_add_u32 v72, s{S_T0}, v136
        v_add_u32 v73, s{S_T0}, v137
        v_add_u32 v74, s{S_T0}, v138
        """)

    def setup2(self):
        g = self
        self.moe_roles()
        self.kv_addresses()
        self.c_addresses()
        self.o_addresses()
        self.wq_setup()
        g(f"""
        s_lshl_b32 s{S_T0}, s{S_WAVE}, 5
        v_add_u32 v9, s{S_T0}, v2
        v_mul_u32_u24 v9, 336, v9
        v_add_u32 v9, {L_T}, v9
        v_lshl_add_u32 v9, v3, 3, v9
        v_accvgpr_write_b32 a192, v9
        s_lshr_b32 s{S_T0}, s{S_WAVE}, 1
        s_and_b32 s{S_T4}, s{S_WAVE}, 1
        v_bfe_u32 v9, v1, 2, 2
        v_lshlrev_b32 v9, 1, v9
        v_add_u32 v9, v9, v3
        v_lshlrev_b32 v9, 1, v9
        v_mul_u32_u24 v9, 336, v9
        v_add_u32 v9, {L_T}, v9
        v_bfe_u32 v11, v1, 4, 1
        v_and_b32 v12, 3, v1
        v_lshl_add_u32 v11, v11, 2, v12
        s_mul_i32 s{S_T2}, s{S_T0}, 12
        s_lshl_b32 s{S_T3}, s{S_T4}, 3
        s_add_u32 s{S_T2}, s{S_T2}, s{S_T3}
        v_add_u32 v12, s{S_T2}, v11
        v_lshl_add_u32 v13, v12, 3, v9
        v_accvgpr_write_b32 a193, v13
        s_mul_i32 s{S_T2}, s{S_T0}, 5
        s_add_u32 s{S_T2}, s{S_T2}, 24
        v_add_u32 v12, s{S_T2}, v11
        s_mul_i32 s{S_T3}, s{S_T0}, -3
        s_add_i32 s{S_T3}, s{S_T3}, 37
        v_mov_b32 v13, s{S_T3}
        v_cmp_eq_u32 vcc, 5, v11
        v_cndmask_b32 v12, v12, v13, vcc
        s_add_i32 s{S_T3}, s{S_T3}, -13
        v_add_u32 v13, s{S_T3}, v11
        v_cmp_lt_u32 vcc, 5, v11
        v_cndmask_b32 v12, v12, v13, vcc
        v_lshl_add_u32 v13, v12, 3, v9
        v_accvgpr_write_b32 a194, v13
        v_mul_u32_u24 v9, 336, v3
        v_lshl_add_u32 v9, v2, 4, v9
        v_accvgpr_write_b32 a195, v9
        s_lshl_b32 s{S_T2}, s{S_HP}, 4
        s_add_u32 s{S_T2}, s{S_T2}, s{S_RB}
        s_mul_i32 s{S_T2}, s{S_T2}, {KVP_SZ}
        s_add_u32 s{S_T2}, s{S_T2}, {WS_KVP}
        s_mul_i32 s{S_T3}, s{S_T0}, 3360
        s_add_u32 s{S_KVS}, s{S_T2}, s{S_T3}
        """)

    def phase0(self):
        g = self
        P = 160
        self.stamp("pre_p0")
        g.vmwait("phi")
        self.stamp("p0data")
        X0, X1, W = P, P + 6, P + 12
        A = 180
        for i in range(7): g(f"v_mov_b32 v{A+i}, 0")
        for d in range(5):
            g(f"""
            v_dot2c_f32_bf16 v{A+0}, v{X0+d}, v84
            v_dot2c_f32_bf16 v{A+1}, v{X0+d}, v{X0+d}
            v_dot2c_f32_bf16 v{A+2}, v{X0+d}, v{W+d}
            v_dot2c_f32_bf16 v{A+3}, v{X1+d}, v84
            v_dot2c_f32_bf16 v{A+4}, v{X1+d}, v{X1+d}
            v_dot2c_f32_bf16 v{A+5}, v{X1+d}, v{W+d}
            v_dot2c_f32_bf16 v{A+6}, v{W+d}, v84
            """)
        g("s_nop 2")
        for ctl in ("row_shr:1 row_mask:0xf bank_mask:0xf bound_ctrl:0", "row_shr:2 row_mask:0xf bank_mask:0xf bound_ctrl:0",
                    "row_shr:4 row_mask:0xf bank_mask:0xf bound_ctrl:0", "row_shr:8 row_mask:0xf bank_mask:0xf bound_ctrl:0",
                    "row_bcast:15 row_mask:0xa bank_mask:0xf", "row_bcast:31 row_mask:0xc bank_mask:0xf"):
            for i in range(7):
                g(f"v_add_f32_dpp v{A+i}, v{A+i}, v{A+i} {ctl}")
        T = 190
        g(f"v_mov_b32 v{T+8}, 0x3acccccd")
        for r in range(2):
            sx, sq, sw = A + 3*r, A + 3*r + 1, A + 3*r + 2
            m, t1, t2 = T + 3*r, T + 3*r + 1, T + 3*r + 2
            g(f"""
            v_mul_f32 v{m}, v{sx}, v{T+8}
            v_mul_f32 v{t1}, v{sq}, v{T+8}
            v_fma_f32 v{t1}, -v{m}, v{m}, v{t1}
            v_max_f32 v{t1}, 0, v{t1}
            """)
            g.rnd_bf16(t1, t1)
            g(f"v_add_f32 v{t1}, 0x3727c5ac, v{t1}")
            g.rnd_bf16(t1, t1)
            g(f"v_sqrt_f32 v{t1}, v{t1}")
            g.rnd_bf16(t1, t1)
            g.rnd_bf16(m, m)
            g(f"""
            v_rcp_f32 v{t1}, v{t1}
            v_fma_f32 v{t2}, -v{m}, v{A+6}, v{sw}
            v_mul_f32 v{t2}, v{t2}, v{t1}
            """)
        g(f"""
        v_mov_b32 v{T+7}, s{S_P0ROW}
        v_add_u32 v{T+9}, 1, v{T+7}
        v_cmp_gt_f32 vcc, v{T+5}, v{T+2}
        v_cndmask_b32 v{T+6}, v{T+2}, v{T+5}, vcc
        v_cndmask_b32 v{T+7}, v{T+7}, v{T+9}, vcc
        s_lshl_b32 s{S_T0}, s{S_WAVE}, 3
        s_add_u32 s{S_T0}, s{S_T0}, {L_P0}
        v_mov_b32 v9, s{S_T0}
        s_mov_b32 exec_lo, 0
        s_brev_b32 exec_hi, 1
        ds_write_b64 v9, {v(T+6,2)}
        s_mov_b64 exec, -1
        """)

    def phi_frags(self):
        g = self
        g(f"""
        v_lshrrev_b32 v9, 3, v2
        v_and_b32 v11, 3, v2
        v_lshl_add_u32 v9, v9, 2, v11
        v_min_u32 v9, 9, v9
        v_bfe_u32 v11, v2, 2, 1
        v_mad_u32_u24 v9, v11, 10, v9
        v_lshlrev_b32 v9, 1, v9
        s_mul_i32 s{S_T0}, s{S_WAVE}, 1664
        s_add_u32 s{S_T0}, s{S_T0}, {L_WPHI}
        v_add_u32 v9, s{S_T0}, v9
        v_mul_u32_u24 v11, 160, v3
        v_add_u32 v11, v11, v9
        """)
        def rd(reg, base, ds):
            for i, d in enumerate(ds):
                g(f"ds_read_u16 v{T0 + i}, v{base} offset:{d}")
            g("s_waitcnt lgkmcnt(0)")
            for i in range(0, len(ds), 2):
                g(f"v_lshl_or_b32 v{reg + i//2}, v{T0+i+1}, 16, v{T0+i}")
        T0 = 200
        rd(140, 11, [40*i for i in range(4)] + [40*(8+i) for i in range(4)] + [40*(16+i) for i in range(4)])
        rd(146, 9, [800 + 40*i for i in range(4)])
        rd(148, 11, [800 + 40*(4+i) for i in range(4)] + [800 + 40*(12+i) for i in range(4)])
        g(f"""
        s_mov_b32 s{S_MA}, 0
        s_mov_b32 s{S_MA+1}, -1
        s_waitcnt lgkmcnt(0)
        v_cndmask_b32 v144, v144, 0, {s2(S_MA)}
        v_cndmask_b32 v145, v145, 0, {s2(S_MA)}
        v_cndmask_b32 v146, 0, v146, {s2(S_MA)}
        v_cndmask_b32 v147, 0, v147, {s2(S_MA)}
        """)

    def p1_reads(self, n):
        c, ks = divmod(n, 4); s = c % 5; b = n % 3
        base = 128 + ks if s < 3 else 132 + ks
        imm = s * SLOT if s < 3 else (s - 3) * SLOT
        out = [f"ds_read_b128 {ac(4*n,4)}, v{base} offset:{imm}"]
        wb = 136 + s // 2
        imm0 = (s % 2) * SLOT + 16 * ks * 192
        for t in range(3):
            for rd in range(2):
                out.append(f"ds_read_b64_tr_b16 {v(92 + 12*b + 4*t + 2*rd, 2)}, v{wb} offset:{imm0 + 4*rd*192 + 64*t}")
        for rd in range(2):
            out.append(f"ds_read_b64_tr_b16 {v(160 + 4*b + 2*rd, 2)}, v{72 + s // 2} offset:{imm0 + 4*rd*192}")
        return out

    def p1_refill(self, i):
        s = i % 5
        nt = self.nt
        grp = []
        grp.append([f"s_add_u32 m0, s{S_LX}, {s*SLOT}", "s_nop 0" if False else f"s_add_u32 s{S_T1}, s{S_LW}, {s*SLOT}",
                    f"buffer_load_dwordx4 v4, {srd(SRD_X)}, s{S_CX} offen{nt} lds"])
        grp.append([f"buffer_load_dwordx4 v5, {srd(SRD_X)}, s{S_CX} offen offset:1024{nt} lds"])
        grp.append([f"buffer_load_dwordx4 v157, {srd(SRD_X)}, s{S_CX} offen offset:2048{nt} lds"])
        grp.append([f"buffer_load_dwordx4 v158, {srd(SRD_X)}, s{S_CX} offen offset:3072{nt} lds",
                    f"s_add_u32 s{S_CX}, s{S_CX}, 128"])
        grp.append([f"s_mov_b32 m0, s{S_T1}", f"s_mov_b64 exec, {s2(S_WM)}",
                    f"buffer_load_dwordx4 v6, {srd(SRD_W)}, s{S_CW} offen{nt} lds", "s_mov_b64 exec, -1"])
        grp.append([f"s_mov_b64 exec, {s2(S_WM+2)}",
                    f"buffer_load_dwordx4 v7, {srd(SRD_W)}, s{S_CW} offen offset:1024{nt} lds", "s_mov_b64 exec, -1"])
        grp.append([f"s_mov_b64 exec, {s2(S_WM+4)}",
                    f"buffer_load_dwordx4 v8, {srd(SRD_W)}, s{S_CW} offen offset:2048{nt} lds", "s_mov_b64 exec, -1",
                    f"s_add_u32 s{S_CW}, s{S_CW}, {64*3840}", f"s_cmp_eq_u32 s{S_CX}, s{S_CC}",
                    f"s_cselect_b32 s{S_CX}, s{S_XB}, s{S_CX}", f"s_cselect_b32 s{S_CW}, s{S_WB}, s{S_CW}"])
        return grp

    def wq_groups(self):
        grp = []
        for m in range(13):
            q, pt = divmod(m, 5)
            gl = [f"s_add_u32 m0, s{S_WQL}, {m*1024}", f"s_add_u32 s{S_T2}, s{S_WQG}, {q*64*3840}"]
            if m == 12:
                gl += ["s_mov_b32 exec_hi, 0", f"buffer_load_dwordx4 v{152+pt}, {srd(SRD_W)}, s{S_T2} offen lds", "s_mov_b64 exec, -1"]
            else:
                gl += [f"buffer_load_dwordx4 v{152+pt}, {srd(SRD_W)}, s{S_T2} offen lds"]
            grp.append(gl)
        return grp

    def wq_setup(self):
        g = self
        for pt in range(5):
            g(f"""
            v_add_u32 v9, {64*pt}, v1
            v_mul_u32_u24 v11, 52429, v9
            v_lshrrev_b32 v11, 18, v11
            v_mul_u32_u24 v12, 5, v11
            v_sub_u32 v12, v9, v12
            v_and_b32 v13, 3, v11
            v_bfe_u32 v14, v11, 2, 2
            v_and_b32 v11, 0xfffffff0, v11
            v_lshl_add_u32 v11, v13, 2, v11
            v_add_u32 v11, v11, v14
            v_mul_u32_u24 v11, 3840, v11
            v_lshl_add_u32 v{152+pt}, v12, 4, v11
            """)
        g(f"""
        s_mul_i32 s{S_WQL}, s{S_WAVE}, 12800
        s_add_u32 s{S_WQL}, s{S_WQL}, {L_WQ}
        s_mul_i32 s{S_WQG}, s{S_WAVE}, {160*3840}
        s_mul_i32 s{S_T0}, s{S_HP}, 80
        s_add_u32 s{S_WQG}, s{S_WQG}, s{S_T0}
        """)

    def pass1(self):
        g = self
        self.dbg_span(2, True); self.dbg_span(7, False); self.mark("filled"); self.skew_record()
        g.vmwait("c0")
        g("s_waitcnt lgkmcnt(0)\ns_barrier")
        self.stamp("c0")
        for x in self.p1_reads(0): g(x)
        g("s_waitcnt lgkmcnt(6)")
        for x in self.p1_reads(1): g(x)
        g(f"""
        s_cmp_lg_u32 s{S_WAVE}, 0
        s_cbranch_scc1 L_nopub
        v_mov_b32 v9, {L_P0}           ; HZ_SKIP_BEGIN
        ds_read_b128 v[172:175], v9
        ds_read_b128 v[176:179], v9 offset:16
        s_lshl_b32 s{S_T0}, s2, 3
        s_add_u32 s{S_T0}, s{S_T0}, {WS_RMAX}
        v_mov_b32 v11, s{S_T0}
        s_waitcnt lgkmcnt(0)
        v_cmp_gt_f32 vcc, v174, v172
        v_cndmask_b32 v172, v172, v174, vcc
        v_cndmask_b32 v173, v173, v175, vcc
        v_cmp_gt_f32 vcc, v176, v172
        v_cndmask_b32 v172, v172, v176, vcc
        v_cndmask_b32 v173, v173, v177, vcc
        v_cmp_gt_f32 vcc, v178, v172
        v_cndmask_b32 v172, v172, v178, vcc
        v_cndmask_b32 v173, v173, v179, vcc
        s_mov_b64 exec, 1
        buffer_store_dwordx2 v[172:173], v11, {srd(SRD_WS)}, 0 offen sc1
        s_mov_b64 exec, -1             ; HZ_SKIP_END
L_nopub:
        """)
        pend = []
        for n in range(40):
            c, ks = divmod(n, 4); b = n % 3
            if ks == 0:
                if c + self.dist <= 9:
                    pend += self.p1_refill(c + self.dist); self.vmq = getattr(self, "vmq", []) + [f"c{c+self.dist}"] * 7
                if c == 3:
                    pend.append(self.touch_wq()); self.vmq.append("tq")
                if c == 7:
                    pend += self.touch_moe(); self.vmq += ["tm"] * 3
                if c == 6:
                    pend.append([f"v_mov_b32 v75, 240", f"buffer_load_dword v75, v75, {srd(SRD_DBG)}, 0 offen sc1"]); self.vmq.append("rdy")
            if ks == 2 and c < 9:
                g(f"s_waitcnt lgkmcnt(6)")
                g.vmwait(f"c{c+1}")
                g("s_barrier")
                self.stamp(f"B{c}")
                if c == 0:
                    g(f"""
                    s_cmp_lg_u32 s2, 0
                    s_cbranch_scc1 L_noready
                    s_cmp_lg_u32 s{S_WAVE}, 1
                    s_cbranch_scc1 L_noready
                    s_memrealtime s[64:65]         ; HZ_SKIP_BEGIN
                    v_mov_b32 v11, 240
                    s_waitcnt lgkmcnt(0)
                    s_or_b32 s64, s64, 1
                    v_mov_b32 v12, s64
                    s_mov_b64 exec, 1
                    buffer_store_dword v12, v11, {srd(SRD_DBG)}, 0 offen sc1
                    s_mov_b64 exec, -1             ; HZ_SKIP_END
L_noready:
                    """)
                if c == self.dist - 1:
                    g(f"""
                    s_cmp_lg_u32 s{S_WAVE}, 0
                    s_cbranch_scc1 L_noatom
                    s_and_b32 s{S_T0}, s2, 3       ; HZ_SKIP_BEGIN
                    s_lshl_b32 s{S_T0}, s{S_T0}, 6
                    v_mov_b32 v11, s{S_T0}
                    v_mov_b32 v12, 1
                    s_mov_b64 exec, 1
                    buffer_atomic_add v12, v11, {srd(SRD_DBG)}, 0 offen sc1
                    s_mov_b64 exec, -1             ; HZ_SKIP_END
L_noatom:
                    """)
            elif n == 39: g("s_waitcnt lgkmcnt(0)")
            else: g("s_waitcnt lgkmcnt(6)")
            rd = self.p1_reads(n + 2) if n + 2 < 40 else []
            if "nords" in self.exp: rd = []
            XP = ac(4*n, 4)
            WF = lambda t: 92 + 12*b + 4*t
            first = (n == 0)
            def dma():
                if pend:
                    grp = pend.pop(0); tag = self.vmq.pop(0)
                    if "nodma" not in self.exp:
                        for x in grp: g(x)
                    if tag: g.vmi(tag)
            cin = lambda r, k: "0" if first else v(r, k)
            g(f"v_mfma_f32_32x32x16_bf16 v[16:31], {v(WF(0),4)}, {XP}, {cin(16,16)}")
            for x in rd[0:3]: g(x)
            dma()
            g(f"v_mfma_f32_32x32x16_bf16 v[32:47], {v(WF(1),4)}, {XP}, {cin(32,16)}")
            for x in rd[3:6]: g(x)
            g(f"v_mfma_f32_32x32x16_bf16 v[48:63], {v(WF(2),4)}, {XP}, {cin(48,16)}")
            for x in rd[6:9]: g(x)
            dma()
            if "nosq" not in self.exp:
                g(f"v_mfma_f32_4x4x4_16b_bf16 v[64:67], {ac(4*n,2)}, {ac(4*n,2)}, {cin(64,4)}")
                g(f"v_mfma_f32_4x4x4_16b_bf16 v[68:71], {ac(4*n+2,2)}, {ac(4*n+2,2)}, {cin(68,4)}")
            if "nocs" not in self.exp:
                g(f"v_mfma_f32_4x4x4_16b_bf16 v[76:79], {v(160+4*b,2)}, v[84:85], {cin(76,4)}")
                g(f"v_mfma_f32_4x4x4_16b_bf16 v[80:83], {v(160+4*b+2,2)}, v[84:85], {cin(80,4)}")
            if c in (3, 6, 7): dma()
        while pend:
            grp = pend.pop(0); tag = self.vmq.pop(0)
            for x in grp: g(x)
            if tag: g.vmi(tag)
        self.stamp("p1end")

    def touch_moe(self):
        return [
            [f"v_mul_u32_u24 v9, 13108, v1", "v_lshrrev_b32 v9, 16, v9", "v_mul_u32_u24 v10, 5, v9", "v_sub_u32 v10, v1, v10",
             "v_mul_u32_u24 v11, 3456, v9", "v_lshl_add_u32 v11, v10, 7, v11",
             f"s_mul_i32 s{S_T0}, s{S_XCD}, 448", f"s_and_b32 s{S_T0}, s{S_T0}, 0xffffff80",
             f"s_lshl_b32 s{S_T2}, s{S_SLOT}, 2", f"s_add_u32 s{S_T2}, s{S_T2}, s{S_WAVE}", f"s_mul_i32 s{S_T2}, s{S_T2}, {5*3456}",
             f"s_add_u32 s{S_T0}, s{S_T0}, s{S_T2}", "s_mov_b32 exec_lo, 0x1ffffff", "s_mov_b32 exec_hi, 0",
             f"buffer_load_dword v159, v11, {srd(SRD_G)}, s{S_T0} offen", "s_mov_b64 exec, -1"],
            ["s_mov_b32 exec_lo, 0x1ffffff", "s_mov_b32 exec_hi, 0",
             f"buffer_load_dword v159, v11, {srd(SRD_U)}, s{S_T0} offen", "s_mov_b64 exec, -1"],
            ["v_mul_u32_u24 v9, 6554, v1", "v_lshrrev_b32 v9, 16, v9", "v_mul_u32_u24 v10, 10, v9", "v_sub_u32 v10, v1, v10",
             "v_mul_u32_u24 v12, 1280, v9", "v_lshl_add_u32 v12, v10, 7, v12",
             f"s_mul_i32 s{S_T0}, s{S_XCD}, {224*1280}", f"s_mul_i32 s{S_T2}, s{S_SLOT}, 7", f"s_lshl_b32 s{S_T3}, s{S_WAVE}, 1",
             f"s_add_u32 s{S_T2}, s{S_T2}, s{S_T3}", f"s_mul_i32 s{S_T2}, s{S_T2}, 1280", f"s_add_u32 s{S_T0}, s{S_T0}, s{S_T2}",
             "s_mov_b32 exec_lo, 0xfffff", "s_mov_b32 exec_hi, 0",
             f"buffer_load_dword v159, v12, {srd(SRD_D)}, s{S_T0} offen", "s_mov_b64 exec, -1"]]

    def touch_wq(self):
        return ["v_mul_u32_u24 v9, 21846, v1", "v_lshrrev_b32 v9, 16, v9", "v_mul_u32_u24 v10, 3, v9", "v_sub_u32 v10, v1, v10",
                f"s_lshl_b32 s{S_T0}, s{S_SLOT}, 2", f"s_add_u32 s{S_T0}, s{S_T0}, s{S_WAVE}", f"s_mul_i32 s{S_T0}, s{S_T0}, 5",
                f"v_add_u32 v9, s{S_T0}, v9", "v_mul_u32_u24 v9, 3840, v9", "v_lshl_add_u32 v9, v10, 7, v9",
                f"s_lshr_b32 s{S_T0}, s{S_XCD}, 1", f"s_mul_i32 s{S_T0}, s{S_T0}, 320", f"s_and_b32 s{S_T0}, s{S_T0}, 0xffffff80",
                "s_mov_b32 exec_lo, 0x7fff", "s_mov_b32 exec_hi, 0",
                f"buffer_load_dword v159, v9, {srd(SRD_W)}, s{S_T0} offen", "s_mov_b64 exec, -1"]

    def stats_and_colsum(self, first):
        g = self
        csoff = 0 if first else 128 * 4
        for i in range(4): g(f"v_add_f32 v{76+i}, v{76+i}, v{80+i}")
        for i in range(4): g(f"v_mov_b32 v{80+i}, v{76+i}")
        for i in range(4): g(f"v_permlane32_swap_b32 v{76+i}, v{80+i}")
        for i in range(4): g(f"v_add_f32 v{76+i}, v{76+i}, v{80+i}")
        g(f"""
        s_lshl_b32 s{S_T0}, s{S_WAVE}, 7
        s_add_u32 s{S_T0}, s{S_T0}, {L_CS + csoff}
        v_lshl_add_u32 v9, v1, 2, s{S_T0}
        s_mov_b32 exec_lo, 0x11111111
        s_mov_b32 exec_hi, 0
        ds_write_b128 v9, v[76:79]
        s_mov_b64 exec, -1
        """)
        if first:
            for i in range(4): g(f"v_add_f32 v{64+i}, v{64+i}, v{68+i}")
            for i in range(1, 4):
                m = 0x11111111 << i
                g(f"s_mov_b32 s{S_MB}, {hex(m)}\ns_mov_b32 s{S_MB+1}, {hex(m)}\nv_cndmask_b32 v64, v64, v{64+i}, {s2(S_MB)}")
            g(f"""
            v_mov_b32 v65, v64
            v_mov_b32 v90, 0x3acccccd
            s_nop 0
            v_permlane32_swap_b32 v64, v65
            v_add_f32 v64, v64, v65
            v_mul_f32 v66, v56, v90
            v_mul_f32 v64, v64, v90
            v_fma_f32 v64, -v66, v66, v64
            v_max_f32 v64, 0, v64
            """)
            g.rnd_bf16(64, 64)
            g("v_add_f32 v64, 0x3727c5ac, v64")
            g.rnd_bf16(64, 64)
            g("v_sqrt_f32 v64, v64")
            g.rnd_bf16(90, 64)
            g.rnd_bf16(91, 66)
            g("v_rcp_f32 v88, v90\nv_sub_f32 v86, 0, v91")
        g("s_waitcnt lgkmcnt(0)\ns_barrier")
        self.stamp("csbar" if first else "csbar2")

    def normalise(self, quads, csoff):
        g = self
        g(f"v_lshlrev_b32 v9, 4, v3\nv_add_u32 v9, {L_CS + csoff}, v9")
        for i, (r, col) in enumerate(quads):
            g(f"ds_read_b128 {v(160+4*i,4)}, v9 offset:{col*4}")
        for i, (r, col) in enumerate(quads):
            g(f"s_waitcnt lgkmcnt({len(quads)-1-i})")
            for hh in range(2):
                g(f"v_pk_fma_f32 {v(r+2*hh,2)}, {v(160+4*i+2*hh,2)}, v[86:87], {v(r+2*hh,2)} op_sel_hi:[1,0,1]")
            for hh in range(2):
                g(f"v_pk_mul_f32 {v(r+2*hh,2)}, {v(r+2*hh,2)}, v[88:89] op_sel_hi:[1,0]")

    def softmax(self, H0, H1):
        g = self
        P = (92, 108)
        L = 0x3fb8aa3b
        g(f"v_mov_b32 v124, {hex(L)}\nv_mov_b32 v126, {hex(L | 0x80000000)}")
        for H in (H0, H1): g(f"v_mov_b32 v{H+10}, 0\nv_mov_b32 v{H+11}, 0")
        E = (160, 180)
        MX = (200, 204)
        for a in range(2):
            p, mx = P[a], MX[a]
            g(f"""
            v_max3_f32 v{mx}, v{p}, v{p+1}, v{p+2}
            v_min3_f32 v{mx+1}, v{p}, v{p+1}, v{p+2}
            v_max3_f32 v{mx}, v{mx}, v{p+3}, v{p+4}
            v_min3_f32 v{mx+1}, v{mx+1}, v{p+3}, v{p+4}
            v_max3_f32 v{mx}, v{mx}, v{p+5}, v{p+6}
            v_min3_f32 v{mx+1}, v{mx+1}, v{p+5}, v{p+6}
            v_max3_f32 v{mx}, v{mx}, v{p+7}, v{p+8}
            v_min3_f32 v{mx+1}, v{mx+1}, v{p+7}, v{p+8}
            v_max_f32 v{mx}, v{mx}, v{p+9}
            v_min_f32 v{mx+1}, v{mx+1}, v{p+9}
            v_sub_f32 v{mx+1}, 0, v{mx+1}
            """)
        for a in range(2): g(f"v_permlane32_swap_b32 v{MX[a]}, v{MX[a]+1}")
        for a in range(2): g(f"v_max_f32 v{MX[a]}, v{MX[a]}, v{MX[a]+1}")
        for a in range(2): g(f"v_mov_b32 v{MX[a]+1}, v{MX[a]}")
        for a in range(2): g(f"v_permlane32_swap_b32 v{MX[a]}, v{MX[a]+1}")
        for a in range(2):
            mx = MX[a]
            g(f"v_mul_f32 v{mx+2}, v{mx+1}, v126\nv_mul_f32 v{mx}, v{mx}, v126")
        for a in range(2):
            p, mx, e = P[a], MX[a], E[a]
            for i in range(5):
                g(f"v_pk_fma_f32 {v(e+2*i,2)}, {v(p+2*i,2)}, v[124:125], {v(mx,2)} op_sel_hi:[1,0,0]")
                g(f"v_pk_fma_f32 {v(e+10+2*i,2)}, {v(p+2*i,2)}, v[126:127], {v(mx+2,2)} op_sel_hi:[1,0,0]")
        self.stamp("sm_pre" + str(H0) + getattr(self, "smtag", ""))
        for a in range(2):
            for i in range(20): g(f"v_exp_f32 v{E[a]+i}, v{E[a]+i}")
        self.stamp("sm_exp" + getattr(self, "smtag", ""))
        SM = (208, 214)
        for a in range(2):
            e, sm = E[a], SM[a]
            g(f"v_pk_add_f32 {v(sm,2)}, {v(e,2)}, {v(e+2,2)}\nv_pk_add_f32 {v(sm+2,2)}, {v(e+10,2)}, {v(e+12,2)}")
        for i in range(2, 5):
            for a in range(2):
                e, sm = E[a], SM[a]
                g(f"v_pk_add_f32 {v(sm,2)}, {v(sm,2)}, {v(e+2*i,2)}\nv_pk_add_f32 {v(sm+2,2)}, {v(sm+2,2)}, {v(e+10+2*i,2)}")
        for a in range(2):
            sm = SM[a]
            g(f"v_add_f32 v{sm}, v{sm}, v{sm+1}\nv_add_f32 v{sm+1}, v{sm+2}, v{sm+3}")
        for a in range(2): g(f"v_permlane32_swap_b32 v{SM[a]}, v{SM[a]+1}")
        for a in range(2): g(f"v_add_f32 v{SM[a]}, v{SM[a]}, v{SM[a]+1}")
        for a in range(2): g(f"v_mov_b32 v{SM[a]+2}, v{SM[a]}")
        for a in range(2): g(f"v_permlane32_swap_b32 v{SM[a]}, v{SM[a]+2}")
        for a in range(2): g(f"v_rcp_f32 v{SM[a]}, v{SM[a]}\nv_rcp_f32 v{SM[a]+2}, v{SM[a]+2}")
        for a, H in ((0, H0), (1, H1)):
            e, sm = E[a], SM[a]
            for i in range(5):
                g(f"v_pk_mul_f32 {v(e+2*i,2)}, {v(e+2*i,2)}, {v(sm,2)} op_sel_hi:[1,0]")
                g(f"v_pk_mul_f32 {v(e+10+2*i,2)}, {v(e+10+2*i,2)}, {v(sm+2,2)} op_sel_hi:[1,0]")
            for i in range(10):
                g(f"v_cvt_pk_bf16_f32 v{H+i}, v{e+2*i}, v{e+2*i+1}")

    def norm_reads(self, quads, csoff, r0):
        g = self
        for i, (r, col) in enumerate(quads):
            g(f"ds_read_b128 {v(r0+4*i,4)}, v9 offset:{col*4}")

    def norm_apply(self, quads, r0, after):
        g = self
        for i, (r, col) in enumerate(quads):
            g(f"s_waitcnt lgkmcnt({len(quads)-1-i+after})")
            for hh in range(2):
                g(f"v_pk_fma_f32 {v(r+2*hh,2)}, {v(r0+4*i+2*hh,2)}, v[86:87], {v(r+2*hh,2)} op_sel_hi:[1,0,1]")
            for hh in range(2):
                g(f"v_pk_mul_f32 {v(r+2*hh,2)}, {v(r+2*hh,2)}, v[88:89] op_sel_hi:[1,0]")

    def featmap_mfma(self, PK):
        g = self
        g(f"v_mfma_f32_32x32x16_bf16 v[92:107], v[140:143], {v(PK,4)}, 0")
        g(f"v_mfma_f32_32x32x16_bf16 v[108:123], v[146:149], {v(PK+4,4)}, 0")
        g(f"v_mfma_f32_32x32x8_bf16 v[92:107], v[144:145], {v(PK+4,2)}, v[92:107]")
        g(f"v_mfma_f32_32x32x8_bf16 v[108:123], v[150:151], {v(PK+8,2)}, v[108:123]")

    def k_epilogue(self):
        g = self
        self.stats_and_colsum(True)
        PK, PV = 244, 210
        kq = [(16+4*j, 8*j) for j in range(4)] + [(32, 32)]
        vq = [(36, 40), (40, 48), (44, 56), (48, 64), (52, 72)]
        def part1():
            g(f"v_lshlrev_b32 v9, 4, v3\nv_add_u32 v9, {L_CS}, v9")
            self.norm_reads(kq, 0, 160); self.norm_reads(vq, 0, 180)
            self.norm_apply(kq, 160, 5)
            for i in range(10): g(f"v_cvt_pk_bf16_f32 v{PK+i}, v{16+2*i}, v{16+2*i+1}")
            self.stamp("k_cvt")
            self.featmap_mfma(PK)
            self.norm_apply(vq, 180, 0)
            self.stamp("v_norm")
            self.dump("kv_norm", list(range(16, 64)) + [86, 88, 90, 91])
            g(f"""
            v_accvgpr_read_b32 v11, a192
            v_mov_b32 v14, 0x3f80
            v_mov_b32 v15, 0
            v_lshl_add_u32 v12, v3, 4, v11
            v_lshl_add_u32 v13, v3, 3, v11
            ds_write_b64 v12, v[14:15] offset:{34*8}
            """)
            for i, (r, col) in enumerate(vq):
                g(f"v_cvt_pk_bf16_f32 v{PV+2*i}, v{r}, v{r+1}\nv_cvt_pk_bf16_f32 v{PV+2*i+1}, v{r+2}, v{r+3}")
                g(f"ds_write_b64 v11, {v(PV+2*i,2)} offset:{192 + 16*i}")
            self.stamp("prefm")
            self.softmax(220, 232)
            self.stamp("postfm")
        self.interleave([(x, "wq") for x in self.wq_groups()], self.capture(part1))
        self.dump("phik", list(range(220, 244)))
        for a, H in ((0, 220), (1, 232)):
            for st in range(3):
                g(f"ds_write_b128 v13, {v(H+4*st,4)} offset:{a*96 + st*32}")
        g("v_accvgpr_read_b32 v160, a193\nv_accvgpr_read_b32 v161, a194\nv_accvgpr_read_b32 v9, a195")
        g(f"v_cmp_gt_u32 vcc, 21, v2\ns_and_b32 s{S_T1}, s{S_WAVE}, 1\ns_mov_b64 {s2(S_MA)}, vcc")
        g.vmwait("wq")
        g("s_waitcnt lgkmcnt(0)\ns_barrier")
        self.stamp("Tbar")
        A0, B0 = 164, 196
        for ks in range(8):
            for rd in range(2):
                g(f"ds_read_b64_tr_b16 {v(A0+4*ks+2*rd,2)}, v160 offset:{(16*ks+rd)*336}")
                g(f"ds_read_b64_tr_b16 {v(B0+4*ks+2*rd,2)}, v161 offset:{(16*ks+rd)*336}")
            if ks >= 2:
                k = ks - 2
                g("s_waitcnt lgkmcnt(8)")
                cin = "0" if k == 0 else "v[92:107]"
                g(f"v_mfma_f32_32x32x16_bf16 v[92:107], {v(A0+4*k,4)}, {v(B0+4*k,4)}, {cin}")
        g("s_waitcnt lgkmcnt(4)")
        g(f"v_mfma_f32_32x32x16_bf16 v[92:107], {v(A0+24,4)}, {v(B0+24,4)}, v[92:107]")
        g("s_waitcnt lgkmcnt(0)")
        g(f"v_mfma_f32_32x32x16_bf16 v[92:107], {v(A0+28,4)}, {v(B0+28,4)}, v[92:107]")
        g(f"""
        s_cmp_lg_u32 s{S_T1}, 0
        s_cbranch_scc1 L_kvft1
        s_mov_b64 exec, {s2(S_MA)}     ; HZ_SKIP_BEGIN
        buffer_store_dwordx4 v[92:95], v9, {srd(SRD_WS)}, s{S_KVS} offen sc1
        buffer_store_dwordx4 v[96:99], v9, {srd(SRD_WS)}, s{S_KVS} offen offset:672 sc1
        buffer_store_dwordx4 v[100:103], v9, {srd(SRD_WS)}, s{S_KVS} offen offset:1344 sc1
        buffer_store_dwordx4 v[104:107], v9, {srd(SRD_WS)}, s{S_KVS} offen offset:2016 sc1
        s_branch L_kvdone              ; HZ_SKIP_END
L_kvft1:
        s_and_b32 s{S_MA}, s{S_MA}, 0x1fffff      ; HZ_SKIP_BEGIN
        s_mov_b32 s{S_MA+1}, 0
        s_mov_b64 exec, {s2(S_MA)}
        buffer_store_dwordx4 v[92:95], v9, {srd(SRD_WS)}, s{S_KVS} offen offset:2688 sc1
        buffer_store_dwordx4 v[96:99], v9, {srd(SRD_WS)}, s{S_KVS} offen offset:3024 sc1   ; HZ_SKIP_END
L_kvdone:
        s_mov_b64 exec, -1
        """)
        self.stamp("kvstore")

    def mark(self, name):
        for e in self.exp:
            if e.startswith("probe:"):
                _, a, b, k = e.split(":")
                ins = "s_memtime" if k.startswith("c") else "s_memrealtime"
                if name == a: self(f"{ins} s[86:87]")
                if name == b: self(f"{ins} s[88:89]")

    def skew_record(self):
        if "skew" not in self.exp: return
        self(f"""
        s_add_u32 s100, s2, 8
        s_and_b32 s100, s100, 0xf0
        s_cmp_lg_u32 s100, 0
        s_cbranch_scc1 L_noskew
        s_cmp_lg_u32 s{S_WAVE}, 0
        s_cbranch_scc1 L_noskew
        s_not_b32 s100, s98
        v_mov_b32 v9, 8
        v_mov_b32 v10, s100
        v_mov_b32 v11, 12
        v_mov_b32 v12, s98
        s_mov_b64 exec, 1
        buffer_atomic_umax v10, v9, {srd(SRD_DBG)}, 0 offen sc1
        buffer_atomic_umax v12, v11, {srd(SRD_DBG)}, 0 offen sc1
        s_mov_b64 exec, -1
L_noskew:
        """)

    def skew_spin(self):
        if "skew" not in self.exp: return
        self(f"""
        v_mov_b32 v9, 8
        buffer_load_dwordx2 v[10:11], v9, {srd(SRD_DBG)}, 0 offen sc1
        s_waitcnt vmcnt(0)
        v_readfirstlane_b32 s92, v10
        v_readfirstlane_b32 s93, v11
        s_not_b32 s92, s92
        s_sub_u32 s92, s93, s92
        s_mul_i32 s92, s92, 4
        s_memrealtime s[90:91]
        s_waitcnt lgkmcnt(0)
        s_add_u32 s92, s92, s90
L_skewspin:
        s_memrealtime s[90:91]
        s_waitcnt lgkmcnt(0)
        s_sub_u32 s93, s92, s90
        s_cmp_gt_i32 s93, 0
        s_cbranch_scc1 L_skewspin
        """)

    def probe_spin(self):
        for e in self.exp:
            if e.startswith("probe:"):
                _, a, b, k = e.split(":")
                self(f"""
                s_memrealtime s[90:91]
                s_waitcnt lgkmcnt(0)
                s_sub_u32 s92, s88, s86
                {f"s_lshr_b32 s92, s92, {k[1:]}" if k.startswith("c") else f"s_mul_i32 s92, s92, {k}"}
                s_add_u32 s92, s92, s90
L_probe:
                s_memrealtime s[90:91]
                s_waitcnt lgkmcnt(0)
                s_sub_u32 s93, s92, s90
                s_cmp_gt_i32 s93, 0
                s_cbranch_scc1 L_probe
                """)

    def dbg_span(self, word, invert):
        if "span" not in self.exp: return
        g = self
        lab = f"L_span{word}"
        g(f"""
        s_and_b32 s100, s2, 15
        s_cmp_lg_u32 s100, 0
        s_cbranch_scc1 {lab}
        s_cmp_lg_u32 s{S_WAVE}, 0
        s_cbranch_scc1 {lab}
        s_memrealtime s[100:101]
        s_waitcnt lgkmcnt(0)
        {"s_not_b32 s100, s98" if invert else "s_nop 0"}
        v_mov_b32 v9, {word*4}
        v_mov_b32 v10, s100
        s_mov_b64 exec, 1
        buffer_atomic_umax v10, v9, {srd(SRD_DBG)}, 0 offen sc1
        s_mov_b64 exec, -1
{lab}:
        """)

    def finish(self):
        g = self
        self.mark("end")
        self.probe_spin()
        self.skew_spin()
        self.dbg_span(3, False)
        if self.stamps:
            g("s_waitcnt lgkmcnt(0)")
            self.flush_stamps()
            g(f"""
            s_lshl_b32 s{S_T0}, s2, 2
            s_add_u32 s{S_T0}, s{S_T0}, s{S_WAVE}
            s_lshl_b32 s{S_T0}, s{S_T0}, 8
            s_add_u32 s{S_T0}, s{S_T0}, {WS_TS}
            v_lshlrev_b32 v9, 2, v1
            buffer_store_dword v255, v9, {srd(SRD_WS)}, s{S_T0} offen
            """)
        g("L_exit:\ns_endpgm\nL_code_end:")

    def pre_k_epilogue(self):
        pass

    def build(self):
        g = self
        self.prologue()
        self.dump("phifrag", list(range(140, 152)))
        self.pass1()
        self.dump("acc1", list(range(16, 84)))
        if self.stop != "pass1":
            self.dbg_span(10, False); self.mark("p1end")
            self.pre_k_epilogue()
            self.k_epilogue()
        if self.stop not in ("pass1", "kv"):
            self.rest()
        self.finish()

    def text(self):
        body, nins = hazard.fix([l.strip() for l in self.a.lines])
        hdr = open("parallel_sum__linear_kernel_hedgehog__moe_arch_mod__prompt.s.ref").read().split("\n")
        top = [l for l in hdr if l.startswith(";") and "@launch" not in l and "Override" not in l and "grid=ceil" not in l]
        out = "\n".join(top) + "\n"
        out += f"; @launch grid=(256,1,1) block=(256,1,1) lds={LDS_SIZE}\n"
        out += '.amdgcn_target "amdgcn-amd-amdhsa--gfx950"\n.text\n' + kernel_header(NAME)
        out += "\n".join("    " + l if not l.endswith(":") else l for l in body if l) + "\n"
        out += f""".section .rodata,"a"
.p2align 6
.amdhsa_kernel {NAME}
  .amdhsa_next_free_vgpr 512
  .amdhsa_next_free_sgpr 102
  .amdhsa_accum_offset 256
  .amdhsa_group_segment_fixed_size 0
  .amdhsa_kernarg_size 96
  .amdhsa_user_sgpr_count 2
  .amdhsa_user_sgpr_kernarg_segment_ptr 1
  .amdhsa_system_sgpr_workgroup_id_x 1
  .amdhsa_float_denorm_mode_32 3
.end_amdhsa_kernel
"""
        return out, nins


if __name__ == "__main__":
    import argparse, json
    import gen_rest
    ap = argparse.ArgumentParser()
    ap.add_argument("-o", default="k.s")
    ap.add_argument("--stop", default=None)
    ap.add_argument("--dump", default="")
    ap.add_argument("--stamps", default="")
    ap.add_argument("--notouch", action="store_true")
    ap.add_argument("--exp", default="")
    args = ap.parse_args()
    G = gen_rest.Full(stop=args.stop, dumps=[d for d in args.dump.split(",") if d], stamps=set(args.stamps.split(",")) if args.stamps else False, touch=not args.notouch, exp=[e for e in args.exp.split(",") if e])
    G.build()
    t, nins = G.text()
    open(args.o, "w").write(t)
    json.dump({"dumps": G.dump_index, "stamps": getattr(G, "stamp_names", [])}, open(args.o + ".json", "w"))
    print("wrote", args.o, "lines", t.count("\n"), "nops inserted", nins)
```

```python
import sys, re
from asmlib import Asm, kernel_header
import hazard

NAME = "parallel_sum__linear_kernel_hedgehog__moe_arch_mod__prompt_kernel"

WS_CNT   = 0
WS_KVP   = 0x10000
KVP_SZ   = 6784
WS_O     = 0x200000
WS_STATS = 0x500000
WS_RMAX  = 0x508000
WS_Y     = 0x510000
WS_DBG   = 0x800000
WS_TS    = 0x700000
WS_SIZE  = 268435456

SLOT     = 28672
L_WQ     = 0
L_T      = 57344
L_WO     = 0
L_G      = 102400
L_U      = L_G + 20480 + 128
L_OST    = L_G
L_YR     = L_OST + 4 * 5376
L_MISC   = L_U + 20480
L_WPHI   = L_MISC
L_CS     = L_WPHI + 4 * 1664
L_P0     = L_CS + 1024
L_KVF    = L_P0 + 64
L_XS     = L_KVF + 6144
L_HP     = L_XS + 5120
L_END    = L_HP + 640
LDS_SIZE = 163840
assert L_END <= LDS_SIZE, L_END
assert 5 * SLOT <= L_MISC

S_WAVE = 3
SRD_X, SRD_W, SRD_PHI, SRD_WO, SRD_WR, SRD_G, SRD_U, SRD_D, SRD_OUT, SRD_DBG, SRD_WS = range(4, 48, 4)
S_XCD, S_SLOT, S_RB, S_HP = 48, 49, 50, 51
S_XB, S_WB, S_LX, S_LW = 52, 53, 54, 55
S_WM = 56
S_T0, S_T1, S_T2, S_T3, S_T4, S_T5 = 62, 63, 64, 65, 66, 67
S_MA, S_MB = 68, 70
S_C0, S_CC, S_CX, S_CW = 76, 77, 78, 79
S_WQL, S_WQG, S_P0ROW, S_IDX = 80, 81, 82, 83
S_KVS = 75
S_TS = 86

def srd(n): return f"s[{n}:{n+3}]"
def v(b, n=1): return f"v{b}" if n == 1 else f"v[{b}:{b+n-1}]"
def ac(b, n=1): return f"a{b}" if n == 1 else f"a[{b}:{b+n-1}]"
def s2(b): return f"s[{b}:{b+1}]"


class Gen:
    def __init__(self, stop=None, dumps=(), stamps=False, touch=True, exp=()):
        self.touch = touch
        self.dist = 2 if "d2" in exp else 3
        self.exp = set(exp)
        self.a = Asm()
        self.vm = []
        self.stop = stop
        self.dumps = set(dumps)
        self.stamps = stamps
        self.nstamp = 0
        self.pending = []
        self.dump_off = 0
        self.dump_index = {}

    def __call__(self, t):
        self.a(t)
        if self.stamps and self.pending and not getattr(self, "capturing", False) and not self.in_skip(t):
            last = t.strip().split("\n")[-1].strip()
            if last.startswith("s_waitcnt") and "lgkmcnt(0)" in last: self.flush_stamps()

    def in_skip(self, t):
        for l in t.split("\n"):
            if "HZ_SKIP_BEGIN" in l: self.skipdepth = 1
            if "HZ_SKIP_END" in l: self.skipdepth = 0
        return getattr(self, "skipdepth", 0) > 0

    def vmi(self, tag, n=1):
        self.vm += [tag] * n
    def capture(self, fn):
        old, self.a.lines = self.a.lines, []
        self.capturing = True
        fn()
        self.capturing = False
        out, self.a.lines = self.a.lines, old
        return [l.strip() for l in out if l.strip()]

    def atoms(self, lines):
        out, cur, hold = [], [], None
        for l in lines:
            cur.append(l)
            code = l.split(";")[0].strip()
            if hold is None:
                if re.match(r"s_(mov|brev|and_saveexec)\w* (exec|exec_lo|exec_hi)\b", code) or code.startswith("s_and_saveexec"):
                    if not code.endswith("exec, -1"): hold = "exec"
                elif code.startswith("s_cmp"): hold = "label"
            else:
                if hold == "exec" and code == "s_mov_b64 exec, -1": hold = None
                elif hold == "label" and (code.endswith(":") or code.startswith("s_cselect")): hold = None
            if hold is None and not l.endswith(";+"):
                out.append(cur); cur = []
        if cur: out.append(cur)
        return out

    def interleave(self, groups, filler):
        at = self.atoms(filler)
        total = sum(len(a) for a in at)
        done = 0
        for i, (lines, tag) in enumerate(groups):
            for x in lines: self(x)
            self.vmi(tag)
            target = total * (i + 1) // len(groups)
            while at and done < target:
                a = at.pop(0); done += len(a)
                for x in a: self.emit_resolved(x)
        for a in at:
            for x in a: self.emit_resolved(x)

    def emit_resolved(self, x):
        if x.startswith("@VMWAIT "): self.vmwait(x.split()[1])
        elif x.startswith("@STAMP "): self.stamp(x.split()[1])
        else: self(x)

    def vmwait(self, tag):
        if getattr(self, "capturing", False):
            self(f"@VMWAIT {tag}"); return
        last = max(i for i, t in enumerate(self.vm) if t == tag)
        n = len(self.vm) - 1 - last
        assert n <= 63, (tag, n)
        self(f"s_waitcnt vmcnt({n})")
    def vmwait_all(self):
        self("s_waitcnt vmcnt(0)")

    def stamp(self, name, clk=False):
        if not self.stamps: return
        if "all" not in self.stamps and name not in self.stamps: return
        if getattr(self, "capturing", False):
            self(f"@STAMP {name}"); return
        if "cyc" in self.exp: clk = True
        self.stamp_names = getattr(self, "stamp_names", [])
        if name in self.stamp_names: return
        used = {i for i, _ in self.pending}
        free = [i for i in range(8) if i not in used]
        if not free:
            Asm.__call__(self.a, "s_waitcnt lgkmcnt(0)"); self.flush_stamps()
            free = list(range(8))
        i = free[0]
        lane = len(self.stamp_names); assert lane < 63, name
        self.stamp_names.append(name)
        self.pending.append((i, lane))
        Asm.__call__(self.a, f"{'s_memtime' if clk else 's_memrealtime'} {s2(S_TS + 2*i)} ; stamp {name}")

    def flush_stamps(self):
        for i, lane in self.pending:
            Asm.__call__(self.a, f"v_writelane_b32 v255, s{S_TS + 2*i}, {lane}")
        self.pending = []

    def dump(self, name, regs, tmp=250):
        if name not in self.dumps: return
        g = self
        n = len(regs)
        base = WS_DBG + self.dump_off
        self.dump_index[name] = (self.dump_off, n)
        self.dump_off += 256 * 4 * n * 256
        g("s_waitcnt vmcnt(0) lgkmcnt(0)\ns_nop 15\ns_nop 15")
        g(f"s_lshl_b32 s74, s2, 2\ns_add_u32 s74, s74, s{S_WAVE}\ns_mul_i32 s74, s74, {n*256}\ns_add_u32 s74, s74, {base}")
        g(f"v_lshlrev_b32 v{tmp}, 2, v1")
        for i, r in enumerate(regs):
            if isinstance(r, str) and r.startswith("a"):
                g(f"v_accvgpr_read_b32 v{tmp+1}, {r}\ns_nop 1")
                src = f"v{tmp+1}"
            else:
                src = f"v{r}"
            g(f"buffer_store_dword {src}, v{tmp}, {srd(SRD_WS)}, s74 offen")
            g(f"s_add_u32 s74, s74, 256")
            g("s_waitcnt vmcnt(0)")

    def rnd_bf16(self, dst, src):
        self(f"v_cvt_pk_bf16_f32 v{dst}, v{src}, v{src}\nv_lshlrev_b32 v{dst}, 16, v{dst}")

    def prologue(self):
        g = self
        ptrs = [(SRD_X, 0), (SRD_W, 8), (SRD_WR, 40), (SRD_PHI, 16), (SRD_WS, 88), (SRD_DBG, 80),
                (SRD_WO, 24), (SRD_G, 48), (SRD_U, 56), (SRD_D, 64), (SRD_OUT, 72)]
        sizes = {SRD_X: 2621440, SRD_W: 2457600, SRD_WR: 1280, SRD_PHI: 25600, SRD_WS: WS_SIZE, SRD_DBG: 256,
                 SRD_WO: 819200, SRD_G: 2211840, SRD_U: 2211840, SRD_D: 2211840, SRD_OUT: 2621440}
        self.sizes = sizes
        if "span" in self.exp or "skew" in self.exp: g("s_memrealtime s[98:99]")
        self.mark("start")
        g("s_getpc_b64 s[72:73]")
        g("L_pc:")
        for r, off in ptrs[:4]:
            g(f"s_load_dwordx2 {s2(r)}, s[0:1], {off}")
        g(f"""
        s_cmp_ge_u32 s2, 256
        s_cbranch_scc1 L_exit
        v_and_b32 v1, 63, v0
        v_lshrrev_b32 v9, 6, v0
        s_lshr_b32 s{S_SLOT}, s2, 3
        v_readfirstlane_b32 s{S_WAVE}, v9
        s_and_b32 s{S_XCD}, s2, 7
        """)
        g(f"""
        s_lshl_b32 s{S_T0}, s{S_SLOT}, 2
        s_add_u32 s{S_T0}, s{S_T0}, s{S_WAVE}
        s_lshl_b32 s{S_T0}, s{S_T0}, 9
        v_lshl_add_u32 v11, v1, 7, s{S_T0}
        v_cmp_gt_u32 vcc, L_code_end - L_pc, v11
        v_cmp_gt_u32 {s2(S_MA)}, 4, v1
        s_and_b64 vcc, vcc, {s2(S_MA)}
        s_and_saveexec_b64 {s2(S_MA)}, vcc
        s_cbranch_execz L_nopf
        global_load_dword v159, v11, s[72:73]       ; HZ_SKIP_BEGIN HZ_SKIP_END
L_nopf:
        s_mov_b64 exec, -1
        """)
        for r, off in ptrs[4:]:
            g(f"s_load_dwordx2 {s2(r)}, s[0:1], {off}")
        g(f"""
        s_and_b32 s{S_T0}, s{S_XCD}, 1
        s_lshl_b32 s{S_T0}, s{S_T0}, 3
        s_and_b32 s{S_T1}, s{S_SLOT}, 7
        s_add_u32 s{S_RB}, s{S_T0}, s{S_T1}
        s_lshr_b32 s{S_T0}, s{S_XCD}, 1
        s_lshl_b32 s{S_T0}, s{S_T0}, 2
        s_lshr_b32 s{S_T2}, s{S_SLOT}, 3
        s_add_u32 s{S_HP}, s{S_T0}, s{S_T2}
        s_lshl_b32 s{S_T2}, s{S_T2}, 1
        s_add_u32 s{S_T1}, s{S_T1}, s{S_T2}
        s_and_b32 s{S_T1}, s{S_T1}, 7
        s_mul_i32 s{S_T1}, s{S_T1}, 10
        s_lshr_b32 s{S_C0}, s{S_T1}, 3
        {self.rot_extra()}
        v_lshrrev_b32 v9, 3, v1
        v_mul_u32_u24 v9, 1280, v9
        v_and_b32 v11, 7, v1
        v_lshrrev_b32 v15, 4, v1
        v_xor_b32 v11, v11, v15
        v_lshl_add_u32 v4, v11, 4, v9
        v_xor_b32 v11, 4, v11
        v_lshl_add_u32 v5, v11, 4, v9
        v_add_u32 v5, {10240 - 1024}, v5
        v_add_u32 v157, {20480 - 2048}, v4
        v_add_u32 v158, {20480 - 2048}, v5
        s_lshl_b32 s{S_T0}, s{S_RB}, 7
        s_lshl_b32 s{S_T1}, s{S_WAVE}, 5
        s_add_u32 s{S_T1}, s{S_T1}, s{S_T0}
        s_mul_i32 s{S_XB}, s{S_T1}, 1280
        s_mul_i32 s{S_WB}, s{S_WAVE}, {16*3840}
        s_mul_i32 s{S_T1}, s{S_HP}, 80
        s_add_u32 s{S_WB}, s{S_WB}, s{S_T1}
        s_lshl_b32 s{S_LX}, s{S_WAVE}, 12
        s_mul_i32 s{S_LW}, s{S_WAVE}, 3072
        s_add_u32 s{S_LW}, s{S_LW}, 16384
        s_add_u32 s{S_CC}, s{S_XB}, 1280
        s_lshl_b32 s{S_CX}, s{S_C0}, 7
        s_add_u32 s{S_CX}, s{S_CX}, s{S_XB}
        s_mul_i32 s{S_CW}, s{S_C0}, {64*3840}
        s_add_u32 s{S_CW}, s{S_CW}, s{S_WB}
        """)
        for r in (SRD_X, SRD_W):
            g(f"s_mov_b32 s{r+2}, {sizes[r]}\ns_mov_b32 s{r+3}, 0x20000")
        for n in range(3):
            g(f"""
            v_add_u32 v9, {64*n}, v1
            v_mul_u32_u24 v11, 43691, v9
            v_lshrrev_b32 v11, 19, v11
            v_mul_u32_u24 v12, 12, v11
            v_sub_u32 v12, v9, v12
            v_cmp_gt_u32 {s2(S_WM+2*n)}, 10, v12
            v_cmp_gt_u32 vcc, 5, v12
            v_mul_u32_u24 v11, 3840, v11
            v_lshl_add_u32 v11, v12, 4, v11
            v_mov_b32 v13, 2480
            v_add_u32 v14, 1280, v11
            v_add_u32 v11, v13, v11
            v_cndmask_b32 v{6+n}, v11, v14, vcc
            """)
            if n: g(f"v_subrev_u32 v{6+n}, {1024*n}, v{6+n}")
        g("s_waitcnt lgkmcnt(0)")
        self.stamp("start"); self.stamp("clk0", True)
        for r in (SRD_WR, SRD_PHI):
            g(f"s_mov_b32 s{r+2}, {sizes[r]}\ns_mov_b32 s{r+3}, 0x20000")
        P = 160
        nt = " nt" if "nt" in self.exp else ""
        self.nt = nt
        g(f"""
        v_mul_u32_u24 v10, 20, v1
        s_lshl_b32 s{S_T0}, s{S_RB}, 7
        s_lshl_b32 s{S_T1}, s{S_HP}, 3
        s_add_u32 s{S_T0}, s{S_T0}, s{S_T1}
        s_lshl_b32 s{S_T1}, s{S_WAVE}, 1
        s_add_u32 s{S_P0ROW}, s{S_T0}, s{S_T1}
        s_mul_i32 s{S_T4}, s{S_P0ROW}, 1280
        buffer_load_dwordx4 {v(P,4)}, v10, {srd(SRD_X)}, s{S_T4} offen
        buffer_load_dword v{P+4}, v10, {srd(SRD_X)}, s{S_T4} offen offset:16
        buffer_load_dwordx4 {v(P+6,4)}, v10, {srd(SRD_X)}, s{S_T4} offen offset:1280
        buffer_load_dword v{P+10}, v10, {srd(SRD_X)}, s{S_T4} offen offset:1296
        buffer_load_dwordx4 {v(P+12,4)}, v10, {srd(SRD_WR)}, 0 offen
        buffer_load_dword v{P+16}, v10, {srd(SRD_WR)}, 0 offen offset:16
        v_lshlrev_b32 v11, 4, v1
        s_mul_i32 s{S_T0}, s{S_HP}, 1600
        s_mul_i32 s{S_T1}, s{S_WAVE}, 1664
        s_add_u32 m0, s{S_T1}, {L_WPHI}
        s_add_u32 s{S_T4}, s{S_T1}, {L_WPHI + 1024}
        buffer_load_dwordx4 v11, {srd(SRD_PHI)}, s{S_T0} offen lds
        s_mov_b32 m0, s{S_T4}
        s_mov_b32 exec_lo, -1
        s_mov_b32 exec_hi, 15
        s_add_u32 s{S_T0}, s{S_T0}, 1024
        buffer_load_dwordx4 v11, {srd(SRD_PHI)}, s{S_T0} offen lds
        s_mov_b64 exec, -1
        """)
        g.vmi("p0", 6); g.vmi("phi", 2)
        tagged = lambda i: [(x, f"c{i}") for x in self.p1_refill(i)]
        for lines, tag in tagged(0):
            for x in lines: g(x)
            g.vmi(tag)
        self.stamp("c0iss")
        s1, s2_ = self.capture(self.setup1), self.capture(self.setup2)
        p0, pf = self.capture(self.phase0), self.capture(self.phi_frags)
        cut = 260
        rest2 = s2_
        for x in s1: self.emit_resolved(x)
        at = self.atoms(s2_); n = 0; head = [];
        while at and n < cut - len(s1):
            a_ = at.pop(0); n += len(a_); head += a_
        for x in head: self.emit_resolved(x)
        tail = [x for a_ in at for x in a_]
        if self.dist == 3:
            self.interleave(tagged(1), tail + p0)
            self.interleave(tagged(2), pf)
        else:
            self.interleave(tagged(1), tail + p0 + pf)
        self.stamp("filled")

    def rot_extra(self):
        for e in self.exp:
            if e.startswith("rot:"):
                a, b = e.split(":")[1:3]
                return (f"s_lshr_b32 s{S_T2}, s{S_XCD}, 1\ns_mul_i32 s{S_T2}, s{S_T2}, {a}\ns_add_u32 s{S_C0}, s{S_C0}, s{S_T2}\n"
                        f"s_and_b32 s{S_T2}, s{S_XCD}, 1\ns_mul_i32 s{S_T2}, s{S_T2}, {b}\ns_add_u32 s{S_C0}, s{S_C0}, s{S_T2}\n"
                        f"s_mul_i32 s{S_T2}, s{S_C0}, 6554\ns_lshr_b32 s{S_T2}, s{S_T2}, 16\ns_mul_i32 s{S_T2}, s{S_T2}, 10\ns_sub_u32 s{S_C0}, s{S_C0}, s{S_T2}")
        return ""

    def setup1(self):
        g = self
        sizes = self.sizes
        for r in (SRD_WS, SRD_DBG):
            g(f"s_mov_b32 s{r+2}, {sizes[r]}\ns_mov_b32 s{r+3}, 0x20000")
        g(f"""
        s_lshl_b32 s{S_T0}, s{S_WAVE}, 8
        s_add_u32 s{S_T0}, s{S_T0}, s2
        s_cmp_lg_u32 s{S_T0}, 256
        s_cbranch_scc1 L_noinit
        v_lshlrev_b32 v11, 7, v1       ; HZ_SKIP_BEGIN
        v_mov_b32 v12, 0
        buffer_store_dword v12, v11, {srd(SRD_WS)}, 0 offen sc1   ; HZ_SKIP_END
L_noinit:
        """)
        for r in (SRD_WO, SRD_G, SRD_U, SRD_D, SRD_OUT):
            g(f"s_mov_b32 s{r+2}, {sizes[r]}\ns_mov_b32 s{r+3}, 0x20000")
        g(f"""
        v_and_b32 v2, 31, v1
        v_lshrrev_b32 v3, 5, v1
        v_mov_b32 v12, 0x3f80
        v_mov_b32 v13, 0
        v_mov_b32 v14, 0x3f80
        v_mov_b32 v15, 0
        v_lshrrev_b32 v9, 6, v0
        v_mul_u32_u24 v9, {SLOT}, v9
        v_mul_u32_u24 v11, 192, v1
        v_add_u32 v9, v9, v11
        ds_write_b128 v9, v[12:15] offset:{16384 + 160}
        v_add_u32 v11, {4*SLOT}, v11
        ds_write_b128 v11, v[12:15] offset:{16384 + 160}
        v_mov_b32 v16, 0
        v_mov_b32 v17, 0
        v_mov_b32 v18, 0
        v_mov_b32 v19, 0
        v_lshlrev_b32 v20, 4, v0
        v_add_u32 v20, {L_KVF}, v20
        ds_write_b128 v20, v[16:19]
        v_lshlrev_b32 v21, 3, v0
        v_add_u32 v21, {L_KVF + 4096}, v21
        ds_write_b64 v21, v[16:17]
        v_mov_b32 v84, 0x3f803f80
        v_mov_b32 v85, 0x3f803f80
        """)
        g(f"""
        v_lshrrev_b32 v9, 1, v2
        v_and_b32 v9, 7, v9
        v_xor_b32 v9, v9, v3
        v_lshlrev_b32 v9, 4, v9
        v_lshl_add_u32 v9, v2, 7, v9
        v_add_u32 v128, s{S_LX}, v9
        v_xor_b32 v129, 32, v128
        v_xor_b32 v130, 64, v128
        v_xor_b32 v131, 96, v128
        v_add_u32 v132, {3*SLOT}, v128
        v_add_u32 v133, {3*SLOT}, v129
        v_add_u32 v134, {3*SLOT}, v130
        v_add_u32 v135, {3*SLOT}, v131
        v_bfe_u32 v9, v1, 2, 2
        v_lshl_add_u32 v9, v3, 3, v9
        v_mul_u32_u24 v9, 192, v9
        v_bfe_u32 v11, v1, 4, 1
        v_and_b32 v12, 3, v1
        v_lshl_add_u32 v11, v11, 2, v12
        v_lshl_add_u32 v9, v11, 3, v9
        v_add_u32 v136, 16384, v9
        v_add_u32 v137, {16384 + 2*SLOT}, v9
        v_add_u32 v138, {16384 + 4*SLOT}, v9
        s_lshl_b32 s{S_T0}, s{S_WAVE}, 6
        v_add_u32 v72, s{S_T0}, v136
        v_add_u32 v73, s{S_T0}, v137
        v_add_u32 v74, s{S_T0}, v138
        """)

    def setup2(self):
        g = self
        self.moe_roles()
        self.kv_addresses()
        self.c_addresses()
        self.o_addresses()
        self.wq_setup()
        g(f"""
        s_lshl_b32 s{S_T0}, s{S_WAVE}, 5
        v_add_u32 v9, s{S_T0}, v2
        v_mul_u32_u24 v9, 336, v9
        v_add_u32 v9, {L_T}, v9
        v_lshl_add_u32 v9, v3, 3, v9
        v_accvgpr_write_b32 a192, v9
        s_lshr_b32 s{S_T0}, s{S_WAVE}, 1
        s_and_b32 s{S_T4}, s{S_WAVE}, 1
        v_bfe_u32 v9, v1, 2, 2
        v_lshlrev_b32 v9, 1, v9
        v_add_u32 v9, v9, v3
        v_lshlrev_b32 v9, 1, v9
        v_mul_u32_u24 v9, 336, v9
        v_add_u32 v9, {L_T}, v9
        v_bfe_u32 v11, v1, 4, 1
        v_and_b32 v12, 3, v1
        v_lshl_add_u32 v11, v11, 2, v12
        s_mul_i32 s{S_T2}, s{S_T0}, 12
        s_lshl_b32 s{S_T3}, s{S_T4}, 3
        s_add_u32 s{S_T2}, s{S_T2}, s{S_T3}
        v_add_u32 v12, s{S_T2}, v11
        v_lshl_add_u32 v13, v12, 3, v9
        v_accvgpr_write_b32 a193, v13
        s_mul_i32 s{S_T2}, s{S_T0}, 5
        s_add_u32 s{S_T2}, s{S_T2}, 24
        v_add_u32 v12, s{S_T2}, v11
        s_mul_i32 s{S_T3}, s{S_T0}, -3
        s_add_i32 s{S_T3}, s{S_T3}, 37
        v_mov_b32 v13, s{S_T3}
        v_cmp_eq_u32 vcc, 5, v11
        v_cndmask_b32 v12, v12, v13, vcc
        s_add_i32 s{S_T3}, s{S_T3}, -13
        v_add_u32 v13, s{S_T3}, v11
        v_cmp_lt_u32 vcc, 5, v11
        v_cndmask_b32 v12, v12, v13, vcc
        v_lshl_add_u32 v13, v12, 3, v9
        v_accvgpr_write_b32 a194, v13
        v_mul_u32_u24 v9, 336, v3
        v_lshl_add_u32 v9, v2, 4, v9
        v_accvgpr_write_b32 a195, v9
        s_lshl_b32 s{S_T2}, s{S_HP}, 4
        s_add_u32 s{S_T2}, s{S_T2}, s{S_RB}
        s_mul_i32 s{S_T2}, s{S_T2}, {KVP_SZ}
        s_add_u32 s{S_T2}, s{S_T2}, {WS_KVP}
        s_mul_i32 s{S_T3}, s{S_T0}, 3360
        s_add_u32 s{S_KVS}, s{S_T2}, s{S_T3}
        """)

    def phase0(self):
        g = self
        P = 160
        self.stamp("pre_p0")
        g.vmwait("phi")
        self.stamp("p0data")
        X0, X1, W = P, P + 6, P + 12
        A = 180
        for i in range(7): g(f"v_mov_b32 v{A+i}, 0")
        for d in range(5):
            g(f"""
            v_dot2c_f32_bf16 v{A+0}, v{X0+d}, v84
            v_dot2c_f32_bf16 v{A+1}, v{X0+d}, v{X0+d}
            v_dot2c_f32_bf16 v{A+2}, v{X0+d}, v{W+d}
            v_dot2c_f32_bf16 v{A+3}, v{X1+d}, v84
            v_dot2c_f32_bf16 v{A+4}, v{X1+d}, v{X1+d}
            v_dot2c_f32_bf16 v{A+5}, v{X1+d}, v{W+d}
            v_dot2c_f32_bf16 v{A+6}, v{W+d}, v84
            """)
        g("s_nop 2")
        for ctl in ("row_shr:1 row_mask:0xf bank_mask:0xf bound_ctrl:0", "row_shr:2 row_mask:0xf bank_mask:0xf bound_ctrl:0",
                    "row_shr:4 row_mask:0xf bank_mask:0xf bound_ctrl:0", "row_shr:8 row_mask:0xf bank_mask:0xf bound_ctrl:0",
                    "row_bcast:15 row_mask:0xa bank_mask:0xf", "row_bcast:31 row_mask:0xc bank_mask:0xf"):
            for i in range(7):
                g(f"v_add_f32_dpp v{A+i}, v{A+i}, v{A+i} {ctl}")
        T = 190
        g(f"v_mov_b32 v{T+8}, 0x3acccccd")
        for r in range(2):
            sx, sq, sw = A + 3*r, A + 3*r + 1, A + 3*r + 2
            m, t1, t2 = T + 3*r, T + 3*r + 1, T + 3*r + 2
            g(f"""
            v_mul_f32 v{m}, v{sx}, v{T+8}
            v_mul_f32 v{t1}, v{sq}, v{T+8}
            v_fma_f32 v{t1}, -v{m}, v{m}, v{t1}
            v_max_f32 v{t1}, 0, v{t1}
            """)
            g.rnd_bf16(t1, t1)
            g(f"v_add_f32 v{t1}, 0x3727c5ac, v{t1}")
            g.rnd_bf16(t1, t1)
            g(f"v_sqrt_f32 v{t1}, v{t1}")
            g.rnd_bf16(t1, t1)
            g.rnd_bf16(m, m)
            g(f"""
            v_rcp_f32 v{t1}, v{t1}
            v_fma_f32 v{t2}, -v{m}, v{A+6}, v{sw}
            v_mul_f32 v{t2}, v{t2}, v{t1}
            """)
        g(f"""
        v_mov_b32 v{T+7}, s{S_P0ROW}
        v_add_u32 v{T+9}, 1, v{T+7}
        v_cmp_gt_f32 vcc, v{T+5}, v{T+2}
        v_cndmask_b32 v{T+6}, v{T+2}, v{T+5}, vcc
        v_cndmask_b32 v{T+7}, v{T+7}, v{T+9}, vcc
        s_lshl_b32 s{S_T0}, s{S_WAVE}, 3
        s_add_u32 s{S_T0}, s{S_T0}, {L_P0}
        v_mov_b32 v9, s{S_T0}
        s_mov_b32 exec_lo, 0
        s_brev_b32 exec_hi, 1
        ds_write_b64 v9, {v(T+6,2)}
        s_mov_b64 exec, -1
        """)

    def phi_frags(self):
        g = self
        g(f"""
        v_lshrrev_b32 v9, 3, v2
        v_and_b32 v11, 3, v2
        v_lshl_add_u32 v9, v9, 2, v11
        v_min_u32 v9, 9, v9
        v_bfe_u32 v11, v2, 2, 1
        v_mad_u32_u24 v9, v11, 10, v9
        v_lshlrev_b32 v9, 1, v9
        s_mul_i32 s{S_T0}, s{S_WAVE}, 1664
        s_add_u32 s{S_T0}, s{S_T0}, {L_WPHI}
        v_add_u32 v9, s{S_T0}, v9
        v_mul_u32_u24 v11, 160, v3
        v_add_u32 v11, v11, v9
        """)
        def rd(reg, base, ds):
            for i, d in enumerate(ds):
                g(f"ds_read_u16 v{T0 + i}, v{base} offset:{d}")
            g("s_waitcnt lgkmcnt(0)")
            for i in range(0, len(ds), 2):
                g(f"v_lshl_or_b32 v{reg + i//2}, v{T0+i+1}, 16, v{T0+i}")
        T0 = 200
        rd(140, 11, [40*i for i in range(4)] + [40*(8+i) for i in range(4)] + [40*(16+i) for i in range(4)])
        rd(146, 9, [800 + 40*i for i in range(4)])
        rd(148, 11, [800 + 40*(4+i) for i in range(4)] + [800 + 40*(12+i) for i in range(4)])
        g(f"""
        s_mov_b32 s{S_MA}, 0
        s_mov_b32 s{S_MA+1}, -1
        s_waitcnt lgkmcnt(0)
        v_cndmask_b32 v144, v144, 0, {s2(S_MA)}
        v_cndmask_b32 v145, v145, 0, {s2(S_MA)}
        v_cndmask_b32 v146, 0, v146, {s2(S_MA)}
        v_cndmask_b32 v147, 0, v147, {s2(S_MA)}
        """)

    def p1_reads(self, n):
        c, ks = divmod(n, 4); s = c % 5; b = n % 3
        base = 128 + ks if s < 3 else 132 + ks
        imm = s * SLOT if s < 3 else (s - 3) * SLOT
        out = [f"ds_read_b128 {ac(4*n,4)}, v{base} offset:{imm}"]
        wb = 136 + s // 2
        imm0 = (s % 2) * SLOT + 16 * ks * 192
        for t in range(3):
            for rd in range(2):
                out.append(f"ds_read_b64_tr_b16 {v(92 + 12*b + 4*t + 2*rd, 2)}, v{wb} offset:{imm0 + 4*rd*192 + 64*t}")
        for rd in range(2):
            out.append(f"ds_read_b64_tr_b16 {v(160 + 4*b + 2*rd, 2)}, v{72 + s // 2} offset:{imm0 + 4*rd*192}")
        return out

    def p1_refill(self, i):
        s = i % 5
        nt = self.nt
        grp = []
        grp.append([f"s_add_u32 m0, s{S_LX}, {s*SLOT}", "s_nop 0" if False else f"s_add_u32 s{S_T1}, s{S_LW}, {s*SLOT}",
                    f"buffer_load_dwordx4 v4, {srd(SRD_X)}, s{S_CX} offen{nt} lds"])
        grp.append([f"buffer_load_dwordx4 v5, {srd(SRD_X)}, s{S_CX} offen offset:1024{nt} lds"])
        grp.append([f"buffer_load_dwordx4 v157, {srd(SRD_X)}, s{S_CX} offen offset:2048{nt} lds"])
        grp.append([f"buffer_load_dwordx4 v158, {srd(SRD_X)}, s{S_CX} offen offset:3072{nt} lds",
                    f"s_add_u32 s{S_CX}, s{S_CX}, 128"])
        grp.append([f"s_mov_b32 m0, s{S_T1}", f"s_mov_b64 exec, {s2(S_WM)}",
                    f"buffer_load_dwordx4 v6, {srd(SRD_W)}, s{S_CW} offen{nt} lds", "s_mov_b64 exec, -1"])
        grp.append([f"s_mov_b64 exec, {s2(S_WM+2)}",
                    f"buffer_load_dwordx4 v7, {srd(SRD_W)}, s{S_CW} offen offset:1024{nt} lds", "s_mov_b64 exec, -1"])
        grp.append([f"s_mov_b64 exec, {s2(S_WM+4)}",
                    f"buffer_load_dwordx4 v8, {srd(SRD_W)}, s{S_CW} offen offset:2048{nt} lds", "s_mov_b64 exec, -1",
                    f"s_add_u32 s{S_CW}, s{S_CW}, {64*3840}", f"s_cmp_eq_u32 s{S_CX}, s{S_CC}",
                    f"s_cselect_b32 s{S_CX}, s{S_XB}, s{S_CX}", f"s_cselect_b32 s{S_CW}, s{S_WB}, s{S_CW}"])
        if "qx" in self.exp:
            last = grp.pop()
            extra = [[f"s_mov_b32 m0, {L_XS}", "s_nop 0", f"buffer_load_dwordx4 v152, {srd(SRD_W)}, s{S_CW} offen{nt} lds"],
                     [f"s_mov_b32 m0, {L_XS + 1024}", "s_mov_b32 exec_lo, 0xffff", "s_mov_b32 exec_hi, 0",
                      f"buffer_load_dwordx4 v153, {srd(SRD_W)}, s{S_CW} offen{nt} lds", "s_mov_b64 exec, -1", f"s_mov_b32 m0, s{S_T1}"]]
            grp += extra + [last]
        return grp

    def wq_groups(self):
        grp = []
        for m in range(13):
            q, pt = divmod(m, 5)
            gl = [f"s_add_u32 m0, s{S_WQL}, {m*1024}", f"s_add_u32 s{S_T2}, s{S_WQG}, {q*64*3840}"]
            if m == 12:
                gl += ["s_mov_b32 exec_hi, 0", f"buffer_load_dwordx4 v{152+pt}, {srd(SRD_W)}, s{S_T2} offen lds", "s_mov_b64 exec, -1"]
            else:
                gl += [f"buffer_load_dwordx4 v{152+pt}, {srd(SRD_W)}, s{S_T2} offen lds"]
            grp.append(gl)
        return grp

    def wq_setup(self):
        g = self
        for pt in range(5):
            g(f"""
            v_add_u32 v9, {64*pt}, v1
            v_mul_u32_u24 v11, 52429, v9
            v_lshrrev_b32 v11, 18, v11
            v_mul_u32_u24 v12, 5, v11
            v_sub_u32 v12, v9, v12
            v_and_b32 v13, 3, v11
            v_bfe_u32 v14, v11, 2, 2
            v_and_b32 v11, 0xfffffff0, v11
            v_lshl_add_u32 v11, v13, 2, v11
            v_add_u32 v11, v11, v14
            v_mul_u32_u24 v11, 3840, v11
            v_lshl_add_u32 v{152+pt}, v12, 4, v11
            """)
        g(f"""
        s_mul_i32 s{S_WQL}, s{S_WAVE}, 12800
        s_add_u32 s{S_WQL}, s{S_WQL}, {L_WQ}
        s_mul_i32 s{S_WQG}, s{S_WAVE}, {160*3840}
        s_mul_i32 s{S_T0}, s{S_HP}, 80
        s_add_u32 s{S_WQG}, s{S_WQG}, s{S_T0}
        """)

    def pass1(self):
        g = self
        self.dbg_span(2, True); self.dbg_span(7, False); self.mark("filled"); self.skew_record()
        g.vmwait("c0")
        g("s_waitcnt lgkmcnt(0)\ns_barrier")
        self.stamp("c0")
        for x in self.p1_reads(0): g(x)
        g("s_waitcnt lgkmcnt(6)")
        for x in self.p1_reads(1): g(x)
        g(f"""
        s_cmp_lg_u32 s{S_WAVE}, 0
        s_cbranch_scc1 L_nopub
        v_mov_b32 v9, {L_P0}           ; HZ_SKIP_BEGIN
        ds_read_b128 v[172:175], v9
        ds_read_b128 v[176:179], v9 offset:16
        s_lshl_b32 s{S_T0}, s2, 3
        s_add_u32 s{S_T0}, s{S_T0}, {WS_RMAX}
        v_mov_b32 v11, s{S_T0}
        s_waitcnt lgkmcnt(0)
        v_cmp_gt_f32 vcc, v174, v172
        v_cndmask_b32 v172, v172, v174, vcc
        v_cndmask_b32 v173, v173, v175, vcc
        v_cmp_gt_f32 vcc, v176, v172
        v_cndmask_b32 v172, v172, v176, vcc
        v_cndmask_b32 v173, v173, v177, vcc
        v_cmp_gt_f32 vcc, v178, v172
        v_cndmask_b32 v172, v172, v178, vcc
        v_cndmask_b32 v173, v173, v179, vcc
        s_mov_b64 exec, 1
        buffer_store_dwordx2 v[172:173], v11, {srd(SRD_WS)}, 0 offen sc1
        s_mov_b64 exec, -1             ; HZ_SKIP_END
L_nopub:
        """)
        pend = []
        for n in range(40):
            c, ks = divmod(n, 4); b = n % 3
            if ks == 0:
                if c + self.dist <= 9:
                    rf = self.p1_refill(c + self.dist)
                    pend += rf; self.vmq = getattr(self, "vmq", []) + [f"c{c+self.dist}"] * len(rf)
                if c == 3:
                    pend.append(self.touch_wq()); self.vmq.append("tq")
                if c == 7:
                    pend += self.touch_moe(); self.vmq += ["tm"] * 3
                if c == 6:
                    pend.append([f"v_mov_b32 v75, 240", f"buffer_load_dword v75, v75, {srd(SRD_DBG)}, 0 offen sc1"]); self.vmq.append("rdy")
            if ks == 2 and c < 9:
                g(f"s_waitcnt lgkmcnt(6)")
                g.vmwait(f"c{c+1}")
                g("s_barrier")
                self.stamp(f"B{c}")
                if c == 0:
                    g(f"""
                    s_cmp_lg_u32 s2, 0
                    s_cbranch_scc1 L_noready
                    s_cmp_lg_u32 s{S_WAVE}, 1
                    s_cbranch_scc1 L_noready
                    s_memrealtime s[64:65]         ; HZ_SKIP_BEGIN
                    v_mov_b32 v11, 240
                    s_waitcnt lgkmcnt(0)
                    s_or_b32 s64, s64, 1
                    v_mov_b32 v12, s64
                    s_mov_b64 exec, 1
                    buffer_store_dword v12, v11, {srd(SRD_DBG)}, 0 offen sc1
                    s_mov_b64 exec, -1             ; HZ_SKIP_END
L_noready:
                    """)
                if c == self.dist - 1:
                    g(f"""
                    s_cmp_lg_u32 s{S_WAVE}, 0
                    s_cbranch_scc1 L_noatom
                    s_and_b32 s{S_T0}, s2, 3       ; HZ_SKIP_BEGIN
                    s_lshl_b32 s{S_T0}, s{S_T0}, 6
                    v_mov_b32 v11, s{S_T0}
                    v_mov_b32 v12, 1
                    s_mov_b64 exec, 1
                    buffer_atomic_add v12, v11, {srd(SRD_DBG)}, 0 offen sc1
                    s_mov_b64 exec, -1             ; HZ_SKIP_END
L_noatom:
                    """)
            elif n == 39: g("s_waitcnt lgkmcnt(0)")
            else: g("s_waitcnt lgkmcnt(6)")
            rd = self.p1_reads(n + 2) if n + 2 < 40 else []
            if "nords" in self.exp: rd = []
            XP = ac(4*n, 4)
            WF = lambda t: 92 + 12*b + 4*t
            first = (n == 0)
            def dma():
                if pend:
                    grp = pend.pop(0); tag = self.vmq.pop(0)
                    if "nodma" not in self.exp:
                        for x in grp: g(x)
                    if tag: g.vmi(tag)
            cin = lambda r, k: "0" if first else v(r, k)
            g(f"v_mfma_f32_32x32x16_bf16 v[16:31], {v(WF(0),4)}, {XP}, {cin(16,16)}")
            for x in rd[0:3]: g(x)
            dma()
            g(f"v_mfma_f32_32x32x16_bf16 v[32:47], {v(WF(1),4)}, {XP}, {cin(32,16)}")
            for x in rd[3:6]: g(x)
            g(f"v_mfma_f32_32x32x16_bf16 v[48:63], {v(WF(2),4)}, {XP}, {cin(48,16)}")
            for x in rd[6:9]: g(x)
            dma()
            if "nosq" not in self.exp:
                g(f"v_mfma_f32_4x4x4_16b_bf16 v[64:67], {ac(4*n,2)}, {ac(4*n,2)}, {cin(64,4)}")
                g(f"v_mfma_f32_4x4x4_16b_bf16 v[68:71], {ac(4*n+2,2)}, {ac(4*n+2,2)}, {cin(68,4)}")
            if "nocs" not in self.exp:
                g(f"v_mfma_f32_4x4x4_16b_bf16 v[76:79], {v(160+4*b,2)}, v[84:85], {cin(76,4)}")
                g(f"v_mfma_f32_4x4x4_16b_bf16 v[80:83], {v(160+4*b+2,2)}, v[84:85], {cin(80,4)}")
            if c in (3, 6, 7) or "qx" in self.exp: dma()
        while pend:
            grp = pend.pop(0); tag = self.vmq.pop(0)
            for x in grp: g(x)
            if tag: g.vmi(tag)
        self.stamp("p1end")

    def touch_moe(self):
        return [
            [f"v_mul_u32_u24 v9, 13108, v1", "v_lshrrev_b32 v9, 16, v9", "v_mul_u32_u24 v10, 5, v9", "v_sub_u32 v10, v1, v10",
             "v_mul_u32_u24 v11, 3456, v9", "v_lshl_add_u32 v11, v10, 7, v11",
             f"s_mul_i32 s{S_T0}, s{S_XCD}, 448", f"s_and_b32 s{S_T0}, s{S_T0}, 0xffffff80",
             f"s_lshl_b32 s{S_T2}, s{S_SLOT}, 2", f"s_add_u32 s{S_T2}, s{S_T2}, s{S_WAVE}", f"s_mul_i32 s{S_T2}, s{S_T2}, {5*3456}",
             f"s_add_u32 s{S_T0}, s{S_T0}, s{S_T2}", "s_mov_b32 exec_lo, 0x1ffffff", "s_mov_b32 exec_hi, 0",
             f"buffer_load_dword v159, v11, {srd(SRD_G)}, s{S_T0} offen", "s_mov_b64 exec, -1"],
            ["s_mov_b32 exec_lo, 0x1ffffff", "s_mov_b32 exec_hi, 0",
             f"buffer_load_dword v159, v11, {srd(SRD_U)}, s{S_T0} offen", "s_mov_b64 exec, -1"],
            ["v_mul_u32_u24 v9, 6554, v1", "v_lshrrev_b32 v9, 16, v9", "v_mul_u32_u24 v10, 10, v9", "v_sub_u32 v10, v1, v10",
             "v_mul_u32_u24 v12, 1280, v9", "v_lshl_add_u32 v12, v10, 7, v12",
             f"s_mul_i32 s{S_T0}, s{S_XCD}, {224*1280}", f"s_mul_i32 s{S_T2}, s{S_SLOT}, 7", f"s_lshl_b32 s{S_T3}, s{S_WAVE}, 1",
             f"s_add_u32 s{S_T2}, s{S_T2}, s{S_T3}", f"s_mul_i32 s{S_T2}, s{S_T2}, 1280", f"s_add_u32 s{S_T0}, s{S_T0}, s{S_T2}",
             "s_mov_b32 exec_lo, 0xfffff", "s_mov_b32 exec_hi, 0",
             f"buffer_load_dword v159, v12, {srd(SRD_D)}, s{S_T0} offen", "s_mov_b64 exec, -1"]]

    def touch_wq(self):
        return ["v_mul_u32_u24 v9, 21846, v1", "v_lshrrev_b32 v9, 16, v9", "v_mul_u32_u24 v10, 3, v9", "v_sub_u32 v10, v1, v10",
                f"s_lshl_b32 s{S_T0}, s{S_SLOT}, 2", f"s_add_u32 s{S_T0}, s{S_T0}, s{S_WAVE}", f"s_mul_i32 s{S_T0}, s{S_T0}, 5",
                f"v_add_u32 v9, s{S_T0}, v9", "v_mul_u32_u24 v9, 3840, v9", "v_lshl_add_u32 v9, v10, 7, v9",
                f"s_lshr_b32 s{S_T0}, s{S_XCD}, 1", f"s_mul_i32 s{S_T0}, s{S_T0}, 320", f"s_and_b32 s{S_T0}, s{S_T0}, 0xffffff80",
                "s_mov_b32 exec_lo, 0x7fff", "s_mov_b32 exec_hi, 0",
                f"buffer_load_dword v159, v9, {srd(SRD_W)}, s{S_T0} offen", "s_mov_b64 exec, -1"]

    def stats_and_colsum(self, first):
        g = self
        csoff = 0 if first else 128 * 4
        for i in range(4): g(f"v_add_f32 v{76+i}, v{76+i}, v{80+i}")
        for i in range(4): g(f"v_mov_b32 v{80+i}, v{76+i}")
        for i in range(4): g(f"v_permlane32_swap_b32 v{76+i}, v{80+i}")
        for i in range(4): g(f"v_add_f32 v{76+i}, v{76+i}, v{80+i}")
        g(f"""
        s_lshl_b32 s{S_T0}, s{S_WAVE}, 7
        s_add_u32 s{S_T0}, s{S_T0}, {L_CS + csoff}
        v_lshl_add_u32 v9, v1, 2, s{S_T0}
        s_mov_b32 exec_lo, 0x11111111
        s_mov_b32 exec_hi, 0
        ds_write_b128 v9, v[76:79]
        s_mov_b64 exec, -1
        """)
        if first:
            for i in range(4): g(f"v_add_f32 v{64+i}, v{64+i}, v{68+i}")
            for i in range(1, 4):
                m = 0x11111111 << i
                g(f"s_mov_b32 s{S_MB}, {hex(m)}\ns_mov_b32 s{S_MB+1}, {hex(m)}\nv_cndmask_b32 v64, v64, v{64+i}, {s2(S_MB)}")
            g(f"""
            v_mov_b32 v65, v64
            v_mov_b32 v90, 0x3acccccd
            s_nop 0
            v_permlane32_swap_b32 v64, v65
            v_add_f32 v64, v64, v65
            v_mul_f32 v66, v56, v90
            v_mul_f32 v64, v64, v90
            v_fma_f32 v64, -v66, v66, v64
            v_max_f32 v64, 0, v64
            """)
            g.rnd_bf16(64, 64)
            g("v_add_f32 v64, 0x3727c5ac, v64")
            g.rnd_bf16(64, 64)
            g("v_sqrt_f32 v64, v64")
            g.rnd_bf16(90, 64)
            g.rnd_bf16(91, 66)
            g("v_rcp_f32 v88, v90\nv_sub_f32 v86, 0, v91")
        g("s_waitcnt lgkmcnt(0)\ns_barrier")
        self.stamp("csbar" if first else "csbar2")

    def normalise(self, quads, csoff):
        g = self
        g(f"v_lshlrev_b32 v9, 4, v3\nv_add_u32 v9, {L_CS + csoff}, v9")
        for i, (r, col) in enumerate(quads):
            g(f"ds_read_b128 {v(160+4*i,4)}, v9 offset:{col*4}")
        for i, (r, col) in enumerate(quads):
            g(f"s_waitcnt lgkmcnt({len(quads)-1-i})")
            for hh in range(2):
                g(f"v_pk_fma_f32 {v(r+2*hh,2)}, {v(160+4*i+2*hh,2)}, v[86:87], {v(r+2*hh,2)} op_sel_hi:[1,0,1]")
            for hh in range(2):
                g(f"v_pk_mul_f32 {v(r+2*hh,2)}, {v(r+2*hh,2)}, v[88:89] op_sel_hi:[1,0]")

    def softmax(self, H0, H1):
        g = self
        P = (92, 108)
        L = 0x3fb8aa3b
        g(f"v_mov_b32 v124, {hex(L)}\nv_mov_b32 v126, {hex(L | 0x80000000)}")
        for H in (H0, H1): g(f"v_mov_b32 v{H+10}, 0\nv_mov_b32 v{H+11}, 0")
        E = (160, 180)
        MX = (200, 204)
        for a in range(2):
            p, mx = P[a], MX[a]
            g(f"""
            v_max3_f32 v{mx}, v{p}, v{p+1}, v{p+2}
            v_min3_f32 v{mx+1}, v{p}, v{p+1}, v{p+2}
            v_max3_f32 v{mx}, v{mx}, v{p+3}, v{p+4}
            v_min3_f32 v{mx+1}, v{mx+1}, v{p+3}, v{p+4}
            v_max3_f32 v{mx}, v{mx}, v{p+5}, v{p+6}
            v_min3_f32 v{mx+1}, v{mx+1}, v{p+5}, v{p+6}
            v_max3_f32 v{mx}, v{mx}, v{p+7}, v{p+8}
            v_min3_f32 v{mx+1}, v{mx+1}, v{p+7}, v{p+8}
            v_max_f32 v{mx}, v{mx}, v{p+9}
            v_min_f32 v{mx+1}, v{mx+1}, v{p+9}
            v_sub_f32 v{mx+1}, 0, v{mx+1}
            """)
        for a in range(2): g(f"v_permlane32_swap_b32 v{MX[a]}, v{MX[a]+1}")
        for a in range(2): g(f"v_max_f32 v{MX[a]}, v{MX[a]}, v{MX[a]+1}")
        for a in range(2): g(f"v_mov_b32 v{MX[a]+1}, v{MX[a]}")
        for a in range(2): g(f"v_permlane32_swap_b32 v{MX[a]}, v{MX[a]+1}")
        for a in range(2):
            mx = MX[a]
            g(f"v_mul_f32 v{mx+2}, v{mx+1}, v126\nv_mul_f32 v{mx}, v{mx}, v126")
        for a in range(2):
            p, mx, e = P[a], MX[a], E[a]
            for i in range(5):
                g(f"v_pk_fma_f32 {v(e+2*i,2)}, {v(p+2*i,2)}, v[124:125], {v(mx,2)} op_sel_hi:[1,0,0]")
                g(f"v_pk_fma_f32 {v(e+10+2*i,2)}, {v(p+2*i,2)}, v[126:127], {v(mx+2,2)} op_sel_hi:[1,0,0]")
        self.stamp("sm_pre" + str(H0) + getattr(self, "smtag", ""))
        for a in range(2):
            for i in range(20): g(f"v_exp_f32 v{E[a]+i}, v{E[a]+i}")
        self.stamp("sm_exp" + getattr(self, "smtag", ""))
        SM = (208, 214)
        for a in range(2):
            e, sm = E[a], SM[a]
            g(f"v_pk_add_f32 {v(sm,2)}, {v(e,2)}, {v(e+2,2)}\nv_pk_add_f32 {v(sm+2,2)}, {v(e+10,2)}, {v(e+12,2)}")
        for i in range(2, 5):
            for a in range(2):
                e, sm = E[a], SM[a]
                g(f"v_pk_add_f32 {v(sm,2)}, {v(sm,2)}, {v(e+2*i,2)}\nv_pk_add_f32 {v(sm+2,2)}, {v(sm+2,2)}, {v(e+10+2*i,2)}")
        for a in range(2):
            sm = SM[a]
            g(f"v_add_f32 v{sm}, v{sm}, v{sm+1}\nv_add_f32 v{sm+1}, v{sm+2}, v{sm+3}")
        for a in range(2): g(f"v_permlane32_swap_b32 v{SM[a]}, v{SM[a]+1}")
        for a in range(2): g(f"v_add_f32 v{SM[a]}, v{SM[a]}, v{SM[a]+1}")
        for a in range(2): g(f"v_mov_b32 v{SM[a]+2}, v{SM[a]}")
        for a in range(2): g(f"v_permlane32_swap_b32 v{SM[a]}, v{SM[a]+2}")
        for a in range(2): g(f"v_rcp_f32 v{SM[a]}, v{SM[a]}\nv_rcp_f32 v{SM[a]+2}, v{SM[a]+2}")
        for a, H in ((0, H0), (1, H1)):
            e, sm = E[a], SM[a]
            for i in range(5):
                g(f"v_pk_mul_f32 {v(e+2*i,2)}, {v(e+2*i,2)}, {v(sm,2)} op_sel_hi:[1,0]")
                g(f"v_pk_mul_f32 {v(e+10+2*i,2)}, {v(e+10+2*i,2)}, {v(sm+2,2)} op_sel_hi:[1,0]")
            for i in range(10):
                g(f"v_cvt_pk_bf16_f32 v{H+i}, v{e+2*i}, v{e+2*i+1}")

    def norm_reads(self, quads, csoff, r0):
        g = self
        for i, (r, col) in enumerate(quads):
            g(f"ds_read_b128 {v(r0+4*i,4)}, v9 offset:{col*4}")

    def norm_apply(self, quads, r0, after):
        g = self
        for i, (r, col) in enumerate(quads):
            g(f"s_waitcnt lgkmcnt({len(quads)-1-i+after})")
            for hh in range(2):
                g(f"v_pk_fma_f32 {v(r+2*hh,2)}, {v(r0+4*i+2*hh,2)}, v[86:87], {v(r+2*hh,2)} op_sel_hi:[1,0,1]")
            for hh in range(2):
                g(f"v_pk_mul_f32 {v(r+2*hh,2)}, {v(r+2*hh,2)}, v[88:89] op_sel_hi:[1,0]")

    def featmap_mfma(self, PK):
        g = self
        g(f"v_mfma_f32_32x32x16_bf16 v[92:107], v[140:143], {v(PK,4)}, 0")
        g(f"v_mfma_f32_32x32x16_bf16 v[108:123], v[146:149], {v(PK+4,4)}, 0")
        g(f"v_mfma_f32_32x32x8_bf16 v[92:107], v[144:145], {v(PK+4,2)}, v[92:107]")
        g(f"v_mfma_f32_32x32x8_bf16 v[108:123], v[150:151], {v(PK+8,2)}, v[108:123]")

    def k_epilogue(self):
        g = self
        self.stats_and_colsum(True)
        PK, PV = 244, 210
        kq = [(16+4*j, 8*j) for j in range(4)] + [(32, 32)]
        vq = [(36, 40), (40, 48), (44, 56), (48, 64), (52, 72)]
        def part1():
            g(f"v_lshlrev_b32 v9, 4, v3\nv_add_u32 v9, {L_CS}, v9")
            self.norm_reads(kq, 0, 160); self.norm_reads(vq, 0, 180)
            self.norm_apply(kq, 160, 5)
            for i in range(10): g(f"v_cvt_pk_bf16_f32 v{PK+i}, v{16+2*i}, v{16+2*i+1}")
            self.stamp("k_cvt")
            self.featmap_mfma(PK)
            self.norm_apply(vq, 180, 0)
            self.stamp("v_norm")
            self.dump("kv_norm", list(range(16, 64)) + [86, 88, 90, 91])
            g(f"""
            v_accvgpr_read_b32 v11, a192
            v_mov_b32 v14, 0x3f80
            v_mov_b32 v15, 0
            v_lshl_add_u32 v12, v3, 4, v11
            v_lshl_add_u32 v13, v3, 3, v11
            ds_write_b64 v12, v[14:15] offset:{34*8}
            """)
            for i, (r, col) in enumerate(vq):
                g(f"v_cvt_pk_bf16_f32 v{PV+2*i}, v{r}, v{r+1}\nv_cvt_pk_bf16_f32 v{PV+2*i+1}, v{r+2}, v{r+3}")
                g(f"ds_write_b64 v11, {v(PV+2*i,2)} offset:{192 + 16*i}")
            self.stamp("prefm")
            self.softmax(220, 232)
            self.stamp("postfm")
        self.interleave([(x, "wq") for x in self.wq_groups()], self.capture(part1))
        self.dump("phik", list(range(220, 244)))
        for a, H in ((0, 220), (1, 232)):
            for st in range(3):
                g(f"ds_write_b128 v13, {v(H+4*st,4)} offset:{a*96 + st*32}")
        g("v_accvgpr_read_b32 v160, a193\nv_accvgpr_read_b32 v161, a194\nv_accvgpr_read_b32 v9, a195")
        g(f"v_cmp_gt_u32 vcc, 21, v2\ns_and_b32 s{S_T1}, s{S_WAVE}, 1\ns_mov_b64 {s2(S_MA)}, vcc")
        g.vmwait("wq")
        g("s_waitcnt lgkmcnt(0)\ns_barrier")
        self.stamp("Tbar")
        A0, B0 = 164, 196
        for ks in range(8):
            for rd in range(2):
                g(f"ds_read_b64_tr_b16 {v(A0+4*ks+2*rd,2)}, v160 offset:{(16*ks+rd)*336}")
                g(f"ds_read_b64_tr_b16 {v(B0+4*ks+2*rd,2)}, v161 offset:{(16*ks+rd)*336}")
            if ks >= 2:
                k = ks - 2
                g("s_waitcnt lgkmcnt(8)")
                cin = "0" if k == 0 else "v[92:107]"
                g(f"v_mfma_f32_32x32x16_bf16 v[92:107], {v(A0+4*k,4)}, {v(B0+4*k,4)}, {cin}")
        g("s_waitcnt lgkmcnt(4)")
        g(f"v_mfma_f32_32x32x16_bf16 v[92:107], {v(A0+24,4)}, {v(B0+24,4)}, v[92:107]")
        g("s_waitcnt lgkmcnt(0)")
        g(f"v_mfma_f32_32x32x16_bf16 v[92:107], {v(A0+28,4)}, {v(B0+28,4)}, v[92:107]")
        g(f"""
        s_cmp_lg_u32 s{S_T1}, 0
        s_cbranch_scc1 L_kvft1
        s_mov_b64 exec, {s2(S_MA)}     ; HZ_SKIP_BEGIN
        buffer_store_dwordx4 v[92:95], v9, {srd(SRD_WS)}, s{S_KVS} offen sc1
        buffer_store_dwordx4 v[96:99], v9, {srd(SRD_WS)}, s{S_KVS} offen offset:672 sc1
        buffer_store_dwordx4 v[100:103], v9, {srd(SRD_WS)}, s{S_KVS} offen offset:1344 sc1
        buffer_store_dwordx4 v[104:107], v9, {srd(SRD_WS)}, s{S_KVS} offen offset:2016 sc1
        s_branch L_kvdone              ; HZ_SKIP_END
L_kvft1:
        s_and_b32 s{S_MA}, s{S_MA}, 0x1fffff      ; HZ_SKIP_BEGIN
        s_mov_b32 s{S_MA+1}, 0
        s_mov_b64 exec, {s2(S_MA)}
        buffer_store_dwordx4 v[92:95], v9, {srd(SRD_WS)}, s{S_KVS} offen offset:2688 sc1
        buffer_store_dwordx4 v[96:99], v9, {srd(SRD_WS)}, s{S_KVS} offen offset:3024 sc1   ; HZ_SKIP_END
L_kvdone:
        s_mov_b64 exec, -1
        """)
        self.stamp("kvstore")

    def mark(self, name):
        for e in self.exp:
            if e.startswith("probe:"):
                _, a, b, k = e.split(":")
                ins = "s_memtime" if k.startswith("c") else "s_memrealtime"
                if name == a: self(f"{ins} s[86:87]")
                if name == b: self(f"{ins} s[88:89]")

    def skew_record(self):
        if "skew" not in self.exp: return
        self(f"""
        s_add_u32 s100, s2, 8
        s_and_b32 s100, s100, 0xf0
        s_cmp_lg_u32 s100, 0
        s_cbranch_scc1 L_noskew
        s_cmp_lg_u32 s{S_WAVE}, 0
        s_cbranch_scc1 L_noskew
        s_not_b32 s100, s98
        v_mov_b32 v9, 8
        v_mov_b32 v10, s100
        v_mov_b32 v11, 12
        v_mov_b32 v12, s98
        s_mov_b64 exec, 1
        buffer_atomic_umax v10, v9, {srd(SRD_DBG)}, 0 offen sc1
        buffer_atomic_umax v12, v11, {srd(SRD_DBG)}, 0 offen sc1
        s_mov_b64 exec, -1
L_noskew:
        """)

    def skew_spin(self):
        if "skew" not in self.exp: return
        self(f"""
        v_mov_b32 v9, 8
        buffer_load_dwordx2 v[10:11], v9, {srd(SRD_DBG)}, 0 offen sc1
        s_waitcnt vmcnt(0)
        v_readfirstlane_b32 s92, v10
        v_readfirstlane_b32 s93, v11
        s_not_b32 s92, s92
        s_sub_u32 s92, s93, s92
        s_mul_i32 s92, s92, 4
        s_memrealtime s[90:91]
        s_waitcnt lgkmcnt(0)
        s_add_u32 s92, s92, s90
L_skewspin:
        s_memrealtime s[90:91]
        s_waitcnt lgkmcnt(0)
        s_sub_u32 s93, s92, s90
        s_cmp_gt_i32 s93, 0
        s_cbranch_scc1 L_skewspin
        """)

    def probe_spin(self):
        for e in self.exp:
            if e.startswith("probe:"):
                _, a, b, k = e.split(":")
                self(f"""
                s_memrealtime s[90:91]
                s_waitcnt lgkmcnt(0)
                s_sub_u32 s92, s88, s86
                {f"s_lshr_b32 s92, s92, {k[1:]}" if k.startswith("c") else f"s_mul_i32 s92, s92, {k}"}
                s_add_u32 s92, s92, s90
L_probe:
                s_memrealtime s[90:91]
                s_waitcnt lgkmcnt(0)
                s_sub_u32 s93, s92, s90
                s_cmp_gt_i32 s93, 0
                s_cbranch_scc1 L_probe
                """)

    def dbg_span(self, word, invert):
        if "span" not in self.exp: return
        g = self
        lab = f"L_span{word}"
        g(f"""
        s_and_b32 s100, s2, 15
        s_cmp_lg_u32 s100, 0
        s_cbranch_scc1 {lab}
        s_cmp_lg_u32 s{S_WAVE}, 0
        s_cbranch_scc1 {lab}
        s_memrealtime s[100:101]
        s_waitcnt lgkmcnt(0)
        {"s_not_b32 s100, s98" if invert else "s_nop 0"}
        v_mov_b32 v9, {word*4}
        v_mov_b32 v10, s100
        s_mov_b64 exec, 1
        buffer_atomic_umax v10, v9, {srd(SRD_DBG)}, 0 offen sc1
        s_mov_b64 exec, -1
{lab}:
        """)

    def finish(self):
        g = self
        self.mark("end")
        self.probe_spin()
        self.skew_spin()
        self.dbg_span(3, False)
        if self.stamps:
            g("s_waitcnt lgkmcnt(0)")
            self.flush_stamps()
            g(f"""
            s_lshl_b32 s{S_T0}, s2, 2
            s_add_u32 s{S_T0}, s{S_T0}, s{S_WAVE}
            s_lshl_b32 s{S_T0}, s{S_T0}, 8
            s_add_u32 s{S_T0}, s{S_T0}, {WS_TS}
            v_lshlrev_b32 v9, 2, v1
            buffer_store_dword v255, v9, {srd(SRD_WS)}, s{S_T0} offen
            """)
        g("L_exit:\ns_endpgm\nL_code_end:")

    def pre_k_epilogue(self):
        pass

    def build(self):
        g = self
        self.prologue()
        self.dump("phifrag", list(range(140, 152)))
        self.pass1()
        self.dump("acc1", list(range(16, 84)))
        if self.stop != "pass1":
            self.dbg_span(10, False); self.mark("p1end")
            self.pre_k_epilogue()
            self.k_epilogue()
        if self.stop not in ("pass1", "kv"):
            self.rest()
        self.finish()

    def text(self):
        body, nins = hazard.fix([l.strip() for l in self.a.lines])
        hdr = open("parallel_sum__linear_kernel_hedgehog__moe_arch_mod__prompt.s.ref").read().split("\n")
        top = [l for l in hdr if l.startswith(";") and "@launch" not in l and "Override" not in l and "grid=ceil" not in l]
        out = "\n".join(top) + "\n"
        out += f"; @launch grid=(256,1,1) block=(256,1,1) lds={LDS_SIZE}\n"
        out += '.amdgcn_target "amdgcn-amd-amdhsa--gfx950"\n.text\n' + kernel_header(NAME)
        out += "\n".join("    " + l if not l.endswith(":") else l for l in body if l) + "\n"
        out += f""".section .rodata,"a"
.p2align 6
.amdhsa_kernel {NAME}
  .amdhsa_next_free_vgpr 512
  .amdhsa_next_free_sgpr 102
  .amdhsa_accum_offset 256
  .amdhsa_group_segment_fixed_size 0
  .amdhsa_kernarg_size 96
  .amdhsa_user_sgpr_count 2
  .amdhsa_user_sgpr_kernarg_segment_ptr 1
  .amdhsa_system_sgpr_workgroup_id_x 1
  .amdhsa_float_denorm_mode_32 3
.end_amdhsa_kernel
"""
        return out, nins


if __name__ == "__main__":
    import argparse, json
    import gen_rest
    ap = argparse.ArgumentParser()
    ap.add_argument("-o", default="k.s")
    ap.add_argument("--stop", default=None)
    ap.add_argument("--dump", default="")
    ap.add_argument("--stamps", default="")
    ap.add_argument("--notouch", action="store_true")
    ap.add_argument("--exp", default="")
    args = ap.parse_args()
    G = gen_rest.Full(stop=args.stop, dumps=[d for d in args.dump.split(",") if d], stamps=set(args.stamps.split(",")) if args.stamps else False, touch=not args.notouch, exp=[e for e in args.exp.split(",") if e])
    G.build()
    t, nins = G.text()
    open(args.o, "w").write(t)
    json.dump({"dumps": G.dump_index, "stamps": getattr(G, "stamp_names", [])}, open(args.o + ".json", "w"))
    print("wrote", args.o, "lines", t.count("\n"), "nops inserted", nins)
```

```python
from gen import *

S_RB64, S_CB, S_MU, S_RSEL, S_ROW0 = 20, 21, 22, 23, 12
S_QC = 13
S_WOG, S_WOL = 14, 15
S_WOS = 76
S_YA = 79
S_TAG = 82
S_OWN = 80
S_STA = 81
S_XO = 85
S_KVE, S_KVB = 79, 75
S_KVA, S_OS = 78, 84
CNT_KV, CNT_O, CNT_M = 0, 16, 32
SPIN_LIMIT = 200000

class Full(Gen):
    def poll(self, name, srd_n, vaddr_setup, target, nl=1):
        g = self
        lab = f"L_poll_{name}"
        g(vaddr_setup)
        g(f"s_mov_b32 exec_lo, {(1 << nl) - 1}\ns_mov_b32 exec_hi, 0")
        g(f"""
        s_mov_b32 s74, 0
{lab}:
        buffer_load_dword v10, v9, {srd(srd_n)}, 0 offen sc1
        s_add_u32 s74, s74, 1
        s_cmp_gt_u32 s74, {SPIN_LIMIT}
        s_cbranch_scc1 {lab}_out
        s_waitcnt vmcnt(0)
        v_cmp_ne_u32 vcc, {target}, v10
        s_cbranch_vccnz {lab}
{lab}_out:
        s_waitcnt vmcnt(0)
        s_mov_b64 exec, -1
        """)

    def poll_issue(self, srd_n, vaddr_setup, nl=1):
        g = self
        g(vaddr_setup)
        g(f"s_mov_b32 exec_lo, {(1 << nl) - 1}\ns_mov_b32 exec_hi, 0\nbuffer_load_dword v239, v238, {srd(srd_n)}, 0 offen sc1\ns_mov_b64 exec, -1")

    def poll_finish(self, name, srd_n, target, nl=1):
        g = self
        lab = f"L_poll_{name}"
        g(f"""
        s_mov_b32 exec_lo, {(1 << nl) - 1}
        s_mov_b32 exec_hi, 0
        s_mov_b32 s74, 0
        s_waitcnt vmcnt(0)
        v_cmp_ne_u32 vcc, {target}, v239
        s_cbranch_vccz {lab}_out
{lab}:
        buffer_load_dword v239, v238, {srd(srd_n)}, 0 offen sc1
        s_add_u32 s74, s74, 1
        s_cmp_gt_u32 s74, {SPIN_LIMIT}
        s_cbranch_scc1 {lab}_out
        s_waitcnt vmcnt(0)
        v_cmp_ne_u32 vcc, {target}, v239
        s_cbranch_vccnz {lab}
{lab}_out:
        s_waitcnt vmcnt(0)
        s_mov_b64 exec, -1
        """)

    def signal(self, name, cnt_sgpr_expr, drain=True):
        g = self
        if drain: g("s_waitcnt vmcnt(0)")
        g(f"""
        s_barrier
        s_cmp_lg_u32 s{S_WAVE}, 0
        s_cbranch_scc1 L_nosig_{name}
        """)
        g(cnt_sgpr_expr + " ; HZ_SKIP_BEGIN")
        g(f"""
        s_lshl_b32 s{S_T0}, s{S_T0}, 7
        v_mov_b32 v9, s{S_T0}
        v_mov_b32 v10, 1
        s_mov_b64 exec, 1
        buffer_atomic_add v10, v9, {srd(SRD_WS)}, 0 offen sc1
        s_mov_b64 exec, -1         ; HZ_SKIP_END
L_nosig_{name}:
        """)

    def publish_kv(self):
        g = self
        g(f"""
        s_cmp_lg_u32 s{S_HP}, 0
        s_cbranch_scc1 L_nostats
        s_lshl_b32 s{S_T0}, s{S_RB}, 7       ; HZ_SKIP_BEGIN
        s_lshl_b32 s{S_T1}, s{S_WAVE}, 5
        s_add_u32 s{S_T0}, s{S_T0}, s{S_T1}
        s_lshl_b32 s{S_T0}, s{S_T0}, 3
        s_add_u32 s{S_T0}, s{S_T0}, {WS_STATS}
        v_lshlrev_b32 v9, 3, v2
        v_mov_b32 v10, v91
        v_mov_b32 v11, v90
        s_mov_b32 exec_hi, 0
        buffer_store_dwordx2 v[10:11], v9, {srd(SRD_WS)}, s{S_T0} offen sc1
        s_mov_b64 exec, -1                   ; HZ_SKIP_END
L_nostats:
        """)
        g(f"""
        v_mul_u32_u24 v9, 6554, v1
        v_lshrrev_b32 v9, 16, v9
        v_mul_u32_u24 v10, 10, v9
        v_sub_u32 v10, v1, v10
        v_mul_u32_u24 v11, 1280, v9
        v_lshl_add_u32 v11, v10, 7, v11
        s_lshl_b32 s{S_T0}, s{S_SLOT}, 2
        s_add_u32 s{S_T0}, s{S_T0}, s{S_WAVE}
        s_mul_i32 s{S_T0}, s{S_T0}, {5*1280}
        s_mov_b32 exec_hi, 0x3ffff
        buffer_load_dword v159, v11, {srd(SRD_WO)}, s{S_T0} offen
        s_mov_b64 exec, -1
        """)

    def kv_signal(self):
        g = self
        g("s_waitcnt vmcnt(1)")
        g(f"""
        v_readfirstlane_b32 s{S_TAG}, v75
        s_cmp_lg_u32 s{S_TAG}, 0
        s_cbranch_scc1 L_isready
        v_mov_b32 v9, 240              ; HZ_SKIP_BEGIN
        s_mov_b32 s74, 0
L_poll_ready:
        buffer_load_dword v10, v9, {srd(SRD_DBG)}, 0 offen sc1
        s_add_u32 s74, s74, 1
        s_waitcnt vmcnt(0)
        v_readfirstlane_b32 s{S_TAG}, v10
        s_cmp_gt_u32 s74, {SPIN_LIMIT}
        s_cbranch_scc1 L_isready
        s_cmp_eq_u32 s{S_TAG}, 0
        s_cbranch_scc1 L_poll_ready    ; HZ_SKIP_END
L_isready:
        """)
        self.signal("kv", f"s_add_u32 s{S_T0}, s{S_HP}, {CNT_KV}", drain=False)
        self.stamp("kvsig")

    def moe_roles(self):
        g = self
        g(f"""
        s_lshr_b32 s{S_T0}, s{S_XCD}, 1
        s_lshr_b32 s{S_T1}, s{S_SLOT}, 3
        s_add_u32 s{S_T0}, s{S_T0}, s{S_T1}
        s_lshr_b32 s{S_T1}, s{S_SLOT}, 4
        s_lshl_b32 s{S_T1}, s{S_T1}, 3
        s_and_b32 s{S_T2}, s{S_SLOT}, 7
        s_add_u32 s{S_T1}, s{S_T1}, s{S_T2}
        s_mul_i32 s{S_MU}, s{S_XCD}, 14
        s_add_u32 s{S_MU}, s{S_MU}, s{S_T1}
        s_cmp_lt_u32 s{S_T1}, 14
        s_cselect_b32 s{S_MU}, s{S_MU}, 255
        s_bitcmp1_b32 s{S_T0}, 0
        s_cselect_b32 s{S_MU}, 255, s{S_MU}
        s_lshr_b32 s{S_T0}, s{S_SLOT}, 3
        s_lshl_b32 s{S_T1}, s{S_XCD}, 2
        s_add_u32 s{S_RB64}, s{S_T0}, s{S_T1}
        s_and_b32 s{S_CB}, s{S_SLOT}, 7
        s_lshl_b32 s{S_ROW0}, s{S_RB64}, 6
        s_lshl_b32 s{S_T0}, s{S_WAVE}, 4
        s_add_u32 s{S_ROW0}, s{S_ROW0}, s{S_T0}
        s_mul_i32 s{S_T1}, s{S_CB}, 160
        s_mov_b32 s{S_WOG}, s{S_T1}
        s_mul_i32 s{S_T0}, s{S_ROW0}, 1280
        s_add_u32 s{S_XO}, s{S_T0}, s{S_T1}
        s_lshl_b32 s{S_T0}, s{S_RB}, 1
        s_lshr_b32 s{S_T1}, s{S_WAVE}, 1
        s_add_u32 s{S_T0}, s{S_T0}, s{S_T1}
        s_mul_i32 s{S_T0}, s{S_T0}, 81920
        s_and_b32 s{S_T1}, s{S_WAVE}, 1
        s_mul_i32 s{S_T1}, s{S_T1}, 40960
        s_add_u32 s{S_T0}, s{S_T0}, s{S_T1}
        s_lshr_b32 s{S_T1}, s{S_HP}, 2
        s_mul_i32 s{S_T1}, s{S_T1}, 5120
        s_add_u32 s{S_T0}, s{S_T0}, s{S_T1}
        s_and_b32 s{S_T1}, s{S_HP}, 3
        s_lshl_b32 s{S_T1}, s{S_T1}, 8
        s_add_u32 s{S_T0}, s{S_T0}, s{S_T1}
        s_add_u32 s{S_OS}, s{S_T0}, {WS_O}
        """)

    WD = 160
    def moe_load_block(self, k):
        g = self
        lab = f"L_nomoeld{k}"
        g(f"s_cmp_ge_u32 s{S_MU}, 108\ns_cbranch_scc1 {lab}")
        if k == 0:
            g(f"""
            v_lshrrev_b32 v134, 1, v1                ; HZ_SKIP_BEGIN
            v_mul_u32_u24 v134, 3456, v134
            v_and_b32 v10, 1, v1
            v_lshl_add_u32 v134, v10, 4, v134
            v_lshlrev_b32 v135, 3, v0
            """)
        else:
            g("s_nop 0 ; HZ_SKIP_BEGIN")
        g(f"""
        s_and_b32 s{S_T0}, s{S_MU}, 3
        s_add_u32 s{S_T0}, s{S_T0}, {k}
        s_cmp_ge_u32 s{S_T0}, 5
        s_cselect_b32 s{S_T1}, 5, 0
        s_sub_u32 s{S_T3}, s{S_T0}, s{S_T1}
        s_mul_i32 s{S_T1}, s{S_WAVE}, 5
        s_add_u32 s{S_T3}, s{S_T3}, s{S_T1}
        s_mul_i32 s{S_T2}, s{S_T3}, {32*3456}
        s_lshl_b32 s{S_T0}, s{S_MU}, 5
        s_add_u32 s{S_T2}, s{S_T2}, s{S_T0}
        s_lshl_b32 s{S_T1}, s{S_T3}, 10
        s_add_u32 m0, s{S_T1}, {L_G}
        s_mul_i32 s{S_T0}, s{S_MU}, {16*1280}
        buffer_load_dwordx4 v134, {srd(SRD_G)}, s{S_T2} offen lds
        s_add_u32 m0, s{S_T1}, {L_U}
        v_cmp_gt_u32 vcc, 160, v0
        buffer_load_dwordx4 v134, {srd(SRD_U)}, s{S_T2} offen lds
        s_and_saveexec_b64 {s2(S_MA)}, vcc
        s_cbranch_execz {lab}_x
        """)
        us = list(range(16))[[0, 3, 6, 9, 12][k]:[3, 6, 9, 12, 16][k]]
        for u in us:
            g(f"s_add_u32 s{S_T1}, s{S_T0}, {u*1280}\nbuffer_load_dwordx2 {ac(self.WD+2*u,2)}, v135, {srd(SRD_D)}, s{S_T1} offen")
        g(f"{lab}_x:\ns_mov_b64 exec, -1 ; HZ_SKIP_END\n{lab}:")

    def p2_reads(self, n):
        i, ks = divmod(n, 4); b = n % 3
        base = 128 + (i & 1)
        out = []
        for t in range(2):
            for rd in range(2):
                out.append(f"ds_read_b64_tr_b16 {v(92+12*b+4*t+2*rd,2)}, v{base} offset:{(16*ks+rd)*80 + 64*t}")
        for rd in range(2):
            out.append(f"ds_read_b64_tr_b16 {v(160+4*b+2*rd,2)}, v{130 + (i & 1)} offset:{(16*ks+rd)*80}")
        return out

    def p2_base(self, i):
        r = i & 1
        return [f"v_add_u32 v{128+r}, s{S_QC}, v132", f"v_add_u32 v{130+r}, s{S_QC}, v133",
                f"s_add_u32 s{S_QC}, s{S_QC}, 5120", f"s_cmp_eq_u32 s{S_QC}, 51200", f"s_cselect_b32 s{S_QC}, 0, s{S_QC}"]

    def pass2(self):
        g = self
        g(f"""
        v_bfe_u32 v9, v1, 2, 2
        v_lshlrev_b32 v9, 1, v9
        v_add_u32 v9, v9, v3
        v_lshlrev_b32 v9, 1, v9
        v_mul_u32_u24 v9, 80, v9
        v_bfe_u32 v10, v1, 4, 1
        v_and_b32 v11, 3, v1
        v_lshl_add_u32 v10, v10, 2, v11
        v_lshl_add_u32 v9, v10, 3, v9
        v_add_u32 v132, {L_WQ}, v9
        s_lshl_b32 s{S_T0}, s{S_WAVE}, 6
        v_add_u32 v133, s{S_T0}, v132
        s_mul_i32 s{S_QC}, s{S_C0}, 5120
        """)
        for n in range(5): g(f"v_accvgpr_read_b32 v{152+n}, a{200+n}")
        self.wog = self.wo_groups()
        early = self.wog[:10]
        for x in self.p2_base(0): g(x)
        for x in self.p2_reads(0): g(x)
        for x in self.p2_reads(1): g(x)
        for n in range(40):
            i, ks = divmod(n, 4); b = n % 3
            if ks == 1 and i < 9:
                for x in self.p2_base(i + 1): g(x)
            g("s_waitcnt lgkmcnt(0)" if n == 39 else "s_waitcnt lgkmcnt(6)")
            rd = self.p2_reads(n + 2) if n + 2 < 40 else []
            XP = ac(4*n, 4)
            WF = lambda t: 92 + 12*b + 4*t
            cin = lambda r, k: "0" if n == 0 else v(r, k)
            g(f"v_mfma_f32_32x32x16_bf16 v[16:31], {v(WF(0),4)}, {XP}, {cin(16,16)}")
            for x in rd[0:3]: g(x)
            g(f"v_mfma_f32_32x32x16_bf16 v[32:47], {v(WF(1),4)}, {XP}, {cin(32,16)}")
            for x in rd[3:6]: g(x)
            g(f"v_mfma_f32_4x4x4_16b_bf16 v[76:79], {v(160+4*b,2)}, v[84:85], {cin(76,4)}")
            g(f"v_mfma_f32_4x4x4_16b_bf16 v[80:83], {v(160+4*b+2,2)}, v[84:85], {cin(80,4)}")
            if n == 12: self.kv_signal()
            if n in (13, 18, 23, 28, 33): self.moe_load_block((n - 13) // 5)
            if n >= 18 and n % 2 == 0 and early:
                for x in early.pop(0): g(x)
            if n == 36: self.kv_poll_issue()
            if n in (9, 19, 29): self.stamp(f"p2_{n}")
        while early:
            for x in early.pop(0): g(x)
        self.stamp("p2end")

    def q_epilogue_a(self):
        g = self
        self.smtag = "q"
        for n in range(3):
            g(f"v_accvgpr_read_b32 v{134+n}, a{205+n}\nv_accvgpr_read_b32 v{68+n}, a{211+n}")
        self.stats_and_colsum(False)
        quads = [(16+4*j, 8*j) for j in range(4)] + [(32, 32)]
        g(f"v_lshlrev_b32 v9, 4, v3\nv_add_u32 v9, {L_CS + 512}, v9")
        self.norm_reads(quads, 512, 160)
        self.norm_apply(quads, 160, 0, scale=False)
        PK = 244
        for i in range(10):
            g(f"v_cvt_pk_bf16_f32 v{PK+i}, v{16+2*i}, v{16+2*i+1}")
        self.stamp("q_cvt")

    def q_epilogue_b(self):
        g = self
        self.featmap_mfma(244)
        for i in range(4): g(f"v_accvgpr_read_b32 v{56+i}, a{196+i}")
        self.softmax(220, 232)
        self.stamp("qdone")

    def xres_groups(self):
        XR, ST = self.XR, self.ST
        grp = []
        for n in range(3):
            grp.append([f"buffer_load_dwordx4 {v(XR+4*n,4)}, v{134+n}, {srd(SRD_X)}, s{S_XO} offen"])
            pre = [f"s_lshl_b32 s{S_T0}, s{S_ROW0}, 3", f"s_add_u32 s{S_STA}, s{S_T0}, {WS_STATS}"] if n == 0 else []
            grp.append(pre + [f"v_lshlrev_b32 v67, 3, v{68+n}", f"buffer_load_dwordx2 {v(ST+2*n,2)}, v67, {srd(SRD_WS)}, s{S_STA} offen sc1"])
        return grp

    def q_epilogue(self):
        kg = self.kv_load_groups()
        self.interleave([(x, "kvp") for x in kg[:8]], self.capture(self.q_epilogue_a))
        self.interleave([(x, "xres") for x in self.xres_groups()] + [(x, "kvp") for x in kg[8:]], self.capture(self.q_epilogue_b))
        self.dump("phiq", list(range(220, 244)))
        self.vmwait("xres")
        self.interleave([(x, "wo") for x in self.wog[10:18]], self.capture(self.residual))
        self.stamp("resid")

    def kv_poll_issue(self):
        g = self
        g(f"""
        s_add_u32 s{S_T0}, s{S_HP}, {CNT_KV}
        s_lshl_b32 s{S_T0}, s{S_T0}, 7
        v_mov_b32 v238, s{S_T0}
        v_cmp_eq_u32 vcc, 1, v1
        v_cndmask_b32 v238, v238, {CNT_KV * 128}, vcc
        v_lshlrev_b32 v240, 6, v1
        s_mov_b32 exec_lo, 15
        s_mov_b32 exec_hi, 0
        buffer_load_dword v241, v240, {srd(SRD_DBG)}, 0 offen sc1
        s_mov_b32 exec_lo, 3
        buffer_load_dword v239, v238, {srd(SRD_WS)}, 0 offen sc1
        s_mov_b64 exec, -1
        """)

    def kv_wait(self):
        g = self
        self.poll_finish("kv", SRD_WS, 16, nl=2)
        self.stamp("kvseen")
        g(f"""
        s_mov_b32 exec_lo, 15
        s_mov_b32 exec_hi, 0
        v_cmp_ne_u32 vcc, 64, v241
        s_mov_b64 exec, -1
        s_cbranch_vccz L_rmaxok
        """)
        self.poll("rmax", SRD_DBG, "v_lshlrev_b32 v9, 6, v1 ; HZ_SKIP_BEGIN", 64, nl=4)
        g(f"""
        s_nop 0 ; HZ_SKIP_END
L_rmaxok:
        s_mul_i32 s{S_KVA}, s{S_HP}, {16*KVP_SZ}
        s_add_u32 s{S_KVA}, s{S_KVA}, {WS_KVP}
        s_add_u32 s{S_KVE}, s{S_KVA}, {16*KVP_SZ}
        s_mov_b32 s{S_KVB}, s{S_KVA}
        s_and_b32 s{S_T0}, s{S_SLOT}, 7
        s_mul_i32 s{S_T0}, s{S_T0}, {2*KVP_SZ}
        s_add_u32 s{S_KVA}, s{S_KVA}, s{S_T0}
        v_lshlrev_b32 v64, 4, v0
        s_mul_i32 s{S_T0}, s{S_WAVE}, {41*16}
        s_add_u32 s{S_T0}, s{S_T0}, 4096
        v_lshl_add_u32 v65, v1, 4, s{S_T0}
        s_mov_b32 s{S_MB}, -1
        s_mov_b32 s{S_MB+1}, 0x1ff
        v_lshlrev_b32 v66, 5, v1
        v_add_u32 v66, {WS_RMAX}, v66
        """)

    def kv_load_groups(self):
        grp = []
        for p in range(16):
            grp.append([f"buffer_load_dwordx4 {ac(4*p,4)}, v64, {srd(SRD_WS)}, s{S_KVA} offen sc1", f"s_mov_b64 exec, {s2(S_MB)}",
                        ])
            grp[-1] = [f"buffer_load_dwordx4 {ac(4*p,4)}, v64, {srd(SRD_WS)}, s{S_KVA} offen sc1"]
            grp.append([f"s_mov_b64 exec, {s2(S_MB)}", f"buffer_load_dwordx4 {ac(64+4*p,4)}, v65, {srd(SRD_WS)}, s{S_KVA} offen sc1",
                        "s_mov_b64 exec, -1", f"s_add_u32 s{S_KVA}, s{S_KVA}, {KVP_SZ}",
                        f"s_cmp_eq_u32 s{S_KVA}, s{S_KVE}", f"s_cselect_b32 s{S_KVA}, s{S_KVB}, s{S_KVA}"])
        grp.append([f"buffer_load_dwordx4 v[48:51], v66, {srd(SRD_WS)}, 0 offen sc1"])
        grp.append([f"buffer_load_dwordx4 v[52:55], v66, {srd(SRD_WS)}, 0 offen offset:16 sc1"])
        return grp

    def argmax(self):
        g = self
        g(f"""
        v_cmp_gt_f32 vcc, v50, v48
        v_cndmask_b32 v48, v48, v50, vcc
        v_cndmask_b32 v49, v49, v51, vcc
        v_cmp_gt_f32 vcc, v52, v48
        v_cndmask_b32 v48, v48, v52, vcc
        v_cndmask_b32 v49, v49, v53, vcc
        v_cmp_gt_f32 vcc, v54, v48
        v_cndmask_b32 v48, v48, v54, vcc
        v_cndmask_b32 v49, v49, v55, vcc
        v_mov_b32 v50, v48
        """)
        for ctl in ("row_shr:1 row_mask:0xf bank_mask:0xf", "row_shr:2 row_mask:0xf bank_mask:0xf",
                    "row_shr:4 row_mask:0xf bank_mask:0xf", "row_shr:8 row_mask:0xf bank_mask:0xf",
                    "row_bcast:15 row_mask:0xa bank_mask:0xf", "row_bcast:31 row_mask:0xc bank_mask:0xf"):
            g(f"v_max_f32_dpp v50, v50, v50 {ctl}")
        g(f"""
        v_readlane_b32 s{S_RSEL}, v50, 63
        v_cmp_eq_f32 vcc, s{S_RSEL}, v48
        s_ff1_i32_b64 s{S_T0}, vcc
        s_max_i32 s{S_T0}, s{S_T0}, 0
        v_readlane_b32 s{S_IDX}, v49, s{S_T0}
        s_nop 0
        s_and_b32 s{S_IDX}, s{S_IDX}, 2047
        """)

    def moe_a(self):
        g = self
        WD = self.WD
        g("v_rcp_f32 v67, v67")
        for d in range(5):
            g(f"""
            v_lshlrev_b32 v168, 16, v{60+d}
            v_and_b32 v169, 0xffff0000, v{60+d}
            v_sub_f32 v168, v168, v66
            v_sub_f32 v169, v169, v66
            v_cvt_pk_bf16_f32 v168, v168, v169
            v_lshlrev_b32 v169, 16, v168
            v_and_b32 v168, 0xffff0000, v168
            v_mul_f32 v169, v169, v67
            v_mul_f32 v168, v168, v67
            v_cvt_pk_bf16_f32 v{60+d}, v169, v168
            """)
        g(f"""
        s_mul_i32 s{S_T0}, s{S_WAVE}, 1280
        s_add_u32 s{S_T0}, s{S_T0}, {L_XS}
        v_mul_u32_u24 v9, 20, v1
        v_add_u32 v9, s{S_T0}, v9
        ds_write_b32 v9, v60
        ds_write_b32 v9, v61 offset:4
        ds_write_b32 v9, v62 offset:8
        ds_write_b32 v9, v63 offset:12
        ds_write_b32 v9, v64 offset:16
        v_bfe_u32 v9, v1, 2, 2
        v_lshl_add_u32 v9, v3, 3, v9
        s_mul_i32 s{S_T1}, s{S_WAVE}, 160
        v_add_u32 v9, s{S_T1}, v9
        v_lshlrev_b32 v9, 5, v9
        v_and_b32 v10, 3, v1
        v_lshl_add_u32 v9, v10, 3, v9
        v_bfe_u32 v10, v1, 4, 1
        v_mul_u32_u24 v10, {L_U - L_G}, v10
        v_add_u32 v9, v9, v10
        v_add_u32 v9, {L_G}, v9
        s_mul_i32 s{S_T1}, s{S_WAVE}, 320
        s_add_u32 s{S_T0}, s{S_T0}, s{S_T1}
        v_lshlrev_b32 v10, 4, v3
        v_add_u32 v10, s{S_T0}, v10
        s_waitcnt lgkmcnt(0)
        """)
        def rd(ks):
            A = 32 + 8*ks
            g(f"""
            ds_read_b64_tr_b16 {v(A,2)}, v9 offset:{(16*ks)*32}
            ds_read_b64_tr_b16 {v(A+2,2)}, v9 offset:{(16*ks+4)*32}
            ds_read_b128 {v(A+4,4)}, v10 offset:{32*ks}
            """)
        for ks in range(4): rd(ks)
        for ks in range(10):
            if ks + 4 < 10:
                g("s_waitcnt lgkmcnt(9)"); rd(ks + 4) if False else None
                g(f"v_mfma_f32_32x32x16_bf16 v[16:31], {v(32+8*ks,4)}, {v(36+8*ks,4)}, {'0' if ks == 0 else 'v[16:31]'}")
                rd(ks + 4)
            else:
                g(f"s_waitcnt lgkmcnt({3*(9-ks)})")
                g(f"v_mfma_f32_32x32x16_bf16 v[16:31], {v(32+8*ks,4)}, {v(36+8*ks,4)}, v[16:31]")
        g(f"""
        s_lshl_b32 s{S_T0}, s{S_WAVE}, 7
        s_add_u32 s{S_T0}, s{S_T0}, {L_HP}
        v_lshlrev_b32 v9, 4, v3
        v_add_u32 v9, s{S_T0}, v9
        s_mov_b32 exec_lo, 1
        s_mov_b32 exec_hi, 1
        ds_write_b128 v9, v[16:19]
        ds_write_b128 v9, v[20:23] offset:32
        ds_write_b128 v9, v[24:27] offset:64
        ds_write_b128 v9, v[28:31] offset:96
        s_mov_b64 exec, -1
        s_waitcnt lgkmcnt(0)
        """)

    def moe_b(self):
        g = self
        WD = self.WD
        g(f"""
        v_and_b32 v9, 15, v1
        v_lshlrev_b32 v9, 2, v9
        v_add_u32 v9, {L_HP}, v9
        ds_read_b32 v160, v9
        ds_read_b32 v161, v9 offset:128
        ds_read_b32 v162, v9 offset:256
        ds_read_b32 v163, v9 offset:384
        ds_read_b32 v164, v9 offset:64
        ds_read_b32 v165, v9 offset:192
        ds_read_b32 v166, v9 offset:320
        ds_read_b32 v167, v9 offset:448
        s_waitcnt lgkmcnt(0)
        v_add_f32 v160, v160, v161
        v_add_f32 v162, v162, v163
        v_add_f32 v164, v164, v165
        v_add_f32 v166, v166, v167
        v_add_f32 v160, v160, v162
        v_add_f32 v164, v164, v166
        """)
        g.rnd_bf16(160, 160); g.rnd_bf16(164, 164)
        g(f"""
        v_mul_f32 v161, 0xbfb8aa3b, v160
        v_exp_f32 v161, v161
        v_add_f32 v161, 1.0, v161
        v_rcp_f32 v161, v161
        v_mul_f32 v160, v160, v161
        """)
        g.rnd_bf16(160, 160)
        g("v_mul_f32 v160, v160, v164")
        g.rnd_bf16(160, 160)
        g("""
        v_mov_b32 v161, v160
        s_nop 1
        v_mov_b32_dpp v161, v160 row_shl:1 row_mask:0xf bank_mask:0xf
        s_nop 1
        v_cvt_pk_bf16_f32 v160, v160, v161
        """)
        for i in range(4): g(f"v_mov_b32 v{16+i}, 0")
        g("s_mov_b32 s74, 0x05040100\nv_mov_b32 v26, s74\ns_mov_b32 s74, 0x07060302\nv_mov_b32 v27, s74")
        for p in range(8):
            a0, a1 = WD + 4*p, WD + 4*p + 2
            g(f"""
            v_readlane_b32 s74, v160, {2*p}
            v_accvgpr_read_b32 v20, a{a0}
            v_accvgpr_read_b32 v21, a{a0+1}
            v_accvgpr_read_b32 v22, a{a1}
            v_accvgpr_read_b32 v23, a{a1+1}
            v_perm_b32 v24, v22, v20, v26
            v_perm_b32 v25, v22, v20, v27
            v_perm_b32 v28, v23, v21, v26
            v_perm_b32 v29, v23, v21, v27
            v_dot2c_f32_bf16 v16, s74, v24
            v_dot2c_f32_bf16 v17, s74, v25
            v_dot2c_f32_bf16 v18, s74, v28
            v_dot2c_f32_bf16 v19, s74, v29
            """)
        g("s_nop 2")

    def kv_addresses(self):
        g = self
        for k, (gi, out1, out2) in enumerate(((0, 196, 197), (256, 198, 199))):
            if k == 0: g("v_mov_b32 v9, v0")
            else: g(f"s_mul_i32 s{S_T0}, s{S_WAVE}, 41\ns_add_u32 s{S_T0}, s{S_T0}, 256\nv_add_u32 v9, s{S_T0}, v1")
            g(f"""
            v_cmp_lt_u32 vcc, 209, v9
            v_cndmask_b32 v10, 0, 1, vcc
            v_mul_u32_u24 v11, 210, v10
            v_sub_u32 v9, v9, v11
            v_mul_u32_u24 v11, 3121, v9
            v_lshrrev_b32 v11, 16, v11
            v_mul_u32_u24 v12, 21, v11
            v_sub_u32 v12, v9, v12
            v_lshrrev_b32 v13, 1, v11
            v_and_b32 v14, 1, v11
            v_cmp_lt_u32 vcc, 7, v11
            v_subrev_u32 v15, 4, v11
            v_cndmask_b32 v13, v13, v15, vcc
            v_cndmask_b32 v14, v14, 0, vcc
            v_lshrrev_b32 v15, 1, v13
            v_and_b32 v13, 1, v13
            v_mul_u32_u24 v15, 1024, v15
            v_lshl_add_u32 v15, v13, 9, v15
            v_lshl_add_u32 v15, v14, 3, v15
            v_mul_u32_u24 v13, 3072, v10
            v_add_u32 v15, v15, v13
            v_add_u32 v15, {L_KVF}, v15
            v_lshlrev_b32 v13, 2, v10
            v_sub_u32 v13, v12, v13
            v_add_u32 v14, 20, v13
            v_cmp_gt_i32 vcc, 0, v13
            v_cndmask_b32 v13, v13, v14, vcc
            v_subrev_u32 v14, 16, v13
            v_lshrrev_b32 v60, 3, v13
            v_and_b32 v61, 7, v13
            v_lshrrev_b32 v62, 1, v14
            v_and_b32 v63, 1, v14
            v_add_u32 v63, 8, v63
            v_cmp_lt_u32 vcc, 15, v13
            v_cndmask_b32 v60, v60, v62, vcc
            v_cndmask_b32 v61, v61, v63, vcc
            v_lshrrev_b32 v62, 2, v61
            v_lshlrev_b32 v62, 3, v62
            v_lshl_add_u32 v62, v60, 2, v62
            v_and_b32 v61, 3, v61
            v_add_u32 v62, v62, v61
            v_cmp_eq_u32 vcc, 20, v12
            v_cndmask_b32 v63, v62, 22, vcc
            v_cndmask_b32 v62, v62, 18, vcc
            v_lshl_add_u32 v62, v62, 4, v15
            v_lshl_add_u32 v63, v63, 4, v15
            v_accvgpr_write_b32 a{out1}, v62
            v_accvgpr_write_b32 a{out2}, v63
            """)

    def kv_reduce_and_o(self):
        g = self
        for n in range(3):
            g(f"v_accvgpr_read_b32 v{137+n}, a{208+n}\nv_accvgpr_read_b32 v{140+n}, a{211+n}\nv_accvgpr_read_b32 v{143+n}, a{214+n}")
        g.vmwait("kvp")
        self.stamp("kvdata")
        g(f"s_cmp_ge_u32 s{S_MU}, 108\ns_cbranch_scc1 L_noxrow\ns_nop 0 ; HZ_SKIP_BEGIN")
        self.argmax()
        g(f"""
        v_mul_u32_u24 v9, 20, v1
        s_mul_i32 s{S_T1}, s{S_IDX}, 1280
        buffer_load_dwordx4 v[60:63], v9, {srd(SRD_X)}, s{S_T1} offen
        buffer_load_dword v64, v9, {srd(SRD_X)}, s{S_T1} offen offset:16
        s_lshl_b32 s{S_T1}, s{S_IDX}, 3
        s_add_u32 s{S_T1}, s{S_T1}, {WS_STATS}
        v_mov_b32 v9, 0
        buffer_load_dwordx2 v[66:67], v9, {srd(SRD_WS)}, s{S_T1} offen sc1   ; HZ_SKIP_END
L_noxrow:
        """)
        def reduce():
            for base, acc in ((0, 16), (64, 92)):
                for e in range(4): g(f"v_accvgpr_read_b32 v{acc+e}, a{base+e}")
                for p in range(1, 16):
                    t = acc + 4 + 4 * (p & 1)
                    for e in range(4): g(f"v_accvgpr_read_b32 v{t+e}, a{base+4*p+e}")
                    g(f"v_pk_add_f32 {v(acc,2)}, {v(acc,2)}, {v(t,2)}\nv_pk_add_f32 {v(acc+2,2)}, {v(acc+2,2)}, {v(t+2,2)}")
        self.interleave([(x, "wo") for x in self.wog[18:]], self.capture(reduce))
        self.stamp("r_sum")
        g(f"""
        v_cvt_pk_bf16_f32 v16, v16, v17
        v_cvt_pk_bf16_f32 v17, v18, v19
        v_cvt_pk_bf16_f32 v92, v92, v93
        v_cvt_pk_bf16_f32 v93, v94, v95
        ds_write_b64 v56, v[16:17]
        ds_write_b64 v57, v[16:17]
        s_mov_b64 exec, {s2(S_MB)}
        ds_write_b64 v58, v[92:93]
        ds_write_b64 v59, v[92:93]
        s_mov_b64 exec, -1
        s_waitcnt lgkmcnt(0)
        s_barrier
        v_lshlrev_b32 v9, 4, v1
        v_add_u32 v9, {L_KVF}, v9
        """)
        self.stamp("r_bar")
        for a in range(2):
            for t in range(3):
                g(f"ds_read_b128 {v(92+12*a+4*t,4)}, v9 offset:{a*3072 + t*1024}")
        self.dump("kvf", list(range(92, 116)))
        for a, (acc, H) in enumerate(((16, 220), (32, 232))):
            g(f"s_waitcnt lgkmcnt({3 - 3*a})")
            for t in range(3):
                g(f"v_mfma_f32_32x32x16_bf16 {v(acc,16)}, {v(92+12*a+4*t,4)}, {v(H+4*t,4)}, {'0' if t == 0 else v(acc,16)}")
        self.dump("num", list(range(16, 48)))
        g("v_accvgpr_read_b32 v10, a217\nv_accvgpr_read_b32 v11, a218\nv_mov_b32 v12, 0x358637bd")
        for a, (acc, P) in enumerate(((16, 160), (32, 166))):
            g(f"v_add_f32 v{acc+10}, v{acc+10}, v12\nv_rcp_f32 v{acc+10}, v{acc+10}")
        for a, (acc, P) in enumerate(((16, 160), (32, 166))):
            for i in range(5):
                g(f"v_pk_mul_f32 {v(acc+2*i,2)}, {v(acc+2*i,2)}, {v(acc+10,2)} op_sel_hi:[1,0]")
            for i in range(5):
                g(f"v_cvt_pk_bf16_f32 v{P+i}, v{acc+2*i}, v{acc+2*i+1}")
        self.dump("o", list(range(160, 165)) + list(range(166, 171)))
        g(f"""
        v_mov_b32 v172, v164
        v_mov_b32 v173, v170
        s_nop 1
        v_permlane32_swap_b32 v172, v173
        buffer_store_dwordx4 v[160:163], v10, {srd(SRD_WS)}, s{S_OS} offen sc1
        buffer_store_dwordx2 v[172:173], v11, {srd(SRD_WS)}, s{S_OS} offen offset:2048 sc1
        buffer_store_dwordx4 v[166:169], v10, {srd(SRD_WS)}, s{S_OS} offen offset:3072 sc1
        """)
        self.stamp("o_store")
        g(f"s_cmp_lt_u32 s{S_MU}, 108\ns_cbranch_scc1 L_moea\ns_nop 0 ; HZ_SKIP_BEGIN")
        self.argmax()
        g("s_branch L_moeadone ; HZ_SKIP_END\nL_moea:\ns_waitcnt vmcnt(10) ; HZ_SKIP_BEGIN")
        self.moe_a()
        g("s_nop 0 ; HZ_SKIP_END\nL_moeadone:")
        self.stamp("o_wo8")
        g("s_waitcnt vmcnt(0)")
        self.stamp("o_drain")
        self.signal("o", f"s_add_u32 s{S_T0}, s{S_RB}, {CNT_O}", drain=False)
        self.stamp("osig")

    XR, RS, ST = 16, 176, 28
    NA = 12
    YQ = [100, 104, 108, 112, 116, 120, 124, 146, 150]
    def wo_groups(self):
        grp = []
        for j in (3, 4, 0, 1, 2):
            for n in range(5):
                gl = []
                if n == 0:
                    gl += [f"s_add_u32 s{S_T3}, s{S_WAVE}, {4*j}", f"s_mul_i32 s{S_WOL}, s{S_T3}, 5120",
                           f"s_mul_i32 s{S_T4}, s{S_T3}, 13108", f"s_lshr_b32 s{S_T4}, s{S_T4}, 16",
                           f"s_mul_i32 s{S_T4}, s{S_T4}, {120*1280}", f"s_mul_i32 s{S_T3}, s{S_T3}, {8*1280}",
                           f"s_add_u32 s{S_T3}, s{S_T3}, s{S_T4}", f"s_add_u32 s{S_WOS}, s{S_T3}, s{S_WOG}"]
                gl += [f"s_add_u32 m0, s{S_WOL}, {L_WO + n*1024}", "s_nop 0",
                       f"buffer_load_dwordx4 v{152+n}, {srd(SRD_WO)}, s{S_WOS} offen lds"]
                grp.append(gl)
        return grp

    def c_addresses(self):
        g = self
        for n in range(5):
            g(f"""
            v_add_u32 v9, {64*n}, v1
            v_mul_u32_u24 v10, 6554, v9
            v_lshrrev_b32 v10, 16, v10
            v_mul_u32_u24 v11, 10, v10
            v_sub_u32 v11, v9, v11
            v_bfe_u32 v12, v10, 3, 1
            v_bfe_u32 v13, v10, 2, 1
            v_lshl_add_u32 v12, v12, 1, v13
            v_mul_u32_u24 v12, 40, v12
            v_lshrrev_b32 v13, 4, v10
            v_lshl_add_u32 v12, v13, 2, v12
            v_and_b32 v13, 3, v10
            v_add_u32 v12, v12, v13
            v_mul_u32_u24 v12, 1280, v12
            v_lshl_add_u32 v12, v11, 4, v12
            v_accvgpr_write_b32 a{200+n}, v12
            """)
            if n < 3:
                g(f"""
                v_min_u32 v10, 15, v10
                v_mul_u32_u24 v12, 1280, v10
                v_lshl_add_u32 v12, v11, 4, v12
                v_accvgpr_write_b32 a{205+n}, v12
                v_mul_u32_u24 v12, 336, v10
                v_lshl_add_u32 v12, v11, 5, v12
                v_accvgpr_write_b32 a{208+n}, v12
                v_accvgpr_write_b32 a{211+n}, v10
                v_lshlrev_b32 v12, 5, v11
                v_accvgpr_write_b32 a{214+n}, v12
                """)

    def o_addresses(self):
        g = self
        g("""
        v_lshrrev_b32 v9, 4, v2
        v_mul_u32_u24 v9, 20480, v9
        v_and_b32 v10, 15, v2
        v_lshl_add_u32 v9, v10, 4, v9
        v_lshl_add_u32 v10, v3, 10, v9
        v_lshl_add_u32 v11, v3, 3, v9
        v_accvgpr_write_b32 a217, v10
        v_accvgpr_write_b32 a218, v11
        """)

    def residual(self):
        g = self
        XR, RS, ST = self.XR, self.RS, self.ST
        for n in range(3):
            xr, rs, st = XR + 4*n, RS + 8*n, ST + 2*n
            g(f"v_rcp_f32 v{st+1}, v{st+1}")
            for d in range(4):
                g(f"""
                v_lshlrev_b32 v10, 16, v{xr+d}
                v_and_b32 v11, 0xffff0000, v{xr+d}
                v_sub_f32 v12, v10, v{st}
                v_sub_f32 v13, v11, v{st}
                v_cvt_pk_bf16_f32 v12, v12, v13
                v_lshlrev_b32 v13, 16, v12
                v_and_b32 v12, 0xffff0000, v12
                v_mul_f32 v13, v13, v{st+1}
                v_mul_f32 v12, v12, v{st+1}
                v_cvt_pk_bf16_f32 v12, v13, v12
                v_lshlrev_b32 v13, 16, v12
                v_and_b32 v12, 0xffff0000, v12
                v_add_f32 v{rs+2*d}, v13, v10
                v_add_f32 v{rs+2*d+1}, v12, v11
                """)

    def y_gather(self):
        g = self
        Y = self.YQ[0]
        g(f"""
        s_cmp_ge_u32 s{S_OWN}, 64
        s_cbranch_scc1 L_noown2
        s_mov_b32 s74, 0                       ; HZ_SKIP_BEGIN
        s_mov_b32 s{S_T2}, 0x0c0c0400
        s_mov_b32 s{S_T3}, 0x04000c0c
        v_mov_b32 v215, s{S_T2}
        v_mov_b32 v216, s{S_T3}
        s_sub_u32 s{S_T4}, 0, s{S_TAG}
        s_mov_b32 exec_hi, 0x0fffffff
L_ycheck:
        s_waitcnt vmcnt(0)
        v_mov_b32 v217, 0
        """)
        for j in range(9):
            q = self.YQ[j]
            g(f"""
            v_perm_b32 v218, v{q+1}, v{q}, v215
            v_perm_b32 v219, v{q+3}, v{q+2}, v216
            v_add3_u32 v218, v218, v219, s{S_T4}
            v_or_b32 v217, v217, v218
            """)
        g(f"""
        v_cmp_ne_u32 vcc, 0, v217
        s_cbranch_vccz L_yok
        s_add_u32 s74, s74, 1
        s_cmp_gt_u32 s74, {SPIN_LIMIT}
        s_cbranch_scc1 L_yok
        s_mov_b32 s{S_T0}, s{S_YA}
        """)
        for j in range(9):
            g(f"buffer_load_dwordx4 {v(self.YQ[j],4)}, v214, {srd(SRD_WS)}, s{S_T0} offen sc1\ns_add_u32 s{S_T0}, s{S_T0}, {3*2560}")
        g("""
        s_branch L_ycheck
L_yok:
        s_mov_b64 exec, -1
        """)
        for j in range(1, 9):
            q = self.YQ[j]
            g(f"v_pk_add_f32 {v(Y,2)}, {v(Y,2)}, {v(q,2)}\nv_pk_add_f32 {v(Y+2,2)}, {v(Y+2,2)}, {v(q+2,2)}")
        g(f"""
        s_mov_b32 exec_hi, 0x0fffffff
        ds_write_b128 v204, {v(Y,4)}
        s_mov_b64 exec, -1
        """)
        g("s_nop 0 ; HZ_SKIP_END\nL_noown2:")

    def phase_c(self):
        g = self
        XR, RS, ST = self.XR, self.RS, self.ST
        self.stamp("argmax")
        g(f"s_cmp_ge_u32 s{S_MU}, 108\ns_cbranch_scc1 L_wodone")
        g("s_nop 0 ; HZ_SKIP_BEGIN")
        self.moe_b()
        g(f"""
        s_movk_i32 s{S_T1}, 0xff
        s_lshr_b32 s{S_T2}, s{S_TAG}, 8
        s_lshr_b32 s{S_T3}, s{S_TAG}, 16
        s_lshr_b32 s{S_T4}, s{S_TAG}, 24
        v_mov_b32 v20, s{S_TAG}
        v_mov_b32 v21, s{S_T2}
        v_mov_b32 v22, s{S_T3}
        v_mov_b32 v23, s{S_T4}
        v_bfi_b32 v16, s{S_T1}, v20, v16
        v_bfi_b32 v17, s{S_T1}, v21, v17
        v_bfi_b32 v18, s{S_T1}, v22, v18
        v_bfi_b32 v19, s{S_T1}, v23, v19
        s_mul_i32 s{S_T0}, s{S_MU}, 2560
        s_add_u32 s{S_T0}, s{S_T0}, {WS_Y}
        v_lshlrev_b32 v9, 4, v0
        v_cmp_gt_u32 vcc, 160, v0
        s_and_saveexec_b64 {s2(S_MA)}, vcc
        s_cbranch_execz L_noy
        buffer_store_dwordx4 v[16:19], v9, {srd(SRD_WS)}, s{S_T0} offen sc1
L_noy:
        s_mov_b64 exec, -1
        s_nop 0 ; HZ_SKIP_END
L_wodone:
        """)
        self.stamp("moedone"); self.mark("moedone")
        g(f"""
        v_bfe_u32 v10, v1, 5, 1
        v_lshlrev_b32 v10, 3, v10
        v_bfe_u32 v11, v1, 4, 1
        v_lshl_add_u32 v10, v11, 2, v10
        v_bfe_u32 v11, v1, 2, 2
        v_add_u32 v10, v10, v11
        v_mul_u32_u24 v10, 160, v10
        v_and_b32 v11, 3, v1
        v_lshl_add_u32 v10, v11, 3, v10
        v_add_u32 v236, {L_WO}, v10
        v_add_u32 v237, {L_WO + 10*5120}, v10
        """)
        NA = self.NA
        def wo_reads(ks):
            base = 236 + ks // 10
            out = []
            for ct in range(5):
                for rd in range(2):
                    dst = ac(20*ks + 4*ct + 2*rd, 2) if ks < NA else v(40 + 20*(ks % 3) + 4*ct + 2*rd, 2)
                    out.append(f"ds_read_b64_tr_b16 {dst}, v{base} offset:{(ks % 10)*5120 + rd*2560 + ct*32}")
            return out
        self.poll_issue(SRD_WS, f"s_lshr_b32 s{S_T0}, s{S_RB64}, 1\ns_add_u32 s{S_T0}, s{S_T0}, {CNT_O}\ns_lshl_b32 s{S_T0}, s{S_T0}, 7\nv_mov_b32 v238, s{S_T0}")
        for ks in range(NA + 2):
            for x in wo_reads(ks): g(x)
            if ks < NA + 1: g("s_waitcnt lgkmcnt(5)")
        g(f"""
        s_lshl_b32 s{S_T0}, s{S_RB64}, 6
        s_sub_u32 s{S_OWN}, s{S_IDX}, s{S_T0}
        s_cmp_ge_u32 s{S_OWN}, 64
        s_cbranch_scc1 L_noown0
        v_min_u32 v10, 19, v1                  ; HZ_SKIP_BEGIN
        v_lshlrev_b32 v10, 3, v10
        s_mul_i32 s{S_T0}, s{S_IDX}, 1280
        s_mul_i32 s{S_T1}, s{S_CB}, 160
        s_add_u32 s{S_T0}, s{S_T0}, s{S_T1}
        buffer_load_dwordx2 v[200:201], v10, {srd(SRD_X)}, s{S_T0} offen
        s_lshl_b32 s{S_T0}, s{S_IDX}, 3
        s_add_u32 s{S_T0}, s{S_T0}, {WS_STATS}
        v_mov_b32 v10, 0
        buffer_load_dwordx2 v[202:203], v10, {srd(SRD_WS)}, s{S_T0} offen sc1   ; HZ_SKIP_END
L_noown0:
        """)
        self.poll_finish("o", SRD_WS, 16)
        self.stamp("oseen"); self.dbg_span(8, False); self.mark("oseen")
        g(f"""
        s_mul_i32 s{S_T0}, s{S_RB64}, 81920
        s_mul_i32 s{S_T1}, s{S_WAVE}, 20480
        s_add_u32 s{S_T0}, s{S_T0}, s{S_T1}
        s_add_u32 s{S_T0}, s{S_T0}, {WS_O}
        v_lshlrev_b32 v9, 4, v1
        """)
        self.vm = []
        regs_o = list(range(100, 128, 4)) + list(range(146, 174, 4)) + [220, 224, 228, 232, 240, 244]
        assert len(regs_o) == 20, len(regs_o)
        def oload(ks):
            g(f"buffer_load_dwordx4 {v(regs_o[ks],4)}, v9, {srd(SRD_WS)}, s{S_T0} offen sc1\ns_add_u32 s{S_T0}, s{S_T0}, 1024")
            g.vmi(f"o{ks}")
        AHEAD = 10
        for ks in range(AHEAD): oload(ks)
        g(f"s_cmp_ge_u32 s{S_OWN}, 64\ns_cbranch_scc1 L_noownp")
        g(f"""
        v_mov_b32 v205, s{S_RSEL}              ; HZ_SKIP_BEGIN
        """)
        g.rnd_bf16(205, 205)
        g(f"""
        v_mul_f32 v205, 0xbfb8aa3b, v205
        v_exp_f32 v205, v205
        v_rcp_f32 v203, v203
        v_add_f32 v205, 1.0, v205
        v_rcp_f32 v205, v205
        v_lshlrev_b32 v206, 16, v200
        v_and_b32 v207, 0xffff0000, v200
        v_lshlrev_b32 v208, 16, v201
        v_and_b32 v209, 0xffff0000, v201
        """)
        g.rnd_bf16(205, 205)
        for e in range(4):
            g(f"v_sub_f32 v{206+e}, v{206+e}, v202")
            g.rnd_bf16(206+e, 206+e)
            g(f"v_mul_f32 v{206+e}, v{206+e}, v203")
            g.rnd_bf16(206+e, 206+e)
        g("s_nop 0 ; HZ_SKIP_END\nL_noownp:")
        self.stamp("c_issued")
        for ks in range(20):
            if ks == 0: g("s_waitcnt lgkmcnt(0)")
            elif ks >= NA: g("s_waitcnt lgkmcnt(5)" if ks < 18 else ("s_waitcnt lgkmcnt(10)" if ks < 19 else "s_waitcnt lgkmcnt(0)"))
            if ks < 16: g.vmwait(f"o{ks}")
            if ks == 11:
                g(f"s_cmp_ge_u32 s{S_OWN}, 64\ns_cbranch_scc1 L_noown1\ns_nop 0 ; HZ_SKIP_BEGIN")
                g(f"""
                v_mul_u32_u24 v10, 3277, v1
                v_lshrrev_b32 v10, 16, v10
                v_mul_u32_u24 v11, 20, v10
                v_sub_u32 v11, v1, v11
                v_mul_u32_u24 v214, 2560, v10
                v_lshl_add_u32 v214, v11, 4, v214
                s_mul_i32 s{S_T0}, s{S_CB}, 320
                s_mul_i32 s{S_T1}, s{S_WAVE}, {27*2560}
                s_add_u32 s{S_T0}, s{S_T0}, s{S_T1}
                s_add_u32 s{S_YA}, s{S_T0}, {WS_Y}
                s_mov_b32 s{S_T0}, s{S_YA}
                s_mov_b32 exec_hi, 0x0fffffff
                """)
                for j in range(9):
                    g(f"buffer_load_dwordx4 {v(self.YQ[j],4)}, v214, {srd(SRD_WS)}, s{S_T0} offen sc1\ns_add_u32 s{S_T0}, s{S_T0}, {3*2560}")
                g(f"""
                s_mov_b64 exec, -1
                v_mul_u32_u24 v12, 320, v10
                v_lshl_add_u32 v12, v11, 4, v12
                s_mul_i32 s{S_T1}, s{S_WAVE}, 960
                s_add_u32 s{S_T1}, s{S_T1}, {L_YR}
                v_add_u32 v204, s{S_T1}, v12
                s_nop 0 ; HZ_SKIP_END
L_noown1:
                """)
            if ks == 16:
                g("s_waitcnt vmcnt(0)")
                self.y_gather()
            if ks in (0, 5, 10, 15): self.stamp(f"c_o{ks}")
            rd = wo_reads(ks + 2) if NA <= ks < 18 else []
            for ct in range(5):
                cin = "0" if ks == 0 else v(16+4*ct, 4)
                A = ac(20*ks + 4*ct, 4) if ks < NA else v(40 + 20*(ks % 3) + 4*ct, 4)
                g(f"v_mfma_f32_16x16x32_bf16 {v(16+4*ct,4)}, {A}, {v(regs_o[ks],4)}, {cin}")
                for x in rd[2*ct:2*ct+2]: g(x)
            if ks + AHEAD < 20: oload(ks + AHEAD)
        self.stamp("cmfma"); self.mark("cmfma")
        g(f"s_cmp_ge_u32 s{S_OWN}, 64\ns_cbranch_scc1 L_noown3\ns_nop 0 ; HZ_SKIP_BEGIN")
        g(f"""
        v_min_u32 v10, 19, v1
        v_lshlrev_b32 v10, 4, v10
        v_add_u32 v10, {L_YR}, v10
        s_waitcnt lgkmcnt(0)
        s_barrier
        """)
        Y = 40
        for j in range(12):
            g(f"ds_read_b128 {v(Y+4*j,4)}, v10 offset:{320*j}")
        g("s_waitcnt lgkmcnt(0)")
        for j in range(1, 12):
            g(f"v_pk_add_f32 {v(Y,2)}, {v(Y,2)}, {v(Y+4*j,2)}\nv_pk_add_f32 {v(Y+2,2)}, {v(Y+2,2)}, {v(Y+4*j+2,2)}")
        for e in range(4):
            g.rnd_bf16(Y+e, Y+e)
            g(f"v_mul_f32 v{Y+e}, v{Y+e}, v205")
            g.rnd_bf16(Y+e, Y+e)
            g(f"v_add_f32 v{Y+e}, v{Y+e}, v{206+e}")
            g.rnd_bf16(Y+e, Y+e)
            g(f"v_sub_f32 v{210+e}, v{Y+e}, v{206+e}")
        g("s_nop 0 ; HZ_SKIP_END\nL_noown3:")
        g(f"""
        s_mul_i32 s{S_T0}, s{S_WAVE}, 5376
        s_add_u32 s{S_T0}, s{S_T0}, {L_OST}
        v_and_b32 v9, 15, v1
        v_mul_u32_u24 v9, 336, v9
        v_lshrrev_b32 v10, 4, v1
        v_lshl_add_u32 v9, v10, 4, v9
        v_add_u32 v9, s{S_T0}, v9
        """)
        for ct in range(5): g(f"ds_write_b128 v9, {v(16+4*ct,4)} offset:{64*ct}")
        for n in range(3): g(f"v_add_u32 v{10+n}, s{S_T0}, v{137+n}")
        g(f"""
        s_waitcnt lgkmcnt(0)
        s_sub_u32 s{S_T4}, s{S_IDX}, s{S_ROW0}
        s_cmp_ge_u32 s{S_T4}, 16
        s_cbranch_scc1 L_norow
        s_mul_i32 s{S_T4}, s{S_T4}, 336            ; HZ_SKIP_BEGIN
        s_add_u32 s{S_T4}, s{S_T4}, s{S_T0}
        v_lshl_add_u32 v9, v1, 4, s{S_T4}
        s_mov_b32 exec_lo, 0xfffff
        s_mov_b32 exec_hi, 0
        ds_read_b128 v[40:43], v9
        s_waitcnt lgkmcnt(0)
        v_pk_add_f32 v[40:41], v[40:41], v[210:211]
        v_pk_add_f32 v[42:43], v[42:43], v[212:213]
        ds_write_b128 v9, v[40:43]
        s_waitcnt lgkmcnt(0)
        s_mov_b64 exec, -1                         ; HZ_SKIP_END
L_norow:
        """)
        for n in range(3):
            g(f"ds_read_b128 {v(40+8*n,4)}, v{10+n}\nds_read_b128 {v(44+8*n,4)}, v{10+n} offset:16")
        for n in range(3):
            rs = RS + 8*n
            g(f"s_waitcnt lgkmcnt({4 - 2*n})")
            for e in range(0, 8, 2):
                g(f"v_pk_add_f32 {v(40+8*n+e,2)}, {v(40+8*n+e,2)}, {v(rs+e,2)}")
            for e in range(4):
                g(f"v_cvt_pk_bf16_f32 v{64+4*n+e}, v{40+8*n+2*e}, v{40+8*n+2*e+1}")
            if n == 2: g("s_mov_b32 exec_hi, 0")
            g(f"buffer_store_dwordx4 {v(64+4*n,4)}, v{134+n}, {srd(SRD_OUT)}, s{S_XO} offen")
        g("s_mov_b64 exec, -1")
        self.stamp("end"); self.stamp("clk1", True)

    def rest(self):
        self.publish_kv()
        self.dbg_span(4, False); self.mark("kvsig")
        self.pass2()
        self.kv_wait()
        self.dbg_span(9, False); self.mark("kvseen")
        self.q_epilogue()
        self.dbg_span(5, False)
        self.kv_reduce_and_o()
        self.dbg_span(6, False); self.mark("osig")
        self.phase_c()
```

```python
import sys, re
from asmlib import Asm, kernel_header
import hazard

NAME = "parallel_sum__linear_kernel_hedgehog__moe_arch_mod__prompt_kernel"

WS_CNT   = 0
WS_KVP   = 0x10000
KVP_SZ   = 6784
WS_O     = 0x200000
WS_STATS = 0x500000
WS_RMAX  = 0x508000
WS_Y     = 0x510000
WS_DBG   = 0x800000
WS_TS    = 0x700000
WS_SIZE  = 268435456

SLOT     = 28672
L_WQ     = 0
L_T      = 57344
L_WO     = 0
L_G      = 102400
L_U      = L_G + 20480 + 128
L_OST    = L_G
L_YR     = L_OST + 4 * 5376
L_MISC   = L_U + 20480
L_WPHI   = L_MISC
L_CS     = L_WPHI + 4 * 1664
L_P0     = L_CS + 1024
L_KVF    = L_P0 + 64
L_XS     = L_KVF + 6144
L_HP     = L_XS + 5120
L_END    = L_HP + 640
LDS_SIZE = 163840
assert L_END <= LDS_SIZE, L_END
assert 5 * SLOT <= L_MISC

S_WAVE = 3
SRD_X, SRD_W, SRD_PHI, SRD_WO, SRD_WR, SRD_G, SRD_U, SRD_D, SRD_OUT, SRD_DBG, SRD_WS = range(4, 48, 4)
S_XCD, S_SLOT, S_RB, S_HP = 48, 49, 50, 51
S_XB, S_WB, S_LX, S_LW = 52, 53, 54, 55
S_WM = 56
S_T0, S_T1, S_T2, S_T3, S_T4, S_T5 = 62, 63, 64, 65, 66, 67
S_MA, S_MB = 68, 70
S_C0, S_CC, S_CX, S_CW = 76, 77, 78, 79
S_WQL, S_WQG, S_P0ROW, S_IDX = 80, 81, 82, 83
S_KVS = 75
S_TS = 86

def srd(n): return f"s[{n}:{n+3}]"
def v(b, n=1): return f"v{b}" if n == 1 else f"v[{b}:{b+n-1}]"
def ac(b, n=1): return f"a{b}" if n == 1 else f"a[{b}:{b+n-1}]"
def s2(b): return f"s[{b}:{b+1}]"


class Gen:
    def __init__(self, stop=None, dumps=(), stamps=False, touch=True, exp=()):
        self.touch = touch
        self.dist = 2 if "d2" in exp else 3
        self.exp = set(exp)
        self.a = Asm()
        self.vm = []
        self.stop = stop
        self.dumps = set(dumps)
        self.stamps = stamps
        self.nstamp = 0
        self.pending = []
        self.dump_off = 0
        self.dump_index = {}

    def __call__(self, t):
        self.a(t)
        if self.stamps and self.pending and not getattr(self, "capturing", False) and not self.in_skip(t):
            last = t.strip().split("\n")[-1].strip()
            if last.startswith("s_waitcnt") and "lgkmcnt(0)" in last: self.flush_stamps()

    def in_skip(self, t):
        for l in t.split("\n"):
            if "HZ_SKIP_BEGIN" in l: self.skipdepth = 1
            if "HZ_SKIP_END" in l: self.skipdepth = 0
        return getattr(self, "skipdepth", 0) > 0

    def vmi(self, tag, n=1):
        self.vm += [tag] * n
    def capture(self, fn):
        old, self.a.lines = self.a.lines, []
        self.capturing = True
        fn()
        self.capturing = False
        out, self.a.lines = self.a.lines, old
        return [l.strip() for l in out if l.strip()]

    def atoms(self, lines):
        out, cur, hold = [], [], None
        for l in lines:
            cur.append(l)
            code = l.split(";")[0].strip()
            if hold is None:
                if re.match(r"s_(mov|brev|and_saveexec)\w* (exec|exec_lo|exec_hi)\b", code) or code.startswith("s_and_saveexec"):
                    if not code.endswith("exec, -1"): hold = "exec"
                elif code.startswith("s_cmp"): hold = "label"
            else:
                if hold == "exec" and code == "s_mov_b64 exec, -1": hold = None
                elif hold == "label" and (code.endswith(":") or code.startswith("s_cselect")): hold = None
            if hold is None and not l.endswith(";+"):
                out.append(cur); cur = []
        if cur: out.append(cur)
        return out

    def interleave(self, groups, filler):
        at = self.atoms(filler)
        total = sum(len(a) for a in at)
        done = 0
        for i, (lines, tag) in enumerate(groups):
            for x in lines: self(x)
            self.vmi(tag)
            target = total * (i + 1) // len(groups)
            while at and done < target:
                a = at.pop(0); done += len(a)
                for x in a: self.emit_resolved(x)
        for a in at:
            for x in a: self.emit_resolved(x)

    def emit_resolved(self, x):
        if x.startswith("@VMWAIT "): self.vmwait(x.split()[1])
        elif x.startswith("@STAMP "): self.stamp(x.split()[1])
        else: self(x)

    def vmwait(self, tag):
        if getattr(self, "capturing", False):
            self(f"@VMWAIT {tag}"); return
        last = max(i for i, t in enumerate(self.vm) if t == tag)
        n = len(self.vm) - 1 - last
        assert n <= 63, (tag, n)
        self(f"s_waitcnt vmcnt({n})")
    def vmwait_all(self):
        self("s_waitcnt vmcnt(0)")

    def stamp(self, name, clk=False):
        if not self.stamps: return
        if "all" not in self.stamps and name not in self.stamps: return
        if getattr(self, "capturing", False):
            self(f"@STAMP {name}"); return
        if "cyc" in self.exp: clk = True
        self.stamp_names = getattr(self, "stamp_names", [])
        if name in self.stamp_names: return
        used = {i for i, _ in self.pending}
        free = [i for i in range(8) if i not in used]
        if not free:
            Asm.__call__(self.a, "s_waitcnt lgkmcnt(0)"); self.flush_stamps()
            free = list(range(8))
        i = free[0]
        lane = len(self.stamp_names); assert lane < 63, name
        self.stamp_names.append(name)
        self.pending.append((i, lane))
        Asm.__call__(self.a, f"{'s_memtime' if clk else 's_memrealtime'} {s2(S_TS + 2*i)} ; stamp {name}")

    def flush_stamps(self):
        for i, lane in self.pending:
            Asm.__call__(self.a, f"v_writelane_b32 v255, s{S_TS + 2*i}, {lane}")
        self.pending = []

    def dump(self, name, regs, tmp=250):
        if name not in self.dumps: return
        g = self
        n = len(regs)
        base = WS_DBG + self.dump_off
        self.dump_index[name] = (self.dump_off, n)
        self.dump_off += 256 * 4 * n * 256
        g("s_waitcnt vmcnt(0) lgkmcnt(0)\ns_nop 15\ns_nop 15")
        g(f"s_lshl_b32 s74, s2, 2\ns_add_u32 s74, s74, s{S_WAVE}\ns_mul_i32 s74, s74, {n*256}\ns_add_u32 s74, s74, {base}")
        g(f"v_lshlrev_b32 v{tmp}, 2, v1")
        for i, r in enumerate(regs):
            if isinstance(r, str) and r.startswith("a"):
                g(f"v_accvgpr_read_b32 v{tmp+1}, {r}\ns_nop 1")
                src = f"v{tmp+1}"
            else:
                src = f"v{r}"
            g(f"buffer_store_dword {src}, v{tmp}, {srd(SRD_WS)}, s74 offen")
            g(f"s_add_u32 s74, s74, 256")
            g("s_waitcnt vmcnt(0)")

    def rnd_bf16(self, dst, src):
        self(f"v_cvt_pk_bf16_f32 v{dst}, v{src}, v{src}\nv_lshlrev_b32 v{dst}, 16, v{dst}")

    def prologue(self):
        g = self
        ptrs = [(SRD_X, 0), (SRD_W, 8), (SRD_WR, 40), (SRD_PHI, 16), (SRD_WS, 88), (SRD_DBG, 80),
                (SRD_WO, 24), (SRD_G, 48), (SRD_U, 56), (SRD_D, 64), (SRD_OUT, 72)]
        sizes = {SRD_X: 2621440, SRD_W: 2457600, SRD_WR: 1280, SRD_PHI: 25600, SRD_WS: WS_SIZE, SRD_DBG: 256,
                 SRD_WO: 819200, SRD_G: 2211840, SRD_U: 2211840, SRD_D: 2211840, SRD_OUT: 2621440}
        self.sizes = sizes
        if "span" in self.exp or "skew" in self.exp: g("s_memrealtime s[98:99]")
        self.mark("start")
        g("s_getpc_b64 s[72:73]")
        g("L_pc:")
        for r, off in ptrs[:4]:
            g(f"s_load_dwordx2 {s2(r)}, s[0:1], {off}")
        g(f"""
        s_cmp_ge_u32 s2, 256
        s_cbranch_scc1 L_exit
        v_and_b32 v1, 63, v0
        v_lshrrev_b32 v9, 6, v0
        s_lshr_b32 s{S_SLOT}, s2, 3
        v_readfirstlane_b32 s{S_WAVE}, v9
        s_and_b32 s{S_XCD}, s2, 7
        """)
        g(f"""
        s_lshl_b32 s{S_T0}, s{S_SLOT}, 2
        s_add_u32 s{S_T0}, s{S_T0}, s{S_WAVE}
        s_lshl_b32 s{S_T0}, s{S_T0}, 9
        v_lshl_add_u32 v11, v1, 7, s{S_T0}
        v_cmp_gt_u32 vcc, L_code_end - L_pc, v11
        v_cmp_gt_u32 {s2(S_MA)}, 4, v1
        s_and_b64 vcc, vcc, {s2(S_MA)}
        s_and_saveexec_b64 {s2(S_MA)}, vcc
        s_cbranch_execz L_nopf
        global_load_dword v159, v11, s[72:73]       ; HZ_SKIP_BEGIN HZ_SKIP_END
L_nopf:
        s_mov_b64 exec, -1
        """)
        for r, off in ptrs[4:]:
            g(f"s_load_dwordx2 {s2(r)}, s[0:1], {off}")
        g(f"""
        s_and_b32 s{S_T0}, s{S_XCD}, 1
        s_lshl_b32 s{S_T0}, s{S_T0}, 3
        s_and_b32 s{S_T1}, s{S_SLOT}, 7
        s_add_u32 s{S_RB}, s{S_T0}, s{S_T1}
        s_lshr_b32 s{S_T0}, s{S_XCD}, 1
        s_lshl_b32 s{S_T0}, s{S_T0}, 2
        s_lshr_b32 s{S_T2}, s{S_SLOT}, 3
        s_add_u32 s{S_HP}, s{S_T0}, s{S_T2}
        s_lshl_b32 s{S_T2}, s{S_T2}, 1
        s_add_u32 s{S_T1}, s{S_T1}, s{S_T2}
        s_and_b32 s{S_T1}, s{S_T1}, 7
        s_mul_i32 s{S_T1}, s{S_T1}, 10
        s_lshr_b32 s{S_C0}, s{S_T1}, 3
        {self.rot_extra()}
        v_lshrrev_b32 v9, 3, v1
        v_mul_u32_u24 v9, 1280, v9
        v_and_b32 v11, 7, v1
        v_lshrrev_b32 v15, 4, v1
        v_xor_b32 v11, v11, v15
        v_lshl_add_u32 v4, v11, 4, v9
        v_xor_b32 v11, 4, v11
        v_lshl_add_u32 v5, v11, 4, v9
        v_add_u32 v5, {10240 - 1024}, v5
        v_add_u32 v157, {20480 - 2048}, v4
        v_add_u32 v158, {20480 - 2048}, v5
        s_lshl_b32 s{S_T0}, s{S_RB}, 7
        s_lshl_b32 s{S_T1}, s{S_WAVE}, 5
        s_add_u32 s{S_T1}, s{S_T1}, s{S_T0}
        s_mul_i32 s{S_XB}, s{S_T1}, 1280
        s_mul_i32 s{S_WB}, s{S_WAVE}, {16*3840}
        s_mul_i32 s{S_T1}, s{S_HP}, 80
        s_add_u32 s{S_WB}, s{S_WB}, s{S_T1}
        s_lshl_b32 s{S_LX}, s{S_WAVE}, 12
        s_mul_i32 s{S_LW}, s{S_WAVE}, 3072
        s_add_u32 s{S_LW}, s{S_LW}, 16384
        s_add_u32 s{S_CC}, s{S_XB}, 1280
        s_lshl_b32 s{S_CX}, s{S_C0}, 7
        s_add_u32 s{S_CX}, s{S_CX}, s{S_XB}
        s_mul_i32 s{S_CW}, s{S_C0}, {64*3840}
        s_add_u32 s{S_CW}, s{S_CW}, s{S_WB}
        """)
        for r in (SRD_X, SRD_W):
            g(f"s_mov_b32 s{r+2}, {sizes[r]}\ns_mov_b32 s{r+3}, 0x20000")
        for n in range(3):
            g(f"""
            v_add_u32 v9, {64*n}, v1
            v_mul_u32_u24 v11, 43691, v9
            v_lshrrev_b32 v11, 19, v11
            v_mul_u32_u24 v12, 12, v11
            v_sub_u32 v12, v9, v12
            v_cmp_gt_u32 {s2(S_WM+2*n)}, 10, v12
            v_cmp_gt_u32 vcc, 5, v12
            v_mul_u32_u24 v11, 3840, v11
            v_lshl_add_u32 v11, v12, 4, v11
            v_mov_b32 v13, 2480
            v_add_u32 v14, 1280, v11
            v_add_u32 v11, v13, v11
            v_cndmask_b32 v{6+n}, v11, v14, vcc
            """)
            if n: g(f"v_subrev_u32 v{6+n}, {1024*n}, v{6+n}")
        g("s_waitcnt lgkmcnt(0)")
        self.stamp("start"); self.stamp("clk0", True)
        for r in (SRD_WR, SRD_PHI):
            g(f"s_mov_b32 s{r+2}, {sizes[r]}\ns_mov_b32 s{r+3}, 0x20000")
        P = 160
        nt = " nt" if "nt" in self.exp else ""
        self.nt = nt
        g(f"""
        v_mul_u32_u24 v10, 20, v1
        s_lshl_b32 s{S_T0}, s{S_RB}, 7
        s_lshl_b32 s{S_T1}, s{S_HP}, 3
        s_add_u32 s{S_T0}, s{S_T0}, s{S_T1}
        s_lshl_b32 s{S_T1}, s{S_WAVE}, 1
        s_add_u32 s{S_P0ROW}, s{S_T0}, s{S_T1}
        s_mul_i32 s{S_T4}, s{S_P0ROW}, 1280
        buffer_load_dwordx4 {v(P,4)}, v10, {srd(SRD_X)}, s{S_T4} offen
        buffer_load_dword v{P+4}, v10, {srd(SRD_X)}, s{S_T4} offen offset:16
        buffer_load_dwordx4 {v(P+6,4)}, v10, {srd(SRD_X)}, s{S_T4} offen offset:1280
        buffer_load_dword v{P+10}, v10, {srd(SRD_X)}, s{S_T4} offen offset:1296
        buffer_load_dwordx4 {v(P+12,4)}, v10, {srd(SRD_WR)}, 0 offen
        buffer_load_dword v{P+16}, v10, {srd(SRD_WR)}, 0 offen offset:16
        v_lshlrev_b32 v11, 4, v1
        s_mul_i32 s{S_T0}, s{S_HP}, 1600
        s_mul_i32 s{S_T1}, s{S_WAVE}, 1664
        s_add_u32 m0, s{S_T1}, {L_WPHI}
        s_add_u32 s{S_T4}, s{S_T1}, {L_WPHI + 1024}
        buffer_load_dwordx4 v11, {srd(SRD_PHI)}, s{S_T0} offen lds
        s_mov_b32 m0, s{S_T4}
        s_mov_b32 exec_lo, -1
        s_mov_b32 exec_hi, 15
        s_add_u32 s{S_T0}, s{S_T0}, 1024
        buffer_load_dwordx4 v11, {srd(SRD_PHI)}, s{S_T0} offen lds
        s_mov_b64 exec, -1
        """)
        g.vmi("p0", 6); g.vmi("phi", 2)
        tagged = lambda i: [(x, f"c{i}") for x in self.p1_refill(i)]
        for lines, tag in tagged(0):
            for x in lines: g(x)
            g.vmi(tag)
        self.stamp("c0iss")
        s1, s2_ = self.capture(self.setup1), self.capture(self.setup2)
        p0, pf = self.capture(self.phase0), self.capture(self.phi_frags)
        cut = 260
        rest2 = s2_
        for x in s1: self.emit_resolved(x)
        at = self.atoms(s2_); n = 0; head = [];
        while at and n < cut - len(s1):
            a_ = at.pop(0); n += len(a_); head += a_
        for x in head: self.emit_resolved(x)
        tail = [x for a_ in at for x in a_]
        if self.dist == 3:
            self.interleave(tagged(1), tail + p0)
            self.interleave(tagged(2), pf)
        else:
            self.interleave(tagged(1), tail + p0 + pf)
        self.stamp("filled")

    def rot_extra(self):
        for e in self.exp:
            if e.startswith("rot:"):
                a, b = e.split(":")[1:3]
                return (f"s_lshr_b32 s{S_T2}, s{S_XCD}, 1\ns_mul_i32 s{S_T2}, s{S_T2}, {a}\ns_add_u32 s{S_C0}, s{S_C0}, s{S_T2}\n"
                        f"s_and_b32 s{S_T2}, s{S_XCD}, 1\ns_mul_i32 s{S_T2}, s{S_T2}, {b}\ns_add_u32 s{S_C0}, s{S_C0}, s{S_T2}\n"
                        f"s_mul_i32 s{S_T2}, s{S_C0}, 6554\ns_lshr_b32 s{S_T2}, s{S_T2}, 16\ns_mul_i32 s{S_T2}, s{S_T2}, 10\ns_sub_u32 s{S_C0}, s{S_C0}, s{S_T2}")
        return ""

    def setup1(self):
        g = self
        sizes = self.sizes
        for r in (SRD_WS, SRD_DBG):
            g(f"s_mov_b32 s{r+2}, {sizes[r]}\ns_mov_b32 s{r+3}, 0x20000")
        g(f"""
        s_lshl_b32 s{S_T0}, s{S_WAVE}, 8
        s_add_u32 s{S_T0}, s{S_T0}, s2
        s_cmp_lg_u32 s{S_T0}, 256
        s_cbranch_scc1 L_noinit
        v_lshlrev_b32 v11, 7, v1       ; HZ_SKIP_BEGIN
        v_mov_b32 v12, 0
        buffer_store_dword v12, v11, {srd(SRD_WS)}, 0 offen sc1   ; HZ_SKIP_END
L_noinit:
        """)
        for r in (SRD_WO, SRD_G, SRD_U, SRD_D, SRD_OUT):
            g(f"s_mov_b32 s{r+2}, {sizes[r]}\ns_mov_b32 s{r+3}, 0x20000")
        g(f"""
        v_and_b32 v2, 31, v1
        v_lshrrev_b32 v3, 5, v1
        v_mov_b32 v12, 0x3f80
        v_mov_b32 v13, 0
        v_mov_b32 v14, 0x3f80
        v_mov_b32 v15, 0
        v_lshrrev_b32 v9, 6, v0
        v_mul_u32_u24 v9, {SLOT}, v9
        v_mul_u32_u24 v11, 192, v1
        v_add_u32 v9, v9, v11
        ds_write_b128 v9, v[12:15] offset:{16384 + 160}
        v_add_u32 v11, {4*SLOT}, v11
        ds_write_b128 v11, v[12:15] offset:{16384 + 160}
        v_mov_b32 v16, 0
        v_mov_b32 v17, 0
        v_mov_b32 v18, 0
        v_mov_b32 v19, 0
        v_lshlrev_b32 v20, 4, v0
        v_add_u32 v20, {L_KVF}, v20
        ds_write_b128 v20, v[16:19]
        v_lshlrev_b32 v21, 3, v0
        v_add_u32 v21, {L_KVF + 4096}, v21
        ds_write_b64 v21, v[16:17]
        v_mov_b32 v84, 0x3f803f80
        v_mov_b32 v85, 0x3f803f80
        """)
        g(f"""
        v_lshrrev_b32 v9, 1, v2
        v_and_b32 v9, 7, v9
        v_xor_b32 v9, v9, v3
        v_lshlrev_b32 v9, 4, v9
        v_lshl_add_u32 v9, v2, 7, v9
        v_add_u32 v128, s{S_LX}, v9
        v_xor_b32 v129, 32, v128
        v_xor_b32 v130, 64, v128
        v_xor_b32 v131, 96, v128
        v_add_u32 v132, {3*SLOT}, v128
        v_add_u32 v133, {3*SLOT}, v129
        v_add_u32 v134, {3*SLOT}, v130
        v_add_u32 v135, {3*SLOT}, v131
        v_bfe_u32 v9, v1, 2, 2
        v_lshl_add_u32 v9, v3, 3, v9
        v_mul_u32_u24 v9, 192, v9
        v_bfe_u32 v11, v1, 4, 1
        v_and_b32 v12, 3, v1
        v_lshl_add_u32 v11, v11, 2, v12
        v_lshl_add_u32 v9, v11, 3, v9
        v_add_u32 v136, 16384, v9
        v_add_u32 v137, {16384 + 2*SLOT}, v9
        v_add_u32 v138, {16384 + 4*SLOT}, v9
        s_lshl_b32 s{S_T0}, s{S_WAVE}, 6
        v_add_u32 v72, s{S_T0}, v136
        v_add_u32 v73, s{S_T0}, v137
        v_add_u32 v74, s{S_T0}, v138
        """)

    def setup2(self):
        g = self
        self.moe_roles()
        self.kv_addresses()
        self.c_addresses()
        self.o_addresses()
        self.wq_setup()
        g(f"""
        s_lshl_b32 s{S_T0}, s{S_WAVE}, 5
        v_add_u32 v9, s{S_T0}, v2
        v_mul_u32_u24 v9, 336, v9
        v_add_u32 v9, {L_T}, v9
        v_lshl_add_u32 v9, v3, 3, v9
        v_accvgpr_write_b32 a192, v9
        s_lshr_b32 s{S_T0}, s{S_WAVE}, 1
        s_and_b32 s{S_T4}, s{S_WAVE}, 1
        v_bfe_u32 v9, v1, 2, 2
        v_lshlrev_b32 v9, 1, v9
        v_add_u32 v9, v9, v3
        v_lshlrev_b32 v9, 1, v9
        v_mul_u32_u24 v9, 336, v9
        v_add_u32 v9, {L_T}, v9
        v_bfe_u32 v11, v1, 4, 1
        v_and_b32 v12, 3, v1
        v_lshl_add_u32 v11, v11, 2, v12
        s_mul_i32 s{S_T2}, s{S_T0}, 12
        s_lshl_b32 s{S_T3}, s{S_T4}, 3
        s_add_u32 s{S_T2}, s{S_T2}, s{S_T3}
        v_add_u32 v12, s{S_T2}, v11
        v_lshl_add_u32 v13, v12, 3, v9
        v_accvgpr_write_b32 a193, v13
        s_mul_i32 s{S_T2}, s{S_T0}, 5
        s_add_u32 s{S_T2}, s{S_T2}, 24
        v_add_u32 v12, s{S_T2}, v11
        s_mul_i32 s{S_T3}, s{S_T0}, -3
        s_add_i32 s{S_T3}, s{S_T3}, 37
        v_mov_b32 v13, s{S_T3}
        v_cmp_eq_u32 vcc, 5, v11
        v_cndmask_b32 v12, v12, v13, vcc
        s_add_i32 s{S_T3}, s{S_T3}, -13
        v_add_u32 v13, s{S_T3}, v11
        v_cmp_lt_u32 vcc, 5, v11
        v_cndmask_b32 v12, v12, v13, vcc
        v_lshl_add_u32 v13, v12, 3, v9
        v_accvgpr_write_b32 a194, v13
        v_mul_u32_u24 v9, 336, v3
        v_lshl_add_u32 v9, v2, 4, v9
        v_accvgpr_write_b32 a195, v9
        s_lshl_b32 s{S_T2}, s{S_HP}, 4
        s_add_u32 s{S_T2}, s{S_T2}, s{S_RB}
        s_mul_i32 s{S_T2}, s{S_T2}, {KVP_SZ}
        s_add_u32 s{S_T2}, s{S_T2}, {WS_KVP}
        s_mul_i32 s{S_T3}, s{S_T0}, 3360
        s_add_u32 s{S_KVS}, s{S_T2}, s{S_T3}
        """)

    def phase0(self):
        g = self
        P = 160
        self.stamp("pre_p0")
        g.vmwait("phi")
        self.stamp("p0data")
        X0, X1, W = P, P + 6, P + 12
        A = 180
        for i in range(7): g(f"v_mov_b32 v{A+i}, 0")
        for d in range(5):
            g(f"""
            v_dot2c_f32_bf16 v{A+0}, v{X0+d}, v84
            v_dot2c_f32_bf16 v{A+1}, v{X0+d}, v{X0+d}
            v_dot2c_f32_bf16 v{A+2}, v{X0+d}, v{W+d}
            v_dot2c_f32_bf16 v{A+3}, v{X1+d}, v84
            v_dot2c_f32_bf16 v{A+4}, v{X1+d}, v{X1+d}
            v_dot2c_f32_bf16 v{A+5}, v{X1+d}, v{W+d}
            v_dot2c_f32_bf16 v{A+6}, v{W+d}, v84
            """)
        g("s_nop 2")
        for ctl in ("row_shr:1 row_mask:0xf bank_mask:0xf bound_ctrl:0", "row_shr:2 row_mask:0xf bank_mask:0xf bound_ctrl:0",
                    "row_shr:4 row_mask:0xf bank_mask:0xf bound_ctrl:0", "row_shr:8 row_mask:0xf bank_mask:0xf bound_ctrl:0",
                    "row_bcast:15 row_mask:0xa bank_mask:0xf", "row_bcast:31 row_mask:0xc bank_mask:0xf"):
            for i in range(7):
                g(f"v_add_f32_dpp v{A+i}, v{A+i}, v{A+i} {ctl}")
        T = 190
        g(f"v_mov_b32 v{T+8}, 0x3acccccd")
        for r in range(2):
            sx, sq, sw = A + 3*r, A + 3*r + 1, A + 3*r + 2
            m, t1, t2 = T + 3*r, T + 3*r + 1, T + 3*r + 2
            g(f"""
            v_mul_f32 v{m}, v{sx}, v{T+8}
            v_mul_f32 v{t1}, v{sq}, v{T+8}
            v_fma_f32 v{t1}, -v{m}, v{m}, v{t1}
            v_max_f32 v{t1}, 0, v{t1}
            """)
            g.rnd_bf16(t1, t1)
            g(f"v_add_f32 v{t1}, 0x3727c5ac, v{t1}")
            g.rnd_bf16(t1, t1)
            g(f"v_sqrt_f32 v{t1}, v{t1}")
            g.rnd_bf16(t1, t1)
            g.rnd_bf16(m, m)
            g(f"""
            v_rcp_f32 v{t1}, v{t1}
            v_fma_f32 v{t2}, -v{m}, v{A+6}, v{sw}
            v_mul_f32 v{t2}, v{t2}, v{t1}
            """)
        g(f"""
        v_mov_b32 v{T+7}, s{S_P0ROW}
        v_add_u32 v{T+9}, 1, v{T+7}
        v_cmp_gt_f32 vcc, v{T+5}, v{T+2}
        v_cndmask_b32 v{T+6}, v{T+2}, v{T+5}, vcc
        v_cndmask_b32 v{T+7}, v{T+7}, v{T+9}, vcc
        s_lshl_b32 s{S_T0}, s{S_WAVE}, 3
        s_add_u32 s{S_T0}, s{S_T0}, {L_P0}
        v_mov_b32 v9, s{S_T0}
        s_mov_b32 exec_lo, 0
        s_brev_b32 exec_hi, 1
        ds_write_b64 v9, {v(T+6,2)}
        s_mov_b64 exec, -1
        """)

    def phi_frags(self):
        g = self
        g(f"""
        v_lshrrev_b32 v9, 3, v2
        v_and_b32 v11, 3, v2
        v_lshl_add_u32 v9, v9, 2, v11
        v_min_u32 v9, 9, v9
        v_bfe_u32 v11, v2, 2, 1
        v_mad_u32_u24 v9, v11, 10, v9
        v_lshlrev_b32 v9, 1, v9
        s_mul_i32 s{S_T0}, s{S_WAVE}, 1664
        s_add_u32 s{S_T0}, s{S_T0}, {L_WPHI}
        v_add_u32 v9, s{S_T0}, v9
        v_mul_u32_u24 v11, 160, v3
        v_add_u32 v11, v11, v9
        """)
        def rd(reg, base, ds):
            for i, d in enumerate(ds):
                g(f"ds_read_u16 v{T0 + i}, v{base} offset:{d}")
            g("s_waitcnt lgkmcnt(0)")
            for i in range(0, len(ds), 2):
                g(f"v_lshl_or_b32 v{reg + i//2}, v{T0+i+1}, 16, v{T0+i}")
        T0 = 200
        rd(140, 11, [40*i for i in range(4)] + [40*(8+i) for i in range(4)] + [40*(16+i) for i in range(4)])
        rd(146, 9, [800 + 40*i for i in range(4)])
        rd(148, 11, [800 + 40*(4+i) for i in range(4)] + [800 + 40*(12+i) for i in range(4)])
        g(f"""
        s_mov_b32 s{S_MA}, 0
        s_mov_b32 s{S_MA+1}, -1
        s_waitcnt lgkmcnt(0)
        v_cndmask_b32 v144, v144, 0, {s2(S_MA)}
        v_cndmask_b32 v145, v145, 0, {s2(S_MA)}
        v_cndmask_b32 v146, 0, v146, {s2(S_MA)}
        v_cndmask_b32 v147, 0, v147, {s2(S_MA)}
        """)

    def p1_reads(self, n):
        c, ks = divmod(n, 4); s = c % 5; b = n % 3
        base = 128 + ks if s < 3 else 132 + ks
        imm = s * SLOT if s < 3 else (s - 3) * SLOT
        out = [f"ds_read_b128 {ac(4*n,4)}, v{base} offset:{imm}"]
        wb = 136 + s // 2
        imm0 = (s % 2) * SLOT + 16 * ks * 192
        for t in range(3):
            for rd in range(2):
                out.append(f"ds_read_b64_tr_b16 {v(92 + 12*b + 4*t + 2*rd, 2)}, v{wb} offset:{imm0 + 4*rd*192 + 64*t}")
        for rd in range(2):
            out.append(f"ds_read_b64_tr_b16 {v(160 + 4*b + 2*rd, 2)}, v{72 + s // 2} offset:{imm0 + 4*rd*192}")
        return out

    def p1_refill(self, i):
        s = i % 5
        nt = self.nt
        grp = []
        grp.append([f"s_add_u32 m0, s{S_LX}, {s*SLOT}", "s_nop 0" if False else f"s_add_u32 s{S_T1}, s{S_LW}, {s*SLOT}",
                    f"buffer_load_dwordx4 v4, {srd(SRD_X)}, s{S_CX} offen{nt} lds"])
        grp.append([f"buffer_load_dwordx4 v5, {srd(SRD_X)}, s{S_CX} offen offset:1024{nt} lds"])
        grp.append([f"buffer_load_dwordx4 v157, {srd(SRD_X)}, s{S_CX} offen offset:2048{nt} lds"])
        grp.append([f"buffer_load_dwordx4 v158, {srd(SRD_X)}, s{S_CX} offen offset:3072{nt} lds",
                    f"s_add_u32 s{S_CX}, s{S_CX}, 128"])
        grp.append([f"s_mov_b32 m0, s{S_T1}", f"s_mov_b64 exec, {s2(S_WM)}",
                    f"buffer_load_dwordx4 v6, {srd(SRD_W)}, s{S_CW} offen{nt} lds", "s_mov_b64 exec, -1"])
        grp.append([f"s_mov_b64 exec, {s2(S_WM+2)}",
                    f"buffer_load_dwordx4 v7, {srd(SRD_W)}, s{S_CW} offen offset:1024{nt} lds", "s_mov_b64 exec, -1"])
        grp.append([f"s_mov_b64 exec, {s2(S_WM+4)}",
                    f"buffer_load_dwordx4 v8, {srd(SRD_W)}, s{S_CW} offen offset:2048{nt} lds", "s_mov_b64 exec, -1",
                    f"s_add_u32 s{S_CW}, s{S_CW}, {64*3840}", f"s_cmp_eq_u32 s{S_CX}, s{S_CC}",
                    f"s_cselect_b32 s{S_CX}, s{S_XB}, s{S_CX}", f"s_cselect_b32 s{S_CW}, s{S_WB}, s{S_CW}"])
        if "qx" in self.exp:
            last = grp.pop()
            extra = [[f"s_mov_b32 m0, {L_XS}", "s_nop 0", f"buffer_load_dwordx4 v152, {srd(SRD_W)}, s{S_CW} offen{nt} lds"],
                     [f"s_mov_b32 m0, {L_XS + 1024}", "s_mov_b32 exec_lo, 0xffff", "s_mov_b32 exec_hi, 0",
                      f"buffer_load_dwordx4 v153, {srd(SRD_W)}, s{S_CW} offen{nt} lds", "s_mov_b64 exec, -1", f"s_mov_b32 m0, s{S_T1}"]]
            grp += extra + [last]
        return grp

    def wq_groups(self):
        grp = []
        for m in range(13):
            q, pt = divmod(m, 5)
            gl = [f"s_add_u32 m0, s{S_WQL}, {m*1024}", f"s_add_u32 s{S_T2}, s{S_WQG}, {q*64*3840}"]
            if m == 12:
                gl += ["s_mov_b32 exec_hi, 0", f"buffer_load_dwordx4 v{152+pt}, {srd(SRD_W)}, s{S_T2} offen lds", "s_mov_b64 exec, -1"]
            else:
                gl += [f"buffer_load_dwordx4 v{152+pt}, {srd(SRD_W)}, s{S_T2} offen lds"]
            grp.append(gl)
        return grp

    def wq_setup(self):
        g = self
        for pt in range(5):
            g(f"""
            v_add_u32 v9, {64*pt}, v1
            v_mul_u32_u24 v11, 52429, v9
            v_lshrrev_b32 v11, 18, v11
            v_mul_u32_u24 v12, 5, v11
            v_sub_u32 v12, v9, v12
            v_and_b32 v13, 3, v11
            v_bfe_u32 v14, v11, 2, 2
            v_and_b32 v11, 0xfffffff0, v11
            v_lshl_add_u32 v11, v13, 2, v11
            v_add_u32 v11, v11, v14
            v_mul_u32_u24 v11, 3840, v11
            v_lshl_add_u32 v{152+pt}, v12, 4, v11
            """)
        g(f"""
        s_mul_i32 s{S_WQL}, s{S_WAVE}, 12800
        s_add_u32 s{S_WQL}, s{S_WQL}, {L_WQ}
        s_mul_i32 s{S_WQG}, s{S_WAVE}, {160*3840}
        s_mul_i32 s{S_T0}, s{S_HP}, 80
        s_add_u32 s{S_WQG}, s{S_WQG}, s{S_T0}
        """)

    def pass1(self):
        g = self
        self.dbg_span(2, True); self.dbg_span(7, False); self.mark("filled"); self.skew_record()
        g.vmwait("c0")
        g("s_waitcnt lgkmcnt(0)\ns_barrier")
        self.stamp("c0")
        for x in self.p1_reads(0): g(x)
        g("s_waitcnt lgkmcnt(6)")
        for x in self.p1_reads(1): g(x)
        g(f"""
        s_cmp_lg_u32 s{S_WAVE}, 0
        s_cbranch_scc1 L_nopub
        v_mov_b32 v9, {L_P0}           ; HZ_SKIP_BEGIN
        ds_read_b128 v[172:175], v9
        ds_read_b128 v[176:179], v9 offset:16
        s_lshl_b32 s{S_T0}, s2, 3
        s_add_u32 s{S_T0}, s{S_T0}, {WS_RMAX}
        v_mov_b32 v11, s{S_T0}
        s_waitcnt lgkmcnt(0)
        v_cmp_gt_f32 vcc, v174, v172
        v_cndmask_b32 v172, v172, v174, vcc
        v_cndmask_b32 v173, v173, v175, vcc
        v_cmp_gt_f32 vcc, v176, v172
        v_cndmask_b32 v172, v172, v176, vcc
        v_cndmask_b32 v173, v173, v177, vcc
        v_cmp_gt_f32 vcc, v178, v172
        v_cndmask_b32 v172, v172, v178, vcc
        v_cndmask_b32 v173, v173, v179, vcc
        s_mov_b64 exec, 1
        buffer_store_dwordx2 v[172:173], v11, {srd(SRD_WS)}, 0 offen sc1
        s_mov_b64 exec, -1             ; HZ_SKIP_END
L_nopub:
        """)
        pend = []
        for n in range(40):
            c, ks = divmod(n, 4); b = n % 3
            if ks == 0:
                if c + self.dist <= 9:
                    rf = self.p1_refill(c + self.dist)
                    pend += rf; self.vmq = getattr(self, "vmq", []) + [f"c{c+self.dist}"] * len(rf)
                if c == 3:
                    pend.append(self.touch_wq()); self.vmq.append("tq")
                if c == 7:
                    pend += self.touch_moe(); self.vmq += ["tm"] * 3
                if c == 6:
                    pend.append([f"v_mov_b32 v75, 240", f"buffer_load_dword v75, v75, {srd(SRD_DBG)}, 0 offen sc1"]); self.vmq.append("rdy")
            if ks == 2 and c < 9:
                g(f"s_waitcnt lgkmcnt(6)")
                g.vmwait(f"c{c+1}")
                g("s_barrier")
                self.stamp(f"B{c}")
                if c == 0:
                    g(f"""
                    s_cmp_lg_u32 s2, 0
                    s_cbranch_scc1 L_noready
                    s_cmp_lg_u32 s{S_WAVE}, 1
                    s_cbranch_scc1 L_noready
                    s_memrealtime s[64:65]         ; HZ_SKIP_BEGIN
                    v_mov_b32 v11, 240
                    s_waitcnt lgkmcnt(0)
                    s_mul_i32 s64, s64, 0x9e3779b1
                    s_or_b32 s64, s64, 1
                    v_mov_b32 v12, s64
                    s_mov_b64 exec, 1
                    buffer_store_dword v12, v11, {srd(SRD_DBG)}, 0 offen sc1
                    s_mov_b64 exec, -1             ; HZ_SKIP_END
L_noready:
                    """)
                if c == self.dist - 1:
                    g(f"""
                    s_cmp_lg_u32 s{S_WAVE}, 0
                    s_cbranch_scc1 L_noatom
                    s_and_b32 s{S_T0}, s2, 3       ; HZ_SKIP_BEGIN
                    s_lshl_b32 s{S_T0}, s{S_T0}, 6
                    v_mov_b32 v11, s{S_T0}
                    v_mov_b32 v12, 1
                    s_mov_b64 exec, 1
                    buffer_atomic_add v12, v11, {srd(SRD_DBG)}, 0 offen sc1
                    s_mov_b64 exec, -1             ; HZ_SKIP_END
L_noatom:
                    """)
            elif n == 39: g("s_waitcnt lgkmcnt(0)")
            else: g("s_waitcnt lgkmcnt(6)")
            rd = self.p1_reads(n + 2) if n + 2 < 40 else []
            if "nords" in self.exp: rd = []
            XP = ac(4*n, 4)
            WF = lambda t: 92 + 12*b + 4*t
            first = (n == 0)
            def dma():
                if pend:
                    grp = pend.pop(0); tag = self.vmq.pop(0)
                    if "nodma" not in self.exp:
                        for x in grp: g(x)
                    if tag: g.vmi(tag)
            cin = lambda r, k: "0" if first else v(r, k)
            g(f"v_mfma_f32_32x32x16_bf16 v[16:31], {v(WF(0),4)}, {XP}, {cin(16,16)}")
            for x in rd[0:3]: g(x)
            dma()
            g(f"v_mfma_f32_32x32x16_bf16 v[32:47], {v(WF(1),4)}, {XP}, {cin(32,16)}")
            for x in rd[3:6]: g(x)
            g(f"v_mfma_f32_32x32x16_bf16 v[48:63], {v(WF(2),4)}, {XP}, {cin(48,16)}")
            for x in rd[6:9]: g(x)
            dma()
            if "nosq" not in self.exp:
                g(f"v_mfma_f32_4x4x4_16b_bf16 v[64:67], {ac(4*n,2)}, {ac(4*n,2)}, {cin(64,4)}")
                g(f"v_mfma_f32_4x4x4_16b_bf16 v[68:71], {ac(4*n+2,2)}, {ac(4*n+2,2)}, {cin(68,4)}")
            if "nocs" not in self.exp:
                g(f"v_mfma_f32_4x4x4_16b_bf16 v[76:79], {v(160+4*b,2)}, v[84:85], {cin(76,4)}")
                g(f"v_mfma_f32_4x4x4_16b_bf16 v[80:83], {v(160+4*b+2,2)}, v[84:85], {cin(80,4)}")
            if c in (3, 6, 7) or "qx" in self.exp: dma()
        while pend:
            grp = pend.pop(0); tag = self.vmq.pop(0)
            for x in grp: g(x)
            if tag: g.vmi(tag)
        self.stamp("p1end")

    def touch_moe(self):
        return [
            [f"v_mul_u32_u24 v9, 13108, v1", "v_lshrrev_b32 v9, 16, v9", "v_mul_u32_u24 v10, 5, v9", "v_sub_u32 v10, v1, v10",
             "v_mul_u32_u24 v11, 3456, v9", "v_lshl_add_u32 v11, v10, 7, v11",
             f"s_mul_i32 s{S_T0}, s{S_XCD}, 448", f"s_and_b32 s{S_T0}, s{S_T0}, 0xffffff80",
             f"s_lshl_b32 s{S_T2}, s{S_SLOT}, 2", f"s_add_u32 s{S_T2}, s{S_T2}, s{S_WAVE}", f"s_mul_i32 s{S_T2}, s{S_T2}, {5*3456}",
             f"s_add_u32 s{S_T0}, s{S_T0}, s{S_T2}", "s_mov_b32 exec_lo, 0x1ffffff", "s_mov_b32 exec_hi, 0",
             f"buffer_load_dword v159, v11, {srd(SRD_G)}, s{S_T0} offen", "s_mov_b64 exec, -1"],
            ["s_mov_b32 exec_lo, 0x1ffffff", "s_mov_b32 exec_hi, 0",
             f"buffer_load_dword v159, v11, {srd(SRD_U)}, s{S_T0} offen", "s_mov_b64 exec, -1"],
            ["v_mul_u32_u24 v9, 6554, v1", "v_lshrrev_b32 v9, 16, v9", "v_mul_u32_u24 v10, 10, v9", "v_sub_u32 v10, v1, v10",
             "v_mul_u32_u24 v12, 1280, v9", "v_lshl_add_u32 v12, v10, 7, v12",
             f"s_mul_i32 s{S_T0}, s{S_XCD}, {224*1280}", f"s_mul_i32 s{S_T2}, s{S_SLOT}, 7", f"s_lshl_b32 s{S_T3}, s{S_WAVE}, 1",
             f"s_add_u32 s{S_T2}, s{S_T2}, s{S_T3}", f"s_mul_i32 s{S_T2}, s{S_T2}, 1280", f"s_add_u32 s{S_T0}, s{S_T0}, s{S_T2}",
             "s_mov_b32 exec_lo, 0xfffff", "s_mov_b32 exec_hi, 0",
             f"buffer_load_dword v159, v12, {srd(SRD_D)}, s{S_T0} offen", "s_mov_b64 exec, -1"]]

    def touch_wq(self):
        return ["v_mul_u32_u24 v9, 21846, v1", "v_lshrrev_b32 v9, 16, v9", "v_mul_u32_u24 v10, 3, v9", "v_sub_u32 v10, v1, v10",
                f"s_lshl_b32 s{S_T0}, s{S_SLOT}, 2", f"s_add_u32 s{S_T0}, s{S_T0}, s{S_WAVE}", f"s_mul_i32 s{S_T0}, s{S_T0}, 5",
                f"v_add_u32 v9, s{S_T0}, v9", "v_mul_u32_u24 v9, 3840, v9", "v_lshl_add_u32 v9, v10, 7, v9",
                f"s_lshr_b32 s{S_T0}, s{S_XCD}, 1", f"s_mul_i32 s{S_T0}, s{S_T0}, 320", f"s_and_b32 s{S_T0}, s{S_T0}, 0xffffff80",
                "s_mov_b32 exec_lo, 0x7fff", "s_mov_b32 exec_hi, 0",
                f"buffer_load_dword v159, v9, {srd(SRD_W)}, s{S_T0} offen", "s_mov_b64 exec, -1"]

    def stats_and_colsum(self, first):
        g = self
        csoff = 0 if first else 128 * 4
        for i in range(4): g(f"v_add_f32 v{76+i}, v{76+i}, v{80+i}")
        for i in range(4): g(f"v_mov_b32 v{80+i}, v{76+i}")
        for i in range(4): g(f"v_permlane32_swap_b32 v{76+i}, v{80+i}")
        for i in range(4): g(f"v_add_f32 v{76+i}, v{76+i}, v{80+i}")
        g(f"""
        s_lshl_b32 s{S_T0}, s{S_WAVE}, 7
        s_add_u32 s{S_T0}, s{S_T0}, {L_CS + csoff}
        v_lshl_add_u32 v9, v1, 2, s{S_T0}
        s_mov_b32 exec_lo, 0x11111111
        s_mov_b32 exec_hi, 0
        ds_write_b128 v9, v[76:79]
        s_mov_b64 exec, -1
        """)
        if first:
            for i in range(4): g(f"v_add_f32 v{64+i}, v{64+i}, v{68+i}")
            for i in range(1, 4):
                m = 0x11111111 << i
                g(f"s_mov_b32 s{S_MB}, {hex(m)}\ns_mov_b32 s{S_MB+1}, {hex(m)}\nv_cndmask_b32 v64, v64, v{64+i}, {s2(S_MB)}")
            g(f"""
            v_mov_b32 v65, v64
            v_mov_b32 v90, 0x3acccccd
            s_nop 0
            v_permlane32_swap_b32 v64, v65
            v_add_f32 v64, v64, v65
            v_mul_f32 v66, v56, v90
            v_mul_f32 v64, v64, v90
            v_fma_f32 v64, -v66, v66, v64
            v_max_f32 v64, 0, v64
            """)
            g.rnd_bf16(64, 64)
            g("v_add_f32 v64, 0x3727c5ac, v64")
            g.rnd_bf16(64, 64)
            g("v_sqrt_f32 v64, v64")
            g.rnd_bf16(90, 64)
            g.rnd_bf16(91, 66)
            g("v_rcp_f32 v88, v90\nv_sub_f32 v86, 0, v91")
        g("s_waitcnt lgkmcnt(0)\ns_barrier")
        self.stamp("csbar" if first else "csbar2")

    def normalise(self, quads, csoff):
        g = self
        g(f"v_lshlrev_b32 v9, 4, v3\nv_add_u32 v9, {L_CS + csoff}, v9")
        for i, (r, col) in enumerate(quads):
            g(f"ds_read_b128 {v(160+4*i,4)}, v9 offset:{col*4}")
        for i, (r, col) in enumerate(quads):
            g(f"s_waitcnt lgkmcnt({len(quads)-1-i})")
            for hh in range(2):
                g(f"v_pk_fma_f32 {v(r+2*hh,2)}, {v(160+4*i+2*hh,2)}, v[86:87], {v(r+2*hh,2)} op_sel_hi:[1,0,1]")
            for hh in range(2):
                g(f"v_pk_mul_f32 {v(r+2*hh,2)}, {v(r+2*hh,2)}, v[88:89] op_sel_hi:[1,0]")

    def softmax(self, H0, H1):
        g = self
        P = (92, 108)
        L = 0x3fb8aa3b
        g(f"v_mul_f32 v124, {hex(L)}, v88\nv_mul_f32 v126, {hex(L | 0x80000000)}, v88")
        for H in (H0, H1): g(f"v_mov_b32 v{H+10}, 0\nv_mov_b32 v{H+11}, 0")
        E = (160, 180)
        MX = (200, 204)
        for a in range(2):
            p, mx = P[a], MX[a]
            g(f"""
            v_max3_f32 v{mx}, v{p}, v{p+1}, v{p+2}
            v_min3_f32 v{mx+1}, v{p}, v{p+1}, v{p+2}
            v_max3_f32 v{mx}, v{mx}, v{p+3}, v{p+4}
            v_min3_f32 v{mx+1}, v{mx+1}, v{p+3}, v{p+4}
            v_max3_f32 v{mx}, v{mx}, v{p+5}, v{p+6}
            v_min3_f32 v{mx+1}, v{mx+1}, v{p+5}, v{p+6}
            v_max3_f32 v{mx}, v{mx}, v{p+7}, v{p+8}
            v_min3_f32 v{mx+1}, v{mx+1}, v{p+7}, v{p+8}
            v_max_f32 v{mx}, v{mx}, v{p+9}
            v_min_f32 v{mx+1}, v{mx+1}, v{p+9}
            v_sub_f32 v{mx+1}, 0, v{mx+1}
            """)
        for a in range(2): g(f"v_permlane32_swap_b32 v{MX[a]}, v{MX[a]+1}")
        for a in range(2): g(f"v_max_f32 v{MX[a]}, v{MX[a]}, v{MX[a]+1}")
        for a in range(2): g(f"v_mov_b32 v{MX[a]+1}, v{MX[a]}")
        for a in range(2): g(f"v_permlane32_swap_b32 v{MX[a]}, v{MX[a]+1}")
        for a in range(2):
            mx = MX[a]
            g(f"v_mul_f32 v{mx+2}, v{mx+1}, v126\nv_mul_f32 v{mx}, v{mx}, v126")
        for a in range(2):
            p, mx, e = P[a], MX[a], E[a]
            for i in range(5):
                g(f"v_pk_fma_f32 {v(e+2*i,2)}, {v(p+2*i,2)}, v[124:125], {v(mx,2)} op_sel_hi:[1,0,0]")
                g(f"v_pk_fma_f32 {v(e+10+2*i,2)}, {v(p+2*i,2)}, v[126:127], {v(mx+2,2)} op_sel_hi:[1,0,0]")
        self.stamp("sm_pre" + str(H0) + getattr(self, "smtag", ""))
        for a in range(2):
            for i in range(20): g(f"v_exp_f32 v{E[a]+i}, v{E[a]+i}")
        self.stamp("sm_exp" + getattr(self, "smtag", ""))
        SM = (208, 214)
        for a in range(2):
            e, sm = E[a], SM[a]
            g(f"v_pk_add_f32 {v(sm,2)}, {v(e,2)}, {v(e+2,2)}\nv_pk_add_f32 {v(sm+2,2)}, {v(e+10,2)}, {v(e+12,2)}")
        for i in range(2, 5):
            for a in range(2):
                e, sm = E[a], SM[a]
                g(f"v_pk_add_f32 {v(sm,2)}, {v(sm,2)}, {v(e+2*i,2)}\nv_pk_add_f32 {v(sm+2,2)}, {v(sm+2,2)}, {v(e+10+2*i,2)}")
        for a in range(2):
            sm = SM[a]
            g(f"v_add_f32 v{sm}, v{sm}, v{sm+1}\nv_add_f32 v{sm+1}, v{sm+2}, v{sm+3}")
        for a in range(2): g(f"v_permlane32_swap_b32 v{SM[a]}, v{SM[a]+1}")
        for a in range(2): g(f"v_add_f32 v{SM[a]}, v{SM[a]}, v{SM[a]+1}")
        for a in range(2): g(f"v_mov_b32 v{SM[a]+2}, v{SM[a]}")
        for a in range(2): g(f"v_permlane32_swap_b32 v{SM[a]}, v{SM[a]+2}")
        for a in range(2): g(f"v_rcp_f32 v{SM[a]}, v{SM[a]}\nv_rcp_f32 v{SM[a]+2}, v{SM[a]+2}")
        for a, H in ((0, H0), (1, H1)):
            e, sm = E[a], SM[a]
            for i in range(5):
                g(f"v_pk_mul_f32 {v(e+2*i,2)}, {v(e+2*i,2)}, {v(sm,2)} op_sel_hi:[1,0]")
                g(f"v_pk_mul_f32 {v(e+10+2*i,2)}, {v(e+10+2*i,2)}, {v(sm+2,2)} op_sel_hi:[1,0]")
            for i in range(10):
                g(f"v_cvt_pk_bf16_f32 v{H+i}, v{e+2*i}, v{e+2*i+1}")

    def norm_reads(self, quads, csoff, r0):
        g = self
        for i, (r, col) in enumerate(quads):
            g(f"ds_read_b128 {v(r0+4*i,4)}, v9 offset:{col*4}")

    def norm_apply(self, quads, r0, after, scale=True):
        g = self
        for i, (r, col) in enumerate(quads):
            g(f"s_waitcnt lgkmcnt({len(quads)-1-i+after})")
            for hh in range(2):
                g(f"v_pk_fma_f32 {v(r+2*hh,2)}, {v(r0+4*i+2*hh,2)}, v[86:87], {v(r+2*hh,2)} op_sel_hi:[1,0,1]")
            for hh in range(2 if scale else 0):
                g(f"v_pk_mul_f32 {v(r+2*hh,2)}, {v(r+2*hh,2)}, v[88:89] op_sel_hi:[1,0]")

    def featmap_mfma(self, PK):
        g = self
        g(f"v_mfma_f32_32x32x16_bf16 v[92:107], v[140:143], {v(PK,4)}, 0")
        g(f"v_mfma_f32_32x32x16_bf16 v[108:123], v[146:149], {v(PK+4,4)}, 0")
        g(f"v_mfma_f32_32x32x8_bf16 v[92:107], v[144:145], {v(PK+4,2)}, v[92:107]")
        g(f"v_mfma_f32_32x32x8_bf16 v[108:123], v[150:151], {v(PK+8,2)}, v[108:123]")

    def k_epilogue(self):
        g = self
        self.stats_and_colsum(True)
        PK, PV = 244, 210
        kq = [(16+4*j, 8*j) for j in range(4)] + [(32, 32)]
        vq = [(36, 40), (40, 48), (44, 56), (48, 64), (52, 72)]
        def part1():
            g(f"v_lshlrev_b32 v9, 4, v3\nv_add_u32 v9, {L_CS}, v9")
            self.norm_reads(kq, 0, 160); self.norm_reads(vq, 0, 180)
            self.norm_apply(kq, 160, 5, scale=False)
            for i in range(10): g(f"v_cvt_pk_bf16_f32 v{PK+i}, v{16+2*i}, v{16+2*i+1}")
            self.stamp("k_cvt")
            self.featmap_mfma(PK)
            self.norm_apply(vq, 180, 0)
            self.stamp("v_norm")
            self.dump("kv_norm", list(range(16, 64)) + [86, 88, 90, 91])
            g(f"""
            v_accvgpr_read_b32 v11, a192
            v_mov_b32 v14, 0x3f80
            v_mov_b32 v15, 0
            v_lshl_add_u32 v12, v3, 4, v11
            v_lshl_add_u32 v13, v3, 3, v11
            ds_write_b64 v12, v[14:15] offset:{34*8}
            """)
            for i, (r, col) in enumerate(vq):
                g(f"v_cvt_pk_bf16_f32 v{PV+2*i}, v{r}, v{r+1}\nv_cvt_pk_bf16_f32 v{PV+2*i+1}, v{r+2}, v{r+3}")
                g(f"ds_write_b64 v11, {v(PV+2*i,2)} offset:{192 + 16*i}")
            self.stamp("prefm")
            self.softmax(220, 232)
            self.stamp("postfm")
        self.interleave([(x, "wq") for x in self.wq_groups()], self.capture(part1))
        self.dump("phik", list(range(220, 244)))
        for a, H in ((0, 220), (1, 232)):
            for st in range(3):
                g(f"ds_write_b128 v13, {v(H+4*st,4)} offset:{a*96 + st*32}")
        g("v_accvgpr_read_b32 v160, a193\nv_accvgpr_read_b32 v161, a194\nv_accvgpr_read_b32 v9, a195")
        g(f"v_cmp_gt_u32 vcc, 21, v2\ns_and_b32 s{S_T1}, s{S_WAVE}, 1\ns_mov_b64 {s2(S_MA)}, vcc")
        g.vmwait("wq")
        g("s_waitcnt lgkmcnt(0)\ns_barrier")
        self.stamp("Tbar")
        A0, B0 = 164, 196
        for ks in range(8):
            for rd in range(2):
                g(f"ds_read_b64_tr_b16 {v(A0+4*ks+2*rd,2)}, v160 offset:{(16*ks+rd)*336}")
                g(f"ds_read_b64_tr_b16 {v(B0+4*ks+2*rd,2)}, v161 offset:{(16*ks+rd)*336}")
            if ks >= 2:
                k = ks - 2
                g("s_waitcnt lgkmcnt(8)")
                cin = "0" if k == 0 else "v[92:107]"
                g(f"v_mfma_f32_32x32x16_bf16 v[92:107], {v(A0+4*k,4)}, {v(B0+4*k,4)}, {cin}")
        g("s_waitcnt lgkmcnt(4)")
        g(f"v_mfma_f32_32x32x16_bf16 v[92:107], {v(A0+24,4)}, {v(B0+24,4)}, v[92:107]")
        g("s_waitcnt lgkmcnt(0)")
        g(f"v_mfma_f32_32x32x16_bf16 v[92:107], {v(A0+28,4)}, {v(B0+28,4)}, v[92:107]")
        g(f"""
        s_cmp_lg_u32 s{S_T1}, 0
        s_cbranch_scc1 L_kvft1
        s_mov_b64 exec, {s2(S_MA)}     ; HZ_SKIP_BEGIN
        buffer_store_dwordx4 v[92:95], v9, {srd(SRD_WS)}, s{S_KVS} offen sc1
        buffer_store_dwordx4 v[96:99], v9, {srd(SRD_WS)}, s{S_KVS} offen offset:672 sc1
        buffer_store_dwordx4 v[100:103], v9, {srd(SRD_WS)}, s{S_KVS} offen offset:1344 sc1
        buffer_store_dwordx4 v[104:107], v9, {srd(SRD_WS)}, s{S_KVS} offen offset:2016 sc1
        s_branch L_kvdone              ; HZ_SKIP_END
L_kvft1:
        s_and_b32 s{S_MA}, s{S_MA}, 0x1fffff      ; HZ_SKIP_BEGIN
        s_mov_b32 s{S_MA+1}, 0
        s_mov_b64 exec, {s2(S_MA)}
        buffer_store_dwordx4 v[92:95], v9, {srd(SRD_WS)}, s{S_KVS} offen offset:2688 sc1
        buffer_store_dwordx4 v[96:99], v9, {srd(SRD_WS)}, s{S_KVS} offen offset:3024 sc1   ; HZ_SKIP_END
L_kvdone:
        s_mov_b64 exec, -1
        """)
        self.stamp("kvstore")

    def mark(self, name):
        for e in self.exp:
            if e.startswith("probe:"):
                _, a, b, k = e.split(":")
                ins = "s_memtime" if k.startswith("c") else "s_memrealtime"
                if name == a: self(f"{ins} s[86:87]")
                if name == b: self(f"{ins} s[88:89]")

    def skew_record(self):
        if "skew" not in self.exp: return
        self(f"""
        s_add_u32 s100, s2, 8
        s_and_b32 s100, s100, 0xf0
        s_cmp_lg_u32 s100, 0
        s_cbranch_scc1 L_noskew
        s_cmp_lg_u32 s{S_WAVE}, 0
        s_cbranch_scc1 L_noskew
        s_not_b32 s100, s98
        v_mov_b32 v9, 8
        v_mov_b32 v10, s100
        v_mov_b32 v11, 12
        v_mov_b32 v12, s98
        s_mov_b64 exec, 1
        buffer_atomic_umax v10, v9, {srd(SRD_DBG)}, 0 offen sc1
        buffer_atomic_umax v12, v11, {srd(SRD_DBG)}, 0 offen sc1
        s_mov_b64 exec, -1
L_noskew:
        """)

    def skew_spin(self):
        if "skew" not in self.exp: return
        self(f"""
        v_mov_b32 v9, 8
        buffer_load_dwordx2 v[10:11], v9, {srd(SRD_DBG)}, 0 offen sc1
        s_waitcnt vmcnt(0)
        v_readfirstlane_b32 s92, v10
        v_readfirstlane_b32 s93, v11
        s_not_b32 s92, s92
        s_sub_u32 s92, s93, s92
        s_mul_i32 s92, s92, 4
        s_memrealtime s[90:91]
        s_waitcnt lgkmcnt(0)
        s_add_u32 s92, s92, s90
L_skewspin:
        s_memrealtime s[90:91]
        s_waitcnt lgkmcnt(0)
        s_sub_u32 s93, s92, s90
        s_cmp_gt_i32 s93, 0
        s_cbranch_scc1 L_skewspin
        """)

    def probe_spin(self):
        for e in self.exp:
            if e.startswith("probe:"):
                _, a, b, k = e.split(":")
                self(f"""
                s_memrealtime s[90:91]
                s_waitcnt lgkmcnt(0)
                s_sub_u32 s92, s88, s86
                {f"s_lshr_b32 s92, s92, {k[1:]}" if k.startswith("c") else f"s_mul_i32 s92, s92, {k}"}
                s_add_u32 s92, s92, s90
L_probe:
                s_memrealtime s[90:91]
                s_waitcnt lgkmcnt(0)
                s_sub_u32 s93, s92, s90
                s_cmp_gt_i32 s93, 0
                s_cbranch_scc1 L_probe
                """)

    def dbg_span(self, word, invert):
        if "span" not in self.exp: return
        g = self
        lab = f"L_span{word}"
        g(f"""
        s_and_b32 s100, s2, 15
        s_cmp_lg_u32 s100, 0
        s_cbranch_scc1 {lab}
        s_cmp_lg_u32 s{S_WAVE}, 0
        s_cbranch_scc1 {lab}
        s_memrealtime s[100:101]
        s_waitcnt lgkmcnt(0)
        {"s_not_b32 s100, s98" if invert else "s_nop 0"}
        v_mov_b32 v9, {word*4}
        v_mov_b32 v10, s100
        s_mov_b64 exec, 1
        buffer_atomic_umax v10, v9, {srd(SRD_DBG)}, 0 offen sc1
        s_mov_b64 exec, -1
{lab}:
        """)

    def finish(self):
        g = self
        self.mark("end")
        self.probe_spin()
        self.skew_spin()
        self.dbg_span(3, False)
        if self.stamps:
            g("s_waitcnt lgkmcnt(0)")
            self.flush_stamps()
            g(f"""
            s_lshl_b32 s{S_T0}, s2, 2
            s_add_u32 s{S_T0}, s{S_T0}, s{S_WAVE}
            s_lshl_b32 s{S_T0}, s{S_T0}, 8
            s_add_u32 s{S_T0}, s{S_T0}, {WS_TS}
            v_lshlrev_b32 v9, 2, v1
            buffer_store_dword v255, v9, {srd(SRD_WS)}, s{S_T0} offen
            """)
        g("L_exit:\ns_endpgm\nL_code_end:")

    def pre_k_epilogue(self):
        pass

    def build(self):
        g = self
        self.prologue()
        self.dump("phifrag", list(range(140, 152)))
        self.pass1()
        self.dump("acc1", list(range(16, 84)))
        if self.stop != "pass1":
            self.dbg_span(10, False); self.mark("p1end")
            self.pre_k_epilogue()
            self.k_epilogue()
        if self.stop not in ("pass1", "kv"):
            self.rest()
        self.finish()

    def text(self):
        body, nins = hazard.fix([l.strip() for l in self.a.lines])
        hdr = open("parallel_sum__linear_kernel_hedgehog__moe_arch_mod__prompt.s.ref").read().split("\n")
        top = [l for l in hdr if l.startswith(";") and "@launch" not in l and "Override" not in l and "grid=ceil" not in l]
        out = "\n".join(top) + "\n"
        out += f"; @launch grid=(256,1,1) block=(256,1,1) lds={LDS_SIZE}\n"
        out += '.amdgcn_target "amdgcn-amd-amdhsa--gfx950"\n.text\n' + kernel_header(NAME)
        out += "\n".join("    " + l if not l.endswith(":") else l for l in body if l) + "\n"
        out += f""".section .rodata,"a"
.p2align 6
.amdhsa_kernel {NAME}
  .amdhsa_next_free_vgpr 512
  .amdhsa_next_free_sgpr 102
  .amdhsa_accum_offset 256
  .amdhsa_group_segment_fixed_size 0
  .amdhsa_kernarg_size 96
  .amdhsa_user_sgpr_count 2
  .amdhsa_user_sgpr_kernarg_segment_ptr 1
  .amdhsa_system_sgpr_workgroup_id_x 1
  .amdhsa_float_denorm_mode_32 3
.end_amdhsa_kernel
"""
        return out, nins


if __name__ == "__main__":
    import argparse, json
    import gen_rest
    ap = argparse.ArgumentParser()
    ap.add_argument("-o", default="k.s")
    ap.add_argument("--stop", default=None)
    ap.add_argument("--dump", default="")
    ap.add_argument("--stamps", default="")
    ap.add_argument("--notouch", action="store_true")
    ap.add_argument("--exp", default="")
    args = ap.parse_args()
    G = gen_rest.Full(stop=args.stop, dumps=[d for d in args.dump.split(",") if d], stamps=set(args.stamps.split(",")) if args.stamps else False, touch=not args.notouch, exp=[e for e in args.exp.split(",") if e])
    G.build()
    t, nins = G.text()
    open(args.o, "w").write(t)
    json.dump({"dumps": G.dump_index, "stamps": getattr(G, "stamp_names", [])}, open(args.o + ".json", "w"))
    print("wrote", args.o, "lines", t.count("\n"), "nops inserted", nins)
```

```python
from gen import *

S_RB64, S_CB, S_MU, S_RSEL, S_ROW0 = 20, 21, 22, 23, 12
S_QC = 13
S_WOG, S_WOL = 14, 15
S_WOS = 76
S_YA = 79
S_TAG = 82
S_OWN = 80
S_STA = 81
S_XO = 85
S_KVE, S_KVB = 79, 75
S_KVA, S_OS = 78, 84
CNT_KV, CNT_O, CNT_M = 0, 16, 32
SPIN_LIMIT = 200000

class Full(Gen):
    def poll(self, name, srd_n, vaddr_setup, target, nl=1):
        g = self
        lab = f"L_poll_{name}"
        g(vaddr_setup)
        g(f"s_mov_b32 exec_lo, {(1 << nl) - 1}\ns_mov_b32 exec_hi, 0")
        g(f"""
        s_mov_b32 s74, 0
{lab}:
        buffer_load_dword v10, v9, {srd(srd_n)}, 0 offen sc1
        s_add_u32 s74, s74, 1
        s_cmp_gt_u32 s74, {SPIN_LIMIT}
        s_cbranch_scc1 {lab}_out
        s_waitcnt vmcnt(0)
        v_cmp_gt_u32 vcc, {target}, v10
        s_cbranch_vccnz {lab}
{lab}_out:
        s_waitcnt vmcnt(0)
        s_mov_b64 exec, -1
        """)

    def poll_issue(self, srd_n, vaddr_setup, nl=1):
        g = self
        g(vaddr_setup)
        g(f"s_mov_b32 exec_lo, {(1 << nl) - 1}\ns_mov_b32 exec_hi, 0\nbuffer_load_dword v239, v238, {srd(srd_n)}, 0 offen sc1\ns_mov_b64 exec, -1")

    def poll_finish(self, name, srd_n, target, nl=1):
        g = self
        lab = f"L_poll_{name}"
        g(f"""
        s_mov_b32 exec_lo, {(1 << nl) - 1}
        s_mov_b32 exec_hi, 0
        s_mov_b32 s74, 0
        s_waitcnt vmcnt(0)
        v_cmp_gt_u32 vcc, {target}, v239
        s_cbranch_vccz {lab}_out
{lab}:
        {"s_sleep 2" if "psleep" in self.exp else ""}
        buffer_load_dword v239, v238, {srd(srd_n)}, 0 offen sc1
        s_add_u32 s74, s74, 1
        s_cmp_gt_u32 s74, {SPIN_LIMIT}
        s_cbranch_scc1 {lab}_out
        s_waitcnt vmcnt(0)
        v_cmp_gt_u32 vcc, {target}, v239
        s_cbranch_vccnz {lab}
{lab}_out:
        s_waitcnt vmcnt(0)
        s_mov_b64 exec, -1
        """)

    def signal(self, name, cnt_sgpr_expr, drain=True):
        g = self
        if drain: g("s_waitcnt vmcnt(0)")
        g(f"""
        s_barrier
        s_cmp_lg_u32 s{S_WAVE}, 0
        s_cbranch_scc1 L_nosig_{name}
        """)
        g(cnt_sgpr_expr + " ; HZ_SKIP_BEGIN")
        g(f"""
        s_lshl_b32 s{S_T0}, s{S_T0}, 7
        v_mov_b32 v9, s{S_T0}
        v_mov_b32 v10, 1
        s_mov_b64 exec, 1
        buffer_atomic_add v10, v9, {srd(SRD_WS)}, 0 offen sc1
        s_mov_b64 exec, -1         ; HZ_SKIP_END
L_nosig_{name}:
        """)

    def publish_kv(self):
        g = self
        g(f"""
        s_cmp_lg_u32 s{S_HP}, 0
        s_cbranch_scc1 L_nostats
        s_lshl_b32 s{S_T0}, s{S_RB}, 7       ; HZ_SKIP_BEGIN
        s_lshl_b32 s{S_T1}, s{S_WAVE}, 5
        s_add_u32 s{S_T0}, s{S_T0}, s{S_T1}
        s_lshl_b32 s{S_T0}, s{S_T0}, 3
        s_add_u32 s{S_T0}, s{S_T0}, {WS_STATS}
        v_lshlrev_b32 v9, 3, v2
        v_mov_b32 v10, v91
        v_mov_b32 v11, v90
        s_mov_b32 exec_hi, 0
        buffer_store_dwordx2 v[10:11], v9, {srd(SRD_WS)}, s{S_T0} offen sc1
        s_mov_b64 exec, -1                   ; HZ_SKIP_END
L_nostats:
        """)
        g(f"""
        v_mul_u32_u24 v9, 6554, v1
        v_lshrrev_b32 v9, 16, v9
        v_mul_u32_u24 v10, 10, v9
        v_sub_u32 v10, v1, v10
        v_mul_u32_u24 v11, 1280, v9
        v_lshl_add_u32 v11, v10, 7, v11
        s_lshl_b32 s{S_T0}, s{S_SLOT}, 2
        s_add_u32 s{S_T0}, s{S_T0}, s{S_WAVE}
        s_mul_i32 s{S_T0}, s{S_T0}, {5*1280}
        s_mov_b32 exec_hi, 0x3ffff
        buffer_load_dword v159, v11, {srd(SRD_WO)}, s{S_T0} offen
        s_mov_b64 exec, -1
        """)

    def kv_signal(self):
        g = self
        g("s_waitcnt vmcnt(1)")
        g(f"""
        v_readfirstlane_b32 s{S_TAG}, v75
        s_cmp_lg_u32 s{S_TAG}, 0
        s_cbranch_scc1 L_isready
        v_mov_b32 v9, 240              ; HZ_SKIP_BEGIN
        s_mov_b32 s74, 0
L_poll_ready:
        buffer_load_dword v10, v9, {srd(SRD_DBG)}, 0 offen sc1
        s_add_u32 s74, s74, 1
        s_waitcnt vmcnt(0)
        v_readfirstlane_b32 s{S_TAG}, v10
        s_cmp_gt_u32 s74, {SPIN_LIMIT}
        s_cbranch_scc1 L_isready
        s_cmp_eq_u32 s{S_TAG}, 0
        s_cbranch_scc1 L_poll_ready    ; HZ_SKIP_END
L_isready:
        """)
        self.signal("kv", f"s_add_u32 s{S_T0}, s{S_HP}, {CNT_KV}", drain=False)
        self.stamp("kvsig")

    def moe_roles(self):
        g = self
        g(f"""
        s_lshr_b32 s{S_T0}, s{S_XCD}, 1
        s_lshr_b32 s{S_T1}, s{S_SLOT}, 3
        s_add_u32 s{S_T0}, s{S_T0}, s{S_T1}
        s_lshr_b32 s{S_T1}, s{S_SLOT}, 4
        s_lshl_b32 s{S_T1}, s{S_T1}, 3
        s_and_b32 s{S_T2}, s{S_SLOT}, 7
        s_add_u32 s{S_T1}, s{S_T1}, s{S_T2}
        s_mul_i32 s{S_MU}, s{S_XCD}, 14
        s_add_u32 s{S_MU}, s{S_MU}, s{S_T1}
        s_cmp_lt_u32 s{S_T1}, 14
        s_cselect_b32 s{S_MU}, s{S_MU}, 255
        s_bitcmp1_b32 s{S_T0}, 0
        s_cselect_b32 s{S_MU}, 255, s{S_MU}
        s_lshr_b32 s{S_T0}, s{S_SLOT}, 3
        s_lshl_b32 s{S_T1}, s{S_XCD}, 2
        s_add_u32 s{S_RB64}, s{S_T0}, s{S_T1}
        s_and_b32 s{S_CB}, s{S_SLOT}, 7
        s_lshl_b32 s{S_ROW0}, s{S_RB64}, 6
        s_lshl_b32 s{S_T0}, s{S_WAVE}, 4
        s_add_u32 s{S_ROW0}, s{S_ROW0}, s{S_T0}
        s_mul_i32 s{S_T1}, s{S_CB}, 160
        s_mov_b32 s{S_WOG}, s{S_T1}
        s_mul_i32 s{S_T0}, s{S_ROW0}, 1280
        s_add_u32 s{S_XO}, s{S_T0}, s{S_T1}
        s_lshl_b32 s{S_T0}, s{S_RB}, 1
        s_lshr_b32 s{S_T1}, s{S_WAVE}, 1
        s_add_u32 s{S_T0}, s{S_T0}, s{S_T1}
        s_mul_i32 s{S_T0}, s{S_T0}, 81920
        s_and_b32 s{S_T1}, s{S_WAVE}, 1
        s_mul_i32 s{S_T1}, s{S_T1}, 40960
        s_add_u32 s{S_T0}, s{S_T0}, s{S_T1}
        s_lshr_b32 s{S_T1}, s{S_HP}, 2
        s_mul_i32 s{S_T1}, s{S_T1}, 5120
        s_add_u32 s{S_T0}, s{S_T0}, s{S_T1}
        s_and_b32 s{S_T1}, s{S_HP}, 3
        s_lshl_b32 s{S_T1}, s{S_T1}, 8
        s_add_u32 s{S_T0}, s{S_T0}, s{S_T1}
        s_add_u32 s{S_OS}, s{S_T0}, {WS_O}
        """)

    WD = 160
    def moe_load_block(self, k):
        g = self
        lab = f"L_nomoeld{k}"
        g(f"s_cmp_ge_u32 s{S_MU}, 108\ns_cbranch_scc1 {lab}")
        if k == 0:
            g(f"""
            v_lshrrev_b32 v134, 1, v1                ; HZ_SKIP_BEGIN
            v_mul_u32_u24 v134, 3456, v134
            v_and_b32 v10, 1, v1
            v_lshl_add_u32 v134, v10, 4, v134
            v_lshlrev_b32 v135, 3, v0
            """)
        else:
            g("s_nop 0 ; HZ_SKIP_BEGIN")
        g(f"""
        s_and_b32 s{S_T0}, s{S_MU}, 3
        s_add_u32 s{S_T0}, s{S_T0}, {k}
        s_cmp_ge_u32 s{S_T0}, 5
        s_cselect_b32 s{S_T1}, 5, 0
        s_sub_u32 s{S_T3}, s{S_T0}, s{S_T1}
        s_mul_i32 s{S_T1}, s{S_WAVE}, 5
        s_add_u32 s{S_T3}, s{S_T3}, s{S_T1}
        s_mul_i32 s{S_T2}, s{S_T3}, {32*3456}
        s_lshl_b32 s{S_T0}, s{S_MU}, 5
        s_add_u32 s{S_T2}, s{S_T2}, s{S_T0}
        s_lshl_b32 s{S_T1}, s{S_T3}, 10
        s_add_u32 m0, s{S_T1}, {L_G}
        s_mul_i32 s{S_T0}, s{S_MU}, {16*1280}
        buffer_load_dwordx4 v134, {srd(SRD_G)}, s{S_T2} offen lds
        s_add_u32 m0, s{S_T1}, {L_U}
        v_cmp_gt_u32 vcc, 160, v0
        buffer_load_dwordx4 v134, {srd(SRD_U)}, s{S_T2} offen lds
        s_and_saveexec_b64 {s2(S_MA)}, vcc
        s_cbranch_execz {lab}_x
        """)
        us = list(range(16))[[0, 3, 6, 9, 12][k]:[3, 6, 9, 12, 16][k]]
        for u in us:
            g(f"s_add_u32 s{S_T1}, s{S_T0}, {u*1280}\nbuffer_load_dwordx2 {ac(self.WD+2*u,2)}, v135, {srd(SRD_D)}, s{S_T1} offen")
        g(f"{lab}_x:\ns_mov_b64 exec, -1 ; HZ_SKIP_END\n{lab}:")

    def p2_reads(self, n):
        i, ks = divmod(n, 4); b = n % 3
        base = 128 + (i & 1)
        out = []
        for t in range(2):
            for rd in range(2):
                out.append(f"ds_read_b64_tr_b16 {v(92+12*b+4*t+2*rd,2)}, v{base} offset:{(16*ks+rd)*80 + 64*t}")
        for rd in range(2):
            out.append(f"ds_read_b64_tr_b16 {v(160+4*b+2*rd,2)}, v{130 + (i & 1)} offset:{(16*ks+rd)*80}")
        return out

    def p2_base(self, i):
        r = i & 1
        return [f"v_add_u32 v{128+r}, s{S_QC}, v132", f"v_add_u32 v{130+r}, s{S_QC}, v133",
                f"s_add_u32 s{S_QC}, s{S_QC}, 5120", f"s_cmp_eq_u32 s{S_QC}, 51200", f"s_cselect_b32 s{S_QC}, 0, s{S_QC}"]

    def pass2(self):
        g = self
        g(f"""
        v_bfe_u32 v9, v1, 2, 2
        v_lshlrev_b32 v9, 1, v9
        v_add_u32 v9, v9, v3
        v_lshlrev_b32 v9, 1, v9
        v_mul_u32_u24 v9, 80, v9
        v_bfe_u32 v10, v1, 4, 1
        v_and_b32 v11, 3, v1
        v_lshl_add_u32 v10, v10, 2, v11
        v_lshl_add_u32 v9, v10, 3, v9
        v_add_u32 v132, {L_WQ}, v9
        s_lshl_b32 s{S_T0}, s{S_WAVE}, 6
        v_add_u32 v133, s{S_T0}, v132
        s_mul_i32 s{S_QC}, s{S_C0}, 5120
        """)
        for n in range(5): g(f"v_accvgpr_read_b32 v{152+n}, a{200+n}")
        self.wog = self.wo_groups()
        early = self.wog[:10]
        for x in self.p2_base(0): g(x)
        for x in self.p2_reads(0): g(x)
        for x in self.p2_reads(1): g(x)
        for n in range(40):
            i, ks = divmod(n, 4); b = n % 3
            if ks == 1 and i < 9:
                for x in self.p2_base(i + 1): g(x)
            g("s_waitcnt lgkmcnt(0)" if n == 39 else "s_waitcnt lgkmcnt(6)")
            rd = self.p2_reads(n + 2) if n + 2 < 40 else []
            XP = ac(4*n, 4)
            WF = lambda t: 92 + 12*b + 4*t
            cin = lambda r, k: "0" if n == 0 else v(r, k)
            g(f"v_mfma_f32_32x32x16_bf16 v[16:31], {v(WF(0),4)}, {XP}, {cin(16,16)}")
            for x in rd[0:3]: g(x)
            g(f"v_mfma_f32_32x32x16_bf16 v[32:47], {v(WF(1),4)}, {XP}, {cin(32,16)}")
            for x in rd[3:6]: g(x)
            g(f"v_mfma_f32_4x4x4_16b_bf16 v[76:79], {v(160+4*b,2)}, v[84:85], {cin(76,4)}")
            g(f"v_mfma_f32_4x4x4_16b_bf16 v[80:83], {v(160+4*b+2,2)}, v[84:85], {cin(80,4)}")
            if n == 12: self.kv_signal()
            if n in (13, 18, 23, 28, 33): self.moe_load_block((n - 13) // 5)
            if n >= 18 and n % 2 == 0 and early:
                for x in early.pop(0): g(x)
            if n == 36: self.kv_poll_issue()
            if n in (9, 19, 29): self.stamp(f"p2_{n}")
        while early:
            for x in early.pop(0): g(x)
        self.stamp("p2end")

    def q_epilogue_a(self):
        g = self
        self.smtag = "q"
        for n in range(3):
            g(f"v_accvgpr_read_b32 v{134+n}, a{205+n}\nv_accvgpr_read_b32 v{68+n}, a{211+n}")
        self.stats_and_colsum(False)
        quads = [(16+4*j, 8*j) for j in range(4)] + [(32, 32)]
        g(f"v_lshlrev_b32 v9, 4, v3\nv_add_u32 v9, {L_CS + 512}, v9")
        self.norm_reads(quads, 512, 160)
        self.norm_apply(quads, 160, 0, scale="fold" not in self.exp)
        PK = 244
        for i in range(10):
            g(f"v_cvt_pk_bf16_f32 v{PK+i}, v{16+2*i}, v{16+2*i+1}")
        self.stamp("q_cvt")

    def q_epilogue_b(self):
        g = self
        self.featmap_mfma(244)
        for i in range(4): g(f"v_accvgpr_read_b32 v{56+i}, a{196+i}")
        self.softmax(220, 232)
        self.stamp("qdone")

    def xres_groups(self):
        XR, ST = self.XR, self.ST
        grp = []
        for n in range(3):
            grp.append([f"buffer_load_dwordx4 {v(XR+4*n,4)}, v{134+n}, {srd(SRD_X)}, s{S_XO} offen"])
            pre = [f"s_lshl_b32 s{S_T0}, s{S_ROW0}, 3", f"s_add_u32 s{S_STA}, s{S_T0}, {WS_STATS}"] if n == 0 else []
            grp.append(pre + [f"v_lshlrev_b32 v67, 3, v{68+n}", f"buffer_load_dwordx2 {v(ST+2*n,2)}, v67, {srd(SRD_WS)}, s{S_STA} offen sc1"])
        return grp

    def q_epilogue(self):
        kg = self.kv_load_groups()
        self.interleave([(x, "kvp") for x in kg[:8]], self.capture(self.q_epilogue_a))
        self.interleave([(x, "xres") for x in self.xres_groups()] + [(x, "kvp") for x in kg[8:]], self.capture(self.q_epilogue_b))
        self.dump("phiq", list(range(220, 244)))
        self.vmwait("xres")
        self.interleave([(x, "wo") for x in self.wog[10:18]], self.capture(self.residual))
        self.stamp("resid")

    def kv_poll_issue(self):
        g = self
        g(f"""
        s_add_u32 s{S_T0}, s{S_HP}, {CNT_KV}
        s_lshl_b32 s{S_T0}, s{S_T0}, 7
        v_mov_b32 v238, s{S_T0}
        v_cmp_eq_u32 vcc, 1, v1
        v_cndmask_b32 v238, v238, {CNT_KV * 128}, vcc
        v_lshlrev_b32 v240, 6, v1
        s_mov_b32 exec_lo, 15
        s_mov_b32 exec_hi, 0
        buffer_load_dword v241, v240, {srd(SRD_DBG)}, 0 offen sc1
        s_mov_b32 exec_lo, 3
        buffer_load_dword v239, v238, {srd(SRD_WS)}, 0 offen sc1
        s_mov_b64 exec, -1
        """)

    def kv_wait(self):
        g = self
        self.poll_finish("kv", SRD_WS, 16, nl=2)
        self.stamp("kvseen")
        g(f"""
        s_mov_b32 exec_lo, 15
        s_mov_b32 exec_hi, 0
        v_cmp_gt_u32 vcc, 64, v241
        s_mov_b64 exec, -1
        s_cbranch_vccz L_rmaxok
        """)
        self.poll("rmax", SRD_DBG, "v_lshlrev_b32 v9, 6, v1 ; HZ_SKIP_BEGIN", 64, nl=4)
        g(f"""
        s_nop 0 ; HZ_SKIP_END
L_rmaxok:
        s_mul_i32 s{S_KVA}, s{S_HP}, {16*KVP_SZ}
        s_add_u32 s{S_KVA}, s{S_KVA}, {WS_KVP}
        s_add_u32 s{S_KVE}, s{S_KVA}, {16*KVP_SZ}
        s_mov_b32 s{S_KVB}, s{S_KVA}
        s_and_b32 s{S_T0}, s{S_SLOT}, 7
        s_mul_i32 s{S_T0}, s{S_T0}, {2*KVP_SZ}
        s_add_u32 s{S_KVA}, s{S_KVA}, s{S_T0}
        v_lshlrev_b32 v64, 4, v0
        s_mul_i32 s{S_T0}, s{S_WAVE}, {41*16}
        s_add_u32 s{S_T0}, s{S_T0}, 4096
        v_lshl_add_u32 v65, v1, 4, s{S_T0}
        s_mov_b32 s{S_MB}, -1
        s_mov_b32 s{S_MB+1}, 0x1ff
        v_lshlrev_b32 v66, 5, v1
        v_add_u32 v66, {WS_RMAX}, v66
        """)

    def kv_load_groups(self):
        grp = []
        for p in range(16):
            grp.append([f"buffer_load_dwordx4 {ac(4*p,4)}, v64, {srd(SRD_WS)}, s{S_KVA} offen sc1", f"s_mov_b64 exec, {s2(S_MB)}",
                        ])
            grp[-1] = [f"buffer_load_dwordx4 {ac(4*p,4)}, v64, {srd(SRD_WS)}, s{S_KVA} offen sc1"]
            grp.append([f"s_mov_b64 exec, {s2(S_MB)}", f"buffer_load_dwordx4 {ac(64+4*p,4)}, v65, {srd(SRD_WS)}, s{S_KVA} offen sc1",
                        "s_mov_b64 exec, -1", f"s_add_u32 s{S_KVA}, s{S_KVA}, {KVP_SZ}",
                        f"s_cmp_eq_u32 s{S_KVA}, s{S_KVE}", f"s_cselect_b32 s{S_KVA}, s{S_KVB}, s{S_KVA}"])
        grp.append([f"buffer_load_dwordx4 v[48:51], v66, {srd(SRD_WS)}, 0 offen sc1"])
        grp.append([f"buffer_load_dwordx4 v[52:55], v66, {srd(SRD_WS)}, 0 offen offset:16 sc1"])
        return grp

    def argmax(self):
        g = self
        g(f"""
        v_cmp_gt_f32 vcc, v50, v48
        v_cndmask_b32 v48, v48, v50, vcc
        v_cndmask_b32 v49, v49, v51, vcc
        v_cmp_gt_f32 vcc, v52, v48
        v_cndmask_b32 v48, v48, v52, vcc
        v_cndmask_b32 v49, v49, v53, vcc
        v_cmp_gt_f32 vcc, v54, v48
        v_cndmask_b32 v48, v48, v54, vcc
        v_cndmask_b32 v49, v49, v55, vcc
        v_mov_b32 v50, v48
        """)
        for ctl in ("row_shr:1 row_mask:0xf bank_mask:0xf", "row_shr:2 row_mask:0xf bank_mask:0xf",
                    "row_shr:4 row_mask:0xf bank_mask:0xf", "row_shr:8 row_mask:0xf bank_mask:0xf",
                    "row_bcast:15 row_mask:0xa bank_mask:0xf", "row_bcast:31 row_mask:0xc bank_mask:0xf"):
            g(f"v_max_f32_dpp v50, v50, v50 {ctl}")
        g(f"""
        v_readlane_b32 s{S_RSEL}, v50, 63
        v_cmp_eq_f32 vcc, s{S_RSEL}, v48
        s_ff1_i32_b64 s{S_T0}, vcc
        s_max_i32 s{S_T0}, s{S_T0}, 0
        v_readlane_b32 s{S_IDX}, v49, s{S_T0}
        s_nop 0
        s_and_b32 s{S_IDX}, s{S_IDX}, 2047
        """)

    def moe_a(self):
        g = self
        WD = self.WD
        g("v_rcp_f32 v67, v67")
        for d in range(5):
            g(f"""
            v_lshlrev_b32 v168, 16, v{60+d}
            v_and_b32 v169, 0xffff0000, v{60+d}
            v_sub_f32 v168, v168, v66
            v_sub_f32 v169, v169, v66
            v_cvt_pk_bf16_f32 v168, v168, v169
            v_lshlrev_b32 v169, 16, v168
            v_and_b32 v168, 0xffff0000, v168
            v_mul_f32 v169, v169, v67
            v_mul_f32 v168, v168, v67
            v_cvt_pk_bf16_f32 v{60+d}, v169, v168
            """)
        g(f"""
        s_mul_i32 s{S_T0}, s{S_WAVE}, 1280
        s_add_u32 s{S_T0}, s{S_T0}, {L_XS}
        v_mul_u32_u24 v9, 20, v1
        v_add_u32 v9, s{S_T0}, v9
        ds_write_b32 v9, v60
        ds_write_b32 v9, v61 offset:4
        ds_write_b32 v9, v62 offset:8
        ds_write_b32 v9, v63 offset:12
        ds_write_b32 v9, v64 offset:16
        v_bfe_u32 v9, v1, 2, 2
        v_lshl_add_u32 v9, v3, 3, v9
        s_mul_i32 s{S_T1}, s{S_WAVE}, 160
        v_add_u32 v9, s{S_T1}, v9
        v_lshlrev_b32 v9, 5, v9
        v_and_b32 v10, 3, v1
        v_lshl_add_u32 v9, v10, 3, v9
        v_bfe_u32 v10, v1, 4, 1
        v_mul_u32_u24 v10, {L_U - L_G}, v10
        v_add_u32 v9, v9, v10
        v_add_u32 v9, {L_G}, v9
        s_mul_i32 s{S_T1}, s{S_WAVE}, 320
        s_add_u32 s{S_T0}, s{S_T0}, s{S_T1}
        v_lshlrev_b32 v10, 4, v3
        v_add_u32 v10, s{S_T0}, v10
        s_waitcnt lgkmcnt(0)
        """)
        def rd(ks):
            A = 32 + 8*ks
            g(f"""
            ds_read_b64_tr_b16 {v(A,2)}, v9 offset:{(16*ks)*32}
            ds_read_b64_tr_b16 {v(A+2,2)}, v9 offset:{(16*ks+4)*32}
            ds_read_b128 {v(A+4,4)}, v10 offset:{32*ks}
            """)
        for ks in range(4): rd(ks)
        for ks in range(10):
            if ks + 4 < 10:
                g("s_waitcnt lgkmcnt(9)"); rd(ks + 4) if False else None
                g(f"v_mfma_f32_32x32x16_bf16 v[16:31], {v(32+8*ks,4)}, {v(36+8*ks,4)}, {'0' if ks == 0 else 'v[16:31]'}")
                rd(ks + 4)
            else:
                g(f"s_waitcnt lgkmcnt({3*(9-ks)})")
                g(f"v_mfma_f32_32x32x16_bf16 v[16:31], {v(32+8*ks,4)}, {v(36+8*ks,4)}, v[16:31]")
        g(f"""
        s_lshl_b32 s{S_T0}, s{S_WAVE}, 7
        s_add_u32 s{S_T0}, s{S_T0}, {L_HP}
        v_lshlrev_b32 v9, 4, v3
        v_add_u32 v9, s{S_T0}, v9
        s_mov_b32 exec_lo, 1
        s_mov_b32 exec_hi, 1
        ds_write_b128 v9, v[16:19]
        ds_write_b128 v9, v[20:23] offset:32
        ds_write_b128 v9, v[24:27] offset:64
        ds_write_b128 v9, v[28:31] offset:96
        s_mov_b64 exec, -1
        s_waitcnt lgkmcnt(0)
        """)

    def moe_b(self):
        g = self
        WD = self.WD
        g(f"""
        v_and_b32 v9, 15, v1
        v_lshlrev_b32 v9, 2, v9
        v_add_u32 v9, {L_HP}, v9
        ds_read_b32 v160, v9
        ds_read_b32 v161, v9 offset:128
        ds_read_b32 v162, v9 offset:256
        ds_read_b32 v163, v9 offset:384
        ds_read_b32 v164, v9 offset:64
        ds_read_b32 v165, v9 offset:192
        ds_read_b32 v166, v9 offset:320
        ds_read_b32 v167, v9 offset:448
        s_waitcnt lgkmcnt(0)
        v_add_f32 v160, v160, v161
        v_add_f32 v162, v162, v163
        v_add_f32 v164, v164, v165
        v_add_f32 v166, v166, v167
        v_add_f32 v160, v160, v162
        v_add_f32 v164, v164, v166
        """)
        g.rnd_bf16(160, 160); g.rnd_bf16(164, 164)
        g(f"""
        v_mul_f32 v161, 0xbfb8aa3b, v160
        v_exp_f32 v161, v161
        v_add_f32 v161, 1.0, v161
        v_rcp_f32 v161, v161
        v_mul_f32 v160, v160, v161
        """)
        g.rnd_bf16(160, 160)
        g("v_mul_f32 v160, v160, v164")
        g.rnd_bf16(160, 160)
        g("""
        v_mov_b32 v161, v160
        s_nop 1
        v_mov_b32_dpp v161, v160 row_shl:1 row_mask:0xf bank_mask:0xf
        s_nop 1
        v_cvt_pk_bf16_f32 v160, v160, v161
        """)
        for i in range(4): g(f"v_mov_b32 v{16+i}, 0")
        g("s_mov_b32 s74, 0x05040100\nv_mov_b32 v26, s74\ns_mov_b32 s74, 0x07060302\nv_mov_b32 v27, s74")
        for p in range(8):
            a0, a1 = WD + 4*p, WD + 4*p + 2
            g(f"""
            v_readlane_b32 s74, v160, {2*p}
            v_accvgpr_read_b32 v20, a{a0}
            v_accvgpr_read_b32 v21, a{a0+1}
            v_accvgpr_read_b32 v22, a{a1}
            v_accvgpr_read_b32 v23, a{a1+1}
            v_perm_b32 v24, v22, v20, v26
            v_perm_b32 v25, v22, v20, v27
            v_perm_b32 v28, v23, v21, v26
            v_perm_b32 v29, v23, v21, v27
            v_dot2c_f32_bf16 v16, s74, v24
            v_dot2c_f32_bf16 v17, s74, v25
            v_dot2c_f32_bf16 v18, s74, v28
            v_dot2c_f32_bf16 v19, s74, v29
            """)
        g("s_nop 2")

    def kv_addresses(self):
        g = self
        for k, (gi, out1, out2) in enumerate(((0, 196, 197), (256, 198, 199))):
            if k == 0: g("v_mov_b32 v9, v0")
            else: g(f"s_mul_i32 s{S_T0}, s{S_WAVE}, 41\ns_add_u32 s{S_T0}, s{S_T0}, 256\nv_add_u32 v9, s{S_T0}, v1")
            g(f"""
            v_cmp_lt_u32 vcc, 209, v9
            v_cndmask_b32 v10, 0, 1, vcc
            v_mul_u32_u24 v11, 210, v10
            v_sub_u32 v9, v9, v11
            v_mul_u32_u24 v11, 3121, v9
            v_lshrrev_b32 v11, 16, v11
            v_mul_u32_u24 v12, 21, v11
            v_sub_u32 v12, v9, v12
            v_lshrrev_b32 v13, 1, v11
            v_and_b32 v14, 1, v11
            v_cmp_lt_u32 vcc, 7, v11
            v_subrev_u32 v15, 4, v11
            v_cndmask_b32 v13, v13, v15, vcc
            v_cndmask_b32 v14, v14, 0, vcc
            v_lshrrev_b32 v15, 1, v13
            v_and_b32 v13, 1, v13
            v_mul_u32_u24 v15, 1024, v15
            v_lshl_add_u32 v15, v13, 9, v15
            v_lshl_add_u32 v15, v14, 3, v15
            v_mul_u32_u24 v13, 3072, v10
            v_add_u32 v15, v15, v13
            v_add_u32 v15, {L_KVF}, v15
            v_lshlrev_b32 v13, 2, v10
            v_sub_u32 v13, v12, v13
            v_add_u32 v14, 20, v13
            v_cmp_gt_i32 vcc, 0, v13
            v_cndmask_b32 v13, v13, v14, vcc
            v_subrev_u32 v14, 16, v13
            v_lshrrev_b32 v60, 3, v13
            v_and_b32 v61, 7, v13
            v_lshrrev_b32 v62, 1, v14
            v_and_b32 v63, 1, v14
            v_add_u32 v63, 8, v63
            v_cmp_lt_u32 vcc, 15, v13
            v_cndmask_b32 v60, v60, v62, vcc
            v_cndmask_b32 v61, v61, v63, vcc
            v_lshrrev_b32 v62, 2, v61
            v_lshlrev_b32 v62, 3, v62
            v_lshl_add_u32 v62, v60, 2, v62
            v_and_b32 v61, 3, v61
            v_add_u32 v62, v62, v61
            v_cmp_eq_u32 vcc, 20, v12
            v_cndmask_b32 v63, v62, 22, vcc
            v_cndmask_b32 v62, v62, 18, vcc
            v_lshl_add_u32 v62, v62, 4, v15
            v_lshl_add_u32 v63, v63, 4, v15
            v_accvgpr_write_b32 a{out1}, v62
            v_accvgpr_write_b32 a{out2}, v63
            """)

    def kv_reduce_and_o(self):
        g = self
        for n in range(3):
            g(f"v_accvgpr_read_b32 v{137+n}, a{208+n}\nv_accvgpr_read_b32 v{140+n}, a{211+n}\nv_accvgpr_read_b32 v{143+n}, a{214+n}")
        g.vmwait("kvp")
        self.stamp("kvdata")
        g(f"s_cmp_ge_u32 s{S_MU}, 108\ns_cbranch_scc1 L_noxrow\ns_nop 0 ; HZ_SKIP_BEGIN")
        self.argmax()
        g(f"""
        v_mul_u32_u24 v9, 20, v1
        s_mul_i32 s{S_T1}, s{S_IDX}, 1280
        buffer_load_dwordx4 v[60:63], v9, {srd(SRD_X)}, s{S_T1} offen
        buffer_load_dword v64, v9, {srd(SRD_X)}, s{S_T1} offen offset:16
        s_lshl_b32 s{S_T1}, s{S_IDX}, 3
        s_add_u32 s{S_T1}, s{S_T1}, {WS_STATS}
        v_mov_b32 v9, 0
        buffer_load_dwordx2 v[66:67], v9, {srd(SRD_WS)}, s{S_T1} offen sc1   ; HZ_SKIP_END
L_noxrow:
        """)
        def reduce():
            for base, acc in ((0, 16), (64, 92)):
                for e in range(4): g(f"v_accvgpr_read_b32 v{acc+e}, a{base+e}")
                for p in range(1, 16):
                    t = acc + 4 + 4 * (p & 1)
                    for e in range(4): g(f"v_accvgpr_read_b32 v{t+e}, a{base+4*p+e}")
                    g(f"v_pk_add_f32 {v(acc,2)}, {v(acc,2)}, {v(t,2)}\nv_pk_add_f32 {v(acc+2,2)}, {v(acc+2,2)}, {v(t+2,2)}")
        self.interleave([(x, "wo") for x in self.wog[18:]], self.capture(reduce))
        self.stamp("r_sum")
        g(f"""
        v_cvt_pk_bf16_f32 v16, v16, v17
        v_cvt_pk_bf16_f32 v17, v18, v19
        v_cvt_pk_bf16_f32 v92, v92, v93
        v_cvt_pk_bf16_f32 v93, v94, v95
        ds_write_b64 v56, v[16:17]
        ds_write_b64 v57, v[16:17]
        s_mov_b64 exec, {s2(S_MB)}
        ds_write_b64 v58, v[92:93]
        ds_write_b64 v59, v[92:93]
        s_mov_b64 exec, -1
        s_waitcnt lgkmcnt(0)
        s_barrier
        v_lshlrev_b32 v9, 4, v1
        v_add_u32 v9, {L_KVF}, v9
        """)
        self.stamp("r_bar")
        for a in range(2):
            for t in range(3):
                g(f"ds_read_b128 {v(92+12*a+4*t,4)}, v9 offset:{a*3072 + t*1024}")
        self.dump("kvf", list(range(92, 116)))
        for a, (acc, H) in enumerate(((16, 220), (32, 232))):
            g(f"s_waitcnt lgkmcnt({3 - 3*a})")
            for t in range(3):
                g(f"v_mfma_f32_32x32x16_bf16 {v(acc,16)}, {v(92+12*a+4*t,4)}, {v(H+4*t,4)}, {'0' if t == 0 else v(acc,16)}")
        self.dump("num", list(range(16, 48)))
        g("v_accvgpr_read_b32 v10, a217\nv_accvgpr_read_b32 v11, a218\nv_mov_b32 v12, 0x358637bd")
        for a, (acc, P) in enumerate(((16, 160), (32, 166))):
            g(f"v_add_f32 v{acc+10}, v{acc+10}, v12\nv_rcp_f32 v{acc+10}, v{acc+10}")
        for a, (acc, P) in enumerate(((16, 160), (32, 166))):
            for i in range(5):
                g(f"v_pk_mul_f32 {v(acc+2*i,2)}, {v(acc+2*i,2)}, {v(acc+10,2)} op_sel_hi:[1,0]")
            for i in range(5):
                g(f"v_cvt_pk_bf16_f32 v{P+i}, v{acc+2*i}, v{acc+2*i+1}")
        self.dump("o", list(range(160, 165)) + list(range(166, 171)))
        g(f"""
        v_mov_b32 v172, v164
        v_mov_b32 v173, v170
        s_nop 1
        v_permlane32_swap_b32 v172, v173
        buffer_store_dwordx4 v[160:163], v10, {srd(SRD_WS)}, s{S_OS} offen sc1
        buffer_store_dwordx2 v[172:173], v11, {srd(SRD_WS)}, s{S_OS} offen offset:2048 sc1
        buffer_store_dwordx4 v[166:169], v10, {srd(SRD_WS)}, s{S_OS} offen offset:3072 sc1
        """)
        self.stamp("o_store")
        g(f"s_cmp_lt_u32 s{S_MU}, 108\ns_cbranch_scc1 L_moea\ns_nop 0 ; HZ_SKIP_BEGIN")
        self.argmax()
        g("s_branch L_moeadone ; HZ_SKIP_END\nL_moea:\ns_waitcnt vmcnt(10) ; HZ_SKIP_BEGIN")
        self.moe_a()
        g("s_nop 0 ; HZ_SKIP_END\nL_moeadone:")
        self.stamp("o_wo8")
        g("s_waitcnt vmcnt(0)")
        self.stamp("o_drain")
        self.signal("o", f"s_add_u32 s{S_T0}, s{S_RB}, {CNT_O}", drain=False)
        self.stamp("osig")

    XR, RS, ST = 16, 176, 28
    NA = 12
    YQ = [100, 104, 108, 112, 116, 120, 124, 146, 150]
    def wo_groups(self):
        grp = []
        for j in (3, 4, 0, 1, 2):
            for n in range(5):
                gl = []
                if n == 0:
                    gl += [f"s_add_u32 s{S_T3}, s{S_WAVE}, {4*j}", f"s_mul_i32 s{S_WOL}, s{S_T3}, 5120",
                           f"s_mul_i32 s{S_T4}, s{S_T3}, 13108", f"s_lshr_b32 s{S_T4}, s{S_T4}, 16",
                           f"s_mul_i32 s{S_T4}, s{S_T4}, {120*1280}", f"s_mul_i32 s{S_T3}, s{S_T3}, {8*1280}",
                           f"s_add_u32 s{S_T3}, s{S_T3}, s{S_T4}", f"s_add_u32 s{S_WOS}, s{S_T3}, s{S_WOG}"]
                gl += [f"s_add_u32 m0, s{S_WOL}, {L_WO + n*1024}", "s_nop 0",
                       f"buffer_load_dwordx4 v{152+n}, {srd(SRD_WO)}, s{S_WOS} offen lds"]
                grp.append(gl)
        return grp

    def c_addresses(self):
        g = self
        for n in range(5):
            g(f"""
            v_add_u32 v9, {64*n}, v1
            v_mul_u32_u24 v10, 6554, v9
            v_lshrrev_b32 v10, 16, v10
            v_mul_u32_u24 v11, 10, v10
            v_sub_u32 v11, v9, v11
            v_bfe_u32 v12, v10, 3, 1
            v_bfe_u32 v13, v10, 2, 1
            v_lshl_add_u32 v12, v12, 1, v13
            v_mul_u32_u24 v12, 40, v12
            v_lshrrev_b32 v13, 4, v10
            v_lshl_add_u32 v12, v13, 2, v12
            v_and_b32 v13, 3, v10
            v_add_u32 v12, v12, v13
            v_mul_u32_u24 v12, 1280, v12
            v_lshl_add_u32 v12, v11, 4, v12
            v_accvgpr_write_b32 a{200+n}, v12
            """)
            if n < 3:
                g(f"""
                v_min_u32 v10, 15, v10
                v_mul_u32_u24 v12, 1280, v10
                v_lshl_add_u32 v12, v11, 4, v12
                v_accvgpr_write_b32 a{205+n}, v12
                v_mul_u32_u24 v12, 336, v10
                v_lshl_add_u32 v12, v11, 5, v12
                v_accvgpr_write_b32 a{208+n}, v12
                v_accvgpr_write_b32 a{211+n}, v10
                v_lshlrev_b32 v12, 5, v11
                v_accvgpr_write_b32 a{214+n}, v12
                """)

    def o_addresses(self):
        g = self
        g("""
        v_lshrrev_b32 v9, 4, v2
        v_mul_u32_u24 v9, 20480, v9
        v_and_b32 v10, 15, v2
        v_lshl_add_u32 v9, v10, 4, v9
        v_lshl_add_u32 v10, v3, 10, v9
        v_lshl_add_u32 v11, v3, 3, v9
        v_accvgpr_write_b32 a217, v10
        v_accvgpr_write_b32 a218, v11
        """)

    def residual(self):
        g = self
        XR, RS, ST = self.XR, self.RS, self.ST
        for n in range(3):
            xr, rs, st = XR + 4*n, RS + 8*n, ST + 2*n
            g(f"v_rcp_f32 v{st+1}, v{st+1}")
            for d in range(4):
                g(f"""
                v_lshlrev_b32 v10, 16, v{xr+d}
                v_and_b32 v11, 0xffff0000, v{xr+d}
                v_sub_f32 v12, v10, v{st}
                v_sub_f32 v13, v11, v{st}
                v_cvt_pk_bf16_f32 v12, v12, v13
                v_lshlrev_b32 v13, 16, v12
                v_and_b32 v12, 0xffff0000, v12
                v_mul_f32 v13, v13, v{st+1}
                v_mul_f32 v12, v12, v{st+1}
                v_cvt_pk_bf16_f32 v12, v13, v12
                v_lshlrev_b32 v13, 16, v12
                v_and_b32 v12, 0xffff0000, v12
                v_add_f32 v{rs+2*d}, v13, v10
                v_add_f32 v{rs+2*d+1}, v12, v11
                """)

    def y_gather(self):
        g = self
        Y = self.YQ[0]
        g(f"""
        s_cmp_ge_u32 s{S_OWN}, 64
        s_cbranch_scc1 L_noown2
        s_mov_b32 s74, 0                       ; HZ_SKIP_BEGIN
        s_mov_b32 s{S_T2}, 0x0c0c0400
        s_mov_b32 s{S_T3}, 0x04000c0c
        v_mov_b32 v215, s{S_T2}
        v_mov_b32 v216, s{S_T3}
        s_sub_u32 s{S_T4}, 0, s{S_TAG}
        s_mov_b32 exec_hi, 0x0fffffff
L_ycheck:
        s_waitcnt vmcnt(0)
        v_mov_b32 v217, 0
        """)
        for j in range(9):
            q = self.YQ[j]
            g(f"""
            v_perm_b32 v218, v{q+1}, v{q}, v215
            v_perm_b32 v219, v{q+3}, v{q+2}, v216
            v_add3_u32 v218, v218, v219, s{S_T4}
            v_or_b32 v217, v217, v218
            """)
        g(f"""
        v_cmp_ne_u32 vcc, 0, v217
        s_cbranch_vccz L_yok
        s_add_u32 s74, s74, 1
        s_cmp_gt_u32 s74, {SPIN_LIMIT}
        s_cbranch_scc1 L_yok
        s_mov_b32 s{S_T0}, s{S_YA}
        """)
        for j in range(9):
            g(f"buffer_load_dwordx4 {v(self.YQ[j],4)}, v214, {srd(SRD_WS)}, s{S_T0} offen sc1\ns_add_u32 s{S_T0}, s{S_T0}, {3*2560}")
        g("""
        s_branch L_ycheck
L_yok:
        s_mov_b64 exec, -1
        """)
        for j in range(1, 9):
            q = self.YQ[j]
            g(f"v_pk_add_f32 {v(Y,2)}, {v(Y,2)}, {v(q,2)}\nv_pk_add_f32 {v(Y+2,2)}, {v(Y+2,2)}, {v(q+2,2)}")
        g(f"""
        s_mov_b32 exec_hi, 0x0fffffff
        ds_write_b128 v204, {v(Y,4)}
        s_mov_b64 exec, -1
        """)
        g("s_nop 0 ; HZ_SKIP_END\nL_noown2:")

    def phase_c(self):
        g = self
        XR, RS, ST = self.XR, self.RS, self.ST
        self.stamp("argmax")
        g(f"s_cmp_ge_u32 s{S_MU}, 108\ns_cbranch_scc1 L_wodone")
        g("s_nop 0 ; HZ_SKIP_BEGIN")
        self.moe_b()
        g(f"""
        s_movk_i32 s{S_T1}, 0xff
        s_lshr_b32 s{S_T2}, s{S_TAG}, 8
        s_lshr_b32 s{S_T3}, s{S_TAG}, 16
        s_lshr_b32 s{S_T4}, s{S_TAG}, 24
        v_mov_b32 v20, s{S_TAG}
        v_mov_b32 v21, s{S_T2}
        v_mov_b32 v22, s{S_T3}
        v_mov_b32 v23, s{S_T4}
        v_bfi_b32 v16, s{S_T1}, v20, v16
        v_bfi_b32 v17, s{S_T1}, v21, v17
        v_bfi_b32 v18, s{S_T1}, v22, v18
        v_bfi_b32 v19, s{S_T1}, v23, v19
        s_mul_i32 s{S_T0}, s{S_MU}, 2560
        s_add_u32 s{S_T0}, s{S_T0}, {WS_Y}
        v_lshlrev_b32 v9, 4, v0
        v_cmp_gt_u32 vcc, 160, v0
        s_and_saveexec_b64 {s2(S_MA)}, vcc
        s_cbranch_execz L_noy
        buffer_store_dwordx4 v[16:19], v9, {srd(SRD_WS)}, s{S_T0} offen sc1
L_noy:
        s_mov_b64 exec, -1
        s_nop 0 ; HZ_SKIP_END
L_wodone:
        """)
        self.stamp("moedone"); self.mark("moedone")
        g(f"""
        v_bfe_u32 v10, v1, 5, 1
        v_lshlrev_b32 v10, 3, v10
        v_bfe_u32 v11, v1, 4, 1
        v_lshl_add_u32 v10, v11, 2, v10
        v_bfe_u32 v11, v1, 2, 2
        v_add_u32 v10, v10, v11
        v_mul_u32_u24 v10, 160, v10
        v_and_b32 v11, 3, v1
        v_lshl_add_u32 v10, v11, 3, v10
        v_add_u32 v236, {L_WO}, v10
        v_add_u32 v237, {L_WO + 10*5120}, v10
        """)
        NA = self.NA
        def wo_reads(ks):
            base = 236 + ks // 10
            out = []
            for ct in range(5):
                for rd in range(2):
                    dst = ac(20*ks + 4*ct + 2*rd, 2) if ks < NA else v(40 + 20*(ks % 3) + 4*ct + 2*rd, 2)
                    out.append(f"ds_read_b64_tr_b16 {dst}, v{base} offset:{(ks % 10)*5120 + rd*2560 + ct*32}")
            return out
        if "poll1" in self.exp: g(f"s_cmp_lg_u32 s{S_WAVE}, 0\ns_cbranch_scc1 L_noisso\ns_nop 0 ; HZ_SKIP_BEGIN")
        self.poll_issue(SRD_WS, f"s_lshr_b32 s{S_T0}, s{S_RB64}, 1\ns_add_u32 s{S_T0}, s{S_T0}, {CNT_O}\ns_lshl_b32 s{S_T0}, s{S_T0}, 7\nv_mov_b32 v238, s{S_T0}")
        if "poll1" in self.exp: g("s_nop 0 ; HZ_SKIP_END\nL_noisso:")
        for ks in range(NA + 2):
            for x in wo_reads(ks): g(x)
            if ks < NA + 1: g("s_waitcnt lgkmcnt(5)")
        g(f"""
        s_lshl_b32 s{S_T0}, s{S_RB64}, 6
        s_sub_u32 s{S_OWN}, s{S_IDX}, s{S_T0}
        s_cmp_ge_u32 s{S_OWN}, 64
        s_cbranch_scc1 L_noown0
        v_min_u32 v10, 19, v1                  ; HZ_SKIP_BEGIN
        v_lshlrev_b32 v10, 3, v10
        s_mul_i32 s{S_T0}, s{S_IDX}, 1280
        s_mul_i32 s{S_T1}, s{S_CB}, 160
        s_add_u32 s{S_T0}, s{S_T0}, s{S_T1}
        buffer_load_dwordx2 v[200:201], v10, {srd(SRD_X)}, s{S_T0} offen
        s_lshl_b32 s{S_T0}, s{S_IDX}, 3
        s_add_u32 s{S_T0}, s{S_T0}, {WS_STATS}
        v_mov_b32 v10, 0
        buffer_load_dwordx2 v[202:203], v10, {srd(SRD_WS)}, s{S_T0} offen sc1   ; HZ_SKIP_END
L_noown0:
        """)
        if "poll1" in self.exp:
            g(f"s_waitcnt vmcnt(0)\ns_cmp_lg_u32 s{S_WAVE}, 0\ns_cbranch_scc1 L_nopollo\ns_nop 0 ; HZ_SKIP_BEGIN")
            self.poll_finish("o", SRD_WS, 16)
            g("s_nop 0 ; HZ_SKIP_END\nL_nopollo:\ns_barrier")
        else:
            self.poll_finish("o", SRD_WS, 16)
        self.stamp("oseen"); self.dbg_span(8, False); self.mark("oseen")
        g(f"""
        s_mul_i32 s{S_T0}, s{S_RB64}, 81920
        s_mul_i32 s{S_T1}, s{S_WAVE}, 20480
        s_add_u32 s{S_T0}, s{S_T0}, s{S_T1}
        s_add_u32 s{S_T0}, s{S_T0}, {WS_O}
        v_lshlrev_b32 v9, 4, v1
        """)
        self.vm = []
        regs_o = list(range(100, 128, 4)) + list(range(146, 174, 4)) + [220, 224, 228, 232, 240, 244]
        assert len(regs_o) == 20, len(regs_o)
        def oload(ks):
            g(f"buffer_load_dwordx4 {v(regs_o[ks],4)}, v9, {srd(SRD_WS)}, s{S_T0} offen sc1\ns_add_u32 s{S_T0}, s{S_T0}, 1024")
            g.vmi(f"o{ks}")
        AHEAD = 10
        for ks in range(AHEAD): oload(ks)
        g(f"s_cmp_ge_u32 s{S_OWN}, 64\ns_cbranch_scc1 L_noownp")
        g(f"""
        v_mov_b32 v205, s{S_RSEL}              ; HZ_SKIP_BEGIN
        """)
        g.rnd_bf16(205, 205)
        g(f"""
        v_mul_f32 v205, 0xbfb8aa3b, v205
        v_exp_f32 v205, v205
        v_rcp_f32 v203, v203
        v_add_f32 v205, 1.0, v205
        v_rcp_f32 v205, v205
        v_lshlrev_b32 v206, 16, v200
        v_and_b32 v207, 0xffff0000, v200
        v_lshlrev_b32 v208, 16, v201
        v_and_b32 v209, 0xffff0000, v201
        """)
        g.rnd_bf16(205, 205)
        for e in range(4):
            g(f"v_sub_f32 v{206+e}, v{206+e}, v202")
            g.rnd_bf16(206+e, 206+e)
            g(f"v_mul_f32 v{206+e}, v{206+e}, v203")
            g.rnd_bf16(206+e, 206+e)
        g("s_nop 0 ; HZ_SKIP_END\nL_noownp:")
        self.stamp("c_issued")
        for ks in range(20):
            if ks == 0: g("s_waitcnt lgkmcnt(0)")
            elif ks >= NA: g("s_waitcnt lgkmcnt(5)" if ks < 18 else ("s_waitcnt lgkmcnt(10)" if ks < 19 else "s_waitcnt lgkmcnt(0)"))
            if ks < 16: g.vmwait(f"o{ks}")
            if ks == 11:
                g(f"s_cmp_ge_u32 s{S_OWN}, 64\ns_cbranch_scc1 L_noown1\ns_nop 0 ; HZ_SKIP_BEGIN")
                g(f"""
                v_mul_u32_u24 v10, 3277, v1
                v_lshrrev_b32 v10, 16, v10
                v_mul_u32_u24 v11, 20, v10
                v_sub_u32 v11, v1, v11
                v_mul_u32_u24 v214, 2560, v10
                v_lshl_add_u32 v214, v11, 4, v214
                s_mul_i32 s{S_T0}, s{S_CB}, 320
                s_mul_i32 s{S_T1}, s{S_WAVE}, {27*2560}
                s_add_u32 s{S_T0}, s{S_T0}, s{S_T1}
                s_add_u32 s{S_YA}, s{S_T0}, {WS_Y}
                s_mov_b32 s{S_T0}, s{S_YA}
                s_mov_b32 exec_hi, 0x0fffffff
                """)
                for j in range(9):
                    g(f"buffer_load_dwordx4 {v(self.YQ[j],4)}, v214, {srd(SRD_WS)}, s{S_T0} offen sc1\ns_add_u32 s{S_T0}, s{S_T0}, {3*2560}")
                g(f"""
                s_mov_b64 exec, -1
                v_mul_u32_u24 v12, 320, v10
                v_lshl_add_u32 v12, v11, 4, v12
                s_mul_i32 s{S_T1}, s{S_WAVE}, 960
                s_add_u32 s{S_T1}, s{S_T1}, {L_YR}
                v_add_u32 v204, s{S_T1}, v12
                s_nop 0 ; HZ_SKIP_END
L_noown1:
                """)
            if ks == 16:
                g("s_waitcnt vmcnt(0)")
                self.y_gather()
            if ks in (0, 5, 10, 15): self.stamp(f"c_o{ks}")
            rd = wo_reads(ks + 2) if NA <= ks < 18 else []
            for ct in range(5):
                cin = "0" if ks == 0 else v(16+4*ct, 4)
                A = ac(20*ks + 4*ct, 4) if ks < NA else v(40 + 20*(ks % 3) + 4*ct, 4)
                g(f"v_mfma_f32_16x16x32_bf16 {v(16+4*ct,4)}, {A}, {v(regs_o[ks],4)}, {cin}")
                for x in rd[2*ct:2*ct+2]: g(x)
            if ks + AHEAD < 20: oload(ks + AHEAD)
        self.stamp("cmfma"); self.mark("cmfma")
        g(f"s_cmp_ge_u32 s{S_OWN}, 64\ns_cbranch_scc1 L_noown3\ns_nop 0 ; HZ_SKIP_BEGIN")
        g(f"""
        v_min_u32 v10, 19, v1
        v_lshlrev_b32 v10, 4, v10
        v_add_u32 v10, {L_YR}, v10
        s_waitcnt lgkmcnt(0)
        s_barrier
        """)
        Y = 40
        for j in range(12):
            g(f"ds_read_b128 {v(Y+4*j,4)}, v10 offset:{320*j}")
        g("s_waitcnt lgkmcnt(0)")
        for j in range(1, 12):
            g(f"v_pk_add_f32 {v(Y,2)}, {v(Y,2)}, {v(Y+4*j,2)}\nv_pk_add_f32 {v(Y+2,2)}, {v(Y+2,2)}, {v(Y+4*j+2,2)}")
        for e in range(4):
            g.rnd_bf16(Y+e, Y+e)
            g(f"v_mul_f32 v{Y+e}, v{Y+e}, v205")
            g.rnd_bf16(Y+e, Y+e)
            g(f"v_add_f32 v{Y+e}, v{Y+e}, v{206+e}")
            g.rnd_bf16(Y+e, Y+e)
            g(f"v_sub_f32 v{210+e}, v{Y+e}, v{206+e}")
        g("s_nop 0 ; HZ_SKIP_END\nL_noown3:")
        g(f"""
        s_mul_i32 s{S_T0}, s{S_WAVE}, 5376
        s_add_u32 s{S_T0}, s{S_T0}, {L_OST}
        v_and_b32 v9, 15, v1
        v_mul_u32_u24 v9, 336, v9
        v_lshrrev_b32 v10, 4, v1
        v_lshl_add_u32 v9, v10, 4, v9
        v_add_u32 v9, s{S_T0}, v9
        """)
        for ct in range(5): g(f"ds_write_b128 v9, {v(16+4*ct,4)} offset:{64*ct}")
        for n in range(3): g(f"v_add_u32 v{10+n}, s{S_T0}, v{137+n}")
        g(f"""
        s_waitcnt lgkmcnt(0)
        s_sub_u32 s{S_T4}, s{S_IDX}, s{S_ROW0}
        s_cmp_ge_u32 s{S_T4}, 16
        s_cbranch_scc1 L_norow
        s_mul_i32 s{S_T4}, s{S_T4}, 336            ; HZ_SKIP_BEGIN
        s_add_u32 s{S_T4}, s{S_T4}, s{S_T0}
        v_lshl_add_u32 v9, v1, 4, s{S_T4}
        s_mov_b32 exec_lo, 0xfffff
        s_mov_b32 exec_hi, 0
        ds_read_b128 v[40:43], v9
        s_waitcnt lgkmcnt(0)
        v_pk_add_f32 v[40:41], v[40:41], v[210:211]
        v_pk_add_f32 v[42:43], v[42:43], v[212:213]
        ds_write_b128 v9, v[40:43]
        s_waitcnt lgkmcnt(0)
        s_mov_b64 exec, -1                         ; HZ_SKIP_END
L_norow:
        """)
        for n in range(3):
            g(f"ds_read_b128 {v(40+8*n,4)}, v{10+n}\nds_read_b128 {v(44+8*n,4)}, v{10+n} offset:16")
        for n in range(3):
            rs = RS + 8*n
            g(f"s_waitcnt lgkmcnt({4 - 2*n})")
            for e in range(0, 8, 2):
                g(f"v_pk_add_f32 {v(40+8*n+e,2)}, {v(40+8*n+e,2)}, {v(rs+e,2)}")
            for e in range(4):
                g(f"v_cvt_pk_bf16_f32 v{64+4*n+e}, v{40+8*n+2*e}, v{40+8*n+2*e+1}")
            if n == 2: g("s_mov_b32 exec_hi, 0")
            g(f"buffer_store_dwordx4 {v(64+4*n,4)}, v{134+n}, {srd(SRD_OUT)}, s{S_XO} offen")
        g("s_mov_b64 exec, -1")
        self.stamp("end"); self.stamp("clk1", True)

    def rest(self):
        self.publish_kv()
        self.dbg_span(4, False); self.mark("kvsig")
        self.pass2()
        self.kv_wait()
        self.dbg_span(9, False); self.mark("kvseen")
        self.q_epilogue()
        self.dbg_span(5, False)
        self.kv_reduce_and_o()
        self.dbg_span(6, False); self.mark("osig")
        self.phase_c()
```

```python
import sys, re
from asmlib import Asm, kernel_header
import hazard

NAME = "parallel_sum__linear_kernel_hedgehog__moe_arch_mod__prompt_kernel"

WS_CNT   = 0
WS_KVP   = 0x10000
KVP_SZ   = 6784
WS_O     = 0x200000
WS_STATS = 0x500000
WS_RMAX  = 0x508000
WS_Y     = 0x510000
WS_DBG   = 0x800000
WS_TS    = 0x700000
WS_SIZE  = 268435456

SLOT     = 28672
L_WQ     = 0
L_T      = 57344
L_WO     = 0
L_G      = 102400
L_U      = L_G + 20480 + 128
L_OST    = L_G
L_YR     = L_OST + 4 * 5376
L_MISC   = L_U + 20480
L_WPHI   = L_MISC
L_CS     = L_WPHI + 4 * 1664
L_P0     = L_CS + 1024
L_KVF    = L_P0 + 64
L_XS     = L_KVF + 6144
L_HP     = L_XS + 5120
L_END    = L_HP + 640
LDS_SIZE = 163840
assert L_END <= LDS_SIZE, L_END
assert 5 * SLOT <= L_MISC

S_WAVE = 3
SRD_X, SRD_W, SRD_PHI, SRD_WO, SRD_WR, SRD_G, SRD_U, SRD_D, SRD_OUT, SRD_DBG, SRD_WS = range(4, 48, 4)
S_XCD, S_SLOT, S_RB, S_HP = 48, 49, 50, 51
S_XB, S_WB, S_LX, S_LW = 52, 53, 54, 55
S_WM = 56
S_T0, S_T1, S_T2, S_T3, S_T4, S_T5 = 62, 63, 64, 65, 66, 67
S_MA, S_MB = 68, 70
S_C0, S_CC, S_CX, S_CW = 76, 77, 78, 79
S_WQL, S_WQG, S_P0ROW, S_IDX = 80, 81, 82, 83
S_KVS = 75
S_TS = 86

def srd(n): return f"s[{n}:{n+3}]"
def v(b, n=1): return f"v{b}" if n == 1 else f"v[{b}:{b+n-1}]"
def ac(b, n=1): return f"a{b}" if n == 1 else f"a[{b}:{b+n-1}]"
def s2(b): return f"s[{b}:{b+1}]"


class Gen:
    def __init__(self, stop=None, dumps=(), stamps=False, touch=True, exp=()):
        self.touch = touch
        self.dist = 2 if "d2" in exp else 3
        self.exp = set(exp)
        self.a = Asm()
        self.vm = []
        self.stop = stop
        self.dumps = set(dumps)
        self.stamps = stamps
        self.nstamp = 0
        self.pending = []
        self.dump_off = 0
        self.dump_index = {}

    def __call__(self, t):
        self.a(t)
        if self.stamps and self.pending and not getattr(self, "capturing", False) and not self.in_skip(t):
            last = t.strip().split("\n")[-1].strip()
            if last.startswith("s_waitcnt") and "lgkmcnt(0)" in last: self.flush_stamps()

    def in_skip(self, t):
        for l in t.split("\n"):
            if "HZ_SKIP_BEGIN" in l: self.skipdepth = 1
            if "HZ_SKIP_END" in l: self.skipdepth = 0
        return getattr(self, "skipdepth", 0) > 0

    def vmi(self, tag, n=1):
        self.vm += [tag] * n
    def capture(self, fn):
        old, self.a.lines = self.a.lines, []
        self.capturing = True
        fn()
        self.capturing = False
        out, self.a.lines = self.a.lines, old
        return [l.strip() for l in out if l.strip()]

    def atoms(self, lines):
        out, cur, hold = [], [], None
        for l in lines:
            cur.append(l)
            code = l.split(";")[0].strip()
            if hold is None:
                if re.match(r"s_(mov|brev|and_saveexec)\w* (exec|exec_lo|exec_hi)\b", code) or code.startswith("s_and_saveexec"):
                    if not code.endswith("exec, -1"): hold = "exec"
                elif code.startswith("s_cmp"): hold = "label"
            else:
                if hold == "exec" and code == "s_mov_b64 exec, -1": hold = None
                elif hold == "label" and (code.endswith(":") or code.startswith("s_cselect")): hold = None
            if hold is None and not l.endswith(";+"):
                out.append(cur); cur = []
        if cur: out.append(cur)
        return out

    def interleave(self, groups, filler):
        at = self.atoms(filler)
        total = sum(len(a) for a in at)
        done = 0
        for i, (lines, tag) in enumerate(groups):
            for x in lines: self(x)
            self.vmi(tag)
            target = total * (i + 1) // len(groups)
            while at and done < target:
                a = at.pop(0); done += len(a)
                for x in a: self.emit_resolved(x)
        for a in at:
            for x in a: self.emit_resolved(x)

    def emit_resolved(self, x):
        if x.startswith("@VMWAIT "): self.vmwait(x.split()[1])
        elif x.startswith("@STAMP "): self.stamp(x.split()[1])
        else: self(x)

    def vmwait(self, tag):
        if getattr(self, "capturing", False):
            self(f"@VMWAIT {tag}"); return
        last = max(i for i, t in enumerate(self.vm) if t == tag)
        n = len(self.vm) - 1 - last
        assert n <= 63, (tag, n)
        self(f"s_waitcnt vmcnt({n})")
    def vmwait_all(self):
        self("s_waitcnt vmcnt(0)")

    def stamp(self, name, clk=False):
        if not self.stamps: return
        if "all" not in self.stamps and name not in self.stamps: return
        if getattr(self, "capturing", False):
            self(f"@STAMP {name}"); return
        if "cyc" in self.exp: clk = True
        self.stamp_names = getattr(self, "stamp_names", [])
        if name in self.stamp_names: return
        used = {i for i, _ in self.pending}
        free = [i for i in range(8) if i not in used]
        if not free:
            Asm.__call__(self.a, "s_waitcnt lgkmcnt(0)"); self.flush_stamps()
            free = list(range(8))
        i = free[0]
        lane = len(self.stamp_names); assert lane < 63, name
        self.stamp_names.append(name)
        self.pending.append((i, lane))
        Asm.__call__(self.a, f"{'s_memtime' if clk else 's_memrealtime'} {s2(S_TS + 2*i)} ; stamp {name}")

    def flush_stamps(self):
        for i, lane in self.pending:
            Asm.__call__(self.a, f"v_writelane_b32 v255, s{S_TS + 2*i}, {lane}")
        self.pending = []

    def dump(self, name, regs, tmp=250):
        if name not in self.dumps: return
        g = self
        n = len(regs)
        base = WS_DBG + self.dump_off
        self.dump_index[name] = (self.dump_off, n)
        self.dump_off += 256 * 4 * n * 256
        g("s_waitcnt vmcnt(0) lgkmcnt(0)\ns_nop 15\ns_nop 15")
        g(f"s_lshl_b32 s74, s2, 2\ns_add_u32 s74, s74, s{S_WAVE}\ns_mul_i32 s74, s74, {n*256}\ns_add_u32 s74, s74, {base}")
        g(f"v_lshlrev_b32 v{tmp}, 2, v1")
        for i, r in enumerate(regs):
            if isinstance(r, str) and r.startswith("a"):
                g(f"v_accvgpr_read_b32 v{tmp+1}, {r}\ns_nop 1")
                src = f"v{tmp+1}"
            else:
                src = f"v{r}"
            g(f"buffer_store_dword {src}, v{tmp}, {srd(SRD_WS)}, s74 offen")
            g(f"s_add_u32 s74, s74, 256")
            g("s_waitcnt vmcnt(0)")

    def rnd_bf16(self, dst, src):
        self(f"v_cvt_pk_bf16_f32 v{dst}, v{src}, v{src}\nv_lshlrev_b32 v{dst}, 16, v{dst}")

    def prologue(self):
        g = self
        ptrs = [(SRD_X, 0), (SRD_W, 8), (SRD_WR, 40), (SRD_PHI, 16), (SRD_WS, 88), (SRD_DBG, 80),
                (SRD_WO, 24), (SRD_G, 48), (SRD_U, 56), (SRD_D, 64), (SRD_OUT, 72)]
        sizes = {SRD_X: 2621440, SRD_W: 2457600, SRD_WR: 1280, SRD_PHI: 25600, SRD_WS: WS_SIZE, SRD_DBG: 256,
                 SRD_WO: 819200, SRD_G: 2211840, SRD_U: 2211840, SRD_D: 2211840, SRD_OUT: 2621440}
        self.sizes = sizes
        if "span" in self.exp or "skew" in self.exp: g("s_memrealtime s[98:99]")
        self.mark("start")
        g("s_getpc_b64 s[72:73]")
        g("L_pc:")
        for r, off in ptrs[:4]:
            g(f"s_load_dwordx2 {s2(r)}, s[0:1], {off}")
        g(f"""
        s_cmp_ge_u32 s2, 256
        s_cbranch_scc1 L_exit
        v_and_b32 v1, 63, v0
        v_lshrrev_b32 v9, 6, v0
        s_lshr_b32 s{S_SLOT}, s2, 3
        v_readfirstlane_b32 s{S_WAVE}, v9
        s_and_b32 s{S_XCD}, s2, 7
        """)
        g(f"""
        s_lshl_b32 s{S_T0}, s{S_SLOT}, 2
        s_add_u32 s{S_T0}, s{S_T0}, s{S_WAVE}
        s_lshl_b32 s{S_T0}, s{S_T0}, 9
        v_lshl_add_u32 v11, v1, 7, s{S_T0}
        v_cmp_gt_u32 vcc, L_code_end - L_pc, v11
        v_cmp_gt_u32 {s2(S_MA)}, 4, v1
        s_and_b64 vcc, vcc, {s2(S_MA)}
        s_and_saveexec_b64 {s2(S_MA)}, vcc
        s_cbranch_execz L_nopf
        global_load_dword v159, v11, s[72:73]       ; HZ_SKIP_BEGIN HZ_SKIP_END
L_nopf:
        s_mov_b64 exec, -1
        """)
        for r, off in ptrs[4:]:
            g(f"s_load_dwordx2 {s2(r)}, s[0:1], {off}")
        g(f"""
        s_and_b32 s{S_T0}, s{S_XCD}, 1
        s_lshl_b32 s{S_T0}, s{S_T0}, 3
        s_and_b32 s{S_T1}, s{S_SLOT}, 7
        s_add_u32 s{S_RB}, s{S_T0}, s{S_T1}
        s_lshr_b32 s{S_T0}, s{S_XCD}, 1
        s_lshl_b32 s{S_T0}, s{S_T0}, 2
        s_lshr_b32 s{S_T2}, s{S_SLOT}, 3
        s_add_u32 s{S_HP}, s{S_T0}, s{S_T2}
        s_lshl_b32 s{S_T2}, s{S_T2}, 1
        s_add_u32 s{S_T1}, s{S_T1}, s{S_T2}
        s_and_b32 s{S_T1}, s{S_T1}, 7
        s_mul_i32 s{S_T1}, s{S_T1}, 10
        s_lshr_b32 s{S_C0}, s{S_T1}, 3
        {self.rot_extra()}
        v_lshrrev_b32 v9, 3, v1
        v_mul_u32_u24 v9, 1280, v9
        v_and_b32 v11, 7, v1
        v_lshrrev_b32 v15, 4, v1
        v_xor_b32 v11, v11, v15
        v_lshl_add_u32 v4, v11, 4, v9
        v_xor_b32 v11, 4, v11
        v_lshl_add_u32 v5, v11, 4, v9
        v_add_u32 v5, {10240 - 1024}, v5
        v_add_u32 v157, {20480 - 2048}, v4
        v_add_u32 v158, {20480 - 2048}, v5
        s_lshl_b32 s{S_T0}, s{S_RB}, 7
        s_lshl_b32 s{S_T1}, s{S_WAVE}, 5
        s_add_u32 s{S_T1}, s{S_T1}, s{S_T0}
        s_mul_i32 s{S_XB}, s{S_T1}, 1280
        s_mul_i32 s{S_WB}, s{S_WAVE}, {16*3840}
        s_mul_i32 s{S_T1}, s{S_HP}, 80
        s_add_u32 s{S_WB}, s{S_WB}, s{S_T1}
        s_lshl_b32 s{S_LX}, s{S_WAVE}, 12
        s_mul_i32 s{S_LW}, s{S_WAVE}, 3072
        s_add_u32 s{S_LW}, s{S_LW}, 16384
        s_add_u32 s{S_CC}, s{S_XB}, 1280
        s_lshl_b32 s{S_CX}, s{S_C0}, 7
        s_add_u32 s{S_CX}, s{S_CX}, s{S_XB}
        s_mul_i32 s{S_CW}, s{S_C0}, {64*3840}
        s_add_u32 s{S_CW}, s{S_CW}, s{S_WB}
        """)
        for r in (SRD_X, SRD_W):
            g(f"s_mov_b32 s{r+2}, {sizes[r]}\ns_mov_b32 s{r+3}, 0x20000")
        for n in range(3):
            g(f"""
            v_add_u32 v9, {64*n}, v1
            v_mul_u32_u24 v11, 43691, v9
            v_lshrrev_b32 v11, 19, v11
            v_mul_u32_u24 v12, 12, v11
            v_sub_u32 v12, v9, v12
            v_cmp_gt_u32 {s2(S_WM+2*n)}, 10, v12
            v_cmp_gt_u32 vcc, 5, v12
            v_mul_u32_u24 v11, 3840, v11
            v_lshl_add_u32 v11, v12, 4, v11
            v_mov_b32 v13, 2480
            v_add_u32 v14, 1280, v11
            v_add_u32 v11, v13, v11
            v_cndmask_b32 v{6+n}, v11, v14, vcc
            """)
            if n: g(f"v_subrev_u32 v{6+n}, {1024*n}, v{6+n}")
        g("s_waitcnt lgkmcnt(0)")
        self.stamp("start"); self.stamp("clk0", True)
        self.nt = " nt" if "nt" in self.exp else ""
        if "early" in self.exp:
            for x in self.p1_refill(0):
                for y in x: g(y)
                g.vmi("c0")
        for r in (SRD_WR, SRD_PHI):
            g(f"s_mov_b32 s{r+2}, {sizes[r]}\ns_mov_b32 s{r+3}, 0x20000")
        P = 160
        nt = " nt" if "nt" in self.exp else ""
        self.nt = nt
        g(f"""
        v_mul_u32_u24 v10, 20, v1
        s_lshl_b32 s{S_T0}, s{S_RB}, 7
        s_lshl_b32 s{S_T1}, s{S_HP}, 3
        s_add_u32 s{S_T0}, s{S_T0}, s{S_T1}
        s_lshl_b32 s{S_T1}, s{S_WAVE}, 1
        s_add_u32 s{S_P0ROW}, s{S_T0}, s{S_T1}
        s_mul_i32 s{S_T4}, s{S_P0ROW}, 1280
        buffer_load_dwordx4 {v(P,4)}, v10, {srd(SRD_X)}, s{S_T4} offen
        buffer_load_dword v{P+4}, v10, {srd(SRD_X)}, s{S_T4} offen offset:16
        buffer_load_dwordx4 {v(P+6,4)}, v10, {srd(SRD_X)}, s{S_T4} offen offset:1280
        buffer_load_dword v{P+10}, v10, {srd(SRD_X)}, s{S_T4} offen offset:1296
        buffer_load_dwordx4 {v(P+12,4)}, v10, {srd(SRD_WR)}, 0 offen
        buffer_load_dword v{P+16}, v10, {srd(SRD_WR)}, 0 offen offset:16
        v_lshlrev_b32 v11, 4, v1
        s_mul_i32 s{S_T0}, s{S_HP}, 1600
        s_mul_i32 s{S_T1}, s{S_WAVE}, 1664
        s_add_u32 m0, s{S_T1}, {L_WPHI}
        s_add_u32 s{S_T4}, s{S_T1}, {L_WPHI + 1024}
        buffer_load_dwordx4 v11, {srd(SRD_PHI)}, s{S_T0} offen lds
        s_mov_b32 m0, s{S_T4}
        s_mov_b32 exec_lo, -1
        s_mov_b32 exec_hi, 15
        s_add_u32 s{S_T0}, s{S_T0}, 1024
        buffer_load_dwordx4 v11, {srd(SRD_PHI)}, s{S_T0} offen lds
        s_mov_b64 exec, -1
        """)
        tagged = lambda i: [(x, f"c{i}") for x in self.p1_refill(i)]
        if "early" not in self.exp:
            g.vmi("p0", 6); g.vmi("phi", 2)
            for lines, tag in tagged(0):
                for x in lines: g(x)
                g.vmi(tag)
        else:
            g.vmi("p0", 6); g.vmi("phi", 2)
        if "spf" in self.exp:
            n_pf = 14
            g(f"s_mov_b32 s{S_T0}, s{S_CX}")
            for j in range(n_pf):
                g(f"s_load_dword s{92 + (j & 7)}, s[4:5], s{S_T0}\ns_add_u32 s{S_T0}, s{S_T0}, {2*1280 if 'spf2' in self.exp else 1280}")
        self.stamp("c0iss")
        s1, s2_ = self.capture(self.setup1), self.capture(self.setup2)
        p0, pf = self.capture(self.phase0), self.capture(self.phi_frags)
        cut = 260
        rest2 = s2_
        for x in s1: self.emit_resolved(x)
        at = self.atoms(s2_); n = 0; head = [];
        while at and n < cut - len(s1):
            a_ = at.pop(0); n += len(a_); head += a_
        for x in head: self.emit_resolved(x)
        tail = [x for a_ in at for x in a_]
        if self.dist == 3:
            self.interleave(tagged(1), tail + p0)
            self.interleave(tagged(2), pf)
        else:
            self.interleave(tagged(1), tail + p0 + pf)
        self.stamp("filled")

    def zero_pad(self):
        if "zpad" not in self.exp: return ""
        return ("v_mov_b32 v22, 0\nv_mov_b32 v23, 0\nv_mov_b32 v24, 0\nv_mov_b32 v25, 0\n"
                f"ds_write_b128 v9, v[22:25] offset:{16384 + 176}\nds_write_b128 v11, v[22:25] offset:{16384 + 176}")

    def rot_extra(self):
        for e in self.exp:
            if e.startswith("rot:"):
                a, b = e.split(":")[1:3]
                return (f"s_lshr_b32 s{S_T2}, s{S_XCD}, 1\ns_mul_i32 s{S_T2}, s{S_T2}, {a}\ns_add_u32 s{S_C0}, s{S_C0}, s{S_T2}\n"
                        f"s_and_b32 s{S_T2}, s{S_XCD}, 1\ns_mul_i32 s{S_T2}, s{S_T2}, {b}\ns_add_u32 s{S_C0}, s{S_C0}, s{S_T2}\n"
                        f"s_mul_i32 s{S_T2}, s{S_C0}, 6554\ns_lshr_b32 s{S_T2}, s{S_T2}, 16\ns_mul_i32 s{S_T2}, s{S_T2}, 10\ns_sub_u32 s{S_C0}, s{S_C0}, s{S_T2}")
        return ""

    def setup1(self):
        g = self
        sizes = self.sizes
        for r in (SRD_WS, SRD_DBG):
            g(f"s_mov_b32 s{r+2}, {sizes[r]}\ns_mov_b32 s{r+3}, 0x20000")
        g(f"""
        s_lshl_b32 s{S_T0}, s{S_WAVE}, 8
        s_add_u32 s{S_T0}, s{S_T0}, s2
        s_cmp_lg_u32 s{S_T0}, 256
        s_cbranch_scc1 L_noinit
        v_lshlrev_b32 v11, 7, v1       ; HZ_SKIP_BEGIN
        v_mov_b32 v12, 0
        buffer_store_dword v12, v11, {srd(SRD_WS)}, 0 offen sc1   ; HZ_SKIP_END
L_noinit:
        """)
        for r in (SRD_WO, SRD_G, SRD_U, SRD_D, SRD_OUT):
            g(f"s_mov_b32 s{r+2}, {sizes[r]}\ns_mov_b32 s{r+3}, 0x20000")
        g(f"""
        v_and_b32 v2, 31, v1
        v_lshrrev_b32 v3, 5, v1
        v_mov_b32 v12, 0x3f80
        v_mov_b32 v13, 0
        v_mov_b32 v14, 0x3f80
        v_mov_b32 v15, 0
        v_lshrrev_b32 v9, 6, v0
        v_mul_u32_u24 v9, {SLOT}, v9
        v_mul_u32_u24 v11, 192, v1
        v_add_u32 v9, v9, v11
        ds_write_b128 v9, v[12:15] offset:{16384 + 160}
        v_add_u32 v11, {4*SLOT}, v11
        ds_write_b128 v11, v[12:15] offset:{16384 + 160}
        {self.zero_pad()}
        v_mov_b32 v16, 0
        v_mov_b32 v17, 0
        v_mov_b32 v18, 0
        v_mov_b32 v19, 0
        v_lshlrev_b32 v20, 4, v0
        v_add_u32 v20, {L_KVF}, v20
        ds_write_b128 v20, v[16:19]
        v_lshlrev_b32 v21, 3, v0
        v_add_u32 v21, {L_KVF + 4096}, v21
        ds_write_b64 v21, v[16:17]
        v_mov_b32 v84, 0x3f803f80
        v_mov_b32 v85, 0x3f803f80
        """)
        g(f"""
        v_lshrrev_b32 v9, 1, v2
        v_and_b32 v9, 7, v9
        v_xor_b32 v9, v9, v3
        v_lshlrev_b32 v9, 4, v9
        v_lshl_add_u32 v9, v2, 7, v9
        v_add_u32 v128, s{S_LX}, v9
        v_xor_b32 v129, 32, v128
        v_xor_b32 v130, 64, v128
        v_xor_b32 v131, 96, v128
        v_add_u32 v132, {3*SLOT}, v128
        v_add_u32 v133, {3*SLOT}, v129
        v_add_u32 v134, {3*SLOT}, v130
        v_add_u32 v135, {3*SLOT}, v131
        v_bfe_u32 v9, v1, 2, 2
        v_lshl_add_u32 v9, v3, 3, v9
        v_mul_u32_u24 v9, 192, v9
        v_bfe_u32 v11, v1, 4, 1
        v_and_b32 v12, 3, v1
        v_lshl_add_u32 v11, v11, 2, v12
        v_lshl_add_u32 v9, v11, 3, v9
        v_add_u32 v136, 16384, v9
        v_add_u32 v137, {16384 + 2*SLOT}, v9
        v_add_u32 v138, {16384 + 4*SLOT}, v9
        s_lshl_b32 s{S_T0}, s{S_WAVE}, 6
        v_add_u32 v72, s{S_T0}, v136
        v_add_u32 v73, s{S_T0}, v137
        v_add_u32 v74, s{S_T0}, v138
        """)

    def setup2(self):
        g = self
        self.moe_roles()
        self.kv_addresses()
        self.c_addresses()
        self.o_addresses()
        self.wq_setup()
        g(f"""
        s_lshl_b32 s{S_T0}, s{S_WAVE}, 5
        v_add_u32 v9, s{S_T0}, v2
        v_mul_u32_u24 v9, 336, v9
        v_add_u32 v9, {L_T}, v9
        v_lshl_add_u32 v9, v3, 3, v9
        v_accvgpr_write_b32 a192, v9
        s_lshr_b32 s{S_T0}, s{S_WAVE}, 1
        s_and_b32 s{S_T4}, s{S_WAVE}, 1
        v_bfe_u32 v9, v1, 2, 2
        v_lshlrev_b32 v9, 1, v9
        v_add_u32 v9, v9, v3
        v_lshlrev_b32 v9, 1, v9
        v_mul_u32_u24 v9, 336, v9
        v_add_u32 v9, {L_T}, v9
        v_bfe_u32 v11, v1, 4, 1
        v_and_b32 v12, 3, v1
        v_lshl_add_u32 v11, v11, 2, v12
        s_mul_i32 s{S_T2}, s{S_T0}, 12
        s_lshl_b32 s{S_T3}, s{S_T4}, 3
        s_add_u32 s{S_T2}, s{S_T2}, s{S_T3}
        v_add_u32 v12, s{S_T2}, v11
        v_lshl_add_u32 v13, v12, 3, v9
        v_accvgpr_write_b32 a193, v13
        s_mul_i32 s{S_T2}, s{S_T0}, 5
        s_add_u32 s{S_T2}, s{S_T2}, 24
        v_add_u32 v12, s{S_T2}, v11
        s_mul_i32 s{S_T3}, s{S_T0}, -3
        s_add_i32 s{S_T3}, s{S_T3}, 37
        v_mov_b32 v13, s{S_T3}
        v_cmp_eq_u32 vcc, 5, v11
        v_cndmask_b32 v12, v12, v13, vcc
        s_add_i32 s{S_T3}, s{S_T3}, -13
        v_add_u32 v13, s{S_T3}, v11
        v_cmp_lt_u32 vcc, 5, v11
        v_cndmask_b32 v12, v12, v13, vcc
        v_lshl_add_u32 v13, v12, 3, v9
        v_accvgpr_write_b32 a194, v13
        v_mul_u32_u24 v9, 336, v3
        v_lshl_add_u32 v9, v2, 4, v9
        v_accvgpr_write_b32 a195, v9
        s_lshl_b32 s{S_T2}, s{S_HP}, 4
        s_add_u32 s{S_T2}, s{S_T2}, s{S_RB}
        s_mul_i32 s{S_T2}, s{S_T2}, {KVP_SZ}
        s_add_u32 s{S_T2}, s{S_T2}, {WS_KVP}
        s_mul_i32 s{S_T3}, s{S_T0}, 3360
        s_add_u32 s{S_KVS}, s{S_T2}, s{S_T3}
        """)

    def phase0(self):
        g = self
        P = 160
        self.stamp("pre_p0")
        g.vmwait("phi")
        self.stamp("p0data")
        X0, X1, W = P, P + 6, P + 12
        A = 180
        for i in range(7): g(f"v_mov_b32 v{A+i}, 0")
        for d in range(5):
            g(f"""
            v_dot2c_f32_bf16 v{A+0}, v{X0+d}, v84
            v_dot2c_f32_bf16 v{A+1}, v{X0+d}, v{X0+d}
            v_dot2c_f32_bf16 v{A+2}, v{X0+d}, v{W+d}
            v_dot2c_f32_bf16 v{A+3}, v{X1+d}, v84
            v_dot2c_f32_bf16 v{A+4}, v{X1+d}, v{X1+d}
            v_dot2c_f32_bf16 v{A+5}, v{X1+d}, v{W+d}
            v_dot2c_f32_bf16 v{A+6}, v{W+d}, v84
            """)
        g("s_nop 2")
        for ctl in ("row_shr:1 row_mask:0xf bank_mask:0xf bound_ctrl:0", "row_shr:2 row_mask:0xf bank_mask:0xf bound_ctrl:0",
                    "row_shr:4 row_mask:0xf bank_mask:0xf bound_ctrl:0", "row_shr:8 row_mask:0xf bank_mask:0xf bound_ctrl:0",
                    "row_bcast:15 row_mask:0xa bank_mask:0xf", "row_bcast:31 row_mask:0xc bank_mask:0xf"):
            for i in range(7):
                g(f"v_add_f32_dpp v{A+i}, v{A+i}, v{A+i} {ctl}")
        T = 190
        g(f"v_mov_b32 v{T+8}, 0x3acccccd")
        for r in range(2):
            sx, sq, sw = A + 3*r, A + 3*r + 1, A + 3*r + 2
            m, t1, t2 = T + 3*r, T + 3*r + 1, T + 3*r + 2
            g(f"""
            v_mul_f32 v{m}, v{sx}, v{T+8}
            v_mul_f32 v{t1}, v{sq}, v{T+8}
            v_fma_f32 v{t1}, -v{m}, v{m}, v{t1}
            v_max_f32 v{t1}, 0, v{t1}
            """)
            g.rnd_bf16(t1, t1)
            g(f"v_add_f32 v{t1}, 0x3727c5ac, v{t1}")
            g.rnd_bf16(t1, t1)
            g(f"v_sqrt_f32 v{t1}, v{t1}")
            g.rnd_bf16(t1, t1)
            g.rnd_bf16(m, m)
            g(f"""
            v_rcp_f32 v{t1}, v{t1}
            v_fma_f32 v{t2}, -v{m}, v{A+6}, v{sw}
            v_mul_f32 v{t2}, v{t2}, v{t1}
            """)
        g(f"""
        v_mov_b32 v{T+7}, s{S_P0ROW}
        v_add_u32 v{T+9}, 1, v{T+7}
        v_cmp_gt_f32 vcc, v{T+5}, v{T+2}
        v_cndmask_b32 v{T+6}, v{T+2}, v{T+5}, vcc
        v_cndmask_b32 v{T+7}, v{T+7}, v{T+9}, vcc
        s_lshl_b32 s{S_T0}, s{S_WAVE}, 3
        s_add_u32 s{S_T0}, s{S_T0}, {L_P0}
        v_mov_b32 v9, s{S_T0}
        s_mov_b32 exec_lo, 0
        s_brev_b32 exec_hi, 1
        ds_write_b64 v9, {v(T+6,2)}
        s_mov_b64 exec, -1
        """)

    def phi_frags(self):
        g = self
        g(f"""
        v_lshrrev_b32 v9, 3, v2
        v_and_b32 v11, 3, v2
        v_lshl_add_u32 v9, v9, 2, v11
        v_min_u32 v9, 9, v9
        v_bfe_u32 v11, v2, 2, 1
        v_mad_u32_u24 v9, v11, 10, v9
        v_lshlrev_b32 v9, 1, v9
        s_mul_i32 s{S_T0}, s{S_WAVE}, 1664
        s_add_u32 s{S_T0}, s{S_T0}, {L_WPHI}
        v_add_u32 v9, s{S_T0}, v9
        v_mul_u32_u24 v11, 160, v3
        v_add_u32 v11, v11, v9
        """)
        def rd(reg, base, ds):
            for i, d in enumerate(ds):
                g(f"ds_read_u16 v{T0 + i}, v{base} offset:{d}")
            g("s_waitcnt lgkmcnt(0)")
            for i in range(0, len(ds), 2):
                g(f"v_lshl_or_b32 v{reg + i//2}, v{T0+i+1}, 16, v{T0+i}")
        T0 = 200
        rd(140, 11, [40*i for i in range(4)] + [40*(8+i) for i in range(4)] + [40*(16+i) for i in range(4)])
        rd(146, 9, [800 + 40*i for i in range(4)])
        rd(148, 11, [800 + 40*(4+i) for i in range(4)] + [800 + 40*(12+i) for i in range(4)])
        g(f"""
        s_mov_b32 s{S_MA}, 0
        s_mov_b32 s{S_MA+1}, -1
        s_waitcnt lgkmcnt(0)
        v_cndmask_b32 v144, v144, 0, {s2(S_MA)}
        v_cndmask_b32 v145, v145, 0, {s2(S_MA)}
        v_cndmask_b32 v146, 0, v146, {s2(S_MA)}
        v_cndmask_b32 v147, 0, v147, {s2(S_MA)}
        """)

    def p1_reads(self, n):
        c, ks = divmod(n, 4); s = c % 5; b = n % 3
        base = 128 + ks if s < 3 else 132 + ks
        imm = s * SLOT if s < 3 else (s - 3) * SLOT
        out = [f"ds_read_b128 {ac(4*n,4)}, v{base} offset:{imm}"]
        wb = 136 + s // 2
        imm0 = (s % 2) * SLOT + 16 * ks * 192
        for t in range(3):
            for rd in range(2):
                out.append(f"ds_read_b64_tr_b16 {v(92 + 12*b + 4*t + 2*rd, 2)}, v{wb} offset:{imm0 + 4*rd*192 + 64*t}")
        for rd in range(2):
            out.append(f"ds_read_b64_tr_b16 {v(160 + 4*b + 2*rd, 2)}, v{72 + s // 2} offset:{imm0 + 4*rd*192}")
        return out

    def p1_refill(self, i):
        s = i % 5
        nt = self.nt
        grp = []
        grp.append([f"s_add_u32 m0, s{S_LX}, {s*SLOT}", "s_nop 0" if False else f"s_add_u32 s{S_T1}, s{S_LW}, {s*SLOT}",
                    f"buffer_load_dwordx4 v4, {srd(SRD_X)}, s{S_CX} offen{nt} lds"])
        grp.append([f"buffer_load_dwordx4 v5, {srd(SRD_X)}, s{S_CX} offen offset:1024{nt} lds"])
        grp.append([f"buffer_load_dwordx4 v157, {srd(SRD_X)}, s{S_CX} offen offset:2048{nt} lds"])
        grp.append([f"buffer_load_dwordx4 v158, {srd(SRD_X)}, s{S_CX} offen offset:3072{nt} lds",
                    f"s_add_u32 s{S_CX}, s{S_CX}, 128"])
        grp.append([f"s_mov_b32 m0, s{S_T1}", f"s_mov_b64 exec, {s2(S_WM)}",
                    f"buffer_load_dwordx4 v6, {srd(SRD_W)}, s{S_CW} offen{nt} lds", "s_mov_b64 exec, -1"])
        grp.append([f"s_mov_b64 exec, {s2(S_WM+2)}",
                    f"buffer_load_dwordx4 v7, {srd(SRD_W)}, s{S_CW} offen offset:1024{nt} lds", "s_mov_b64 exec, -1"])
        grp.append([f"s_mov_b64 exec, {s2(S_WM+4)}",
                    f"buffer_load_dwordx4 v8, {srd(SRD_W)}, s{S_CW} offen offset:2048{nt} lds", "s_mov_b64 exec, -1",
                    f"s_add_u32 s{S_CW}, s{S_CW}, {64*3840}", f"s_cmp_eq_u32 s{S_CX}, s{S_CC}",
                    f"s_cselect_b32 s{S_CX}, s{S_XB}, s{S_CX}", f"s_cselect_b32 s{S_CW}, s{S_WB}, s{S_CW}"])
        if "qx" in self.exp:
            last = grp.pop()
            extra = [[f"s_mov_b32 m0, {L_XS}", "s_nop 0", f"buffer_load_dwordx4 v152, {srd(SRD_W)}, s{S_CW} offen{nt} lds"],
                     [f"s_mov_b32 m0, {L_XS + 1024}", "s_mov_b32 exec_lo, 0xffff", "s_mov_b32 exec_hi, 0",
                      f"buffer_load_dwordx4 v153, {srd(SRD_W)}, s{S_CW} offen{nt} lds", "s_mov_b64 exec, -1", f"s_mov_b32 m0, s{S_T1}"]]
            grp += extra + [last]
        return grp

    def wq_groups(self):
        grp = []
        for m in range(13):
            q, pt = divmod(m, 5)
            gl = [f"s_add_u32 m0, s{S_WQL}, {m*1024}", f"s_add_u32 s{S_T2}, s{S_WQG}, {q*64*3840}"]
            if m == 12:
                gl += ["s_mov_b32 exec_hi, 0", f"buffer_load_dwordx4 v{152+pt}, {srd(SRD_W)}, s{S_T2} offen lds", "s_mov_b64 exec, -1"]
            else:
                gl += [f"buffer_load_dwordx4 v{152+pt}, {srd(SRD_W)}, s{S_T2} offen lds"]
            grp.append(gl)
        return grp

    def wq_setup(self):
        g = self
        for pt in range(5):
            g(f"""
            v_add_u32 v9, {64*pt}, v1
            v_mul_u32_u24 v11, 52429, v9
            v_lshrrev_b32 v11, 18, v11
            v_mul_u32_u24 v12, 5, v11
            v_sub_u32 v12, v9, v12
            v_and_b32 v13, 3, v11
            v_bfe_u32 v14, v11, 2, 2
            v_and_b32 v11, 0xfffffff0, v11
            v_lshl_add_u32 v11, v13, 2, v11
            v_add_u32 v11, v11, v14
            v_mul_u32_u24 v11, 3840, v11
            v_lshl_add_u32 v{152+pt}, v12, 4, v11
            """)
        g(f"""
        s_mul_i32 s{S_WQL}, s{S_WAVE}, 12800
        s_add_u32 s{S_WQL}, s{S_WQL}, {L_WQ}
        s_mul_i32 s{S_WQG}, s{S_WAVE}, {160*3840}
        s_mul_i32 s{S_T0}, s{S_HP}, 80
        s_add_u32 s{S_WQG}, s{S_WQG}, s{S_T0}
        """)

    def pass1(self):
        g = self
        self.dbg_span(2, True); self.dbg_span(7, False); self.mark("filled"); self.skew_record()
        g.vmwait("c0")
        g("s_waitcnt lgkmcnt(0)\ns_barrier")
        self.stamp("c0")
        for x in self.p1_reads(0): g(x)
        g("s_waitcnt lgkmcnt(6)")
        for x in self.p1_reads(1): g(x)
        g(f"""
        s_cmp_lg_u32 s{S_WAVE}, 0
        s_cbranch_scc1 L_nopub
        v_mov_b32 v9, {L_P0}           ; HZ_SKIP_BEGIN
        ds_read_b128 v[172:175], v9
        ds_read_b128 v[176:179], v9 offset:16
        s_lshl_b32 s{S_T0}, s2, 3
        s_add_u32 s{S_T0}, s{S_T0}, {WS_RMAX}
        v_mov_b32 v11, s{S_T0}
        s_waitcnt lgkmcnt(0)
        v_cmp_gt_f32 vcc, v174, v172
        v_cndmask_b32 v172, v172, v174, vcc
        v_cndmask_b32 v173, v173, v175, vcc
        v_cmp_gt_f32 vcc, v176, v172
        v_cndmask_b32 v172, v172, v176, vcc
        v_cndmask_b32 v173, v173, v177, vcc
        v_cmp_gt_f32 vcc, v178, v172
        v_cndmask_b32 v172, v172, v178, vcc
        v_cndmask_b32 v173, v173, v179, vcc
        s_mov_b64 exec, 1
        buffer_store_dwordx2 v[172:173], v11, {srd(SRD_WS)}, 0 offen sc1
        s_mov_b64 exec, -1             ; HZ_SKIP_END
L_nopub:
        """)
        pend = []
        for n in range(40):
            c, ks = divmod(n, 4); b = n % 3
            if ks == 0:
                nxt = c + self.dist if c + self.dist <= 9 else None
                if "hyb" in self.exp: nxt = {0: 3, 1: 4, 2: 5, 3: 6, 4: 7, 5: None, 6: 8, 7: 9}.get(c)
                if nxt is not None:
                    rf = self.p1_refill(nxt)
                    pend += rf; self.vmq = getattr(self, "vmq", []) + [f"c{nxt}"] * len(rf)
                if c == 3:
                    pend.append(self.touch_wq()); self.vmq.append("tq")
                if c == 7:
                    pend += self.touch_moe(); self.vmq += ["tm"] * 3
                if c == 6:
                    pend.append([f"v_mov_b32 v75, 240", f"buffer_load_dword v75, v75, {srd(SRD_DBG)}, 0 offen sc1"]); self.vmq.append("rdy")
            if ks == 2 and c < 9:
                g(f"s_waitcnt lgkmcnt(6)")
                g.vmwait(f"c{c+1}")
                g("s_barrier")
                self.stamp(f"B{c}")
                if c == 0:
                    g(f"""
                    s_cmp_lg_u32 s2, 0
                    s_cbranch_scc1 L_noready
                    s_cmp_lg_u32 s{S_WAVE}, 1
                    s_cbranch_scc1 L_noready
                    s_memrealtime s[64:65]         ; HZ_SKIP_BEGIN
                    v_mov_b32 v11, 240
                    s_waitcnt lgkmcnt(0)
                    s_mul_i32 s64, s64, 0x9e3779b1
                    s_or_b32 s64, s64, 1
                    v_mov_b32 v12, s64
                    s_mov_b64 exec, 1
                    buffer_store_dword v12, v11, {srd(SRD_DBG)}, 0 offen sc1
                    s_mov_b64 exec, -1             ; HZ_SKIP_END
L_noready:
                    """)
                if c == 7 and "wqtail" in self.exp:
                    wq = self.wq_groups(); pend += wq; self.vmq += ["wq"] * len(wq)
                if c == self.dist - 1:
                    g(f"""
                    s_cmp_lg_u32 s{S_WAVE}, 0
                    s_cbranch_scc1 L_noatom
                    s_and_b32 s{S_T0}, s2, 3       ; HZ_SKIP_BEGIN
                    s_lshl_b32 s{S_T0}, s{S_T0}, 6
                    v_mov_b32 v11, s{S_T0}
                    v_mov_b32 v12, 1
                    s_mov_b64 exec, 1
                    buffer_atomic_add v12, v11, {srd(SRD_DBG)}, 0 offen sc1
                    s_mov_b64 exec, -1             ; HZ_SKIP_END
L_noatom:
                    """)
            elif n == 39: g("s_waitcnt lgkmcnt(0)")
            else: g("s_waitcnt lgkmcnt(6)")
            rd = self.p1_reads(n + 2) if n + 2 < 40 else []
            if "nords" in self.exp: rd = []
            XP = ac(4*n, 4)
            WF = lambda t: 92 + 12*b + 4*t
            first = (n == 0)
            def dma():
                if pend:
                    grp = pend.pop(0); tag = self.vmq.pop(0)
                    if "nodma" not in self.exp:
                        for x in grp: g(x)
                    if tag: g.vmi(tag)
            cin = lambda r, k: "0" if first else v(r, k)
            g(f"v_mfma_f32_32x32x16_bf16 v[16:31], {v(WF(0),4)}, {XP}, {cin(16,16)}")
            for x in rd[0:3]: g(x)
            dma()
            g(f"v_mfma_f32_32x32x16_bf16 v[32:47], {v(WF(1),4)}, {XP}, {cin(32,16)}")
            for x in rd[3:6]: g(x)
            g(f"v_mfma_f32_32x32x16_bf16 v[48:63], {v(WF(2),4)}, {XP}, {cin(48,16)}")
            for x in rd[6:9]: g(x)
            dma()
            if "nosq" not in self.exp:
                g(f"v_mfma_f32_4x4x4_16b_bf16 v[64:67], {ac(4*n,2)}, {ac(4*n,2)}, {cin(64,4)}")
                g(f"v_mfma_f32_4x4x4_16b_bf16 v[68:71], {ac(4*n+2,2)}, {ac(4*n+2,2)}, {cin(68,4)}")
            if "nocs" not in self.exp:
                g(f"v_mfma_f32_4x4x4_16b_bf16 v[76:79], {v(160+4*b,2)}, v[84:85], {cin(76,4)}")
                g(f"v_mfma_f32_4x4x4_16b_bf16 v[80:83], {v(160+4*b+2,2)}, v[84:85], {cin(80,4)}")
            if c in (3, 6, 7) or "qx" in self.exp or ("wqtail" in self.exp and c >= 7): dma()
        while pend:
            grp = pend.pop(0); tag = self.vmq.pop(0)
            for x in grp: g(x)
            if tag: g.vmi(tag)
        self.stamp("p1end")

    def touch_moe(self):
        return [
            [f"v_mul_u32_u24 v9, 13108, v1", "v_lshrrev_b32 v9, 16, v9", "v_mul_u32_u24 v10, 5, v9", "v_sub_u32 v10, v1, v10",
             "v_mul_u32_u24 v11, 3456, v9", "v_lshl_add_u32 v11, v10, 7, v11",
             f"s_mul_i32 s{S_T0}, s{S_XCD}, 448", f"s_and_b32 s{S_T0}, s{S_T0}, 0xffffff80",
             f"s_lshl_b32 s{S_T2}, s{S_SLOT}, 2", f"s_add_u32 s{S_T2}, s{S_T2}, s{S_WAVE}", f"s_mul_i32 s{S_T2}, s{S_T2}, {5*3456}",
             f"s_add_u32 s{S_T0}, s{S_T0}, s{S_T2}", "s_mov_b32 exec_lo, 0x1ffffff", "s_mov_b32 exec_hi, 0",
             f"buffer_load_dword v159, v11, {srd(SRD_G)}, s{S_T0} offen", "s_mov_b64 exec, -1"],
            ["s_mov_b32 exec_lo, 0x1ffffff", "s_mov_b32 exec_hi, 0",
             f"buffer_load_dword v159, v11, {srd(SRD_U)}, s{S_T0} offen", "s_mov_b64 exec, -1"],
            ["v_mul_u32_u24 v9, 6554, v1", "v_lshrrev_b32 v9, 16, v9", "v_mul_u32_u24 v10, 10, v9", "v_sub_u32 v10, v1, v10",
             "v_mul_u32_u24 v12, 1280, v9", "v_lshl_add_u32 v12, v10, 7, v12",
             f"s_mul_i32 s{S_T0}, s{S_XCD}, {224*1280}", f"s_mul_i32 s{S_T2}, s{S_SLOT}, 7", f"s_lshl_b32 s{S_T3}, s{S_WAVE}, 1",
             f"s_add_u32 s{S_T2}, s{S_T2}, s{S_T3}", f"s_mul_i32 s{S_T2}, s{S_T2}, 1280", f"s_add_u32 s{S_T0}, s{S_T0}, s{S_T2}",
             "s_mov_b32 exec_lo, 0xfffff", "s_mov_b32 exec_hi, 0",
             f"buffer_load_dword v159, v12, {srd(SRD_D)}, s{S_T0} offen", "s_mov_b64 exec, -1"]]

    def touch_wq(self):
        return ["v_mul_u32_u24 v9, 21846, v1", "v_lshrrev_b32 v9, 16, v9", "v_mul_u32_u24 v10, 3, v9", "v_sub_u32 v10, v1, v10",
                f"s_lshl_b32 s{S_T0}, s{S_SLOT}, 2", f"s_add_u32 s{S_T0}, s{S_T0}, s{S_WAVE}", f"s_mul_i32 s{S_T0}, s{S_T0}, 5",
                f"v_add_u32 v9, s{S_T0}, v9", "v_mul_u32_u24 v9, 3840, v9", "v_lshl_add_u32 v9, v10, 7, v9",
                f"s_lshr_b32 s{S_T0}, s{S_XCD}, 1", f"s_mul_i32 s{S_T0}, s{S_T0}, 320", f"s_and_b32 s{S_T0}, s{S_T0}, 0xffffff80",
                "s_mov_b32 exec_lo, 0x7fff", "s_mov_b32 exec_hi, 0",
                f"buffer_load_dword v159, v9, {srd(SRD_W)}, s{S_T0} offen", "s_mov_b64 exec, -1"]

    def stats_and_colsum(self, first):
        g = self
        csoff = 0 if first else 128 * 4
        for i in range(4): g(f"v_add_f32 v{76+i}, v{76+i}, v{80+i}")
        for i in range(4): g(f"v_mov_b32 v{80+i}, v{76+i}")
        for i in range(4): g(f"v_permlane32_swap_b32 v{76+i}, v{80+i}")
        for i in range(4): g(f"v_add_f32 v{76+i}, v{76+i}, v{80+i}")
        g(f"""
        s_lshl_b32 s{S_T0}, s{S_WAVE}, 7
        s_add_u32 s{S_T0}, s{S_T0}, {L_CS + csoff}
        v_lshl_add_u32 v9, v1, 2, s{S_T0}
        s_mov_b32 exec_lo, 0x11111111
        s_mov_b32 exec_hi, 0
        ds_write_b128 v9, v[76:79]
        s_mov_b64 exec, -1
        """)
        if first:
            for i in range(4): g(f"v_add_f32 v{64+i}, v{64+i}, v{68+i}")
            for i in range(1, 4):
                m = 0x11111111 << i
                g(f"s_mov_b32 s{S_MB}, {hex(m)}\ns_mov_b32 s{S_MB+1}, {hex(m)}\nv_cndmask_b32 v64, v64, v{64+i}, {s2(S_MB)}")
            g(f"""
            v_mov_b32 v65, v64
            v_mov_b32 v90, 0x3acccccd
            s_nop 0
            v_permlane32_swap_b32 v64, v65
            v_add_f32 v64, v64, v65
            v_mul_f32 v66, v56, v90
            v_mul_f32 v64, v64, v90
            v_fma_f32 v64, -v66, v66, v64
            v_max_f32 v64, 0, v64
            """)
            g.rnd_bf16(64, 64)
            g("v_add_f32 v64, 0x3727c5ac, v64")
            g.rnd_bf16(64, 64)
            g("v_sqrt_f32 v64, v64")
            g.rnd_bf16(90, 64)
            g.rnd_bf16(91, 66)
            g("v_rcp_f32 v88, v90\nv_sub_f32 v86, 0, v91")
        g("s_waitcnt lgkmcnt(0)\ns_barrier")
        self.stamp("csbar" if first else "csbar2")

    def normalise(self, quads, csoff):
        g = self
        g(f"v_lshlrev_b32 v9, 4, v3\nv_add_u32 v9, {L_CS + csoff}, v9")
        for i, (r, col) in enumerate(quads):
            g(f"ds_read_b128 {v(160+4*i,4)}, v9 offset:{col*4}")
        for i, (r, col) in enumerate(quads):
            g(f"s_waitcnt lgkmcnt({len(quads)-1-i})")
            for hh in range(2):
                g(f"v_pk_fma_f32 {v(r+2*hh,2)}, {v(160+4*i+2*hh,2)}, v[86:87], {v(r+2*hh,2)} op_sel_hi:[1,0,1]")
            for hh in range(2):
                g(f"v_pk_mul_f32 {v(r+2*hh,2)}, {v(r+2*hh,2)}, v[88:89] op_sel_hi:[1,0]")

    def softmax(self, H0, H1):
        g = self
        P = (92, 108)
        L = 0x3fb8aa3b
        if "fold" in self.exp: g(f"v_mul_f32 v124, {hex(L)}, v88\nv_mul_f32 v126, {hex(L | 0x80000000)}, v88")
        else: g(f"v_mov_b32 v124, {hex(L)}\nv_mov_b32 v126, {hex(L | 0x80000000)}")
        for H in (H0, H1): g(f"v_mov_b32 v{H+10}, 0\nv_mov_b32 v{H+11}, 0")
        E = (160, 180)
        MX = (200, 204)
        for a in range(2):
            p, mx = P[a], MX[a]
            g(f"""
            v_max3_f32 v{mx}, v{p}, v{p+1}, v{p+2}
            v_min3_f32 v{mx+1}, v{p}, v{p+1}, v{p+2}
            v_max3_f32 v{mx}, v{mx}, v{p+3}, v{p+4}
            v_min3_f32 v{mx+1}, v{mx+1}, v{p+3}, v{p+4}
            v_max3_f32 v{mx}, v{mx}, v{p+5}, v{p+6}
            v_min3_f32 v{mx+1}, v{mx+1}, v{p+5}, v{p+6}
            v_max3_f32 v{mx}, v{mx}, v{p+7}, v{p+8}
            v_min3_f32 v{mx+1}, v{mx+1}, v{p+7}, v{p+8}
            v_max_f32 v{mx}, v{mx}, v{p+9}
            v_min_f32 v{mx+1}, v{mx+1}, v{p+9}
            v_sub_f32 v{mx+1}, 0, v{mx+1}
            """)
        for a in range(2): g(f"v_permlane32_swap_b32 v{MX[a]}, v{MX[a]+1}")
        for a in range(2): g(f"v_max_f32 v{MX[a]}, v{MX[a]}, v{MX[a]+1}")
        for a in range(2): g(f"v_mov_b32 v{MX[a]+1}, v{MX[a]}")
        for a in range(2): g(f"v_permlane32_swap_b32 v{MX[a]}, v{MX[a]+1}")
        for a in range(2):
            mx = MX[a]
            g(f"v_mul_f32 v{mx+2}, v{mx+1}, v126\nv_mul_f32 v{mx}, v{mx}, v126")
        for a in range(2):
            p, mx, e = P[a], MX[a], E[a]
            for i in range(5):
                g(f"v_pk_fma_f32 {v(e+2*i,2)}, {v(p+2*i,2)}, v[124:125], {v(mx,2)} op_sel_hi:[1,0,0]")
                g(f"v_pk_fma_f32 {v(e+10+2*i,2)}, {v(p+2*i,2)}, v[126:127], {v(mx+2,2)} op_sel_hi:[1,0,0]")
        self.stamp("sm_pre" + str(H0) + getattr(self, "smtag", ""))
        for a in range(2):
            for i in range(20): g(f"v_exp_f32 v{E[a]+i}, v{E[a]+i}")
        self.stamp("sm_exp" + getattr(self, "smtag", ""))
        SM = (208, 214)
        for a in range(2):
            e, sm = E[a], SM[a]
            g(f"v_pk_add_f32 {v(sm,2)}, {v(e,2)}, {v(e+2,2)}\nv_pk_add_f32 {v(sm+2,2)}, {v(e+10,2)}, {v(e+12,2)}")
        for i in range(2, 5):
            for a in range(2):
                e, sm = E[a], SM[a]
                g(f"v_pk_add_f32 {v(sm,2)}, {v(sm,2)}, {v(e+2*i,2)}\nv_pk_add_f32 {v(sm+2,2)}, {v(sm+2,2)}, {v(e+10+2*i,2)}")
        for a in range(2):
            sm = SM[a]
            g(f"v_add_f32 v{sm}, v{sm}, v{sm+1}\nv_add_f32 v{sm+1}, v{sm+2}, v{sm+3}")
        for a in range(2): g(f"v_permlane32_swap_b32 v{SM[a]}, v{SM[a]+1}")
        for a in range(2): g(f"v_add_f32 v{SM[a]}, v{SM[a]}, v{SM[a]+1}")
        for a in range(2): g(f"v_mov_b32 v{SM[a]+2}, v{SM[a]}")
        for a in range(2): g(f"v_permlane32_swap_b32 v{SM[a]}, v{SM[a]+2}")
        for a in range(2): g(f"v_rcp_f32 v{SM[a]}, v{SM[a]}\nv_rcp_f32 v{SM[a]+2}, v{SM[a]+2}")
        for a, H in ((0, H0), (1, H1)):
            e, sm = E[a], SM[a]
            for i in range(5):
                g(f"v_pk_mul_f32 {v(e+2*i,2)}, {v(e+2*i,2)}, {v(sm,2)} op_sel_hi:[1,0]")
                g(f"v_pk_mul_f32 {v(e+10+2*i,2)}, {v(e+10+2*i,2)}, {v(sm+2,2)} op_sel_hi:[1,0]")
            for i in range(10):
                g(f"v_cvt_pk_bf16_f32 v{H+i}, v{e+2*i}, v{e+2*i+1}")

    def norm_reads(self, quads, csoff, r0):
        g = self
        for i, (r, col) in enumerate(quads):
            g(f"ds_read_b128 {v(r0+4*i,4)}, v9 offset:{col*4}")

    def norm_apply(self, quads, r0, after, scale=True):
        g = self
        for i, (r, col) in enumerate(quads):
            g(f"s_waitcnt lgkmcnt({len(quads)-1-i+after})")
            for hh in range(2):
                g(f"v_pk_fma_f32 {v(r+2*hh,2)}, {v(r0+4*i+2*hh,2)}, v[86:87], {v(r+2*hh,2)} op_sel_hi:[1,0,1]")
            for hh in range(2 if scale else 0):
                g(f"v_pk_mul_f32 {v(r+2*hh,2)}, {v(r+2*hh,2)}, v[88:89] op_sel_hi:[1,0]")

    def featmap_mfma(self, PK):
        g = self
        g(f"v_mfma_f32_32x32x16_bf16 v[92:107], v[140:143], {v(PK,4)}, 0")
        g(f"v_mfma_f32_32x32x16_bf16 v[108:123], v[146:149], {v(PK+4,4)}, 0")
        g(f"v_mfma_f32_32x32x8_bf16 v[92:107], v[144:145], {v(PK+4,2)}, v[92:107]")
        g(f"v_mfma_f32_32x32x8_bf16 v[108:123], v[150:151], {v(PK+8,2)}, v[108:123]")

    def k_epilogue(self):
        g = self
        self.stats_and_colsum(True)
        PK, PV = 244, 210
        kq = [(16+4*j, 8*j) for j in range(4)] + [(32, 32)]
        vq = [(36, 40), (40, 48), (44, 56), (48, 64), (52, 72)]
        def part1():
            g(f"v_lshlrev_b32 v9, 4, v3\nv_add_u32 v9, {L_CS}, v9")
            self.norm_reads(kq, 0, 160); self.norm_reads(vq, 0, 180)
            self.norm_apply(kq, 160, 5, scale="fold" not in self.exp)
            for i in range(10): g(f"v_cvt_pk_bf16_f32 v{PK+i}, v{16+2*i}, v{16+2*i+1}")
            self.stamp("k_cvt")
            self.featmap_mfma(PK)
            self.norm_apply(vq, 180, 0)
            self.stamp("v_norm")
            self.dump("kv_norm", list(range(16, 64)) + [86, 88, 90, 91])
            g(f"""
            v_accvgpr_read_b32 v11, a192
            v_mov_b32 v14, 0x3f80
            v_mov_b32 v15, 0
            v_lshl_add_u32 v12, v3, 4, v11
            v_lshl_add_u32 v13, v3, 3, v11
            ds_write_b64 v12, v[14:15] offset:{34*8}
            """)
            for i, (r, col) in enumerate(vq):
                g(f"v_cvt_pk_bf16_f32 v{PV+2*i}, v{r}, v{r+1}\nv_cvt_pk_bf16_f32 v{PV+2*i+1}, v{r+2}, v{r+3}")
                g(f"ds_write_b64 v11, {v(PV+2*i,2)} offset:{192 + 16*i}")
            self.stamp("prefm")
            self.softmax(220, 232)
            self.stamp("postfm")
        if "wqtail" in self.exp: part1()
        else: self.interleave([(x, "wq") for x in self.wq_groups()], self.capture(part1))
        self.dump("phik", list(range(220, 244)))
        for a, H in ((0, 220), (1, 232)):
            for st in range(3):
                g(f"ds_write_b128 v13, {v(H+4*st,4)} offset:{a*96 + st*32}")
        g("v_accvgpr_read_b32 v160, a193\nv_accvgpr_read_b32 v161, a194\nv_accvgpr_read_b32 v9, a195")
        g(f"v_cmp_gt_u32 vcc, 21, v2\ns_and_b32 s{S_T1}, s{S_WAVE}, 1\ns_mov_b64 {s2(S_MA)}, vcc")
        g.vmwait("wq")
        g("s_waitcnt lgkmcnt(0)\ns_barrier")
        self.stamp("Tbar")
        A0, B0 = 164, 196
        for ks in range(8):
            for rd in range(2):
                g(f"ds_read_b64_tr_b16 {v(A0+4*ks+2*rd,2)}, v160 offset:{(16*ks+rd)*336}")
                g(f"ds_read_b64_tr_b16 {v(B0+4*ks+2*rd,2)}, v161 offset:{(16*ks+rd)*336}")
            if ks >= 2:
                k = ks - 2
                g("s_waitcnt lgkmcnt(8)")
                cin = "0" if k == 0 else "v[92:107]"
                g(f"v_mfma_f32_32x32x16_bf16 v[92:107], {v(A0+4*k,4)}, {v(B0+4*k,4)}, {cin}")
        g("s_waitcnt lgkmcnt(4)")
        g(f"v_mfma_f32_32x32x16_bf16 v[92:107], {v(A0+24,4)}, {v(B0+24,4)}, v[92:107]")
        g("s_waitcnt lgkmcnt(0)")
        g(f"v_mfma_f32_32x32x16_bf16 v[92:107], {v(A0+28,4)}, {v(B0+28,4)}, v[92:107]")
        g(f"""
        s_cmp_lg_u32 s{S_T1}, 0
        s_cbranch_scc1 L_kvft1
        s_mov_b64 exec, {s2(S_MA)}     ; HZ_SKIP_BEGIN
        buffer_store_dwordx4 v[92:95], v9, {srd(SRD_WS)}, s{S_KVS} offen sc1
        buffer_store_dwordx4 v[96:99], v9, {srd(SRD_WS)}, s{S_KVS} offen offset:672 sc1
        buffer_store_dwordx4 v[100:103], v9, {srd(SRD_WS)}, s{S_KVS} offen offset:1344 sc1
        buffer_store_dwordx4 v[104:107], v9, {srd(SRD_WS)}, s{S_KVS} offen offset:2016 sc1
        s_branch L_kvdone              ; HZ_SKIP_END
L_kvft1:
        s_and_b32 s{S_MA}, s{S_MA}, 0x1fffff      ; HZ_SKIP_BEGIN
        s_mov_b32 s{S_MA+1}, 0
        s_mov_b64 exec, {s2(S_MA)}
        buffer_store_dwordx4 v[92:95], v9, {srd(SRD_WS)}, s{S_KVS} offen offset:2688 sc1
        buffer_store_dwordx4 v[96:99], v9, {srd(SRD_WS)}, s{S_KVS} offen offset:3024 sc1   ; HZ_SKIP_END
L_kvdone:
        s_mov_b64 exec, -1
        """)
        self.stamp("kvstore")

    def mark(self, name):
        for e in self.exp:
            if e.startswith("probe:"):
                _, a, b, k = e.split(":")
                ins = "s_memtime" if k.startswith("c") else "s_memrealtime"
                if name == a: self(f"{ins} s[86:87]")
                if name == b: self(f"{ins} s[88:89]")

    def skew_record(self):
        if "skew" not in self.exp: return
        self(f"""
        s_add_u32 s100, s2, 8
        s_and_b32 s100, s100, 0xf0
        s_cmp_lg_u32 s100, 0
        s_cbranch_scc1 L_noskew
        s_cmp_lg_u32 s{S_WAVE}, 0
        s_cbranch_scc1 L_noskew
        s_not_b32 s100, s98
        v_mov_b32 v9, 8
        v_mov_b32 v10, s100
        v_mov_b32 v11, 12
        v_mov_b32 v12, s98
        s_mov_b64 exec, 1
        buffer_atomic_umax v10, v9, {srd(SRD_DBG)}, 0 offen sc1
        buffer_atomic_umax v12, v11, {srd(SRD_DBG)}, 0 offen sc1
        s_mov_b64 exec, -1
L_noskew:
        """)

    def skew_spin(self):
        if "skew" not in self.exp: return
        self(f"""
        v_mov_b32 v9, 8
        buffer_load_dwordx2 v[10:11], v9, {srd(SRD_DBG)}, 0 offen sc1
        s_waitcnt vmcnt(0)
        v_readfirstlane_b32 s92, v10
        v_readfirstlane_b32 s93, v11
        s_not_b32 s92, s92
        s_sub_u32 s92, s93, s92
        s_mul_i32 s92, s92, 4
        s_memrealtime s[90:91]
        s_waitcnt lgkmcnt(0)
        s_add_u32 s92, s92, s90
L_skewspin:
        s_memrealtime s[90:91]
        s_waitcnt lgkmcnt(0)
        s_sub_u32 s93, s92, s90
        s_cmp_gt_i32 s93, 0
        s_cbranch_scc1 L_skewspin
        """)

    def probe_spin(self):
        for e in self.exp:
            if e.startswith("probe:"):
                _, a, b, k = e.split(":")
                self(f"""
                s_memrealtime s[90:91]
                s_waitcnt lgkmcnt(0)
                s_sub_u32 s92, s88, s86
                {f"s_lshr_b32 s92, s92, {k[1:]}" if k.startswith("c") else f"s_mul_i32 s92, s92, {k}"}
                s_add_u32 s92, s92, s90
L_probe:
                s_memrealtime s[90:91]
                s_waitcnt lgkmcnt(0)
                s_sub_u32 s93, s92, s90
                s_cmp_gt_i32 s93, 0
                s_cbranch_scc1 L_probe
                """)

    def dbg_span(self, word, invert):
        if "span" not in self.exp: return
        g = self
        lab = f"L_span{word}"
        g(f"""
        s_and_b32 s100, s2, 15
        s_cmp_lg_u32 s100, 0
        s_cbranch_scc1 {lab}
        s_cmp_lg_u32 s{S_WAVE}, 0
        s_cbranch_scc1 {lab}
        s_memrealtime s[100:101]
        s_waitcnt lgkmcnt(0)
        {"s_not_b32 s100, s98" if invert else "s_nop 0"}
        v_mov_b32 v9, {word*4}
        v_mov_b32 v10, s100
        s_mov_b64 exec, 1
        buffer_atomic_umax v10, v9, {srd(SRD_DBG)}, 0 offen sc1
        s_mov_b64 exec, -1
{lab}:
        """)

    def finish(self):
        g = self
        self.mark("end")
        self.probe_spin()
        self.skew_spin()
        self.dbg_span(3, False)
        if self.stamps:
            g("s_waitcnt lgkmcnt(0)")
            self.flush_stamps()
            g(f"""
            s_lshl_b32 s{S_T0}, s2, 2
            s_add_u32 s{S_T0}, s{S_T0}, s{S_WAVE}
            s_lshl_b32 s{S_T0}, s{S_T0}, 8
            s_add_u32 s{S_T0}, s{S_T0}, {WS_TS}
            v_lshlrev_b32 v9, 2, v1
            buffer_store_dword v255, v9, {srd(SRD_WS)}, s{S_T0} offen
            """)
        g("L_exit:\ns_endpgm\nL_code_end:")

    def pre_k_epilogue(self):
        pass

    def build(self):
        g = self
        self.prologue()
        self.dump("phifrag", list(range(140, 152)))
        self.pass1()
        self.dump("acc1", list(range(16, 84)))
        if self.stop != "pass1":
            self.dbg_span(10, False); self.mark("p1end")
            self.pre_k_epilogue()
            self.k_epilogue()
        if self.stop not in ("pass1", "kv"):
            self.rest()
        self.finish()

    def text(self):
        body, nins = hazard.fix([l.strip() for l in self.a.lines])
        hdr = open("parallel_sum__linear_kernel_hedgehog__moe_arch_mod__prompt.s.ref").read().split("\n")
        top = [l for l in hdr if l.startswith(";") and "@launch" not in l and "Override" not in l and "grid=ceil" not in l]
        out = "\n".join(top) + "\n"
        out += f"; @launch grid=(256,1,1) block=(256,1,1) lds={LDS_SIZE}\n"
        out += '.amdgcn_target "amdgcn-amd-amdhsa--gfx950"\n.text\n' + kernel_header(NAME)
        out += "\n".join("    " + l if not l.endswith(":") else l for l in body if l) + "\n"
        out += f""".section .rodata,"a"
.p2align 6
.amdhsa_kernel {NAME}
  .amdhsa_next_free_vgpr 512
  .amdhsa_next_free_sgpr 102
  .amdhsa_accum_offset 256
  .amdhsa_group_segment_fixed_size 0
  .amdhsa_kernarg_size 96
  .amdhsa_user_sgpr_count 2
  .amdhsa_user_sgpr_kernarg_segment_ptr 1
  .amdhsa_system_sgpr_workgroup_id_x 1
  .amdhsa_float_denorm_mode_32 3
.end_amdhsa_kernel
"""
        return out, nins


if __name__ == "__main__":
    import argparse, json
    import gen_rest
    ap = argparse.ArgumentParser()
    ap.add_argument("-o", default="k.s")
    ap.add_argument("--stop", default=None)
    ap.add_argument("--dump", default="")
    ap.add_argument("--stamps", default="")
    ap.add_argument("--notouch", action="store_true")
    ap.add_argument("--exp", default="")
    args = ap.parse_args()
    G = gen_rest.Full(stop=args.stop, dumps=[d for d in args.dump.split(",") if d], stamps=set(args.stamps.split(",")) if args.stamps else False, touch=not args.notouch, exp=[e for e in args.exp.split(",") if e])
    G.build()
    t, nins = G.text()
    open(args.o, "w").write(t)
    json.dump({"dumps": G.dump_index, "stamps": getattr(G, "stamp_names", [])}, open(args.o + ".json", "w"))
    print("wrote", args.o, "lines", t.count("\n"), "nops inserted", nins)
```

```python
from gen import *

S_RB64, S_CB, S_MU, S_RSEL, S_ROW0 = 20, 21, 22, 23, 12
S_QC = 13
S_WOG, S_WOL = 14, 15
S_WOS = 76
S_YA = 79
S_TAG = 82
S_OWN = 80
S_STA = 81
S_XO = 85
S_KVE, S_KVB = 79, 75
S_KVA, S_OS = 78, 84
CNT_KV, CNT_O, CNT_M = 0, 16, 32
SPIN_LIMIT = 200000

class Full(Gen):
    def poll(self, name, srd_n, vaddr_setup, target, nl=1):
        g = self
        lab = f"L_poll_{name}"
        g(vaddr_setup)
        g(f"s_mov_b32 exec_lo, {(1 << nl) - 1}\ns_mov_b32 exec_hi, 0")
        g(f"""
        s_mov_b32 s74, 0
{lab}:
        buffer_load_dword v10, v9, {srd(srd_n)}, 0 offen sc1
        s_add_u32 s74, s74, 1
        s_cmp_gt_u32 s74, {SPIN_LIMIT}
        s_cbranch_scc1 {lab}_out
        s_waitcnt vmcnt(0)
        v_cmp_gt_u32 vcc, {target}, v10
        s_cbranch_vccnz {lab}
{lab}_out:
        s_waitcnt vmcnt(0)
        s_mov_b64 exec, -1
        """)

    def poll_issue(self, srd_n, vaddr_setup, nl=1):
        g = self
        g(vaddr_setup)
        g(f"s_mov_b32 exec_lo, {(1 << nl) - 1}\ns_mov_b32 exec_hi, 0\nbuffer_load_dword v239, v238, {srd(srd_n)}, 0 offen sc1\ns_mov_b64 exec, -1")

    def poll_finish(self, name, srd_n, target, nl=1):
        g = self
        lab = f"L_poll_{name}"
        g(f"""
        s_mov_b32 exec_lo, {(1 << nl) - 1}
        s_mov_b32 exec_hi, 0
        s_mov_b32 s74, 0
        s_waitcnt vmcnt(0)
        v_cmp_gt_u32 vcc, {target}, v239
        s_cbranch_vccz {lab}_out
{lab}:
        {"s_sleep 2" if "psleep" in self.exp else ""}
        buffer_load_dword v239, v238, {srd(srd_n)}, 0 offen sc1
        s_add_u32 s74, s74, 1
        s_cmp_gt_u32 s74, {SPIN_LIMIT}
        s_cbranch_scc1 {lab}_out
        s_waitcnt vmcnt(0)
        v_cmp_gt_u32 vcc, {target}, v239
        s_cbranch_vccnz {lab}
{lab}_out:
        s_waitcnt vmcnt(0)
        s_mov_b64 exec, -1
        """)

    def signal(self, name, cnt_sgpr_expr, drain=True):
        g = self
        if drain: g("s_waitcnt vmcnt(0)")
        g(f"""
        s_barrier
        s_cmp_lg_u32 s{S_WAVE}, 0
        s_cbranch_scc1 L_nosig_{name}
        """)
        g(cnt_sgpr_expr + " ; HZ_SKIP_BEGIN")
        g(f"""
        s_lshl_b32 s{S_T0}, s{S_T0}, 7
        v_mov_b32 v9, s{S_T0}
        v_mov_b32 v10, 1
        s_mov_b64 exec, 1
        buffer_atomic_add v10, v9, {srd(SRD_WS)}, 0 offen sc1
        s_mov_b64 exec, -1         ; HZ_SKIP_END
L_nosig_{name}:
        """)

    def publish_kv(self):
        g = self
        g(f"""
        s_cmp_lg_u32 s{S_HP}, 0
        s_cbranch_scc1 L_nostats
        s_lshl_b32 s{S_T0}, s{S_RB}, 7       ; HZ_SKIP_BEGIN
        s_lshl_b32 s{S_T1}, s{S_WAVE}, 5
        s_add_u32 s{S_T0}, s{S_T0}, s{S_T1}
        s_lshl_b32 s{S_T0}, s{S_T0}, 3
        s_add_u32 s{S_T0}, s{S_T0}, {WS_STATS}
        v_lshlrev_b32 v9, 3, v2
        v_mov_b32 v10, v91
        v_mov_b32 v11, v90
        s_mov_b32 exec_hi, 0
        buffer_store_dwordx2 v[10:11], v9, {srd(SRD_WS)}, s{S_T0} offen sc1
        s_mov_b64 exec, -1                   ; HZ_SKIP_END
L_nostats:
        """)
        g(f"""
        v_mul_u32_u24 v9, 6554, v1
        v_lshrrev_b32 v9, 16, v9
        v_mul_u32_u24 v10, 10, v9
        v_sub_u32 v10, v1, v10
        v_mul_u32_u24 v11, 1280, v9
        v_lshl_add_u32 v11, v10, 7, v11
        s_lshl_b32 s{S_T0}, s{S_SLOT}, 2
        s_add_u32 s{S_T0}, s{S_T0}, s{S_WAVE}
        s_mul_i32 s{S_T0}, s{S_T0}, {5*1280}
        s_mov_b32 exec_hi, 0x3ffff
        buffer_load_dword v159, v11, {srd(SRD_WO)}, s{S_T0} offen
        s_mov_b64 exec, -1
        """)

    def kv_signal(self):
        g = self
        g("s_waitcnt vmcnt(1)")
        g(f"""
        v_readfirstlane_b32 s{S_TAG}, v75
        s_cmp_lg_u32 s{S_TAG}, 0
        s_cbranch_scc1 L_isready
        v_mov_b32 v9, 240              ; HZ_SKIP_BEGIN
        s_mov_b32 s74, 0
L_poll_ready:
        buffer_load_dword v10, v9, {srd(SRD_DBG)}, 0 offen sc1
        s_add_u32 s74, s74, 1
        s_waitcnt vmcnt(0)
        v_readfirstlane_b32 s{S_TAG}, v10
        s_cmp_gt_u32 s74, {SPIN_LIMIT}
        s_cbranch_scc1 L_isready
        s_cmp_eq_u32 s{S_TAG}, 0
        s_cbranch_scc1 L_poll_ready    ; HZ_SKIP_END
L_isready:
        """)
        self.signal("kv", f"s_add_u32 s{S_T0}, s{S_HP}, {CNT_KV}", drain=False)
        self.stamp("kvsig")

    def moe_roles(self):
        g = self
        g(f"""
        s_lshr_b32 s{S_T0}, s{S_XCD}, 1
        s_lshr_b32 s{S_T1}, s{S_SLOT}, 3
        s_add_u32 s{S_T0}, s{S_T0}, s{S_T1}
        s_lshr_b32 s{S_T1}, s{S_SLOT}, 4
        s_lshl_b32 s{S_T1}, s{S_T1}, 3
        s_and_b32 s{S_T2}, s{S_SLOT}, 7
        s_add_u32 s{S_T1}, s{S_T1}, s{S_T2}
        s_mul_i32 s{S_MU}, s{S_XCD}, 14
        s_add_u32 s{S_MU}, s{S_MU}, s{S_T1}
        s_cmp_lt_u32 s{S_T1}, 14
        s_cselect_b32 s{S_MU}, s{S_MU}, 255
        s_bitcmp1_b32 s{S_T0}, 0
        s_cselect_b32 s{S_MU}, 255, s{S_MU}
        s_lshr_b32 s{S_T0}, s{S_SLOT}, 3
        s_lshl_b32 s{S_T1}, s{S_XCD}, 2
        s_add_u32 s{S_RB64}, s{S_T0}, s{S_T1}
        s_and_b32 s{S_CB}, s{S_SLOT}, 7
        s_lshl_b32 s{S_ROW0}, s{S_RB64}, 6
        s_lshl_b32 s{S_T0}, s{S_WAVE}, 4
        s_add_u32 s{S_ROW0}, s{S_ROW0}, s{S_T0}
        s_mul_i32 s{S_T1}, s{S_CB}, 160
        s_mov_b32 s{S_WOG}, s{S_T1}
        s_mul_i32 s{S_T0}, s{S_ROW0}, 1280
        s_add_u32 s{S_XO}, s{S_T0}, s{S_T1}
        s_lshl_b32 s{S_T0}, s{S_RB}, 1
        s_lshr_b32 s{S_T1}, s{S_WAVE}, 1
        s_add_u32 s{S_T0}, s{S_T0}, s{S_T1}
        s_mul_i32 s{S_T0}, s{S_T0}, 81920
        s_and_b32 s{S_T1}, s{S_WAVE}, 1
        s_mul_i32 s{S_T1}, s{S_T1}, 40960
        s_add_u32 s{S_T0}, s{S_T0}, s{S_T1}
        s_lshr_b32 s{S_T1}, s{S_HP}, 2
        s_mul_i32 s{S_T1}, s{S_T1}, 5120
        s_add_u32 s{S_T0}, s{S_T0}, s{S_T1}
        s_and_b32 s{S_T1}, s{S_HP}, 3
        s_lshl_b32 s{S_T1}, s{S_T1}, 8
        s_add_u32 s{S_T0}, s{S_T0}, s{S_T1}
        s_add_u32 s{S_OS}, s{S_T0}, {WS_O}
        """)

    WD = 160
    def moe_load_block(self, k):
        g = self
        lab = f"L_nomoeld{k}"
        g(f"s_cmp_ge_u32 s{S_MU}, 108\ns_cbranch_scc1 {lab}")
        if k == 0:
            g(f"""
            v_lshrrev_b32 v134, 1, v1                ; HZ_SKIP_BEGIN
            v_mul_u32_u24 v134, 3456, v134
            v_and_b32 v10, 1, v1
            v_lshl_add_u32 v134, v10, 4, v134
            v_lshlrev_b32 v135, 3, v0
            """)
        else:
            g("s_nop 0 ; HZ_SKIP_BEGIN")
        g(f"""
        s_and_b32 s{S_T0}, s{S_MU}, 3
        s_add_u32 s{S_T0}, s{S_T0}, {k}
        s_cmp_ge_u32 s{S_T0}, 5
        s_cselect_b32 s{S_T1}, 5, 0
        s_sub_u32 s{S_T3}, s{S_T0}, s{S_T1}
        s_mul_i32 s{S_T1}, s{S_WAVE}, 5
        s_add_u32 s{S_T3}, s{S_T3}, s{S_T1}
        s_mul_i32 s{S_T2}, s{S_T3}, {32*3456}
        s_lshl_b32 s{S_T0}, s{S_MU}, 5
        s_add_u32 s{S_T2}, s{S_T2}, s{S_T0}
        s_lshl_b32 s{S_T1}, s{S_T3}, 10
        s_add_u32 m0, s{S_T1}, {L_G}
        s_mul_i32 s{S_T0}, s{S_MU}, {16*1280}
        buffer_load_dwordx4 v134, {srd(SRD_G)}, s{S_T2} offen lds
        s_add_u32 m0, s{S_T1}, {L_U}
        v_cmp_gt_u32 vcc, 160, v0
        buffer_load_dwordx4 v134, {srd(SRD_U)}, s{S_T2} offen lds
        s_and_saveexec_b64 {s2(S_MA)}, vcc
        s_cbranch_execz {lab}_x
        """)
        us = list(range(16))[[0, 3, 6, 9, 12][k]:[3, 6, 9, 12, 16][k]]
        for u in us:
            g(f"s_add_u32 s{S_T1}, s{S_T0}, {u*1280}\nbuffer_load_dwordx2 {ac(self.WD+2*u,2)}, v135, {srd(SRD_D)}, s{S_T1} offen")
        g(f"{lab}_x:\ns_mov_b64 exec, -1 ; HZ_SKIP_END\n{lab}:")

    def p2_reads(self, n):
        i, ks = divmod(n, 4); b = n % 3
        base = 128 + (i & 1)
        out = []
        for t in range(2):
            for rd in range(2):
                out.append(f"ds_read_b64_tr_b16 {v(92+12*b+4*t+2*rd,2)}, v{base} offset:{(16*ks+rd)*80 + 64*t}")
        for rd in range(2):
            out.append(f"ds_read_b64_tr_b16 {v(160+4*b+2*rd,2)}, v{130 + (i & 1)} offset:{(16*ks+rd)*80}")
        return out

    def p2_base(self, i):
        r = i & 1
        return [f"v_add_u32 v{128+r}, s{S_QC}, v132", f"v_add_u32 v{130+r}, s{S_QC}, v133",
                f"s_add_u32 s{S_QC}, s{S_QC}, 5120", f"s_cmp_eq_u32 s{S_QC}, 51200", f"s_cselect_b32 s{S_QC}, 0, s{S_QC}"]

    def pass2(self):
        g = self
        g(f"""
        v_bfe_u32 v9, v1, 2, 2
        v_lshlrev_b32 v9, 1, v9
        v_add_u32 v9, v9, v3
        v_lshlrev_b32 v9, 1, v9
        v_mul_u32_u24 v9, 80, v9
        v_bfe_u32 v10, v1, 4, 1
        v_and_b32 v11, 3, v1
        v_lshl_add_u32 v10, v10, 2, v11
        v_lshl_add_u32 v9, v10, 3, v9
        v_add_u32 v132, {L_WQ}, v9
        s_lshl_b32 s{S_T0}, s{S_WAVE}, 6
        v_add_u32 v133, s{S_T0}, v132
        s_mul_i32 s{S_QC}, s{S_C0}, 5120
        """)
        for n in range(5): g(f"v_accvgpr_read_b32 v{152+n}, a{200+n}")
        self.wog = self.wo_groups()
        early = self.wog[:10]
        for x in self.p2_base(0): g(x)
        for x in self.p2_reads(0): g(x)
        for x in self.p2_reads(1): g(x)
        for n in range(40):
            i, ks = divmod(n, 4); b = n % 3
            if ks == 1 and i < 9:
                for x in self.p2_base(i + 1): g(x)
            g("s_waitcnt lgkmcnt(0)" if n == 39 else "s_waitcnt lgkmcnt(6)")
            rd = self.p2_reads(n + 2) if n + 2 < 40 else []
            XP = ac(4*n, 4)
            WF = lambda t: 92 + 12*b + 4*t
            cin = lambda r, k: "0" if n == 0 else v(r, k)
            def small(m):
                bm = m % 3
                c0 = (m == 0)
                g(f"v_mfma_f32_4x4x4_16b_bf16 v[76:79], {v(160+4*bm,2)}, v[84:85], {'0' if c0 else 'v[76:79]'}")
                g(f"v_mfma_f32_4x4x4_16b_bf16 v[80:83], {v(160+4*bm+2,2)}, v[84:85], {'0' if c0 else 'v[80:83]'}")
            if "nobatch" not in self.exp and n % 2 == 1:
                small(n - 1)
                if rd: g(rd.pop(0))
                small(n)
            g(f"v_mfma_f32_32x32x16_bf16 v[16:31], {v(WF(0),4)}, {XP}, {cin(16,16)}")
            for x in rd[0:3]: g(x)
            g(f"v_mfma_f32_32x32x16_bf16 v[32:47], {v(WF(1),4)}, {XP}, {cin(32,16)}")
            for x in rd[3:6]: g(x)
            if "nobatch" in self.exp: small(n)
            if n == 12: self.kv_signal()
            if n in (13, 18, 23, 28, 33): self.moe_load_block((n - 13) // 5)
            if n >= 18 and n % 2 == 0 and early:
                for x in early.pop(0): g(x)
            if n == 36: self.kv_poll_issue()
            if n in (9, 19, 29): self.stamp(f"p2_{n}")
        while early:
            for x in early.pop(0): g(x)
        self.stamp("p2end")

    def q_epilogue_a(self):
        g = self
        self.smtag = "q"
        for n in range(3):
            g(f"v_accvgpr_read_b32 v{134+n}, a{205+n}\nv_accvgpr_read_b32 v{68+n}, a{211+n}")
        self.stats_and_colsum(False)
        quads = [(16+4*j, 8*j) for j in range(4)] + [(32, 32)]
        g(f"v_lshlrev_b32 v9, 4, v3\nv_add_u32 v9, {L_CS + 512}, v9")
        self.norm_reads(quads, 512, 160)
        self.norm_apply(quads, 160, 0, scale="fold" not in self.exp)
        PK = 244
        for i in range(10):
            g(f"v_cvt_pk_bf16_f32 v{PK+i}, v{16+2*i}, v{16+2*i+1}")
        self.stamp("q_cvt")

    def q_epilogue_b(self):
        g = self
        self.featmap_mfma(244)
        for i in range(4): g(f"v_accvgpr_read_b32 v{56+i}, a{196+i}")
        self.softmax(220, 232)
        self.stamp("qdone")

    def xres_groups(self):
        XR, ST = self.XR, self.ST
        grp = []
        for n in range(3):
            grp.append([f"buffer_load_dwordx4 {v(XR+4*n,4)}, v{134+n}, {srd(SRD_X)}, s{S_XO} offen"])
            pre = [f"s_lshl_b32 s{S_T0}, s{S_ROW0}, 3", f"s_add_u32 s{S_STA}, s{S_T0}, {WS_STATS}"] if n == 0 else []
            grp.append(pre + [f"v_lshlrev_b32 v67, 3, v{68+n}", f"buffer_load_dwordx2 {v(ST+2*n,2)}, v67, {srd(SRD_WS)}, s{S_STA} offen sc1"])
        return grp

    def q_epilogue(self):
        kg = self.kv_load_groups()
        self.interleave([(x, "kvp") for x in kg[:8]], self.capture(self.q_epilogue_a))
        self.interleave([(x, "xres") for x in self.xres_groups()] + [(x, "kvp") for x in kg[8:]], self.capture(self.q_epilogue_b))
        self.dump("phiq", list(range(220, 244)))
        self.vmwait("xres")
        self.interleave([(x, "wo") for x in self.wog[10:18]], self.capture(self.residual))
        self.stamp("resid")

    def kv_poll_issue(self):
        g = self
        g(f"""
        s_add_u32 s{S_T0}, s{S_HP}, {CNT_KV}
        s_lshl_b32 s{S_T0}, s{S_T0}, 7
        v_mov_b32 v238, s{S_T0}
        v_cmp_eq_u32 vcc, 1, v1
        v_cndmask_b32 v238, v238, {CNT_KV * 128}, vcc
        v_lshlrev_b32 v240, 6, v1
        s_mov_b32 exec_lo, 15
        s_mov_b32 exec_hi, 0
        buffer_load_dword v241, v240, {srd(SRD_DBG)}, 0 offen sc1
        s_mov_b32 exec_lo, 3
        buffer_load_dword v239, v238, {srd(SRD_WS)}, 0 offen sc1
        s_mov_b64 exec, -1
        """)

    def kv_wait(self):
        g = self
        self.poll_finish("kv", SRD_WS, 16, nl=2)
        self.stamp("kvseen")
        g(f"""
        s_mov_b32 exec_lo, 15
        s_mov_b32 exec_hi, 0
        v_cmp_gt_u32 vcc, 64, v241
        s_mov_b64 exec, -1
        s_cbranch_vccz L_rmaxok
        """)
        self.poll("rmax", SRD_DBG, "v_lshlrev_b32 v9, 6, v1 ; HZ_SKIP_BEGIN", 64, nl=4)
        g(f"""
        s_nop 0 ; HZ_SKIP_END
L_rmaxok:
        s_mul_i32 s{S_KVA}, s{S_HP}, {16*KVP_SZ}
        s_add_u32 s{S_KVA}, s{S_KVA}, {WS_KVP}
        s_add_u32 s{S_KVE}, s{S_KVA}, {16*KVP_SZ}
        s_mov_b32 s{S_KVB}, s{S_KVA}
        s_and_b32 s{S_T0}, s{S_SLOT}, 7
        s_mul_i32 s{S_T0}, s{S_T0}, {2*KVP_SZ}
        s_add_u32 s{S_KVA}, s{S_KVA}, s{S_T0}
        v_lshlrev_b32 v64, 4, v0
        s_mul_i32 s{S_T0}, s{S_WAVE}, {41*16}
        s_add_u32 s{S_T0}, s{S_T0}, 4096
        v_lshl_add_u32 v65, v1, 4, s{S_T0}
        s_mov_b32 s{S_MB}, -1
        s_mov_b32 s{S_MB+1}, 0x1ff
        v_lshlrev_b32 v66, 5, v1
        v_add_u32 v66, {WS_RMAX}, v66
        """)

    def kv_load_groups(self):
        grp = []
        for p in range(16):
            grp.append([f"buffer_load_dwordx4 {ac(4*p,4)}, v64, {srd(SRD_WS)}, s{S_KVA} offen sc1", f"s_mov_b64 exec, {s2(S_MB)}",
                        ])
            grp[-1] = [f"buffer_load_dwordx4 {ac(4*p,4)}, v64, {srd(SRD_WS)}, s{S_KVA} offen sc1"]
            grp.append([f"s_mov_b64 exec, {s2(S_MB)}", f"buffer_load_dwordx4 {ac(64+4*p,4)}, v65, {srd(SRD_WS)}, s{S_KVA} offen sc1",
                        "s_mov_b64 exec, -1", f"s_add_u32 s{S_KVA}, s{S_KVA}, {KVP_SZ}",
                        f"s_cmp_eq_u32 s{S_KVA}, s{S_KVE}", f"s_cselect_b32 s{S_KVA}, s{S_KVB}, s{S_KVA}"])
        grp.append([f"buffer_load_dwordx4 v[48:51], v66, {srd(SRD_WS)}, 0 offen sc1"])
        grp.append([f"buffer_load_dwordx4 v[52:55], v66, {srd(SRD_WS)}, 0 offen offset:16 sc1"])
        return grp

    def argmax(self):
        g = self
        g(f"""
        v_cmp_gt_f32 vcc, v50, v48
        v_cndmask_b32 v48, v48, v50, vcc
        v_cndmask_b32 v49, v49, v51, vcc
        v_cmp_gt_f32 vcc, v52, v48
        v_cndmask_b32 v48, v48, v52, vcc
        v_cndmask_b32 v49, v49, v53, vcc
        v_cmp_gt_f32 vcc, v54, v48
        v_cndmask_b32 v48, v48, v54, vcc
        v_cndmask_b32 v49, v49, v55, vcc
        v_mov_b32 v50, v48
        """)
        for ctl in ("row_shr:1 row_mask:0xf bank_mask:0xf", "row_shr:2 row_mask:0xf bank_mask:0xf",
                    "row_shr:4 row_mask:0xf bank_mask:0xf", "row_shr:8 row_mask:0xf bank_mask:0xf",
                    "row_bcast:15 row_mask:0xa bank_mask:0xf", "row_bcast:31 row_mask:0xc bank_mask:0xf"):
            g(f"v_max_f32_dpp v50, v50, v50 {ctl}")
        g(f"""
        v_readlane_b32 s{S_RSEL}, v50, 63
        v_cmp_eq_f32 vcc, s{S_RSEL}, v48
        s_ff1_i32_b64 s{S_T0}, vcc
        s_max_i32 s{S_T0}, s{S_T0}, 0
        v_readlane_b32 s{S_IDX}, v49, s{S_T0}
        s_nop 0
        s_and_b32 s{S_IDX}, s{S_IDX}, 2047
        """)

    def moe_a(self):
        g = self
        WD = self.WD
        g("v_rcp_f32 v67, v67")
        for d in range(5):
            g(f"""
            v_lshlrev_b32 v168, 16, v{60+d}
            v_and_b32 v169, 0xffff0000, v{60+d}
            v_sub_f32 v168, v168, v66
            v_sub_f32 v169, v169, v66
            v_cvt_pk_bf16_f32 v168, v168, v169
            v_lshlrev_b32 v169, 16, v168
            v_and_b32 v168, 0xffff0000, v168
            v_mul_f32 v169, v169, v67
            v_mul_f32 v168, v168, v67
            v_cvt_pk_bf16_f32 v{60+d}, v169, v168
            """)
        g(f"""
        s_mul_i32 s{S_T0}, s{S_WAVE}, 1280
        s_add_u32 s{S_T0}, s{S_T0}, {L_XS}
        v_mul_u32_u24 v9, 20, v1
        v_add_u32 v9, s{S_T0}, v9
        ds_write_b32 v9, v60
        ds_write_b32 v9, v61 offset:4
        ds_write_b32 v9, v62 offset:8
        ds_write_b32 v9, v63 offset:12
        ds_write_b32 v9, v64 offset:16
        v_bfe_u32 v9, v1, 2, 2
        v_lshl_add_u32 v9, v3, 3, v9
        s_mul_i32 s{S_T1}, s{S_WAVE}, 160
        v_add_u32 v9, s{S_T1}, v9
        v_lshlrev_b32 v9, 5, v9
        v_and_b32 v10, 3, v1
        v_lshl_add_u32 v9, v10, 3, v9
        v_bfe_u32 v10, v1, 4, 1
        v_mul_u32_u24 v10, {L_U - L_G}, v10
        v_add_u32 v9, v9, v10
        v_add_u32 v9, {L_G}, v9
        s_mul_i32 s{S_T1}, s{S_WAVE}, 320
        s_add_u32 s{S_T0}, s{S_T0}, s{S_T1}
        v_lshlrev_b32 v10, 4, v3
        v_add_u32 v10, s{S_T0}, v10
        s_waitcnt lgkmcnt(0)
        """)
        def rd(ks):
            A = 32 + 8*ks
            g(f"""
            ds_read_b64_tr_b16 {v(A,2)}, v9 offset:{(16*ks)*32}
            ds_read_b64_tr_b16 {v(A+2,2)}, v9 offset:{(16*ks+4)*32}
            ds_read_b128 {v(A+4,4)}, v10 offset:{32*ks}
            """)
        for ks in range(4): rd(ks)
        for ks in range(10):
            if ks + 4 < 10:
                g("s_waitcnt lgkmcnt(9)"); rd(ks + 4) if False else None
                g(f"v_mfma_f32_32x32x16_bf16 v[16:31], {v(32+8*ks,4)}, {v(36+8*ks,4)}, {'0' if ks == 0 else 'v[16:31]'}")
                rd(ks + 4)
            else:
                g(f"s_waitcnt lgkmcnt({3*(9-ks)})")
                g(f"v_mfma_f32_32x32x16_bf16 v[16:31], {v(32+8*ks,4)}, {v(36+8*ks,4)}, v[16:31]")
        g(f"""
        s_lshl_b32 s{S_T0}, s{S_WAVE}, 7
        s_add_u32 s{S_T0}, s{S_T0}, {L_HP}
        v_lshlrev_b32 v9, 4, v3
        v_add_u32 v9, s{S_T0}, v9
        s_mov_b32 exec_lo, 1
        s_mov_b32 exec_hi, 1
        ds_write_b128 v9, v[16:19]
        ds_write_b128 v9, v[20:23] offset:32
        ds_write_b128 v9, v[24:27] offset:64
        ds_write_b128 v9, v[28:31] offset:96
        s_mov_b64 exec, -1
        s_waitcnt lgkmcnt(0)
        """)

    def moe_b(self):
        g = self
        WD = self.WD
        g(f"""
        v_and_b32 v9, 15, v1
        v_lshlrev_b32 v9, 2, v9
        v_add_u32 v9, {L_HP}, v9
        ds_read_b32 v160, v9
        ds_read_b32 v161, v9 offset:128
        ds_read_b32 v162, v9 offset:256
        ds_read_b32 v163, v9 offset:384
        ds_read_b32 v164, v9 offset:64
        ds_read_b32 v165, v9 offset:192
        ds_read_b32 v166, v9 offset:320
        ds_read_b32 v167, v9 offset:448
        s_waitcnt lgkmcnt(0)
        v_add_f32 v160, v160, v161
        v_add_f32 v162, v162, v163
        v_add_f32 v164, v164, v165
        v_add_f32 v166, v166, v167
        v_add_f32 v160, v160, v162
        v_add_f32 v164, v164, v166
        """)
        g.rnd_bf16(160, 160); g.rnd_bf16(164, 164)
        g(f"""
        v_mul_f32 v161, 0xbfb8aa3b, v160
        v_exp_f32 v161, v161
        v_add_f32 v161, 1.0, v161
        v_rcp_f32 v161, v161
        v_mul_f32 v160, v160, v161
        """)
        g.rnd_bf16(160, 160)
        g("v_mul_f32 v160, v160, v164")
        g.rnd_bf16(160, 160)
        g("""
        v_mov_b32 v161, v160
        s_nop 1
        v_mov_b32_dpp v161, v160 row_shl:1 row_mask:0xf bank_mask:0xf
        s_nop 1
        v_cvt_pk_bf16_f32 v160, v160, v161
        """)
        for i in range(4): g(f"v_mov_b32 v{16+i}, 0")
        g("s_mov_b32 s74, 0x05040100\nv_mov_b32 v26, s74\ns_mov_b32 s74, 0x07060302\nv_mov_b32 v27, s74")
        for p in range(8):
            a0, a1 = WD + 4*p, WD + 4*p + 2
            g(f"""
            v_readlane_b32 s74, v160, {2*p}
            v_accvgpr_read_b32 v20, a{a0}
            v_accvgpr_read_b32 v21, a{a0+1}
            v_accvgpr_read_b32 v22, a{a1}
            v_accvgpr_read_b32 v23, a{a1+1}
            v_perm_b32 v24, v22, v20, v26
            v_perm_b32 v25, v22, v20, v27
            v_perm_b32 v28, v23, v21, v26
            v_perm_b32 v29, v23, v21, v27
            v_dot2c_f32_bf16 v16, s74, v24
            v_dot2c_f32_bf16 v17, s74, v25
            v_dot2c_f32_bf16 v18, s74, v28
            v_dot2c_f32_bf16 v19, s74, v29
            """)
        g("s_nop 2")

    def kv_addresses(self):
        g = self
        for k, (gi, out1, out2) in enumerate(((0, 196, 197), (256, 198, 199))):
            if k == 0: g("v_mov_b32 v9, v0")
            else: g(f"s_mul_i32 s{S_T0}, s{S_WAVE}, 41\ns_add_u32 s{S_T0}, s{S_T0}, 256\nv_add_u32 v9, s{S_T0}, v1")
            g(f"""
            v_cmp_lt_u32 vcc, 209, v9
            v_cndmask_b32 v10, 0, 1, vcc
            v_mul_u32_u24 v11, 210, v10
            v_sub_u32 v9, v9, v11
            v_mul_u32_u24 v11, 3121, v9
            v_lshrrev_b32 v11, 16, v11
            v_mul_u32_u24 v12, 21, v11
            v_sub_u32 v12, v9, v12
            v_lshrrev_b32 v13, 1, v11
            v_and_b32 v14, 1, v11
            v_cmp_lt_u32 vcc, 7, v11
            v_subrev_u32 v15, 4, v11
            v_cndmask_b32 v13, v13, v15, vcc
            v_cndmask_b32 v14, v14, 0, vcc
            v_lshrrev_b32 v15, 1, v13
            v_and_b32 v13, 1, v13
            v_mul_u32_u24 v15, 1024, v15
            v_lshl_add_u32 v15, v13, 9, v15
            v_lshl_add_u32 v15, v14, 3, v15
            v_mul_u32_u24 v13, 3072, v10
            v_add_u32 v15, v15, v13
            v_add_u32 v15, {L_KVF}, v15
            v_lshlrev_b32 v13, 2, v10
            v_sub_u32 v13, v12, v13
            v_add_u32 v14, 20, v13
            v_cmp_gt_i32 vcc, 0, v13
            v_cndmask_b32 v13, v13, v14, vcc
            v_subrev_u32 v14, 16, v13
            v_lshrrev_b32 v60, 3, v13
            v_and_b32 v61, 7, v13
            v_lshrrev_b32 v62, 1, v14
            v_and_b32 v63, 1, v14
            v_add_u32 v63, 8, v63
            v_cmp_lt_u32 vcc, 15, v13
            v_cndmask_b32 v60, v60, v62, vcc
            v_cndmask_b32 v61, v61, v63, vcc
            v_lshrrev_b32 v62, 2, v61
            v_lshlrev_b32 v62, 3, v62
            v_lshl_add_u32 v62, v60, 2, v62
            v_and_b32 v61, 3, v61
            v_add_u32 v62, v62, v61
            v_cmp_eq_u32 vcc, 20, v12
            v_cndmask_b32 v63, v62, 22, vcc
            v_cndmask_b32 v62, v62, 18, vcc
            v_lshl_add_u32 v62, v62, 4, v15
            v_lshl_add_u32 v63, v63, 4, v15
            v_accvgpr_write_b32 a{out1}, v62
            v_accvgpr_write_b32 a{out2}, v63
            """)

    def kv_reduce_and_o(self):
        g = self
        for n in range(3):
            g(f"v_accvgpr_read_b32 v{137+n}, a{208+n}\nv_accvgpr_read_b32 v{140+n}, a{211+n}\nv_accvgpr_read_b32 v{143+n}, a{214+n}")
        g.vmwait("kvp")
        self.stamp("kvdata")
        g(f"s_cmp_ge_u32 s{S_MU}, 108\ns_cbranch_scc1 L_noxrow\ns_nop 0 ; HZ_SKIP_BEGIN")
        self.argmax()
        g(f"""
        v_mul_u32_u24 v9, 20, v1
        s_mul_i32 s{S_T1}, s{S_IDX}, 1280
        buffer_load_dwordx4 v[60:63], v9, {srd(SRD_X)}, s{S_T1} offen
        buffer_load_dword v64, v9, {srd(SRD_X)}, s{S_T1} offen offset:16
        s_lshl_b32 s{S_T1}, s{S_IDX}, 3
        s_add_u32 s{S_T1}, s{S_T1}, {WS_STATS}
        v_mov_b32 v9, 0
        buffer_load_dwordx2 v[66:67], v9, {srd(SRD_WS)}, s{S_T1} offen sc1   ; HZ_SKIP_END
L_noxrow:
        """)
        def reduce():
            for base, acc in ((0, 16), (64, 92)):
                for e in range(4): g(f"v_accvgpr_read_b32 v{acc+e}, a{base+e}")
                for p in range(1, 16):
                    t = acc + 4 + 4 * (p & 1)
                    for e in range(4): g(f"v_accvgpr_read_b32 v{t+e}, a{base+4*p+e}")
                    g(f"v_pk_add_f32 {v(acc,2)}, {v(acc,2)}, {v(t,2)}\nv_pk_add_f32 {v(acc+2,2)}, {v(acc+2,2)}, {v(t+2,2)}")
        self.interleave([(x, "wo") for x in self.wog[18:]], self.capture(reduce))
        self.stamp("r_sum")
        g(f"""
        v_cvt_pk_bf16_f32 v16, v16, v17
        v_cvt_pk_bf16_f32 v17, v18, v19
        v_cvt_pk_bf16_f32 v92, v92, v93
        v_cvt_pk_bf16_f32 v93, v94, v95
        ds_write_b64 v56, v[16:17]
        ds_write_b64 v57, v[16:17]
        s_mov_b64 exec, {s2(S_MB)}
        ds_write_b64 v58, v[92:93]
        ds_write_b64 v59, v[92:93]
        s_mov_b64 exec, -1
        s_waitcnt lgkmcnt(0)
        s_barrier
        v_lshlrev_b32 v9, 4, v1
        v_add_u32 v9, {L_KVF}, v9
        """)
        self.stamp("r_bar")
        for a in range(2):
            for t in range(3):
                g(f"ds_read_b128 {v(92+12*a+4*t,4)}, v9 offset:{a*3072 + t*1024}")
        self.dump("kvf", list(range(92, 116)))
        for a, (acc, H) in enumerate(((16, 220), (32, 232))):
            g(f"s_waitcnt lgkmcnt({3 - 3*a})")
            for t in range(3):
                g(f"v_mfma_f32_32x32x16_bf16 {v(acc,16)}, {v(92+12*a+4*t,4)}, {v(H+4*t,4)}, {'0' if t == 0 else v(acc,16)}")
        self.dump("num", list(range(16, 48)))
        g("v_accvgpr_read_b32 v10, a217\nv_accvgpr_read_b32 v11, a218\nv_mov_b32 v12, 0x358637bd")
        for a, (acc, P) in enumerate(((16, 160), (32, 166))):
            g(f"v_add_f32 v{acc+10}, v{acc+10}, v12\nv_rcp_f32 v{acc+10}, v{acc+10}")
        for a, (acc, P) in enumerate(((16, 160), (32, 166))):
            for i in range(5):
                g(f"v_pk_mul_f32 {v(acc+2*i,2)}, {v(acc+2*i,2)}, {v(acc+10,2)} op_sel_hi:[1,0]")
            for i in range(5):
                g(f"v_cvt_pk_bf16_f32 v{P+i}, v{acc+2*i}, v{acc+2*i+1}")
        self.dump("o", list(range(160, 165)) + list(range(166, 171)))
        g(f"""
        v_mov_b32 v172, v164
        v_mov_b32 v173, v170
        s_nop 1
        v_permlane32_swap_b32 v172, v173
        buffer_store_dwordx4 v[160:163], v10, {srd(SRD_WS)}, s{S_OS} offen sc1
        buffer_store_dwordx2 v[172:173], v11, {srd(SRD_WS)}, s{S_OS} offen offset:2048 sc1
        buffer_store_dwordx4 v[166:169], v10, {srd(SRD_WS)}, s{S_OS} offen offset:3072 sc1
        """)
        self.stamp("o_store")
        g(f"s_cmp_lt_u32 s{S_MU}, 108\ns_cbranch_scc1 L_moea\ns_nop 0 ; HZ_SKIP_BEGIN")
        self.argmax()
        g("s_branch L_moeadone ; HZ_SKIP_END\nL_moea:\ns_waitcnt vmcnt(10) ; HZ_SKIP_BEGIN")
        self.moe_a()
        g("s_nop 0 ; HZ_SKIP_END\nL_moeadone:")
        self.stamp("o_wo8")
        g("s_waitcnt vmcnt(0)")
        self.stamp("o_drain")
        self.signal("o", f"s_add_u32 s{S_T0}, s{S_RB}, {CNT_O}", drain=False)
        self.stamp("osig")

    XR, RS, ST = 16, 176, 28
    NA = 12
    YQ = [100, 104, 108, 112, 116, 120, 124, 146, 150]
    def wo_groups(self):
        grp = []
        for j in (3, 4, 0, 1, 2):
            for n in range(5):
                gl = []
                if n == 0:
                    gl += [f"s_add_u32 s{S_T3}, s{S_WAVE}, {4*j}", f"s_mul_i32 s{S_WOL}, s{S_T3}, 5120",
                           f"s_mul_i32 s{S_T4}, s{S_T3}, 13108", f"s_lshr_b32 s{S_T4}, s{S_T4}, 16",
                           f"s_mul_i32 s{S_T4}, s{S_T4}, {120*1280}", f"s_mul_i32 s{S_T3}, s{S_T3}, {8*1280}",
                           f"s_add_u32 s{S_T3}, s{S_T3}, s{S_T4}", f"s_add_u32 s{S_WOS}, s{S_T3}, s{S_WOG}"]
                gl += [f"s_add_u32 m0, s{S_WOL}, {L_WO + n*1024}", "s_nop 0",
                       f"buffer_load_dwordx4 v{152+n}, {srd(SRD_WO)}, s{S_WOS} offen lds"]
                grp.append(gl)
        return grp

    def c_addresses(self):
        g = self
        for n in range(5):
            g(f"""
            v_add_u32 v9, {64*n}, v1
            v_mul_u32_u24 v10, 6554, v9
            v_lshrrev_b32 v10, 16, v10
            v_mul_u32_u24 v11, 10, v10
            v_sub_u32 v11, v9, v11
            v_bfe_u32 v12, v10, 3, 1
            v_bfe_u32 v13, v10, 2, 1
            v_lshl_add_u32 v12, v12, 1, v13
            v_mul_u32_u24 v12, 40, v12
            v_lshrrev_b32 v13, 4, v10
            v_lshl_add_u32 v12, v13, 2, v12
            v_and_b32 v13, 3, v10
            v_add_u32 v12, v12, v13
            v_mul_u32_u24 v12, 1280, v12
            v_lshl_add_u32 v12, v11, 4, v12
            v_accvgpr_write_b32 a{200+n}, v12
            """)
            if n < 3:
                g(f"""
                v_min_u32 v10, 15, v10
                v_mul_u32_u24 v12, 1280, v10
                v_lshl_add_u32 v12, v11, 4, v12
                v_accvgpr_write_b32 a{205+n}, v12
                v_mul_u32_u24 v12, 336, v10
                v_lshl_add_u32 v12, v11, 5, v12
                v_accvgpr_write_b32 a{208+n}, v12
                v_accvgpr_write_b32 a{211+n}, v10
                v_lshlrev_b32 v12, 5, v11
                v_accvgpr_write_b32 a{214+n}, v12
                """)

    def o_addresses(self):
        g = self
        g("""
        v_lshrrev_b32 v9, 4, v2
        v_mul_u32_u24 v9, 20480, v9
        v_and_b32 v10, 15, v2
        v_lshl_add_u32 v9, v10, 4, v9
        v_lshl_add_u32 v10, v3, 10, v9
        v_lshl_add_u32 v11, v3, 3, v9
        v_accvgpr_write_b32 a217, v10
        v_accvgpr_write_b32 a218, v11
        """)

    def residual(self):
        g = self
        XR, RS, ST = self.XR, self.RS, self.ST
        for n in range(3):
            xr, rs, st = XR + 4*n, RS + 8*n, ST + 2*n
            g(f"v_rcp_f32 v{st+1}, v{st+1}")
            for d in range(4):
                g(f"""
                v_lshlrev_b32 v10, 16, v{xr+d}
                v_and_b32 v11, 0xffff0000, v{xr+d}
                v_sub_f32 v12, v10, v{st}
                v_sub_f32 v13, v11, v{st}
                v_cvt_pk_bf16_f32 v12, v12, v13
                v_lshlrev_b32 v13, 16, v12
                v_and_b32 v12, 0xffff0000, v12
                v_mul_f32 v13, v13, v{st+1}
                v_mul_f32 v12, v12, v{st+1}
                v_cvt_pk_bf16_f32 v12, v13, v12
                v_lshlrev_b32 v13, 16, v12
                v_and_b32 v12, 0xffff0000, v12
                v_add_f32 v{rs+2*d}, v13, v10
                v_add_f32 v{rs+2*d+1}, v12, v11
                """)

    def y_gather(self):
        g = self
        Y = self.YQ[0]
        g(f"""
        s_cmp_ge_u32 s{S_OWN}, 64
        s_cbranch_scc1 L_noown2
        s_mov_b32 s74, 0                       ; HZ_SKIP_BEGIN
        s_mov_b32 s{S_T2}, 0x0c0c0400
        s_mov_b32 s{S_T3}, 0x04000c0c
        v_mov_b32 v215, s{S_T2}
        v_mov_b32 v216, s{S_T3}
        s_sub_u32 s{S_T4}, 0, s{S_TAG}
        s_mov_b32 exec_hi, 0x0fffffff
L_ycheck:
        s_waitcnt vmcnt(0)
        v_mov_b32 v217, 0
        """)
        for j in range(9):
            q = self.YQ[j]
            g(f"""
            v_perm_b32 v218, v{q+1}, v{q}, v215
            v_perm_b32 v219, v{q+3}, v{q+2}, v216
            v_add3_u32 v218, v218, v219, s{S_T4}
            v_or_b32 v217, v217, v218
            """)
        g(f"""
        v_cmp_ne_u32 vcc, 0, v217
        s_cbranch_vccz L_yok
        s_add_u32 s74, s74, 1
        s_cmp_gt_u32 s74, {SPIN_LIMIT}
        s_cbranch_scc1 L_yok
        s_mov_b32 s{S_T0}, s{S_YA}
        """)
        for j in range(9):
            g(f"buffer_load_dwordx4 {v(self.YQ[j],4)}, v214, {srd(SRD_WS)}, s{S_T0} offen sc1\ns_add_u32 s{S_T0}, s{S_T0}, {3*2560}")
        g("""
        s_branch L_ycheck
L_yok:
        s_mov_b64 exec, -1
        """)
        for j in range(1, 9):
            q = self.YQ[j]
            g(f"v_pk_add_f32 {v(Y,2)}, {v(Y,2)}, {v(q,2)}\nv_pk_add_f32 {v(Y+2,2)}, {v(Y+2,2)}, {v(q+2,2)}")
        g(f"""
        s_mov_b32 exec_hi, 0x0fffffff
        ds_write_b128 v204, {v(Y,4)}
        s_mov_b64 exec, -1
        """)
        g("s_nop 0 ; HZ_SKIP_END\nL_noown2:")

    def phase_c(self):
        g = self
        XR, RS, ST = self.XR, self.RS, self.ST
        self.stamp("argmax")
        g(f"s_cmp_ge_u32 s{S_MU}, 108\ns_cbranch_scc1 L_wodone")
        g("s_nop 0 ; HZ_SKIP_BEGIN")
        self.moe_b()
        g(f"""
        s_movk_i32 s{S_T1}, 0xff
        s_lshr_b32 s{S_T2}, s{S_TAG}, 8
        s_lshr_b32 s{S_T3}, s{S_TAG}, 16
        s_lshr_b32 s{S_T4}, s{S_TAG}, 24
        v_mov_b32 v20, s{S_TAG}
        v_mov_b32 v21, s{S_T2}
        v_mov_b32 v22, s{S_T3}
        v_mov_b32 v23, s{S_T4}
        v_bfi_b32 v16, s{S_T1}, v20, v16
        v_bfi_b32 v17, s{S_T1}, v21, v17
        v_bfi_b32 v18, s{S_T1}, v22, v18
        v_bfi_b32 v19, s{S_T1}, v23, v19
        s_mul_i32 s{S_T0}, s{S_MU}, 2560
        s_add_u32 s{S_T0}, s{S_T0}, {WS_Y}
        v_lshlrev_b32 v9, 4, v0
        v_cmp_gt_u32 vcc, 160, v0
        s_and_saveexec_b64 {s2(S_MA)}, vcc
        s_cbranch_execz L_noy
        buffer_store_dwordx4 v[16:19], v9, {srd(SRD_WS)}, s{S_T0} offen sc1
L_noy:
        s_mov_b64 exec, -1
        s_nop 0 ; HZ_SKIP_END
L_wodone:
        """)
        self.stamp("moedone"); self.mark("moedone")
        g(f"""
        v_bfe_u32 v10, v1, 5, 1
        v_lshlrev_b32 v10, 3, v10
        v_bfe_u32 v11, v1, 4, 1
        v_lshl_add_u32 v10, v11, 2, v10
        v_bfe_u32 v11, v1, 2, 2
        v_add_u32 v10, v10, v11
        v_mul_u32_u24 v10, 160, v10
        v_and_b32 v11, 3, v1
        v_lshl_add_u32 v10, v11, 3, v10
        v_add_u32 v236, {L_WO}, v10
        v_add_u32 v237, {L_WO + 10*5120}, v10
        """)
        NA = self.NA
        def wo_reads(ks):
            base = 236 + ks // 10
            out = []
            for ct in range(5):
                for rd in range(2):
                    dst = ac(20*ks + 4*ct + 2*rd, 2) if ks < NA else v(40 + 20*(ks % 3) + 4*ct + 2*rd, 2)
                    out.append(f"ds_read_b64_tr_b16 {dst}, v{base} offset:{(ks % 10)*5120 + rd*2560 + ct*32}")
            return out
        if "poll1" in self.exp: g(f"s_cmp_lg_u32 s{S_WAVE}, 0\ns_cbranch_scc1 L_noisso\ns_nop 0 ; HZ_SKIP_BEGIN")
        self.poll_issue(SRD_WS, f"s_lshr_b32 s{S_T0}, s{S_RB64}, 1\ns_add_u32 s{S_T0}, s{S_T0}, {CNT_O}\ns_lshl_b32 s{S_T0}, s{S_T0}, 7\nv_mov_b32 v238, s{S_T0}")
        if "poll1" in self.exp: g("s_nop 0 ; HZ_SKIP_END\nL_noisso:")
        for ks in range(NA + 2):
            for x in wo_reads(ks): g(x)
            if ks < NA + 1: g("s_waitcnt lgkmcnt(5)")
        g(f"""
        s_lshl_b32 s{S_T0}, s{S_RB64}, 6
        s_sub_u32 s{S_OWN}, s{S_IDX}, s{S_T0}
        s_cmp_ge_u32 s{S_OWN}, 64
        s_cbranch_scc1 L_noown0
        v_min_u32 v10, 19, v1                  ; HZ_SKIP_BEGIN
        v_lshlrev_b32 v10, 3, v10
        s_mul_i32 s{S_T0}, s{S_IDX}, 1280
        s_mul_i32 s{S_T1}, s{S_CB}, 160
        s_add_u32 s{S_T0}, s{S_T0}, s{S_T1}
        buffer_load_dwordx2 v[200:201], v10, {srd(SRD_X)}, s{S_T0} offen
        s_lshl_b32 s{S_T0}, s{S_IDX}, 3
        s_add_u32 s{S_T0}, s{S_T0}, {WS_STATS}
        v_mov_b32 v10, 0
        buffer_load_dwordx2 v[202:203], v10, {srd(SRD_WS)}, s{S_T0} offen sc1   ; HZ_SKIP_END
L_noown0:
        """)
        if "poll1" in self.exp:
            g(f"s_waitcnt vmcnt(0)\ns_cmp_lg_u32 s{S_WAVE}, 0\ns_cbranch_scc1 L_nopollo\ns_nop 0 ; HZ_SKIP_BEGIN")
            self.poll_finish("o", SRD_WS, 16)
            g("s_nop 0 ; HZ_SKIP_END\nL_nopollo:\ns_barrier")
        else:
            self.poll_finish("o", SRD_WS, 16)
        self.stamp("oseen"); self.dbg_span(8, False); self.mark("oseen")
        g(f"""
        s_mul_i32 s{S_T0}, s{S_RB64}, 81920
        s_mul_i32 s{S_T1}, s{S_WAVE}, 20480
        s_add_u32 s{S_T0}, s{S_T0}, s{S_T1}
        s_add_u32 s{S_T0}, s{S_T0}, {WS_O}
        v_lshlrev_b32 v9, 4, v1
        """)
        self.vm = []
        regs_o = list(range(100, 128, 4)) + list(range(146, 174, 4)) + [220, 224, 228, 232, 240, 244]
        assert len(regs_o) == 20, len(regs_o)
        def oload(ks):
            g(f"buffer_load_dwordx4 {v(regs_o[ks],4)}, v9, {srd(SRD_WS)}, s{S_T0} offen sc1\ns_add_u32 s{S_T0}, s{S_T0}, 1024")
            g.vmi(f"o{ks}")
        AHEAD = 10
        for ks in range(AHEAD): oload(ks)
        g(f"s_cmp_ge_u32 s{S_OWN}, 64\ns_cbranch_scc1 L_noownp")
        g(f"""
        v_mov_b32 v205, s{S_RSEL}              ; HZ_SKIP_BEGIN
        """)
        g.rnd_bf16(205, 205)
        g(f"""
        v_mul_f32 v205, 0xbfb8aa3b, v205
        v_exp_f32 v205, v205
        v_rcp_f32 v203, v203
        v_add_f32 v205, 1.0, v205
        v_rcp_f32 v205, v205
        v_lshlrev_b32 v206, 16, v200
        v_and_b32 v207, 0xffff0000, v200
        v_lshlrev_b32 v208, 16, v201
        v_and_b32 v209, 0xffff0000, v201
        """)
        g.rnd_bf16(205, 205)
        for e in range(4):
            g(f"v_sub_f32 v{206+e}, v{206+e}, v202")
            g.rnd_bf16(206+e, 206+e)
            g(f"v_mul_f32 v{206+e}, v{206+e}, v203")
            g.rnd_bf16(206+e, 206+e)
        g("s_nop 0 ; HZ_SKIP_END\nL_noownp:")
        self.stamp("c_issued")
        for ks in range(20):
            if ks == 0: g("s_waitcnt lgkmcnt(0)")
            elif ks >= NA: g("s_waitcnt lgkmcnt(5)" if ks < 18 else ("s_waitcnt lgkmcnt(10)" if ks < 19 else "s_waitcnt lgkmcnt(0)"))
            if ks < 16: g.vmwait(f"o{ks}")
            if ks == 11:
                g(f"s_cmp_ge_u32 s{S_OWN}, 64\ns_cbranch_scc1 L_noown1\ns_nop 0 ; HZ_SKIP_BEGIN")
                g(f"""
                v_mul_u32_u24 v10, 3277, v1
                v_lshrrev_b32 v10, 16, v10
                v_mul_u32_u24 v11, 20, v10
                v_sub_u32 v11, v1, v11
                v_mul_u32_u24 v214, 2560, v10
                v_lshl_add_u32 v214, v11, 4, v214
                s_mul_i32 s{S_T0}, s{S_CB}, 320
                s_mul_i32 s{S_T1}, s{S_WAVE}, {27*2560}
                s_add_u32 s{S_T0}, s{S_T0}, s{S_T1}
                s_add_u32 s{S_YA}, s{S_T0}, {WS_Y}
                s_mov_b32 s{S_T0}, s{S_YA}
                s_mov_b32 exec_hi, 0x0fffffff
                """)
                for j in range(9):
                    g(f"buffer_load_dwordx4 {v(self.YQ[j],4)}, v214, {srd(SRD_WS)}, s{S_T0} offen sc1\ns_add_u32 s{S_T0}, s{S_T0}, {3*2560}")
                g(f"""
                s_mov_b64 exec, -1
                v_mul_u32_u24 v12, 320, v10
                v_lshl_add_u32 v12, v11, 4, v12
                s_mul_i32 s{S_T1}, s{S_WAVE}, 960
                s_add_u32 s{S_T1}, s{S_T1}, {L_YR}
                v_add_u32 v204, s{S_T1}, v12
                s_nop 0 ; HZ_SKIP_END
L_noown1:
                """)
            if ks == 16:
                g("s_waitcnt vmcnt(0)")
                self.y_gather()
            if ks in (0, 5, 10, 15): self.stamp(f"c_o{ks}")
            rd = wo_reads(ks + 2) if NA <= ks < 18 else []
            for ct in range(5):
                cin = "0" if ks == 0 else v(16+4*ct, 4)
                A = ac(20*ks + 4*ct, 4) if ks < NA else v(40 + 20*(ks % 3) + 4*ct, 4)
                g(f"v_mfma_f32_16x16x32_bf16 {v(16+4*ct,4)}, {A}, {v(regs_o[ks],4)}, {cin}")
                for x in rd[2*ct:2*ct+2]: g(x)
            if ks + AHEAD < 20: oload(ks + AHEAD)
        self.stamp("cmfma"); self.mark("cmfma")
        g(f"s_cmp_ge_u32 s{S_OWN}, 64\ns_cbranch_scc1 L_noown3\ns_nop 0 ; HZ_SKIP_BEGIN")
        g(f"""
        v_min_u32 v10, 19, v1
        v_lshlrev_b32 v10, 4, v10
        v_add_u32 v10, {L_YR}, v10
        s_waitcnt lgkmcnt(0)
        s_barrier
        """)
        Y = 40
        for j in range(12):
            g(f"ds_read_b128 {v(Y+4*j,4)}, v10 offset:{320*j}")
        g("s_waitcnt lgkmcnt(0)")
        for j in range(1, 12):
            g(f"v_pk_add_f32 {v(Y,2)}, {v(Y,2)}, {v(Y+4*j,2)}\nv_pk_add_f32 {v(Y+2,2)}, {v(Y+2,2)}, {v(Y+4*j+2,2)}")
        for e in range(4):
            g.rnd_bf16(Y+e, Y+e)
            g(f"v_mul_f32 v{Y+e}, v{Y+e}, v205")
            g.rnd_bf16(Y+e, Y+e)
            g(f"v_add_f32 v{Y+e}, v{Y+e}, v{206+e}")
            g.rnd_bf16(Y+e, Y+e)
            g(f"v_sub_f32 v{210+e}, v{Y+e}, v{206+e}")
        g("s_nop 0 ; HZ_SKIP_END\nL_noown3:")
        g(f"""
        s_mul_i32 s{S_T0}, s{S_WAVE}, 5376
        s_add_u32 s{S_T0}, s{S_T0}, {L_OST}
        v_and_b32 v9, 15, v1
        v_mul_u32_u24 v9, 336, v9
        v_lshrrev_b32 v10, 4, v1
        v_lshl_add_u32 v9, v10, 4, v9
        v_add_u32 v9, s{S_T0}, v9
        """)
        for ct in range(5): g(f"ds_write_b128 v9, {v(16+4*ct,4)} offset:{64*ct}")
        for n in range(3): g(f"v_add_u32 v{10+n}, s{S_T0}, v{137+n}")
        g(f"""
        s_waitcnt lgkmcnt(0)
        s_sub_u32 s{S_T4}, s{S_IDX}, s{S_ROW0}
        s_cmp_ge_u32 s{S_T4}, 16
        s_cbranch_scc1 L_norow
        s_mul_i32 s{S_T4}, s{S_T4}, 336            ; HZ_SKIP_BEGIN
        s_add_u32 s{S_T4}, s{S_T4}, s{S_T0}
        v_lshl_add_u32 v9, v1, 4, s{S_T4}
        s_mov_b32 exec_lo, 0xfffff
        s_mov_b32 exec_hi, 0
        ds_read_b128 v[40:43], v9
        s_waitcnt lgkmcnt(0)
        v_pk_add_f32 v[40:41], v[40:41], v[210:211]
        v_pk_add_f32 v[42:43], v[42:43], v[212:213]
        ds_write_b128 v9, v[40:43]
        s_waitcnt lgkmcnt(0)
        s_mov_b64 exec, -1                         ; HZ_SKIP_END
L_norow:
        """)
        for n in range(3):
            g(f"ds_read_b128 {v(40+8*n,4)}, v{10+n}\nds_read_b128 {v(44+8*n,4)}, v{10+n} offset:16")
        for n in range(3):
            rs = RS + 8*n
            g(f"s_waitcnt lgkmcnt({4 - 2*n})")
            for e in range(0, 8, 2):
                g(f"v_pk_add_f32 {v(40+8*n+e,2)}, {v(40+8*n+e,2)}, {v(rs+e,2)}")
            for e in range(4):
                g(f"v_cvt_pk_bf16_f32 v{64+4*n+e}, v{40+8*n+2*e}, v{40+8*n+2*e+1}")
            if n == 2: g("s_mov_b32 exec_hi, 0")
            g(f"buffer_store_dwordx4 {v(64+4*n,4)}, v{134+n}, {srd(SRD_OUT)}, s{S_XO} offen")
        g("s_mov_b64 exec, -1")
        self.stamp("end"); self.stamp("clk1", True)

    def rest(self):
        self.publish_kv()
        self.dbg_span(4, False); self.mark("kvsig")
        self.pass2()
        self.kv_wait()
        self.dbg_span(9, False); self.mark("kvseen")
        self.q_epilogue()
        self.dbg_span(5, False)
        self.kv_reduce_and_o()
        self.dbg_span(6, False); self.mark("osig")
        self.phase_c()
```

```python
import sys, re
from asmlib import Asm, kernel_header
import hazard

NAME = "parallel_sum__linear_kernel_hedgehog__moe_arch_mod__prompt_kernel"

WS_CNT   = 0
WS_KVP   = 0x10000
KVP_SZ   = 6784
WS_O     = 0x200000
WS_STATS = 0x500000
WS_RMAX  = 0x508000
WS_Y     = 0x510000
WS_DBG   = 0x800000
WS_TS    = 0x700000
WS_SIZE  = 268435456

SLOT     = 28672
L_WQ     = 0
L_T      = 57344
L_WO     = 0
L_G      = 102400
L_U      = L_G + 20480 + 128
L_OST    = L_G
L_YR     = L_OST + 4 * 5376
L_MISC   = L_U + 20480
L_WPHI   = L_MISC
L_CS     = L_WPHI + 4 * 1664
L_P0     = L_CS + 1024
L_KVF    = L_P0 + 64
L_XS     = L_KVF + 6144
L_HP     = L_XS + 5120
L_END    = L_HP + 640
LDS_SIZE = 163840
assert L_END <= LDS_SIZE, L_END
assert 5 * SLOT <= L_MISC

S_WAVE = 3
SRD_X, SRD_W, SRD_PHI, SRD_WO, SRD_WR, SRD_G, SRD_U, SRD_D, SRD_OUT, SRD_DBG, SRD_WS = range(4, 48, 4)
S_XCD, S_SLOT, S_RB, S_HP = 48, 49, 50, 51
S_XB, S_WB, S_LX, S_LW = 52, 53, 54, 55
S_WM = 56
S_T0, S_T1, S_T2, S_T3, S_T4, S_T5 = 62, 63, 64, 65, 66, 67
S_MA, S_MB = 68, 70
S_C0, S_CC, S_CX, S_CW = 76, 77, 78, 79
S_WQL, S_WQG, S_P0ROW, S_IDX = 80, 81, 82, 83
S_KVS = 75
S_TS = 86

def srd(n): return f"s[{n}:{n+3}]"
def v(b, n=1): return f"v{b}" if n == 1 else f"v[{b}:{b+n-1}]"
def ac(b, n=1): return f"a{b}" if n == 1 else f"a[{b}:{b+n-1}]"
def s2(b): return f"s[{b}:{b+1}]"


class Gen:
    def __init__(self, stop=None, dumps=(), stamps=False, touch=True, exp=()):
        self.touch = touch
        self.dist = 2 if "d2" in exp else 3
        self.exp = set(exp)
        self.a = Asm()
        self.vm = []
        self.stop = stop
        self.dumps = set(dumps)
        self.stamps = stamps
        self.nstamp = 0
        self.pending = []
        self.dump_off = 0
        self.dump_index = {}

    def __call__(self, t):
        self.a(t)
        if self.stamps and self.pending and not getattr(self, "capturing", False) and not self.in_skip(t):
            last = t.strip().split("\n")[-1].strip()
            if last.startswith("s_waitcnt") and "lgkmcnt(0)" in last: self.flush_stamps()

    def in_skip(self, t):
        for l in t.split("\n"):
            if "HZ_SKIP_BEGIN" in l: self.skipdepth = 1
            if "HZ_SKIP_END" in l: self.skipdepth = 0
        return getattr(self, "skipdepth", 0) > 0

    def vmi(self, tag, n=1):
        self.vm += [tag] * n
    def capture(self, fn):
        old, self.a.lines = self.a.lines, []
        self.capturing = True
        fn()
        self.capturing = False
        out, self.a.lines = self.a.lines, old
        return [l.strip() for l in out if l.strip()]

    def atoms(self, lines):
        out, cur, hold = [], [], None
        for l in lines:
            cur.append(l)
            code = l.split(";")[0].strip()
            if hold is None:
                if re.match(r"s_(mov|brev|and_saveexec)\w* (exec|exec_lo|exec_hi)\b", code) or code.startswith("s_and_saveexec"):
                    if not code.endswith("exec, -1"): hold = "exec"
                elif code.startswith("s_cmp"): hold = "label"
            else:
                if hold == "exec" and code == "s_mov_b64 exec, -1": hold = None
                elif hold == "label" and (code.endswith(":") or code.startswith("s_cselect")): hold = None
            if hold is None and not l.endswith(";+"):
                out.append(cur); cur = []
        if cur: out.append(cur)
        return out

    def interleave(self, groups, filler):
        at = self.atoms(filler)
        total = sum(len(a) for a in at)
        done = 0
        for i, (lines, tag) in enumerate(groups):
            for x in lines: self(x)
            self.vmi(tag)
            target = total * (i + 1) // len(groups)
            while at and done < target:
                a = at.pop(0); done += len(a)
                for x in a: self.emit_resolved(x)
        for a in at:
            for x in a: self.emit_resolved(x)

    def emit_resolved(self, x):
        if x.startswith("@VMWAIT "): self.vmwait(x.split()[1])
        elif x.startswith("@STAMP "): self.stamp(x.split()[1])
        else: self(x)

    def vmwait(self, tag):
        if getattr(self, "capturing", False):
            self(f"@VMWAIT {tag}"); return
        last = max(i for i, t in enumerate(self.vm) if t == tag)
        n = len(self.vm) - 1 - last
        assert n <= 63, (tag, n)
        self(f"s_waitcnt vmcnt({n})")
    def vmwait_all(self):
        self("s_waitcnt vmcnt(0)")

    def stamp(self, name, clk=False):
        if not self.stamps: return
        if "all" not in self.stamps and name not in self.stamps: return
        if getattr(self, "capturing", False):
            self(f"@STAMP {name}"); return
        if "cyc" in self.exp: clk = True
        self.stamp_names = getattr(self, "stamp_names", [])
        if name in self.stamp_names: return
        used = {i for i, _ in self.pending}
        free = [i for i in range(8) if i not in used]
        if not free:
            Asm.__call__(self.a, "s_waitcnt lgkmcnt(0)"); self.flush_stamps()
            free = list(range(8))
        i = free[0]
        lane = len(self.stamp_names); assert lane < 63, name
        self.stamp_names.append(name)
        self.pending.append((i, lane))
        Asm.__call__(self.a, f"{'s_memtime' if clk else 's_memrealtime'} {s2(S_TS + 2*i)} ; stamp {name}")

    def flush_stamps(self):
        for i, lane in self.pending:
            Asm.__call__(self.a, f"v_writelane_b32 v255, s{S_TS + 2*i}, {lane}")
        self.pending = []

    def dump(self, name, regs, tmp=250):
        if name not in self.dumps: return
        g = self
        n = len(regs)
        base = WS_DBG + self.dump_off
        self.dump_index[name] = (self.dump_off, n)
        self.dump_off += 256 * 4 * n * 256
        g("s_waitcnt vmcnt(0) lgkmcnt(0)\ns_nop 15\ns_nop 15")
        g(f"s_lshl_b32 s74, s2, 2\ns_add_u32 s74, s74, s{S_WAVE}\ns_mul_i32 s74, s74, {n*256}\ns_add_u32 s74, s74, {base}")
        g(f"v_lshlrev_b32 v{tmp}, 2, v1")
        for i, r in enumerate(regs):
            if isinstance(r, str) and r.startswith("a"):
                g(f"v_accvgpr_read_b32 v{tmp+1}, {r}\ns_nop 1")
                src = f"v{tmp+1}"
            else:
                src = f"v{r}"
            g(f"buffer_store_dword {src}, v{tmp}, {srd(SRD_WS)}, s74 offen")
            g(f"s_add_u32 s74, s74, 256")
            g("s_waitcnt vmcnt(0)")

    def rnd_bf16(self, dst, src):
        self(f"v_cvt_pk_bf16_f32 v{dst}, v{src}, v{src}\nv_lshlrev_b32 v{dst}, 16, v{dst}")

    def prologue(self):
        g = self
        ptrs = [(SRD_X, 0), (SRD_W, 8), (SRD_WR, 40), (SRD_PHI, 16), (SRD_WS, 88), (SRD_DBG, 80),
                (SRD_WO, 24), (SRD_G, 48), (SRD_U, 56), (SRD_D, 64), (SRD_OUT, 72)]
        sizes = {SRD_X: 2621440, SRD_W: 2457600, SRD_WR: 1280, SRD_PHI: 25600, SRD_WS: WS_SIZE, SRD_DBG: 256,
                 SRD_WO: 819200, SRD_G: 2211840, SRD_U: 2211840, SRD_D: 2211840, SRD_OUT: 2621440}
        self.sizes = sizes
        if "span" in self.exp or "skew" in self.exp: g("s_memrealtime s[98:99]")
        self.mark("start")
        g("s_getpc_b64 s[72:73]")
        g("L_pc:")
        for r, off in ptrs[:4]:
            g(f"s_load_dwordx2 {s2(r)}, s[0:1], {off}")
        g(f"""
        s_cmp_ge_u32 s2, 256
        s_cbranch_scc1 L_exit
        v_and_b32 v1, 63, v0
        v_lshrrev_b32 v9, 6, v0
        s_lshr_b32 s{S_SLOT}, s2, 3
        v_readfirstlane_b32 s{S_WAVE}, v9
        s_and_b32 s{S_XCD}, s2, 7
        """)
        g(f"""
        s_lshl_b32 s{S_T0}, s{S_SLOT}, 2
        s_add_u32 s{S_T0}, s{S_T0}, s{S_WAVE}
        s_lshl_b32 s{S_T0}, s{S_T0}, 9
        v_lshl_add_u32 v11, v1, 7, s{S_T0}
        v_cmp_gt_u32 vcc, L_code_end - L_pc, v11
        v_cmp_gt_u32 {s2(S_MA)}, 4, v1
        s_and_b64 vcc, vcc, {s2(S_MA)}
        s_and_saveexec_b64 {s2(S_MA)}, vcc
        s_cbranch_execz L_nopf
        global_load_dword v159, v11, s[72:73]       ; HZ_SKIP_BEGIN HZ_SKIP_END
L_nopf:
        s_mov_b64 exec, -1
        """)
        for r, off in ptrs[4:]:
            g(f"s_load_dwordx2 {s2(r)}, s[0:1], {off}")
        g(f"""
        s_and_b32 s{S_T0}, s{S_XCD}, 1
        s_lshl_b32 s{S_T0}, s{S_T0}, 3
        s_and_b32 s{S_T1}, s{S_SLOT}, 7
        s_add_u32 s{S_RB}, s{S_T0}, s{S_T1}
        s_lshr_b32 s{S_T0}, s{S_XCD}, 1
        s_lshl_b32 s{S_T0}, s{S_T0}, 2
        s_lshr_b32 s{S_T2}, s{S_SLOT}, 3
        s_add_u32 s{S_HP}, s{S_T0}, s{S_T2}
        s_lshl_b32 s{S_T2}, s{S_T2}, 1
        s_add_u32 s{S_T1}, s{S_T1}, s{S_T2}
        s_and_b32 s{S_T1}, s{S_T1}, 7
        s_mul_i32 s{S_T1}, s{S_T1}, 10
        s_lshr_b32 s{S_C0}, s{S_T1}, 3
        {self.rot_extra()}
        v_lshrrev_b32 v9, 3, v1
        v_mul_u32_u24 v9, 1280, v9
        v_and_b32 v11, 7, v1
        v_lshrrev_b32 v15, 4, v1
        v_xor_b32 v11, v11, v15
        v_lshl_add_u32 v4, v11, 4, v9
        v_xor_b32 v11, 4, v11
        v_lshl_add_u32 v5, v11, 4, v9
        v_add_u32 v5, {10240 - 1024}, v5
        v_add_u32 v157, {20480 - 2048}, v4
        v_add_u32 v158, {20480 - 2048}, v5
        s_lshl_b32 s{S_T0}, s{S_RB}, 7
        s_lshl_b32 s{S_T1}, s{S_WAVE}, 5
        s_add_u32 s{S_T1}, s{S_T1}, s{S_T0}
        s_mul_i32 s{S_XB}, s{S_T1}, 1280
        s_mul_i32 s{S_WB}, s{S_WAVE}, {16*3840}
        s_mul_i32 s{S_T1}, s{S_HP}, 80
        s_add_u32 s{S_WB}, s{S_WB}, s{S_T1}
        s_lshl_b32 s{S_LX}, s{S_WAVE}, 12
        s_mul_i32 s{S_LW}, s{S_WAVE}, 3072
        s_add_u32 s{S_LW}, s{S_LW}, 16384
        s_add_u32 s{S_CC}, s{S_XB}, 1280
        s_lshl_b32 s{S_CX}, s{S_C0}, 7
        s_add_u32 s{S_CX}, s{S_CX}, s{S_XB}
        s_mul_i32 s{S_CW}, s{S_C0}, {64*3840}
        s_add_u32 s{S_CW}, s{S_CW}, s{S_WB}
        """)
        for r in (SRD_X, SRD_W):
            g(f"s_mov_b32 s{r+2}, {sizes[r]}\ns_mov_b32 s{r+3}, 0x20000")
        for n in range(3):
            g(f"""
            v_add_u32 v9, {64*n}, v1
            v_mul_u32_u24 v11, 43691, v9
            v_lshrrev_b32 v11, 19, v11
            v_mul_u32_u24 v12, 12, v11
            v_sub_u32 v12, v9, v12
            v_cmp_gt_u32 {s2(S_WM+2*n)}, 10, v12
            v_cmp_gt_u32 vcc, 5, v12
            v_mul_u32_u24 v11, 3840, v11
            v_lshl_add_u32 v11, v12, 4, v11
            v_mov_b32 v13, 2480
            v_add_u32 v14, 1280, v11
            v_add_u32 v11, v13, v11
            v_cndmask_b32 v{6+n}, v11, v14, vcc
            """)
            if n: g(f"v_subrev_u32 v{6+n}, {1024*n}, v{6+n}")
        g("s_waitcnt lgkmcnt(0)")
        self.stamp("start"); self.stamp("clk0", True)
        self.nt = " nt" if "nt" in self.exp else ""
        if "early" in self.exp:
            for x in self.p1_refill(0):
                for y in x: g(y)
                g.vmi("c0")
        for r in (SRD_WR, SRD_PHI):
            g(f"s_mov_b32 s{r+2}, {sizes[r]}\ns_mov_b32 s{r+3}, 0x20000")
        P = 160
        nt = " nt" if "nt" in self.exp else ""
        self.nt = nt
        g(f"""
        v_mul_u32_u24 v10, 20, v1
        s_lshl_b32 s{S_T0}, s{S_RB}, 7
        s_lshl_b32 s{S_T1}, s{S_HP}, 3
        s_add_u32 s{S_T0}, s{S_T0}, s{S_T1}
        s_lshl_b32 s{S_T1}, s{S_WAVE}, 1
        s_add_u32 s{S_P0ROW}, s{S_T0}, s{S_T1}
        s_mul_i32 s{S_T4}, s{S_P0ROW}, 1280
        buffer_load_dwordx4 {v(P,4)}, v10, {srd(SRD_X)}, s{S_T4} offen
        buffer_load_dword v{P+4}, v10, {srd(SRD_X)}, s{S_T4} offen offset:16
        buffer_load_dwordx4 {v(P+6,4)}, v10, {srd(SRD_X)}, s{S_T4} offen offset:1280
        buffer_load_dword v{P+10}, v10, {srd(SRD_X)}, s{S_T4} offen offset:1296
        buffer_load_dwordx4 {v(P+12,4)}, v10, {srd(SRD_WR)}, 0 offen
        buffer_load_dword v{P+16}, v10, {srd(SRD_WR)}, 0 offen offset:16
        v_lshlrev_b32 v11, 4, v1
        s_mul_i32 s{S_T0}, s{S_HP}, 1600
        s_mul_i32 s{S_T1}, s{S_WAVE}, 1664
        s_add_u32 m0, s{S_T1}, {L_WPHI}
        s_add_u32 s{S_T4}, s{S_T1}, {L_WPHI + 1024}
        buffer_load_dwordx4 v11, {srd(SRD_PHI)}, s{S_T0} offen lds
        s_mov_b32 m0, s{S_T4}
        s_mov_b32 exec_lo, -1
        s_mov_b32 exec_hi, 15
        s_add_u32 s{S_T0}, s{S_T0}, 1024
        buffer_load_dwordx4 v11, {srd(SRD_PHI)}, s{S_T0} offen lds
        s_mov_b64 exec, -1
        """)
        tagged = lambda i: [(x, f"c{i}") for x in self.p1_refill(i)]
        if "early" not in self.exp:
            g.vmi("p0", 6); g.vmi("phi", 2)
            for lines, tag in tagged(0):
                for x in lines: g(x)
                g.vmi(tag)
        else:
            g.vmi("p0", 6); g.vmi("phi", 2)
        if "spf" in self.exp:
            n_pf = 14
            g(f"s_mov_b32 s{S_T0}, s{S_CX}")
            for j in range(n_pf):
                g(f"s_load_dword s{92 + (j & 7)}, s[4:5], s{S_T0}\ns_add_u32 s{S_T0}, s{S_T0}, {2*1280 if 'spf2' in self.exp else 1280}")
        self.stamp("c0iss")
        s1, s2_ = self.capture(self.setup1), self.capture(self.setup2)
        p0, pf = self.capture(self.phase0), self.capture(self.phi_frags)
        cut = 260
        rest2 = s2_
        for x in s1: self.emit_resolved(x)
        at = self.atoms(s2_); n = 0; head = [];
        while at and n < cut - len(s1):
            a_ = at.pop(0); n += len(a_); head += a_
        for x in head: self.emit_resolved(x)
        tail = [x for a_ in at for x in a_]
        if self.dist == 3:
            self.interleave(tagged(1), tail + p0)
            self.interleave(tagged(2), pf)
        else:
            self.interleave(tagged(1), tail + p0 + pf)
        self.stamp("filled")

    def zero_pad(self):
        if "zpad" not in self.exp: return ""
        return ("v_mov_b32 v22, 0\nv_mov_b32 v23, 0\nv_mov_b32 v24, 0\nv_mov_b32 v25, 0\n"
                f"ds_write_b128 v9, v[22:25] offset:{16384 + 176}\nds_write_b128 v11, v[22:25] offset:{16384 + 176}")

    def rot_extra(self):
        for e in self.exp:
            if e.startswith("rot:"):
                a, b = e.split(":")[1:3]
                return (f"s_lshr_b32 s{S_T2}, s{S_XCD}, 1\ns_mul_i32 s{S_T2}, s{S_T2}, {a}\ns_add_u32 s{S_C0}, s{S_C0}, s{S_T2}\n"
                        f"s_and_b32 s{S_T2}, s{S_XCD}, 1\ns_mul_i32 s{S_T2}, s{S_T2}, {b}\ns_add_u32 s{S_C0}, s{S_C0}, s{S_T2}\n"
                        f"s_mul_i32 s{S_T2}, s{S_C0}, 6554\ns_lshr_b32 s{S_T2}, s{S_T2}, 16\ns_mul_i32 s{S_T2}, s{S_T2}, 10\ns_sub_u32 s{S_C0}, s{S_C0}, s{S_T2}")
        return ""

    def setup1(self):
        g = self
        sizes = self.sizes
        for r in (SRD_WS, SRD_DBG):
            g(f"s_mov_b32 s{r+2}, {sizes[r]}\ns_mov_b32 s{r+3}, 0x20000")
        g(f"""
        s_lshl_b32 s{S_T0}, s{S_WAVE}, 8
        s_add_u32 s{S_T0}, s{S_T0}, s2
        s_cmp_lg_u32 s{S_T0}, 256
        s_cbranch_scc1 L_noinit
        v_lshlrev_b32 v11, 7, v1       ; HZ_SKIP_BEGIN
        v_mov_b32 v12, 0
        buffer_store_dword v12, v11, {srd(SRD_WS)}, 0 offen sc1   ; HZ_SKIP_END
L_noinit:
        """)
        for r in (SRD_WO, SRD_G, SRD_U, SRD_D, SRD_OUT):
            g(f"s_mov_b32 s{r+2}, {sizes[r]}\ns_mov_b32 s{r+3}, 0x20000")
        g(f"""
        v_and_b32 v2, 31, v1
        v_lshrrev_b32 v3, 5, v1
        v_mov_b32 v12, 0x3f80
        v_mov_b32 v13, 0
        v_mov_b32 v14, 0x3f80
        v_mov_b32 v15, 0
        v_lshrrev_b32 v9, 6, v0
        v_mul_u32_u24 v9, {SLOT}, v9
        v_mul_u32_u24 v11, 192, v1
        v_add_u32 v9, v9, v11
        ds_write_b128 v9, v[12:15] offset:{16384 + 160}
        v_add_u32 v11, {4*SLOT}, v11
        ds_write_b128 v11, v[12:15] offset:{16384 + 160}
        {self.zero_pad()}
        v_mov_b32 v16, 0
        v_mov_b32 v17, 0
        v_mov_b32 v18, 0
        v_mov_b32 v19, 0
        v_lshlrev_b32 v20, 4, v0
        v_add_u32 v20, {L_KVF}, v20
        ds_write_b128 v20, v[16:19]
        v_lshlrev_b32 v21, 3, v0
        v_add_u32 v21, {L_KVF + 4096}, v21
        ds_write_b64 v21, v[16:17]
        v_mov_b32 v84, 0x3f803f80
        v_mov_b32 v85, 0x3f803f80
        """)
        g(f"""
        v_lshrrev_b32 v9, 1, v2
        v_and_b32 v9, 7, v9
        v_xor_b32 v9, v9, v3
        v_lshlrev_b32 v9, 4, v9
        v_lshl_add_u32 v9, v2, 7, v9
        v_add_u32 v128, s{S_LX}, v9
        v_xor_b32 v129, 32, v128
        v_xor_b32 v130, 64, v128
        v_xor_b32 v131, 96, v128
        v_add_u32 v132, {3*SLOT}, v128
        v_add_u32 v133, {3*SLOT}, v129
        v_add_u32 v134, {3*SLOT}, v130
        v_add_u32 v135, {3*SLOT}, v131
        v_bfe_u32 v9, v1, 2, 2
        v_lshl_add_u32 v9, v3, 3, v9
        v_mul_u32_u24 v9, 192, v9
        v_bfe_u32 v11, v1, 4, 1
        v_and_b32 v12, 3, v1
        v_lshl_add_u32 v11, v11, 2, v12
        v_lshl_add_u32 v9, v11, 3, v9
        v_add_u32 v136, 16384, v9
        v_add_u32 v137, {16384 + 2*SLOT}, v9
        v_add_u32 v138, {16384 + 4*SLOT}, v9
        s_lshl_b32 s{S_T0}, s{S_WAVE}, 6
        v_add_u32 v72, s{S_T0}, v136
        v_add_u32 v73, s{S_T0}, v137
        v_add_u32 v74, s{S_T0}, v138
        """)

    def setup2(self):
        g = self
        self.moe_roles()
        self.kv_addresses()
        self.c_addresses()
        self.o_addresses()
        self.wq_setup()
        g(f"""
        s_lshl_b32 s{S_T0}, s{S_WAVE}, 5
        v_add_u32 v9, s{S_T0}, v2
        v_mul_u32_u24 v9, 336, v9
        v_add_u32 v9, {L_T}, v9
        v_lshl_add_u32 v9, v3, 3, v9
        v_accvgpr_write_b32 a192, v9
        s_lshr_b32 s{S_T0}, s{S_WAVE}, 1
        s_and_b32 s{S_T4}, s{S_WAVE}, 1
        v_bfe_u32 v9, v1, 2, 2
        v_lshlrev_b32 v9, 1, v9
        v_add_u32 v9, v9, v3
        v_lshlrev_b32 v9, 1, v9
        v_mul_u32_u24 v9, 336, v9
        v_add_u32 v9, {L_T}, v9
        v_bfe_u32 v11, v1, 4, 1
        v_and_b32 v12, 3, v1
        v_lshl_add_u32 v11, v11, 2, v12
        s_mul_i32 s{S_T2}, s{S_T0}, 12
        s_lshl_b32 s{S_T3}, s{S_T4}, 3
        s_add_u32 s{S_T2}, s{S_T2}, s{S_T3}
        v_add_u32 v12, s{S_T2}, v11
        v_lshl_add_u32 v13, v12, 3, v9
        v_accvgpr_write_b32 a193, v13
        s_mul_i32 s{S_T2}, s{S_T0}, 5
        s_add_u32 s{S_T2}, s{S_T2}, 24
        v_add_u32 v12, s{S_T2}, v11
        s_mul_i32 s{S_T3}, s{S_T0}, -3
        s_add_i32 s{S_T3}, s{S_T3}, 37
        v_mov_b32 v13, s{S_T3}
        v_cmp_eq_u32 vcc, 5, v11
        v_cndmask_b32 v12, v12, v13, vcc
        s_add_i32 s{S_T3}, s{S_T3}, -13
        v_add_u32 v13, s{S_T3}, v11
        v_cmp_lt_u32 vcc, 5, v11
        v_cndmask_b32 v12, v12, v13, vcc
        v_lshl_add_u32 v13, v12, 3, v9
        v_accvgpr_write_b32 a194, v13
        v_mul_u32_u24 v9, 336, v3
        v_lshl_add_u32 v9, v2, 4, v9
        v_accvgpr_write_b32 a195, v9
        s_lshl_b32 s{S_T2}, s{S_HP}, 4
        s_add_u32 s{S_T2}, s{S_T2}, s{S_RB}
        s_mul_i32 s{S_T2}, s{S_T2}, {KVP_SZ}
        s_add_u32 s{S_T2}, s{S_T2}, {WS_KVP}
        s_mul_i32 s{S_T3}, s{S_T0}, 3360
        s_add_u32 s{S_KVS}, s{S_T2}, s{S_T3}
        """)

    def phase0(self):
        g = self
        P = 160
        self.stamp("pre_p0")
        g.vmwait("phi")
        self.stamp("p0data")
        X0, X1, W = P, P + 6, P + 12
        A = 180
        for i in range(7): g(f"v_mov_b32 v{A+i}, 0")
        for d in range(5):
            g(f"""
            v_dot2c_f32_bf16 v{A+0}, v{X0+d}, v84
            v_dot2c_f32_bf16 v{A+1}, v{X0+d}, v{X0+d}
            v_dot2c_f32_bf16 v{A+2}, v{X0+d}, v{W+d}
            v_dot2c_f32_bf16 v{A+3}, v{X1+d}, v84
            v_dot2c_f32_bf16 v{A+4}, v{X1+d}, v{X1+d}
            v_dot2c_f32_bf16 v{A+5}, v{X1+d}, v{W+d}
            v_dot2c_f32_bf16 v{A+6}, v{W+d}, v84
            """)
        g("s_nop 2")
        for ctl in ("row_shr:1 row_mask:0xf bank_mask:0xf bound_ctrl:0", "row_shr:2 row_mask:0xf bank_mask:0xf bound_ctrl:0",
                    "row_shr:4 row_mask:0xf bank_mask:0xf bound_ctrl:0", "row_shr:8 row_mask:0xf bank_mask:0xf bound_ctrl:0",
                    "row_bcast:15 row_mask:0xa bank_mask:0xf", "row_bcast:31 row_mask:0xc bank_mask:0xf"):
            for i in range(7):
                g(f"v_add_f32_dpp v{A+i}, v{A+i}, v{A+i} {ctl}")
        T = 190
        g(f"v_mov_b32 v{T+8}, 0x3acccccd")
        for r in range(2):
            sx, sq, sw = A + 3*r, A + 3*r + 1, A + 3*r + 2
            m, t1, t2 = T + 3*r, T + 3*r + 1, T + 3*r + 2
            g(f"""
            v_mul_f32 v{m}, v{sx}, v{T+8}
            v_mul_f32 v{t1}, v{sq}, v{T+8}
            v_fma_f32 v{t1}, -v{m}, v{m}, v{t1}
            v_max_f32 v{t1}, 0, v{t1}
            """)
            g.rnd_bf16(t1, t1)
            g(f"v_add_f32 v{t1}, 0x3727c5ac, v{t1}")
            g.rnd_bf16(t1, t1)
            g(f"v_sqrt_f32 v{t1}, v{t1}")
            g.rnd_bf16(t1, t1)
            g.rnd_bf16(m, m)
            g(f"""
            v_rcp_f32 v{t1}, v{t1}
            v_fma_f32 v{t2}, -v{m}, v{A+6}, v{sw}
            v_mul_f32 v{t2}, v{t2}, v{t1}
            """)
        g(f"""
        v_mov_b32 v{T+7}, s{S_P0ROW}
        v_add_u32 v{T+9}, 1, v{T+7}
        v_cmp_gt_f32 vcc, v{T+5}, v{T+2}
        v_cndmask_b32 v{T+6}, v{T+2}, v{T+5}, vcc
        v_cndmask_b32 v{T+7}, v{T+7}, v{T+9}, vcc
        s_lshl_b32 s{S_T0}, s{S_WAVE}, 3
        s_add_u32 s{S_T0}, s{S_T0}, {L_P0}
        v_mov_b32 v9, s{S_T0}
        s_mov_b32 exec_lo, 0
        s_brev_b32 exec_hi, 1
        ds_write_b64 v9, {v(T+6,2)}
        s_mov_b64 exec, -1
        """)

    def phi_frags(self):
        g = self
        g(f"""
        v_lshrrev_b32 v9, 3, v2
        v_and_b32 v11, 3, v2
        v_lshl_add_u32 v9, v9, 2, v11
        v_min_u32 v9, 9, v9
        v_bfe_u32 v11, v2, 2, 1
        v_mad_u32_u24 v9, v11, 10, v9
        v_lshlrev_b32 v9, 1, v9
        s_mul_i32 s{S_T0}, s{S_WAVE}, 1664
        s_add_u32 s{S_T0}, s{S_T0}, {L_WPHI}
        v_add_u32 v9, s{S_T0}, v9
        v_mul_u32_u24 v11, 160, v3
        v_add_u32 v11, v11, v9
        """)
        def rd(reg, base, ds):
            for i, d in enumerate(ds):
                g(f"ds_read_u16 v{T0 + i}, v{base} offset:{d}")
            g("s_waitcnt lgkmcnt(0)")
            for i in range(0, len(ds), 2):
                g(f"v_lshl_or_b32 v{reg + i//2}, v{T0+i+1}, 16, v{T0+i}")
        T0 = 200
        rd(140, 11, [40*i for i in range(4)] + [40*(8+i) for i in range(4)] + [40*(16+i) for i in range(4)])
        rd(146, 9, [800 + 40*i for i in range(4)])
        rd(148, 11, [800 + 40*(4+i) for i in range(4)] + [800 + 40*(12+i) for i in range(4)])
        g(f"""
        s_mov_b32 s{S_MA}, 0
        s_mov_b32 s{S_MA+1}, -1
        s_waitcnt lgkmcnt(0)
        v_cndmask_b32 v144, v144, 0, {s2(S_MA)}
        v_cndmask_b32 v145, v145, 0, {s2(S_MA)}
        v_cndmask_b32 v146, 0, v146, {s2(S_MA)}
        v_cndmask_b32 v147, 0, v147, {s2(S_MA)}
        """)

    def p1_reads(self, n):
        c, ks = divmod(n, 4); s = c % 5; b = n % 3
        base = 128 + ks if s < 3 else 132 + ks
        imm = s * SLOT if s < 3 else (s - 3) * SLOT
        out = [f"ds_read_b128 {ac(4*n,4)}, v{base} offset:{imm}"]
        wb = 136 + s // 2
        imm0 = (s % 2) * SLOT + 16 * ks * 192
        for t in range(3):
            for rd in range(2):
                out.append(f"ds_read_b64_tr_b16 {v(92 + 12*b + 4*t + 2*rd, 2)}, v{wb} offset:{imm0 + 4*rd*192 + 64*t}")
        for rd in range(2):
            out.append(f"ds_read_b64_tr_b16 {v(160 + 4*b + 2*rd, 2)}, v{72 + s // 2} offset:{imm0 + 4*rd*192}")
        return out

    def p1_refill(self, i):
        s = i % 5
        nt = self.nt
        grp = []
        grp.append([f"s_add_u32 m0, s{S_LX}, {s*SLOT}", "s_nop 0" if False else f"s_add_u32 s{S_T1}, s{S_LW}, {s*SLOT}",
                    f"buffer_load_dwordx4 v4, {srd(SRD_X)}, s{S_CX} offen{nt} lds"])
        grp.append([f"buffer_load_dwordx4 v5, {srd(SRD_X)}, s{S_CX} offen offset:1024{nt} lds"])
        grp.append([f"buffer_load_dwordx4 v157, {srd(SRD_X)}, s{S_CX} offen offset:2048{nt} lds"])
        grp.append([f"buffer_load_dwordx4 v158, {srd(SRD_X)}, s{S_CX} offen offset:3072{nt} lds",
                    f"s_add_u32 s{S_CX}, s{S_CX}, 128"])
        grp.append([f"s_mov_b32 m0, s{S_T1}", f"s_mov_b64 exec, {s2(S_WM)}",
                    f"buffer_load_dwordx4 v6, {srd(SRD_W)}, s{S_CW} offen{nt} lds", "s_mov_b64 exec, -1"])
        grp.append([f"s_mov_b64 exec, {s2(S_WM+2)}",
                    f"buffer_load_dwordx4 v7, {srd(SRD_W)}, s{S_CW} offen offset:1024{nt} lds", "s_mov_b64 exec, -1"])
        grp.append([f"s_mov_b64 exec, {s2(S_WM+4)}",
                    f"buffer_load_dwordx4 v8, {srd(SRD_W)}, s{S_CW} offen offset:2048{nt} lds", "s_mov_b64 exec, -1",
                    f"s_add_u32 s{S_CW}, s{S_CW}, {64*3840}", f"s_cmp_eq_u32 s{S_CX}, s{S_CC}",
                    f"s_cselect_b32 s{S_CX}, s{S_XB}, s{S_CX}", f"s_cselect_b32 s{S_CW}, s{S_WB}, s{S_CW}"])
        if "qx" in self.exp:
            last = grp.pop()
            extra = [[f"s_mov_b32 m0, {L_XS}", "s_nop 0", f"buffer_load_dwordx4 v152, {srd(SRD_W)}, s{S_CW} offen{nt} lds"],
                     [f"s_mov_b32 m0, {L_XS + 1024}", "s_mov_b32 exec_lo, 0xffff", "s_mov_b32 exec_hi, 0",
                      f"buffer_load_dwordx4 v153, {srd(SRD_W)}, s{S_CW} offen{nt} lds", "s_mov_b64 exec, -1", f"s_mov_b32 m0, s{S_T1}"]]
            grp += extra + [last]
        return grp

    def wq_groups(self):
        grp = []
        for m in range(13):
            q, pt = divmod(m, 5)
            gl = [f"s_add_u32 m0, s{S_WQL}, {m*1024}", f"s_add_u32 s{S_T2}, s{S_WQG}, {q*64*3840}"]
            if m == 12:
                gl += ["s_mov_b32 exec_hi, 0", f"buffer_load_dwordx4 v{152+pt}, {srd(SRD_W)}, s{S_T2} offen lds", "s_mov_b64 exec, -1"]
            else:
                gl += [f"buffer_load_dwordx4 v{152+pt}, {srd(SRD_W)}, s{S_T2} offen lds"]
            grp.append(gl)
        return grp

    def wq_setup(self):
        g = self
        for pt in range(5):
            g(f"""
            v_add_u32 v9, {64*pt}, v1
            v_mul_u32_u24 v11, 52429, v9
            v_lshrrev_b32 v11, 18, v11
            v_mul_u32_u24 v12, 5, v11
            v_sub_u32 v12, v9, v12
            v_and_b32 v13, 3, v11
            v_bfe_u32 v14, v11, 2, 2
            v_and_b32 v11, 0xfffffff0, v11
            v_lshl_add_u32 v11, v13, 2, v11
            v_add_u32 v11, v11, v14
            v_mul_u32_u24 v11, 3840, v11
            v_lshl_add_u32 v{152+pt}, v12, 4, v11
            """)
        g(f"""
        s_mul_i32 s{S_WQL}, s{S_WAVE}, 12800
        s_add_u32 s{S_WQL}, s{S_WQL}, {L_WQ}
        s_mul_i32 s{S_WQG}, s{S_WAVE}, {160*3840}
        s_mul_i32 s{S_T0}, s{S_HP}, 80
        s_add_u32 s{S_WQG}, s{S_WQG}, s{S_T0}
        """)

    def pass1(self):
        g = self
        self.dbg_span(2, True); self.dbg_span(7, False); self.mark("filled"); self.skew_record()
        g.vmwait("c0")
        g("s_waitcnt lgkmcnt(0)\ns_barrier")
        self.stamp("c0")
        for x in self.p1_reads(0): g(x)
        g("s_waitcnt lgkmcnt(6)")
        for x in self.p1_reads(1): g(x)
        g(f"""
        s_cmp_lg_u32 s{S_WAVE}, 0
        s_cbranch_scc1 L_nopub
        v_mov_b32 v9, {L_P0}           ; HZ_SKIP_BEGIN
        ds_read_b128 v[172:175], v9
        ds_read_b128 v[176:179], v9 offset:16
        s_lshl_b32 s{S_T0}, s2, 3
        s_add_u32 s{S_T0}, s{S_T0}, {WS_RMAX}
        v_mov_b32 v11, s{S_T0}
        s_waitcnt lgkmcnt(0)
        v_cmp_gt_f32 vcc, v174, v172
        v_cndmask_b32 v172, v172, v174, vcc
        v_cndmask_b32 v173, v173, v175, vcc
        v_cmp_gt_f32 vcc, v176, v172
        v_cndmask_b32 v172, v172, v176, vcc
        v_cndmask_b32 v173, v173, v177, vcc
        v_cmp_gt_f32 vcc, v178, v172
        v_cndmask_b32 v172, v172, v178, vcc
        v_cndmask_b32 v173, v173, v179, vcc
        s_mov_b64 exec, 1
        buffer_store_dwordx2 v[172:173], v11, {srd(SRD_WS)}, 0 offen sc1
        s_mov_b64 exec, -1             ; HZ_SKIP_END
L_nopub:
        """)
        pend = []
        for n in range(40):
            c, ks = divmod(n, 4); b = n % 3
            if ks == 0:
                nxt = c + self.dist if c + self.dist <= 9 else None
                if "hyb" in self.exp: nxt = {0: 3, 1: 4, 2: 5, 3: 6, 4: 7, 5: None, 6: 8, 7: 9}.get(c)
                if nxt is not None:
                    rf = self.p1_refill(nxt)
                    pend += rf; self.vmq = getattr(self, "vmq", []) + [f"c{nxt}"] * len(rf)
                if c == 3:
                    pend.append(self.touch_wq()); self.vmq.append("tq")
                if c == 7:
                    pend += self.touch_moe(); self.vmq += ["tm"] * 3
                if c == 6:
                    pend.append([f"v_mov_b32 v75, 240", f"buffer_load_dword v75, v75, {srd(SRD_DBG)}, 0 offen sc1"]); self.vmq.append("rdy")
            if ks == 2 and c < 9:
                g(f"s_waitcnt lgkmcnt(6)")
                g.vmwait(f"c{c+1}")
                g("s_barrier")
                self.stamp(f"B{c}")
                if c == 0:
                    g(f"""
                    s_cmp_lg_u32 s2, 0
                    s_cbranch_scc1 L_noready
                    s_cmp_lg_u32 s{S_WAVE}, 1
                    s_cbranch_scc1 L_noready
                    s_memrealtime s[64:65]         ; HZ_SKIP_BEGIN
                    v_mov_b32 v11, 240
                    s_waitcnt lgkmcnt(0)
                    s_mul_i32 s64, s64, 0x9e3779b1
                    s_or_b32 s64, s64, 1
                    v_mov_b32 v12, s64
                    s_mov_b64 exec, 1
                    buffer_store_dword v12, v11, {srd(SRD_DBG)}, 0 offen sc1
                    s_mov_b64 exec, -1             ; HZ_SKIP_END
L_noready:
                    """)
                if c == 7 and "wqtail" in self.exp:
                    wq = self.wq_groups(); pend += wq; self.vmq += ["wq"] * len(wq)
                if c == self.dist - 1:
                    g(f"""
                    s_cmp_lg_u32 s{S_WAVE}, 0
                    s_cbranch_scc1 L_noatom
                    s_and_b32 s{S_T0}, s2, 3       ; HZ_SKIP_BEGIN
                    s_lshl_b32 s{S_T0}, s{S_T0}, 6
                    v_mov_b32 v11, s{S_T0}
                    v_mov_b32 v12, 1
                    s_mov_b64 exec, 1
                    buffer_atomic_add v12, v11, {srd(SRD_DBG)}, 0 offen sc1
                    s_mov_b64 exec, -1             ; HZ_SKIP_END
L_noatom:
                    """)
            elif n == 39: g("s_waitcnt lgkmcnt(0)")
            else: g("s_waitcnt lgkmcnt(6)")
            rd = self.p1_reads(n + 2) if n + 2 < 40 else []
            if "nords" in self.exp: rd = []
            XP = ac(4*n, 4)
            WF = lambda t: 92 + 12*b + 4*t
            first = (n == 0)
            def dma():
                if pend:
                    grp = pend.pop(0); tag = self.vmq.pop(0)
                    if "nodma" not in self.exp:
                        for x in grp: g(x)
                    if tag: g.vmi(tag)
            cin = lambda r, k: "0" if first else v(r, k)
            def small(m):
                bm = m % 3; z = (m == 0)
                g(f"v_mfma_f32_4x4x4_16b_bf16 v[64:67], {ac(4*m,2)}, {ac(4*m,2)}, {'0' if z else 'v[64:67]'}")
                g(f"v_mfma_f32_4x4x4_16b_bf16 v[68:71], {ac(4*m+2,2)}, {ac(4*m+2,2)}, {'0' if z else 'v[68:71]'}")
                g(f"v_mfma_f32_4x4x4_16b_bf16 v[76:79], {v(160+4*bm,2)}, v[84:85], {'0' if z else 'v[76:79]'}")
                g(f"v_mfma_f32_4x4x4_16b_bf16 v[80:83], {v(160+4*bm+2,2)}, v[84:85], {'0' if z else 'v[80:83]'}")
            batch = "nobatch" not in self.exp
            if batch and n % 2 == 1:
                small(n - 1); small(n)
            g(f"v_mfma_f32_32x32x16_bf16 v[16:31], {v(WF(0),4)}, {XP}, {cin(16,16)}")
            for x in rd[0:3]: g(x)
            dma()
            g(f"v_mfma_f32_32x32x16_bf16 v[32:47], {v(WF(1),4)}, {XP}, {cin(32,16)}")
            for x in rd[3:6]: g(x)
            g(f"v_mfma_f32_32x32x16_bf16 v[48:63], {v(WF(2),4)}, {XP}, {cin(48,16)}")
            for x in rd[6:9]: g(x)
            dma()
            if not batch: small(n)
            if c in (3, 6, 7) or "qx" in self.exp or ("wqtail" in self.exp and c >= 7): dma()
        while pend:
            grp = pend.pop(0); tag = self.vmq.pop(0)
            for x in grp: g(x)
            if tag: g.vmi(tag)
        self.stamp("p1end")

    def touch_moe(self):
        return [
            [f"v_mul_u32_u24 v9, 13108, v1", "v_lshrrev_b32 v9, 16, v9", "v_mul_u32_u24 v10, 5, v9", "v_sub_u32 v10, v1, v10",
             "v_mul_u32_u24 v11, 3456, v9", "v_lshl_add_u32 v11, v10, 7, v11",
             f"s_mul_i32 s{S_T0}, s{S_XCD}, 448", f"s_and_b32 s{S_T0}, s{S_T0}, 0xffffff80",
             f"s_lshl_b32 s{S_T2}, s{S_SLOT}, 2", f"s_add_u32 s{S_T2}, s{S_T2}, s{S_WAVE}", f"s_mul_i32 s{S_T2}, s{S_T2}, {5*3456}",
             f"s_add_u32 s{S_T0}, s{S_T0}, s{S_T2}", "s_mov_b32 exec_lo, 0x1ffffff", "s_mov_b32 exec_hi, 0",
             f"buffer_load_dword v159, v11, {srd(SRD_G)}, s{S_T0} offen", "s_mov_b64 exec, -1"],
            ["s_mov_b32 exec_lo, 0x1ffffff", "s_mov_b32 exec_hi, 0",
             f"buffer_load_dword v159, v11, {srd(SRD_U)}, s{S_T0} offen", "s_mov_b64 exec, -1"],
            ["v_mul_u32_u24 v9, 6554, v1", "v_lshrrev_b32 v9, 16, v9", "v_mul_u32_u24 v10, 10, v9", "v_sub_u32 v10, v1, v10",
             "v_mul_u32_u24 v12, 1280, v9", "v_lshl_add_u32 v12, v10, 7, v12",
             f"s_mul_i32 s{S_T0}, s{S_XCD}, {224*1280}", f"s_mul_i32 s{S_T2}, s{S_SLOT}, 7", f"s_lshl_b32 s{S_T3}, s{S_WAVE}, 1",
             f"s_add_u32 s{S_T2}, s{S_T2}, s{S_T3}", f"s_mul_i32 s{S_T2}, s{S_T2}, 1280", f"s_add_u32 s{S_T0}, s{S_T0}, s{S_T2}",
             "s_mov_b32 exec_lo, 0xfffff", "s_mov_b32 exec_hi, 0",
             f"buffer_load_dword v159, v12, {srd(SRD_D)}, s{S_T0} offen", "s_mov_b64 exec, -1"]]

    def touch_wq(self):
        return ["v_mul_u32_u24 v9, 21846, v1", "v_lshrrev_b32 v9, 16, v9", "v_mul_u32_u24 v10, 3, v9", "v_sub_u32 v10, v1, v10",
                f"s_lshl_b32 s{S_T0}, s{S_SLOT}, 2", f"s_add_u32 s{S_T0}, s{S_T0}, s{S_WAVE}", f"s_mul_i32 s{S_T0}, s{S_T0}, 5",
                f"v_add_u32 v9, s{S_T0}, v9", "v_mul_u32_u24 v9, 3840, v9", "v_lshl_add_u32 v9, v10, 7, v9",
                f"s_lshr_b32 s{S_T0}, s{S_XCD}, 1", f"s_mul_i32 s{S_T0}, s{S_T0}, 320", f"s_and_b32 s{S_T0}, s{S_T0}, 0xffffff80",
                "s_mov_b32 exec_lo, 0x7fff", "s_mov_b32 exec_hi, 0",
                f"buffer_load_dword v159, v9, {srd(SRD_W)}, s{S_T0} offen", "s_mov_b64 exec, -1"]

    def stats_and_colsum(self, first):
        g = self
        csoff = 0 if first else 128 * 4
        for i in range(4): g(f"v_add_f32 v{76+i}, v{76+i}, v{80+i}")
        for i in range(4): g(f"v_mov_b32 v{80+i}, v{76+i}")
        for i in range(4): g(f"v_permlane32_swap_b32 v{76+i}, v{80+i}")
        for i in range(4): g(f"v_add_f32 v{76+i}, v{76+i}, v{80+i}")
        g(f"""
        s_lshl_b32 s{S_T0}, s{S_WAVE}, 7
        s_add_u32 s{S_T0}, s{S_T0}, {L_CS + csoff}
        v_lshl_add_u32 v9, v1, 2, s{S_T0}
        s_mov_b32 exec_lo, 0x11111111
        s_mov_b32 exec_hi, 0
        ds_write_b128 v9, v[76:79]
        s_mov_b64 exec, -1
        """)
        if first:
            for i in range(4): g(f"v_add_f32 v{64+i}, v{64+i}, v{68+i}")
            for i in range(1, 4):
                m = 0x11111111 << i
                g(f"s_mov_b32 s{S_MB}, {hex(m)}\ns_mov_b32 s{S_MB+1}, {hex(m)}\nv_cndmask_b32 v64, v64, v{64+i}, {s2(S_MB)}")
            g(f"""
            v_mov_b32 v65, v64
            v_mov_b32 v90, 0x3acccccd
            s_nop 0
            v_permlane32_swap_b32 v64, v65
            v_add_f32 v64, v64, v65
            v_mul_f32 v66, v56, v90
            v_mul_f32 v64, v64, v90
            v_fma_f32 v64, -v66, v66, v64
            v_max_f32 v64, 0, v64
            """)
            g.rnd_bf16(64, 64)
            g("v_add_f32 v64, 0x3727c5ac, v64")
            g.rnd_bf16(64, 64)
            g("v_sqrt_f32 v64, v64")
            g.rnd_bf16(90, 64)
            g.rnd_bf16(91, 66)
            g("v_rcp_f32 v88, v90\nv_sub_f32 v86, 0, v91")
        g("s_waitcnt lgkmcnt(0)\ns_barrier")
        self.stamp("csbar" if first else "csbar2")

    def normalise(self, quads, csoff):
        g = self
        g(f"v_lshlrev_b32 v9, 4, v3\nv_add_u32 v9, {L_CS + csoff}, v9")
        for i, (r, col) in enumerate(quads):
            g(f"ds_read_b128 {v(160+4*i,4)}, v9 offset:{col*4}")
        for i, (r, col) in enumerate(quads):
            g(f"s_waitcnt lgkmcnt({len(quads)-1-i})")
            for hh in range(2):
                g(f"v_pk_fma_f32 {v(r+2*hh,2)}, {v(160+4*i+2*hh,2)}, v[86:87], {v(r+2*hh,2)} op_sel_hi:[1,0,1]")
            for hh in range(2):
                g(f"v_pk_mul_f32 {v(r+2*hh,2)}, {v(r+2*hh,2)}, v[88:89] op_sel_hi:[1,0]")

    def softmax(self, H0, H1):
        g = self
        P = (92, 108)
        L = 0x3fb8aa3b
        if "fold" in self.exp: g(f"v_mul_f32 v124, {hex(L)}, v88\nv_mul_f32 v126, {hex(L | 0x80000000)}, v88")
        else: g(f"v_mov_b32 v124, {hex(L)}\nv_mov_b32 v126, {hex(L | 0x80000000)}")
        for H in (H0, H1): g(f"v_mov_b32 v{H+10}, 0\nv_mov_b32 v{H+11}, 0")
        E = (160, 180)
        MX = (200, 204)
        for a in range(2):
            p, mx = P[a], MX[a]
            g(f"""
            v_max3_f32 v{mx}, v{p}, v{p+1}, v{p+2}
            v_min3_f32 v{mx+1}, v{p}, v{p+1}, v{p+2}
            v_max3_f32 v{mx}, v{mx}, v{p+3}, v{p+4}
            v_min3_f32 v{mx+1}, v{mx+1}, v{p+3}, v{p+4}
            v_max3_f32 v{mx}, v{mx}, v{p+5}, v{p+6}
            v_min3_f32 v{mx+1}, v{mx+1}, v{p+5}, v{p+6}
            v_max3_f32 v{mx}, v{mx}, v{p+7}, v{p+8}
            v_min3_f32 v{mx+1}, v{mx+1}, v{p+7}, v{p+8}
            v_max_f32 v{mx}, v{mx}, v{p+9}
            v_min_f32 v{mx+1}, v{mx+1}, v{p+9}
            v_sub_f32 v{mx+1}, 0, v{mx+1}
            """)
        for a in range(2): g(f"v_permlane32_swap_b32 v{MX[a]}, v{MX[a]+1}")
        for a in range(2): g(f"v_max_f32 v{MX[a]}, v{MX[a]}, v{MX[a]+1}")
        for a in range(2): g(f"v_mov_b32 v{MX[a]+1}, v{MX[a]}")
        for a in range(2): g(f"v_permlane32_swap_b32 v{MX[a]}, v{MX[a]+1}")
        for a in range(2):
            mx = MX[a]
            g(f"v_mul_f32 v{mx+2}, v{mx+1}, v126\nv_mul_f32 v{mx}, v{mx}, v126")
        for a in range(2):
            p, mx, e = P[a], MX[a], E[a]
            for i in range(5):
                g(f"v_pk_fma_f32 {v(e+2*i,2)}, {v(p+2*i,2)}, v[124:125], {v(mx,2)} op_sel_hi:[1,0,0]")
                g(f"v_pk_fma_f32 {v(e+10+2*i,2)}, {v(p+2*i,2)}, v[126:127], {v(mx+2,2)} op_sel_hi:[1,0,0]")
        self.stamp("sm_pre" + str(H0) + getattr(self, "smtag", ""))
        for a in range(2):
            for i in range(20): g(f"v_exp_f32 v{E[a]+i}, v{E[a]+i}")
        self.stamp("sm_exp" + getattr(self, "smtag", ""))
        SM = (208, 214)
        for a in range(2):
            e, sm = E[a], SM[a]
            g(f"v_pk_add_f32 {v(sm,2)}, {v(e,2)}, {v(e+2,2)}\nv_pk_add_f32 {v(sm+2,2)}, {v(e+10,2)}, {v(e+12,2)}")
        for i in range(2, 5):
            for a in range(2):
                e, sm = E[a], SM[a]
                g(f"v_pk_add_f32 {v(sm,2)}, {v(sm,2)}, {v(e+2*i,2)}\nv_pk_add_f32 {v(sm+2,2)}, {v(sm+2,2)}, {v(e+10+2*i,2)}")
        for a in range(2):
            sm = SM[a]
            g(f"v_add_f32 v{sm}, v{sm}, v{sm+1}\nv_add_f32 v{sm+1}, v{sm+2}, v{sm+3}")
        for a in range(2): g(f"v_permlane32_swap_b32 v{SM[a]}, v{SM[a]+1}")
        for a in range(2): g(f"v_add_f32 v{SM[a]}, v{SM[a]}, v{SM[a]+1}")
        for a in range(2): g(f"v_mov_b32 v{SM[a]+2}, v{SM[a]}")
        for a in range(2): g(f"v_permlane32_swap_b32 v{SM[a]}, v{SM[a]+2}")
        for a in range(2): g(f"v_rcp_f32 v{SM[a]}, v{SM[a]}\nv_rcp_f32 v{SM[a]+2}, v{SM[a]+2}")
        for a, H in ((0, H0), (1, H1)):
            e, sm = E[a], SM[a]
            for i in range(5):
                g(f"v_pk_mul_f32 {v(e+2*i,2)}, {v(e+2*i,2)}, {v(sm,2)} op_sel_hi:[1,0]")
                g(f"v_pk_mul_f32 {v(e+10+2*i,2)}, {v(e+10+2*i,2)}, {v(sm+2,2)} op_sel_hi:[1,0]")
            for i in range(10):
                g(f"v_cvt_pk_bf16_f32 v{H+i}, v{e+2*i}, v{e+2*i+1}")

    def norm_reads(self, quads, csoff, r0):
        g = self
        for i, (r, col) in enumerate(quads):
            g(f"ds_read_b128 {v(r0+4*i,4)}, v9 offset:{col*4}")

    def norm_apply(self, quads, r0, after, scale=True):
        g = self
        for i, (r, col) in enumerate(quads):
            g(f"s_waitcnt lgkmcnt({len(quads)-1-i+after})")
            for hh in range(2):
                g(f"v_pk_fma_f32 {v(r+2*hh,2)}, {v(r0+4*i+2*hh,2)}, v[86:87], {v(r+2*hh,2)} op_sel_hi:[1,0,1]")
            for hh in range(2 if scale else 0):
                g(f"v_pk_mul_f32 {v(r+2*hh,2)}, {v(r+2*hh,2)}, v[88:89] op_sel_hi:[1,0]")

    def featmap_mfma(self, PK):
        g = self
        g(f"v_mfma_f32_32x32x16_bf16 v[92:107], v[140:143], {v(PK,4)}, 0")
        g(f"v_mfma_f32_32x32x16_bf16 v[108:123], v[146:149], {v(PK+4,4)}, 0")
        g(f"v_mfma_f32_32x32x8_bf16 v[92:107], v[144:145], {v(PK+4,2)}, v[92:107]")
        g(f"v_mfma_f32_32x32x8_bf16 v[108:123], v[150:151], {v(PK+8,2)}, v[108:123]")

    def k_epilogue(self):
        g = self
        self.stats_and_colsum(True)
        PK, PV = 244, 210
        kq = [(16+4*j, 8*j) for j in range(4)] + [(32, 32)]
        vq = [(36, 40), (40, 48), (44, 56), (48, 64), (52, 72)]
        def part1():
            g(f"v_lshlrev_b32 v9, 4, v3\nv_add_u32 v9, {L_CS}, v9")
            self.norm_reads(kq, 0, 160); self.norm_reads(vq, 0, 180)
            self.norm_apply(kq, 160, 5, scale="fold" not in self.exp)
            for i in range(10): g(f"v_cvt_pk_bf16_f32 v{PK+i}, v{16+2*i}, v{16+2*i+1}")
            self.stamp("k_cvt")
            self.featmap_mfma(PK)
            self.norm_apply(vq, 180, 0)
            self.stamp("v_norm")
            self.dump("kv_norm", list(range(16, 64)) + [86, 88, 90, 91])
            g(f"""
            v_accvgpr_read_b32 v11, a192
            v_mov_b32 v14, 0x3f80
            v_mov_b32 v15, 0
            v_lshl_add_u32 v12, v3, 4, v11
            v_lshl_add_u32 v13, v3, 3, v11
            ds_write_b64 v12, v[14:15] offset:{34*8}
            """)
            for i, (r, col) in enumerate(vq):
                g(f"v_cvt_pk_bf16_f32 v{PV+2*i}, v{r}, v{r+1}\nv_cvt_pk_bf16_f32 v{PV+2*i+1}, v{r+2}, v{r+3}")
                g(f"ds_write_b64 v11, {v(PV+2*i,2)} offset:{192 + 16*i}")
            self.stamp("prefm")
            self.softmax(220, 232)
            self.stamp("postfm")
        if "wqtail" in self.exp: part1()
        else: self.interleave([(x, "wq") for x in self.wq_groups()], self.capture(part1))
        self.dump("phik", list(range(220, 244)))
        for a, H in ((0, 220), (1, 232)):
            for st in range(3):
                g(f"ds_write_b128 v13, {v(H+4*st,4)} offset:{a*96 + st*32}")
        g("v_accvgpr_read_b32 v160, a193\nv_accvgpr_read_b32 v161, a194\nv_accvgpr_read_b32 v9, a195")
        g(f"v_cmp_gt_u32 vcc, 21, v2\ns_and_b32 s{S_T1}, s{S_WAVE}, 1\ns_mov_b64 {s2(S_MA)}, vcc")
        g.vmwait("wq")
        g("s_waitcnt lgkmcnt(0)\ns_barrier")
        self.stamp("Tbar")
        A0, B0 = 164, 196
        for ks in range(8):
            for rd in range(2):
                g(f"ds_read_b64_tr_b16 {v(A0+4*ks+2*rd,2)}, v160 offset:{(16*ks+rd)*336}")
                g(f"ds_read_b64_tr_b16 {v(B0+4*ks+2*rd,2)}, v161 offset:{(16*ks+rd)*336}")
            if ks >= 2:
                k = ks - 2
                g("s_waitcnt lgkmcnt(8)")
                cin = "0" if k == 0 else "v[92:107]"
                g(f"v_mfma_f32_32x32x16_bf16 v[92:107], {v(A0+4*k,4)}, {v(B0+4*k,4)}, {cin}")
        g("s_waitcnt lgkmcnt(4)")
        g(f"v_mfma_f32_32x32x16_bf16 v[92:107], {v(A0+24,4)}, {v(B0+24,4)}, v[92:107]")
        g("s_waitcnt lgkmcnt(0)")
        g(f"v_mfma_f32_32x32x16_bf16 v[92:107], {v(A0+28,4)}, {v(B0+28,4)}, v[92:107]")
        g(f"""
        s_cmp_lg_u32 s{S_T1}, 0
        s_cbranch_scc1 L_kvft1
        s_mov_b64 exec, {s2(S_MA)}     ; HZ_SKIP_BEGIN
        buffer_store_dwordx4 v[92:95], v9, {srd(SRD_WS)}, s{S_KVS} offen sc1
        buffer_store_dwordx4 v[96:99], v9, {srd(SRD_WS)}, s{S_KVS} offen offset:672 sc1
        buffer_store_dwordx4 v[100:103], v9, {srd(SRD_WS)}, s{S_KVS} offen offset:1344 sc1
        buffer_store_dwordx4 v[104:107], v9, {srd(SRD_WS)}, s{S_KVS} offen offset:2016 sc1
        s_branch L_kvdone              ; HZ_SKIP_END
L_kvft1:
        s_and_b32 s{S_MA}, s{S_MA}, 0x1fffff      ; HZ_SKIP_BEGIN
        s_mov_b32 s{S_MA+1}, 0
        s_mov_b64 exec, {s2(S_MA)}
        buffer_store_dwordx4 v[92:95], v9, {srd(SRD_WS)}, s{S_KVS} offen offset:2688 sc1
        buffer_store_dwordx4 v[96:99], v9, {srd(SRD_WS)}, s{S_KVS} offen offset:3024 sc1   ; HZ_SKIP_END
L_kvdone:
        s_mov_b64 exec, -1
        """)
        self.stamp("kvstore")

    def mark(self, name):
        for e in self.exp:
            if e.startswith("probe:"):
                _, a, b, k = e.split(":")
                ins = "s_memtime" if k.startswith("c") else "s_memrealtime"
                if name == a: self(f"{ins} s[86:87]")
                if name == b: self(f"{ins} s[88:89]")

    def skew_record(self):
        if "skew" not in self.exp: return
        self(f"""
        s_add_u32 s100, s2, 8
        s_and_b32 s100, s100, 0xf0
        s_cmp_lg_u32 s100, 0
        s_cbranch_scc1 L_noskew
        s_cmp_lg_u32 s{S_WAVE}, 0
        s_cbranch_scc1 L_noskew
        s_not_b32 s100, s98
        v_mov_b32 v9, 8
        v_mov_b32 v10, s100
        v_mov_b32 v11, 12
        v_mov_b32 v12, s98
        s_mov_b64 exec, 1
        buffer_atomic_umax v10, v9, {srd(SRD_DBG)}, 0 offen sc1
        buffer_atomic_umax v12, v11, {srd(SRD_DBG)}, 0 offen sc1
        s_mov_b64 exec, -1
L_noskew:
        """)

    def skew_spin(self):
        if "skew" not in self.exp: return
        self(f"""
        v_mov_b32 v9, 8
        buffer_load_dwordx2 v[10:11], v9, {srd(SRD_DBG)}, 0 offen sc1
        s_waitcnt vmcnt(0)
        v_readfirstlane_b32 s92, v10
        v_readfirstlane_b32 s93, v11
        s_not_b32 s92, s92
        s_sub_u32 s92, s93, s92
        s_mul_i32 s92, s92, 4
        s_memrealtime s[90:91]
        s_waitcnt lgkmcnt(0)
        s_add_u32 s92, s92, s90
L_skewspin:
        s_memrealtime s[90:91]
        s_waitcnt lgkmcnt(0)
        s_sub_u32 s93, s92, s90
        s_cmp_gt_i32 s93, 0
        s_cbranch_scc1 L_skewspin
        """)

    def probe_spin(self):
        for e in self.exp:
            if e.startswith("probe:"):
                _, a, b, k = e.split(":")
                self(f"""
                s_memrealtime s[90:91]
                s_waitcnt lgkmcnt(0)
                s_sub_u32 s92, s88, s86
                {f"s_lshr_b32 s92, s92, {k[1:]}" if k.startswith("c") else f"s_mul_i32 s92, s92, {k}"}
                s_add_u32 s92, s92, s90
L_probe:
                s_memrealtime s[90:91]
                s_waitcnt lgkmcnt(0)
                s_sub_u32 s93, s92, s90
                s_cmp_gt_i32 s93, 0
                s_cbranch_scc1 L_probe
                """)

    def dbg_span(self, word, invert):
        if "span" not in self.exp: return
        g = self
        lab = f"L_span{word}"
        g(f"""
        s_and_b32 s100, s2, 15
        s_cmp_lg_u32 s100, 0
        s_cbranch_scc1 {lab}
        s_cmp_lg_u32 s{S_WAVE}, 0
        s_cbranch_scc1 {lab}
        s_memrealtime s[100:101]
        s_waitcnt lgkmcnt(0)
        {"s_not_b32 s100, s98" if invert else "s_nop 0"}
        v_mov_b32 v9, {word*4}
        v_mov_b32 v10, s100
        s_mov_b64 exec, 1
        buffer_atomic_umax v10, v9, {srd(SRD_DBG)}, 0 offen sc1
        s_mov_b64 exec, -1
{lab}:
        """)

    def finish(self):
        g = self
        self.mark("end")
        self.probe_spin()
        self.skew_spin()
        self.dbg_span(3, False)
        if self.stamps:
            g("s_waitcnt lgkmcnt(0)")
            self.flush_stamps()
            g(f"""
            s_lshl_b32 s{S_T0}, s2, 2
            s_add_u32 s{S_T0}, s{S_T0}, s{S_WAVE}
            s_lshl_b32 s{S_T0}, s{S_T0}, 8
            s_add_u32 s{S_T0}, s{S_T0}, {WS_TS}
            v_lshlrev_b32 v9, 2, v1
            buffer_store_dword v255, v9, {srd(SRD_WS)}, s{S_T0} offen
            """)
        g("L_exit:\ns_endpgm\nL_code_end:")

    def pre_k_epilogue(self):
        pass

    def build(self):
        g = self
        self.prologue()
        self.dump("phifrag", list(range(140, 152)))
        self.pass1()
        self.dump("acc1", list(range(16, 84)))
        if self.stop != "pass1":
            self.dbg_span(10, False); self.mark("p1end")
            self.pre_k_epilogue()
            self.k_epilogue()
        if self.stop not in ("pass1", "kv"):
            self.rest()
        self.finish()

    def text(self):
        body, nins = hazard.fix([l.strip() for l in self.a.lines])
        hdr = open("parallel_sum__linear_kernel_hedgehog__moe_arch_mod__prompt.s.ref").read().split("\n")
        top = [l for l in hdr if l.startswith(";") and "@launch" not in l and "Override" not in l and "grid=ceil" not in l]
        out = "\n".join(top) + "\n"
        out += f"; @launch grid=(256,1,1) block=(256,1,1) lds={LDS_SIZE}\n"
        out += '.amdgcn_target "amdgcn-amd-amdhsa--gfx950"\n.text\n' + kernel_header(NAME)
        out += "\n".join("    " + l if not l.endswith(":") else l for l in body if l) + "\n"
        out += f""".section .rodata,"a"
.p2align 6
.amdhsa_kernel {NAME}
  .amdhsa_next_free_vgpr 512
  .amdhsa_next_free_sgpr 102
  .amdhsa_accum_offset 256
  .amdhsa_group_segment_fixed_size 0
  .amdhsa_kernarg_size 96
  .amdhsa_user_sgpr_count 2
  .amdhsa_user_sgpr_kernarg_segment_ptr 1
  .amdhsa_system_sgpr_workgroup_id_x 1
  .amdhsa_float_denorm_mode_32 3
.end_amdhsa_kernel
"""
        return out, nins


if __name__ == "__main__":
    import argparse, json
    import gen_rest
    ap = argparse.ArgumentParser()
    ap.add_argument("-o", default="k.s")
    ap.add_argument("--stop", default=None)
    ap.add_argument("--dump", default="")
    ap.add_argument("--stamps", default="")
    ap.add_argument("--notouch", action="store_true")
    ap.add_argument("--exp", default="")
    args = ap.parse_args()
    G = gen_rest.Full(stop=args.stop, dumps=[d for d in args.dump.split(",") if d], stamps=set(args.stamps.split(",")) if args.stamps else False, touch=not args.notouch, exp=[e for e in args.exp.split(",") if e])
    G.build()
    t, nins = G.text()
    open(args.o, "w").write(t)
    json.dump({"dumps": G.dump_index, "stamps": getattr(G, "stamp_names", [])}, open(args.o + ".json", "w"))
    print("wrote", args.o, "lines", t.count("\n"), "nops inserted", nins)
```

```python
from gen import *

S_RB64, S_CB, S_MU, S_RSEL, S_ROW0 = 20, 21, 22, 23, 12
S_QC = 13
S_WOG, S_WOL = 14, 15
S_WOS = 76
S_YA = 79
S_TAG = 82
S_GAT, S_OWW = 81, 67
S_OWN = 80
S_STA = 81
S_XO = 85
S_KVE, S_KVB = 79, 75
S_KVA, S_OS = 78, 84
CNT_KV, CNT_O, CNT_M = 0, 16, 32
SPIN_LIMIT = 200000

class Full(Gen):
    def poll(self, name, srd_n, vaddr_setup, target, nl=1):
        g = self
        lab = f"L_poll_{name}"
        g(vaddr_setup)
        g(f"s_mov_b32 exec_lo, {(1 << nl) - 1}\ns_mov_b32 exec_hi, 0")
        g(f"""
        s_mov_b32 s74, 0
{lab}:
        buffer_load_dword v10, v9, {srd(srd_n)}, 0 offen sc1
        s_add_u32 s74, s74, 1
        s_cmp_gt_u32 s74, {SPIN_LIMIT}
        s_cbranch_scc1 {lab}_out
        s_waitcnt vmcnt(0)
        v_cmp_gt_u32 vcc, {target}, v10
        s_cbranch_vccnz {lab}
{lab}_out:
        s_waitcnt vmcnt(0)
        s_mov_b64 exec, -1
        """)

    def poll_issue(self, srd_n, vaddr_setup, nl=1):
        g = self
        g(vaddr_setup)
        g(f"s_mov_b32 exec_lo, {(1 << nl) - 1}\ns_mov_b32 exec_hi, 0\nbuffer_load_dword v239, v238, {srd(srd_n)}, 0 offen sc1\ns_mov_b64 exec, -1")

    def poll_finish(self, name, srd_n, target, nl=1):
        g = self
        lab = f"L_poll_{name}"
        g(f"""
        s_mov_b32 exec_lo, {(1 << nl) - 1}
        s_mov_b32 exec_hi, 0
        s_mov_b32 s74, 0
        s_waitcnt vmcnt(0)
        v_cmp_gt_u32 vcc, {target}, v239
        s_cbranch_vccz {lab}_out
{lab}:
        {"s_sleep 2" if "psleep" in self.exp else ""}
        buffer_load_dword v239, v238, {srd(srd_n)}, 0 offen sc1
        s_add_u32 s74, s74, 1
        s_cmp_gt_u32 s74, {SPIN_LIMIT}
        s_cbranch_scc1 {lab}_out
        s_waitcnt vmcnt(0)
        v_cmp_gt_u32 vcc, {target}, v239
        s_cbranch_vccnz {lab}
{lab}_out:
        s_waitcnt vmcnt(0)
        s_mov_b64 exec, -1
        """)

    def signal(self, name, cnt_sgpr_expr, drain=True):
        g = self
        if drain: g("s_waitcnt vmcnt(0)")
        g(f"""
        s_barrier
        s_cmp_lg_u32 s{S_WAVE}, 0
        s_cbranch_scc1 L_nosig_{name}
        """)
        g(cnt_sgpr_expr + " ; HZ_SKIP_BEGIN")
        g(f"""
        s_lshl_b32 s{S_T0}, s{S_T0}, 7
        v_mov_b32 v9, s{S_T0}
        v_mov_b32 v10, 1
        s_mov_b64 exec, 1
        buffer_atomic_add v10, v9, {srd(SRD_WS)}, 0 offen sc1
        s_mov_b64 exec, -1         ; HZ_SKIP_END
L_nosig_{name}:
        """)

    def publish_kv(self):
        g = self
        g(f"""
        s_cmp_lg_u32 s{S_HP}, 0
        s_cbranch_scc1 L_nostats
        s_lshl_b32 s{S_T0}, s{S_RB}, 7       ; HZ_SKIP_BEGIN
        s_lshl_b32 s{S_T1}, s{S_WAVE}, 5
        s_add_u32 s{S_T0}, s{S_T0}, s{S_T1}
        s_lshl_b32 s{S_T0}, s{S_T0}, 3
        s_add_u32 s{S_T0}, s{S_T0}, {WS_STATS}
        v_lshlrev_b32 v9, 3, v2
        v_mov_b32 v10, v91
        v_mov_b32 v11, v90
        s_mov_b32 exec_hi, 0
        buffer_store_dwordx2 v[10:11], v9, {srd(SRD_WS)}, s{S_T0} offen sc1
        s_mov_b64 exec, -1                   ; HZ_SKIP_END
L_nostats:
        """)
        g(f"""
        v_mul_u32_u24 v9, 6554, v1
        v_lshrrev_b32 v9, 16, v9
        v_mul_u32_u24 v10, 10, v9
        v_sub_u32 v10, v1, v10
        v_mul_u32_u24 v11, 1280, v9
        v_lshl_add_u32 v11, v10, 7, v11
        s_lshl_b32 s{S_T0}, s{S_SLOT}, 2
        s_add_u32 s{S_T0}, s{S_T0}, s{S_WAVE}
        s_mul_i32 s{S_T0}, s{S_T0}, {5*1280}
        s_mov_b32 exec_hi, 0x3ffff
        buffer_load_dword v159, v11, {srd(SRD_WO)}, s{S_T0} offen
        s_mov_b64 exec, -1
        """)

    def kv_signal(self):
        g = self
        g("s_waitcnt vmcnt(1)")
        g(f"""
        v_readfirstlane_b32 s{S_TAG}, v75
        s_cmp_lg_u32 s{S_TAG}, 0
        s_cbranch_scc1 L_isready
        v_mov_b32 v9, 240              ; HZ_SKIP_BEGIN
        s_mov_b32 s74, 0
L_poll_ready:
        buffer_load_dword v10, v9, {srd(SRD_DBG)}, 0 offen sc1
        s_add_u32 s74, s74, 1
        s_waitcnt vmcnt(0)
        v_readfirstlane_b32 s{S_TAG}, v10
        s_cmp_gt_u32 s74, {SPIN_LIMIT}
        s_cbranch_scc1 L_isready
        s_cmp_eq_u32 s{S_TAG}, 0
        s_cbranch_scc1 L_poll_ready    ; HZ_SKIP_END
L_isready:
        """)
        self.signal("kv", f"s_add_u32 s{S_T0}, s{S_HP}, {CNT_KV}", drain=False)
        self.stamp("kvsig")

    def moe_roles(self):
        g = self
        g(f"""
        s_lshr_b32 s{S_T0}, s{S_XCD}, 1
        s_lshr_b32 s{S_T1}, s{S_SLOT}, 3
        s_add_u32 s{S_T0}, s{S_T0}, s{S_T1}
        s_lshr_b32 s{S_T1}, s{S_SLOT}, 4
        s_lshl_b32 s{S_T1}, s{S_T1}, 3
        s_and_b32 s{S_T2}, s{S_SLOT}, 7
        s_add_u32 s{S_T1}, s{S_T1}, s{S_T2}
        s_mul_i32 s{S_MU}, s{S_XCD}, 14
        s_add_u32 s{S_MU}, s{S_MU}, s{S_T1}
        s_cmp_lt_u32 s{S_T1}, 14
        s_cselect_b32 s{S_MU}, s{S_MU}, 255
        s_bitcmp1_b32 s{S_T0}, 0
        s_cselect_b32 s{S_MU}, 255, s{S_MU}
        s_lshr_b32 s{S_T0}, s{S_SLOT}, 3
        s_lshl_b32 s{S_T1}, s{S_XCD}, 2
        s_add_u32 s{S_RB64}, s{S_T0}, s{S_T1}
        s_and_b32 s{S_CB}, s{S_SLOT}, 7
        s_lshl_b32 s{S_ROW0}, s{S_RB64}, 6
        s_lshl_b32 s{S_T0}, s{S_WAVE}, 4
        s_add_u32 s{S_ROW0}, s{S_ROW0}, s{S_T0}
        s_mul_i32 s{S_T1}, s{S_CB}, 160
        s_mov_b32 s{S_WOG}, s{S_T1}
        s_mul_i32 s{S_T0}, s{S_ROW0}, 1280
        s_add_u32 s{S_XO}, s{S_T0}, s{S_T1}
        s_lshl_b32 s{S_T0}, s{S_RB}, 1
        s_lshr_b32 s{S_T1}, s{S_WAVE}, 1
        s_add_u32 s{S_T0}, s{S_T0}, s{S_T1}
        s_mul_i32 s{S_T0}, s{S_T0}, 81920
        s_and_b32 s{S_T1}, s{S_WAVE}, 1
        s_mul_i32 s{S_T1}, s{S_T1}, 40960
        s_add_u32 s{S_T0}, s{S_T0}, s{S_T1}
        s_lshr_b32 s{S_T1}, s{S_HP}, 2
        s_mul_i32 s{S_T1}, s{S_T1}, 5120
        s_add_u32 s{S_T0}, s{S_T0}, s{S_T1}
        s_and_b32 s{S_T1}, s{S_HP}, 3
        s_lshl_b32 s{S_T1}, s{S_T1}, 8
        s_add_u32 s{S_T0}, s{S_T0}, s{S_T1}
        s_add_u32 s{S_OS}, s{S_T0}, {WS_O}
        """)

    WD = 160
    def moe_load_block(self, k):
        g = self
        lab = f"L_nomoeld{k}"
        g(f"s_cmp_ge_u32 s{S_MU}, 108\ns_cbranch_scc1 {lab}")
        if k == 0:
            g(f"""
            v_lshrrev_b32 v134, 1, v1                ; HZ_SKIP_BEGIN
            v_mul_u32_u24 v134, 3456, v134
            v_and_b32 v10, 1, v1
            v_lshl_add_u32 v134, v10, 4, v134
            v_lshlrev_b32 v135, 3, v0
            """)
        else:
            g("s_nop 0 ; HZ_SKIP_BEGIN")
        g(f"""
        s_and_b32 s{S_T0}, s{S_MU}, 3
        s_add_u32 s{S_T0}, s{S_T0}, {k}
        s_cmp_ge_u32 s{S_T0}, 5
        s_cselect_b32 s{S_T1}, 5, 0
        s_sub_u32 s{S_T3}, s{S_T0}, s{S_T1}
        s_mul_i32 s{S_T1}, s{S_WAVE}, 5
        s_add_u32 s{S_T3}, s{S_T3}, s{S_T1}
        s_mul_i32 s{S_T2}, s{S_T3}, {32*3456}
        s_lshl_b32 s{S_T0}, s{S_MU}, 5
        s_add_u32 s{S_T2}, s{S_T2}, s{S_T0}
        s_lshl_b32 s{S_T1}, s{S_T3}, 10
        s_add_u32 m0, s{S_T1}, {L_G}
        s_mul_i32 s{S_T0}, s{S_MU}, {16*1280}
        buffer_load_dwordx4 v134, {srd(SRD_G)}, s{S_T2} offen lds
        s_add_u32 m0, s{S_T1}, {L_U}
        v_cmp_gt_u32 vcc, 160, v0
        buffer_load_dwordx4 v134, {srd(SRD_U)}, s{S_T2} offen lds
        s_and_saveexec_b64 {s2(S_MA)}, vcc
        s_cbranch_execz {lab}_x
        """)
        us = list(range(16))[[0, 3, 6, 9, 12][k]:[3, 6, 9, 12, 16][k]]
        for u in us:
            g(f"s_add_u32 s{S_T1}, s{S_T0}, {u*1280}\nbuffer_load_dwordx2 {ac(self.WD+2*u,2)}, v135, {srd(SRD_D)}, s{S_T1} offen")
        g(f"{lab}_x:\ns_mov_b64 exec, -1 ; HZ_SKIP_END\n{lab}:")

    def p2_reads(self, n):
        i, ks = divmod(n, 4); b = n % 3
        base = 128 + (i & 1)
        out = []
        for t in range(2):
            for rd in range(2):
                out.append(f"ds_read_b64_tr_b16 {v(92+12*b+4*t+2*rd,2)}, v{base} offset:{(16*ks+rd)*80 + 64*t}")
        for rd in range(2):
            out.append(f"ds_read_b64_tr_b16 {v(160+4*b+2*rd,2)}, v{130 + (i & 1)} offset:{(16*ks+rd)*80}")
        return out

    def p2_base(self, i):
        r = i & 1
        return [f"v_add_u32 v{128+r}, s{S_QC}, v132", f"v_add_u32 v{130+r}, s{S_QC}, v133",
                f"s_add_u32 s{S_QC}, s{S_QC}, 5120", f"s_cmp_eq_u32 s{S_QC}, 51200", f"s_cselect_b32 s{S_QC}, 0, s{S_QC}"]

    def pass2(self):
        g = self
        g(f"""
        v_bfe_u32 v9, v1, 2, 2
        v_lshlrev_b32 v9, 1, v9
        v_add_u32 v9, v9, v3
        v_lshlrev_b32 v9, 1, v9
        v_mul_u32_u24 v9, 80, v9
        v_bfe_u32 v10, v1, 4, 1
        v_and_b32 v11, 3, v1
        v_lshl_add_u32 v10, v10, 2, v11
        v_lshl_add_u32 v9, v10, 3, v9
        v_add_u32 v132, {L_WQ}, v9
        s_lshl_b32 s{S_T0}, s{S_WAVE}, 6
        v_add_u32 v133, s{S_T0}, v132
        s_mul_i32 s{S_QC}, s{S_C0}, 5120
        """)
        for n in range(5): g(f"v_accvgpr_read_b32 v{152+n}, a{200+n}")
        self.wog = self.wo_groups()
        early = self.wog[:10]
        for x in self.p2_base(0): g(x)
        for x in self.p2_reads(0): g(x)
        for x in self.p2_reads(1): g(x)
        for n in range(40):
            i, ks = divmod(n, 4); b = n % 3
            if ks == 1 and i < 9:
                for x in self.p2_base(i + 1): g(x)
            g("s_waitcnt lgkmcnt(0)" if n == 39 else "s_waitcnt lgkmcnt(6)")
            rd = self.p2_reads(n + 2) if n + 2 < 40 else []
            XP = ac(4*n, 4)
            WF = lambda t: 92 + 12*b + 4*t
            cin = lambda r, k: "0" if n == 0 else v(r, k)
            def small(m):
                bm = m % 3
                c0 = (m == 0)
                g(f"v_mfma_f32_4x4x4_16b_bf16 v[76:79], {v(160+4*bm,2)}, v[84:85], {'0' if c0 else 'v[76:79]'}")
                g(f"v_mfma_f32_4x4x4_16b_bf16 v[80:83], {v(160+4*bm+2,2)}, v[84:85], {'0' if c0 else 'v[80:83]'}")
            if "nobatch" not in self.exp and n % 2 == 1:
                small(n - 1)
                if rd: g(rd.pop(0))
                small(n)
            g(f"v_mfma_f32_32x32x16_bf16 v[16:31], {v(WF(0),4)}, {XP}, {cin(16,16)}")
            for x in rd[0:3]: g(x)
            g(f"v_mfma_f32_32x32x16_bf16 v[32:47], {v(WF(1),4)}, {XP}, {cin(32,16)}")
            for x in rd[3:6]: g(x)
            if "nobatch" in self.exp: small(n)
            if n == 12: self.kv_signal()
            if n in (13, 18, 23, 28, 33): self.moe_load_block((n - 13) // 5)
            if n >= 18 and n % 2 == 0 and early:
                for x in early.pop(0): g(x)
            if n == 36: self.kv_poll_issue()
            if n == 38: self.kv_load_setup()
            if n in (9, 19, 29): self.stamp(f"p2_{n}")
        while early:
            for x in early.pop(0): g(x)
        self.stamp("p2end")

    def q_epilogue_a(self):
        g = self
        self.smtag = "q"
        for n in range(3):
            g(f"v_accvgpr_read_b32 v{134+n}, a{205+n}\nv_accvgpr_read_b32 v{68+n}, a{211+n}")
        self.stats_and_colsum(False)
        quads = [(16+4*j, 8*j) for j in range(4)] + [(32, 32)]
        g(f"v_lshlrev_b32 v9, 4, v3\nv_add_u32 v9, {L_CS + 512}, v9")
        self.norm_reads(quads, 512, 160)
        self.norm_apply(quads, 160, 0, scale="fold" not in self.exp)
        PK = 244
        for i in range(10):
            g(f"v_cvt_pk_bf16_f32 v{PK+i}, v{16+2*i}, v{16+2*i+1}")
        self.stamp("q_cvt")

    def q_epilogue_b(self):
        g = self
        self.featmap_mfma(244)
        for i in range(4): g(f"v_accvgpr_read_b32 v{56+i}, a{196+i}")
        self.softmax(220, 232)
        self.stamp("qdone")

    def xres_groups(self):
        XR, ST = self.XR, self.ST
        grp = []
        for n in range(3):
            grp.append([f"buffer_load_dwordx4 {v(XR+4*n,4)}, v{134+n}, {srd(SRD_X)}, s{S_XO} offen"])
            pre = [f"s_lshl_b32 s{S_T0}, s{S_ROW0}, 3", f"s_add_u32 s{S_STA}, s{S_T0}, {WS_STATS}"] if n == 0 else []
            grp.append(pre + [f"v_lshlrev_b32 v67, 3, v{68+n}", f"buffer_load_dwordx2 {v(ST+2*n,2)}, v67, {srd(SRD_WS)}, s{S_STA} offen sc1"])
        return grp

    def q_epilogue(self):
        kg = self.kv_load_groups()
        self.interleave([(x, "kvp") for x in kg[:8]], self.capture(self.q_epilogue_a))
        self.interleave([(x, "xres") for x in self.xres_groups()] + [(x, "kvp") for x in kg[8:]], self.capture(self.q_epilogue_b))
        self.dump("phiq", list(range(220, 244)))
        self.vmwait("xres")
        self.interleave([(x, "wo") for x in self.wog[10:18]], self.capture(self.residual))
        self.stamp("resid")

    def kv_poll_issue(self):
        g = self
        g(f"""
        s_add_u32 s{S_T0}, s{S_HP}, {CNT_KV}
        s_lshl_b32 s{S_T0}, s{S_T0}, 7
        v_mov_b32 v238, s{S_T0}
        v_cmp_eq_u32 vcc, 1, v1
        v_cndmask_b32 v238, v238, {CNT_KV * 128}, vcc
        v_lshlrev_b32 v240, 6, v1
        s_mov_b32 exec_lo, 15
        s_mov_b32 exec_hi, 0
        buffer_load_dword v241, v240, {srd(SRD_DBG)}, 0 offen sc1
        s_mov_b32 exec_lo, 3
        buffer_load_dword v239, v238, {srd(SRD_WS)}, 0 offen sc1
        s_mov_b64 exec, -1
        """)

    def kv_wait(self):
        g = self
        self.poll_finish("kv", SRD_WS, 16, nl=2)
        self.stamp("kvseen")
        g(f"""
        s_mov_b32 exec_lo, 15
        s_mov_b32 exec_hi, 0
        v_cmp_gt_u32 vcc, 64, v241
        s_mov_b64 exec, -1
        s_cbranch_vccz L_rmaxok
        """)
        self.poll("rmax", SRD_DBG, "v_lshlrev_b32 v9, 6, v1 ; HZ_SKIP_BEGIN", 64, nl=4)
        g(f"""
        s_nop 0 ; HZ_SKIP_END
L_rmaxok:
        """)

    def kv_load_setup(self):
        g = self
        g(f"""
        s_mul_i32 s{S_KVA}, s{S_HP}, {16*KVP_SZ}
        s_add_u32 s{S_KVA}, s{S_KVA}, {WS_KVP}
        s_add_u32 s{S_KVE}, s{S_KVA}, {16*KVP_SZ}
        s_mov_b32 s{S_KVB}, s{S_KVA}
        s_and_b32 s{S_T0}, s{S_SLOT}, 7
        s_mul_i32 s{S_T0}, s{S_T0}, {2*KVP_SZ}
        s_add_u32 s{S_KVA}, s{S_KVA}, s{S_T0}
        v_lshlrev_b32 v64, 4, v0
        s_mul_i32 s{S_T0}, s{S_WAVE}, {41*16}
        s_add_u32 s{S_T0}, s{S_T0}, 4096
        v_lshl_add_u32 v65, v1, 4, s{S_T0}
        s_mov_b32 s{S_MB}, -1
        s_mov_b32 s{S_MB+1}, 0x1ff
        v_lshlrev_b32 v66, 5, v1
        v_add_u32 v66, {WS_RMAX}, v66
        """)

    def kv_load_groups(self):
        grp = []
        for p in range(16):
            grp.append([f"buffer_load_dwordx4 {ac(4*p,4)}, v64, {srd(SRD_WS)}, s{S_KVA} offen sc1", f"s_mov_b64 exec, {s2(S_MB)}",
                        ])
            grp[-1] = [f"buffer_load_dwordx4 {ac(4*p,4)}, v64, {srd(SRD_WS)}, s{S_KVA} offen sc1"]
            grp.append([f"s_mov_b64 exec, {s2(S_MB)}", f"buffer_load_dwordx4 {ac(64+4*p,4)}, v65, {srd(SRD_WS)}, s{S_KVA} offen sc1",
                        "s_mov_b64 exec, -1", f"s_add_u32 s{S_KVA}, s{S_KVA}, {KVP_SZ}",
                        f"s_cmp_eq_u32 s{S_KVA}, s{S_KVE}", f"s_cselect_b32 s{S_KVA}, s{S_KVB}, s{S_KVA}"])
        grp.append([f"buffer_load_dwordx4 v[48:51], v66, {srd(SRD_WS)}, 0 offen sc1"])
        grp.append([f"buffer_load_dwordx4 v[52:55], v66, {srd(SRD_WS)}, 0 offen offset:16 sc1"])
        return grp

    def argmax(self):
        g = self
        g(f"""
        v_cmp_gt_f32 vcc, v50, v48
        v_cndmask_b32 v48, v48, v50, vcc
        v_cndmask_b32 v49, v49, v51, vcc
        v_cmp_gt_f32 vcc, v52, v48
        v_cndmask_b32 v48, v48, v52, vcc
        v_cndmask_b32 v49, v49, v53, vcc
        v_cmp_gt_f32 vcc, v54, v48
        v_cndmask_b32 v48, v48, v54, vcc
        v_cndmask_b32 v49, v49, v55, vcc
        v_mov_b32 v50, v48
        """)
        for ctl in ("row_shr:1 row_mask:0xf bank_mask:0xf", "row_shr:2 row_mask:0xf bank_mask:0xf",
                    "row_shr:4 row_mask:0xf bank_mask:0xf", "row_shr:8 row_mask:0xf bank_mask:0xf",
                    "row_bcast:15 row_mask:0xa bank_mask:0xf", "row_bcast:31 row_mask:0xc bank_mask:0xf"):
            g(f"v_max_f32_dpp v50, v50, v50 {ctl}")
        g(f"""
        v_readlane_b32 s{S_RSEL}, v50, 63
        v_cmp_eq_f32 vcc, s{S_RSEL}, v48
        s_ff1_i32_b64 s{S_T0}, vcc
        s_max_i32 s{S_T0}, s{S_T0}, 0
        v_readlane_b32 s{S_IDX}, v49, s{S_T0}
        s_nop 0
        s_and_b32 s{S_IDX}, s{S_IDX}, 2047
        """)

    def moe_a(self):
        g = self
        WD = self.WD
        g("v_rcp_f32 v67, v67")
        for d in range(5):
            g(f"""
            v_lshlrev_b32 v168, 16, v{60+d}
            v_and_b32 v169, 0xffff0000, v{60+d}
            v_sub_f32 v168, v168, v66
            v_sub_f32 v169, v169, v66
            v_cvt_pk_bf16_f32 v168, v168, v169
            v_lshlrev_b32 v169, 16, v168
            v_and_b32 v168, 0xffff0000, v168
            v_mul_f32 v169, v169, v67
            v_mul_f32 v168, v168, v67
            v_cvt_pk_bf16_f32 v{60+d}, v169, v168
            """)
        g(f"""
        s_mul_i32 s{S_T0}, s{S_WAVE}, 1280
        s_add_u32 s{S_T0}, s{S_T0}, {L_XS}
        v_mul_u32_u24 v9, 20, v1
        v_add_u32 v9, s{S_T0}, v9
        ds_write_b32 v9, v60
        ds_write_b32 v9, v61 offset:4
        ds_write_b32 v9, v62 offset:8
        ds_write_b32 v9, v63 offset:12
        ds_write_b32 v9, v64 offset:16
        v_bfe_u32 v9, v1, 2, 2
        v_lshl_add_u32 v9, v3, 3, v9
        s_mul_i32 s{S_T1}, s{S_WAVE}, 160
        v_add_u32 v9, s{S_T1}, v9
        v_lshlrev_b32 v9, 5, v9
        v_and_b32 v10, 3, v1
        v_lshl_add_u32 v9, v10, 3, v9
        v_bfe_u32 v10, v1, 4, 1
        v_mul_u32_u24 v10, {L_U - L_G}, v10
        v_add_u32 v9, v9, v10
        v_add_u32 v9, {L_G}, v9
        s_mul_i32 s{S_T1}, s{S_WAVE}, 320
        s_add_u32 s{S_T0}, s{S_T0}, s{S_T1}
        v_lshlrev_b32 v10, 4, v3
        v_add_u32 v10, s{S_T0}, v10
        s_waitcnt lgkmcnt(0)
        """)
        def rd(ks):
            A = 32 + 8*ks
            g(f"""
            ds_read_b64_tr_b16 {v(A,2)}, v9 offset:{(16*ks)*32}
            ds_read_b64_tr_b16 {v(A+2,2)}, v9 offset:{(16*ks+4)*32}
            ds_read_b128 {v(A+4,4)}, v10 offset:{32*ks}
            """)
        for ks in range(4): rd(ks)
        for ks in range(10):
            if ks + 4 < 10:
                g("s_waitcnt lgkmcnt(9)"); rd(ks + 4) if False else None
                g(f"v_mfma_f32_32x32x16_bf16 v[16:31], {v(32+8*ks,4)}, {v(36+8*ks,4)}, {'0' if ks == 0 else 'v[16:31]'}")
                rd(ks + 4)
            else:
                g(f"s_waitcnt lgkmcnt({3*(9-ks)})")
                g(f"v_mfma_f32_32x32x16_bf16 v[16:31], {v(32+8*ks,4)}, {v(36+8*ks,4)}, v[16:31]")
        g(f"""
        s_lshl_b32 s{S_T0}, s{S_WAVE}, 7
        s_add_u32 s{S_T0}, s{S_T0}, {L_HP}
        v_lshlrev_b32 v9, 4, v3
        v_add_u32 v9, s{S_T0}, v9
        s_mov_b32 exec_lo, 1
        s_mov_b32 exec_hi, 1
        ds_write_b128 v9, v[16:19]
        ds_write_b128 v9, v[20:23] offset:32
        ds_write_b128 v9, v[24:27] offset:64
        ds_write_b128 v9, v[28:31] offset:96
        s_mov_b64 exec, -1
        s_waitcnt lgkmcnt(0)
        """)

    def moe_b(self):
        g = self
        WD = self.WD
        g(f"""
        v_and_b32 v9, 15, v1
        v_lshlrev_b32 v9, 2, v9
        v_add_u32 v9, {L_HP}, v9
        ds_read_b32 v160, v9
        ds_read_b32 v161, v9 offset:128
        ds_read_b32 v162, v9 offset:256
        ds_read_b32 v163, v9 offset:384
        ds_read_b32 v164, v9 offset:64
        ds_read_b32 v165, v9 offset:192
        ds_read_b32 v166, v9 offset:320
        ds_read_b32 v167, v9 offset:448
        s_waitcnt lgkmcnt(0)
        v_add_f32 v160, v160, v161
        v_add_f32 v162, v162, v163
        v_add_f32 v164, v164, v165
        v_add_f32 v166, v166, v167
        v_add_f32 v160, v160, v162
        v_add_f32 v164, v164, v166
        """)
        g.rnd_bf16(160, 160); g.rnd_bf16(164, 164)
        g(f"""
        v_mul_f32 v161, 0xbfb8aa3b, v160
        v_exp_f32 v161, v161
        v_add_f32 v161, 1.0, v161
        v_rcp_f32 v161, v161
        v_mul_f32 v160, v160, v161
        """)
        g.rnd_bf16(160, 160)
        g("v_mul_f32 v160, v160, v164")
        g.rnd_bf16(160, 160)
        g("""
        v_mov_b32 v161, v160
        s_nop 1
        v_mov_b32_dpp v161, v160 row_shl:1 row_mask:0xf bank_mask:0xf
        s_nop 1
        v_cvt_pk_bf16_f32 v160, v160, v161
        """)
        for i in range(4): g(f"v_mov_b32 v{16+i}, 0")
        g("s_mov_b32 s74, 0x05040100\nv_mov_b32 v26, s74\ns_mov_b32 s74, 0x07060302\nv_mov_b32 v27, s74")
        for p in range(8):
            a0, a1 = WD + 4*p, WD + 4*p + 2
            g(f"""
            v_readlane_b32 s74, v160, {2*p}
            v_accvgpr_read_b32 v20, a{a0}
            v_accvgpr_read_b32 v21, a{a0+1}
            v_accvgpr_read_b32 v22, a{a1}
            v_accvgpr_read_b32 v23, a{a1+1}
            v_perm_b32 v24, v22, v20, v26
            v_perm_b32 v25, v22, v20, v27
            v_perm_b32 v28, v23, v21, v26
            v_perm_b32 v29, v23, v21, v27
            v_dot2c_f32_bf16 v16, s74, v24
            v_dot2c_f32_bf16 v17, s74, v25
            v_dot2c_f32_bf16 v18, s74, v28
            v_dot2c_f32_bf16 v19, s74, v29
            """)
        g("s_nop 2")

    def kv_addresses(self):
        g = self
        for k, (gi, out1, out2) in enumerate(((0, 196, 197), (256, 198, 199))):
            if k == 0: g("v_mov_b32 v9, v0")
            else: g(f"s_mul_i32 s{S_T0}, s{S_WAVE}, 41\ns_add_u32 s{S_T0}, s{S_T0}, 256\nv_add_u32 v9, s{S_T0}, v1")
            g(f"""
            v_cmp_lt_u32 vcc, 209, v9
            v_cndmask_b32 v10, 0, 1, vcc
            v_mul_u32_u24 v11, 210, v10
            v_sub_u32 v9, v9, v11
            v_mul_u32_u24 v11, 3121, v9
            v_lshrrev_b32 v11, 16, v11
            v_mul_u32_u24 v12, 21, v11
            v_sub_u32 v12, v9, v12
            v_lshrrev_b32 v13, 1, v11
            v_and_b32 v14, 1, v11
            v_cmp_lt_u32 vcc, 7, v11
            v_subrev_u32 v15, 4, v11
            v_cndmask_b32 v13, v13, v15, vcc
            v_cndmask_b32 v14, v14, 0, vcc
            v_lshrrev_b32 v15, 1, v13
            v_and_b32 v13, 1, v13
            v_mul_u32_u24 v15, 1024, v15
            v_lshl_add_u32 v15, v13, 9, v15
            v_lshl_add_u32 v15, v14, 3, v15
            v_mul_u32_u24 v13, 3072, v10
            v_add_u32 v15, v15, v13
            v_add_u32 v15, {L_KVF}, v15
            v_lshlrev_b32 v13, 2, v10
            v_sub_u32 v13, v12, v13
            v_add_u32 v14, 20, v13
            v_cmp_gt_i32 vcc, 0, v13
            v_cndmask_b32 v13, v13, v14, vcc
            v_subrev_u32 v14, 16, v13
            v_lshrrev_b32 v60, 3, v13
            v_and_b32 v61, 7, v13
            v_lshrrev_b32 v62, 1, v14
            v_and_b32 v63, 1, v14
            v_add_u32 v63, 8, v63
            v_cmp_lt_u32 vcc, 15, v13
            v_cndmask_b32 v60, v60, v62, vcc
            v_cndmask_b32 v61, v61, v63, vcc
            v_lshrrev_b32 v62, 2, v61
            v_lshlrev_b32 v62, 3, v62
            v_lshl_add_u32 v62, v60, 2, v62
            v_and_b32 v61, 3, v61
            v_add_u32 v62, v62, v61
            v_cmp_eq_u32 vcc, 20, v12
            v_cndmask_b32 v63, v62, 22, vcc
            v_cndmask_b32 v62, v62, 18, vcc
            v_lshl_add_u32 v62, v62, 4, v15
            v_lshl_add_u32 v63, v63, 4, v15
            v_accvgpr_write_b32 a{out1}, v62
            v_accvgpr_write_b32 a{out2}, v63
            """)

    def kv_reduce_and_o(self):
        g = self
        for n in range(3):
            g(f"v_accvgpr_read_b32 v{137+n}, a{208+n}\nv_accvgpr_read_b32 v{140+n}, a{211+n}\nv_accvgpr_read_b32 v{143+n}, a{214+n}")
        g.vmwait("kvp")
        self.stamp("kvdata")
        g(f"s_cmp_ge_u32 s{S_MU}, 108\ns_cbranch_scc1 L_noxrow\ns_nop 0 ; HZ_SKIP_BEGIN")
        self.argmax()
        g(f"""
        v_mul_u32_u24 v9, 20, v1
        s_mul_i32 s{S_T1}, s{S_IDX}, 1280
        buffer_load_dwordx4 v[60:63], v9, {srd(SRD_X)}, s{S_T1} offen
        buffer_load_dword v64, v9, {srd(SRD_X)}, s{S_T1} offen offset:16
        s_lshl_b32 s{S_T1}, s{S_IDX}, 3
        s_add_u32 s{S_T1}, s{S_T1}, {WS_STATS}
        v_mov_b32 v9, 0
        buffer_load_dwordx2 v[66:67], v9, {srd(SRD_WS)}, s{S_T1} offen sc1   ; HZ_SKIP_END
L_noxrow:
        """)
        def reduce():
            for base, acc in ((0, 16), (64, 92)):
                for e in range(4): g(f"v_accvgpr_read_b32 v{acc+e}, a{base+e}")
                for p in range(1, 16):
                    t = acc + 4 + 4 * (p & 1)
                    for e in range(4): g(f"v_accvgpr_read_b32 v{t+e}, a{base+4*p+e}")
                    g(f"v_pk_add_f32 {v(acc,2)}, {v(acc,2)}, {v(t,2)}\nv_pk_add_f32 {v(acc+2,2)}, {v(acc+2,2)}, {v(t+2,2)}")
        self.interleave([(x, "wo") for x in self.wog[18:]], self.capture(reduce))
        self.stamp("r_sum")
        g(f"""
        v_cvt_pk_bf16_f32 v16, v16, v17
        v_cvt_pk_bf16_f32 v17, v18, v19
        v_cvt_pk_bf16_f32 v92, v92, v93
        v_cvt_pk_bf16_f32 v93, v94, v95
        ds_write_b64 v56, v[16:17]
        ds_write_b64 v57, v[16:17]
        s_mov_b64 exec, {s2(S_MB)}
        ds_write_b64 v58, v[92:93]
        ds_write_b64 v59, v[92:93]
        s_mov_b64 exec, -1
        s_waitcnt lgkmcnt(0)
        s_barrier
        v_lshlrev_b32 v9, 4, v1
        v_add_u32 v9, {L_KVF}, v9
        """)
        self.stamp("r_bar")
        for a in range(2):
            for t in range(3):
                g(f"ds_read_b128 {v(92+12*a+4*t,4)}, v9 offset:{a*3072 + t*1024}")
        self.dump("kvf", list(range(92, 116)))
        for a, (acc, H) in enumerate(((16, 220), (32, 232))):
            g(f"s_waitcnt lgkmcnt({3 - 3*a})")
            for t in range(3):
                g(f"v_mfma_f32_32x32x16_bf16 {v(acc,16)}, {v(92+12*a+4*t,4)}, {v(H+4*t,4)}, {'0' if t == 0 else v(acc,16)}")
        self.dump("num", list(range(16, 48)))
        g("v_accvgpr_read_b32 v10, a217\nv_accvgpr_read_b32 v11, a218\nv_mov_b32 v12, 0x358637bd")
        for a, (acc, P) in enumerate(((16, 160), (32, 166))):
            g(f"v_add_f32 v{acc+10}, v{acc+10}, v12\nv_rcp_f32 v{acc+10}, v{acc+10}")
        for a, (acc, P) in enumerate(((16, 160), (32, 166))):
            for i in range(5):
                g(f"v_pk_mul_f32 {v(acc+2*i,2)}, {v(acc+2*i,2)}, {v(acc+10,2)} op_sel_hi:[1,0]")
            for i in range(5):
                g(f"v_cvt_pk_bf16_f32 v{P+i}, v{acc+2*i}, v{acc+2*i+1}")
        self.dump("o", list(range(160, 165)) + list(range(166, 171)))
        g(f"""
        v_mov_b32 v172, v164
        v_mov_b32 v173, v170
        s_nop 1
        v_permlane32_swap_b32 v172, v173
        buffer_store_dwordx4 v[160:163], v10, {srd(SRD_WS)}, s{S_OS} offen sc1
        buffer_store_dwordx2 v[172:173], v11, {srd(SRD_WS)}, s{S_OS} offen offset:2048 sc1
        buffer_store_dwordx4 v[166:169], v10, {srd(SRD_WS)}, s{S_OS} offen offset:3072 sc1
        """)
        self.stamp("o_store")
        g(f"s_cmp_lt_u32 s{S_MU}, 108\ns_cbranch_scc1 L_moea\ns_nop 0 ; HZ_SKIP_BEGIN")
        self.argmax()
        g("s_branch L_moeadone ; HZ_SKIP_END\nL_moea:\ns_waitcnt vmcnt(10) ; HZ_SKIP_BEGIN")
        self.moe_a()
        g("s_nop 0 ; HZ_SKIP_END\nL_moeadone:")
        self.stamp("o_wo8")
        g("s_waitcnt vmcnt(0)")
        self.stamp("o_drain")
        self.signal("o", f"s_add_u32 s{S_T0}, s{S_RB}, {CNT_O}", drain=False)
        self.stamp("osig")

    XR, RS, ST = 16, 176, 28
    NA = 12
    @property
    def YK(self):
        for e in self.exp:
            if e.startswith("yk:"): return tuple(int(x) for x in e.split(":")[1:3])
        return (11, 16)
    YQ = [100, 104, 108, 112, 116, 120, 124, 146, 150, 154, 158, 208]
    def wo_groups(self):
        grp = []
        for j in (3, 4, 0, 1, 2):
            for n in range(5):
                gl = []
                if n == 0:
                    gl += [f"s_add_u32 s{S_T3}, s{S_WAVE}, {4*j}", f"s_mul_i32 s{S_WOL}, s{S_T3}, 5120",
                           f"s_mul_i32 s{S_T4}, s{S_T3}, 13108", f"s_lshr_b32 s{S_T4}, s{S_T4}, 16",
                           f"s_mul_i32 s{S_T4}, s{S_T4}, {120*1280}", f"s_mul_i32 s{S_T3}, s{S_T3}, {8*1280}",
                           f"s_add_u32 s{S_T3}, s{S_T3}, s{S_T4}", f"s_add_u32 s{S_WOS}, s{S_T3}, s{S_WOG}"]
                gl += [f"s_add_u32 m0, s{S_WOL}, {L_WO + n*1024}", "s_nop 0",
                       f"buffer_load_dwordx4 v{152+n}, {srd(SRD_WO)}, s{S_WOS} offen lds"]
                grp.append(gl)
        return grp

    def c_addresses(self):
        g = self
        for n in range(5):
            g(f"""
            v_add_u32 v9, {64*n}, v1
            v_mul_u32_u24 v10, 6554, v9
            v_lshrrev_b32 v10, 16, v10
            v_mul_u32_u24 v11, 10, v10
            v_sub_u32 v11, v9, v11
            v_bfe_u32 v12, v10, 3, 1
            v_bfe_u32 v13, v10, 2, 1
            v_lshl_add_u32 v12, v12, 1, v13
            v_mul_u32_u24 v12, 40, v12
            v_lshrrev_b32 v13, 4, v10
            v_lshl_add_u32 v12, v13, 2, v12
            v_and_b32 v13, 3, v10
            v_add_u32 v12, v12, v13
            v_mul_u32_u24 v12, 1280, v12
            v_lshl_add_u32 v12, v11, 4, v12
            v_accvgpr_write_b32 a{200+n}, v12
            """)
            if n < 3:
                g(f"""
                v_min_u32 v10, 15, v10
                v_mul_u32_u24 v12, 1280, v10
                v_lshl_add_u32 v12, v11, 4, v12
                v_accvgpr_write_b32 a{205+n}, v12
                v_mul_u32_u24 v12, 336, v10
                v_lshl_add_u32 v12, v11, 5, v12
                v_accvgpr_write_b32 a{208+n}, v12
                v_accvgpr_write_b32 a{211+n}, v10
                v_lshlrev_b32 v12, 5, v11
                v_accvgpr_write_b32 a{214+n}, v12
                """)

    def o_addresses(self):
        g = self
        g("""
        v_lshrrev_b32 v9, 4, v2
        v_mul_u32_u24 v9, 20480, v9
        v_and_b32 v10, 15, v2
        v_lshl_add_u32 v9, v10, 4, v9
        v_lshl_add_u32 v10, v3, 10, v9
        v_lshl_add_u32 v11, v3, 3, v9
        v_accvgpr_write_b32 a217, v10
        v_accvgpr_write_b32 a218, v11
        """)

    def residual(self):
        g = self
        XR, RS, ST = self.XR, self.RS, self.ST
        for n in range(3):
            xr, rs, st = XR + 4*n, RS + 8*n, ST + 2*n
            g(f"v_rcp_f32 v{st+1}, v{st+1}")
            for d in range(4):
                g(f"""
                v_lshlrev_b32 v10, 16, v{xr+d}
                v_and_b32 v11, 0xffff0000, v{xr+d}
                v_sub_f32 v12, v10, v{st}
                v_sub_f32 v13, v11, v{st}
                v_cvt_pk_bf16_f32 v12, v12, v13
                v_lshlrev_b32 v13, 16, v12
                v_and_b32 v12, 0xffff0000, v12
                v_mul_f32 v13, v13, v{st+1}
                v_mul_f32 v12, v12, v{st+1}
                v_cvt_pk_bf16_f32 v12, v13, v12
                v_lshlrev_b32 v13, 16, v12
                v_and_b32 v12, 0xffff0000, v12
                v_add_f32 v{rs+2*d}, v13, v10
                v_add_f32 v{rs+2*d+1}, v12, v11
                """)

    def y_gather(self):
        g = self
        Y = self.YQ[0]
        g(f"""
        s_cmp_ge_u32 s{S_GAT}, 3
        s_cbranch_scc1 L_noown2
        s_mov_b32 s74, 0                       ; HZ_SKIP_BEGIN
        s_mov_b32 s{S_T2}, 0x0c0c0400
        s_mov_b32 s{S_T3}, 0x04000c0c
        v_mov_b32 v215, s{S_T2}
        v_mov_b32 v216, s{S_T3}
        s_sub_u32 s{S_T4}, 0, s{S_TAG}
        s_mov_b32 exec_hi, 0x0fffffff
L_ycheck:
        s_waitcnt vmcnt(0)
        v_mov_b32 v217, 0
        """)
        for j in range(12):
            q = self.YQ[j]
            g(f"""
            v_perm_b32 v218, v{q+1}, v{q}, v215
            v_perm_b32 v219, v{q+3}, v{q+2}, v216
            v_add3_u32 v218, v218, v219, s{S_T4}
            v_or_b32 v217, v217, v218
            """)
        g(f"""
        v_cmp_ne_u32 vcc, 0, v217
        s_cbranch_vccz L_yok
        s_add_u32 s74, s74, 1
        s_cmp_gt_u32 s74, {SPIN_LIMIT}
        s_cbranch_scc1 L_yok
        s_mov_b32 s{S_T0}, s{S_YA}
        """)
        for j in range(12):
            g(f"buffer_load_dwordx4 {v(self.YQ[j],4)}, v214, {srd(SRD_WS)}, s{S_T0} offen sc1\ns_add_u32 s{S_T0}, s{S_T0}, {3*2560}")
        g("""
        s_branch L_ycheck
L_yok:
        s_mov_b64 exec, -1
        """)
        for j in range(1, 12):
            q = self.YQ[j]
            g(f"v_pk_add_f32 {v(Y,2)}, {v(Y,2)}, {v(q,2)}\nv_pk_add_f32 {v(Y+2,2)}, {v(Y+2,2)}, {v(q+2,2)}")
        g(f"""
        s_mov_b32 exec_hi, 0x0fffffff
        ds_write_b128 v204, {v(Y,4)}
        s_mov_b64 exec, -1
        """)
        g("s_nop 0 ; HZ_SKIP_END\nL_noown2:")

    def phase_c(self):
        g = self
        XR, RS, ST = self.XR, self.RS, self.ST
        self.stamp("argmax")
        g(f"s_cmp_ge_u32 s{S_MU}, 108\ns_cbranch_scc1 L_wodone")
        g("s_nop 0 ; HZ_SKIP_BEGIN")
        self.moe_b()
        g(f"""
        s_movk_i32 s{S_T1}, 0xff
        s_lshr_b32 s{S_T2}, s{S_TAG}, 8
        s_lshr_b32 s{S_T3}, s{S_TAG}, 16
        s_lshr_b32 s{S_T4}, s{S_TAG}, 24
        v_mov_b32 v20, s{S_TAG}
        v_mov_b32 v21, s{S_T2}
        v_mov_b32 v22, s{S_T3}
        v_mov_b32 v23, s{S_T4}
        v_bfi_b32 v16, s{S_T1}, v20, v16
        v_bfi_b32 v17, s{S_T1}, v21, v17
        v_bfi_b32 v18, s{S_T1}, v22, v18
        v_bfi_b32 v19, s{S_T1}, v23, v19
        s_mul_i32 s{S_T0}, s{S_MU}, 2560
        s_add_u32 s{S_T0}, s{S_T0}, {WS_Y}
        v_lshlrev_b32 v9, 4, v0
        v_cmp_gt_u32 vcc, 160, v0
        s_and_saveexec_b64 {s2(S_MA)}, vcc
        s_cbranch_execz L_noy
        buffer_store_dwordx4 v[16:19], v9, {srd(SRD_WS)}, s{S_T0} offen sc1
L_noy:
        s_mov_b64 exec, -1
        s_nop 0 ; HZ_SKIP_END
L_wodone:
        """)
        self.stamp("moedone"); self.mark("moedone")
        g(f"""
        v_bfe_u32 v10, v1, 5, 1
        v_lshlrev_b32 v10, 3, v10
        v_bfe_u32 v11, v1, 4, 1
        v_lshl_add_u32 v10, v11, 2, v10
        v_bfe_u32 v11, v1, 2, 2
        v_add_u32 v10, v10, v11
        v_mul_u32_u24 v10, 160, v10
        v_and_b32 v11, 3, v1
        v_lshl_add_u32 v10, v11, 3, v10
        v_add_u32 v236, {L_WO}, v10
        v_add_u32 v237, {L_WO + 10*5120}, v10
        """)
        NA = self.NA
        def wo_reads(ks):
            base = 236 + ks // 10
            out = []
            for ct in range(5):
                for rd in range(2):
                    dst = ac(20*ks + 4*ct + 2*rd, 2) if ks < NA else v(40 + 20*(ks % 3) + 4*ct + 2*rd, 2)
                    out.append(f"ds_read_b64_tr_b16 {dst}, v{base} offset:{(ks % 10)*5120 + rd*2560 + ct*32}")
            return out
        if "poll1" in self.exp: g(f"s_cmp_lg_u32 s{S_WAVE}, 0\ns_cbranch_scc1 L_noisso\ns_nop 0 ; HZ_SKIP_BEGIN")
        self.poll_issue(SRD_WS, f"s_lshr_b32 s{S_T0}, s{S_RB64}, 1\ns_add_u32 s{S_T0}, s{S_T0}, {CNT_O}\ns_lshl_b32 s{S_T0}, s{S_T0}, 7\nv_mov_b32 v238, s{S_T0}")
        if "poll1" in self.exp: g("s_nop 0 ; HZ_SKIP_END\nL_noisso:")
        for ks in range(NA + 2):
            for x in wo_reads(ks): g(x)
            if ks < NA + 1: g("s_waitcnt lgkmcnt(5)")
        g(f"""
        s_lshl_b32 s{S_T0}, s{S_RB64}, 6
        s_sub_u32 s{S_OWN}, s{S_IDX}, s{S_T0}
        s_lshr_b32 s{S_T0}, s{S_OWN}, 4
        s_cmp_gt_u32 s{S_WAVE}, s{S_T0}
        s_cselect_b32 s{S_T1}, 1, 0
        s_sub_u32 s{S_GAT}, s{S_WAVE}, s{S_T1}
        s_cmp_eq_u32 s{S_WAVE}, s{S_T0}
        s_cselect_b32 s{S_OWW}, 1, 0
        s_cselect_b32 s{S_GAT}, 255, s{S_GAT}
        s_cmp_ge_u32 s{S_OWN}, 64
        s_cselect_b32 s{S_GAT}, 255, s{S_GAT}
        s_cmp_eq_u32 s{S_OWW}, 0
        s_cbranch_scc1 L_noown0
        v_min_u32 v10, 19, v1                  ; HZ_SKIP_BEGIN
        v_lshlrev_b32 v10, 3, v10
        s_mul_i32 s{S_T0}, s{S_IDX}, 1280
        s_mul_i32 s{S_T1}, s{S_CB}, 160
        s_add_u32 s{S_T0}, s{S_T0}, s{S_T1}
        buffer_load_dwordx2 v[200:201], v10, {srd(SRD_X)}, s{S_T0} offen
        s_lshl_b32 s{S_T0}, s{S_IDX}, 3
        s_add_u32 s{S_T0}, s{S_T0}, {WS_STATS}
        v_mov_b32 v10, 0
        buffer_load_dwordx2 v[202:203], v10, {srd(SRD_WS)}, s{S_T0} offen sc1   ; HZ_SKIP_END
L_noown0:
        """)
        if "poll1" in self.exp:
            g(f"s_waitcnt vmcnt(0)\ns_cmp_lg_u32 s{S_WAVE}, 0\ns_cbranch_scc1 L_nopollo\ns_nop 0 ; HZ_SKIP_BEGIN")
            self.poll_finish("o", SRD_WS, 16)
            g("s_nop 0 ; HZ_SKIP_END\nL_nopollo:\ns_barrier")
        else:
            self.poll_finish("o", SRD_WS, 16)
        self.stamp("oseen"); self.dbg_span(8, False); self.mark("oseen")
        g(f"""
        s_mul_i32 s{S_T0}, s{S_RB64}, 81920
        s_mul_i32 s{S_T1}, s{S_WAVE}, 20480
        s_add_u32 s{S_T0}, s{S_T0}, s{S_T1}
        s_add_u32 s{S_T0}, s{S_T0}, {WS_O}
        v_lshlrev_b32 v9, 4, v1
        """)
        self.vm = []
        regs_o = list(range(100, 128, 4)) + list(range(146, 174, 4)) + [220, 224, 228, 232, 240, 244]
        assert len(regs_o) == 20, len(regs_o)
        def oload(ks):
            g(f"buffer_load_dwordx4 {v(regs_o[ks],4)}, v9, {srd(SRD_WS)}, s{S_T0} offen sc1\ns_add_u32 s{S_T0}, s{S_T0}, 1024")
            g.vmi(f"o{ks}")
        AHEAD = 10
        for ks in range(AHEAD): oload(ks)
        g(f"s_cmp_eq_u32 s{S_OWW}, 0\ns_cbranch_scc1 L_noownp")
        g(f"""
        v_mov_b32 v205, s{S_RSEL}              ; HZ_SKIP_BEGIN
        """)
        g.rnd_bf16(205, 205)
        g(f"""
        v_mul_f32 v205, 0xbfb8aa3b, v205
        v_exp_f32 v205, v205
        v_rcp_f32 v203, v203
        v_add_f32 v205, 1.0, v205
        v_rcp_f32 v205, v205
        v_lshlrev_b32 v206, 16, v200
        v_and_b32 v207, 0xffff0000, v200
        v_lshlrev_b32 v208, 16, v201
        v_and_b32 v209, 0xffff0000, v201
        """)
        g.rnd_bf16(205, 205)
        for e in range(4):
            g(f"v_sub_f32 v{206+e}, v{206+e}, v202")
            g.rnd_bf16(206+e, 206+e)
            g(f"v_mul_f32 v{206+e}, v{206+e}, v203")
            g.rnd_bf16(206+e, 206+e)
        g("s_nop 0 ; HZ_SKIP_END\nL_noownp:")
        self.stamp("c_issued")
        for ks in range(20):
            if ks == 0: g("s_waitcnt lgkmcnt(0)")
            elif ks >= NA: g("s_waitcnt lgkmcnt(5)" if ks < 18 else ("s_waitcnt lgkmcnt(10)" if ks < 19 else "s_waitcnt lgkmcnt(0)"))
            yl, yc = self.YK
            if ks < yc: g.vmwait(f"o{ks}")
            if ks == yl:
                g(f"s_cmp_ge_u32 s{S_GAT}, 3\ns_cbranch_scc1 L_noown1\ns_nop 0 ; HZ_SKIP_BEGIN")
                g(f"""
                v_mul_u32_u24 v10, 3277, v1
                v_lshrrev_b32 v10, 16, v10
                v_mul_u32_u24 v11, 20, v10
                v_sub_u32 v11, v1, v11
                v_mul_u32_u24 v214, 2560, v10
                v_lshl_add_u32 v214, v11, 4, v214
                s_mul_i32 s{S_T0}, s{S_CB}, 320
                s_mul_i32 s{S_T1}, s{S_GAT}, {36*2560}
                s_add_u32 s{S_T0}, s{S_T0}, s{S_T1}
                s_add_u32 s{S_YA}, s{S_T0}, {WS_Y}
                s_mov_b32 s{S_T0}, s{S_YA}
                s_mov_b32 exec_hi, 0x0fffffff
                """)
                for j in range(12):
                    g(f"buffer_load_dwordx4 {v(self.YQ[j],4)}, v214, {srd(SRD_WS)}, s{S_T0} offen sc1\ns_add_u32 s{S_T0}, s{S_T0}, {3*2560}")
                g(f"""
                s_mov_b64 exec, -1
                v_mul_u32_u24 v12, 320, v10
                v_lshl_add_u32 v12, v11, 4, v12
                s_mul_i32 s{S_T1}, s{S_GAT}, 960
                s_add_u32 s{S_T1}, s{S_T1}, {L_YR}
                v_add_u32 v204, s{S_T1}, v12
                s_nop 0 ; HZ_SKIP_END
L_noown1:
                """)
            if ks == yc:
                g("s_waitcnt vmcnt(0)")
                self.y_gather()
            if ks in (0, 5, 10, 15): self.stamp(f"c_o{ks}")
            rd = wo_reads(ks + 2) if NA <= ks < 18 else []
            for ct in range(5):
                cin = "0" if ks == 0 else v(16+4*ct, 4)
                A = ac(20*ks + 4*ct, 4) if ks < NA else v(40 + 20*(ks % 3) + 4*ct, 4)
                g(f"v_mfma_f32_16x16x32_bf16 {v(16+4*ct,4)}, {A}, {v(regs_o[ks],4)}, {cin}")
                for x in rd[2*ct:2*ct+2]: g(x)
            if ks + AHEAD < 20: oload(ks + AHEAD)
        self.stamp("cmfma"); self.mark("cmfma")
        g(f"""
        s_cmp_ge_u32 s{S_OWN}, 64
        s_cbranch_scc1 L_noown3
        s_waitcnt lgkmcnt(0)                   ; HZ_SKIP_BEGIN
        s_barrier
        s_cmp_eq_u32 s{S_OWW}, 0
        s_cbranch_scc1 L_noown3
        v_min_u32 v10, 19, v1
        v_lshlrev_b32 v10, 4, v10
        v_add_u32 v10, {L_YR}, v10
        """)
        Y = 40
        for j in range(9):
            g(f"ds_read_b128 {v(Y+4*j,4)}, v10 offset:{320*j}")
        g("s_waitcnt lgkmcnt(0)")
        for j in range(1, 9):
            g(f"v_pk_add_f32 {v(Y,2)}, {v(Y,2)}, {v(Y+4*j,2)}\nv_pk_add_f32 {v(Y+2,2)}, {v(Y+2,2)}, {v(Y+4*j+2,2)}")
        for e in range(4):
            g.rnd_bf16(Y+e, Y+e)
            g(f"v_mul_f32 v{Y+e}, v{Y+e}, v205")
            g.rnd_bf16(Y+e, Y+e)
            g(f"v_add_f32 v{Y+e}, v{Y+e}, v{206+e}")
            g.rnd_bf16(Y+e, Y+e)
            g(f"v_sub_f32 v{210+e}, v{Y+e}, v{206+e}")
        g("s_nop 0 ; HZ_SKIP_END\nL_noown3:")
        g(f"""
        s_mul_i32 s{S_T0}, s{S_WAVE}, 5376
        s_add_u32 s{S_T0}, s{S_T0}, {L_OST}
        v_and_b32 v9, 15, v1
        v_mul_u32_u24 v9, 336, v9
        v_lshrrev_b32 v10, 4, v1
        v_lshl_add_u32 v9, v10, 4, v9
        v_add_u32 v9, s{S_T0}, v9
        """)
        for ct in range(5): g(f"ds_write_b128 v9, {v(16+4*ct,4)} offset:{64*ct}")
        for n in range(3): g(f"v_add_u32 v{10+n}, s{S_T0}, v{137+n}")
        g(f"""
        s_waitcnt lgkmcnt(0)
        s_sub_u32 s{S_T4}, s{S_IDX}, s{S_ROW0}
        s_cmp_ge_u32 s{S_T4}, 16
        s_cbranch_scc1 L_norow
        s_mul_i32 s{S_T4}, s{S_T4}, 336            ; HZ_SKIP_BEGIN
        s_add_u32 s{S_T4}, s{S_T4}, s{S_T0}
        v_lshl_add_u32 v9, v1, 4, s{S_T4}
        s_mov_b32 exec_lo, 0xfffff
        s_mov_b32 exec_hi, 0
        ds_read_b128 v[40:43], v9
        s_waitcnt lgkmcnt(0)
        v_pk_add_f32 v[40:41], v[40:41], v[210:211]
        v_pk_add_f32 v[42:43], v[42:43], v[212:213]
        ds_write_b128 v9, v[40:43]
        s_waitcnt lgkmcnt(0)
        s_mov_b64 exec, -1                         ; HZ_SKIP_END
L_norow:
        """)
        for n in range(3):
            g(f"ds_read_b128 {v(40+8*n,4)}, v{10+n}\nds_read_b128 {v(44+8*n,4)}, v{10+n} offset:16")
        for n in range(3):
            rs = RS + 8*n
            g(f"s_waitcnt lgkmcnt({4 - 2*n})")
            for e in range(0, 8, 2):
                g(f"v_pk_add_f32 {v(40+8*n+e,2)}, {v(40+8*n+e,2)}, {v(rs+e,2)}")
            for e in range(4):
                g(f"v_cvt_pk_bf16_f32 v{64+4*n+e}, v{40+8*n+2*e}, v{40+8*n+2*e+1}")
            if n == 2: g("s_mov_b32 exec_hi, 0")
            g(f"buffer_store_dwordx4 {v(64+4*n,4)}, v{134+n}, {srd(SRD_OUT)}, s{S_XO} offen")
        g("s_mov_b64 exec, -1")
        self.stamp("end"); self.stamp("clk1", True)

    def rest(self):
        self.publish_kv()
        self.dbg_span(4, False); self.mark("kvsig")
        self.pass2()
        self.kv_wait()
        self.dbg_span(9, False); self.mark("kvseen")
        self.q_epilogue()
        self.dbg_span(5, False)
        self.kv_reduce_and_o()
        self.dbg_span(6, False); self.mark("osig")
        self.phase_c()
```

```python
import sys, re
from asmlib import Asm, kernel_header
import hazard

NAME = "parallel_sum__linear_kernel_hedgehog__moe_arch_mod__prompt_kernel"

WS_CNT   = 0
WS_KVP   = 0x10000
KVP_SZ   = 6784
WS_O     = 0x200000
WS_STATS = 0x500000
WS_RMAX  = 0x508000
WS_Y     = 0x510000
WS_DBG   = 0x800000
WS_TS    = 0x700000
WS_SIZE  = 268435456

SLOT     = 28672
L_WQ     = 0
L_T      = 57344
L_WO     = 0
L_G      = 102400
L_U      = L_G + 20480 + 128
L_OST    = L_G
L_YR     = L_OST + 4 * 5376
L_MISC   = L_U + 20480
L_WPHI   = L_MISC
L_CS     = L_WPHI + 4 * 1664
L_P0     = L_CS + 1024
L_KVF    = L_P0 + 64
L_XS     = L_KVF + 6144
L_HP     = L_XS + 5120
L_END    = L_HP + 640
LDS_SIZE = 163840
assert L_END <= LDS_SIZE, L_END
assert 5 * SLOT <= L_MISC

S_WAVE = 3
SRD_X, SRD_W, SRD_PHI, SRD_WO, SRD_WR, SRD_G, SRD_U, SRD_D, SRD_OUT, SRD_DBG, SRD_WS = range(4, 48, 4)
S_XCD, S_SLOT, S_RB, S_HP = 48, 49, 50, 51
S_XB, S_WB, S_LX, S_LW = 52, 53, 54, 55
S_WM = 56
S_T0, S_T1, S_T2, S_T3, S_T4, S_T5 = 62, 63, 64, 65, 66, 67
S_MA, S_MB = 68, 70
S_C0, S_CC, S_CX, S_CW = 76, 77, 78, 79
S_WQL, S_WQG, S_P0ROW, S_IDX = 80, 81, 82, 83
S_KVS = 75
S_TS = 86

def srd(n): return f"s[{n}:{n+3}]"
def v(b, n=1): return f"v{b}" if n == 1 else f"v[{b}:{b+n-1}]"
def ac(b, n=1): return f"a{b}" if n == 1 else f"a[{b}:{b+n-1}]"
def s2(b): return f"s[{b}:{b+1}]"


class Gen:
    def __init__(self, stop=None, dumps=(), stamps=False, touch=True, exp=()):
        self.touch = touch
        self.dist = 2 if "d2" in exp else 3
        self.exp = set(exp)
        self.a = Asm()
        self.vm = []
        self.stop = stop
        self.dumps = set(dumps)
        self.stamps = stamps
        self.nstamp = 0
        self.pending = []
        self.dump_off = 0
        self.dump_index = {}

    def __call__(self, t):
        self.a(t)
        if self.stamps and self.pending and not getattr(self, "capturing", False) and not self.in_skip(t):
            last = t.strip().split("\n")[-1].strip()
            if last.startswith("s_waitcnt") and "lgkmcnt(0)" in last: self.flush_stamps()

    def in_skip(self, t):
        for l in t.split("\n"):
            if "HZ_SKIP_BEGIN" in l: self.skipdepth = 1
            if "HZ_SKIP_END" in l: self.skipdepth = 0
        return getattr(self, "skipdepth", 0) > 0

    def vmi(self, tag, n=1):
        self.vm += [tag] * n
    def capture(self, fn):
        old, self.a.lines = self.a.lines, []
        self.capturing = True
        fn()
        self.capturing = False
        out, self.a.lines = self.a.lines, old
        return [l.strip() for l in out if l.strip()]

    def atoms(self, lines):
        out, cur, hold = [], [], None
        for l in lines:
            cur.append(l)
            code = l.split(";")[0].strip()
            if hold is None:
                if re.match(r"s_(mov|brev|and_saveexec)\w* (exec|exec_lo|exec_hi)\b", code) or code.startswith("s_and_saveexec"):
                    if not code.endswith("exec, -1"): hold = "exec"
                elif code.startswith("s_cmp"): hold = "label"
            else:
                if hold == "exec" and code == "s_mov_b64 exec, -1": hold = None
                elif hold == "label" and (code.endswith(":") or code.startswith("s_cselect")): hold = None
            if hold is None and not l.endswith(";+"):
                out.append(cur); cur = []
        if cur: out.append(cur)
        return out

    def interleave(self, groups, filler):
        at = self.atoms(filler)
        total = sum(len(a) for a in at)
        done = 0
        for i, (lines, tag) in enumerate(groups):
            for x in lines: self(x)
            self.vmi(tag)
            target = total * (i + 1) // len(groups)
            while at and done < target:
                a = at.pop(0); done += len(a)
                for x in a: self.emit_resolved(x)
        for a in at:
            for x in a: self.emit_resolved(x)

    def emit_resolved(self, x):
        if x.startswith("@VMWAIT "): self.vmwait(x.split()[1])
        elif x.startswith("@STAMP "): self.stamp(x.split()[1])
        else: self(x)

    def vmwait(self, tag):
        if getattr(self, "capturing", False):
            self(f"@VMWAIT {tag}"); return
        last = max(i for i, t in enumerate(self.vm) if t == tag)
        n = len(self.vm) - 1 - last
        assert n <= 63, (tag, n)
        self(f"s_waitcnt vmcnt({n})")
    def vmwait_all(self):
        self("s_waitcnt vmcnt(0)")

    def stamp(self, name, clk=False):
        if not self.stamps: return
        if "all" not in self.stamps and name not in self.stamps: return
        if getattr(self, "capturing", False):
            self(f"@STAMP {name}"); return
        if "cyc" in self.exp: clk = True
        self.stamp_names = getattr(self, "stamp_names", [])
        if name in self.stamp_names: return
        used = {i for i, _ in self.pending}
        free = [i for i in range(8) if i not in used]
        if not free:
            Asm.__call__(self.a, "s_waitcnt lgkmcnt(0)"); self.flush_stamps()
            free = list(range(8))
        i = free[0]
        lane = len(self.stamp_names); assert lane < 63, name
        self.stamp_names.append(name)
        self.pending.append((i, lane))
        Asm.__call__(self.a, f"{'s_memtime' if clk else 's_memrealtime'} {s2(S_TS + 2*i)} ; stamp {name}")

    def flush_stamps(self):
        for i, lane in self.pending:
            Asm.__call__(self.a, f"v_writelane_b32 v255, s{S_TS + 2*i}, {lane}")
        self.pending = []

    def dump(self, name, regs, tmp=250):
        if name not in self.dumps: return
        g = self
        n = len(regs)
        base = WS_DBG + self.dump_off
        self.dump_index[name] = (self.dump_off, n)
        self.dump_off += 256 * 4 * n * 256
        g("s_waitcnt vmcnt(0) lgkmcnt(0)\ns_nop 15\ns_nop 15")
        g(f"s_lshl_b32 s74, s2, 2\ns_add_u32 s74, s74, s{S_WAVE}\ns_mul_i32 s74, s74, {n*256}\ns_add_u32 s74, s74, {base}")
        g(f"v_lshlrev_b32 v{tmp}, 2, v1")
        for i, r in enumerate(regs):
            if isinstance(r, str) and r.startswith("a"):
                g(f"v_accvgpr_read_b32 v{tmp+1}, {r}\ns_nop 1")
                src = f"v{tmp+1}"
            else:
                src = f"v{r}"
            g(f"buffer_store_dword {src}, v{tmp}, {srd(SRD_WS)}, s74 offen")
            g(f"s_add_u32 s74, s74, 256")
            g("s_waitcnt vmcnt(0)")

    def rnd_bf16(self, dst, src):
        self(f"v_cvt_pk_bf16_f32 v{dst}, v{src}, v{src}\nv_lshlrev_b32 v{dst}, 16, v{dst}")

    def prologue(self):
        g = self
        ptrs = [(SRD_X, 0), (SRD_W, 8), (SRD_WR, 40), (SRD_PHI, 16), (SRD_WS, 88), (SRD_DBG, 80),
                (SRD_WO, 24), (SRD_G, 48), (SRD_U, 56), (SRD_D, 64), (SRD_OUT, 72)]
        sizes = {SRD_X: 2621440, SRD_W: 2457600, SRD_WR: 1280, SRD_PHI: 25600, SRD_WS: WS_SIZE, SRD_DBG: 256,
                 SRD_WO: 819200, SRD_G: 2211840, SRD_U: 2211840, SRD_D: 2211840, SRD_OUT: 2621440}
        self.sizes = sizes
        if "span" in self.exp or "skew" in self.exp: g("s_memrealtime s[98:99]")
        self.mark("start")
        g("s_getpc_b64 s[72:73]")
        g("L_pc:")
        for r, off in ptrs[:4]:
            g(f"s_load_dwordx2 {s2(r)}, s[0:1], {off}")
        g(f"""
        s_cmp_ge_u32 s2, 256
        s_cbranch_scc1 L_exit
        v_and_b32 v1, 63, v0
        v_lshrrev_b32 v9, 6, v0
        s_lshr_b32 s{S_SLOT}, s2, 3
        v_readfirstlane_b32 s{S_WAVE}, v9
        s_and_b32 s{S_XCD}, s2, 7
        """)
        g(f"""
        s_lshl_b32 s{S_T0}, s{S_SLOT}, 2
        s_add_u32 s{S_T0}, s{S_T0}, s{S_WAVE}
        s_lshl_b32 s{S_T0}, s{S_T0}, 9
        v_lshl_add_u32 v11, v1, 7, s{S_T0}
        v_cmp_gt_u32 vcc, L_code_end - L_pc, v11
        v_cmp_gt_u32 {s2(S_MA)}, 4, v1
        s_and_b64 vcc, vcc, {s2(S_MA)}
        s_and_saveexec_b64 {s2(S_MA)}, vcc
        s_cbranch_execz L_nopf
        global_load_dword v159, v11, s[72:73]       ; HZ_SKIP_BEGIN HZ_SKIP_END
L_nopf:
        s_mov_b64 exec, -1
        """)
        for r, off in ptrs[4:]:
            g(f"s_load_dwordx2 {s2(r)}, s[0:1], {off}")
        g(f"""
        s_and_b32 s{S_T0}, s{S_XCD}, 1
        s_lshl_b32 s{S_T0}, s{S_T0}, 3
        s_and_b32 s{S_T1}, s{S_SLOT}, 7
        s_add_u32 s{S_RB}, s{S_T0}, s{S_T1}
        s_lshr_b32 s{S_T0}, s{S_XCD}, 1
        s_lshl_b32 s{S_T0}, s{S_T0}, 2
        s_lshr_b32 s{S_T2}, s{S_SLOT}, 3
        s_add_u32 s{S_HP}, s{S_T0}, s{S_T2}
        s_lshl_b32 s{S_T2}, s{S_T2}, 1
        s_add_u32 s{S_T1}, s{S_T1}, s{S_T2}
        s_and_b32 s{S_T1}, s{S_T1}, 7
        s_mul_i32 s{S_T1}, s{S_T1}, 10
        s_lshr_b32 s{S_C0}, s{S_T1}, 3
        {self.rot_extra()}
        v_lshrrev_b32 v9, 3, v1
        v_mul_u32_u24 v9, 1280, v9
        v_and_b32 v11, 7, v1
        v_lshrrev_b32 v15, 4, v1
        v_xor_b32 v11, v11, v15
        v_lshl_add_u32 v4, v11, 4, v9
        v_xor_b32 v11, 4, v11
        v_lshl_add_u32 v5, v11, 4, v9
        v_add_u32 v5, {10240 - 1024}, v5
        v_add_u32 v157, {20480 - 2048}, v4
        v_add_u32 v158, {20480 - 2048}, v5
        s_lshl_b32 s{S_T0}, s{S_RB}, 7
        s_lshl_b32 s{S_T1}, s{S_WAVE}, 5
        s_add_u32 s{S_T1}, s{S_T1}, s{S_T0}
        s_mul_i32 s{S_XB}, s{S_T1}, 1280
        s_mul_i32 s{S_WB}, s{S_WAVE}, {16*3840}
        s_mul_i32 s{S_T1}, s{S_HP}, 80
        s_add_u32 s{S_WB}, s{S_WB}, s{S_T1}
        s_lshl_b32 s{S_LX}, s{S_WAVE}, 12
        s_mul_i32 s{S_LW}, s{S_WAVE}, 3072
        s_add_u32 s{S_LW}, s{S_LW}, 16384
        s_add_u32 s{S_CC}, s{S_XB}, 1280
        s_lshl_b32 s{S_CX}, s{S_C0}, 7
        s_add_u32 s{S_CX}, s{S_CX}, s{S_XB}
        s_mul_i32 s{S_CW}, s{S_C0}, {64*3840}
        s_add_u32 s{S_CW}, s{S_CW}, s{S_WB}
        """)
        for r in (SRD_X, SRD_W):
            g(f"s_mov_b32 s{r+2}, {sizes[r]}\ns_mov_b32 s{r+3}, 0x20000")
        for n in range(3):
            g(f"""
            v_add_u32 v9, {64*n}, v1
            v_mul_u32_u24 v11, 43691, v9
            v_lshrrev_b32 v11, 19, v11
            v_mul_u32_u24 v12, 12, v11
            v_sub_u32 v12, v9, v12
            v_cmp_gt_u32 {s2(S_WM+2*n)}, 10, v12
            v_cmp_gt_u32 vcc, 5, v12
            v_mul_u32_u24 v11, 3840, v11
            v_lshl_add_u32 v11, v12, 4, v11
            v_mov_b32 v13, 2480
            v_add_u32 v14, 1280, v11
            v_add_u32 v11, v13, v11
            v_cndmask_b32 v{6+n}, v11, v14, vcc
            """)
            if n: g(f"v_subrev_u32 v{6+n}, {1024*n}, v{6+n}")
        g("s_waitcnt lgkmcnt(0)")
        self.stamp("start"); self.stamp("clk0", True)
        self.nt = " nt" if "nt" in self.exp else ""
        if "early" in self.exp:
            for x in self.p1_refill(0):
                for y in x: g(y)
                g.vmi("c0")
        for r in (SRD_WR, SRD_PHI):
            g(f"s_mov_b32 s{r+2}, {sizes[r]}\ns_mov_b32 s{r+3}, 0x20000")
        P = 160
        nt = " nt" if "nt" in self.exp else ""
        self.nt = nt
        g(f"""
        v_mul_u32_u24 v10, 20, v1
        s_lshl_b32 s{S_T0}, s{S_RB}, 7
        s_lshl_b32 s{S_T1}, s{S_HP}, 3
        s_add_u32 s{S_T0}, s{S_T0}, s{S_T1}
        s_lshl_b32 s{S_T1}, s{S_WAVE}, 1
        s_add_u32 s{S_P0ROW}, s{S_T0}, s{S_T1}
        s_mul_i32 s{S_T4}, s{S_P0ROW}, 1280
        buffer_load_dwordx4 {v(P,4)}, v10, {srd(SRD_X)}, s{S_T4} offen
        buffer_load_dword v{P+4}, v10, {srd(SRD_X)}, s{S_T4} offen offset:16
        buffer_load_dwordx4 {v(P+6,4)}, v10, {srd(SRD_X)}, s{S_T4} offen offset:1280
        buffer_load_dword v{P+10}, v10, {srd(SRD_X)}, s{S_T4} offen offset:1296
        buffer_load_dwordx4 {v(P+12,4)}, v10, {srd(SRD_WR)}, 0 offen
        buffer_load_dword v{P+16}, v10, {srd(SRD_WR)}, 0 offen offset:16
        v_lshlrev_b32 v11, 4, v1
        s_mul_i32 s{S_T0}, s{S_HP}, 1600
        s_mul_i32 s{S_T1}, s{S_WAVE}, 1664
        s_add_u32 m0, s{S_T1}, {L_WPHI}
        s_add_u32 s{S_T4}, s{S_T1}, {L_WPHI + 1024}
        buffer_load_dwordx4 v11, {srd(SRD_PHI)}, s{S_T0} offen lds
        s_mov_b32 m0, s{S_T4}
        s_mov_b32 exec_lo, -1
        s_mov_b32 exec_hi, 15
        s_add_u32 s{S_T0}, s{S_T0}, 1024
        buffer_load_dwordx4 v11, {srd(SRD_PHI)}, s{S_T0} offen lds
        s_mov_b64 exec, -1
        """)
        tagged = lambda i: [(x, f"c{i}") for x in self.p1_refill(i)]
        if "early" not in self.exp:
            g.vmi("p0", 6); g.vmi("phi", 2)
            for lines, tag in tagged(0):
                for x in lines: g(x)
                g.vmi(tag)
        else:
            g.vmi("p0", 6); g.vmi("phi", 2)
        if "spf" in self.exp:
            n_pf = 14
            g(f"s_mov_b32 s{S_T0}, s{S_CX}")
            for j in range(n_pf):
                g(f"s_load_dword s{92 + (j & 7)}, s[4:5], s{S_T0}\ns_add_u32 s{S_T0}, s{S_T0}, {2*1280 if 'spf2' in self.exp else 1280}")
        self.stamp("c0iss")
        s1, s2_ = self.capture(self.setup1), self.capture(self.setup2)
        p0, pf = self.capture(self.phase0), self.capture(self.phi_frags)
        cut = 260
        rest2 = s2_
        for x in s1: self.emit_resolved(x)
        at = self.atoms(s2_); n = 0; head = [];
        while at and n < cut - len(s1):
            a_ = at.pop(0); n += len(a_); head += a_
        for x in head: self.emit_resolved(x)
        tail = [x for a_ in at for x in a_]
        if self.dist == 3:
            self.interleave(tagged(1), tail + p0)
            self.interleave(tagged(2), pf)
        else:
            self.interleave(tagged(1), tail + p0 + pf)
        self.stamp("filled")

    def zero_pad(self):
        if "zpad" not in self.exp: return ""
        return ("v_mov_b32 v22, 0\nv_mov_b32 v23, 0\nv_mov_b32 v24, 0\nv_mov_b32 v25, 0\n"
                f"ds_write_b128 v9, v[22:25] offset:{16384 + 176}\nds_write_b128 v11, v[22:25] offset:{16384 + 176}")

    def rot_extra(self):
        for e in self.exp:
            if e.startswith("rot:"):
                a, b = e.split(":")[1:3]
                return (f"s_lshr_b32 s{S_T2}, s{S_XCD}, 1\ns_mul_i32 s{S_T2}, s{S_T2}, {a}\ns_add_u32 s{S_C0}, s{S_C0}, s{S_T2}\n"
                        f"s_and_b32 s{S_T2}, s{S_XCD}, 1\ns_mul_i32 s{S_T2}, s{S_T2}, {b}\ns_add_u32 s{S_C0}, s{S_C0}, s{S_T2}\n"
                        f"s_mul_i32 s{S_T2}, s{S_C0}, 6554\ns_lshr_b32 s{S_T2}, s{S_T2}, 16\ns_mul_i32 s{S_T2}, s{S_T2}, 10\ns_sub_u32 s{S_C0}, s{S_C0}, s{S_T2}")
        return ""

    def setup1(self):
        g = self
        sizes = self.sizes
        for r in (SRD_WS, SRD_DBG):
            g(f"s_mov_b32 s{r+2}, {sizes[r]}\ns_mov_b32 s{r+3}, 0x20000")
        g(f"""
        s_lshl_b32 s{S_T0}, s{S_WAVE}, 8
        s_add_u32 s{S_T0}, s{S_T0}, s2
        s_cmp_lg_u32 s{S_T0}, 256
        s_cbranch_scc1 L_noinit
        v_lshlrev_b32 v11, 7, v1       ; HZ_SKIP_BEGIN
        v_mov_b32 v12, 0
        buffer_store_dword v12, v11, {srd(SRD_WS)}, 0 offen sc1   ; HZ_SKIP_END
L_noinit:
        """)
        for r in (SRD_WO, SRD_G, SRD_U, SRD_D, SRD_OUT):
            g(f"s_mov_b32 s{r+2}, {sizes[r]}\ns_mov_b32 s{r+3}, 0x20000")
        g(f"""
        v_and_b32 v2, 31, v1
        v_lshrrev_b32 v3, 5, v1
        v_mov_b32 v12, 0x3f80
        v_mov_b32 v13, 0
        v_mov_b32 v14, 0x3f80
        v_mov_b32 v15, 0
        v_lshrrev_b32 v9, 6, v0
        v_mul_u32_u24 v9, {SLOT}, v9
        v_mul_u32_u24 v11, 192, v1
        v_add_u32 v9, v9, v11
        ds_write_b128 v9, v[12:15] offset:{16384 + 160}
        v_add_u32 v11, {4*SLOT}, v11
        ds_write_b128 v11, v[12:15] offset:{16384 + 160}
        {self.zero_pad()}
        v_mov_b32 v16, 0
        v_mov_b32 v17, 0
        v_mov_b32 v18, 0
        v_mov_b32 v19, 0
        v_lshlrev_b32 v20, 4, v0
        v_add_u32 v20, {L_KVF}, v20
        ds_write_b128 v20, v[16:19]
        v_lshlrev_b32 v21, 3, v0
        v_add_u32 v21, {L_KVF + 4096}, v21
        ds_write_b64 v21, v[16:17]
        v_mov_b32 v84, 0x3f803f80
        v_mov_b32 v85, 0x3f803f80
        """)
        g(f"""
        v_lshrrev_b32 v9, 1, v2
        v_and_b32 v9, 7, v9
        v_xor_b32 v9, v9, v3
        v_lshlrev_b32 v9, 4, v9
        v_lshl_add_u32 v9, v2, 7, v9
        v_add_u32 v128, s{S_LX}, v9
        v_xor_b32 v129, 32, v128
        v_xor_b32 v130, 64, v128
        v_xor_b32 v131, 96, v128
        v_add_u32 v132, {3*SLOT}, v128
        v_add_u32 v133, {3*SLOT}, v129
        v_add_u32 v134, {3*SLOT}, v130
        v_add_u32 v135, {3*SLOT}, v131
        v_bfe_u32 v9, v1, 2, 2
        v_lshl_add_u32 v9, v3, 3, v9
        v_mul_u32_u24 v9, 192, v9
        v_bfe_u32 v11, v1, 4, 1
        v_and_b32 v12, 3, v1
        v_lshl_add_u32 v11, v11, 2, v12
        v_lshl_add_u32 v9, v11, 3, v9
        v_add_u32 v136, 16384, v9
        v_add_u32 v137, {16384 + 2*SLOT}, v9
        v_add_u32 v138, {16384 + 4*SLOT}, v9
        s_lshl_b32 s{S_T0}, s{S_WAVE}, 6
        v_add_u32 v72, s{S_T0}, v136
        v_add_u32 v73, s{S_T0}, v137
        v_add_u32 v74, s{S_T0}, v138
        """)

    def setup2(self):
        g = self
        self.moe_roles()
        self.kv_addresses()
        self.c_addresses()
        self.o_addresses()
        self.wq_setup()
        g(f"""
        s_lshl_b32 s{S_T0}, s{S_WAVE}, 5
        v_add_u32 v9, s{S_T0}, v2
        v_mul_u32_u24 v9, 336, v9
        v_add_u32 v9, {L_T}, v9
        v_lshl_add_u32 v9, v3, 3, v9
        v_accvgpr_write_b32 a192, v9
        s_lshr_b32 s{S_T0}, s{S_WAVE}, 1
        s_and_b32 s{S_T4}, s{S_WAVE}, 1
        v_bfe_u32 v9, v1, 2, 2
        v_lshlrev_b32 v9, 1, v9
        v_add_u32 v9, v9, v3
        v_lshlrev_b32 v9, 1, v9
        v_mul_u32_u24 v9, 336, v9
        v_add_u32 v9, {L_T}, v9
        v_bfe_u32 v11, v1, 4, 1
        v_and_b32 v12, 3, v1
        v_lshl_add_u32 v11, v11, 2, v12
        s_mul_i32 s{S_T2}, s{S_T0}, 12
        s_lshl_b32 s{S_T3}, s{S_T4}, 3
        s_add_u32 s{S_T2}, s{S_T2}, s{S_T3}
        v_add_u32 v12, s{S_T2}, v11
        v_lshl_add_u32 v13, v12, 3, v9
        v_accvgpr_write_b32 a193, v13
        s_mul_i32 s{S_T2}, s{S_T0}, 5
        s_add_u32 s{S_T2}, s{S_T2}, 24
        v_add_u32 v12, s{S_T2}, v11
        s_mul_i32 s{S_T3}, s{S_T0}, -3
        s_add_i32 s{S_T3}, s{S_T3}, 37
        v_mov_b32 v13, s{S_T3}
        v_cmp_eq_u32 vcc, 5, v11
        v_cndmask_b32 v12, v12, v13, vcc
        s_add_i32 s{S_T3}, s{S_T3}, -13
        v_add_u32 v13, s{S_T3}, v11
        v_cmp_lt_u32 vcc, 5, v11
        v_cndmask_b32 v12, v12, v13, vcc
        v_lshl_add_u32 v13, v12, 3, v9
        v_accvgpr_write_b32 a194, v13
        v_mul_u32_u24 v9, 336, v3
        v_lshl_add_u32 v9, v2, 4, v9
        v_accvgpr_write_b32 a195, v9
        s_lshl_b32 s{S_T2}, s{S_HP}, 4
        s_add_u32 s{S_T2}, s{S_T2}, s{S_RB}
        s_mul_i32 s{S_T2}, s{S_T2}, {KVP_SZ}
        s_add_u32 s{S_T2}, s{S_T2}, {WS_KVP}
        s_mul_i32 s{S_T3}, s{S_T0}, 3360
        s_add_u32 s{S_KVS}, s{S_T2}, s{S_T3}
        """)

    def phase0(self):
        g = self
        P = 160
        self.stamp("pre_p0")
        g.vmwait("phi")
        self.stamp("p0data")
        X0, X1, W = P, P + 6, P + 12
        A = 180
        for i in range(7): g(f"v_mov_b32 v{A+i}, 0")
        for d in range(5):
            g(f"""
            v_dot2c_f32_bf16 v{A+0}, v{X0+d}, v84
            v_dot2c_f32_bf16 v{A+1}, v{X0+d}, v{X0+d}
            v_dot2c_f32_bf16 v{A+2}, v{X0+d}, v{W+d}
            v_dot2c_f32_bf16 v{A+3}, v{X1+d}, v84
            v_dot2c_f32_bf16 v{A+4}, v{X1+d}, v{X1+d}
            v_dot2c_f32_bf16 v{A+5}, v{X1+d}, v{W+d}
            v_dot2c_f32_bf16 v{A+6}, v{W+d}, v84
            """)
        g("s_nop 2")
        for ctl in ("row_shr:1 row_mask:0xf bank_mask:0xf bound_ctrl:0", "row_shr:2 row_mask:0xf bank_mask:0xf bound_ctrl:0",
                    "row_shr:4 row_mask:0xf bank_mask:0xf bound_ctrl:0", "row_shr:8 row_mask:0xf bank_mask:0xf bound_ctrl:0",
                    "row_bcast:15 row_mask:0xa bank_mask:0xf", "row_bcast:31 row_mask:0xc bank_mask:0xf"):
            for i in range(7):
                g(f"v_add_f32_dpp v{A+i}, v{A+i}, v{A+i} {ctl}")
        T = 190
        g(f"v_mov_b32 v{T+8}, 0x3acccccd")
        for r in range(2):
            sx, sq, sw = A + 3*r, A + 3*r + 1, A + 3*r + 2
            m, t1, t2 = T + 3*r, T + 3*r + 1, T + 3*r + 2
            g(f"""
            v_mul_f32 v{m}, v{sx}, v{T+8}
            v_mul_f32 v{t1}, v{sq}, v{T+8}
            v_fma_f32 v{t1}, -v{m}, v{m}, v{t1}
            v_max_f32 v{t1}, 0, v{t1}
            """)
            g.rnd_bf16(t1, t1)
            g(f"v_add_f32 v{t1}, 0x3727c5ac, v{t1}")
            g.rnd_bf16(t1, t1)
            g(f"v_sqrt_f32 v{t1}, v{t1}")
            g.rnd_bf16(t1, t1)
            g.rnd_bf16(m, m)
            g(f"""
            v_rcp_f32 v{t1}, v{t1}
            v_fma_f32 v{t2}, -v{m}, v{A+6}, v{sw}
            v_mul_f32 v{t2}, v{t2}, v{t1}
            """)
        g(f"""
        v_mov_b32 v{T+7}, s{S_P0ROW}
        v_add_u32 v{T+9}, 1, v{T+7}
        v_cmp_gt_f32 vcc, v{T+5}, v{T+2}
        v_cndmask_b32 v{T+6}, v{T+2}, v{T+5}, vcc
        v_cndmask_b32 v{T+7}, v{T+7}, v{T+9}, vcc
        s_lshl_b32 s{S_T0}, s{S_WAVE}, 3
        s_add_u32 s{S_T0}, s{S_T0}, {L_P0}
        v_mov_b32 v9, s{S_T0}
        s_mov_b32 exec_lo, 0
        s_brev_b32 exec_hi, 1
        ds_write_b64 v9, {v(T+6,2)}
        s_mov_b64 exec, -1
        """)

    def phi_frags(self):
        g = self
        g(f"""
        v_lshrrev_b32 v9, 3, v2
        v_and_b32 v11, 3, v2
        v_lshl_add_u32 v9, v9, 2, v11
        v_min_u32 v9, 9, v9
        v_bfe_u32 v11, v2, 2, 1
        v_mad_u32_u24 v9, v11, 10, v9
        v_lshlrev_b32 v9, 1, v9
        s_mul_i32 s{S_T0}, s{S_WAVE}, 1664
        s_add_u32 s{S_T0}, s{S_T0}, {L_WPHI}
        v_add_u32 v9, s{S_T0}, v9
        v_mul_u32_u24 v11, 160, v3
        v_add_u32 v11, v11, v9
        """)
        def rd(reg, base, ds):
            for i, d in enumerate(ds):
                g(f"ds_read_u16 v{T0 + i}, v{base} offset:{d}")
            g("s_waitcnt lgkmcnt(0)")
            for i in range(0, len(ds), 2):
                g(f"v_lshl_or_b32 v{reg + i//2}, v{T0+i+1}, 16, v{T0+i}")
        T0 = 200
        rd(140, 11, [40*i for i in range(4)] + [40*(8+i) for i in range(4)] + [40*(16+i) for i in range(4)])
        rd(146, 9, [800 + 40*i for i in range(4)])
        rd(148, 11, [800 + 40*(4+i) for i in range(4)] + [800 + 40*(12+i) for i in range(4)])
        g(f"""
        s_mov_b32 s{S_MA}, 0
        s_mov_b32 s{S_MA+1}, -1
        s_waitcnt lgkmcnt(0)
        v_cndmask_b32 v144, v144, 0, {s2(S_MA)}
        v_cndmask_b32 v145, v145, 0, {s2(S_MA)}
        v_cndmask_b32 v146, 0, v146, {s2(S_MA)}
        v_cndmask_b32 v147, 0, v147, {s2(S_MA)}
        """)

    def p1_reads(self, n):
        c, ks = divmod(n, 4); s = c % 5; b = n % 3
        base = 128 + ks if s < 3 else 132 + ks
        imm = s * SLOT if s < 3 else (s - 3) * SLOT
        out = [f"ds_read_b128 {ac(4*n,4)}, v{base} offset:{imm}"]
        wb = 136 + s // 2
        imm0 = (s % 2) * SLOT + 16 * ks * 192
        for t in range(3):
            for rd in range(2):
                out.append(f"ds_read_b64_tr_b16 {v(92 + 12*b + 4*t + 2*rd, 2)}, v{wb} offset:{imm0 + 4*rd*192 + 64*t}")
        for rd in range(2):
            out.append(f"ds_read_b64_tr_b16 {v(160 + 4*b + 2*rd, 2)}, v{72 + s // 2} offset:{imm0 + 4*rd*192}")
        return out

    def p1_refill(self, i):
        s = i % 5
        nt = self.nt
        grp = []
        grp.append([f"s_add_u32 m0, s{S_LX}, {s*SLOT}", "s_nop 0" if False else f"s_add_u32 s{S_T1}, s{S_LW}, {s*SLOT}",
                    f"buffer_load_dwordx4 v4, {srd(SRD_X)}, s{S_CX} offen{nt} lds"])
        grp.append([f"buffer_load_dwordx4 v5, {srd(SRD_X)}, s{S_CX} offen offset:1024{nt} lds"])
        grp.append([f"buffer_load_dwordx4 v157, {srd(SRD_X)}, s{S_CX} offen offset:2048{nt} lds"])
        grp.append([f"buffer_load_dwordx4 v158, {srd(SRD_X)}, s{S_CX} offen offset:3072{nt} lds",
                    f"s_add_u32 s{S_CX}, s{S_CX}, 128"])
        grp.append([f"s_mov_b32 m0, s{S_T1}", f"s_mov_b64 exec, {s2(S_WM)}",
                    f"buffer_load_dwordx4 v6, {srd(SRD_W)}, s{S_CW} offen{nt} lds", "s_mov_b64 exec, -1"])
        grp.append([f"s_mov_b64 exec, {s2(S_WM+2)}",
                    f"buffer_load_dwordx4 v7, {srd(SRD_W)}, s{S_CW} offen offset:1024{nt} lds", "s_mov_b64 exec, -1"])
        grp.append([f"s_mov_b64 exec, {s2(S_WM+4)}",
                    f"buffer_load_dwordx4 v8, {srd(SRD_W)}, s{S_CW} offen offset:2048{nt} lds", "s_mov_b64 exec, -1",
                    f"s_add_u32 s{S_CW}, s{S_CW}, {64*3840}", f"s_cmp_eq_u32 s{S_CX}, s{S_CC}",
                    f"s_cselect_b32 s{S_CX}, s{S_XB}, s{S_CX}", f"s_cselect_b32 s{S_CW}, s{S_WB}, s{S_CW}"])
        if "qx" in self.exp:
            last = grp.pop()
            extra = [[f"s_mov_b32 m0, {L_XS}", "s_nop 0", f"buffer_load_dwordx4 v152, {srd(SRD_W)}, s{S_CW} offen{nt} lds"],
                     [f"s_mov_b32 m0, {L_XS + 1024}", "s_mov_b32 exec_lo, 0xffff", "s_mov_b32 exec_hi, 0",
                      f"buffer_load_dwordx4 v153, {srd(SRD_W)}, s{S_CW} offen{nt} lds", "s_mov_b64 exec, -1", f"s_mov_b32 m0, s{S_T1}"]]
            grp += extra + [last]
        return grp

    def wq_groups(self):
        grp = []
        for m in range(13):
            q, pt = divmod(m, 5)
            gl = [f"s_add_u32 m0, s{S_WQL}, {m*1024}", f"s_add_u32 s{S_T2}, s{S_WQG}, {q*64*3840}"]
            if m == 12:
                gl += ["s_mov_b32 exec_hi, 0", f"buffer_load_dwordx4 v{152+pt}, {srd(SRD_W)}, s{S_T2} offen lds", "s_mov_b64 exec, -1"]
            else:
                gl += [f"buffer_load_dwordx4 v{152+pt}, {srd(SRD_W)}, s{S_T2} offen lds"]
            grp.append(gl)
        return grp

    def wq_setup(self):
        g = self
        for pt in range(5):
            g(f"""
            v_add_u32 v9, {64*pt}, v1
            v_mul_u32_u24 v11, 52429, v9
            v_lshrrev_b32 v11, 18, v11
            v_mul_u32_u24 v12, 5, v11
            v_sub_u32 v12, v9, v12
            v_and_b32 v13, 3, v11
            v_bfe_u32 v14, v11, 2, 2
            v_and_b32 v11, 0xfffffff0, v11
            v_lshl_add_u32 v11, v13, 2, v11
            v_add_u32 v11, v11, v14
            v_mul_u32_u24 v11, 3840, v11
            v_lshl_add_u32 v{152+pt}, v12, 4, v11
            """)
        g(f"""
        s_mul_i32 s{S_WQL}, s{S_WAVE}, 12800
        s_add_u32 s{S_WQL}, s{S_WQL}, {L_WQ}
        s_mul_i32 s{S_WQG}, s{S_WAVE}, {160*3840}
        s_mul_i32 s{S_T0}, s{S_HP}, 80
        s_add_u32 s{S_WQG}, s{S_WQG}, s{S_T0}
        """)

    def pass1(self):
        g = self
        self.dbg_span(2, True); self.dbg_span(7, False); self.mark("filled"); self.skew_record()
        g.vmwait("c0")
        g("s_waitcnt lgkmcnt(0)\ns_barrier")
        self.stamp("c0")
        for x in self.p1_reads(0): g(x)
        g("s_waitcnt lgkmcnt(6)")
        for x in self.p1_reads(1): g(x)
        g(f"""
        s_cmp_lg_u32 s{S_WAVE}, 0
        s_cbranch_scc1 L_nopub
        v_mov_b32 v9, {L_P0}           ; HZ_SKIP_BEGIN
        ds_read_b128 v[172:175], v9
        ds_read_b128 v[176:179], v9 offset:16
        s_lshl_b32 s{S_T0}, s2, 3
        s_add_u32 s{S_T0}, s{S_T0}, {WS_RMAX}
        v_mov_b32 v11, s{S_T0}
        s_waitcnt lgkmcnt(0)
        v_cmp_gt_f32 vcc, v174, v172
        v_cndmask_b32 v172, v172, v174, vcc
        v_cndmask_b32 v173, v173, v175, vcc
        v_cmp_gt_f32 vcc, v176, v172
        v_cndmask_b32 v172, v172, v176, vcc
        v_cndmask_b32 v173, v173, v177, vcc
        v_cmp_gt_f32 vcc, v178, v172
        v_cndmask_b32 v172, v172, v178, vcc
        v_cndmask_b32 v173, v173, v179, vcc
        s_mov_b64 exec, 1
        buffer_store_dwordx2 v[172:173], v11, {srd(SRD_WS)}, 0 offen sc1
        s_mov_b64 exec, -1             ; HZ_SKIP_END
L_nopub:
        """)
        pend = []
        for n in range(40):
            c, ks = divmod(n, 4); b = n % 3
            if ks == 0:
                nxt = c + self.dist if c + self.dist <= 9 else None
                if "hyb" in self.exp: nxt = {0: 3, 1: 4, 2: 5, 3: 6, 4: 7, 5: None, 6: 8, 7: 9}.get(c)
                if nxt is not None:
                    rf = self.p1_refill(nxt)
                    pend += rf; self.vmq = getattr(self, "vmq", []) + [f"c{nxt}"] * len(rf)
                if c == 3:
                    pend.append(self.touch_wq()); self.vmq.append("tq")
                if c == 7:
                    pend += self.touch_moe(); self.vmq += ["tm"] * 3
                if c == 6:
                    pend.append([f"v_mov_b32 v75, 240", f"buffer_load_dword v75, v75, {srd(SRD_DBG)}, 0 offen sc1"]); self.vmq.append("rdy")
            if ks == 2 and c < 9:
                g(f"s_waitcnt lgkmcnt(6)")
                g.vmwait(f"c{c+1}")
                g("s_barrier")
                self.stamp(f"B{c}")
                if c == 0:
                    g(f"""
                    s_cmp_lg_u32 s2, 0
                    s_cbranch_scc1 L_noready
                    s_cmp_lg_u32 s{S_WAVE}, 1
                    s_cbranch_scc1 L_noready
                    s_memrealtime s[64:65]         ; HZ_SKIP_BEGIN
                    v_mov_b32 v11, 240
                    s_waitcnt lgkmcnt(0)
                    s_mul_i32 s64, s64, 0x9e3779b1
                    s_or_b32 s64, s64, 1
                    v_mov_b32 v12, s64
                    s_mov_b64 exec, 1
                    buffer_store_dword v12, v11, {srd(SRD_DBG)}, 0 offen sc1
                    s_mov_b64 exec, -1             ; HZ_SKIP_END
L_noready:
                    """)
                if c == 7 and "wqtail" in self.exp:
                    wq = self.wq_groups(); pend += wq; self.vmq += ["wq"] * len(wq)
                if c == self.dist - 1:
                    g(f"""
                    s_cmp_lg_u32 s{S_WAVE}, 0
                    s_cbranch_scc1 L_noatom
                    s_and_b32 s{S_T0}, s2, 3       ; HZ_SKIP_BEGIN
                    s_lshl_b32 s{S_T0}, s{S_T0}, 6
                    v_mov_b32 v11, s{S_T0}
                    v_mov_b32 v12, 1
                    s_mov_b64 exec, 1
                    buffer_atomic_add v12, v11, {srd(SRD_DBG)}, 0 offen sc1
                    s_mov_b64 exec, -1             ; HZ_SKIP_END
L_noatom:
                    """)
            elif n == 39: g("s_waitcnt lgkmcnt(0)")
            else: g("s_waitcnt lgkmcnt(6)")
            rd = self.p1_reads(n + 2) if n + 2 < 40 else []
            if "nords" in self.exp: rd = []
            XP = ac(4*n, 4)
            WF = lambda t: 92 + 12*b + 4*t
            first = (n == 0)
            def dma():
                if pend:
                    grp = pend.pop(0); tag = self.vmq.pop(0)
                    if "nodma" not in self.exp:
                        for x in grp: g(x)
                    if tag: g.vmi(tag)
            cin = lambda r, k: "0" if first else v(r, k)
            def small(m):
                bm = m % 3; z = (m == 0)
                g(f"v_mfma_f32_4x4x4_16b_bf16 v[64:67], {ac(4*m,2)}, {ac(4*m,2)}, {'0' if z else 'v[64:67]'}")
                g(f"v_mfma_f32_4x4x4_16b_bf16 v[68:71], {ac(4*m+2,2)}, {ac(4*m+2,2)}, {'0' if z else 'v[68:71]'}")
                g(f"v_mfma_f32_4x4x4_16b_bf16 v[76:79], {v(160+4*bm,2)}, v[84:85], {'0' if z else 'v[76:79]'}")
                g(f"v_mfma_f32_4x4x4_16b_bf16 v[80:83], {v(160+4*bm+2,2)}, v[84:85], {'0' if z else 'v[80:83]'}")
            batch = "nobatch" not in self.exp
            if batch and n % 2 == 1:
                small(n - 1); small(n)
            g(f"v_mfma_f32_32x32x16_bf16 v[16:31], {v(WF(0),4)}, {XP}, {cin(16,16)}")
            for x in rd[0:3]: g(x)
            dma()
            g(f"v_mfma_f32_32x32x16_bf16 v[32:47], {v(WF(1),4)}, {XP}, {cin(32,16)}")
            for x in rd[3:6]: g(x)
            g(f"v_mfma_f32_32x32x16_bf16 v[48:63], {v(WF(2),4)}, {XP}, {cin(48,16)}")
            for x in rd[6:9]: g(x)
            dma()
            if not batch: small(n)
            if c in (3, 6, 7) or "qx" in self.exp or ("wqtail" in self.exp and c >= 7): dma()
        while pend:
            grp = pend.pop(0); tag = self.vmq.pop(0)
            for x in grp: g(x)
            if tag: g.vmi(tag)
        self.stamp("p1end")

    def touch_moe(self):
        return [
            [f"v_mul_u32_u24 v9, 13108, v1", "v_lshrrev_b32 v9, 16, v9", "v_mul_u32_u24 v10, 5, v9", "v_sub_u32 v10, v1, v10",
             "v_mul_u32_u24 v11, 3456, v9", "v_lshl_add_u32 v11, v10, 7, v11",
             f"s_mul_i32 s{S_T0}, s{S_XCD}, 448", f"s_and_b32 s{S_T0}, s{S_T0}, 0xffffff80",
             f"s_lshl_b32 s{S_T2}, s{S_SLOT}, 2", f"s_add_u32 s{S_T2}, s{S_T2}, s{S_WAVE}", f"s_mul_i32 s{S_T2}, s{S_T2}, {5*3456}",
             f"s_add_u32 s{S_T0}, s{S_T0}, s{S_T2}", "s_mov_b32 exec_lo, 0x1ffffff", "s_mov_b32 exec_hi, 0",
             f"buffer_load_dword v159, v11, {srd(SRD_G)}, s{S_T0} offen", "s_mov_b64 exec, -1"],
            ["s_mov_b32 exec_lo, 0x1ffffff", "s_mov_b32 exec_hi, 0",
             f"buffer_load_dword v159, v11, {srd(SRD_U)}, s{S_T0} offen", "s_mov_b64 exec, -1"],
            ["v_mul_u32_u24 v9, 6554, v1", "v_lshrrev_b32 v9, 16, v9", "v_mul_u32_u24 v10, 10, v9", "v_sub_u32 v10, v1, v10",
             "v_mul_u32_u24 v12, 1280, v9", "v_lshl_add_u32 v12, v10, 7, v12",
             f"s_mul_i32 s{S_T0}, s{S_XCD}, {224*1280}", f"s_mul_i32 s{S_T2}, s{S_SLOT}, 7", f"s_lshl_b32 s{S_T3}, s{S_WAVE}, 1",
             f"s_add_u32 s{S_T2}, s{S_T2}, s{S_T3}", f"s_mul_i32 s{S_T2}, s{S_T2}, 1280", f"s_add_u32 s{S_T0}, s{S_T0}, s{S_T2}",
             "s_mov_b32 exec_lo, 0xfffff", "s_mov_b32 exec_hi, 0",
             f"buffer_load_dword v159, v12, {srd(SRD_D)}, s{S_T0} offen", "s_mov_b64 exec, -1"]]

    def touch_wq(self):
        return ["v_mul_u32_u24 v9, 21846, v1", "v_lshrrev_b32 v9, 16, v9", "v_mul_u32_u24 v10, 3, v9", "v_sub_u32 v10, v1, v10",
                f"s_lshl_b32 s{S_T0}, s{S_SLOT}, 2", f"s_add_u32 s{S_T0}, s{S_T0}, s{S_WAVE}", f"s_mul_i32 s{S_T0}, s{S_T0}, 5",
                f"v_add_u32 v9, s{S_T0}, v9", "v_mul_u32_u24 v9, 3840, v9", "v_lshl_add_u32 v9, v10, 7, v9",
                f"s_lshr_b32 s{S_T0}, s{S_XCD}, 1", f"s_mul_i32 s{S_T0}, s{S_T0}, 320", f"s_and_b32 s{S_T0}, s{S_T0}, 0xffffff80",
                "s_mov_b32 exec_lo, 0x7fff", "s_mov_b32 exec_hi, 0",
                f"buffer_load_dword v159, v9, {srd(SRD_W)}, s{S_T0} offen", "s_mov_b64 exec, -1"]

    def stats_and_colsum(self, first):
        g = self
        csoff = 0 if first else 128 * 4
        for i in range(4): g(f"v_add_f32 v{76+i}, v{76+i}, v{80+i}")
        for i in range(4): g(f"v_mov_b32 v{80+i}, v{76+i}")
        for i in range(4): g(f"v_permlane32_swap_b32 v{76+i}, v{80+i}")
        for i in range(4): g(f"v_add_f32 v{76+i}, v{76+i}, v{80+i}")
        g(f"""
        s_lshl_b32 s{S_T0}, s{S_WAVE}, 7
        s_add_u32 s{S_T0}, s{S_T0}, {L_CS + csoff}
        v_lshl_add_u32 v9, v1, 2, s{S_T0}
        s_mov_b32 exec_lo, 0x11111111
        s_mov_b32 exec_hi, 0
        ds_write_b128 v9, v[76:79]
        s_mov_b64 exec, -1
        """)
        if first:
            for i in range(4): g(f"v_add_f32 v{64+i}, v{64+i}, v{68+i}")
            for i in range(1, 4):
                m = 0x11111111 << i
                g(f"s_mov_b32 s{S_MB}, {hex(m)}\ns_mov_b32 s{S_MB+1}, {hex(m)}\nv_cndmask_b32 v64, v64, v{64+i}, {s2(S_MB)}")
            g(f"""
            v_mov_b32 v65, v64
            v_mov_b32 v90, 0x3acccccd
            s_nop 0
            v_permlane32_swap_b32 v64, v65
            v_add_f32 v64, v64, v65
            v_mul_f32 v66, v56, v90
            v_mul_f32 v64, v64, v90
            v_fma_f32 v64, -v66, v66, v64
            v_max_f32 v64, 0, v64
            """)
            g.rnd_bf16(64, 64)
            g("v_add_f32 v64, 0x3727c5ac, v64")
            g.rnd_bf16(64, 64)
            g("v_sqrt_f32 v64, v64")
            g.rnd_bf16(90, 64)
            g.rnd_bf16(91, 66)
            g("v_rcp_f32 v88, v90\nv_sub_f32 v86, 0, v91")
        g("s_waitcnt lgkmcnt(0)\ns_barrier")
        self.stamp("csbar" if first else "csbar2")

    def normalise(self, quads, csoff):
        g = self
        g(f"v_lshlrev_b32 v9, 4, v3\nv_add_u32 v9, {L_CS + csoff}, v9")
        for i, (r, col) in enumerate(quads):
            g(f"ds_read_b128 {v(160+4*i,4)}, v9 offset:{col*4}")
        for i, (r, col) in enumerate(quads):
            g(f"s_waitcnt lgkmcnt({len(quads)-1-i})")
            for hh in range(2):
                g(f"v_pk_fma_f32 {v(r+2*hh,2)}, {v(160+4*i+2*hh,2)}, v[86:87], {v(r+2*hh,2)} op_sel_hi:[1,0,1]")
            for hh in range(2):
                g(f"v_pk_mul_f32 {v(r+2*hh,2)}, {v(r+2*hh,2)}, v[88:89] op_sel_hi:[1,0]")

    def softmax(self, H0, H1, after=None):
        g = self
        P = (92, 108)
        L = 0x3fb8aa3b
        if "fold" in self.exp: g(f"v_mul_f32 v124, {hex(L)}, v88\nv_mul_f32 v126, {hex(L | 0x80000000)}, v88")
        else: g(f"v_mov_b32 v124, {hex(L)}\nv_mov_b32 v126, {hex(L | 0x80000000)}")
        for H in (H0, H1): g(f"v_mov_b32 v{H+10}, 0\nv_mov_b32 v{H+11}, 0")
        E = (160, 180)
        MX = (200, 204)
        for a in range(2):
            p, mx = P[a], MX[a]
            g(f"""
            v_max3_f32 v{mx}, v{p}, v{p+1}, v{p+2}
            v_min3_f32 v{mx+1}, v{p}, v{p+1}, v{p+2}
            v_max3_f32 v{mx}, v{mx}, v{p+3}, v{p+4}
            v_min3_f32 v{mx+1}, v{mx+1}, v{p+3}, v{p+4}
            v_max3_f32 v{mx}, v{mx}, v{p+5}, v{p+6}
            v_min3_f32 v{mx+1}, v{mx+1}, v{p+5}, v{p+6}
            v_max3_f32 v{mx}, v{mx}, v{p+7}, v{p+8}
            v_min3_f32 v{mx+1}, v{mx+1}, v{p+7}, v{p+8}
            v_max_f32 v{mx}, v{mx}, v{p+9}
            v_min_f32 v{mx+1}, v{mx+1}, v{p+9}
            v_sub_f32 v{mx+1}, 0, v{mx+1}
            """)
        for a in range(2): g(f"v_permlane32_swap_b32 v{MX[a]}, v{MX[a]+1}")
        for a in range(2): g(f"v_max_f32 v{MX[a]}, v{MX[a]}, v{MX[a]+1}")
        for a in range(2): g(f"v_mov_b32 v{MX[a]+1}, v{MX[a]}")
        for a in range(2): g(f"v_permlane32_swap_b32 v{MX[a]}, v{MX[a]+1}")
        for a in range(2):
            mx = MX[a]
            g(f"v_mul_f32 v{mx+2}, v{mx+1}, v126\nv_mul_f32 v{mx}, v{mx}, v126")
        for a in range(2):
            p, mx, e = P[a], MX[a], E[a]
            for i in range(5):
                g(f"v_pk_fma_f32 {v(e+2*i,2)}, {v(p+2*i,2)}, v[124:125], {v(mx,2)} op_sel_hi:[1,0,0]")
                g(f"v_pk_fma_f32 {v(e+10+2*i,2)}, {v(p+2*i,2)}, v[126:127], {v(mx+2,2)} op_sel_hi:[1,0,0]")
        self.stamp("sm_pre" + str(H0) + getattr(self, "smtag", ""))
        for a in range(2):
            for i in range(20): g(f"v_exp_f32 v{E[a]+i}, v{E[a]+i}")
        self.stamp("sm_exp" + getattr(self, "smtag", ""))
        SM = (208, 214)
        for a in range(2):
            e, sm = E[a], SM[a]
            g(f"v_pk_add_f32 {v(sm,2)}, {v(e,2)}, {v(e+2,2)}\nv_pk_add_f32 {v(sm+2,2)}, {v(e+10,2)}, {v(e+12,2)}")
        for i in range(2, 5):
            for a in range(2):
                e, sm = E[a], SM[a]
                g(f"v_pk_add_f32 {v(sm,2)}, {v(sm,2)}, {v(e+2*i,2)}\nv_pk_add_f32 {v(sm+2,2)}, {v(sm+2,2)}, {v(e+10+2*i,2)}")
        for a in range(2):
            sm = SM[a]
            g(f"v_add_f32 v{sm}, v{sm}, v{sm+1}\nv_add_f32 v{sm+1}, v{sm+2}, v{sm+3}")
        for a in range(2): g(f"v_permlane32_swap_b32 v{SM[a]}, v{SM[a]+1}")
        for a in range(2): g(f"v_add_f32 v{SM[a]}, v{SM[a]}, v{SM[a]+1}")
        for a in range(2): g(f"v_mov_b32 v{SM[a]+2}, v{SM[a]}")
        for a in range(2): g(f"v_permlane32_swap_b32 v{SM[a]}, v{SM[a]+2}")
        for a in range(2): g(f"v_rcp_f32 v{SM[a]}, v{SM[a]}\nv_rcp_f32 v{SM[a]+2}, v{SM[a]+2}")
        for a, H in ((0, H0), (1, H1)):
            e, sm = E[a], SM[a]
            for i in range(5):
                g(f"v_pk_mul_f32 {v(e+2*i,2)}, {v(e+2*i,2)}, {v(sm,2)} op_sel_hi:[1,0]")
                g(f"v_pk_mul_f32 {v(e+10+2*i,2)}, {v(e+10+2*i,2)}, {v(sm+2,2)} op_sel_hi:[1,0]")
            for i in range(10):
                g(f"v_cvt_pk_bf16_f32 v{H+i}, v{e+2*i}, v{e+2*i+1}")
                if after and i in (3, 7, 9): after(a, H, {3: 0, 7: 1, 9: 2}[i])

    def norm_reads(self, quads, csoff, r0):
        g = self
        for i, (r, col) in enumerate(quads):
            g(f"ds_read_b128 {v(r0+4*i,4)}, v9 offset:{col*4}")

    def norm_apply(self, quads, r0, after, scale=True):
        g = self
        for i, (r, col) in enumerate(quads):
            g(f"s_waitcnt lgkmcnt({len(quads)-1-i+after})")
            for hh in range(2):
                g(f"v_pk_fma_f32 {v(r+2*hh,2)}, {v(r0+4*i+2*hh,2)}, v[86:87], {v(r+2*hh,2)} op_sel_hi:[1,0,1]")
            for hh in range(2 if scale else 0):
                g(f"v_pk_mul_f32 {v(r+2*hh,2)}, {v(r+2*hh,2)}, v[88:89] op_sel_hi:[1,0]")

    def featmap_mfma(self, PK):
        g = self
        g(f"v_mfma_f32_32x32x16_bf16 v[92:107], v[140:143], {v(PK,4)}, 0")
        g(f"v_mfma_f32_32x32x16_bf16 v[108:123], v[146:149], {v(PK+4,4)}, 0")
        g(f"v_mfma_f32_32x32x8_bf16 v[92:107], v[144:145], {v(PK+4,2)}, v[92:107]")
        g(f"v_mfma_f32_32x32x8_bf16 v[108:123], v[150:151], {v(PK+8,2)}, v[108:123]")

    def k_epilogue(self):
        g = self
        self.stats_and_colsum(True)
        PK, PV = 244, 210
        kq = [(16+4*j, 8*j) for j in range(4)] + [(32, 32)]
        vq = [(36, 40), (40, 48), (44, 56), (48, 64), (52, 72)]
        def part1():
            g(f"v_lshlrev_b32 v9, 4, v3\nv_add_u32 v9, {L_CS}, v9")
            self.norm_reads(kq, 0, 160); self.norm_reads(vq, 0, 180)
            self.norm_apply(kq, 160, 5, scale="fold" not in self.exp)
            for i in range(10): g(f"v_cvt_pk_bf16_f32 v{PK+i}, v{16+2*i}, v{16+2*i+1}")
            self.stamp("k_cvt")
            self.featmap_mfma(PK)
            self.norm_apply(vq, 180, 0)
            self.stamp("v_norm")
            self.dump("kv_norm", list(range(16, 64)) + [86, 88, 90, 91])
            g(f"""
            v_accvgpr_read_b32 v11, a192
            v_mov_b32 v14, 0x3f80
            v_mov_b32 v15, 0
            v_lshl_add_u32 v12, v3, 4, v11
            v_lshl_add_u32 v13, v3, 3, v11
            ds_write_b64 v12, v[14:15] offset:{34*8}
            """)
            for i, (r, col) in enumerate(vq):
                g(f"v_cvt_pk_bf16_f32 v{PV+2*i}, v{r}, v{r+1}\nv_cvt_pk_bf16_f32 v{PV+2*i+1}, v{r+2}, v{r+3}")
                g(f"ds_write_b64 v11, {v(PV+2*i,2)} offset:{192 + 16*i}")
            self.stamp("prefm")
            self.softmax(220, 232, after=lambda a, H, st: g(f"ds_write_b128 v13, {v(H+4*st,4)} offset:{a*96 + st*32}"))
            self.stamp("postfm")
        if "wqtail" in self.exp: part1()
        else: self.interleave([(x, "wq") for x in self.wq_groups()], self.capture(part1))
        self.dump("phik", list(range(220, 244)))
        g("v_accvgpr_read_b32 v160, a193\nv_accvgpr_read_b32 v161, a194\nv_accvgpr_read_b32 v9, a195")
        g(f"v_cmp_gt_u32 vcc, 21, v2\ns_and_b32 s{S_T1}, s{S_WAVE}, 1\ns_mov_b64 {s2(S_MA)}, vcc")
        g.vmwait("wq")
        g("s_waitcnt lgkmcnt(0)\ns_barrier")
        self.stamp("Tbar")
        A0, B0 = 164, 196
        for ks in range(8):
            for rd in range(2):
                g(f"ds_read_b64_tr_b16 {v(A0+4*ks+2*rd,2)}, v160 offset:{(16*ks+rd)*336}")
                g(f"ds_read_b64_tr_b16 {v(B0+4*ks+2*rd,2)}, v161 offset:{(16*ks+rd)*336}")
            if ks >= 2:
                k = ks - 2
                g("s_waitcnt lgkmcnt(8)")
                cin = "0" if k == 0 else "v[92:107]"
                g(f"v_mfma_f32_32x32x16_bf16 v[92:107], {v(A0+4*k,4)}, {v(B0+4*k,4)}, {cin}")
        g("s_waitcnt lgkmcnt(4)")
        g(f"v_mfma_f32_32x32x16_bf16 v[92:107], {v(A0+24,4)}, {v(B0+24,4)}, v[92:107]")
        g("s_waitcnt lgkmcnt(0)")
        g(f"v_mfma_f32_32x32x16_bf16 v[92:107], {v(A0+28,4)}, {v(B0+28,4)}, v[92:107]")
        g(f"""
        s_cmp_lg_u32 s{S_T1}, 0
        s_cbranch_scc1 L_kvft1
        s_mov_b64 exec, {s2(S_MA)}     ; HZ_SKIP_BEGIN
        buffer_store_dwordx4 v[92:95], v9, {srd(SRD_WS)}, s{S_KVS} offen sc1
        buffer_store_dwordx4 v[96:99], v9, {srd(SRD_WS)}, s{S_KVS} offen offset:672 sc1
        buffer_store_dwordx4 v[100:103], v9, {srd(SRD_WS)}, s{S_KVS} offen offset:1344 sc1
        buffer_store_dwordx4 v[104:107], v9, {srd(SRD_WS)}, s{S_KVS} offen offset:2016 sc1
        s_branch L_kvdone              ; HZ_SKIP_END
L_kvft1:
        s_and_b32 s{S_MA}, s{S_MA}, 0x1fffff      ; HZ_SKIP_BEGIN
        s_mov_b32 s{S_MA+1}, 0
        s_mov_b64 exec, {s2(S_MA)}
        buffer_store_dwordx4 v[92:95], v9, {srd(SRD_WS)}, s{S_KVS} offen offset:2688 sc1
        buffer_store_dwordx4 v[96:99], v9, {srd(SRD_WS)}, s{S_KVS} offen offset:3024 sc1   ; HZ_SKIP_END
L_kvdone:
        s_mov_b64 exec, -1
        """)
        self.stamp("kvstore")

    def mark(self, name):
        for e in self.exp:
            if e.startswith("probe:"):
                _, a, b, k = e.split(":")
                ins = "s_memtime" if k.startswith("c") else "s_memrealtime"
                if name == a: self(f"{ins} s[86:87]")
                if name == b: self(f"{ins} s[88:89]")

    def skew_record(self):
        if "skew" not in self.exp: return
        self(f"""
        s_add_u32 s100, s2, 8
        s_and_b32 s100, s100, 0xf0
        s_cmp_lg_u32 s100, 0
        s_cbranch_scc1 L_noskew
        s_cmp_lg_u32 s{S_WAVE}, 0
        s_cbranch_scc1 L_noskew
        s_not_b32 s100, s98
        v_mov_b32 v9, 8
        v_mov_b32 v10, s100
        v_mov_b32 v11, 12
        v_mov_b32 v12, s98
        s_mov_b64 exec, 1
        buffer_atomic_umax v10, v9, {srd(SRD_DBG)}, 0 offen sc1
        buffer_atomic_umax v12, v11, {srd(SRD_DBG)}, 0 offen sc1
        s_mov_b64 exec, -1
L_noskew:
        """)

    def skew_spin(self):
        if "skew" not in self.exp: return
        self(f"""
        v_mov_b32 v9, 8
        buffer_load_dwordx2 v[10:11], v9, {srd(SRD_DBG)}, 0 offen sc1
        s_waitcnt vmcnt(0)
        v_readfirstlane_b32 s92, v10
        v_readfirstlane_b32 s93, v11
        s_not_b32 s92, s92
        s_sub_u32 s92, s93, s92
        s_mul_i32 s92, s92, 4
        s_memrealtime s[90:91]
        s_waitcnt lgkmcnt(0)
        s_add_u32 s92, s92, s90
L_skewspin:
        s_memrealtime s[90:91]
        s_waitcnt lgkmcnt(0)
        s_sub_u32 s93, s92, s90
        s_cmp_gt_i32 s93, 0
        s_cbranch_scc1 L_skewspin
        """)

    def probe_spin(self):
        for e in self.exp:
            if e.startswith("probe:"):
                _, a, b, k = e.split(":")
                self(f"""
                s_memrealtime s[90:91]
                s_waitcnt lgkmcnt(0)
                s_sub_u32 s92, s88, s86
                {f"s_lshr_b32 s92, s92, {k[1:]}" if k.startswith("c") else f"s_mul_i32 s92, s92, {k}"}
                s_add_u32 s92, s92, s90
L_probe:
                s_memrealtime s[90:91]
                s_waitcnt lgkmcnt(0)
                s_sub_u32 s93, s92, s90
                s_cmp_gt_i32 s93, 0
                s_cbranch_scc1 L_probe
                """)

    def dbg_span(self, word, invert):
        if "span" not in self.exp: return
        g = self
        lab = f"L_span{word}"
        g(f"""
        s_and_b32 s100, s2, 15
        s_cmp_lg_u32 s100, 0
        s_cbranch_scc1 {lab}
        s_cmp_lg_u32 s{S_WAVE}, 0
        s_cbranch_scc1 {lab}
        s_memrealtime s[100:101]
        s_waitcnt lgkmcnt(0)
        {"s_not_b32 s100, s98" if invert else "s_nop 0"}
        v_mov_b32 v9, {word*4}
        v_mov_b32 v10, s100
        s_mov_b64 exec, 1
        buffer_atomic_umax v10, v9, {srd(SRD_DBG)}, 0 offen sc1
        s_mov_b64 exec, -1
{lab}:
        """)

    def finish(self):
        g = self
        self.mark("end")
        self.probe_spin()
        self.skew_spin()
        self.dbg_span(3, False)
        if self.stamps:
            g("s_waitcnt lgkmcnt(0)")
            self.flush_stamps()
            g(f"""
            s_lshl_b32 s{S_T0}, s2, 2
            s_add_u32 s{S_T0}, s{S_T0}, s{S_WAVE}
            s_lshl_b32 s{S_T0}, s{S_T0}, 8
            s_add_u32 s{S_T0}, s{S_T0}, {WS_TS}
            v_lshlrev_b32 v9, 2, v1
            buffer_store_dword v255, v9, {srd(SRD_WS)}, s{S_T0} offen
            """)
        g("L_exit:\ns_endpgm\nL_code_end:")

    def pre_k_epilogue(self):
        pass

    def build(self):
        g = self
        self.prologue()
        self.dump("phifrag", list(range(140, 152)))
        self.pass1()
        self.dump("acc1", list(range(16, 84)))
        if self.stop != "pass1":
            self.dbg_span(10, False); self.mark("p1end")
            self.pre_k_epilogue()
            self.k_epilogue()
        if self.stop not in ("pass1", "kv"):
            self.rest()
        self.finish()

    def text(self):
        body, nins = hazard.fix([l.strip() for l in self.a.lines])
        hdr = open("parallel_sum__linear_kernel_hedgehog__moe_arch_mod__prompt.s.ref").read().split("\n")
        top = [l for l in hdr if l.startswith(";") and "@launch" not in l and "Override" not in l and "grid=ceil" not in l]
        out = "\n".join(top) + "\n"
        out += f"; @launch grid=(256,1,1) block=(256,1,1) lds={LDS_SIZE}\n"
        out += '.amdgcn_target "amdgcn-amd-amdhsa--gfx950"\n.text\n' + kernel_header(NAME)
        out += "\n".join("    " + l if not l.endswith(":") else l for l in body if l) + "\n"
        out += f""".section .rodata,"a"
.p2align 6
.amdhsa_kernel {NAME}
  .amdhsa_next_free_vgpr 512
  .amdhsa_next_free_sgpr 102
  .amdhsa_accum_offset 256
  .amdhsa_group_segment_fixed_size 0
  .amdhsa_kernarg_size 96
  .amdhsa_user_sgpr_count 2
  .amdhsa_user_sgpr_kernarg_segment_ptr 1
  .amdhsa_system_sgpr_workgroup_id_x 1
  .amdhsa_float_denorm_mode_32 3
.end_amdhsa_kernel
"""
        return out, nins


if __name__ == "__main__":
    import argparse, json
    import gen_rest
    ap = argparse.ArgumentParser()
    ap.add_argument("-o", default="k.s")
    ap.add_argument("--stop", default=None)
    ap.add_argument("--dump", default="")
    ap.add_argument("--stamps", default="")
    ap.add_argument("--notouch", action="store_true")
    ap.add_argument("--exp", default="")
    args = ap.parse_args()
    G = gen_rest.Full(stop=args.stop, dumps=[d for d in args.dump.split(",") if d], stamps=set(args.stamps.split(",")) if args.stamps else False, touch=not args.notouch, exp=[e for e in args.exp.split(",") if e])
    G.build()
    t, nins = G.text()
    open(args.o, "w").write(t)
    json.dump({"dumps": G.dump_index, "stamps": getattr(G, "stamp_names", [])}, open(args.o + ".json", "w"))
    print("wrote", args.o, "lines", t.count("\n"), "nops inserted", nins)
```
